```python
import torch

def _softmax(x, axis=-1):
    return torch.softmax(x, dim=axis)
def _gelu(x):
    return torch.nn.functional.gelu(x, approximate="tanh")
def _silu(x):
    return torch.nn.functional.silu(x)
def _sigmoid(x):
    return torch.sigmoid(x)
def _layernorm(x, axis=-1, eps=1e-5):
    m = x.mean(dim=axis, keepdim=True)
    v = x.var(dim=axis, keepdim=True, unbiased=False)
    return (x - m) / torch.sqrt(v + eps)
def _scatter_add(tgt, idx, src, axis=0):
    return tgt.clone().index_add_(axis, idx, src)
def _segment_sum(src, seg, n):
    out = torch.zeros((n,) + src.shape[1:], dtype=src.dtype)
    return out.index_add_(0, seg, src)
def _pad(x, pw):
    flat = tuple(v for pair in reversed(pw) for v in pair)
    return torch.nn.functional.pad(x, flat)

kernel_name = 'concat_heads__ssm_conv_s4__softmax_full_mha__prompt'

def setup_inputs():

    _w = (lambda a: (lambda t: t.to(torch.bfloat16) if t.is_floating_point() else t)(torch.as_tensor(a)))
    def _A_setup():
        B, L, D, N = 1, 2048, 512, 128
        A_re = -(lambda _x: torch.exp(torch.as_tensor(_x)))((lambda *s: torch.randn(*s, dtype=torch.bfloat16) * 6.4)(D, N))
        A_im = torch.pi * (lambda *s: torch.randn(*s, dtype=torch.bfloat16) * 0.1)(D, N)
        B_re = (lambda *s: torch.randn(*s, dtype=torch.bfloat16) * 0.2)(D, N)
        B_im = (lambda *s: torch.randn(*s, dtype=torch.bfloat16) * 0.2)(D, N)
        C_re = (lambda *s: torch.randn(*s, dtype=torch.bfloat16) * 0.2)(D, N)
        C_im = (lambda *s: torch.randn(*s, dtype=torch.bfloat16) * 0.2)(D, N)
        log_dt = (lambda *s: torch.randn(*s, dtype=torch.bfloat16) * 0.1)(D) * 0.5 - 4.0
        Dskip = (lambda *s: torch.randn(*s, dtype=torch.bfloat16) * 0.1)(D)
        return {
            "u": _w((lambda *s: torch.randn(*s, dtype=torch.bfloat16) * 0.05)(B, L, D)),
            "A_re": _w(A_re),
            "A_im": _w(A_im),
            "B_re": _w(B_re),
            "B_im": _w(B_im),
            "C_re": _w(C_re),
            "C_im": _w(C_im),
            "log_dt": _w(log_dt),
            "Dskip": _w(Dskip),
        }
    _A_in = _A_setup()

    def _B_setup():
        B, S, D = 1, 2048, 512
        return {
            "x": _w((lambda *s: torch.randn(*s, dtype=torch.bfloat16) * 0.2)(B, S, D)),
            "wqkv": _w((lambda *s: torch.randn(*s, dtype=torch.bfloat16) * 0.2)(D, 3 * D)),
            "wo": _w((lambda *s: torch.randn(*s, dtype=torch.bfloat16) * 0.05)(D, D)),
        }
    _B_in = _B_setup()

    return {
        "A_u": _A_in["u"],
        "A_A_re": _A_in["A_re"],
        "A_A_im": _A_in["A_im"],
        "A_B_re": _A_in["B_re"],
        "A_B_im": _A_in["B_im"],
        "A_C_re": _A_in["C_re"],
        "A_C_im": _A_in["C_im"],
        "A_log_dt": _A_in["log_dt"],
        "A_Dskip": _A_in["Dskip"],
        "B_x": _B_in["x"],
        "B_wqkv": _B_in["wqkv"],
        "B_wo": _B_in["wo"],
    }

def reference(A_u, A_A_re, A_A_im, A_B_re, A_B_im, A_C_re, A_C_im, A_log_dt, A_Dskip, B_x, B_wqkv, B_wo):
    def _A_ref(u, A_re, A_im, B_re, B_im, C_re, C_im, log_dt, Dskip):
        Bsz, L, D = u.shape
        dt = torch.exp(log_dt)[:, None]
        A = A_re + 1j * A_im
        Bc = B_re + 1j * B_im
        Cc = C_re + 1j * C_im
        logdA = dt * A
        dB = dt * Bc
        l = (lambda x, dt: x.to(dt))(torch.arange(L), A_re.dtype)
        P = torch.exp(logdA[:, :, None] * l[None, None, :])
        K = torch.einsum("dn,dnl,dn->dl", Cc, P, dB).real
        L2 = 2 * L
        Kp = _pad(K, ((0, 0), (0, L)))
        up = (lambda x, *d: x.permute(*d))(u, 0, 2, 1)
        up = _pad(up, ((0, 0), (0, 0), (0, L)))
        Kf = (lambda x, axes=(-2,-1): torch.fft.rfft2(x.float(), dim=axes))(Kp[:, None, :], axes=(-2, -1))
        Uf = (lambda x, axes=(-2,-1): torch.fft.rfft2(x.float(), dim=axes))(up[:, :, None, :], axes=(-2, -1))
        Yf = Uf * Kf[None, :, :, :]
        y = (lambda x, s, axes=(-2,-1): torch.fft.irfft2(x, s=s, dim=axes).to(torch.bfloat16))(Yf, (1, L2), axes=(-2, -1))[:, :, 0, :L]
        y = (lambda x, *d: x.permute(*d))(y, 0, 2, 1) + u * Dskip[None, None, :]
        return y

    def _B_ref(x, wqkv, wo):
        B, S, D = x.shape
        H = 32; Dh = D // H
        qkv = (lambda x, *d: x.permute(*d))((x @ wqkv).reshape(B, S, 3, H, Dh), 2, 0, 3, 1, 4)
        q, k, v = qkv[0], qkv[1], qkv[2]
        scale = Dh ** -0.5
        scores = torch.einsum("bhqd,bhkd->bhqk", q, k) * scale
        p = _softmax(scores, axis=-1)
        o = torch.einsum("bhqk,bhkd->bhqd", p, v)
        return (lambda x, *d: x.permute(*d))(o, 0, 2, 1, 3).reshape(B, S, D) @ wo

    a = _A_ref(A_u, A_A_re, A_A_im, A_B_re, A_B_im, A_C_re, A_C_im, A_log_dt, A_Dskip)
    b = _B_ref(B_x, B_wqkv, B_wo)
    return torch.concatenate([a, b], axis=-1)
```

```python
import sys, math

NAME = 'concat_heads__ssm_conv_s4__softmax_full_mha__prompt'

QF = 0x000000
KF = 0x200000
VF = 0x400000
OF = 0x600000
KT = 0x800000
KT_COPY = 4224
KT_CH = 2 * KT_COPY
YT = 0xD00000
WS_BYTES = 0x1000000

LOG2E = 1.4426950408889634
QSCALE = 0.25 * LOG2E


def f2u(x):
    import struct
    return struct.unpack('<I', struct.pack('<f', x))[0]


class A:
    def __init__(self):
        self.L = []

    def __call__(self, s):
        for line in s.split('\n'):
            line = line.strip()
            if not line:
                continue
            if line.endswith(':') or line.startswith('.'):
                self.L.append(line)
            else:
                self.L.append('    ' + line)

    def text(self):
        return '\n'.join(self.L) + '\n'


def vr(a, n=1):
    return 'v%d' % a if n == 1 else 'v[%d:%d]' % (a, a + n - 1)


def sr(a, n=1):
    return 's%d' % a if n == 1 else 's[%d:%d]' % (a, a + n - 1)


def srd(a, dst, base, nbytes):
    a('s_mov_b32 s%d, s%d' % (dst, base))
    a('s_mov_b32 s%d, s%d' % (dst + 1, base + 1))
    a('s_mov_b32 s%d, 0x%x' % (dst + 2, nbytes))
    a('s_mov_b32 s%d, 0x00020000' % (dst + 3))


def mfma(d, x, y, c):
    cs = '0' if c is None else vr(c, 16)
    return 'v_mfma_f32_32x32x16_bf16 %s, %s, %s, %s' % (vr(d, 16), vr(x, 4), vr(y, 4), cs)


def cmul(a, d, x, y):
    a('v_pk_mul_f32 %s, %s, %s op_sel:[0,0] op_sel_hi:[1,0]' % (vr(d, 2), vr(x, 2), vr(y, 2)))
    a('v_pk_fma_f32 %s, %s, %s, %s op_sel:[1,1,0] op_sel_hi:[0,1,1] neg_lo:[0,1,0]' % (vr(d, 2), vr(x, 2), vr(y, 2), vr(d, 2)))


def cmul_many(a, items):
    for d, x, y in items:
        a('v_pk_mul_f32 %s, %s, %s op_sel:[0,0] op_sel_hi:[1,0]' % (vr(d, 2), vr(x, 2), vr(y, 2)))
    for d, x, y in items:
        a('v_pk_fma_f32 %s, %s, %s, %s op_sel:[1,1,0] op_sel_hi:[0,1,1] neg_lo:[0,1,0]' % (vr(d, 2), vr(x, 2), vr(y, 2), vr(d, 2)))


def code_prefetch(a, label_from, vtmp, vdst, spair, nloads):
    a('s_getpc_b64 %s' % sr(spair, 2))
    a('L_pc_%s:' % label_from)
    a('v_lshlrev_b32 %s, 6, v0' % vr(vtmp))
    for i in range(nloads):
        a('global_load_dword %s, %s, %s' % (vr(vdst), vr(vtmp), sr(spair, 2)))
        if i + 1 < nloads:
            a('v_add_u32 %s, 0x4000, %s' % (vr(vtmp), vr(vtmp)))


def desc(name, nvgpr, nsgpr=96):
    acc = (nvgpr + 3) // 4 * 4
    return '''.p2align 6
.amdhsa_kernel %s
  .amdhsa_next_free_vgpr %d
  .amdhsa_next_free_sgpr %d
  .amdhsa_accum_offset %d
  .amdhsa_group_segment_fixed_size 0
  .amdhsa_kernarg_size 120
  .amdhsa_user_sgpr_count 2
  .amdhsa_user_sgpr_kernarg_segment_ptr 1
  .amdhsa_system_sgpr_workgroup_id_x 1
.end_amdhsa_kernel
''' % (name, nvgpr, nsgpr, acc)


K1_SLOT = 28672
K1_GEN = 3 * K1_SLOT
K1_LDS = K1_GEN + 65536


def k1():
    a = A()
    a('''.p2align 8
.type k1_kernel,@function
k1_kernel:
s_cmp_ge_u32 s2, 256
s_cbranch_scc1 L1_end
s_load_dwordx16 s[16:31], s[0:1], 8
s_load_dwordx4 s[32:35], s[0:1], 72
s_load_dwordx2 s[36:37], s[0:1], 112''')
    code_prefetch(a, 'k1', 1, 2, 38, 1)
    a('''v_lshrrev_b32 v3, 6, v0
v_and_b32 v4, 63, v0
s_and_b32 s44, s2, 7
v_readfirstlane_b32 s3, v3
s_lshr_b32 s45, s2, 3
s_lshr_b32 s4, s44, 1
s_lshl_b32 s4, s4, 2
s_and_b32 s46, s45, 3
s_add_u32 s4, s4, s46
s_and_b32 s5, s44, 1
s_lshl_b32 s5, s5, 3
s_lshr_b32 s46, s45, 2
s_add_u32 s5, s5, s46
s_lshr_b32 s6, s3, 1
s_lshl_b32 s46, s2, 1
s_add_u32 s6, s6, s46''')
    a('''s_and_b32 s7, s3, 1
s_lshl_b32 s46, s6, 8
s_lshl_b32 s47, s7, 7
s_add_u32 s46, s46, s47
v_lshl_add_u32 v5, v4, 1, s46
s_lshl_b32 s46, s6, 1
v_mov_b32 v6, s46''')
    a('''v_lshrrev_b32 v10, 3, v4
v_lshrrev_b32 v11, 4, v4
v_and_b32 v12, 7, v4
v_xor_b32 v12, v12, v11
s_lshl_b32 s46, s4, 7
s_lshl_b32 s47, s3, 5
s_add_u32 s46, s46, s47
v_add_u32 v10, s46, v10
v_lshlrev_b32 v10, 10, v10
v_lshl_add_u32 v7, v12, 4, v10
v_xor_b32 v8, 64, v7
v_add_u32 v8, 0x2000, v8
v_lshrrev_b32 v10, 2, v4
s_lshl_b32 s46, s3, 4
v_add_u32 v10, s46, v10
v_mul_u32_u24 v10, 3072, v10
v_and_b32 v11, 3, v4
v_lshl_add_u32 v9, v11, 4, v10
s_lshl_b32 s46, s5, 6
v_add_u32 v9, s46, v9
s_lshl_b32 s48, s3, 12
s_lshl_b32 s49, s3, 10
s_add_u32 s49, s49, 16384
s_waitcnt lgkmcnt(0)''')
    P = 20
    for i in range(6):
        a('global_load_ushort %s, v5, %s' % (vr(P + i), sr(16 + 2 * i, 2)))
    a('global_load_ushort %s, v6, s[28:29]' % vr(P + 6))
    a('global_load_ushort %s, v6, s[30:31]' % vr(P + 7))
    srd(a, 8, 32, 2048 * 1024)
    srd(a, 12, 34, 512 * 3072)
    srd(a, 40, 36, WS_BYTES)

    def dma_chunk(c):
        slot = (c % 5) * K1_SLOT
        for m in range(4):
            a('s_add_u32 m0, s48, %d' % (slot + m * 1024))
            a('s_mov_b32 s50, %d' % (c * 128 + (m >> 1) * 16384))
            a('buffer_load_dwordx4 %s, s[8:11], s50 offen lds' % vr(7 + (m & 1)))
        for s in range(3):
            a('s_add_u32 m0, s49, %d' % (slot + s * 4096))
            a('s_mov_b32 s50, %d' % (c * 64 * 3072 + s * 1024))
            a('buffer_load_dwordx4 v9, s[12:15], s50 offen lds')

    for c in range(3):
        dma_chunk(c)

    a('''s_lshl_b32 s46, s3, 14
s_add_u32 s46, s46, %d
v_and_b32 v10, 7, v4
v_lshlrev_b32 v10, 4, v10
v_lshl_add_u32 v13, v4, 7, v10
v_add_u32 v13, s46, v13''' % K1_GEN)
    a('''v_lshrrev_b32 v10, 5, v4
v_bfe_u32 v11, v4, 3, 1
v_lshl_add_u32 v10, v10, 2, v11
v_bfe_u32 v11, v4, 2, 1
v_lshlrev_b32 v11, 2, v11
v_bfe_u32 v12, v4, 4, 1
v_lshl_add_u32 v11, v12, 1, v11
v_bfe_u32 v12, v4, 1, 1
v_add_u32 v11, v11, v12
v_xor_b32 v11, v11, v10
v_lshlrev_b32 v11, 4, v11
v_lshl_add_u32 v11, v10, 7, v11
v_and_b32 v12, 1, v4
v_lshl_add_u32 v11, v12, 3, v11
s_lshr_b32 s46, s3, 1
s_lshl_b32 s46, s46, 15
s_add_u32 s46, s46, %d
v_add_u32 v14, s46, v11
v_xor_b32 v15, 32, v14
v_add_u32 v15, 256, v15''' % K1_GEN)
    a('s_mov_b32 s51, 0x%x' % f2u(LOG2E))
    a('s_waitcnt vmcnt(21)')
    for i in range(8):
        a('v_lshlrev_b32 %s, 16, %s' % (vr(P + i), vr(P + i)))
    Are, Aim, Bre, Bim, Cre, Cim, LDT, DSK = range(P, P + 8)
    a('v_mul_f32 v%d, s51, v%d' % (LDT, LDT))
    a('v_exp_f32 v%d, v%d' % (LDT, LDT))
    a('s_nop 0')
    a('v_cvt_pk_bf16_f32 v%d, v%d, v%d' % (LDT, LDT, LDT))
    a('v_lshlrev_b32 v%d, 16, v%d' % (LDT, LDT))
    a('v_mul_f32 v%d, v%d, v%d' % (Are, LDT, Are))
    a('v_mul_f32 v%d, v%d, v%d' % (Aim, LDT, Aim))
    a('v_mul_f32 v%d, v%d, v%d' % (Bre, LDT, Bre))
    a('v_mul_f32 v%d, v%d, v%d' % (Bim, LDT, Bim))
    a('v_mul_f32 v%d, s51, v%d' % (Are, Are))
    a('v_mul_f32 v%d, 0.15915494, v%d' % (Aim, Aim))
    G = [32 + 2 * i for i in range(32)]
    W = [96 + 2 * i for i in range(9)]
    Z1, Z2, Z4, Z32 = 114, 116, 118, 120
    ZB = {256: 122, 512: 124, 768: 126, 1024: 128, 1280: 130, 1536: 132, 1792: 134}
    R = {}
    nxt = 136
    rows = {}
    rows[0] = [0, 1, 2, 3, 4, 5, 6, 7, 8, 1024, 1032, 1280, 1288, 1536, 1544, None]
    rows[1] = [256, 258, 260, 262, 264, 512, 516, 520, 768, 772, 776, 1792, 1800, None, None, None]
    for h in (0, 1):
        for e in rows[h]:
            if e is None:
                continue
            if e <= 8:
                R[e] = W[e]
            else:
                R[e] = nxt
                nxt += 2
    T0 = nxt
    cmul(a, W[0], Cre, Bre)
    direct = [(Z1, 1.0), (G[1], 8.0), (Z32, 32.0), (ZB[256], 256.0), (ZB[1024], 1024.0)]
    for i, (z, e) in enumerate(direct):
        a('v_mul_f32 v%d, 0x%x, v%d' % (T0 + 2 * i, f2u(e), Are))
        a('v_mul_f32 v%d, 0x%x, v%d' % (T0 + 2 * i + 1, f2u(e), Aim))
    for i, (z, e) in enumerate(direct):
        a('v_exp_f32 v%d, v%d' % (T0 + 2 * i, T0 + 2 * i))
        a('v_fract_f32 v%d, v%d' % (T0 + 2 * i + 1, T0 + 2 * i + 1))
    for i, (z, e) in enumerate(direct):
        a('v_cos_f32 v%d, v%d' % (z, T0 + 2 * i + 1))
        a('v_sin_f32 v%d, v%d' % (z + 1, T0 + 2 * i + 1))
    a('v_mov_b32 v%d, 1.0' % G[0])
    a('v_mov_b32 v%d, 0' % (G[0] + 1))
    for i, (z, e) in enumerate(direct):
        a('v_pk_mul_f32 %s, %s, %s op_sel:[0,0] op_sel_hi:[1,0]' % (vr(z, 2), vr(z, 2), vr(T0 + 2 * i, 2)))
    cmul_many(a, [(G[2], G[1], G[1]), (Z2, Z1, Z1), (W[1], W[0], Z1), (W[8], W[0], G[1]), (ZB[512], ZB[256], ZB[256]),
                  (ZB[1280], ZB[1024], ZB[256]), (G[5], G[1], Z32)])
    a('v_mov_b32 v%d, v%d' % (G[4], Z32))
    a('v_mov_b32 v%d, v%d' % (G[4] + 1, Z32 + 1))
    cmul_many(a, [(G[3], G[2], G[1]), (Z4, Z2, Z2), (W[2], W[0], Z2), (W[3], W[1], Z2), (ZB[768], ZB[512], ZB[256]),
                  (ZB[1536], ZB[1024], ZB[512]), (G[6], G[2], Z32)])
    cmul_many(a, [(G[7], G[3], Z32), (W[4], W[0], Z4), (W[5], W[1], Z4), (W[6], W[2], Z4), (W[7], W[3], Z4),
                  (ZB[1792], ZB[1024], ZB[768])])
    for i0 in range(8, 32, 4):
        cmul_many(a, [(G[i], G[i - 4], Z32) for i in range(i0, i0 + 4)])
    big = [e for e in R if e > 8]
    items = [(R[e], W[e & 15 if (e & 255) <= 8 else 0], ZB[e & ~255]) for e in big]
    for i0 in range(0, len(items), 5):
        cmul_many(a, items[i0:i0 + 5])
    PK = T0 + 12
    rowidx = [None] * 32
    for h in (0, 1):
        for r in range(16):
            rowidx[8 * (r >> 2) + 4 * h + (r & 3)] = rows[h][r]
    for c in range(8):
        comp = c >> 2
        ad = PK + 8 * (c & 1) + 16
        pk = PK + 8 * (c & 1)
        a('v_xor_b32 v%d, %d, v13' % (ad, c << 4))
        for j in range(4):
            p = 8 * (c & 3) + 2 * j
            a('v_cvt_pk_bf16_f32 v%d, v%d, v%d' % (pk + j, G[p] + comp, G[p + 1] + comp))
        for j in range(4):
            p = 8 * (c & 3) + 2 * j
            e0, e1 = rowidx[p], rowidx[p + 1]
            r0 = R[e0] if e0 is not None else W[0]
            r1 = R[e1] if e1 is not None else W[0]
            ng = '-' if comp else ''
            a('v_cvt_pk_bf16_f32 v%d, %sv%d, %sv%d' % (pk + 4 + j, ng, r0 + comp, ng, r1 + comp))
        a('ds_write_b128 v%d, %s' % (ad, vr(pk, 4)))
        a('ds_write_b128 v%d, %s offset:8192' % (ad, vr(pk + 4, 4)))
    a('s_waitcnt lgkmcnt(0)')
    a('s_barrier')
    KD = 32
    FR = 48
    NB = 4

    def gen_reads(s):
        off = (s >> 3) * 16384 + (s & 7) * 1024
        b = FR + 8 * (s % NB)
        a('ds_read_b64_tr_b16 %s, v14 offset:%d' % (vr(b, 2), off + 8192))
        a('ds_read_b64_tr_b16 %s, v15 offset:%d' % (vr(b + 2, 2), off + 8192))
        a('ds_read_b64_tr_b16 %s, v14 offset:%d' % (vr(b + 4, 2), off))
        a('ds_read_b64_tr_b16 %s, v15 offset:%d' % (vr(b + 6, 2), off))

    for s in range(3):
        gen_reads(s)
    for s in range(16):
        if s + 3 < 16:
            gen_reads(s + 3)
        a('s_waitcnt lgkmcnt(%d)' % (4 * min(3, 15 - s)))
        b = FR + 8 * (s % NB)
        a(mfma(KD, b, b + 4, None if s == 0 else KD))
    a('s_barrier')
    dma_chunk(3)
    dma_chunk(4)
    a('''s_mul_i32 s46, s6, %d
s_mul_i32 s47, s7, %d
s_add_u32 s46, s46, s47
s_add_u32 s46, s46, %d
v_and_b32 v10, 31, v4
v_lshlrev_b32 v10, 4, v10
v_sub_u32 v16, s46, v10
v_and_b32 v10, 1, v4
v_cmp_eq_u32 s[52:53], 1, v10
v_cmp_eq_u32 s[54:55], 0, v4
v_cmp_gt_u32 s[56:57], 4, v4
s_mov_b32 s58, -1
s_mov_b32 s59, 0
s_mov_b32 s60, 0
s_mov_b32 s61, -1''' % (KT_CH, KT_COPY, KT + 255 * 16))
    a('v_cndmask_b32 v10, 0, v%d, s[54:55]' % DSK)
    a('v_add_f32 v%d, v%d, v10' % (KD, KD))
    O = 64
    bases = [(0, 32), (128, 64), (160, 96), (192, 224)]
    a('v_bfe_u32 v11, v4, 5, 1')
    for s, (b0, b1) in enumerate(bases):
        a('v_mul_u32_u24 v10, %d, v11' % ((b1 - b0) * 16 & 0xffffff) if b1 >= b0 else 'v_mul_i32_i24 v10, %d, v11' % ((b1 - b0) * 16))
        a('v_sub_u32 v%d, v16, v10' % (80 + s))
        if b0:
            a('v_subrev_u32 v%d, %d, v%d' % (80 + s, b0 * 16, 80 + s))
    for i, r in enumerate((9, 11, 13)):
        a('v_cndmask_b32 v%d, v%d, v%d, s[52:53]' % (84 + i, KD + r, KD + r + 1))

    def pack(dst, vals):
        for j in range(4):
            a('v_cvt_pk_bf16_f32 v%d, v%d, v%d' % (dst + j, vals[2 * j], vals[2 * j + 1]))

    def emit_copy(cp):
        k = lambda r: KD + r
        r0 = [k(i) for i in range(9)]
        r1 = [k(0), k(0), k(1), k(2), k(2), k(2), k(3), k(4), k(4)]
        r2 = lambda b: [k(b), k(b), k(b), k(b + 1), k(b + 1), k(b + 1), k(b + 2), k(b + 2), k(b + 2)]
        r3 = lambda b, x: [k(b)] * 4 + [x] + [k(b + 1)] * 4
        sel = (lambda p: p[8:0:-1]) if cp == 0 else (lambda p: p[7::-1])
        a('s_mov_b64 exec, s[58:59]')
        pack(O, sel(r0))
        pack(O + 4, sel(r3(9, 84)))
        pack(O + 8, sel(r3(11, 85)))
        pack(O + 12, sel(r3(13, 86)))
        a('s_mov_b64 exec, s[60:61]')
        pack(O, sel(r1))
        pack(O + 4, sel(r2(5)))
        pack(O + 8, sel(r2(8)))
        pack(O + 12, sel(r3(11, 85)))
        a('s_mov_b64 exec, -1')
        a('v_mov_b32 v88, 0')
        if cp == 0:
            a('v_cvt_pk_bf16_f32 v89, v%d, v88' % KD)
            a('v_cndmask_b32 v88, 0, v89, s[54:55]')

    a('s_cmp_eq_u32 s7, 0')
    a('s_cbranch_scc0 L1_copy1')
    emit_copy(0)
    a('s_branch L1_copyd')
    a('L1_copy1:')
    emit_copy(1)
    a('L1_copyd:')
    a('''v_mov_b32 v89, 0
v_mov_b32 v90, 0
v_mov_b32 v91, 0
v_lshl_add_u32 v10, v4, 4, s46
v_add_u32 v10, 16, v10''')
    for s in range(4):
        a('buffer_store_dwordx4 %s, v%d, s[40:43], 0 offen' % (vr(O + 4 * s, 4), 80 + s))
    a('s_mov_b64 exec, s[56:57]')
    a('buffer_store_dwordx4 v[88:91], v10, s[40:43], 0 offen')
    a('s_mov_b64 exec, -1')

    XA = 96
    WA = 100
    ACC = [104, 120, 136]
    XF = [152, 156]
    WF = [160, 172]
    a('''v_and_b32 v10, 31, v4
v_bfe_u32 v11, v4, 1, 3
v_lshrrev_b32 v12, 5, v4
v_xor_b32 v11, v11, v12
v_lshlrev_b32 v11, 4, v11
v_lshl_add_u32 v10, v10, 7, v11
v_add_u32 v%d, s48, v10''' % XA)
    for jj in range(1, 4):
        a('v_xor_b32 v%d, %d, v%d' % (XA + jj, jj << 5, XA))
    a('''v_bfe_u32 v10, v4, 2, 2
v_lshl_add_u32 v10, v12, 3, v10
v_lshlrev_b32 v10, 6, v10
v_bfe_u32 v11, v4, 4, 1
v_lshl_add_u32 v10, v11, 5, v10
v_and_b32 v11, 3, v4
v_lshl_add_u32 v10, v11, 3, v10
v_add_u32 v%d, 16384, v10''' % WA)

    def g_reads(c, jj):
        st = (4 * c + jj) & 1
        so = ((c % 5) & 1) * K1_SLOT
        a('ds_read_b128 %s, v%d offset:%d' % (vr(XF[st], 4), XA + jj, so))
        for s in range(3):
            for rd in range(2):
                a('ds_read_b64_tr_b16 %s, v%d offset:%d' % (vr(WF[st] + 4 * s + 2 * rd, 2), WA, so + s * 4096 + jj * 1024 + rd * 256))

    def bump(c):
        p, q = ((c - 1) % 5) & ~1, (c % 5) & ~1
        if p != q:
            d = (q - p) * K1_SLOT
            for r in list(range(XA, XA + 4)) + [WA]:
                if d > 0:
                    a('v_add_u32 v%d, %d, v%d' % (r, d, r))
                else:
                    a('v_subrev_u32 v%d, %d, v%d' % (r, -d, r))

    vm = [33, 26, 26, 26, 26, 14, 7, 0]
    a('s_waitcnt vmcnt(%d)' % vm[0])
    a('s_barrier')
    g_reads(0, 0)
    for c in range(8):
        for jj in range(4):
            st = (4 * c + jj) & 1
            if jj < 3:
                g_reads(c, jj + 1)
                a('s_waitcnt lgkmcnt(7)')
            else:
                a('s_waitcnt lgkmcnt(0)')
                if c < 7:
                    a('s_waitcnt vmcnt(%d)' % vm[c + 1])
                    a('s_barrier')
                    bump(c + 1)
                    g_reads(c + 1, 0)
            first = (c == 0 and jj == 0)
            a(mfma(ACC[0], WF[st], XF[st], None if first else ACC[0]))
            a(mfma(ACC[1], WF[st] + 4, XF[st], None if first else ACC[1]))
            a(mfma(ACC[2], XF[st], WF[st] + 8, None if first else ACC[2]))
            if jj == 3 and c + 5 <= 7:
                dma_chunk(c + 5)
    a('''s_lshl_b32 s46, s4, 2
s_add_u32 s46, s46, s3
s_lshl_b32 s46, s46, 10
s_lshl_b32 s47, s5, 17
s_add_u32 s46, s46, s47
v_lshl_add_u32 v10, v4, 4, s46
v_bfe_u32 v11, v4, 4, 1
v_lshlrev_b32 v11, 16, v11
v_lshl_add_u32 v11, v12, 8, v11
v_and_b32 v12, 15, v4
v_lshl_add_u32 v11, v12, 4, v11
v_add_u32 v11, s46, v11
s_mov_b32 s62, 0x%x
s_mov_b32 s63, %d
s_mov_b32 s64, %d
s_mov_b32 s65, %d
s_mov_b32 s66, %d
s_nop 4''' % (f2u(QSCALE), QF + 65536, KF, KF + 65536, VF))
    for i in range(16):
        a('v_mul_f32 v%d, s62, v%d' % (ACC[0] + i, ACC[0] + i))
    for t in range(3):
        for j in range(8):
            a('v_cvt_pk_bf16_f32 v%d, v%d, v%d' % (32 + 8 * t + j, ACC[t] + 2 * j, ACC[t] + 2 * j + 1))
    a('''buffer_store_dwordx4 v[32:35], v10, s[40:43], 0 offen
buffer_store_dwordx4 v[36:39], v10, s[40:43], s63 offen
buffer_store_dwordx4 v[40:43], v10, s[40:43], s64 offen
buffer_store_dwordx4 v[44:47], v10, s[40:43], s65 offen
buffer_store_dwordx4 v[48:51], v11, s[40:43], s66 offen
buffer_store_dwordx4 v[52:55], v11, s[40:43], s66 offen offset:512
L1_end:
s_endpgm''')
    return a.text(), 216


K2_V = 65536
K2_U = 131072
K2_X = K2_U + 12288
K2_LDS = K2_X + 8 * 2304


def k2():
    a = A()
    a('''.p2align 8
.type k2_kernel,@function
k2_kernel:
s_cmp_ge_u32 s2, 256
s_cbranch_scc1 L2_end
s_load_dwordx2 s[4:5], s[0:1], 0
s_load_dwordx2 s[6:7], s[0:1], 112
v_lshrrev_b32 v3, 6, v0
v_and_b32 v4, 63, v0
s_and_b32 s16, s2, 7
v_readfirstlane_b32 s3, v3
s_lshr_b32 s17, s2, 3
s_lshl_b32 s18, s16, 2
s_and_b32 s19, s17, 3
s_add_u32 s18, s18, s19
s_lshr_b32 s19, s2, 5
s_lshl_b32 s20, s16, 6
s_lshl_b32 s21, s17, 1
s_add_u32 s20, s20, s21
v_lshlrev_b32 v5, 4, v4
s_lshl_b32 s22, s18, 16
s_waitcnt lgkmcnt(0)''')
    srd(a, 8, 6, WS_BYTES)
    a('s_cmp_ge_u32 s3, 8')
    a('s_cbranch_scc1 L2_conv')

    S = [8, 24]
    P = [40, 48]
    O = [56, 72]
    Q = [88, 92]
    K = [96, 100]
    V = [[104, 108], [112, 116]]
    KA, VA = 120, 121
    a('''s_and_b32 s23, s3, 3
s_lshr_b32 s24, s3, 2
s_lshl_b32 s25, s19, 3
s_lshl_b32 s26, s23, 1
s_add_u32 s25, s25, s26
s_lshl_b32 s26, s25, 10
s_add_u32 s26, s26, s22
buffer_load_dwordx4 %s, v5, s[8:11], s26 offen
buffer_load_dwordx4 %s, v5, s[8:11], s26 offen offset:1024
s_setprio 3
s_lshl_b32 s27, s24, 10
v_add_u32 v%d, s27, v5
v_lshrrev_b32 v6, 5, v4
v_and_b32 v7, 15, v4
v_lshlrev_b32 v7, 4, v7
v_lshl_add_u32 v7, v6, 8, v7
s_add_u32 s27, s27, %d
v_add_u32 v%d, s27, v7
v_and_b32 v6, 31, v4
v_cmp_eq_u32 vcc, 16, v6
v_cmp_eq_u32 s[28:29], 20, v6
s_mov_b32 s30, 0x3f803f80
s_or_b64 vcc, vcc, s[28:29]
v_mov_b32 v7, s30
s_mov_b32 s40, 0xffff
s_mov_b32 s41, 0xffff
v_cndmask_b32 v6, 0, v7, vcc''' % (vr(Q[0], 4), vr(Q[1], 4), KA, K2_V, VA))
    for b in range(2):
        for u in range(2):
            for j in range(4):
                a('v_mov_b32 v%d, v6' % (V[b][u] + j))
    for q in range(2):
        for j in range(16):
            a('v_mov_b32 v%d, 0' % (O[q] + j))
    for j in range(8):
        a('v_mov_b32 v%d, 0' % (P[1] + j))

    def rdk(i, base):
        return 'ds_read_b128 %s, v%d offset:%d' % (vr(K[i % 2], 4), KA, (i - base) * 2048)

    def rdv(i, base):
        o = (i - base) * 2048
        return ['s_mov_b64 exec, s[40:41]',
                'ds_read_b128 %s, v%d offset:%d' % (vr(V[i % 2][0], 4), VA, o),
                'ds_read_b128 %s, v%d offset:%d' % (vr(V[i % 2][1], 4), VA, o + 512),
                's_mov_b64 exec, -1']

    a('s_barrier')
    a(rdk(0, 0))
    a(rdk(1, 0))
    a('s_waitcnt vmcnt(0) lgkmcnt(1)')
    a(mfma(S[0], K[0], Q[0], None))
    a('s_nop 7')
    a('s_nop 3')

    TPI = 4

    def unit(i, q, last):
        u = 2 * i + q
        sc, sn = S[u % 2], S[(u + 1) % 2]
        pc, pp = P[u % 2], P[(u + 1) % 2]
        i1, q1 = (i, 1) if q == 0 else (i + 1, 0)
        i0, q0 = (i - 1, 1) if q == 0 else (i, 0)
        qk = mfma(sn, K[i1 % 2], Q[q1], None)
        pv0 = mfma(O[q0], V[i0 % 2][0], pp, O[q0])
        pv1 = mfma(O[q0], V[i0 % 2][1], pp + 4, O[q0])
        ex = ['v_exp_f32 v%d, v%d' % (sc + j, sc + j) for j in range(16)]
        cv = ['v_cvt_pk_bf16_f32 v%d, v%d, v%d' % (pc + j, sc + 2 * j, sc + 2 * j + 1) for j in range(8)]
        vs = [ex[0], ex[1]]
        for j in range(7):
            vs += [ex[2 + 2 * j], cv[j], ex[3 + 2 * j]]
        out = []
        for n, s in enumerate(vs):
            if n == 1:
                out.append('s_waitcnt lgkmcnt(0)')
                out.append(qk)
            if n == 9:
                out.append(pv0)
            if n == 17:
                out.append(pv1)
            out.append(s)
            if n == 2:
                if q == 0:
                    out += rdv(i, 0)
                else:
                    out.append(rdk(i + 2, 0))
        out.append('s_nop 0')
        out.append(cv[7])
        return out

    a('s_mov_b32 s42, 0')
    a('.p2align 6')
    a('L2_loop:')
    for i in range(TPI):
        for q in range(2):
            for s in unit(i, q, False):
                a(s)
    a('''v_add_u32 v%d, %d, v%d
v_add_u32 v%d, %d, v%d
s_add_u32 s42, s42, 1
s_cmp_gt_u32 s42, 2
s_cbranch_scc1 L2_nobar
s_barrier
L2_nobar:
s_cmp_eq_u32 s42, 2
s_cbranch_scc0 L2_p1
s_setprio 2
L2_p1:
s_cmp_eq_u32 s42, 4
s_cbranch_scc0 L2_p2
s_setprio 1
L2_p2:
s_cmp_eq_u32 s42, 6
s_cbranch_scc0 L2_p3
s_setprio 0
L2_p3:
s_cmp_lt_u32 s42, %d
s_cbranch_scc1 L2_loop''' % (KA, TPI * 2048, KA, VA, TPI * 2048, VA, 32 // TPI))
    a('s_nop 1')
    a(mfma(O[1], V[1][0], P[1], O[1]))
    a(mfma(O[1], V[1][1], P[1] + 4, O[1]))
    a('''s_mul_i32 s26, s3, 2304
s_add_u32 s26, s26, %d
s_xor_b32 s27, s3, 4
s_mul_i32 s27, s27, 2304
s_add_u32 s27, s27, %d
v_add_u32 v6, s26, v5
v_add_u32 v7, s27, v5
v_lshlrev_b32 v8, 2, v4
v_add_u32 v9, s27, v8
v_add_u32 v8, s26, v8
s_waitcnt lgkmcnt(0)
s_nop 7
s_cmp_eq_u32 s24, 0
s_cbranch_scc0 L2_x1''' % (K2_X, K2_X))
    F = 24
    for own, lab in ((0, None), (1, 'L2_x1')):
        if lab:
            a(lab + ':')
        oth = 1 - own
        a('ds_write_b128 v6, %s' % vr(O[oth], 4))
        a('ds_write_b128 v6, %s offset:1024' % vr(O[oth] + 4, 4))
        a('ds_write_b32 v8, v%d offset:2048' % (O[oth] + 8))
        for j in range(9):
            a('v_mov_b32 v%d, v%d' % (F + j, O[own] + j))
        if own == 1:
            for j in range(4):
                a('v_mov_b32 v%d, v%d' % (Q[0] + j, Q[1] + j))
        if own == 0:
            a('s_branch L2_x2')
    a('''L2_x2:
s_waitcnt lgkmcnt(0)
s_barrier
ds_read_b128 v[40:43], v7
ds_read_b128 v[44:47], v7 offset:1024
ds_read_b32 v48, v9 offset:2048
s_add_u32 s25, s25, s24
s_lshl_b32 s25, s25, 15
s_lshl_b32 s26, s18, 10
s_add_u32 s25, s25, s26
s_add_u32 s25, s25, %d
s_mov_b32 s44, 0x%x
s_mov_b32 s45, 0x%x
s_mov_b32 s46, 0x7f7fffff
s_waitcnt lgkmcnt(0)''' % (OF, f2u(2.0 ** -64), f2u(2.0 ** 64)))
    for j in range(9):
        a('v_add_f32 v%d, v%d, v%d' % (F + j, F + j, 40 + j))
    a('''v_max3_f32 v40, abs(v24), abs(v25), abs(v26)
v_max3_f32 v41, abs(v27), abs(v28), abs(v29)
v_max3_f32 v40, v40, abs(v30), abs(v31)
v_cmp_le_f32 s[28:29], s44, v32
v_cmp_ge_f32 s[30:31], s45, v32
v_add_f32 v42, v24, v25
v_add_f32 v43, v26, v27
v_add_f32 v44, v28, v29
v_add_f32 v45, v30, v31
v_max_f32 v40, v40, v41
v_add_f32 v42, v42, v43
v_add_f32 v44, v44, v45
v_cmp_ge_f32 s[32:33], s46, v40
v_cmp_o_f32 s[34:35], v42, v44
s_and_b64 s[28:29], s[28:29], s[30:31]
s_nop 1
s_and_b64 s[32:33], s[32:33], s[34:35]
s_and_b64 s[28:29], s[28:29], s[32:33]
s_cmp_eq_u64 s[28:29], -1
s_cbranch_scc0 L2_slow
L2_fin:
v_rcp_f32 v40, v32
s_nop 0''')
    for j in range(8):
        a('v_mul_f32 v%d, v%d, v40' % (F + j, F + j))
    for j in range(4):
        a('v_cvt_pk_bf16_f32 v%d, v%d, v%d' % (44 + j, F + 2 * j, F + 2 * j + 1))
    a('''buffer_store_dwordx4 v[44:47], v5, s[8:11], s25 offen
s_endpgm''')
    M = 56
    OS = 72
    a('''L2_slow:
v_mov_b32 v50, 0xff800000
v_mov_b32 v51, v5
s_mov_b32 s42, 0
L2_s1:
ds_read_b128 %s, v51
s_waitcnt lgkmcnt(0)
%s
v_add_u32 v51, 1024, v51
s_nop 15''' % (vr(K[0], 4), mfma(S[0], K[0], Q[0], None)))
    for j in range(8):
        a('v_max3_f32 v50, v50, v%d, v%d' % (S[0] + 2 * j, S[0] + 2 * j + 1))
    a('''s_add_u32 s42, s42, 1
s_cmp_lt_u32 s42, 64
s_cbranch_scc1 L2_s1
v_mov_b32 v52, v50
s_nop 1
v_permlane32_swap_b32 v50, v52
s_nop 1
v_max_f32 v50, v50, v52''')
    for j in range(16):
        a('v_sub_f32 v%d, 0, v50' % (M + j))
        a('v_mov_b32 v%d, 0' % (OS + j))
    a('''v_mov_b32 v51, v5
v_lshrrev_b32 v6, 5, v4
v_and_b32 v7, 15, v4
v_lshlrev_b32 v7, 4, v7
v_lshl_add_u32 v7, v6, 8, v7
v_add_u32 v52, %d, v7
s_mov_b32 s42, 0
L2_s2:
ds_read_b128 %s, v51
s_mov_b64 exec, s[40:41]
ds_read_b128 %s, v52
ds_read_b128 %s, v52 offset:512
s_mov_b64 exec, -1
s_waitcnt lgkmcnt(0)
%s
v_add_u32 v51, 1024, v51
v_add_u32 v52, 1024, v52
s_nop 15''' % (K2_V, vr(K[0], 4), vr(V[0][0], 4), vr(V[0][1], 4), mfma(S[0], K[0], Q[0], M)))
    for j in range(16):
        a('v_exp_f32 v%d, v%d' % (S[0] + j, S[0] + j))
    a('s_nop 0')
    for j in range(8):
        a('v_cvt_pk_bf16_f32 v%d, v%d, v%d' % (P[0] + j, S[0] + 2 * j, S[0] + 2 * j + 1))
    a('s_nop 1')
    a(mfma(OS, V[0][0], P[0], OS))
    a(mfma(OS, V[0][1], P[0] + 4, OS))
    a('''s_add_u32 s42, s42, 1
s_cmp_lt_u32 s42, 64
s_cbranch_scc1 L2_s2
s_nop 15''')
    for j in range(9):
        a('v_mov_b32 v%d, v%d' % (F + j, OS + j))
    a('s_branch L2_fin')

    a('L2_conv:')
    a('s_setprio 3')
    a('''s_sub_u32 s23, s3, 8
s_lshl_b32 s24, s23, 10
s_add_u32 s25, s22, s24
s_add_u32 s26, s25, %d
s_add_u32 s25, s25, %d''' % (VF, KF))
    for n in range(16):
        a('s_add_u32 m0, s24, %d' % (n * 4096))
        a('s_add_u32 s27, s25, %d' % (n * 4096))
        a('buffer_load_dwordx4 v5, s[8:11], s27 offen lds')
        a('s_add_u32 m0, s24, %d' % (K2_V + n * 4096))
        a('s_add_u32 s27, s26, %d' % (n * 4096))
        a('buffer_load_dwordx4 v5, s[8:11], s27 offen lds')
    srd(a, 12, 4, 2048 * 1024)
    a('''s_lshl_b32 s27, s23, 19
s_lshl_b32 s28, s20, 1
s_add_u32 s27, s27, s28
v_lshl_add_u32 v6, v4, 10, s27''')
    for i in range(8):
        a('s_mov_b32 s28, %d' % (i * 65536))
        a('buffer_load_dword v%d, v6, s[12:15], s28 offen' % (8 + i))
    a('''v_lshrrev_b32 v7, 5, v4
s_lshl_b32 s28, s23, 1
v_add_u32 v7, s28, v7
v_mul_u32_u24 v7, 1536, v7
v_and_b32 v16, 31, v4
v_lshl_add_u32 v7, v16, 4, v7
v_mov_b32 v20, 0
v_mov_b32 v21, 0
v_mov_b32 v22, 0
v_mov_b32 v23, 0
ds_write_b128 v7, v[20:23] offset:0''')
    a.L[-1] = '    v_add_u32 v7, %d, v7' % K2_U
    a('ds_write_b128 v7, v[20:23]')
    a('s_waitcnt vmcnt(34)')
    a('s_barrier')
    a('''v_bfe_u32 v7, v4, 3, 2
v_mul_u32_u24 v7, 1536, v7
v_lshrrev_b32 v17, 5, v4
v_lshl_add_u32 v7, v17, 4, v7
v_and_b32 v18, 7, v4
v_lshl_add_u32 v7, v18, 1, v7
s_lshl_b32 s28, s23, 8
s_add_u32 s28, s28, %d
v_add_u32 v7, s28, v7''' % (K2_U + 512))
    a('''v_bfe_u32 v18, v4, 4, 1
v_lshlrev_b32 v18, 4, v18
v_bfe_u32 v19, v4, 2, 1
v_lshl_add_u32 v18, v19, 3, v18
v_and_b32 v19, 3, v4
v_lshl_add_u32 v18, v19, 1, v18
v_bfe_u32 v19, v4, 3, 1
v_lshlrev_b32 v24, 3, v17
v_sub_u32 v24, v24, v18
v_add_u32 v24, 32, v24
v_lshlrev_b32 v24, 1, v24
v_mul_u32_u24 v19, %d, v19
v_add_u32 v24, v24, v19
s_lshr_b32 s28, s23, 1
s_add_u32 s29, s20, s28
s_mul_i32 s30, s29, %d
s_add_u32 s30, s30, %d
v_add_u32 v24, s30, v24
s_and_b32 s31, s23, 1''' % (KT_COPY - 4, KT_CH, KT))
    a('''s_mul_i32 s32, s28, 6144
s_lshl_b32 s33, s31, 9
s_add_u32 s32, s32, s33
s_add_u32 s32, s32, %d
v_mul_u32_u24 v25, 1536, v17
v_lshl_add_u32 v25, v16, 4, v25
v_add_u32 v25, s32, v25
v_add_u32 v24, %d, v24
s_waitcnt vmcnt(8)
s_barrier''' % (K2_U + 512 - 3 * 16, 32 * (127 - 15)))
    TB = 32
    UB = 64
    CA = 72
    for j in range(8):
        a('buffer_load_dwordx4 %s, v24, s[8:11], 0 offen offset:%d' % (vr(TB + 4 * j, 4), 32 * (15 - j)))
    a('s_waitcnt vmcnt(8)')
    for i in range(8):
        a('ds_write_b16 v7, v%d offset:%d' % (8 + i, i * 32))
        a('ds_write_b16_d16_hi v7, v%d offset:%d' % (8 + i, 6144 + i * 32))
    for j in range(16):
        a('v_mov_b32 v%d, 0' % (CA + j))
    a('''s_lshl_b32 s34, 8, s31
s_mov_b32 s35, 0
s_waitcnt lgkmcnt(0)
s_barrier
L2_cl:''')
    for j in range(8):
        a('ds_read_b128 %s, v25 offset:%d' % (vr(UB, 4), (3072 if j % 2 == 0 else 0) + (3 - (j >> 1)) * 16))
        a('s_waitcnt vmcnt(7) lgkmcnt(0)')
        a(mfma(CA, TB + 4 * j, UB, CA))
        a('buffer_load_dwordx4 %s, v24, s[8:11], 0 offen offset:%d' % (vr(TB + 4 * j, 4), 32 * (7 - j)))
    a('''v_subrev_u32 v24, 256, v24
v_subrev_u32 v25, 64, v25
s_add_u32 s35, s35, 1
s_cmp_lt_u32 s35, s34
s_cbranch_scc1 L2_cl''')
    a('''s_lshl_b32 s29, s29, 12
s_lshl_b32 s33, s31, 11
s_add_u32 s29, s29, s33
s_add_u32 s29, s29, %d
v_lshlrev_b32 v6, 6, v16
v_lshl_add_u32 v6, v17, 4, v6
s_nop 7''' % YT)
    for s in range(2):
        for i in range(4):
            a('v_cvt_pk_bf16_f32 v%d, v%d, v%d' % (8 + 4 * s + i, CA + 8 * s + i, CA + 8 * s + 4 + i))
    a('''buffer_store_dwordx4 v[8:11], v6, s[8:11], s29 offen
buffer_store_dwordx4 v[12:15], v6, s[8:11], s29 offen offset:32
L2_end:
s_endpgm''')
    return a.text(), 128


K3_W = 65536
K3_Y = 131072
K3_LDS = K3_Y + 8192


def k3():
    a = A()
    a('''.p2align 8
.type k3_kernel,@function
k3_kernel:
s_cmp_ge_u32 s2, 256
s_cbranch_scc1 L3_end
s_load_dwordx4 s[4:7], s[0:1], 88
s_load_dwordx2 s[16:17], s[0:1], 112
v_lshrrev_b32 v3, 6, v0
v_and_b32 v4, 63, v0
s_and_b32 s18, s2, 7
v_readfirstlane_b32 s3, v3
s_lshr_b32 s19, s2, 3
s_lshl_b32 s18, s18, 2
s_and_b32 s20, s19, 3
s_add_u32 s18, s18, s20
s_lshr_b32 s19, s19, 2
v_lshlrev_b32 v5, 4, v4''')
    a('''s_and_b32 s21, s3, 1
s_lshr_b32 s22, s3, 1
s_lshl_b32 s23, s21, 15
s_lshl_b32 s24, s22, 12
s_add_u32 s23, s23, s24
s_lshl_b32 s25, s18, 16
s_add_u32 s25, s25, s23
s_add_u32 s25, s25, %d
v_lshrrev_b32 v6, 2, v4
v_lshlrev_b32 v6, 10, v6
v_and_b32 v7, 3, v4
v_lshl_add_u32 v6, v7, 4, v6
s_lshl_b32 s26, s19, 7
s_lshl_b32 s27, s21, 6
s_add_u32 s26, s26, s27
s_lshl_b32 s27, s22, 16
s_add_u32 s26, s26, s27
v_lshrrev_b32 v8, 3, v4
v_lshlrev_b32 v8, 12, v8
v_and_b32 v9, 7, v4
v_lshl_add_u32 v8, v9, 4, v8
s_lshl_b32 s28, s19, 18
s_lshl_b32 s29, s3, 16
s_add_u32 s28, s28, s29
s_lshl_b32 s29, s18, 7
s_add_u32 s28, s28, s29
s_add_u32 s28, s28, %d
s_lshl_b32 s29, s3, 11
s_waitcnt lgkmcnt(0)''' % (OF, YT))
    srd(a, 8, 16, WS_BYTES)
    srd(a, 12, 4, 512 * 1024)
    srd(a, 32, 6, 2048 * 2048)
    for n in range(2):
        a('s_add_u32 m0, s29, %d' % (K3_Y + n * 1024))
        a('s_add_u32 s30, s28, %d' % (n * 32768))
        a('buffer_load_dwordx4 v8, s[8:11], s30 offen lds')
    for c in range(4):
        for n in range(4):
            a('s_add_u32 m0, s23, %d' % ((8 * c + n) * 1024))
            a('s_add_u32 s30, s25, %d' % ((8 * c + n) * 1024))
            a('buffer_load_dwordx4 v5, s[8:11], s30 offen lds')
            a('s_add_u32 m0, s23, %d' % (K3_W + (8 * c + n) * 1024))
            a('s_add_u32 s30, s26, %d' % ((8 * c + n) * 16384))
            a('buffer_load_dwordx4 v6, s[12:15], s30 offen lds')
    a('''s_lshl_b32 s30, s21, 15
v_add_u32 v10, s30, v5
v_lshrrev_b32 v12, 5, v4
v_bfe_u32 v11, v4, 2, 2
v_lshl_add_u32 v11, v12, 2, v11
v_lshlrev_b32 v11, 6, v11
v_and_b32 v13, 1, v4
v_lshl_add_u32 v11, v13, 5, v11
v_bfe_u32 v13, v4, 4, 1
v_lshl_add_u32 v11, v13, 4, v11
v_bfe_u32 v13, v4, 1, 1
v_lshl_add_u32 v11, v13, 3, v11
s_lshl_b32 s30, s22, 15
s_add_u32 s30, s30, %d
v_add_u32 v11, s30, v11''' % K3_W)
    a('''v_lshrrev_b32 v13, 4, v4
v_bfe_u32 v14, v4, 2, 2
v_lshl_add_u32 v14, v13, 3, v14
v_lshlrev_b32 v14, 7, v14
v_lshl_add_u32 v14, v7, 3, v14
s_lshl_b32 s30, s3, 5
s_add_u32 s30, s30, %d
v_add_u32 v14, s30, v14''' % K3_Y)
    a('''v_and_b32 v15, 15, v4
v_lshlrev_b32 v15, 11, v15
v_lshl_add_u32 v15, v13, 4, v15
s_lshl_b32 s30, s18, 17
s_lshl_b32 s31, s3, 15
s_add_u32 s30, s30, s31
s_lshl_b32 s31, s19, 7
s_add_u32 s36, s30, s31''')
    a('''v_and_b32 v16, 31, v4
v_lshlrev_b32 v16, 11, v16
v_lshl_add_u32 v16, v12, 5, v16
s_lshl_b32 s30, s18, 17
s_lshl_b32 s37, s21, 16
s_add_u32 s30, s30, s37
s_add_u32 s30, s30, s31
s_lshl_b32 s37, s22, 6
s_add_u32 s37, s37, s30
s_add_u32 s37, s37, 1024''')
    ACC = 20
    FB = [36, 44, 52, 60]

    def reads(hd):
        b = FB[hd % 4]
        a('ds_read_b128 %s, v10 offset:%d' % (vr(b, 4), hd * 1024))
        a('ds_read_b64_tr_b16 %s, v11 offset:%d' % (vr(b + 4, 2), hd * 1024))
        a('ds_read_b64_tr_b16 %s, v11 offset:%d' % (vr(b + 6, 2), hd * 1024 + 512))

    a('s_waitcnt vmcnt(24)')
    a('s_barrier')
    a('''ds_read_b64_tr_b16 v[68:69], v14
ds_read_b64_tr_b16 v[70:71], v14 offset:512
ds_read_b64_tr_b16 v[72:73], v14 offset:4096
ds_read_b64_tr_b16 v[74:75], v14 offset:4608''')
    reads(0)
    reads(1)
    a('s_waitcnt lgkmcnt(6)')
    a('buffer_store_dwordx4 v[68:71], v15, s[32:35], s36 offen')
    a('buffer_store_dwordx4 v[72:75], v15, s[32:35], s36 offen offset:64')
    for hd in range(32):
        nx = hd + 2
        if nx < 32:
            if nx % 8 == 0:
                a('s_waitcnt vmcnt(%d)' % (2 + 8 * (3 - nx // 8)))
                a('s_barrier')
            reads(nx)
        a('s_waitcnt lgkmcnt(%d)' % (3 * min(2, 31 - hd)))
        b = FB[hd % 4]
        a(mfma(ACC, b + 4, b, None if hd == 0 else ACC))
    a('s_nop 15')
    for j in range(8):
        a('v_cvt_pk_bf16_f32 v%d, v%d, v%d' % (36 + j, ACC + 2 * j, ACC + 2 * j + 1))
    a('''buffer_store_dwordx4 v[36:39], v16, s[32:35], s37 offen
buffer_store_dwordx4 v[40:43], v16, s[32:35], s37 offen offset:16
L3_end:
s_endpgm''')
    return a.text(), 80


def main(path):
    t1, n1 = k1()
    t2, n2 = k2()
    t3, n3 = k3()
    hdr = '''; three launches: projection + S4 kernel generation, attention + convolution, output projection + transposition
; @launch kernel=k1_kernel grid=(256,1,1) block=(256,1,1) lds=%d
; @launch kernel=k2_kernel grid=(256,1,1) block=(768,1,1) lds=%d
; @launch kernel=k3_kernel grid=(256,1,1) block=(256,1,1) lds=%d
.amdgcn_target "amdgcn-amd-amdhsa--gfx950"
.text
.globl k1_kernel
.globl k2_kernel
.globl k3_kernel
''' % (K1_LDS, K2_LDS, K3_LDS)
    pad = '.p2align 8\n.fill 4096, 4, 0xbf800000\n'
    out = hdr + t1 + t2 + t3 + pad + '.section .rodata,"a"\n' + desc('k1_kernel', n1) + desc('k2_kernel', n2) + desc('k3_kernel', n3)
    open(path, 'w').write(out)


if __name__ == '__main__':
    main(sys.argv[1] if len(sys.argv) > 1 else 'cdna_kernels/%s.s' % NAME)
```

```python
import sys
import struct

NAME = 'concat_heads__ssm_conv_s4__softmax_full_mha__prompt'

KF = 0x200000
VF = 0x400000
OF = 0x600000
UT = 0x800000
YT = 0xA00000
FL1 = 0xC00000
FLU = 0xC04000
FL2 = 0xC08000
FL3 = 0xC10000
WS_BYTES = 0x2000000

GEN = 6 * 16384
LDS_BYTES = GEN + 65536
QX = 65536
USI = 73728
USO = 81920
OX = 65536
YI = 73728
CNT = 94208
C_TAG, C_KV, C_GO, C_U, C_PAIR, C_CONV, C_O, C_Y, C_GOU, C_GOY, C_Y2 = 0, 4, 8, 12, 16, 24, 28, 32, 36, 40, 44
KCOPY = 4096
UIMG = 9216

LOG2E = 1.4426950408889634
QSCALE = 0.25 * LOG2E
OPT = set()
OPTV = {}
DIAG = False
DIAG_BASE = 0xF00000
ST0 = 70
SPIN_MAX = 1 << 16
ROWS = {0: [0, 1, 2, 3, 4, 5, 6, 7, 8, 1024, 1032, 1280, 1288, 1536, 1544, None],
        1: [256, 258, 260, 262, 264, 512, 516, 520, 768, 772, 776, 1792, 1800, None, None, None]}


def f2u(x):
    return struct.unpack('<I', struct.pack('<f', x))[0]


class A:
    def __init__(self):
        self.L = []

    def __call__(self, s):
        for line in s.split('\n'):
            line = line.strip()
            if not line:
                continue
            if line.endswith(':') or line.startswith('.'):
                self.L.append(line)
            else:
                self.L.append('    ' + line)

    def text(self):
        return '\n'.join(self.L) + '\n'


def vr(a, n=1):
    return 'v%d' % a if n == 1 else 'v[%d:%d]' % (a, a + n - 1)


def sr(a, n=1):
    return 's%d' % a if n == 1 else 's[%d:%d]' % (a, a + n - 1)


def srd(a, dst, base, nbytes):
    a('s_mov_b32 s%d, s%d' % (dst, base))
    a('s_mov_b32 s%d, s%d' % (dst + 1, base + 1))
    a('s_mov_b32 s%d, 0x%x' % (dst + 2, nbytes))
    a('s_mov_b32 s%d, 0x00020000' % (dst + 3))


def mfma(d, x, y, c):
    cs = '0' if c is None else vr(c, 16)
    return 'v_mfma_f32_32x32x16_bf16 %s, %s, %s, %s' % (vr(d, 16), vr(x, 4), vr(y, 4), cs)


def cmul_many(a, items):
    for d, x, y in items:
        a('v_mul_f32 v%d, v%d, v%d' % (d, x, y))
        a('v_mul_f32 v%d, v%d, v%d' % (d + 1, x + 1, y))
    for d, x, y in items:
        a('v_fma_f32 v%d, -v%d, v%d, v%d' % (d, x + 1, y + 1, d))
        a('v_fmac_f32 v%d, v%d, v%d' % (d + 1, x, y + 1))


def stamp(a, i, real=False):
    if DIAG:
        a('%s s[%d:%d]' % ('s_memrealtime' if real else 's_memtime', ST0 + 2 * i, ST0 + 2 * i + 1))


def stamp_dump(a, n=14):
    if DIAG:
        a('s_waitcnt vmcnt(0)')
        stamp(a, 13, True)
        a('s_waitcnt lgkmcnt(0)')
        a('s_lshl_b32 s68, s2, 4')
        a('s_add_u32 s68, s68, s3')
        a('s_lshl_b32 s68, s68, 6')
        a('s_add_u32 s68, s68, %d' % DIAG_BASE)
        a('v_mov_b32 v1, 0')
        a('s_mov_b64 exec, 1')
        for i in range(n):
            a('v_mov_b32 v2, s%d' % (ST0 + 2 * i))
            a('buffer_store_dword v2, v1, s[8:11], s68 offen offset:%d' % (4 * i))
        a('s_mov_b64 exec, -1')


_lab = [0]


def label(p):
    _lab[0] += 1
    return 'L_%s%d' % (p, _lab[0])


def lds_spin(a, va, vt, off, thr, st=66):
    l, e = label('sp'), label('se')
    a('''s_mov_b32 s%d, 0
%s:
ds_read_b32 v%d, v%d offset:%d
s_add_u32 s%d, s%d, 1
s_waitcnt lgkmcnt(0)
v_readfirstlane_b32 s%d, v%d
s_cmp_ge_u32 s%d, %d
s_cbranch_scc1 %s
s_cmp_ge_u32 s%d, %d
s_cbranch_scc1 %s
s_sleep 1
s_branch %s
%s:''' % (st, l, vt, va, off, st, st, st + 1, vt, st, SPIN_MAX, e, st + 1, thr, e, l, e))


def lds_add(a, va, vt, off):
    a('''v_mov_b32 v%d, 1
s_mov_b64 exec, 1
ds_add_u32 v%d, v%d offset:%d
s_mov_b64 exec, -1''' % (vt, va, vt, off))


def arrive_publish(a, va, vt, off, nwaves, sflag, vz):
    e = label('np')
    a('''v_mov_b32 v%d, 1
s_mov_b64 exec, 1
ds_add_rtn_u32 v%d, v%d, v%d offset:%d
v_mov_b32 v%d, 0
s_waitcnt lgkmcnt(0)
v_readfirstlane_b32 s66, v%d
v_mov_b32 v%d, s7
s_cmp_eq_u32 s66, %d
s_cbranch_scc0 %s
buffer_store_dword v%d, v%d, s[8:11], s%d offen sc1
%s:
s_mov_b64 exec, -1''' % (vt, vt, va, vt, off, vz, vt, vt, nwaves - 1, e, vt, vz, sflag, e))


def flag_poll(a, voff, vt, sbase):
    l, e = label('fp'), label('fe')
    a('''s_mov_b32 s66, 0
%s:
buffer_load_dword v%d, v%d, s[8:11], s%d offen sc1
s_add_u32 s66, s66, 1
s_waitcnt vmcnt(0)
v_cmp_eq_u32 vcc, s7, v%d
s_cmp_ge_u32 s66, %d
s_cbranch_scc1 %s
s_cmp_eq_u64 vcc, -1
s_cbranch_scc1 %s
s_sleep 3
s_branch %s
%s:''' % (l, vt, voff, sbase, vt, SPIN_MAX, e, e, l, e))


def kgen_stream():
    a = A()
    P = 20
    for i in range(8):
        a('v_lshlrev_b32 %s, 16, %s' % (vr(P + i), vr(P + i)))
    Are, Aim, Bre, Bim, Cre, Cim, LDT, DSK = range(P, P + 8)
    a('v_mul_f32 v%d, s51, v%d' % (LDT, LDT))
    a('v_exp_f32 v%d, v%d' % (LDT, LDT))
    a('s_nop 0')
    a('v_cvt_pk_bf16_f32 v%d, v%d, v%d' % (LDT, LDT, LDT))
    a('v_lshlrev_b32 v%d, 16, v%d' % (LDT, LDT))
    a('v_mul_f32 v%d, v%d, v%d' % (Are, LDT, Are))
    a('v_mul_f32 v%d, v%d, v%d' % (Aim, LDT, Aim))
    a('v_mul_f32 v%d, v%d, v%d' % (Bre, LDT, Bre))
    a('v_mul_f32 v%d, v%d, v%d' % (Bim, LDT, Bim))
    a('v_mul_f32 v%d, s51, v%d' % (Are, Are))
    a('v_mul_f32 v%d, 0.15915494, v%d' % (Aim, Aim))
    G = [32 + 2 * i for i in range(32)]
    W = [96 + 2 * i for i in range(9)]
    Z1, Z2, Z4, Z32 = 114, 116, 118, 120
    ZB = {256: 122, 512: 124, 768: 126, 1024: 128, 1280: 130, 1536: 132, 1792: 134}
    T0, PK, AD = 136, 146, 154
    R = {}
    nxt = 32
    for h in (0, 1):
        for e in ROWS[h]:
            if e is None:
                continue
            if e <= 8:
                R[e] = W[e]
            else:
                R[e] = nxt
                nxt += 2
    cmul_many(a, [(W[0], Cre, Bre)])
    direct = [(Z1, 1.0), (G[1], 8.0), (Z32, 32.0), (ZB[256], 256.0), (ZB[1024], 1024.0)]
    for i, (z, e) in enumerate(direct):
        a('v_mul_f32 v%d, 0x%x, v%d' % (T0 + 2 * i, f2u(e), Are))
        a('v_mul_f32 v%d, 0x%x, v%d' % (T0 + 2 * i + 1, f2u(e), Aim))
    for i, (z, e) in enumerate(direct):
        a('v_exp_f32 v%d, v%d' % (T0 + 2 * i, T0 + 2 * i))
        a('v_fract_f32 v%d, v%d' % (T0 + 2 * i + 1, T0 + 2 * i + 1))
    for i, (z, e) in enumerate(direct):
        a('v_cos_f32 v%d, v%d' % (z, T0 + 2 * i + 1))
        a('v_sin_f32 v%d, v%d' % (z + 1, T0 + 2 * i + 1))
    a('v_mov_b32 v%d, 1.0' % G[0])
    a('v_mov_b32 v%d, 0' % (G[0] + 1))
    for i, (z, e) in enumerate(direct):
        a('v_mul_f32 v%d, v%d, v%d' % (z, z, T0 + 2 * i))
        a('v_mul_f32 v%d, v%d, v%d' % (z + 1, z + 1, T0 + 2 * i))
    cmul_many(a, [(G[2], G[1], G[1]), (Z2, Z1, Z1), (W[1], W[0], Z1), (W[8], W[0], G[1]), (ZB[512], ZB[256], ZB[256]),
                  (ZB[1280], ZB[1024], ZB[256]), (G[5], G[1], Z32)])
    a('v_mov_b32 v%d, v%d' % (G[4], Z32))
    a('v_mov_b32 v%d, v%d' % (G[4] + 1, Z32 + 1))
    cmul_many(a, [(G[3], G[2], G[1]), (Z4, Z2, Z2), (W[2], W[0], Z2), (W[3], W[1], Z2), (ZB[768], ZB[512], ZB[256]),
                  (ZB[1536], ZB[1024], ZB[512]), (G[6], G[2], Z32)])
    cmul_many(a, [(G[7], G[3], Z32), (W[4], W[0], Z4), (W[5], W[1], Z4), (W[6], W[2], Z4), (W[7], W[3], Z4),
                  (ZB[1792], ZB[1024], ZB[768])])
    for i0 in range(8, 32, 4):
        cmul_many(a, [(G[i], G[i - 4], Z32) for i in range(i0, i0 + 4)])
    nvalu = len(a.L)
    for c in range(8):
        a('v_xor_b32 v%d, %d, v13' % (AD + c, c << 4))
    rowidx = [None] * 32
    for h in (0, 1):
        for r in range(16):
            rowidx[8 * (r >> 2) + 4 * h + (r & 3)] = ROWS[h][r]
    nput = [0]

    def put(c, regs, neg, off):
        pk = PK + 4 * (nput[0] & 1)
        nput[0] += 1
        for j in range(4):
            a('v_cvt_pk_bf16_f32 v%d, %sv%d, %sv%d' % (pk + j, neg, regs[2 * j], neg, regs[2 * j + 1]))
        a('ds_write_b128 v%d, %s%s' % (AD + c, vr(pk, 4), off))

    for c in range(8):
        put(c, [G[8 * (c & 3) + j] + (c >> 2) for j in range(8)], '', '')
    big = [e for e in R if e > 8]
    items = [(R[e], W[e & 255], ZB[e & ~255]) for e in big]
    for i0 in range(0, len(items), 5):
        cmul_many(a, items[i0:i0 + 5])
    for c in range(8):
        comp = c >> 2
        regs = [(R[e] if e is not None else W[0]) + comp for e in rowidx[8 * (c & 3):8 * (c & 3) + 8]]
        put(c, regs, '-' if comp else '', ' offset:8192')
    a('s_waitcnt lgkmcnt(0)')
    KD, FR, NB = 32, 48, 4

    def gen_reads(s):
        off = s * 1024
        b = FR + 8 * (s % NB)
        a('ds_read_b64_tr_b16 %s, v14 offset:%d' % (vr(b, 2), off + 8192))
        a('ds_read_b64_tr_b16 %s, v15 offset:%d' % (vr(b + 2, 2), off + 8192))
        a('ds_read_b64_tr_b16 %s, v14 offset:%d' % (vr(b + 4, 2), off))
        a('ds_read_b64_tr_b16 %s, v15 offset:%d' % (vr(b + 6, 2), off))

    for s in range(3):
        gen_reads(s)
    for s in range(8):
        if s + 3 < 8:
            gen_reads(s + 3)
        a('s_waitcnt lgkmcnt(%d)' % (4 * min(3, 7 - s)))
        b = FR + 8 * (s % NB)
        a(mfma(KD, b, b + 4, None if s == 0 else KD))
    a('s_nop 15')
    for j in range(4):
        a('ds_write_b128 v16, %s offset:%d' % (vr(KD + 4 * j, 4), 1024 * j))
    a('s_waitcnt lgkmcnt(0)')
    return a.L, nvalu


def transpose_addrs(a, sw, vrd, vwr, vlin, t0, t1):
    a('''v_lshrrev_b32 v{t0}, 4, v4
v_bfe_u32 v{t1}, v4, 2, 2
v_lshl_add_u32 v{t1}, v{t0}, 3, v{t1}
v_lshlrev_b32 v{rd}, 7, v{t1}
v_and_b32 v{t1}, 3, v4
v_lshl_add_u32 v{rd}, v{t1}, 3, v{rd}
s_lshl_b32 s66, s{w}, 5
s_add_u32 s66, s66, {usi}
v_add_u32 v{rd}, s66, v{rd}
v_and_b32 v{t1}, 7, v4
v_xor_b32 v{t0}, v{t0}, v{t1}
v_lshlrev_b32 v{t0}, 4, v{t0}
v_and_b32 v{t1}, 15, v4
v_lshl_add_u32 v{wr}, v{t1}, 7, v{t0}
s_lshl_b32 s66, s{w}, 11
s_add_u32 s66, s66, {uso}
v_add_u32 v{wr}, s66, v{wr}
v_lshl_add_u32 v{lin}, v4, 4, s66
v_lshrrev_b32 v{t0}, 3, v4
v_and_b32 v{t1}, 7, v4
v_xor_b32 v{t1}, v{t1}, v{t0}'''.format(t0=t0, t1=t1, rd=vrd, wr=vwr, lin=vlin, w=sw, usi=USI, uso=USO))


def transpose_a(a, vrd, vwr, d, t):
    a('''ds_read_b64_tr_b16 v[{d0}:{d1}], v{rd}
ds_read_b64_tr_b16 v[{d2}:{d3}], v{rd} offset:512
ds_read_b64_tr_b16 v[{d4}:{d5}], v{rd} offset:4096
ds_read_b64_tr_b16 v[{d6}:{d7}], v{rd} offset:4608
v_xor_b32 v{t}, 64, v{wr}
s_waitcnt lgkmcnt(2)
ds_write_b128 v{wr}, v[{d0}:{d3}]
s_waitcnt lgkmcnt(1)
ds_write_b128 v{t}, v[{d4}:{d7}]
s_waitcnt lgkmcnt(0)'''.format(rd=vrd, wr=vwr, t=t, **{'d%d' % i: d + i for i in range(8)}))


def kernel():
    a = A()
    KN = NAME + '_kernel'
    a('''.p2align 8
.type {k},@function
{k}:
s_cmp_ge_u32 s2, 256
s_cbranch_scc1 L_end
s_load_dwordx16 s[16:31], s[0:1], 8
s_load_dwordx4 s[32:35], s[0:1], 72
s_load_dwordx4 s[36:39], s[0:1], 104'''.format(k=KN))
    stamp(a, 0, True)
    stamp(a, 1)
    a('''v_lshrrev_b32 v3, 6, v0
v_and_b32 v4, 63, v0
s_and_b32 s44, s2, 7
s_lshr_b32 s45, s2, 3
v_readfirstlane_b32 s3, v3
s_lshl_b32 s60, s44, 6
s_lshl_b32 s46, s45, 1
s_add_u32 s60, s60, s46
s_lshl_b32 s46, s60, 8
v_lshl_add_u32 v5, v0, 1, s46
s_lshr_b32 s4, s44, 1
s_lshl_b32 s4, s4, 3
s_and_b32 s46, s45, 7
s_add_u32 s4, s4, s46
s_and_b32 s5, s44, 1
s_lshl_b32 s5, s5, 2
s_lshr_b32 s47, s45, 3
s_add_u32 s5, s5, s47
s_lshl_b32 s47, s47, 1
s_add_u32 s6, s46, s47
s_cmp_ge_u32 s3, 4
s_cbranch_scc1 L_gemm''')
    SEG = (1, 2, 0)

    a('''s_lshr_b32 s61, s3, 1
s_add_u32 s52, s60, s61
s_lshl_b32 s46, s52, 1
v_mov_b32 v19, s46
s_and_b32 s53, s3, 1
s_waitcnt lgkmcnt(0)''')
    P = 20
    a('global_load_ushort %s, v19, s[28:29]' % vr(P + 6))
    for i in range(6):
        a('global_load_ushort %s, v5, %s' % (vr(P + i), sr(16 + 2 * i, 2)))
    a('global_load_ushort %s, v19, s[30:31]' % vr(P + 7))
    a('''s_getpc_b64 s[40:41]
v_and_b32 v1, 7, v0
v_lshlrev_b32 v1, 7, v1
s_lshl_b32 s46, s45, 10
v_add_u32 v1, s46, v1
global_load_dword v2, v1, s[40:41]''')
    srd(a, 8, 38, WS_BYTES)
    srd(a, 12, 36, 256)
    a('''v_mov_b32 v18, 0
s_or_b32 s46, s2, s3
s_cmp_eq_u32 s46, 0
s_cbranch_scc0 L_notag
s_memrealtime s[46:47]
s_waitcnt lgkmcnt(0)
s_or_b32 s46, s46, 1
v_mov_b32 v1, s46
s_mov_b64 exec, 1
buffer_store_dword v1, v18, s[12:15], 0 offen sc1
s_mov_b64 exec, -1
s_waitcnt vmcnt(0)
L_notag:''')
    a('''s_lshl_b32 s62, s3, 14
s_add_u32 s62, s62, %d
v_and_b32 v10, 7, v4
v_lshlrev_b32 v10, 4, v10
v_lshl_add_u32 v13, v4, 7, v10
v_add_u32 v13, s62, v13
v_lshrrev_b32 v10, 5, v4
v_bfe_u32 v11, v4, 3, 1
v_lshl_add_u32 v10, v10, 2, v11
v_bfe_u32 v11, v4, 2, 1
v_lshlrev_b32 v11, 2, v11
v_bfe_u32 v12, v4, 4, 1
v_lshl_add_u32 v11, v12, 1, v11
v_bfe_u32 v12, v4, 1, 1
v_add_u32 v11, v11, v12
v_xor_b32 v11, v11, v10
v_lshlrev_b32 v11, 4, v11
v_lshl_add_u32 v11, v10, 7, v11
v_and_b32 v12, 1, v4
v_lshl_add_u32 v11, v12, 3, v11
v_add_u32 v14, s62, v11
v_xor_b32 v15, 32, v14
v_add_u32 v15, 256, v15
v_lshl_add_u32 v16, v4, 4, s62
v_xor_b32 v17, 0x4000, v16
v_mov_b32 v12, %d
s_mov_b32 s51, 0x%x''' % (GEN, CNT, f2u(LOG2E)))
    p1, nvalu = kgen_stream()
    sizes = [int(x) for x in OPTV.get('sl', '80,140,40').split(',')]
    cuts = [0]
    for z in sizes:
        cuts.append(min(len(p1), cuts[-1] + z))
    print('kgen instructions', len(p1), 'pure valu', nvalu, cuts, file=sys.stderr)
    stamp(a, 2)
    a('s_waitcnt vmcnt(1)')
    for c in range(16):
        if c < len(sizes):
            a.L += p1[cuts[c]:cuts[c + 1]]
        if c == 14:
            a('''s_cmp_eq_u32 s3, 0
s_cbranch_scc0 L_tagd
s_mov_b32 s66, 0
L_tagp:
buffer_load_dword v1, v18, s[12:15], 0 offen sc1
s_add_u32 s66, s66, 1
s_waitcnt vmcnt(0)
v_readfirstlane_b32 s7, v1
s_cmp_ge_u32 s66, %d
s_cbranch_scc1 L_tagq
s_cmp_eq_u32 s7, 0
s_cbranch_scc1 L_tagp
L_tagq:
v_cmp_eq_u32 vcc, 0, v4
v_lshl_add_u32 v2, v4, 2, v12
s_nop 0
v_cndmask_b32 v1, 0, v1, vcc
ds_write_b32 v2, v1
s_waitcnt lgkmcnt(0)
L_tagd:''' % SPIN_MAX)
        a('s_barrier')
    a('s_barrier')
    stamp(a, 3)
    a('s_setprio 3')
    a('ds_read_b32 v1, v12 offset:%d' % C_TAG)
    a('s_waitcnt lgkmcnt(0)')
    a('v_readfirstlane_b32 s7, v1')
    a.L += p1[cuts[-1]:]
    a('s_lshl_b32 s63, s61, 2')
    a('v_add_u32 v11, s63, v12')
    lds_add(a, 11, 1, C_PAIR)
    KD = 32
    a('''v_and_b32 v28, 31, v4
v_lshrrev_b32 v29, 5, v4
s_lshl_b32 s46, s53, 6
s_add_u32 s46, s46, s62
s_add_u32 s46, s46, %d
v_lshlrev_b32 v10, 4, v28
v_sub_u32 v18, s46, v10
v_and_b32 v10, 1, v4
v_cmp_eq_u32 s[54:55], 1, v10
v_cmp_eq_u32 s[56:57], 0, v4
s_mov_b32 s58, -1
s_mov_b32 s59, 0
s_mov_b32 s40, 0
s_mov_b32 s41, -1''' % (KCOPY + 255 * 16))
    for sl, (b0, b1) in enumerate([(0, 32), (128, 64), (160, 96), (192, 224)]):
        a('v_mul_i32_i24 v10, %d, v29' % ((b1 - b0) * 16))
        a('v_sub_u32 v%d, v18, v10' % (80 + sl))
        if b0:
            a('v_subrev_u32 v%d, %d, v%d' % (80 + sl, b0 * 16, 80 + sl))
    a('''v_lshl_add_u32 v87, v4, 4, s46
v_add_u32 v87, 16, v87
s_lshl_b32 s64, s61, 15
s_add_u32 s64, s64, %d
s_lshl_b32 s47, s53, 1
v_add_u32 v10, s47, v29
v_mul_u32_u24 v10, 1536, v10
v_lshl_add_u32 v10, v28, 4, v10
v_add_u32 v10, s64, v10
v_mov_b32 v88, 0
v_mov_b32 v89, 0
v_mov_b32 v90, 0
v_mov_b32 v91, 0''' % (GEN + UIMG))
    lds_spin(a, 11, 1, C_PAIR, 2)
    a('ds_write_b128 v10, v[88:91]')
    for j in range(4):
        a('ds_read_b128 %s, v17 offset:%d' % (vr(48 + 4 * j, 4), 1024 * j))
    a('v_cndmask_b32 v9, 0, v27, s[56:57]')
    a('v_add_f32 v%d, v%d, v9' % (KD, KD))
    a('s_waitcnt lgkmcnt(0)')
    for j in range(16):
        a('v_add_f32 v%d, v%d, v%d' % (KD + j, KD + j, 48 + j))
    for i, r in enumerate((9, 11, 13)):
        a('v_cndmask_b32 v%d, v%d, v%d, s[54:55]' % (84 + i, KD + r, KD + r + 1))
    OB = 64

    def pack(dst, vals):
        for j in range(4):
            a('v_cvt_pk_bf16_f32 v%d, v%d, v%d' % (dst + j, vals[2 * j], vals[2 * j + 1]))

    def emit_copy(cp):
        k = lambda r: KD + r
        r0 = [k(i) for i in range(9)]
        r1 = [k(0), k(0), k(1), k(2), k(2), k(2), k(3), k(4), k(4)]
        r2 = lambda b: [k(b), k(b), k(b), k(b + 1), k(b + 1), k(b + 1), k(b + 2), k(b + 2), k(b + 2)]
        r3 = lambda b, x: [k(b)] * 4 + [x] + [k(b + 1)] * 4
        sel = (lambda p: p[8:0:-1]) if cp == 0 else (lambda p: p[7::-1])
        a('s_mov_b64 exec, s[58:59]')
        pack(OB, sel(r0))
        pack(OB + 4, sel(r3(9, 84)))
        pack(OB + 8, sel(r3(11, 85)))
        pack(OB + 12, sel(r3(13, 86)))
        a('s_mov_b64 exec, s[40:41]')
        pack(OB, sel(r1))
        pack(OB + 4, sel(r2(5)))
        pack(OB + 8, sel(r2(8)))
        pack(OB + 12, sel(r3(11, 85)))
        a('s_mov_b64 exec, -1')
        if cp == 0:
            a('v_cvt_pk_bf16_f32 v10, v%d, v88' % KD)
            a('v_cndmask_b32 v88, 0, v10, s[56:57]')

    a('s_cmp_eq_u32 s53, 0')
    a('s_cbranch_scc0 L_copy1')
    emit_copy(0)
    a('s_branch L_copyd')
    a('L_copy1:')
    emit_copy(1)
    a('L_copyd:')
    for sl in range(4):
        a('ds_write_b128 v%d, %s' % (80 + sl, vr(OB + 4 * sl, 4)))
    a('s_mov_b64 exec, 15')
    a('ds_write_b128 v87, v[88:91]')
    a('s_mov_b64 exec, -1')
    stamp(a, 4)
    a('''v_lshlrev_b32 v6, 6, v28
s_lshl_b32 s46, s44, 11
s_add_u32 s46, s46, %d
s_cmp_eq_u32 s3, 0
s_cbranch_scc0 L_uw''' % FLU)
    flag_poll(a, 6, 1, 46)
    lds_add(a, 12, 1, C_GOU)
    a('L_uw:')
    lds_spin(a, 12, 1, C_GOU, 1)
    a('''v_lshlrev_b32 v6, 6, v4
s_lshl_b32 s46, s52, 12
s_lshl_b32 s47, s53, 5
s_add_u32 s46, s46, s47
s_add_u32 s46, s46, %d
s_mul_i32 s47, s53, 3072
s_add_u32 s47, s47, s64
s_add_u32 m0, s47, 512
s_nop 0
buffer_load_dwordx4 v6, s[8:11], s46 offen sc1 lds
s_add_u32 m0, s47, 2048
s_add_u32 s46, s46, 16
buffer_load_dwordx4 v6, s[8:11], s46 offen sc1 lds''' % UT)
    a('''v_bfe_u32 v18, v4, 4, 1
v_lshlrev_b32 v18, 4, v18
v_bfe_u32 v19, v4, 2, 1
v_lshl_add_u32 v18, v19, 3, v18
v_and_b32 v19, 3, v4
v_lshl_add_u32 v18, v19, 1, v18
v_bfe_u32 v19, v4, 3, 1
v_lshlrev_b32 v24, 3, v29
v_sub_u32 v24, v24, v18
v_add_u32 v24, 32, v24
v_lshlrev_b32 v24, 1, v24
v_mul_u32_u24 v19, %d, v19
v_add_u32 v24, v24, v19
s_add_u32 s46, s64, %d
v_add_u32 v24, s46, v24
s_lshl_b32 s46, s53, 9
s_add_u32 s46, s46, s64
s_add_u32 s46, s46, %d
v_mul_u32_u24 v25, 1536, v29
v_lshl_add_u32 v25, v28, 4, v25
v_add_u32 v25, s46, v25''' % (16384 + 64 - 4, KCOPY - UIMG + 32 * 120, 512 - 3 * 16))
    TB, UB, CA = 32, 40, 48
    for j in range(16):
        a('v_mov_b32 v%d, 0' % (CA + j))
    a('''s_lshl_b32 s34, 8, s53
s_mov_b32 s35, 0
s_waitcnt vmcnt(0) lgkmcnt(0)''')
    lds_add(a, 12, 1, C_CONV)
    lds_spin(a, 12, 1, C_CONV, 4)
    stamp(a, 5)
    if 'noconv' not in OPT:
        a('L_cl:')
        for j in range(8):
            t = TB + 4 * (j & 1)
            a('ds_read2_b32 %s, v24 offset0:%d offset1:%d' % (vr(t, 2), 8 * (7 - j), 8 * (7 - j) + 1))
            a('ds_read2_b32 %s, v24 offset0:%d offset1:%d' % (vr(t + 2, 2), 8 * (7 - j) + 2, 8 * (7 - j) + 3))
            a('ds_read_b128 %s, v25 offset:%d' % (vr(UB + 4 * (j & 1), 4), (3072 if j % 2 == 0 else 0) + (3 - (j >> 1)) * 16))
            a('s_waitcnt lgkmcnt(0)')
            a(mfma(CA, t, UB + 4 * (j & 1), CA))
        a('''v_subrev_u32 v24, 256, v24
v_subrev_u32 v25, 64, v25
s_add_u32 s35, s35, 1
s_cmp_lt_u32 s35, s34
s_cbranch_scc1 L_cl''')
    stamp(a, 6)
    a('''s_load_dwordx4 s[32:35], s[0:1], 88
s_lshl_b32 s46, s52, 12
s_lshl_b32 s47, s53, 11
s_add_u32 s46, s46, s47
s_add_u32 s46, s46, %d
v_lshlrev_b32 v6, 6, v28
v_lshl_add_u32 v6, v29, 4, v6
s_lshl_b32 s47, s53, 9
s_add_u32 s47, s47, s52
s_lshl_b32 s47, s47, 6
s_add_u32 s47, s47, %d
v_mov_b32 v1, s7
v_mov_b32 v2, 0''' % (YT, FL3))
    for s in range(2):
        for i in range(4):
            a('v_cvt_pk_bf16_f32 v%d, v%d, v%d' % (32 + 4 * s + i, CA + 8 * s + i, CA + 8 * s + 4 + i))
    a('''buffer_store_dwordx4 v[32:35], v6, s[8:11], s46 offen sc1
buffer_store_dwordx4 v[36:39], v6, s[8:11], s46 offen offset:32 sc1
s_waitcnt vmcnt(0) lgkmcnt(0)
s_mov_b64 exec, 1
buffer_store_dword v1, v2, s[8:11], s47 offen sc1
s_mov_b64 exec, -1''')
    srd(a, 12, 32, 512 * 1024)
    srd(a, 16, 34, 2048 * 2048)
    a('''v_lshrrev_b32 v6, 2, v4
v_lshlrev_b32 v6, 10, v6
v_and_b32 v7, 3, v4
v_lshl_add_u32 v6, v7, 4, v6
v_add_u32 v7, 0x3c00, v6
s_lshl_b32 s23, s53, 15
s_lshl_b32 s24, s61, 11
s_add_u32 s23, s23, s24
s_lshl_b32 s26, s5, 7
s_lshl_b32 s27, s53, 6
s_add_u32 s26, s26, s27
s_lshl_b32 s27, s61, 15
s_add_u32 s26, s26, s27
s_lshr_b32 s39, s45, 3
s_lshl_b32 s39, s39, 1''')
    for c in range(8):
        a('s_add_u32 s38, s39, %d' % c)
        a('s_and_b32 s38, s38, 7')
        a('s_lshl_b32 s30, s38, 16')
        a('s_add_u32 m0, s23, %d' % (c * 4096))
        a('s_add_u32 s30, s30, s26')
        a('buffer_load_dwordx4 v6, s[12:15], s30 offen lds')
        a('buffer_load_dwordx4 v7, s[12:15], s30 offen offset:1024 lds')
        a('s_waitcnt vmcnt(2)')
    stamp(a, 7)
    a('''v_lshlrev_b32 v6, 6, v4
s_lshr_b32 s46, s4, 4
s_lshl_b32 s46, s46, 15
s_lshl_b32 s47, s5, 12
s_add_u32 s46, s46, s47
s_add_u32 s46, s46, %d
s_cmp_eq_u32 s3, 0
s_cbranch_scc0 L_yw''' % FL3)
    flag_poll(a, 6, 1, 46)
    lds_add(a, 12, 1, C_GOY)
    a('L_yw:')
    transpose_addrs(a, 3, 20, 21, 22, 8, 9)
    a('''v_lshlrev_b32 v10, 12, v8
v_and_b32 v11, 7, v4
v_lshl_add_u32 v10, v11, 4, v10
v_add_u32 v11, 0x7c00, v10
s_lshl_b32 s46, s5, 18
s_lshl_b32 s47, s3, 16
s_add_u32 s46, s46, s47
s_lshl_b32 s47, s4, 7
s_add_u32 s46, s46, s47
s_add_u32 s46, s46, %d
s_lshl_b32 s47, s3, 11
s_add_u32 s47, s47, %d''' % (YT, USI))
    lds_spin(a, 12, 1, C_GOY, 1)
    a('''s_mov_b32 m0, s47
v_lshlrev_b32 v8, 11, v8
buffer_load_dwordx4 v10, s[8:11], s46 offen sc1 lds
buffer_load_dwordx4 v11, s[8:11], s46 offen offset:1024 sc1 lds
v_lshl_add_u32 v8, v9, 4, v8
s_lshl_b32 s46, s4, 17
s_lshl_b32 s47, s3, 15
s_add_u32 s46, s46, s47
s_lshl_b32 s47, s5, 7
s_add_u32 s46, s46, s47
s_add_u32 s47, s46, 0x4000
s_waitcnt vmcnt(0)''')
    lds_add(a, 12, 1, C_Y)
    lds_spin(a, 12, 1, C_Y, 4)
    transpose_a(a, 20, 21, 32, 23)
    a('''ds_read_b128 v[32:35], v22
ds_read_b128 v[36:39], v22 offset:1024
s_waitcnt lgkmcnt(1)
buffer_store_dwordx4 v[32:35], v8, s[16:19], s46 offen nt
s_waitcnt lgkmcnt(0)
buffer_store_dwordx4 v[36:39], v8, s[16:19], s47 offen nt''')
    lds_add(a, 12, 1, C_Y2)
    stamp(a, 8)
    a('''v_lshlrev_b32 v5, 4, v4
v_and_b32 v6, 7, v4
v_lshlrev_b32 v6, 6, v6
s_lshl_b32 s46, s4, 9
s_add_u32 s46, s46, %d
s_lshl_b32 s25, s4, 16
s_add_u32 s25, s25, s23
s_add_u32 s25, s25, %d
s_add_u32 s23, s23, %d
s_waitcnt lgkmcnt(0)
s_barrier''' % (FL2, OF, GEN))
    stamp(a, 9)
    flag_poll(a, 6, 1, 46)
    stamp(a, 10)
    for c in range(8):
        a('s_add_u32 s38, s39, %d' % c)
        a('s_and_b32 s38, s38, 7')
        a('s_lshl_b32 s30, s38, 12')
        a('s_add_u32 m0, s23, %d' % (c * 4096))
        a('s_add_u32 s30, s30, s25')
        a('buffer_load_dwordx4 v5, s[8:11], s30 offen sc1 lds')
        a('buffer_load_dwordx4 v5, s[8:11], s30 offen offset:1024 sc1 lds')
    NB3 = 4
    for c in range(NB3):
        a('s_waitcnt vmcnt(%d)' % (4 * (NB3 - 1 - c)))
        if c == 0:
            stamp(a, 11)
        a('s_barrier')
    stamp(a, 12)
    stamp_dump(a)
    a('s_endpgm')

    a('''L_gemm:
s_cmp_ge_u32 s3, 8
s_cbranch_scc1 L_mm
s_setprio 2
s_sub_u32 s61, s3, 4
v_lshrrev_b32 v10, 3, v4
v_lshrrev_b32 v11, 4, v4
v_and_b32 v12, 7, v4
v_xor_b32 v13, v12, v11
s_lshl_b32 s47, s61, 4
v_add_u32 v10, s47, v10
s_lshl_b32 s46, s4, 16
v_lshl_add_u32 v14, v10, 10, s46
v_lshl_add_u32 v6, v13, 4, v14
v_xor_b32 v7, 64, v6
v_add_u32 v7, 0x1c00, v7
v_lshlrev_b32 v16, 10, v10
v_lshl_add_u32 v16, v12, 4, v16
v_mul_u32_u24 v10, 3072, v10
v_and_b32 v11, 1, v11
v_lshlrev_b32 v11, 2, v11
v_xor_b32 v12, v12, v11
v_lshl_add_u32 v8, v12, 4, v10
s_lshl_b32 s46, s5, 7
v_add_u32 v8, s46, v8
v_add_u32 v9, %d, v8
s_lshl_b32 s48, s61, 11
s_waitcnt lgkmcnt(0)''' % (8 * 3072 - 1024))
    srd(a, 16, 32, 2048 * 1024)
    srd(a, 12, 34, 512 * 3072)

    def dma_chunk(c):
        slot = (c % 6) * 16384
        if c < 8:
            a('s_add_u32 s50, s6, %d' % c)
            a('s_and_b32 s50, s50, 7')
            a('s_mul_i32 s49, s50, %d' % (64 * 3072))
            a('s_add_u32 m0, s48, %d' % slot)
            a('s_lshl_b32 s50, s50, 7')
            a('buffer_load_dwordx4 v6, s[16:19], s50 offen lds')
            a('buffer_load_dwordx4 v7, s[16:19], s50 offen offset:1024 lds')
            a('s_add_u32 m0, s48, %d' % (slot + 8192))
            a('s_add_u32 s49, s49, %d' % (SEG[0] * 1024))
            a('buffer_load_dwordx4 v8, s[12:15], s49 offen lds')
            a('buffer_load_dwordx4 v9, s[12:15], s49 offen offset:1024 lds')
        else:
            p, j = 1 + ((c - 8) >> 2), (c - 8) & 3
            for hf in range(2):
                a('s_add_u32 s50, s6, %d' % (2 * j + hf))
                a('s_and_b32 s50, s50, 7')
                a('s_mul_i32 s49, s50, %d' % (64 * 3072))
                a('s_add_u32 m0, s48, %d' % (slot + hf * 8192))
                a('s_add_u32 s49, s49, %d' % (SEG[p] * 1024))
                a('buffer_load_dwordx4 v8, s[12:15], s49 offen lds')
                a('buffer_load_dwordx4 v9, s[12:15], s49 offen offset:1024 lds')

    dma_chunk(0)
    dma_chunk(1)
    a('s_load_dwordx2 s[20:21], s[0:1], 0')
    srd(a, 8, 38, WS_BYTES)
    transpose_addrs(a, 61, 20, 21, 22, 23, 24)
    a('''s_lshl_b32 s46, s45, 16
s_lshl_b32 s47, s44, 7
s_add_u32 s52, s46, s47
v_add_u32 v17, 0x1c00, v16
v_lshlrev_b32 v23, 12, v23
v_lshl_add_u32 v23, v24, 4, v23
s_lshl_b32 s46, s44, 18
s_lshl_b32 s47, s61, 16
s_add_u32 s53, s46, s47
s_lshl_b32 s47, s45, 7
s_add_u32 s53, s53, s47
s_add_u32 s53, s53, %d
s_add_u32 s54, s53, 0x8000
s_lshl_b32 s55, s44, 5
s_add_u32 s55, s55, s45
s_lshl_b32 s55, s55, 6
s_add_u32 s55, s55, %d
v_mov_b32 v12, %d
s_waitcnt lgkmcnt(0)''' % (UT, FLU, CNT))
    srd(a, 24, 20, 2048 * 1024)
    issued = 2
    stamp(a, 2)
    for c in range(16):
        a('s_waitcnt vmcnt(%d)' % (4 * (issued - 1 - c) + (2 if c == 14 else 0)))
        if c in (0, 8, 12):
            stamp(a, {0: 3, 8: 4, 12: 5}[c])
        a('s_barrier')
        for n in {0: [2, 3], 1: [4, 5]}.get(c, [c + 4] if c + 4 < 16 else []):
            dma_chunk(n)
            issued += 1
        if c == 13:
            a('s_add_u32 m0, s48, %d' % USI)
            a('s_nop 0')
            a('buffer_load_dwordx4 v16, s[24:27], s52 offen lds')
            a('buffer_load_dwordx4 v17, s[24:27], s52 offen offset:1024 lds')
    transpose_a(a, 20, 21, 32, 25)
    a('''ds_read_b128 v[32:35], v22
ds_read_b128 v[36:39], v22 offset:1024
s_waitcnt lgkmcnt(1)
buffer_store_dwordx4 v[32:35], v23, s[8:11], s53 offen sc1
s_waitcnt lgkmcnt(0)
buffer_store_dwordx4 v[36:39], v23, s[8:11], s54 offen sc1
s_barrier
ds_read_b32 v1, v12 offset:%d
s_waitcnt vmcnt(0) lgkmcnt(0)
v_readfirstlane_b32 s7, v1''' % C_TAG)
    arrive_publish(a, 12, 1, C_U, 4, 55, 2)
    a('s_branch L_att')

    XA, WA, OA, OV = 160, 164, 165, 166
    XR, ACC = 0, 128
    WF = [144, 148, 152, 156]
    a('''L_mm:
s_setprio 3
s_and_b32 s52, s3, 1
s_bfe_u32 s53, s3, 0x10001
v_and_b32 v10, 31, v4
v_bfe_u32 v11, v4, 1, 3
v_lshrrev_b32 v12, 5, v4
v_xor_b32 v11, v11, v12
v_lshlrev_b32 v11, 4, v11
v_lshl_add_u32 v10, v10, 7, v11
s_lshl_b32 s46, s52, 12
v_add_u32 v%d, s46, v10''' % XA)
    for jq in range(1, 4):
        a('v_xor_b32 v%d, %d, v%d' % (XA + jq, jq << 5, XA))
    a('''v_lshlrev_b32 v10, 10, v12
v_bfe_u32 v11, v4, 2, 2
v_lshl_add_u32 v10, v11, 7, v10
v_bfe_u32 v11, v4, 3, 1
v_xor_b32 v11, s53, v11
v_lshl_add_u32 v10, v11, 6, v10
v_bfe_u32 v11, v4, 4, 1
v_lshl_add_u32 v10, v11, 5, v10
v_and_b32 v11, 3, v4
v_lshl_add_u32 v%d, v11, 3, v10''' % WA)
    a('''s_lshl_b32 s46, s4, 1
s_add_u32 s46, s46, s52
s_lshl_b32 s46, s46, 10
s_lshl_b32 s47, s5, 1
s_add_u32 s47, s47, s53
s_lshl_b32 s47, s47, 17
s_add_u32 s46, s46, s47
v_lshl_add_u32 v%d, v4, 4, s46
v_bfe_u32 v11, v4, 4, 1
v_lshlrev_b32 v11, 16, v11
v_lshl_add_u32 v11, v12, 8, v11
v_and_b32 v10, 15, v4
v_lshl_add_u32 v11, v10, 4, v11
v_add_u32 v%d, s46, v11
v_mov_b32 v167, v4
s_mov_b32 s62, 0x%x
s_mov_b32 s64, %d
s_mov_b32 s65, %d
s_mov_b32 s63, %d
s_lshl_b32 s54, s52, 12
s_lshl_b32 s47, s53, 11
s_add_u32 s54, s54, s47
s_add_u32 s54, s54, %d
s_lshl_b32 s56, s5, 11
s_add_u32 s56, s56, %d
s_lshl_b32 s55, s4, 6
s_add_u32 s55, s55, s56
s_waitcnt lgkmcnt(0)''' % (OA, OV, f2u(QSCALE), KF, KF + 65536, VF, QX, FL1))
    srd(a, 8, 38, WS_BYTES)
    PD = 3

    def chunk_of(s):
        p, kk = s >> 5, s & 31
        return (kk >> 2, kk & 3) if p == 0 else (8 + 4 * (p - 1) + (kk >> 3), kk & 7)

    def nreads(s):
        return 0 if s >= 96 else (3 if s < 32 else 2)

    def reads(s):
        c, j = chunk_of(s)
        if j == 0:
            a('s_barrier')
            if c == 0:
                stamp(a, 2)
            if c % 3 == 0 and c > 0:
                op = 'v_add_u32' if c % 6 == 3 else 'v_subrev_u32'
                for r in ([XA, XA + 1, XA + 2, XA + 3] if c < 8 else []) + [WA]:
                    a('%s v%d, 0xc000, v%d' % (op, r, r))
        so = (c % 3) * 16384
        if c < 8:
            a('ds_read_b128 %s, v%d offset:%d' % (vr(XR + 4 * s, 4), XA + j, so))
            so += 8192
        for rd in range(2):
            a('ds_read_b64_tr_b16 %s, v%d offset:%d' % (vr(WF[s % 4] + 2 * rd, 2), WA, so + j * 2048 + rd * 512))

    def epilogue(p):
        lo, hi = vr(ACC, 4), vr(ACC + 4, 4)
        if SEG[p] == 0:
            a('v_mov_b32 v4, v167')
            a('v_mov_b32 v12, %d' % CNT)
            a('v_lshl_add_u32 v10, v167, 4, s54')
            a('s_nop 12')
            for i in range(16):
                a('v_mul_f32 v%d, s62, v%d' % (ACC + i, ACC + i))
        else:
            a('s_nop 15')
        for j in range(8):
            a('v_cvt_pk_bf16_f32 v%d, v%d, v%d' % (ACC + j, ACC + 2 * j, ACC + 2 * j + 1))
        if SEG[p] == 0:
            a('ds_write_b128 v10, %s' % lo)
            a('ds_write_b128 v10, %s offset:1024' % hi)
        elif SEG[p] == 1:
            a('buffer_store_dwordx4 %s, v%d, s[8:11], s64 offen sc1' % (lo, OA))
            a('buffer_store_dwordx4 %s, v%d, s[8:11], s65 offen sc1' % (hi, OA))
        else:
            a('buffer_store_dwordx4 %s, v%d, s[8:11], s63 offen sc1' % (lo, OV))
            a('buffer_store_dwordx4 %s, v%d, s[8:11], s63 offen offset:512 sc1' % (hi, OV))

    for s in range(PD):
        reads(s)
    for s in range(96):
        p, kk = s >> 5, s & 31
        if s + PD < 96:
            reads(s + PD)
        a('s_waitcnt lgkmcnt(%d)' % sum(nreads(t) for t in range(s + 1, s + PD + 1)))
        x, w = XR + 4 * kk, WF[s % 4]
        if SEG[p] == 2:
            a(mfma(ACC, x, w, None if kk == 0 else ACC))
        else:
            a(mfma(ACC, w, x, None if kk == 0 else ACC))
        if kk == 31:
            stamp(a, 3 + p)
            epilogue(p)
    a('''s_waitcnt lgkmcnt(0)
s_barrier
ds_read_b32 v1, v12 offset:%d
s_waitcnt vmcnt(0) lgkmcnt(0)
v_readfirstlane_b32 s7, v1''' % C_TAG)
    arrive_publish(a, 12, 1, C_KV, 4, 55, 2)
    a('''s_cmp_eq_u32 s3, 8
s_cbranch_scc0 L_att
v_and_b32 v6, 31, v4
v_lshlrev_b32 v6, 6, v6''')
    flag_poll(a, 6, 1, 56)
    lds_add(a, 12, 1, C_GO)

    S = [16, 32]
    Pp = [48, 56]
    O = [64, 80]
    Q = [96, 100]
    NB = 4
    K = [104 + 4 * b for b in range(NB)]
    V = [[120 + 8 * b, 124 + 8 * b] for b in range(NB)]
    KA, VA = 152, 153
    a('''L_att:
s_and_b32 s18, s3, 3
s_lshr_b32 s24, s3, 3
v_lshlrev_b32 v5, 4, v4
s_lshl_b32 s26, s18, 10
s_add_u32 s26, s26, %d
v_add_u32 v6, s26, v5
ds_read_b128 %s, v6
ds_read_b128 %s, v6 offset:4096
s_lshl_b32 s27, s5, 2
s_add_u32 s18, s18, s27
s_lshl_b32 s22, s18, 16
s_add_u32 s27, s22, %d
v_add_u32 v%d, s27, v5
s_lshl_b32 s36, s24, 10
s_mov_b32 s37, s36
v_lshrrev_b32 v6, 5, v4
v_and_b32 v7, 15, v4
v_lshlrev_b32 v7, 4, v7
v_lshl_add_u32 v7, v6, 8, v7
s_add_u32 s27, s22, %d
v_add_u32 v%d, s27, v7
v_and_b32 v6, 31, v4
v_cmp_eq_u32 vcc, 16, v6
v_cmp_eq_u32 s[28:29], 20, v6
s_mov_b32 s30, 0x3f803f80
s_or_b64 vcc, vcc, s[28:29]
v_mov_b32 v7, s30
s_mov_b32 s40, 0xffff
s_mov_b32 s41, 0xffff
v_cndmask_b32 v6, 0, v7, vcc''' % (QX, vr(Q[0], 4), vr(Q[1], 4), KF, KA, VF, VA))
    for b in range(NB):
        for u in range(2):
            for j in range(4):
                a('v_mov_b32 v%d, v6' % (V[b][u] + j))
    for q in range(2):
        for j in range(16):
            a('v_mov_b32 v%d, 0' % (O[q] + j))

    def rdk(i):
        return ['buffer_load_dwordx4 %s, v%d, s[8:11], s36 offen sc1' % (vr(K[i % NB], 4), KA),
                's_add_u32 s36, s36, 2048']

    def rdv(i):
        return ['s_mov_b64 exec, s[40:41]',
                'buffer_load_dwordx4 %s, v%d, s[8:11], s37 offen sc1' % (vr(V[i % NB][0], 4), VA),
                'buffer_load_dwordx4 %s, v%d, s[8:11], s37 offen offset:512 sc1' % (vr(V[i % NB][1], 4), VA),
                's_mov_b64 exec, -1', 's_add_u32 s37, s37, 2048']

    stamp(a, 6)
    lds_spin(a, 12, 1, C_GO, 1)
    stamp(a, 7)
    a('\n'.join(rdk(0) + rdk(1) + rdv(0) + rdk(2) + rdv(1)))
    a('s_setprio 3')
    a('s_waitcnt vmcnt(6)')
    stamp(a, 8)
    a(mfma(S[0], K[0], Q[0], None))
    a('s_nop 7')
    a('s_nop 3')
    PRIO = {7: 2, 15: 1, 23: 0}

    def unit(i, q):
        u = 2 * i + q
        sc, sn = S[u % 2], S[(u + 1) % 2]
        pc, pp = Pp[u % 2], Pp[(u + 1) % 2]
        i1, q1 = (i, 1) if q == 0 else (i + 1, 0)
        i0, q0 = (i - 1, 1) if q == 0 else (i, 0)
        qk = mfma(sn, K[i1 % NB], Q[q1], None)
        pv0 = mfma(O[q0], V[i0 % NB][0], pp, O[q0])
        pv1 = mfma(O[q0], V[i0 % NB][1], pp + 4, O[q0])
        e = ['v_exp_f32 v%d, v%d' % (sc + j, sc + j) for j in range(16)]
        c = ['v_cvt_pk_bf16_f32 v%d, v%d, v%d' % (pc + j, sc + 2 * j, sc + 2 * j + 1) for j in range(8)]
        c7prev = 'v_cvt_pk_bf16_f32 v%d, v%d, v%d' % (pp + 7, sn + 14, sn + 15)
        out = [e[0]]
        if q == 1:
            out.append('s_waitcnt vmcnt(%d)' % ((i + 2 < 32) + 2 * (i + 1 < 32) + (i + 3 < 32)))
        if u > 0:
            out.append(c7prev)
        if u < 63:
            out.append(qk)
        kl = rdk(i + 3) if q == 0 and i + 3 < 32 else []
        vl = rdv(i + 2) if q == 1 and i + 2 < 32 else []
        out += kl[:1] + vl[:4]
        out += [e[1], e[2], c[0], e[3], e[4], c[1], e[5]]
        if u > 0:
            out.append(pv0)
        out += kl[1:] + vl[4:]
        out += [e[6], c[2], e[7], e[8], c[3], e[9], e[10], c[4]]
        if u > 0:
            out.append(pv1)
        if q == 1 and i in PRIO:
            out.append('s_setprio %d' % PRIO[i])
        out += [e[11], e[12], c[5], e[13], e[14], c[6], e[15]]
        return out

    for i in range(32):
        for q in range(2):
            for s in unit(i, q):
                a(s)
    a('s_nop 0')
    a('v_cvt_pk_bf16_f32 v%d, v%d, v%d' % (Pp[1] + 7, S[1] + 14, S[1] + 15))
    stamp(a, 9)
    a('s_setprio 3')
    a('s_nop 0')
    a(mfma(O[1], V[31 % NB][0], Pp[1], O[1]))
    a(mfma(O[1], V[31 % NB][1], Pp[1] + 4, O[1]))
    a('''s_sub_u32 s26, s3, 4
s_xor_b32 s27, s26, 4
s_mul_i32 s26, s26, 2304
s_add_u32 s26, s26, %d
s_mul_i32 s27, s27, 2304
s_add_u32 s27, s27, %d
v_add_u32 v6, s26, v5
v_add_u32 v7, s27, v5
v_lshlrev_b32 v8, 2, v4
v_add_u32 v9, s27, v8
v_add_u32 v8, s26, v8''' % (OX, OX))
    lds_spin(a, 12, 1, C_Y2, 4)
    a('''s_cmp_eq_u32 s24, 0
s_cbranch_scc0 L_x1''')
    F = 32
    for own, lab in ((0, None), (1, 'L_x1')):
        if lab:
            a(lab + ':')
        oth = 1 - own
        a('ds_write_b128 v6, %s' % vr(O[oth], 4))
        a('ds_write_b128 v6, %s offset:1024' % vr(O[oth] + 4, 4))
        a('ds_write_b32 v8, v%d offset:2048' % (O[oth] + 8))
        for j in range(9):
            a('v_mov_b32 v%d, v%d' % (F + j, O[own] + j))
        if own == 1:
            for j in range(4):
                a('v_mov_b32 v%d, v%d' % (Q[0] + j, Q[1] + j))
        if own == 0:
            a('s_branch L_x2')
    a('''L_x2:
s_waitcnt lgkmcnt(0)
s_barrier''')
    stamp(a, 10)
    a('''ds_read_b128 v[48:51], v7
ds_read_b128 v[52:55], v7 offset:1024
ds_read_b32 v56, v9 offset:2048
s_lshl_b32 s25, s4, 1
s_add_u32 s25, s25, s24
s_lshl_b32 s25, s25, 15
s_lshl_b32 s26, s18, 10
s_add_u32 s25, s25, s26
s_add_u32 s25, s25, %d
s_mov_b32 s44, 0x%x
s_mov_b32 s45, 0x%x
s_mov_b32 s46, 0x7f7fffff
s_lshl_b32 s55, s4, 3
s_add_u32 s55, s55, s5
s_lshl_b32 s55, s55, 6
s_add_u32 s55, s55, %d
s_waitcnt lgkmcnt(0)''' % (OF, f2u(2.0 ** -64), f2u(2.0 ** 64), FL2))
    for j in range(9):
        a('v_add_f32 v%d, v%d, v%d' % (F + j, F + j, 48 + j))
    a('''v_max3_f32 v48, abs(v32), abs(v33), abs(v34)
v_max3_f32 v49, abs(v35), abs(v36), abs(v37)
v_max3_f32 v48, v48, abs(v38), abs(v39)
v_cmp_le_f32 s[28:29], s44, v40
v_cmp_ge_f32 s[30:31], s45, v40
v_add_f32 v50, v32, v33
v_add_f32 v51, v34, v35
v_add_f32 v52, v36, v37
v_add_f32 v53, v38, v39
v_max_f32 v48, v48, v49
v_add_f32 v50, v50, v51
v_add_f32 v52, v52, v53
v_cmp_ge_f32 s[32:33], s46, v48
v_cmp_o_f32 s[34:35], v50, v52
v_rcp_f32 v48, v40
s_and_b64 s[28:29], s[28:29], s[30:31]
s_and_b64 s[32:33], s[32:33], s[34:35]
s_and_b64 s[28:29], s[28:29], s[32:33]
s_cmp_eq_u64 s[28:29], -1
s_cbranch_scc0 L_slow
L_fin:''')
    for j in range(8):
        a('v_mul_f32 v%d, v%d, v48' % (F + j, F + j))
    for j in range(4):
        a('v_cvt_pk_bf16_f32 v%d, v%d, v%d' % (52 + j, F + 2 * j, F + 2 * j + 1))
    a('buffer_store_dwordx4 v[52:55], v5, s[8:11], s25 offen sc1')
    a('''s_load_dwordx2 s[34:35], s[0:1], 96
s_and_b32 s21, s3, 1
s_bfe_u32 s22, s3, 0x10001
s_lshl_b32 s30, s21, 15
s_add_u32 s30, s30, %d
v_add_u32 v10, s30, v5
v_lshrrev_b32 v14, 5, v4
v_bfe_u32 v11, v4, 2, 2
v_lshl_add_u32 v11, v14, 2, v11
v_lshlrev_b32 v11, 6, v11
v_and_b32 v13, 1, v4
v_lshl_add_u32 v11, v13, 5, v11
v_bfe_u32 v13, v4, 4, 1
v_lshl_add_u32 v11, v13, 4, v11
v_bfe_u32 v13, v4, 1, 1
v_lshl_add_u32 v11, v13, 3, v11
s_lshl_b32 s30, s22, 15
v_add_u32 v11, s30, v11
v_and_b32 v15, 31, v4
v_lshlrev_b32 v15, 11, v15
v_lshl_add_u32 v15, v14, 5, v15
s_lshl_b32 s30, s4, 17
s_lshl_b32 s37, s21, 16
s_add_u32 s30, s30, s37
s_lshl_b32 s31, s5, 7
s_add_u32 s30, s30, s31
s_lshl_b32 s37, s22, 6
s_add_u32 s37, s37, s30
s_add_u32 s37, s37, 1024
s_waitcnt vmcnt(0) lgkmcnt(0)''' % GEN)
    arrive_publish(a, 12, 1, C_O, 8, 55, 2)
    stamp(a, 11)
    a('s_cmp_lt_u32 s3, 8')
    a('s_cbranch_scc1 L_bend')
    srd(a, 16, 34, 2048 * 2048)
    AC3 = 20
    FB = [36, 44, 52, 60]

    def reads3(hd):
        if hd % (32 // NB3) == 0:
            a('s_barrier')
        b = FB[hd % 4]
        a('ds_read_b128 %s, v10 offset:%d' % (vr(b, 4), hd * 1024))
        a('ds_read_b64_tr_b16 %s, v11 offset:%d' % (vr(b + 4, 2), hd * 1024))
        a('ds_read_b64_tr_b16 %s, v11 offset:%d' % (vr(b + 6, 2), hd * 1024 + 512))

    for hd in range(PD):
        reads3(hd)
    for hd in range(32):
        if hd + PD < 32:
            reads3(hd + PD)
        a('s_waitcnt lgkmcnt(%d)' % (3 * min(PD, 31 - hd)))
        b = FB[hd % 4]
        a(mfma(AC3, b + 4, b, None if hd == 0 else AC3))
    stamp(a, 12)
    a('s_nop 15')
    for j in range(8):
        a('v_cvt_pk_bf16_f32 v%d, v%d, v%d' % (36 + j, AC3 + 2 * j, AC3 + 2 * j + 1))
    st3 = OPTV.get('st3', '').replace('+', ' ')
    a('buffer_store_dwordx4 v[36:39], v15, s[16:19], s37 offen' + st3)
    a('buffer_store_dwordx4 v[40:43], v15, s[16:19], s37 offen offset:16' + st3)
    a('L_bend:')
    stamp_dump(a)
    a('s_endpgm')

    M, OS = 64, 80
    a('''L_slow:
v_mov_b32 v58, 0xff800000
s_mov_b32 s42, 0
L_s1:
buffer_load_dwordx4 %s, v%d, s[8:11], s42 offen sc1
s_waitcnt vmcnt(0)
%s
s_nop 15''' % (vr(K[0], 4), KA, mfma(S[0], K[0], Q[0], None)))
    for j in range(8):
        a('v_max3_f32 v58, v58, v%d, v%d' % (S[0] + 2 * j, S[0] + 2 * j + 1))
    a('''s_add_u32 s42, s42, 1024
s_cmp_lt_u32 s42, 0x10000
s_cbranch_scc1 L_s1
v_mov_b32 v59, v58
s_nop 1
v_permlane32_swap_b32 v58, v59
s_nop 1
v_max_f32 v58, v58, v59''')
    for j in range(16):
        a('v_sub_f32 v%d, 0, v58' % (M + j))
        a('v_mov_b32 v%d, 0' % (OS + j))
    a('''s_mov_b32 s42, 0
L_s2:
buffer_load_dwordx4 %s, v%d, s[8:11], s42 offen sc1
s_mov_b64 exec, s[40:41]
buffer_load_dwordx4 %s, v%d, s[8:11], s42 offen sc1
buffer_load_dwordx4 %s, v%d, s[8:11], s42 offen offset:512 sc1
s_mov_b64 exec, -1
s_waitcnt vmcnt(0)
%s
s_nop 15''' % (vr(K[0], 4), KA, vr(V[0][0], 4), VA, vr(V[0][1], 4), VA, mfma(S[0], K[0], Q[0], M)))
    for j in range(16):
        a('v_exp_f32 v%d, v%d' % (S[0] + j, S[0] + j))
    a('s_nop 0')
    for j in range(8):
        a('v_cvt_pk_bf16_f32 v%d, v%d, v%d' % (Pp[0] + j, S[0] + 2 * j, S[0] + 2 * j + 1))
    a('s_nop 1')
    a(mfma(OS, V[0][0], Pp[0], OS))
    a(mfma(OS, V[0][1], Pp[0] + 4, OS))
    a('''s_add_u32 s42, s42, 1024
s_cmp_lt_u32 s42, 0x10000
s_cbranch_scc1 L_s2
s_nop 15''')
    for j in range(9):
        a('v_mov_b32 v%d, v%d' % (F + j, OS + j))
    a('''v_rcp_f32 v48, v40
s_nop 0
s_branch L_fin
L_end:
s_endpgm''')
    return a.text()


def main(path):
    KN = NAME + '_kernel'
    t = kernel()
    hdr = '''; fused kernel: projections + S4 kernel generation | attention + causal convolution | output projection
; @launch grid=(256,1,1) block=(768,1,1) lds=%d
.amdgcn_target "amdgcn-amd-amdhsa--gfx950"
.text
.globl %s
''' % (LDS_BYTES, KN)
    pad = '.p2align 8\n.fill 4096, 4, 0xbf800000\n'
    kd = '''.section .rodata,"a"
.p2align 6
.amdhsa_kernel %s
  .amdhsa_next_free_vgpr 168
  .amdhsa_next_free_sgpr 102
  .amdhsa_accum_offset 168
  .amdhsa_group_segment_fixed_size 0
  .amdhsa_kernarg_size 120
  .amdhsa_user_sgpr_count 2
  .amdhsa_user_sgpr_kernarg_segment_ptr 1
  .amdhsa_system_sgpr_workgroup_id_x 1
.end_amdhsa_kernel
''' % KN
    open(path, 'w').write(hdr + t + pad + kd)


if __name__ == '__main__':
    for arg in sys.argv[1:]:
        OPT.add(arg)
        if '=' in arg:
            OPTV[arg.split('=')[0]] = arg.split('=')[1]
    DIAG = 'diag' in OPT
    main(sys.argv[1] if len(sys.argv) > 1 else 'cdna_kernels/%s.s' % NAME)
```

```python
import sys
import struct

NAME = 'concat_heads__ssm_conv_s4__softmax_full_mha__prompt'

KF = 0x200000
VF = 0x400000
OF = 0x600000
UT = 0x800000
YT = 0xA00000
FL1 = 0xC00000
FLU = 0xC04000
FL2 = 0xC08000
FL3 = 0xC10000
WS_BYTES = 0x2000000

GEN = 6 * 16384
LDS_BYTES = GEN + 65536
QX = 65536
USI = 73728
USO = 81920
OX = 65536
YI = 73728
CNT = 94208
C_TAG, C_KV, C_GO, C_U, C_PAIR, C_CONV, C_O, C_Y, C_GOU, C_GOY, C_Y2 = 0, 4, 8, 12, 16, 24, 28, 32, 36, 40, 44
KCOPY = 4096
UIMG = 9216

LOG2E = 1.4426950408889634
QSCALE = 0.25 * LOG2E
OPT = set()
OPTV = {}
DIAG = False
DIAG_BASE = 0xF00000
ST0 = 70
SPIN_MAX = 1 << 16
ROWS = {0: [0, 1, 2, 3, 4, 5, 6, 7, 8, 1024, 1032, 1280, 1288, 1536, 1544, None],
        1: [256, 258, 260, 262, 264, 512, 516, 520, 768, 772, 776, 1792, 1800, None, None, None]}


def f2u(x):
    return struct.unpack('<I', struct.pack('<f', x))[0]


class A:
    def __init__(self):
        self.L = []

    def __call__(self, s):
        for line in s.split('\n'):
            line = line.strip()
            if not line:
                continue
            if line.endswith(':') or line.startswith('.'):
                self.L.append(line)
            else:
                self.L.append('    ' + line)

    def text(self):
        return '\n'.join(self.L) + '\n'


def vr(a, n=1):
    return 'v%d' % a if n == 1 else 'v[%d:%d]' % (a, a + n - 1)


def sr(a, n=1):
    return 's%d' % a if n == 1 else 's[%d:%d]' % (a, a + n - 1)


def srd(a, dst, base, nbytes):
    a('s_mov_b32 s%d, s%d' % (dst, base))
    a('s_mov_b32 s%d, s%d' % (dst + 1, base + 1))
    a('s_mov_b32 s%d, 0x%x' % (dst + 2, nbytes))
    a('s_mov_b32 s%d, 0x00020000' % (dst + 3))


def mfma(d, x, y, c):
    cs = '0' if c is None else vr(c, 16)
    return 'v_mfma_f32_32x32x16_bf16 %s, %s, %s, %s' % (vr(d, 16), vr(x, 4), vr(y, 4), cs)


def cmul_many(a, items):
    for d, x, y in items:
        a('v_mul_f32 v%d, v%d, v%d' % (d, x, y))
        a('v_mul_f32 v%d, v%d, v%d' % (d + 1, x + 1, y))
    for d, x, y in items:
        a('v_fma_f32 v%d, -v%d, v%d, v%d' % (d, x + 1, y + 1, d))
        a('v_fmac_f32 v%d, v%d, v%d' % (d + 1, x, y + 1))


def stamp(a, i, real=False):
    if DIAG:
        a('%s s[%d:%d]' % ('s_memrealtime' if real else 's_memtime', ST0 + 2 * i, ST0 + 2 * i + 1))


def stamp_dump(a, n=14):
    if DIAG:
        a('s_waitcnt vmcnt(0)')
        stamp(a, 13, True)
        a('s_waitcnt lgkmcnt(0)')
        a('s_lshl_b32 s68, s2, 4')
        a('s_add_u32 s68, s68, s3')
        a('s_lshl_b32 s68, s68, 6')
        a('s_add_u32 s68, s68, %d' % DIAG_BASE)
        a('v_mov_b32 v1, 0')
        a('s_mov_b64 exec, 1')
        for i in range(n):
            a('v_mov_b32 v2, s%d' % (ST0 + 2 * i))
            a('buffer_store_dword v2, v1, s[8:11], s68 offen offset:%d' % (4 * i))
        a('s_mov_b64 exec, -1')


_lab = [0]


def label(p):
    _lab[0] += 1
    return 'L_%s%d' % (p, _lab[0])


def lds_spin(a, va, vt, off, thr, st=66):
    l, e = label('sp'), label('se')
    a('''s_mov_b32 s%d, 0
%s:
ds_read_b32 v%d, v%d offset:%d
s_add_u32 s%d, s%d, 1
s_waitcnt lgkmcnt(0)
v_readfirstlane_b32 s%d, v%d
s_cmp_ge_u32 s%d, %d
s_cbranch_scc1 %s
s_cmp_ge_u32 s%d, %d
s_cbranch_scc1 %s
s_sleep 1
s_branch %s
%s:''' % (st, l, vt, va, off, st, st, st + 1, vt, st, SPIN_MAX, e, st + 1, thr, e, l, e))


def lds_add(a, va, vt, off):
    a('''v_mov_b32 v%d, 1
s_mov_b64 exec, 1
ds_add_u32 v%d, v%d offset:%d
s_mov_b64 exec, -1''' % (vt, va, vt, off))


def arrive_publish(a, va, vt, off, nwaves, sflag, vz):
    e = label('np')
    a('''v_mov_b32 v%d, 1
s_mov_b64 exec, 1
ds_add_rtn_u32 v%d, v%d, v%d offset:%d
v_mov_b32 v%d, 0
s_waitcnt lgkmcnt(0)
v_readfirstlane_b32 s66, v%d
v_mov_b32 v%d, s7
s_cmp_eq_u32 s66, %d
s_cbranch_scc0 %s
buffer_store_dword v%d, v%d, s[8:11], s%d offen sc1
%s:
s_mov_b64 exec, -1''' % (vt, vt, va, vt, off, vz, vt, vt, nwaves - 1, e, vt, vz, sflag, e))


def flag_poll(a, voff, vt, sbase):
    l, e = label('fp'), label('fe')
    a('''s_mov_b32 s66, 0
%s:
buffer_load_dword v%d, v%d, s[8:11], s%d offen sc1
s_add_u32 s66, s66, 1
s_waitcnt vmcnt(0)
v_cmp_eq_u32 vcc, s7, v%d
s_cmp_ge_u32 s66, %d
s_cbranch_scc1 %s
s_cmp_eq_u64 vcc, -1
s_cbranch_scc1 %s
s_sleep 3
s_branch %s
%s:''' % (l, vt, voff, sbase, vt, SPIN_MAX, e, e, l, e))


def kgen_stream():
    a = A()
    P = 20
    for i in range(8):
        a('v_lshlrev_b32 %s, 16, %s' % (vr(P + i), vr(P + i)))
    Are, Aim, Bre, Bim, Cre, Cim, LDT, DSK = range(P, P + 8)
    a('v_mul_f32 v%d, s51, v%d' % (LDT, LDT))
    a('v_exp_f32 v%d, v%d' % (LDT, LDT))
    a('s_nop 0')
    a('v_cvt_pk_bf16_f32 v%d, v%d, v%d' % (LDT, LDT, LDT))
    a('v_lshlrev_b32 v%d, 16, v%d' % (LDT, LDT))
    a('v_mul_f32 v%d, v%d, v%d' % (Are, LDT, Are))
    a('v_mul_f32 v%d, v%d, v%d' % (Aim, LDT, Aim))
    a('v_mul_f32 v%d, v%d, v%d' % (Bre, LDT, Bre))
    a('v_mul_f32 v%d, v%d, v%d' % (Bim, LDT, Bim))
    a('v_mul_f32 v%d, s51, v%d' % (Are, Are))
    a('v_mul_f32 v%d, 0.15915494, v%d' % (Aim, Aim))
    G = [32 + 2 * i for i in range(32)]
    W = [96 + 2 * i for i in range(9)]
    Z1, Z2, Z4, Z32 = 114, 116, 118, 120
    ZB = {256: 122, 512: 124, 768: 126, 1024: 128, 1280: 130, 1536: 132, 1792: 134}
    T0, PK, AD = 136, 146, 154
    R = {}
    nxt = 32
    for h in (0, 1):
        for e in ROWS[h]:
            if e is None:
                continue
            if e <= 8:
                R[e] = W[e]
            else:
                R[e] = nxt
                nxt += 2
    cmul_many(a, [(W[0], Cre, Bre)])
    direct = [(Z1, 1.0), (G[1], 8.0), (Z32, 32.0), (ZB[256], 256.0), (ZB[1024], 1024.0)]
    for i, (z, e) in enumerate(direct):
        a('v_mul_f32 v%d, 0x%x, v%d' % (T0 + 2 * i, f2u(e), Are))
        a('v_mul_f32 v%d, 0x%x, v%d' % (T0 + 2 * i + 1, f2u(e), Aim))
    for i, (z, e) in enumerate(direct):
        a('v_exp_f32 v%d, v%d' % (T0 + 2 * i, T0 + 2 * i))
        a('v_fract_f32 v%d, v%d' % (T0 + 2 * i + 1, T0 + 2 * i + 1))
    for i, (z, e) in enumerate(direct):
        a('v_cos_f32 v%d, v%d' % (z, T0 + 2 * i + 1))
        a('v_sin_f32 v%d, v%d' % (z + 1, T0 + 2 * i + 1))
    a('v_mov_b32 v%d, 1.0' % G[0])
    a('v_mov_b32 v%d, 0' % (G[0] + 1))
    for i, (z, e) in enumerate(direct):
        a('v_mul_f32 v%d, v%d, v%d' % (z, z, T0 + 2 * i))
        a('v_mul_f32 v%d, v%d, v%d' % (z + 1, z + 1, T0 + 2 * i))
    cmul_many(a, [(G[2], G[1], G[1]), (Z2, Z1, Z1), (W[1], W[0], Z1), (W[8], W[0], G[1]), (ZB[512], ZB[256], ZB[256]),
                  (ZB[1280], ZB[1024], ZB[256]), (G[5], G[1], Z32)])
    a('v_mov_b32 v%d, v%d' % (G[4], Z32))
    a('v_mov_b32 v%d, v%d' % (G[4] + 1, Z32 + 1))
    cmul_many(a, [(G[3], G[2], G[1]), (Z4, Z2, Z2), (W[2], W[0], Z2), (W[3], W[1], Z2), (ZB[768], ZB[512], ZB[256]),
                  (ZB[1536], ZB[1024], ZB[512]), (G[6], G[2], Z32)])
    cmul_many(a, [(G[7], G[3], Z32), (W[4], W[0], Z4), (W[5], W[1], Z4), (W[6], W[2], Z4), (W[7], W[3], Z4),
                  (ZB[1792], ZB[1024], ZB[768])])
    for i0 in range(8, 32, 4):
        cmul_many(a, [(G[i], G[i - 4], Z32) for i in range(i0, i0 + 4)])
    nvalu = len(a.L)
    for c in range(8):
        a('v_xor_b32 v%d, %d, v13' % (AD + c, c << 4))
    rowidx = [None] * 32
    for h in (0, 1):
        for r in range(16):
            rowidx[8 * (r >> 2) + 4 * h + (r & 3)] = ROWS[h][r]
    nput = [0]

    def put(c, regs, neg, off):
        pk = PK + 4 * (nput[0] & 1)
        nput[0] += 1
        for j in range(4):
            a('v_cvt_pk_bf16_f32 v%d, %sv%d, %sv%d' % (pk + j, neg, regs[2 * j], neg, regs[2 * j + 1]))
        a('ds_write_b128 v%d, %s%s' % (AD + c, vr(pk, 4), off))

    for c in range(8):
        put(c, [G[8 * (c & 3) + j] + (c >> 2) for j in range(8)], '', '')
    big = [e for e in R if e > 8]
    items = [(R[e], W[e & 255], ZB[e & ~255]) for e in big]
    for i0 in range(0, len(items), 5):
        cmul_many(a, items[i0:i0 + 5])
    for c in range(8):
        comp = c >> 2
        regs = [(R[e] if e is not None else W[0]) + comp for e in rowidx[8 * (c & 3):8 * (c & 3) + 8]]
        put(c, regs, '-' if comp else '', ' offset:8192')
    a('s_waitcnt lgkmcnt(0)')
    KD, FR, NB = 32, 48, 4

    def gen_reads(s):
        off = s * 1024
        b = FR + 8 * (s % NB)
        a('ds_read_b64_tr_b16 %s, v14 offset:%d' % (vr(b, 2), off + 8192))
        a('ds_read_b64_tr_b16 %s, v15 offset:%d' % (vr(b + 2, 2), off + 8192))
        a('ds_read_b64_tr_b16 %s, v14 offset:%d' % (vr(b + 4, 2), off))
        a('ds_read_b64_tr_b16 %s, v15 offset:%d' % (vr(b + 6, 2), off))

    for s in range(3):
        gen_reads(s)
    for s in range(8):
        if s + 3 < 8:
            gen_reads(s + 3)
        a('s_waitcnt lgkmcnt(%d)' % (4 * min(3, 7 - s)))
        b = FR + 8 * (s % NB)
        a(mfma(KD, b, b + 4, None if s == 0 else KD))
    a('s_nop 15')
    for j in range(4):
        a('ds_write_b128 v16, %s offset:%d' % (vr(KD + 4 * j, 4), 1024 * j))
    a('s_waitcnt lgkmcnt(0)')
    return a.L, nvalu


def transpose_addrs(a, sw, vrd, vwr, vlin, t0, t1):
    a('''v_lshrrev_b32 v{t0}, 4, v4
v_bfe_u32 v{t1}, v4, 2, 2
v_lshl_add_u32 v{t1}, v{t0}, 3, v{t1}
v_lshlrev_b32 v{rd}, 7, v{t1}
v_and_b32 v{t1}, 3, v4
v_lshl_add_u32 v{rd}, v{t1}, 3, v{rd}
s_lshl_b32 s66, s{w}, 5
s_add_u32 s66, s66, {usi}
v_add_u32 v{rd}, s66, v{rd}
v_and_b32 v{t1}, 7, v4
v_xor_b32 v{t0}, v{t0}, v{t1}
v_lshlrev_b32 v{t0}, 4, v{t0}
v_and_b32 v{t1}, 15, v4
v_lshl_add_u32 v{wr}, v{t1}, 7, v{t0}
s_lshl_b32 s66, s{w}, 11
s_add_u32 s66, s66, {uso}
v_add_u32 v{wr}, s66, v{wr}
v_lshl_add_u32 v{lin}, v4, 4, s66
v_lshrrev_b32 v{t0}, 3, v4
v_and_b32 v{t1}, 7, v4
v_xor_b32 v{t1}, v{t1}, v{t0}'''.format(t0=t0, t1=t1, rd=vrd, wr=vwr, lin=vlin, w=sw, usi=USI, uso=USO))


def transpose_a(a, vrd, vwr, d, t):
    a('''ds_read_b64_tr_b16 v[{d0}:{d1}], v{rd}
ds_read_b64_tr_b16 v[{d2}:{d3}], v{rd} offset:512
ds_read_b64_tr_b16 v[{d4}:{d5}], v{rd} offset:4096
ds_read_b64_tr_b16 v[{d6}:{d7}], v{rd} offset:4608
v_xor_b32 v{t}, 64, v{wr}
s_waitcnt lgkmcnt(2)
ds_write_b128 v{wr}, v[{d0}:{d3}]
s_waitcnt lgkmcnt(1)
ds_write_b128 v{t}, v[{d4}:{d7}]
s_waitcnt lgkmcnt(0)'''.format(rd=vrd, wr=vwr, t=t, **{'d%d' % i: d + i for i in range(8)}))


def kernel():
    a = A()
    KN = NAME + '_kernel'
    a('''.p2align 8
.type {k},@function
{k}:
s_cmp_ge_u32 s2, 256
s_cbranch_scc1 L_end
s_load_dwordx16 s[16:31], s[0:1], 8
s_load_dwordx4 s[32:35], s[0:1], 72
s_load_dwordx4 s[36:39], s[0:1], 104'''.format(k=KN))
    stamp(a, 0, True)
    stamp(a, 1)
    a('''v_lshrrev_b32 v3, 6, v0
v_and_b32 v4, 63, v0
s_and_b32 s44, s2, 7
s_lshr_b32 s45, s2, 3
v_readfirstlane_b32 s3, v3
s_lshl_b32 s60, s44, 6
s_lshl_b32 s46, s45, 1
s_add_u32 s60, s60, s46
s_lshl_b32 s46, s60, 8
v_lshl_add_u32 v5, v0, 1, s46
s_lshr_b32 s4, s44, 1
s_lshl_b32 s4, s4, 3
s_and_b32 s46, s45, 7
s_add_u32 s4, s4, s46
s_and_b32 s5, s44, 1
s_lshl_b32 s5, s5, 2
s_lshr_b32 s47, s45, 3
s_add_u32 s5, s5, s47
s_lshl_b32 s47, s47, 1
s_add_u32 s6, s46, s47
s_cmp_ge_u32 s3, 4
s_cbranch_scc1 L_gemm''')
    SEG = (1, 2, 0)

    a('''s_lshr_b32 s61, s3, 1
s_add_u32 s52, s60, s61
s_lshl_b32 s46, s52, 1
v_mov_b32 v19, s46
s_and_b32 s53, s3, 1
s_waitcnt lgkmcnt(0)''')
    P = 20
    a('global_load_ushort %s, v19, s[28:29]' % vr(P + 6))
    for i in range(6):
        a('global_load_ushort %s, v5, %s' % (vr(P + i), sr(16 + 2 * i, 2)))
    a('global_load_ushort %s, v19, s[30:31]' % vr(P + 7))
    a('''s_getpc_b64 s[40:41]
v_and_b32 v1, 7, v0
v_lshlrev_b32 v1, 7, v1
s_lshl_b32 s46, s45, 10
v_add_u32 v1, s46, v1
global_load_dword v2, v1, s[40:41]''')
    srd(a, 8, 38, WS_BYTES)
    srd(a, 12, 36, 256)
    a('''v_mov_b32 v18, 0
s_or_b32 s46, s2, s3
s_cmp_eq_u32 s46, 0
s_cbranch_scc0 L_notag
s_memrealtime s[46:47]
s_waitcnt lgkmcnt(0)
s_or_b32 s46, s46, 1
v_mov_b32 v1, s46
s_mov_b64 exec, 1
buffer_store_dword v1, v18, s[12:15], 0 offen sc1
s_mov_b64 exec, -1
s_waitcnt vmcnt(0)
L_notag:''')
    a('''s_lshl_b32 s62, s3, 14
s_add_u32 s62, s62, %d
v_and_b32 v10, 7, v4
v_lshlrev_b32 v10, 4, v10
v_lshl_add_u32 v13, v4, 7, v10
v_add_u32 v13, s62, v13
v_lshrrev_b32 v10, 5, v4
v_bfe_u32 v11, v4, 3, 1
v_lshl_add_u32 v10, v10, 2, v11
v_bfe_u32 v11, v4, 2, 1
v_lshlrev_b32 v11, 2, v11
v_bfe_u32 v12, v4, 4, 1
v_lshl_add_u32 v11, v12, 1, v11
v_bfe_u32 v12, v4, 1, 1
v_add_u32 v11, v11, v12
v_xor_b32 v11, v11, v10
v_lshlrev_b32 v11, 4, v11
v_lshl_add_u32 v11, v10, 7, v11
v_and_b32 v12, 1, v4
v_lshl_add_u32 v11, v12, 3, v11
v_add_u32 v14, s62, v11
v_xor_b32 v15, 32, v14
v_add_u32 v15, 256, v15
v_lshl_add_u32 v16, v4, 4, s62
v_xor_b32 v17, 0x4000, v16
v_mov_b32 v12, %d
s_mov_b32 s51, 0x%x''' % (GEN, CNT, f2u(LOG2E)))
    p1, nvalu = kgen_stream()
    sizes = [int(x) for x in OPTV.get('sl', '80,140,40').split(',')]
    cuts = [0]
    for z in sizes:
        cuts.append(min(len(p1), cuts[-1] + z))
    print('kgen instructions', len(p1), 'pure valu', nvalu, cuts, file=sys.stderr)
    stamp(a, 2)
    a('s_waitcnt vmcnt(1)')
    for c in range(16):
        if c < len(sizes):
            a.L += p1[cuts[c]:cuts[c + 1]]
        if c == 14:
            a('''s_cmp_eq_u32 s3, 0
s_cbranch_scc0 L_tagd
s_mov_b32 s66, 0
L_tagp:
buffer_load_dword v1, v18, s[12:15], 0 offen sc1
s_add_u32 s66, s66, 1
s_waitcnt vmcnt(0)
v_readfirstlane_b32 s7, v1
s_cmp_ge_u32 s66, %d
s_cbranch_scc1 L_tagq
s_cmp_eq_u32 s7, 0
s_cbranch_scc1 L_tagp
L_tagq:
v_cmp_eq_u32 vcc, 0, v4
v_lshl_add_u32 v2, v4, 2, v12
s_nop 0
v_cndmask_b32 v1, 0, v1, vcc
ds_write_b32 v2, v1
s_waitcnt lgkmcnt(0)
L_tagd:''' % SPIN_MAX)
        a('s_barrier')
    a('s_barrier')
    stamp(a, 3)
    a('s_setprio 3')
    a('ds_read_b32 v1, v12 offset:%d' % C_TAG)
    a('s_waitcnt lgkmcnt(0)')
    a('v_readfirstlane_b32 s7, v1')
    a.L += p1[cuts[-1]:]
    a('s_lshl_b32 s63, s61, 2')
    a('v_add_u32 v11, s63, v12')
    lds_add(a, 11, 1, C_PAIR)
    KD = 32
    a('''v_and_b32 v28, 31, v4
v_lshrrev_b32 v29, 5, v4
s_lshl_b32 s46, s53, 6
s_add_u32 s46, s46, s62
s_add_u32 s46, s46, %d
v_lshlrev_b32 v10, 4, v28
v_sub_u32 v18, s46, v10
v_and_b32 v10, 1, v4
v_cmp_eq_u32 s[54:55], 1, v10
v_cmp_eq_u32 s[56:57], 0, v4
s_mov_b32 s58, -1
s_mov_b32 s59, 0
s_mov_b32 s40, 0
s_mov_b32 s41, -1''' % (KCOPY + 255 * 16))
    for sl, (b0, b1) in enumerate([(0, 32), (128, 64), (160, 96), (192, 224)]):
        a('v_mul_i32_i24 v10, %d, v29' % ((b1 - b0) * 16))
        a('v_sub_u32 v%d, v18, v10' % (80 + sl))
        if b0:
            a('v_subrev_u32 v%d, %d, v%d' % (80 + sl, b0 * 16, 80 + sl))
    a('''v_lshl_add_u32 v87, v4, 4, s46
v_add_u32 v87, 16, v87
s_lshl_b32 s64, s61, 15
s_add_u32 s64, s64, %d
s_lshl_b32 s47, s53, 1
v_add_u32 v10, s47, v29
v_mul_u32_u24 v10, 1536, v10
v_lshl_add_u32 v10, v28, 4, v10
v_add_u32 v10, s64, v10
v_mov_b32 v88, 0
v_mov_b32 v89, 0
v_mov_b32 v90, 0
v_mov_b32 v91, 0''' % (GEN + UIMG))
    lds_spin(a, 11, 1, C_PAIR, 2)
    a('ds_write_b128 v10, v[88:91]')
    for j in range(4):
        a('ds_read_b128 %s, v17 offset:%d' % (vr(48 + 4 * j, 4), 1024 * j))
    a('v_cndmask_b32 v9, 0, v27, s[56:57]')
    a('v_add_f32 v%d, v%d, v9' % (KD, KD))
    a('s_waitcnt lgkmcnt(0)')
    for j in range(16):
        a('v_add_f32 v%d, v%d, v%d' % (KD + j, KD + j, 48 + j))
    for i, r in enumerate((9, 11, 13)):
        a('v_cndmask_b32 v%d, v%d, v%d, s[54:55]' % (84 + i, KD + r, KD + r + 1))
    OB = 64

    def pack(dst, vals):
        for j in range(4):
            a('v_cvt_pk_bf16_f32 v%d, v%d, v%d' % (dst + j, vals[2 * j], vals[2 * j + 1]))

    def emit_copy(cp):
        k = lambda r: KD + r
        r0 = [k(i) for i in range(9)]
        r1 = [k(0), k(0), k(1), k(2), k(2), k(2), k(3), k(4), k(4)]
        r2 = lambda b: [k(b), k(b), k(b), k(b + 1), k(b + 1), k(b + 1), k(b + 2), k(b + 2), k(b + 2)]
        r3 = lambda b, x: [k(b)] * 4 + [x] + [k(b + 1)] * 4
        sel = (lambda p: p[8:0:-1]) if cp == 0 else (lambda p: p[7::-1])
        a('s_mov_b64 exec, s[58:59]')
        pack(OB, sel(r0))
        pack(OB + 4, sel(r3(9, 84)))
        pack(OB + 8, sel(r3(11, 85)))
        pack(OB + 12, sel(r3(13, 86)))
        a('s_mov_b64 exec, s[40:41]')
        pack(OB, sel(r1))
        pack(OB + 4, sel(r2(5)))
        pack(OB + 8, sel(r2(8)))
        pack(OB + 12, sel(r3(11, 85)))
        a('s_mov_b64 exec, -1')
        if cp == 0:
            a('v_cvt_pk_bf16_f32 v10, v%d, v88' % KD)
            a('v_cndmask_b32 v88, 0, v10, s[56:57]')

    a('s_cmp_eq_u32 s53, 0')
    a('s_cbranch_scc0 L_copy1')
    emit_copy(0)
    a('s_branch L_copyd')
    a('L_copy1:')
    emit_copy(1)
    a('L_copyd:')
    for sl in range(4):
        a('ds_write_b128 v%d, %s' % (80 + sl, vr(OB + 4 * sl, 4)))
    a('s_mov_b64 exec, 15')
    a('ds_write_b128 v87, v[88:91]')
    a('s_mov_b64 exec, -1')
    stamp(a, 4)
    a('''v_lshlrev_b32 v6, 6, v28
s_lshl_b32 s46, s44, 11
s_add_u32 s46, s46, %d
s_cmp_eq_u32 s3, 0
s_cbranch_scc0 L_uw''' % FLU)
    flag_poll(a, 6, 1, 46)
    lds_add(a, 12, 1, C_GOU)
    a('L_uw:')
    lds_spin(a, 12, 1, C_GOU, 1)
    a('''v_lshlrev_b32 v6, 6, v4
s_lshl_b32 s46, s52, 12
s_lshl_b32 s47, s53, 5
s_add_u32 s46, s46, s47
s_add_u32 s46, s46, %d
s_mul_i32 s47, s53, 3072
s_add_u32 s47, s47, s64
s_add_u32 m0, s47, 512
s_nop 0
buffer_load_dwordx4 v6, s[8:11], s46 offen sc1 lds
s_add_u32 m0, s47, 2048
s_add_u32 s46, s46, 16
buffer_load_dwordx4 v6, s[8:11], s46 offen sc1 lds''' % UT)
    a('''v_bfe_u32 v18, v4, 4, 1
v_lshlrev_b32 v18, 4, v18
v_bfe_u32 v19, v4, 2, 1
v_lshl_add_u32 v18, v19, 3, v18
v_and_b32 v19, 3, v4
v_lshl_add_u32 v18, v19, 1, v18
v_bfe_u32 v19, v4, 3, 1
v_lshlrev_b32 v24, 3, v29
v_sub_u32 v24, v24, v18
v_add_u32 v24, 32, v24
v_lshlrev_b32 v24, 1, v24
v_mul_u32_u24 v19, %d, v19
v_add_u32 v24, v24, v19
s_add_u32 s46, s64, %d
v_add_u32 v24, s46, v24
s_lshl_b32 s46, s53, 9
s_add_u32 s46, s46, s64
s_add_u32 s46, s46, %d
v_mul_u32_u24 v25, 1536, v29
v_lshl_add_u32 v25, v28, 4, v25
v_add_u32 v25, s46, v25''' % (16384 + 64 - 4, KCOPY - UIMG + 32 * 120, 512 - 3 * 16))
    TB, UB, CA = 32, 40, 48
    for j in range(16):
        a('v_mov_b32 v%d, 0' % (CA + j))
    a('''s_lshl_b32 s34, 8, s53
s_mov_b32 s35, 0
s_waitcnt vmcnt(0) lgkmcnt(0)''')
    lds_add(a, 12, 1, C_CONV)
    lds_spin(a, 12, 1, C_CONV, 4)
    stamp(a, 5)
    if 'noconv' not in OPT:
        a('L_cl:')
        for j in range(8):
            t = TB + 4 * (j & 1)
            a('ds_read2_b32 %s, v24 offset0:%d offset1:%d' % (vr(t, 2), 8 * (7 - j), 8 * (7 - j) + 1))
            a('ds_read2_b32 %s, v24 offset0:%d offset1:%d' % (vr(t + 2, 2), 8 * (7 - j) + 2, 8 * (7 - j) + 3))
            a('ds_read_b128 %s, v25 offset:%d' % (vr(UB + 4 * (j & 1), 4), (3072 if j % 2 == 0 else 0) + (3 - (j >> 1)) * 16))
            a('s_waitcnt lgkmcnt(0)')
            a(mfma(CA, t, UB + 4 * (j & 1), CA))
        a('''v_subrev_u32 v24, 256, v24
v_subrev_u32 v25, 64, v25
s_add_u32 s35, s35, 1
s_cmp_lt_u32 s35, s34
s_cbranch_scc1 L_cl''')
    stamp(a, 6)
    a('''s_load_dwordx4 s[32:35], s[0:1], 88
s_lshl_b32 s46, s52, 12
s_lshl_b32 s47, s53, 11
s_add_u32 s46, s46, s47
s_add_u32 s46, s46, %d
v_lshlrev_b32 v6, 6, v28
v_lshl_add_u32 v6, v29, 4, v6
s_lshl_b32 s47, s53, 9
s_add_u32 s47, s47, s52
s_lshl_b32 s47, s47, 6
s_add_u32 s47, s47, %d
v_mov_b32 v1, s7
v_mov_b32 v2, 0''' % (YT, FL3))
    for s in range(2):
        for i in range(4):
            a('v_cvt_pk_bf16_f32 v%d, v%d, v%d' % (32 + 4 * s + i, CA + 8 * s + i, CA + 8 * s + 4 + i))
    a('''buffer_store_dwordx4 v[32:35], v6, s[8:11], s46 offen sc1
buffer_store_dwordx4 v[36:39], v6, s[8:11], s46 offen offset:32 sc1
s_waitcnt vmcnt(0) lgkmcnt(0)
s_mov_b64 exec, 1
buffer_store_dword v1, v2, s[8:11], s47 offen sc1
s_mov_b64 exec, -1''')
    srd(a, 12, 32, 512 * 1024)
    srd(a, 16, 34, 2048 * 2048)
    a('''v_lshrrev_b32 v6, 2, v4
v_lshlrev_b32 v6, 10, v6
v_and_b32 v7, 3, v4
v_lshl_add_u32 v6, v7, 4, v6
v_add_u32 v7, 0x3c00, v6
s_lshl_b32 s23, s53, 15
s_lshl_b32 s24, s61, 11
s_add_u32 s23, s23, s24
s_lshl_b32 s26, s5, 7
s_lshl_b32 s27, s53, 6
s_add_u32 s26, s26, s27
s_lshl_b32 s27, s61, 15
s_add_u32 s26, s26, s27
s_lshr_b32 s39, s45, 3
s_lshl_b32 s39, s39, 1''')
    for c in range(8):
        a('s_add_u32 s38, s39, %d' % c)
        a('s_and_b32 s38, s38, 7')
        a('s_lshl_b32 s30, s38, 16')
        a('s_add_u32 m0, s23, %d' % (c * 4096))
        a('s_add_u32 s30, s30, s26')
        a('buffer_load_dwordx4 v6, s[12:15], s30 offen lds')
        a('buffer_load_dwordx4 v7, s[12:15], s30 offen offset:1024 lds')
        a('s_waitcnt vmcnt(2)')
    stamp(a, 7)
    a('''v_lshlrev_b32 v6, 6, v4
s_lshr_b32 s46, s4, 4
s_lshl_b32 s46, s46, 15
s_lshl_b32 s47, s5, 12
s_add_u32 s46, s46, s47
s_add_u32 s46, s46, %d
s_cmp_eq_u32 s3, 0
s_cbranch_scc0 L_yw''' % FL3)
    flag_poll(a, 6, 1, 46)
    lds_add(a, 12, 1, C_GOY)
    a('L_yw:')
    transpose_addrs(a, 3, 20, 21, 22, 8, 9)
    a('''v_lshlrev_b32 v10, 12, v8
v_and_b32 v11, 7, v4
v_lshl_add_u32 v10, v11, 4, v10
v_add_u32 v11, 0x7c00, v10
s_lshl_b32 s46, s5, 18
s_lshl_b32 s47, s3, 16
s_add_u32 s46, s46, s47
s_lshl_b32 s47, s4, 7
s_add_u32 s46, s46, s47
s_add_u32 s46, s46, %d
s_lshl_b32 s47, s3, 11
s_add_u32 s47, s47, %d''' % (YT, USI))
    lds_spin(a, 12, 1, C_GOY, 1)
    a('''s_mov_b32 m0, s47
v_lshlrev_b32 v8, 11, v8
buffer_load_dwordx4 v10, s[8:11], s46 offen sc1 lds
buffer_load_dwordx4 v11, s[8:11], s46 offen offset:1024 sc1 lds
v_lshl_add_u32 v8, v9, 4, v8
s_lshl_b32 s46, s4, 17
s_lshl_b32 s47, s3, 15
s_add_u32 s46, s46, s47
s_lshl_b32 s47, s5, 7
s_add_u32 s46, s46, s47
s_add_u32 s47, s46, 0x4000
s_waitcnt vmcnt(0)''')
    lds_add(a, 12, 1, C_Y)
    lds_spin(a, 12, 1, C_Y, 4)
    transpose_a(a, 20, 21, 32, 23)
    a('''ds_read_b128 v[32:35], v22
ds_read_b128 v[36:39], v22 offset:1024
s_waitcnt lgkmcnt(1)
buffer_store_dwordx4 v[32:35], v8, s[16:19], s46 offen nt
s_waitcnt lgkmcnt(0)
buffer_store_dwordx4 v[36:39], v8, s[16:19], s47 offen nt''')
    lds_add(a, 12, 1, C_Y2)
    stamp(a, 8)
    a('''v_lshlrev_b32 v5, 4, v4
v_and_b32 v6, 7, v4
v_lshlrev_b32 v6, 6, v6
s_lshl_b32 s46, s4, 9
s_add_u32 s46, s46, %d
s_lshl_b32 s25, s4, 16
s_add_u32 s25, s25, s23
s_add_u32 s25, s25, %d
s_add_u32 s23, s23, %d
s_waitcnt lgkmcnt(0)
s_barrier''' % (FL2, OF, GEN))
    stamp(a, 9)
    flag_poll(a, 6, 1, 46)
    stamp(a, 10)
    for c in range(8):
        a('s_add_u32 s38, s39, %d' % c)
        a('s_and_b32 s38, s38, 7')
        a('s_lshl_b32 s30, s38, 12')
        a('s_add_u32 m0, s23, %d' % (c * 4096))
        a('s_add_u32 s30, s30, s25')
        a('buffer_load_dwordx4 v5, s[8:11], s30 offen sc1 lds')
        a('buffer_load_dwordx4 v5, s[8:11], s30 offen offset:1024 sc1 lds')
    NB3 = 4
    for c in range(NB3):
        a('s_waitcnt vmcnt(%d)' % (4 * (NB3 - 1 - c)))
        if c == 0:
            stamp(a, 11)
        a('s_barrier')
    stamp(a, 12)
    stamp_dump(a)
    a('s_endpgm')

    a('''L_gemm:
s_cmp_ge_u32 s3, 8
s_cbranch_scc1 L_mm
s_setprio 2
s_sub_u32 s61, s3, 4
v_lshrrev_b32 v10, 3, v4
v_lshrrev_b32 v11, 4, v4
v_and_b32 v12, 7, v4
v_xor_b32 v13, v12, v11
s_lshl_b32 s47, s61, 4
v_add_u32 v10, s47, v10
s_lshl_b32 s46, s4, 16
v_lshl_add_u32 v14, v10, 10, s46
v_lshl_add_u32 v6, v13, 4, v14
v_xor_b32 v7, 64, v6
v_add_u32 v7, 0x1c00, v7
v_lshlrev_b32 v16, 10, v10
v_lshl_add_u32 v16, v12, 4, v16
v_mul_u32_u24 v10, 3072, v10
v_and_b32 v11, 1, v11
v_lshlrev_b32 v11, 2, v11
v_xor_b32 v12, v12, v11
v_lshl_add_u32 v8, v12, 4, v10
s_lshl_b32 s46, s5, 7
v_add_u32 v8, s46, v8
v_add_u32 v9, %d, v8
s_lshl_b32 s48, s61, 11
s_waitcnt lgkmcnt(0)''' % (8 * 3072 - 1024))
    srd(a, 16, 32, 2048 * 1024)
    srd(a, 12, 34, 512 * 3072)

    def dma_chunk(c):
        slot = (c % 6) * 16384
        if c < 8:
            a('s_add_u32 s50, s6, %d' % c)
            a('s_and_b32 s50, s50, 7')
            a('s_mul_i32 s49, s50, %d' % (64 * 3072))
            a('s_add_u32 m0, s48, %d' % slot)
            a('s_lshl_b32 s50, s50, 7')
            a('buffer_load_dwordx4 v6, s[16:19], s50 offen lds')
            a('buffer_load_dwordx4 v7, s[16:19], s50 offen offset:1024 lds')
            a('s_add_u32 m0, s48, %d' % (slot + 8192))
            a('s_add_u32 s49, s49, %d' % (SEG[0] * 1024))
            a('buffer_load_dwordx4 v8, s[12:15], s49 offen lds')
            a('buffer_load_dwordx4 v9, s[12:15], s49 offen offset:1024 lds')
        else:
            p, j = 1 + ((c - 8) >> 2), (c - 8) & 3
            for hf in range(2):
                a('s_add_u32 s50, s6, %d' % (2 * j + hf))
                a('s_and_b32 s50, s50, 7')
                a('s_mul_i32 s49, s50, %d' % (64 * 3072))
                a('s_add_u32 m0, s48, %d' % (slot + hf * 8192))
                a('s_add_u32 s49, s49, %d' % (SEG[p] * 1024))
                a('buffer_load_dwordx4 v8, s[12:15], s49 offen lds')
                a('buffer_load_dwordx4 v9, s[12:15], s49 offen offset:1024 lds')

    dma_chunk(0)
    dma_chunk(1)
    a('s_load_dwordx2 s[20:21], s[0:1], 0')
    srd(a, 8, 38, WS_BYTES)
    transpose_addrs(a, 61, 20, 21, 22, 23, 24)
    a('''s_lshl_b32 s46, s45, 16
s_lshl_b32 s47, s44, 7
s_add_u32 s52, s46, s47
v_add_u32 v17, 0x1c00, v16
v_lshlrev_b32 v23, 12, v23
v_lshl_add_u32 v23, v24, 4, v23
s_lshl_b32 s46, s44, 18
s_lshl_b32 s47, s61, 16
s_add_u32 s53, s46, s47
s_lshl_b32 s47, s45, 7
s_add_u32 s53, s53, s47
s_add_u32 s53, s53, %d
s_add_u32 s54, s53, 0x8000
s_lshl_b32 s55, s44, 5
s_add_u32 s55, s55, s45
s_lshl_b32 s55, s55, 6
s_add_u32 s55, s55, %d
v_mov_b32 v12, %d
s_waitcnt lgkmcnt(0)''' % (UT, FLU, CNT))
    srd(a, 24, 20, 2048 * 1024)
    issued = 2
    stamp(a, 2)
    for c in range(16):
        a('s_waitcnt vmcnt(%d)' % (4 * (issued - 1 - c) + (2 if c == 14 else 0)))
        if c in (0, 8, 12):
            stamp(a, {0: 3, 8: 4, 12: 5}[c])
        a('s_barrier')
        for n in {0: [2, 3], 1: [4, 5]}.get(c, [c + 4] if c + 4 < 16 else []):
            dma_chunk(n)
            issued += 1
        if c == 13:
            a('s_add_u32 m0, s48, %d' % USI)
            a('s_nop 0')
            a('buffer_load_dwordx4 v16, s[24:27], s52 offen lds')
            a('buffer_load_dwordx4 v17, s[24:27], s52 offen offset:1024 lds')
    transpose_a(a, 20, 21, 32, 25)
    a('''ds_read_b128 v[32:35], v22
ds_read_b128 v[36:39], v22 offset:1024
s_waitcnt lgkmcnt(1)
buffer_store_dwordx4 v[32:35], v23, s[8:11], s53 offen sc1
s_waitcnt lgkmcnt(0)
buffer_store_dwordx4 v[36:39], v23, s[8:11], s54 offen sc1
s_barrier
ds_read_b32 v1, v12 offset:%d
s_waitcnt vmcnt(0) lgkmcnt(0)
v_readfirstlane_b32 s7, v1''' % C_TAG)
    arrive_publish(a, 12, 1, C_U, 4, 55, 2)
    a('s_branch L_att')

    XA, WA, OA, OV = 160, 164, 165, 166
    XR, ACC = 0, 128
    WF = [144, 148, 152, 156]
    a('''L_mm:
%s
s_setprio 3
s_and_b32 s52, s3, 1
s_bfe_u32 s53, s3, 0x10001
v_and_b32 v10, 31, v4
v_bfe_u32 v11, v4, 1, 3
v_lshrrev_b32 v12, 5, v4
v_xor_b32 v11, v11, v12
v_lshlrev_b32 v11, 4, v11
v_lshl_add_u32 v10, v10, 7, v11
s_lshl_b32 s46, s52, 12
v_add_u32 v%d, s46, v10''' % ('s_memrealtime s[70:71]' if 'dbgt' in OPT else '', XA))
    for jq in range(1, 4):
        a('v_xor_b32 v%d, %d, v%d' % (XA + jq, jq << 5, XA))
    a('''v_lshlrev_b32 v10, 10, v12
v_bfe_u32 v11, v4, 2, 2
v_lshl_add_u32 v10, v11, 7, v10
v_bfe_u32 v11, v4, 3, 1
v_xor_b32 v11, s53, v11
v_lshl_add_u32 v10, v11, 6, v10
v_bfe_u32 v11, v4, 4, 1
v_lshl_add_u32 v10, v11, 5, v10
v_and_b32 v11, 3, v4
v_lshl_add_u32 v%d, v11, 3, v10''' % WA)
    a('''s_lshl_b32 s46, s4, 1
s_add_u32 s46, s46, s52
s_lshl_b32 s46, s46, 10
s_lshl_b32 s47, s5, 1
s_add_u32 s47, s47, s53
s_lshl_b32 s47, s47, 17
s_add_u32 s46, s46, s47
v_lshl_add_u32 v%d, v4, 4, s46
v_bfe_u32 v11, v4, 4, 1
v_lshlrev_b32 v11, 16, v11
v_lshl_add_u32 v11, v12, 8, v11
v_and_b32 v10, 15, v4
v_lshl_add_u32 v11, v10, 4, v11
v_add_u32 v%d, s46, v11
v_mov_b32 v167, v4
s_mov_b32 s62, 0x%x
s_mov_b32 s64, %d
s_mov_b32 s65, %d
s_mov_b32 s63, %d
s_lshl_b32 s54, s52, 12
s_lshl_b32 s47, s53, 11
s_add_u32 s54, s54, s47
s_add_u32 s54, s54, %d
s_lshl_b32 s56, s5, 11
s_add_u32 s56, s56, %d
s_lshl_b32 s55, s4, 6
s_add_u32 s55, s55, s56
s_waitcnt lgkmcnt(0)''' % (OA, OV, f2u(QSCALE), KF, KF + 65536, VF, QX, FL1))
    srd(a, 8, 38, WS_BYTES)
    PD = 3

    def chunk_of(s):
        p, kk = s >> 5, s & 31
        return (kk >> 2, kk & 3) if p == 0 else (8 + 4 * (p - 1) + (kk >> 3), kk & 7)

    def nreads(s):
        return 0 if s >= 96 else (3 if s < 32 else 2)

    def reads(s):
        c, j = chunk_of(s)
        if j == 0:
            a('s_barrier')
            if c == 0:
                stamp(a, 2)
                if 'dbgt' in OPT:
                    a('s_memrealtime s[72:73]')
            if c % 3 == 0 and c > 0:
                op = 'v_add_u32' if c % 6 == 3 else 'v_subrev_u32'
                for r in ([XA, XA + 1, XA + 2, XA + 3] if c < 8 else []) + [WA]:
                    a('%s v%d, 0xc000, v%d' % (op, r, r))
        so = (c % 3) * 16384
        if c < 8:
            a('ds_read_b128 %s, v%d offset:%d' % (vr(XR + 4 * s, 4), XA + j, so))
            so += 8192
        for rd in range(2):
            a('ds_read_b64_tr_b16 %s, v%d offset:%d' % (vr(WF[s % 4] + 2 * rd, 2), WA, so + j * 2048 + rd * 512))

    def epilogue(p):
        lo, hi = vr(ACC, 4), vr(ACC + 4, 4)
        if SEG[p] == 0:
            a('v_mov_b32 v4, v167')
            a('v_mov_b32 v12, %d' % CNT)
            a('v_lshl_add_u32 v10, v167, 4, s54')
            a('s_nop 12')
            for i in range(16):
                a('v_mul_f32 v%d, s62, v%d' % (ACC + i, ACC + i))
        else:
            a('s_nop 15')
        for j in range(8):
            a('v_cvt_pk_bf16_f32 v%d, v%d, v%d' % (ACC + j, ACC + 2 * j, ACC + 2 * j + 1))
        if SEG[p] == 0:
            a('ds_write_b128 v10, %s' % lo)
            a('ds_write_b128 v10, %s offset:1024' % hi)
        elif SEG[p] == 1:
            a('buffer_store_dwordx4 %s, v%d, s[8:11], s64 offen sc1' % (lo, OA))
            a('buffer_store_dwordx4 %s, v%d, s[8:11], s65 offen sc1' % (hi, OA))
        else:
            a('buffer_store_dwordx4 %s, v%d, s[8:11], s63 offen sc1' % (lo, OV))
            a('buffer_store_dwordx4 %s, v%d, s[8:11], s63 offen offset:512 sc1' % (hi, OV))

    for s in range(PD):
        reads(s)
    for s in range(96):
        p, kk = s >> 5, s & 31
        if s + PD < 96:
            reads(s + PD)
        a('s_waitcnt lgkmcnt(%d)' % sum(nreads(t) for t in range(s + 1, s + PD + 1)))
        x, w = XR + 4 * kk, WF[s % 4]
        if SEG[p] == 2:
            a(mfma(ACC, x, w, None if kk == 0 else ACC))
        else:
            a(mfma(ACC, w, x, None if kk == 0 else ACC))
        if kk == 31:
            stamp(a, 3 + p)
            epilogue(p)
    a('''s_waitcnt lgkmcnt(0)
s_barrier
ds_read_b32 v1, v12 offset:%d
s_waitcnt vmcnt(0) lgkmcnt(0)
v_readfirstlane_b32 s7, v1''' % C_TAG)
    arrive_publish(a, 12, 1, C_KV, 4, 55, 2)
    a('''s_cmp_eq_u32 s3, 8
s_cbranch_scc0 L_att
v_and_b32 v6, 31, v4
v_lshlrev_b32 v6, 6, v6''')
    flag_poll(a, 6, 1, 56)
    lds_add(a, 12, 1, C_GO)

    S = [16, 32]
    Pp = [48, 56]
    O = [64, 80]
    Q = [96, 100]
    NB = 4
    K = [104 + 4 * b for b in range(NB)]
    V = [[120 + 8 * b, 124 + 8 * b] for b in range(NB)]
    KA, VA = 152, 153
    a('''L_att:
s_and_b32 s18, s3, 3
s_lshr_b32 s24, s3, 3
v_lshlrev_b32 v5, 4, v4
s_lshl_b32 s26, s18, 10
s_add_u32 s26, s26, %d
v_add_u32 v6, s26, v5
ds_read_b128 %s, v6
ds_read_b128 %s, v6 offset:4096
s_lshl_b32 s27, s5, 2
s_add_u32 s18, s18, s27
s_lshl_b32 s22, s18, 16
s_add_u32 s27, s22, %d
v_add_u32 v%d, s27, v5
s_lshl_b32 s36, s24, 10
s_mov_b32 s37, s36
v_lshrrev_b32 v6, 5, v4
v_and_b32 v7, 15, v4
v_lshlrev_b32 v7, 4, v7
v_lshl_add_u32 v7, v6, 8, v7
s_add_u32 s27, s22, %d
v_add_u32 v%d, s27, v7
v_and_b32 v6, 31, v4
v_cmp_eq_u32 vcc, 16, v6
v_cmp_eq_u32 s[28:29], 20, v6
s_mov_b32 s30, 0x3f803f80
s_or_b64 vcc, vcc, s[28:29]
v_mov_b32 v7, s30
s_mov_b32 s40, 0xffff
s_mov_b32 s41, 0xffff
v_cndmask_b32 v6, 0, v7, vcc''' % (QX, vr(Q[0], 4), vr(Q[1], 4), KF, KA, VF, VA))
    for b in range(NB):
        for u in range(2):
            for j in range(4):
                a('v_mov_b32 v%d, v6' % (V[b][u] + j))
    for q in range(2):
        for j in range(16):
            a('v_mov_b32 v%d, 0' % (O[q] + j))

    def rdk(i):
        return ['buffer_load_dwordx4 %s, v%d, s[8:11], s36 offen sc1' % (vr(K[i % NB], 4), KA),
                's_add_u32 s36, s36, 2048']

    def rdv(i):
        return ['s_mov_b64 exec, s[40:41]',
                'buffer_load_dwordx4 %s, v%d, s[8:11], s37 offen sc1' % (vr(V[i % NB][0], 4), VA),
                'buffer_load_dwordx4 %s, v%d, s[8:11], s37 offen offset:512 sc1' % (vr(V[i % NB][1], 4), VA),
                's_mov_b64 exec, -1', 's_add_u32 s37, s37, 2048']

    stamp(a, 6)
    lds_spin(a, 12, 1, C_GO, 1)
    stamp(a, 7)
    a('\n'.join(rdk(0) + rdk(1) + rdv(0) + rdk(2) + rdv(1)))
    a('s_setprio 3')
    a('s_waitcnt vmcnt(6)')
    stamp(a, 8)
    if 'dbgt' in OPT:
        a('s_memrealtime s[74:75]')
    a(mfma(S[0], K[0], Q[0], None))
    a('s_nop 7')
    a('s_nop 3')
    PRIO = {7: 2, 15: 1, 23: 0}

    def unit(i, q):
        u = 2 * i + q
        sc, sn = S[u % 2], S[(u + 1) % 2]
        pc, pp = Pp[u % 2], Pp[(u + 1) % 2]
        i1, q1 = (i, 1) if q == 0 else (i + 1, 0)
        i0, q0 = (i - 1, 1) if q == 0 else (i, 0)
        qk = mfma(sn, K[i1 % NB], Q[q1], None)
        pv0 = mfma(O[q0], V[i0 % NB][0], pp, O[q0])
        pv1 = mfma(O[q0], V[i0 % NB][1], pp + 4, O[q0])
        e = ['v_exp_f32 v%d, v%d' % (sc + j, sc + j) for j in range(16)]
        c = ['v_cvt_pk_bf16_f32 v%d, v%d, v%d' % (pc + j, sc + 2 * j, sc + 2 * j + 1) for j in range(8)]
        c7prev = 'v_cvt_pk_bf16_f32 v%d, v%d, v%d' % (pp + 7, sn + 14, sn + 15)
        out = [e[0]]
        if q == 1:
            out.append('s_waitcnt vmcnt(%d)' % ((i + 2 < 32) + 2 * (i + 1 < 32) + (i + 3 < 32)))
        if u > 0:
            out.append(c7prev)
        if u < 63:
            out.append(qk)
        kl = rdk(i + 3) if q == 0 and i + 3 < 32 else []
        vl = rdv(i + 2) if q == 1 and i + 2 < 32 else []
        out += kl[:1] + vl[:4]
        out += [e[1], e[2], c[0], e[3], e[4], c[1], e[5]]
        if u > 0:
            out.append(pv0)
        out += kl[1:] + vl[4:]
        out += [e[6], c[2], e[7], e[8], c[3], e[9], e[10], c[4]]
        if u > 0:
            out.append(pv1)
        if q == 1 and i in PRIO:
            out.append('s_setprio %d' % PRIO[i])
        out += [e[11], e[12], c[5], e[13], e[14], c[6], e[15]]
        return out

    for i in range(32):
        for q in range(2):
            for s in unit(i, q):
                a(s)
    a('s_nop 0')
    a('v_cvt_pk_bf16_f32 v%d, v%d, v%d' % (Pp[1] + 7, S[1] + 14, S[1] + 15))
    stamp(a, 9)
    if 'dbgt' in OPT:
        a('s_memrealtime s[76:77]')
    a('s_setprio 3')
    a('s_nop 0')
    a(mfma(O[1], V[31 % NB][0], Pp[1], O[1]))
    a(mfma(O[1], V[31 % NB][1], Pp[1] + 4, O[1]))
    a('''s_sub_u32 s26, s3, 4
s_xor_b32 s27, s26, 4
s_mul_i32 s26, s26, 2304
s_add_u32 s26, s26, %d
s_mul_i32 s27, s27, 2304
s_add_u32 s27, s27, %d
v_add_u32 v6, s26, v5
v_add_u32 v7, s27, v5
v_lshlrev_b32 v8, 2, v4
v_add_u32 v9, s27, v8
v_add_u32 v8, s26, v8''' % (OX, OX))
    lds_spin(a, 12, 1, C_Y2, 4)
    a('''s_cmp_eq_u32 s24, 0
s_cbranch_scc0 L_x1''')
    F = 32
    for own, lab in ((0, None), (1, 'L_x1')):
        if lab:
            a(lab + ':')
        oth = 1 - own
        a('ds_write_b128 v6, %s' % vr(O[oth], 4))
        a('ds_write_b128 v6, %s offset:1024' % vr(O[oth] + 4, 4))
        a('ds_write_b32 v8, v%d offset:2048' % (O[oth] + 8))
        for j in range(9):
            a('v_mov_b32 v%d, v%d' % (F + j, O[own] + j))
        if own == 1:
            for j in range(4):
                a('v_mov_b32 v%d, v%d' % (Q[0] + j, Q[1] + j))
        if own == 0:
            a('s_branch L_x2')
    a('''L_x2:
s_waitcnt lgkmcnt(0)
s_barrier''')
    stamp(a, 10)
    a('''ds_read_b128 v[48:51], v7
ds_read_b128 v[52:55], v7 offset:1024
ds_read_b32 v56, v9 offset:2048
s_lshl_b32 s25, s4, 1
s_add_u32 s25, s25, s24
s_lshl_b32 s25, s25, 15
s_lshl_b32 s26, s18, 10
s_add_u32 s25, s25, s26
s_add_u32 s25, s25, %d
s_mov_b32 s44, 0x%x
s_mov_b32 s45, 0x%x
s_mov_b32 s46, 0x7f7fffff
s_lshl_b32 s55, s4, 3
s_add_u32 s55, s55, s5
s_lshl_b32 s55, s55, 6
s_add_u32 s55, s55, %d
s_waitcnt lgkmcnt(0)''' % (OF, f2u(2.0 ** -64), f2u(2.0 ** 64), FL2))
    for j in range(9):
        a('v_add_f32 v%d, v%d, v%d' % (F + j, F + j, 48 + j))
    a('''v_max3_f32 v48, abs(v32), abs(v33), abs(v34)
v_max3_f32 v49, abs(v35), abs(v36), abs(v37)
v_max3_f32 v48, v48, abs(v38), abs(v39)
v_cmp_le_f32 s[28:29], s44, v40
v_cmp_ge_f32 s[30:31], s45, v40
v_add_f32 v50, v32, v33
v_add_f32 v51, v34, v35
v_add_f32 v52, v36, v37
v_add_f32 v53, v38, v39
v_max_f32 v48, v48, v49
v_add_f32 v50, v50, v51
v_add_f32 v52, v52, v53
v_cmp_ge_f32 s[32:33], s46, v48
v_cmp_o_f32 s[34:35], v50, v52
v_rcp_f32 v48, v40
s_and_b64 s[28:29], s[28:29], s[30:31]
s_and_b64 s[32:33], s[32:33], s[34:35]
s_and_b64 s[28:29], s[28:29], s[32:33]
s_cmp_eq_u64 s[28:29], -1
s_cbranch_scc0 L_slow
L_fin:''')
    for j in range(8):
        a('v_mul_f32 v%d, v%d, v48' % (F + j, F + j))
    for j in range(4):
        a('v_cvt_pk_bf16_f32 v%d, v%d, v%d' % (52 + j, F + 2 * j, F + 2 * j + 1))
    a('buffer_store_dwordx4 v[52:55], v5, s[8:11], s25 offen sc1')
    a('''s_load_dwordx2 s[34:35], s[0:1], 96
s_and_b32 s21, s3, 1
s_bfe_u32 s22, s3, 0x10001
s_lshl_b32 s30, s21, 15
s_add_u32 s30, s30, %d
v_add_u32 v10, s30, v5
v_lshrrev_b32 v14, 5, v4
v_bfe_u32 v11, v4, 2, 2
v_lshl_add_u32 v11, v14, 2, v11
v_lshlrev_b32 v11, 6, v11
v_and_b32 v13, 1, v4
v_lshl_add_u32 v11, v13, 5, v11
v_bfe_u32 v13, v4, 4, 1
v_lshl_add_u32 v11, v13, 4, v11
v_bfe_u32 v13, v4, 1, 1
v_lshl_add_u32 v11, v13, 3, v11
s_lshl_b32 s30, s22, 15
v_add_u32 v11, s30, v11
v_and_b32 v15, 31, v4
v_lshlrev_b32 v15, 11, v15
v_lshl_add_u32 v15, v14, 5, v15
s_lshl_b32 s30, s4, 17
s_lshl_b32 s37, s21, 16
s_add_u32 s30, s30, s37
s_lshl_b32 s31, s5, 7
s_add_u32 s30, s30, s31
s_lshl_b32 s37, s22, 6
s_add_u32 s37, s37, s30
s_add_u32 s37, s37, 1024
s_waitcnt vmcnt(0) lgkmcnt(0)''' % GEN)
    arrive_publish(a, 12, 1, C_O, 8, 55, 2)
    stamp(a, 11)
    a('s_cmp_lt_u32 s3, 8')
    a('s_cbranch_scc1 L_bend')
    srd(a, 16, 34, 2048 * 2048)
    AC3 = 20
    FB = [36, 44, 52, 60]

    def reads3(hd):
        if hd % (32 // NB3) == 0:
            a('s_barrier')
        b = FB[hd % 4]
        a('ds_read_b128 %s, v10 offset:%d' % (vr(b, 4), hd * 1024))
        a('ds_read_b64_tr_b16 %s, v11 offset:%d' % (vr(b + 4, 2), hd * 1024))
        a('ds_read_b64_tr_b16 %s, v11 offset:%d' % (vr(b + 6, 2), hd * 1024 + 512))

    for hd in range(PD):
        reads3(hd)
    for hd in range(32):
        if hd + PD < 32:
            reads3(hd + PD)
        a('s_waitcnt lgkmcnt(%d)' % (3 * min(PD, 31 - hd)))
        b = FB[hd % 4]
        a(mfma(AC3, b + 4, b, None if hd == 0 else AC3))
    stamp(a, 12)
    a('s_nop 15')
    for j in range(8):
        a('v_cvt_pk_bf16_f32 v%d, v%d, v%d' % (36 + j, AC3 + 2 * j, AC3 + 2 * j + 1))
    st3 = OPTV.get('st3', '').replace('+', ' ')
    a('buffer_store_dwordx4 v[36:39], v15, s[16:19], s37 offen' + st3)
    a('buffer_store_dwordx4 v[40:43], v15, s[16:19], s37 offen offset:16' + st3)
    if 'dbgt' in OPT:
        a('s_waitcnt vmcnt(0)')
        a('s_memrealtime s[78:79]')
        a('s_load_dwordx2 s[36:37], s[0:1], 104')
        a('s_waitcnt lgkmcnt(0)')
        srd(a, 12, 36, 256)
        a('v_mov_b32 v2, 0')
        a('s_mov_b64 exec, 1')
        for i in range(5):
            a('s_sub_u32 s66, s%d, s7' % (70 + 2 * i))
            a('s_add_u32 s66, s66, 1000')
            a('v_mov_b32 v1, s66')
            a('buffer_atomic_umax v1, v2, s[12:15], 0 offen offset:%d sc1' % (4 + 4 * i))
            a('s_sub_u32 s66, 100000, s66')
            a('v_mov_b32 v3, s66')
            a('buffer_atomic_umax v3, v2, s[12:15], 0 offen offset:%d sc1' % (36 + 4 * i))
        a('s_mov_b64 exec, -1')
        a('s_waitcnt vmcnt(0)')
    a('L_bend:')
    stamp_dump(a)
    a('s_endpgm')

    M, OS = 64, 80
    a('''L_slow:
v_mov_b32 v58, 0xff800000
s_mov_b32 s42, 0
L_s1:
buffer_load_dwordx4 %s, v%d, s[8:11], s42 offen sc1
s_waitcnt vmcnt(0)
%s
s_nop 15''' % (vr(K[0], 4), KA, mfma(S[0], K[0], Q[0], None)))
    for j in range(8):
        a('v_max3_f32 v58, v58, v%d, v%d' % (S[0] + 2 * j, S[0] + 2 * j + 1))
    a('''s_add_u32 s42, s42, 1024
s_cmp_lt_u32 s42, 0x10000
s_cbranch_scc1 L_s1
v_mov_b32 v59, v58
s_nop 1
v_permlane32_swap_b32 v58, v59
s_nop 1
v_max_f32 v58, v58, v59''')
    for j in range(16):
        a('v_sub_f32 v%d, 0, v58' % (M + j))
        a('v_mov_b32 v%d, 0' % (OS + j))
    a('''s_mov_b32 s42, 0
L_s2:
buffer_load_dwordx4 %s, v%d, s[8:11], s42 offen sc1
s_mov_b64 exec, s[40:41]
buffer_load_dwordx4 %s, v%d, s[8:11], s42 offen sc1
buffer_load_dwordx4 %s, v%d, s[8:11], s42 offen offset:512 sc1
s_mov_b64 exec, -1
s_waitcnt vmcnt(0)
%s
s_nop 15''' % (vr(K[0], 4), KA, vr(V[0][0], 4), VA, vr(V[0][1], 4), VA, mfma(S[0], K[0], Q[0], M)))
    for j in range(16):
        a('v_exp_f32 v%d, v%d' % (S[0] + j, S[0] + j))
    a('s_nop 0')
    for j in range(8):
        a('v_cvt_pk_bf16_f32 v%d, v%d, v%d' % (Pp[0] + j, S[0] + 2 * j, S[0] + 2 * j + 1))
    a('s_nop 1')
    a(mfma(OS, V[0][0], Pp[0], OS))
    a(mfma(OS, V[0][1], Pp[0] + 4, OS))
    a('''s_add_u32 s42, s42, 1024
s_cmp_lt_u32 s42, 0x10000
s_cbranch_scc1 L_s2
s_nop 15''')
    for j in range(9):
        a('v_mov_b32 v%d, v%d' % (F + j, OS + j))
    a('''v_rcp_f32 v48, v40
s_nop 0
s_branch L_fin
L_end:
s_endpgm''')
    return a.text()


def main(path):
    KN = NAME + '_kernel'
    t = kernel()
    hdr = '''; fused kernel: projections + S4 kernel generation | attention + causal convolution | output projection
; @launch grid=(256,1,1) block=(768,1,1) lds=%d
.amdgcn_target "amdgcn-amd-amdhsa--gfx950"
.text
.globl %s
''' % (LDS_BYTES, KN)
    pad = '.p2align 8\n.fill 4096, 4, 0xbf800000\n'
    kd = '''.section .rodata,"a"
.p2align 6
.amdhsa_kernel %s
  .amdhsa_next_free_vgpr 168
  .amdhsa_next_free_sgpr 102
  .amdhsa_accum_offset 168
  .amdhsa_group_segment_fixed_size 0
  .amdhsa_kernarg_size 120
  .amdhsa_user_sgpr_count 2
  .amdhsa_user_sgpr_kernarg_segment_ptr 1
  .amdhsa_system_sgpr_workgroup_id_x 1
.end_amdhsa_kernel
''' % KN
    open(path, 'w').write(hdr + t + pad + kd)


if __name__ == '__main__':
    for arg in sys.argv[1:]:
        OPT.add(arg)
        if '=' in arg:
            OPTV[arg.split('=')[0]] = arg.split('=')[1]
    DIAG = 'diag' in OPT
    main(sys.argv[1] if len(sys.argv) > 1 else 'cdna_kernels/%s.s' % NAME)
```

```python
import sys
import struct

NAME = 'concat_heads__ssm_conv_s4__softmax_full_mha__prompt'

KF = 0x200000
VF = 0x400000
OF = 0x600000
RS = 4224
UT = 0x800000
YT = 0x1400000
FL1 = 0xC00000
FLU = 0xC04000
FL2 = 0xC08000
FL3 = 0xC10000
WS_BYTES = 0x2000000

GEN = 6 * 16384
LDS_BYTES = GEN + 65536
QX = 65536
USI = 74752
USO = 82944
OX = 65536
YI = 73728
CNT = 94208
C_TAG, C_KV, C_GO, C_PAIR, C_CONV, C_O, C_Y, C_GOU, C_GOY, C_Y2, C_X = 0, 4, 8, 80, 24, 16, 32, 36, 40, 44, 48
C_U, C_MASK, C_P3, C_O1, C_Q, C_GOE = 12, 96, 100, 20, 116, 120
KCOPY = 4096
UIMG = 9216

LOG2E = 1.4426950408889634
QSCALE = 0.25 * LOG2E
OPT = set()
OPTV = {}
DIAG = False
DIAG_BASE = 0xF00000
ST0 = 70
SPIN_MAX = 1 << 16
ROWS = {0: [0, 1, 2, 3, 4, 5, 6, 7, 8, 1024, 1032, 1280, 1288, 1536, 1544, None],
        1: [256, 258, 260, 262, 264, 512, 516, 520, 768, 772, 776, 1792, 1800, None, None, None]}


def f2u(x):
    return struct.unpack('<I', struct.pack('<f', x))[0]


class A:
    def __init__(self):
        self.L = []

    def __call__(self, s):
        for line in s.split('\n'):
            line = line.strip()
            if not line:
                continue
            if line.endswith(':') or line.startswith('.'):
                self.L.append(line)
            else:
                self.L.append('    ' + line)

    def text(self):
        return '\n'.join(self.L) + '\n'


def vr(a, n=1):
    return 'v%d' % a if n == 1 else 'v[%d:%d]' % (a, a + n - 1)


def sr(a, n=1):
    return 's%d' % a if n == 1 else 's[%d:%d]' % (a, a + n - 1)


def srd(a, dst, base, nbytes):
    a('s_mov_b32 s%d, s%d' % (dst, base))
    a('s_mov_b32 s%d, s%d' % (dst + 1, base + 1))
    a('s_mov_b32 s%d, 0x%x' % (dst + 2, nbytes))
    a('s_mov_b32 s%d, 0x00020000' % (dst + 3))


def mfma(d, x, y, c):
    cs = '0' if c is None else vr(c, 16)
    return 'v_mfma_f32_32x32x16_bf16 %s, %s, %s, %s' % (vr(d, 16), vr(x, 4), vr(y, 4), cs)


def cmul_many(a, items):
    for d, x, y in items:
        a('v_mul_f32 v%d, v%d, v%d' % (d, x, y))
        a('v_mul_f32 v%d, v%d, v%d' % (d + 1, x + 1, y))
    for d, x, y in items:
        a('v_fma_f32 v%d, -v%d, v%d, v%d' % (d, x + 1, y + 1, d))
        a('v_fmac_f32 v%d, v%d, v%d' % (d + 1, x, y + 1))


def stamp(a, i, real=False):
    if DIAG and ('se' not in OPT or i in (0, 13)):
        a('%s s[%d:%d]' % ('s_memrealtime' if real or 'rt' in OPT else 's_memtime', ST0 + 2 * i, ST0 + 2 * i + 1))


def stamp_dump(a, n=14):
    if DIAG:
        a('s_waitcnt vmcnt(0)')
        stamp(a, 13, True)
        a('s_waitcnt lgkmcnt(0)')
        a('s_lshl_b32 s68, s2, 4')
        a('s_add_u32 s68, s68, s3')
        a('s_lshl_b32 s68, s68, 6')
        a('s_add_u32 s68, s68, %d' % DIAG_BASE)
        a('v_mov_b32 v1, 0')
        a('s_mov_b64 exec, 1')
        for i in range(n):
            a('v_mov_b32 v2, s%d' % (ST0 + 2 * i))
            a('buffer_store_dword v2, v1, s[8:11], s68 offen offset:%d' % (4 * i))
        a('s_mov_b64 exec, -1')


_lab = [0]


def label(p):
    _lab[0] += 1
    return 'L_%s%d' % (p, _lab[0])


def lds_spin(a, va, vt, off, thr, st=66, nap=1):
    l, e = label('sp'), label('se')
    a('''s_mov_b32 s%d, 0
%s:
ds_read_b32 v%d, v%d offset:%d
s_add_u32 s%d, s%d, 1
s_waitcnt lgkmcnt(0)
v_readfirstlane_b32 s%d, v%d
s_cmp_ge_u32 s%d, %d
s_cbranch_scc1 %s
s_cmp_ge_u32 s%d, %d
s_cbranch_scc1 %s
s_sleep %d
s_branch %s
%s:''' % (st, l, vt, va, off, st, st, st + 1, vt, st, SPIN_MAX, e, st + 1, thr, e, nap, l, e))


def lds_add(a, va, vt, off):
    a('''v_mov_b32 v%d, 1
s_mov_b64 exec, 1
ds_add_u32 v%d, v%d offset:%d
s_mov_b64 exec, -1''' % (vt, va, vt, off))


def arrive_publish(a, va, vt, off, nwaves, sflag, vz):
    e = label('np')
    a('''v_mov_b32 v%d, 1
s_mov_b64 exec, 1
ds_add_rtn_u32 v%d, v%d, v%d offset:%d
v_mov_b32 v%d, 0
s_waitcnt lgkmcnt(0)
v_readfirstlane_b32 s66, v%d
v_mov_b32 v%d, s7
s_cmp_eq_u32 s66, %d
s_cbranch_scc0 %s
buffer_store_dword v%d, v%d, s[8:11], s%d offen sc1
%s:
s_mov_b64 exec, -1''' % (vt, vt, va, vt, off, vz, vt, vt, nwaves - 1, e, vt, vz, sflag, e))


def flag_poll(a, voff, vt, vt2, sbase):
    l, e = label('fp'), label('fe')
    ld = 'buffer_load_dword v%d, v%d, s[8:11], s%d offen sc1'
    a('''s_mov_b32 s66, 0
%s
s_sleep 4
%s:
%s
s_waitcnt vmcnt(1)
v_cmp_eq_u32 vcc, s7, v%d
s_add_u32 s66, s66, 1
s_cmp_eq_u64 vcc, -1
s_cbranch_scc1 %s
s_sleep 2
%s
s_waitcnt vmcnt(1)
v_cmp_eq_u32 vcc, s7, v%d
s_cmp_ge_u32 s66, %d
s_cbranch_scc1 %s
s_cmp_eq_u64 vcc, -1
s_cbranch_scc0 %s
%s:''' % (ld % (vt, voff, sbase), l, ld % (vt2, voff, sbase), vt, e, ld % (vt, voff, sbase), vt2, SPIN_MAX, e, l, e))


def flag_poll_lazy(a, voff, vt, sbase, nap):
    l, e = label('fp'), label('fe')
    a('''s_mov_b32 s66, 0
%s:
buffer_load_dword v%d, v%d, s[8:11], s%d offen sc1
s_add_u32 s66, s66, 1
s_waitcnt vmcnt(0)
v_cmp_eq_u32 vcc, s7, v%d
s_cmp_ge_u32 s66, %d
s_cbranch_scc1 %s
s_cmp_eq_u64 vcc, -1
s_cbranch_scc1 %s
s_sleep %d
s_branch %s
%s:''' % (l, vt, voff, sbase, vt, SPIN_MAX, e, e, nap, l, e))


def tag_check(a, vt, vz, srd0):
    l, e = label('tp'), label('te')
    a('''s_mov_b32 s66, 0
%s:
v_readfirstlane_b32 s7, v%d
s_add_u32 s66, s66, 1
s_cmp_lg_u32 s7, 0
s_cbranch_scc1 %s
s_cmp_ge_u32 s66, %d
s_cbranch_scc1 %s
buffer_load_dword v%d, v%d, s[%d:%d], 0 offen sc1
s_waitcnt vmcnt(0)
s_branch %s
%s:''' % (l, vt, e, SPIN_MAX, e, vt, vz, srd0, srd0 + 3, l, e))


def kgen_stream():
    a = A()
    P = 20
    for i in range(8):
        a('v_lshlrev_b32 %s, 16, %s' % (vr(P + i), vr(P + i)))
    Are, Aim, Bre, Bim, Cre, Cim, LDT, DSK = range(P, P + 8)
    a('v_mul_f32 v%d, s51, v%d' % (LDT, LDT))
    a('v_exp_f32 v%d, v%d' % (LDT, LDT))
    a('s_nop 0')
    a('v_cvt_pk_bf16_f32 v%d, v%d, v%d' % (LDT, LDT, LDT))
    a('v_lshlrev_b32 v%d, 16, v%d' % (LDT, LDT))
    a('v_mul_f32 v%d, v%d, v%d' % (Are, LDT, Are))
    a('v_mul_f32 v%d, v%d, v%d' % (Aim, LDT, Aim))
    a('v_mul_f32 v%d, v%d, v%d' % (Bre, LDT, Bre))
    a('v_mul_f32 v%d, v%d, v%d' % (Bim, LDT, Bim))
    a('v_mul_f32 v%d, s51, v%d' % (Are, Are))
    a('v_mul_f32 v%d, 0.15915494, v%d' % (Aim, Aim))
    G = [32 + 2 * i for i in range(32)]
    W = [96 + 2 * i for i in range(9)]
    Z1, Z2, Z4, Z32 = 114, 116, 118, 120
    ZB = {256: 122, 512: 124, 768: 126, 1024: 128, 1280: 130, 1536: 132, 1792: 134}
    T0, PK, AD = 136, 146, 154
    R = {}
    nxt = 32
    for h in (0, 1):
        for e in ROWS[h]:
            if e is None:
                continue
            if e <= 8:
                R[e] = W[e]
            else:
                R[e] = nxt
                nxt += 2
    cmul_many(a, [(W[0], Cre, Bre)])
    direct = [(Z1, 1.0), (G[1], 8.0), (Z32, 32.0), (ZB[256], 256.0), (ZB[1024], 1024.0)]
    for i, (z, e) in enumerate(direct):
        a('v_mul_f32 v%d, 0x%x, v%d' % (T0 + 2 * i, f2u(e), Are))
        a('v_mul_f32 v%d, 0x%x, v%d' % (T0 + 2 * i + 1, f2u(e), Aim))
    for i, (z, e) in enumerate(direct):
        a('v_exp_f32 v%d, v%d' % (T0 + 2 * i, T0 + 2 * i))
        a('v_fract_f32 v%d, v%d' % (T0 + 2 * i + 1, T0 + 2 * i + 1))
    for i, (z, e) in enumerate(direct):
        a('v_cos_f32 v%d, v%d' % (z, T0 + 2 * i + 1))
        a('v_sin_f32 v%d, v%d' % (z + 1, T0 + 2 * i + 1))
    a('v_mov_b32 v%d, 1.0' % G[0])
    a('v_mov_b32 v%d, 0' % (G[0] + 1))
    for i, (z, e) in enumerate(direct):
        a('v_mul_f32 v%d, v%d, v%d' % (z, z, T0 + 2 * i))
        a('v_mul_f32 v%d, v%d, v%d' % (z + 1, z + 1, T0 + 2 * i))
    cmul_many(a, [(G[2], G[1], G[1]), (Z2, Z1, Z1), (W[1], W[0], Z1), (W[8], W[0], G[1]), (ZB[512], ZB[256], ZB[256]),
                  (ZB[1280], ZB[1024], ZB[256]), (G[5], G[1], Z32)])
    a('v_mov_b32 v%d, v%d' % (G[4], Z32))
    a('v_mov_b32 v%d, v%d' % (G[4] + 1, Z32 + 1))
    cmul_many(a, [(G[3], G[2], G[1]), (Z4, Z2, Z2), (W[2], W[0], Z2), (W[3], W[1], Z2), (ZB[768], ZB[512], ZB[256]),
                  (ZB[1536], ZB[1024], ZB[512]), (G[6], G[2], Z32)])
    cmul_many(a, [(G[7], G[3], Z32), (W[4], W[0], Z4), (W[5], W[1], Z4), (W[6], W[2], Z4), (W[7], W[3], Z4),
                  (ZB[1792], ZB[1024], ZB[768])])
    for i0 in range(8, 32, 4):
        cmul_many(a, [(G[i], G[i - 4], Z32) for i in range(i0, i0 + 4)])
    nvalu = len(a.L)
    for c in range(8):
        a('v_xor_b32 v%d, %d, v13' % (AD + c, c << 4))
    rowidx = [None] * 32
    for h in (0, 1):
        for r in range(16):
            rowidx[8 * (r >> 2) + 4 * h + (r & 3)] = ROWS[h][r]
    nput = [0]

    def put(c, regs, neg, off):
        pk = PK + 4 * (nput[0] & 1)
        nput[0] += 1
        for j in range(4):
            a('v_cvt_pk_bf16_f32 v%d, %sv%d, %sv%d' % (pk + j, neg, regs[2 * j], neg, regs[2 * j + 1]))
        a('ds_write_b128 v%d, %s%s' % (AD + c, vr(pk, 4), off))

    for c in range(8):
        put(c, [G[8 * (c & 3) + j] + (c >> 2) for j in range(8)], '', '')
    big = [e for e in R if e > 8]
    items = [(R[e], W[e & 255], ZB[e & ~255]) for e in big]
    for i0 in range(0, len(items), 5):
        cmul_many(a, items[i0:i0 + 5])
    for c in range(8):
        comp = c >> 2
        regs = [(R[e] if e is not None else W[0]) + comp for e in rowidx[8 * (c & 3):8 * (c & 3) + 8]]
        put(c, regs, '-' if comp else '', ' offset:8192')
    a('s_waitcnt lgkmcnt(0)')
    KD, FR, NB = 32, 48, 4

    def gen_reads(s):
        off = s * 1024
        b = FR + 8 * (s % NB)
        a('ds_read_b64_tr_b16 %s, v14 offset:%d' % (vr(b, 2), off + 8192))
        a('ds_read_b64_tr_b16 %s, v15 offset:%d' % (vr(b + 2, 2), off + 8192))
        a('ds_read_b64_tr_b16 %s, v14 offset:%d' % (vr(b + 4, 2), off))
        a('ds_read_b64_tr_b16 %s, v15 offset:%d' % (vr(b + 6, 2), off))

    for s in range(3):
        gen_reads(s)
    for s in range(8):
        if s + 3 < 8:
            gen_reads(s + 3)
        a('s_waitcnt lgkmcnt(%d)' % (4 * min(3, 7 - s)))
        b = FR + 8 * (s % NB)
        a(mfma(KD, b, b + 4, None if s == 0 else KD))
    a('s_nop 15')
    for j in range(4):
        a('ds_write_b128 v16, %s offset:%d' % (vr(KD + 4 * j, 4), 1024 * j))
    a('s_waitcnt lgkmcnt(0)')
    return a.L, nvalu


def transpose_addrs(a, sw, vrd, vwr, vlin, t0, t1, usi, uso):
    a('''v_lshrrev_b32 v{t0}, 4, v4
v_bfe_u32 v{t1}, v4, 2, 2
v_lshl_add_u32 v{t1}, v{t0}, 3, v{t1}
v_lshlrev_b32 v{rd}, 7, v{t1}
v_and_b32 v{t1}, 3, v4
v_lshl_add_u32 v{rd}, v{t1}, 3, v{rd}
s_lshl_b32 s66, s{w}, 5
s_add_u32 s66, s66, {usi}
v_add_u32 v{rd}, s66, v{rd}
v_and_b32 v{t1}, 7, v4
v_xor_b32 v{t0}, v{t0}, v{t1}
v_lshlrev_b32 v{t0}, 4, v{t0}
v_and_b32 v{t1}, 15, v4
v_lshl_add_u32 v{wr}, v{t1}, 7, v{t0}
s_lshl_b32 s66, s{w}, 11
s_add_u32 s66, s66, {uso}
v_add_u32 v{wr}, s66, v{wr}
v_lshl_add_u32 v{lin}, v4, 4, s66
v_lshrrev_b32 v{t0}, 3, v4
v_and_b32 v{t1}, 7, v4
v_xor_b32 v{t1}, v{t1}, v{t0}'''.format(t0=t0, t1=t1, rd=vrd, wr=vwr, lin=vlin, w=sw, usi=usi, uso=uso))


def transpose_a(a, vrd, vwr, d, t):
    a('''ds_read_b64_tr_b16 v[{d0}:{d1}], v{rd}
ds_read_b64_tr_b16 v[{d2}:{d3}], v{rd} offset:512
ds_read_b64_tr_b16 v[{d4}:{d5}], v{rd} offset:4096
ds_read_b64_tr_b16 v[{d6}:{d7}], v{rd} offset:4608
v_xor_b32 v{t}, 64, v{wr}
s_waitcnt lgkmcnt(2)
ds_write_b128 v{wr}, v[{d0}:{d3}]
s_waitcnt lgkmcnt(1)
ds_write_b128 v{t}, v[{d4}:{d7}]
s_waitcnt lgkmcnt(0)'''.format(rd=vrd, wr=vwr, t=t, **{'d%d' % i: d + i for i in range(8)}))


def kernel():
    a = A()
    KN = NAME + '_kernel'
    a('''.p2align 8
.type {k},@function
{k}:
s_cmp_ge_u32 s2, 256
s_cbranch_scc1 L_end
s_load_dwordx16 s[16:31], s[0:1], 8
s_load_dwordx4 s[32:35], s[0:1], 72
s_load_dwordx4 s[36:39], s[0:1], 104'''.format(k=KN))
    stamp(a, 0, True)
    stamp(a, 1)
    a('''v_lshrrev_b32 v3, 6, v0
v_and_b32 v4, 63, v0
s_and_b32 s44, s2, 7
s_lshr_b32 s45, s2, 3
v_readfirstlane_b32 s3, v3
s_lshl_b32 s60, s44, 6
s_lshl_b32 s46, s45, 1
s_add_u32 s60, s60, s46
s_lshl_b32 s46, s60, 8
v_lshl_add_u32 v5, v0, 1, s46
s_lshr_b32 s4, s44, 1
s_lshl_b32 s4, s4, 3
s_and_b32 s46, s45, 7
s_add_u32 s4, s4, s46
s_and_b32 s5, s44, 1
s_lshl_b32 s5, s5, 2
s_lshr_b32 s47, s45, 3
s_add_u32 s5, s5, s47
s_lshl_b32 s47, s47, 1
%s
s_cmp_ge_u32 s3, 4
s_cbranch_scc1 L_gemm''' % {'0': 's_mov_b32 s6, 0', '1': 's_add_u32 s6, s46, s47', '2': 's_and_b32 s6, s46, 4', '3': 's_and_b32 s6, s46, 6'}[OPTV.get('rot', '1')])
    SEG = (1, 2, 0)

    a('''s_lshr_b32 s61, s3, 1
s_add_u32 s52, s60, s61
s_lshl_b32 s46, s52, 1
v_mov_b32 v19, s46
s_and_b32 s53, s3, 1
s_waitcnt lgkmcnt(0)''')
    P = 20
    a('global_load_ushort %s, v19, s[28:29]' % vr(P + 6))
    for i in range(6):
        a('global_load_ushort %s, v5, %s' % (vr(P + i), sr(16 + 2 * i, 2)))
    a('global_load_ushort %s, v19, s[30:31]' % vr(P + 7))
    a('''s_getpc_b64 s[40:41]
v_and_b32 v1, 7, v0
v_lshlrev_b32 v1, 7, v1
s_lshl_b32 s46, s45, 10
v_add_u32 v1, s46, v1
global_load_dword v2, v1, s[40:41]''')
    srd(a, 8, 38, WS_BYTES)
    srd(a, 12, 36, 256)
    a('''v_mov_b32 v18, 0
s_or_b32 s46, s2, s3
s_cmp_eq_u32 s46, 0
s_cbranch_scc0 L_notag
s_memrealtime s[46:47]
s_waitcnt lgkmcnt(0)
s_or_b32 s46, s46, 1
v_mov_b32 v1, s46
s_mov_b64 exec, 1
buffer_store_dword v1, v18, s[12:15], 0 offen sc1
s_mov_b64 exec, -1
s_waitcnt vmcnt(0)
L_notag:''')
    a('''s_lshl_b32 s62, s3, 14
s_add_u32 s62, s62, %d
v_and_b32 v10, 7, v4
v_lshlrev_b32 v10, 4, v10
v_lshl_add_u32 v13, v4, 7, v10
v_add_u32 v13, s62, v13
v_lshrrev_b32 v10, 5, v4
v_bfe_u32 v11, v4, 3, 1
v_lshl_add_u32 v10, v10, 2, v11
v_bfe_u32 v11, v4, 2, 1
v_lshlrev_b32 v11, 2, v11
v_bfe_u32 v12, v4, 4, 1
v_lshl_add_u32 v11, v12, 1, v11
v_bfe_u32 v12, v4, 1, 1
v_add_u32 v11, v11, v12
v_xor_b32 v11, v11, v10
v_lshlrev_b32 v11, 4, v11
v_lshl_add_u32 v11, v10, 7, v11
v_and_b32 v12, 1, v4
v_lshl_add_u32 v11, v12, 3, v11
v_add_u32 v14, s62, v11
v_xor_b32 v15, 32, v14
v_add_u32 v15, 256, v15
v_lshl_add_u32 v16, v4, 4, s62
v_xor_b32 v17, 0x4000, v16
v_mov_b32 v12, %d
s_mov_b32 s51, 0x%x''' % (GEN, CNT, f2u(LOG2E)))
    p1, nvalu = kgen_stream()
    sizes = [int(x) for x in OPTV.get('sl', '80,140,31').split(',')]
    cuts = [0]
    for z in sizes:
        cuts.append(min(len(p1), cuts[-1] + z))
    print('kgen instructions', len(p1), 'pure valu', nvalu, cuts, file=sys.stderr)
    a('s_load_dwordx4 s[32:35], s[0:1], 88')
    stamp(a, 2)
    a('s_waitcnt vmcnt(1) lgkmcnt(0)')
    for c in range(16):
        if c < len(sizes):
            a.L += p1[cuts[c]:cuts[c + 1]]
        if c == 8:
            a('buffer_load_dword v1, v18, s[12:15], 0 offen sc1')
        if c == 14:
            a('s_waitcnt vmcnt(0)')
            tag_check(a, 1, 18, 12)
            a('''v_cmp_eq_u32 vcc, 0, v4
v_lshl_add_u32 v2, v4, 2, v12
s_cmp_eq_u32 s3, 0
v_cndmask_b32 v1, 0, v1, vcc
s_cbranch_scc0 L_tagd
ds_write_b32 v2, v1
s_waitcnt lgkmcnt(0)
L_tagd:''')
        a('s_barrier')
    a('s_barrier')
    stamp(a, 3)
    a('s_setprio 3')
    srd(a, 16, 34, 2048 * 2048)
    srd(a, 12, 32, 512 * 1024)
    a.L += p1[cuts[-1]:]
    a('s_lshl_b32 s63, s61, 2')
    a('v_add_u32 v11, s63, v12')
    lds_add(a, 11, 1, C_PAIR)
    KD = 32
    a('''v_and_b32 v28, 31, v4
v_lshrrev_b32 v29, 5, v4
s_lshl_b32 s46, s53, 6
s_add_u32 s46, s46, s62
s_add_u32 s46, s46, %d
v_lshlrev_b32 v10, 4, v28
v_sub_u32 v18, s46, v10
v_and_b32 v10, 1, v4
v_cmp_eq_u32 s[54:55], 1, v10
v_cmp_eq_u32 s[56:57], 0, v4
s_mov_b32 s58, -1
s_mov_b32 s59, 0
s_mov_b32 s40, 0
s_mov_b32 s41, -1''' % (KCOPY + 255 * 16))
    for sl, (b0, b1) in enumerate([(0, 32), (128, 64), (160, 96), (192, 224)]):
        a('v_mul_i32_i24 v10, %d, v29' % ((b1 - b0) * 16))
        a('v_sub_u32 v%d, v18, v10' % (80 + sl))
        if b0:
            a('v_subrev_u32 v%d, %d, v%d' % (80 + sl, b0 * 16, 80 + sl))
    a('''v_lshl_add_u32 v87, v4, 4, s46
v_add_u32 v87, 16, v87
s_lshl_b32 s64, s61, 15
s_add_u32 s64, s64, %d
s_lshl_b32 s47, s53, 1
v_add_u32 v10, s47, v29
v_mul_u32_u24 v10, 1536, v10
v_lshl_add_u32 v10, v28, 4, v10
v_add_u32 v10, s64, v10
v_mov_b32 v88, 0
v_mov_b32 v89, 0
v_mov_b32 v90, 0
v_mov_b32 v91, 0''' % (GEN + UIMG))
    lds_spin(a, 11, 1, C_PAIR, 2)
    a('ds_write_b128 v10, v[88:91]')
    for j in range(4):
        a('ds_read_b128 %s, v17 offset:%d' % (vr(48 + 4 * j, 4), 1024 * j))
    a('v_cndmask_b32 v9, 0, v27, s[56:57]')
    a('v_add_f32 v%d, v%d, v9' % (KD, KD))
    a('s_waitcnt lgkmcnt(0)')
    for j in range(16):
        a('v_add_f32 v%d, v%d, v%d' % (KD + j, KD + j, 48 + j))
    for i, r in enumerate((9, 11, 13)):
        a('v_cndmask_b32 v%d, v%d, v%d, s[54:55]' % (84 + i, KD + r, KD + r + 1))
    OB = 64

    def pack(dst, vals):
        for j in range(4):
            a('v_cvt_pk_bf16_f32 v%d, v%d, v%d' % (dst + j, vals[2 * j], vals[2 * j + 1]))

    def emit_copy(cp):
        k = lambda r: KD + r
        r0 = [k(i) for i in range(9)]
        r1 = [k(0), k(0), k(1), k(2), k(2), k(2), k(3), k(4), k(4)]
        r2 = lambda b: [k(b), k(b), k(b), k(b + 1), k(b + 1), k(b + 1), k(b + 2), k(b + 2), k(b + 2)]
        r3 = lambda b, x: [k(b)] * 4 + [x] + [k(b + 1)] * 4
        sel = (lambda p: p[8:0:-1]) if cp == 0 else (lambda p: p[7::-1])
        a('s_mov_b64 exec, s[58:59]')
        pack(OB, sel(r0))
        pack(OB + 4, sel(r3(9, 84)))
        pack(OB + 8, sel(r3(11, 85)))
        pack(OB + 12, sel(r3(13, 86)))
        a('s_mov_b64 exec, s[40:41]')
        pack(OB, sel(r1))
        pack(OB + 4, sel(r2(5)))
        pack(OB + 8, sel(r2(8)))
        pack(OB + 12, sel(r3(11, 85)))
        a('s_mov_b64 exec, -1')
        if cp == 0:
            a('v_cvt_pk_bf16_f32 v10, v%d, v88' % KD)
            a('v_cndmask_b32 v88, 0, v10, s[56:57]')

    a('s_cmp_eq_u32 s53, 0')
    a('s_cbranch_scc0 L_copy1')
    emit_copy(0)
    a('s_branch L_copyd')
    a('L_copy1:')
    emit_copy(1)
    a('L_copyd:')
    for sl in range(4):
        a('ds_write_b128 v%d, %s' % (80 + sl, vr(OB + 4 * sl, 4)))
    a('s_mov_b64 exec, 15')
    a('ds_write_b128 v87, v[88:91]')
    a('s_mov_b64 exec, -1')
    stamp(a, 4)
    a('''v_lshlrev_b32 v6, 6, v28
s_lshl_b32 s46, s44, 11
s_add_u32 s46, s46, %d
s_cmp_eq_u32 s3, 0
s_cbranch_scc0 L_uw''' % FLU)
    flag_poll_lazy(a, 6, 1, 46, 8)
    lds_add(a, 12, 3, C_GOU)
    a('L_uw:')
    lds_spin(a, 12, 3, C_GOU, 1, nap=4)
    a('''v_lshlrev_b32 v6, 6, v4
s_mul_i32 s46, s52, %d
s_lshl_b32 s47, s53, 5
s_add_u32 s46, s46, s47
s_add_u32 s46, s46, %d
s_mul_i32 s47, s53, 3072
s_add_u32 s47, s47, s64
s_add_u32 m0, s47, 512
s_nop 0
buffer_load_dwordx4 v6, s[8:11], s46 offen sc1 lds
s_add_u32 m0, s47, 2048
s_add_u32 s46, s46, 16
buffer_load_dwordx4 v6, s[8:11], s46 offen sc1 lds''' % (RS, UT))
    a('''v_bfe_u32 v18, v4, 4, 1
v_lshlrev_b32 v18, 4, v18
v_bfe_u32 v19, v4, 2, 1
v_lshl_add_u32 v18, v19, 3, v18
v_and_b32 v19, 3, v4
v_lshl_add_u32 v18, v19, 1, v18
v_bfe_u32 v19, v4, 3, 1
v_lshlrev_b32 v24, 3, v29
v_sub_u32 v24, v24, v18
v_add_u32 v24, 32, v24
v_lshlrev_b32 v24, 1, v24
v_mul_u32_u24 v19, %d, v19
v_add_u32 v24, v24, v19
s_add_u32 s46, s64, %d
v_add_u32 v24, s46, v24
s_lshl_b32 s46, s53, 9
s_add_u32 s46, s46, s64
s_add_u32 s46, s46, %d
v_mul_u32_u24 v25, 1536, v29
v_lshl_add_u32 v25, v28, 4, v25
v_add_u32 v25, s46, v25''' % (16384 + 64 - 4, KCOPY - UIMG + 32 * 120, 512 - 3 * 16))
    TB, UB, CA = 32, 40, 48
    CB = 64
    for j in range(32):
        a('v_mov_b32 v%d, 0' % (CA + j))
    a('''s_lshl_b32 s34, s53, 2
s_add_u32 s34, s34, 8
s_mov_b32 s35, 0
s_waitcnt vmcnt(0) lgkmcnt(0)''')
    lds_add(a, 12, 1, C_CONV)
    a('''s_and_b32 s46, s45, 7
s_lshl_b32 s46, s46, 16
s_lshl_b32 s47, s5, 7
s_add_u32 s46, s46, s47
s_lshl_b32 s47, s3, 14
s_add_u32 s46, s46, s47
v_and_b32 v6, 15, v4
v_lshlrev_b32 v6, 10, v6
buffer_load_dword v31, v6, s[12:15], s46 offen''')
    lds_spin(a, 12, 1, C_CONV, 4)
    stamp(a, 5)

    def conv_loop(lab, acc, send):
        a(lab + ':')
        for j in range(8):
            t = TB + 4 * (j & 1)
            a('ds_read2_b32 %s, v24 offset0:%d offset1:%d' % (vr(t, 2), 8 * (7 - j), 8 * (7 - j) + 1))
            a('ds_read2_b32 %s, v24 offset0:%d offset1:%d' % (vr(t + 2, 2), 8 * (7 - j) + 2, 8 * (7 - j) + 3))
            a('ds_read_b128 %s, v25 offset:%d' % (vr(UB + 4 * (j & 1), 4), (3072 if j % 2 == 0 else 0) + (3 - (j >> 1)) * 16))
            a('s_waitcnt lgkmcnt(0)')
            a(mfma(acc, t, UB + 4 * (j & 1), acc))
        a('''v_subrev_u32 v24, 256, v24
v_subrev_u32 v25, 64, v25
s_add_u32 s35, s35, 1
s_cmp_lt_u32 s35, %s
s_cbranch_scc1 %s''' % (send, lab))

    if 'noconv' not in OPT:
        conv_loop('L_cl', CA, 's34')
        a('''s_cmp_eq_u32 s53, 0
s_cbranch_scc0 L_cr
v_subrev_u32 v24, 1024, v24
v_add_u32 v25, 256, v25''')
        conv_loop('L_cm', CB, '12')
        a('s_nop 11')
        for j in range(4):
            a('ds_write_b128 v16, %s offset:%d' % (vr(CB + 4 * j, 4), 1024 * j))
        a('s_waitcnt lgkmcnt(0)')
        lds_add(a, 11, 1, C_PAIR)
        a('s_branch L_cd')
        a('L_cr:')
        lds_spin(a, 11, 1, C_PAIR, 3, nap=2)
        for j in range(4):
            a('ds_read_b128 %s, v17 offset:%d' % (vr(CB + 4 * j, 4), 1024 * j))
        a('s_waitcnt lgkmcnt(0)')
        for j in range(16):
            a('v_add_f32 v%d, v%d, v%d' % (CA + j, CA + j, CB + j))
        a('L_cd:')
    stamp(a, 6)
    a('''s_nop 0
s_mul_i32 s46, s52, %d
s_lshl_b32 s47, s53, 11
s_add_u32 s46, s46, s47
s_add_u32 s46, s46, %d
v_lshlrev_b32 v6, 6, v28
v_lshl_add_u32 v6, v29, 4, v6
s_lshl_b32 s47, s53, 9
s_add_u32 s47, s47, s52
s_lshl_b32 s47, s47, 6
s_add_u32 s47, s47, %d
v_mov_b32 v1, s7
v_mov_b32 v2, 0''' % (RS, YT, FL3))
    for s in range(2):
        for i in range(4):
            a('v_cvt_pk_bf16_f32 v%d, v%d, v%d' % (32 + 4 * s + i, CA + 8 * s + i, CA + 8 * s + 4 + i))
    a('''buffer_store_dwordx4 v[32:35], v6, s[8:11], s46 offen sc1
buffer_store_dwordx4 v[36:39], v6, s[8:11], s46 offen offset:32 sc1
s_waitcnt vmcnt(0) lgkmcnt(0)
s_mov_b64 exec, 1
buffer_store_dword v1, v2, s[8:11], s47 offen sc1
s_mov_b64 exec, -1''')
    a('''v_lshrrev_b32 v6, 3, v4
v_lshlrev_b32 v6, 10, v6
v_bfe_u32 v7, v4, 4, 1
v_lshlrev_b32 v7, 2, v7
v_and_b32 v8, 7, v4
v_xor_b32 v7, v7, v8
v_lshl_add_u32 v6, v7, 4, v6
s_lshl_b32 s23, s53, 10
s_lshl_b32 s24, s61, 11
s_add_u32 s24, s23, s24
s_lshl_b32 s26, s5, 7
s_lshl_b32 s27, s53, 13
s_add_u32 s26, s26, s27
s_lshl_b32 s27, s61, 14
s_add_u32 s26, s26, s27
s_lshl_b32 s23, s53, 15
s_lshl_b32 s27, s61, 10
s_add_u32 s23, s23, s27''')
    for c in range(8):
        a('s_add_u32 s38, s5, %d' % c)
        a('s_and_b32 s38, s38, 7')
        a('s_lshl_b32 s30, s38, 16')
        a('s_add_u32 m0, s24, %d' % (c * 4096))
        a('s_add_u32 s30, s30, s26')
        if 'nowo' in OPT:
            continue
        a('buffer_load_dwordx4 v6, s[12:15], s30 offen lds')
        a('s_add_u32 m0, s24, %d' % (32768 + c * 4096))
        a('s_add_u32 s30, s30, 0x8000')
        a('buffer_load_dwordx4 v6, s[12:15], s30 offen lds')
        a('s_waitcnt vmcnt(%s)' % OPTV.get('wot', '2'))
    stamp(a, 7)
    a('''v_lshlrev_b32 v6, 6, v4
s_lshr_b32 s46, s4, 4
s_lshl_b32 s46, s46, 15
s_lshl_b32 s47, s5, 12
s_add_u32 s46, s46, s47
s_add_u32 s46, s46, %d
s_cmp_eq_u32 s3, 0
s_cbranch_scc0 L_yw''' % FL3)
    flag_poll_lazy(a, 6, 1, 46, 32)
    lds_add(a, 12, 3, C_GOY)
    a('L_yw:')
    transpose_addrs(a, 3, 20, 21, 22, 8, 9, USI, USO)
    a('''v_mul_u32_u24 v10, %d, v8
v_and_b32 v11, 7, v4
v_lshl_add_u32 v10, v11, 4, v10
v_add_u32 v11, %d, v10
s_mul_i32 s46, s5, %d
s_mul_i32 s47, s3, %d
s_add_u32 s46, s46, s47
s_lshl_b32 s47, s4, 7
s_add_u32 s46, s46, s47
s_add_u32 s46, s46, %d
s_lshl_b32 s47, s3, 11
s_add_u32 s47, s47, %d''' % (RS, 8 * RS - 1024, 64 * RS, 16 * RS, YT, USI))
    lds_spin(a, 12, 3, C_GOY, 1, nap=8)
    a('''s_mov_b32 m0, s47
v_lshlrev_b32 v8, 11, v8
buffer_load_dwordx4 v10, s[8:11], s46 offen sc1 lds
buffer_load_dwordx4 v11, s[8:11], s46 offen offset:1024 sc1 lds
v_lshl_add_u32 v8, v9, 4, v8
s_lshl_b32 s46, s4, 17
s_lshl_b32 s47, s3, 15
s_add_u32 s46, s46, s47
s_lshl_b32 s47, s5, 7
s_add_u32 s46, s46, s47
s_add_u32 s47, s46, 0x4000
s_waitcnt vmcnt(0)''')
    lds_add(a, 12, 1, C_Y)
    lds_spin(a, 12, 1, C_Y, 4)
    transpose_a(a, 20, 21, 32, 23)
    a('''ds_read_b128 v[32:35], v22
ds_read_b128 v[36:39], v22 offset:1024
s_waitcnt lgkmcnt(1)
buffer_store_dwordx4 v[32:35], v8, s[16:19], s46 offen nt
s_waitcnt lgkmcnt(0)
buffer_store_dwordx4 v[36:39], v8, s[16:19], s47 offen nt''')
    lds_add(a, 12, 1, C_Y2)
    stamp(a, 8)
    a('''v_lshlrev_b32 v5, 4, v4
v_and_b32 v6, 7, v4
v_lshlrev_b32 v6, 7, v6
s_lshl_b32 s46, s4, 10
s_add_u32 s46, s46, %d
s_lshl_b32 s25, s4, 16
s_add_u32 s25, s25, s23
s_add_u32 s25, s25, %d
s_add_u32 s23, s23, %d
s_lshl_b32 s47, s3, 2
v_add_u32 v7, s47, v12''' % (FL2, OF, GEN))
    lds_spin(a, 12, 3, C_Y2, 4)
    stamp(a, 9)
    a('s_cmp_eq_u32 s3, 0')
    a('s_cbranch_scc0 L_ew')
    lds_spin(a, 12, 3, C_O, 4, nap=8)
    flag_poll_lazy(a, 6, 1, 46, 4)
    lds_add(a, 12, 3, C_GOE)
    a('L_ew:')
    lds_spin(a, 12, 3, C_GOE, 1, nap=8)

    def o_load(g, c):
        a('s_lshl_b32 s30, s38, 12')
        a('s_add_u32 m0, s23, %d' % (g * 16384 + c * 2048))
        a('s_add_u32 s30, s30, s25')
        a('buffer_load_dwordx4 v5, s[8:11], s30 offen sc1 lds')

    for c in range(8):
        a('s_add_u32 s38, s5, %d' % c)
        a('s_and_b32 s38, s38, 7')
        o_load(0, c)
    a('''v_mov_b32 v8, 8
s_add_u32 s25, s25, 2048
s_waitcnt vmcnt(0)
ds_write_b32 v7, v8 offset:%d''' % C_P3)
    stamp(a, 10)
    lds_spin(a, 12, 3, C_O1, 4, nap=4)
    a('s_mov_b32 s67, 0')
    for c in range(8):
        a('s_add_u32 s38, s5, %d' % c)
        a('s_and_b32 s38, s38, 7')
        if c > 0:
            l, e = label('op'), label('oe')
            a('''s_bitcmp1_b32 s67, s38
s_cbranch_scc1 {e}
ds_read_b32 v3, v12 offset:{m}
v_mov_b32 v8, {c}
s_waitcnt lgkmcnt(0)
v_readfirstlane_b32 s67, v3
s_mov_b32 s66, 0
s_nop 0
s_bitcmp1_b32 s67, s38
s_cbranch_scc1 {e}
s_waitcnt vmcnt(0)
ds_write_b32 v7, v8 offset:{p}
{l}:
ds_read_b32 v3, v12 offset:{m}
s_add_u32 s66, s66, 1
s_waitcnt lgkmcnt(0)
v_readfirstlane_b32 s67, v3
s_cmp_ge_u32 s66, {n}
s_cbranch_scc1 {e}
s_bitcmp1_b32 s67, s38
s_cbranch_scc0 {l}
{e}:'''.format(l=l, e=e, m=C_MASK, p=C_P3, c=8 + c, n=SPIN_MAX * 16))
        o_load(1, c)
    stamp(a, 11)
    for c in range(10, 17, 2):
        a('v_mov_b32 v8, %d' % c)
        a('s_waitcnt vmcnt(%d)' % (16 - c))
        a('ds_max_u32 v7, v8 offset:%d' % C_P3)
    a('s_waitcnt lgkmcnt(0)')
    stamp(a, 12)
    stamp_dump(a)
    a('s_endpgm')

    a('''L_gemm:
s_cmp_ge_u32 s3, 8
s_cbranch_scc1 L_mm
s_setprio 2
s_sub_u32 s61, s3, 4
v_lshrrev_b32 v10, 3, v4
v_lshrrev_b32 v11, 4, v4
v_and_b32 v12, 7, v4
v_xor_b32 v13, v12, v11
s_lshl_b32 s47, s61, 4
v_add_u32 v10, s47, v10
s_lshl_b32 s46, s4, 16
v_lshl_add_u32 v14, v10, 10, s46
v_lshl_add_u32 v6, v13, 4, v14
v_xor_b32 v7, 64, v6
v_add_u32 v7, 0x1c00, v7
v_lshlrev_b32 v16, 10, v10
v_lshl_add_u32 v16, v12, 4, v16
v_mul_u32_u24 v10, 3072, v10
v_and_b32 v11, 1, v11
v_lshlrev_b32 v11, 2, v11
v_xor_b32 v12, v12, v11
v_lshl_add_u32 v8, v12, 4, v10
s_lshl_b32 s46, s5, 7
v_add_u32 v8, s46, v8
v_add_u32 v9, %d, v8
s_lshl_b32 s48, s61, 11
s_waitcnt lgkmcnt(0)''' % (8 * 3072 - 1024))
    srd(a, 16, 32, 2048 * 1024)
    srd(a, 12, 34, 512 * 3072)

    def dma_chunk(c):
        slot = (c % 6) * 16384
        if c < 8:
            a('s_add_u32 s50, s6, %d' % c)
            a('s_and_b32 s50, s50, 7')
            a('s_mul_i32 s49, s50, %d' % (64 * 3072))
            a('s_add_u32 m0, s48, %d' % slot)
            a('s_lshl_b32 s50, s50, 7')
            a('buffer_load_dwordx4 v6, s[16:19], s50 offen lds')
            a('buffer_load_dwordx4 v7, s[16:19], s50 offen offset:1024 lds')
            a('s_add_u32 m0, s48, %d' % (slot + 8192))
            a('s_add_u32 s49, s49, %d' % (SEG[0] * 1024))
            a('buffer_load_dwordx4 v8, s[12:15], s49 offen lds')
            a('buffer_load_dwordx4 v9, s[12:15], s49 offen offset:1024 lds')
        else:
            p, j = 1 + ((c - 8) >> 2), (c - 8) & 3
            for hf in range(2):
                a('s_add_u32 s50, s6, %d' % (2 * j + hf))
                a('s_and_b32 s50, s50, 7')
                a('s_mul_i32 s49, s50, %d' % (64 * 3072))
                a('s_add_u32 m0, s48, %d' % (slot + hf * 8192))
                a('s_add_u32 s49, s49, %d' % (SEG[p] * 1024))
                a('buffer_load_dwordx4 v8, s[12:15], s49 offen lds')
                a('buffer_load_dwordx4 v9, s[12:15], s49 offen offset:1024 lds')

    dma_chunk(0)
    dma_chunk(1)
    a('s_load_dwordx2 s[20:21], s[0:1], 0')
    srd(a, 8, 38, WS_BYTES)
    transpose_addrs(a, 61, 20, 21, 22, 23, 24, USI, USO)
    a('''s_lshl_b32 s46, s45, 16
s_lshl_b32 s47, s44, 7
s_add_u32 s52, s46, s47
v_add_u32 v17, 0x1c00, v16
v_mul_u32_u24 v23, %d, v23
v_lshl_add_u32 v23, v24, 4, v23
s_mul_i32 s46, s44, %d
s_mul_i32 s47, s61, %d
s_add_u32 s53, s46, s47
s_lshl_b32 s47, s45, 7
s_add_u32 s53, s53, s47
s_add_u32 s53, s53, %d
s_add_u32 s54, s53, %d
s_lshl_b32 s55, s44, 5
s_add_u32 s55, s55, s45
s_lshl_b32 s55, s55, 6
s_add_u32 s55, s55, %d
v_mov_b32 v12, %d
s_waitcnt lgkmcnt(0)''' % (RS, 64 * RS, 16 * RS, UT, 8 * RS, FLU, CNT))
    srd(a, 24, 20, 2048 * 1024)
    order = [0, 1]
    cnt = lambda x: 4 if isinstance(x, int) else x[1]
    stamp(a, 2)
    for c in range(16):
        a('s_waitcnt vmcnt(%d)' % (sum(cnt(x) for x in order[order.index(c) + 1:]) if c < 15 else 0))
        if c in (0, 8, 12):
            stamp(a, {0: 3, 8: 4, 12: 5}[c])
        a('s_barrier')
        for n in {0: [2, 3], 1: [4, 5]}.get(c, [c + 4] if c + 4 < 16 else []):
            dma_chunk(n)
            order.append(n)
        if c == 13:
            a('s_add_u32 m0, s48, %d' % USI)
            a('s_nop 0')
            a('buffer_load_dwordx4 v16, s[24:27], s52 offen lds')
            a('buffer_load_dwordx4 v17, s[24:27], s52 offen offset:1024 lds')
            order.append(('u', 2))
        if c == 15:
            transpose_a(a, 20, 21, 32, 25)
            a('ds_read_b128 v[32:35], v22')
            a('ds_read_b128 v[36:39], v22 offset:1024')
    a('''s_waitcnt lgkmcnt(0)
s_barrier
ds_read_b32 v1, v12 offset:%d
buffer_store_dwordx4 v[32:35], v23, s[8:11], s53 offen sc1
buffer_store_dwordx4 v[36:39], v23, s[8:11], s54 offen sc1
s_waitcnt vmcnt(0) lgkmcnt(0)
v_readfirstlane_b32 s7, v1''' % C_TAG)
    arrive_publish(a, 12, 1, C_U, 4, 55, 2)
    a('s_branch L_att')

    XA, WA, OA, OV = 160, 164, 165, 166
    XR, ACC = 0, 128
    WF = [144, 148, 152, 156]
    a('''L_mm:
%s
s_setprio 3
s_and_b32 s52, s3, 1
s_bfe_u32 s53, s3, 0x10001
v_and_b32 v10, 31, v4
v_bfe_u32 v11, v4, 1, 3
v_lshrrev_b32 v12, 5, v4
v_xor_b32 v11, v11, v12
v_lshlrev_b32 v11, 4, v11
v_lshl_add_u32 v10, v10, 7, v11
s_lshl_b32 s46, s52, 12
v_add_u32 v%d, s46, v10''' % ('s_memrealtime s[70:71]' if 'dbgt' in OPT else '', XA))
    for jq in range(1, 4):
        a('v_xor_b32 v%d, %d, v%d' % (XA + jq, jq << 5, XA))
    a('''v_lshlrev_b32 v10, 10, v12
v_bfe_u32 v11, v4, 2, 2
v_lshl_add_u32 v10, v11, 7, v10
v_bfe_u32 v11, v4, 3, 1
v_xor_b32 v11, s53, v11
v_lshl_add_u32 v10, v11, 6, v10
v_bfe_u32 v11, v4, 4, 1
v_lshl_add_u32 v10, v11, 5, v10
v_and_b32 v11, 3, v4
v_lshl_add_u32 v%d, v11, 3, v10''' % WA)
    a('''s_lshl_b32 s46, s4, 1
s_add_u32 s46, s46, s52
s_lshl_b32 s46, s46, 10
s_lshl_b32 s47, s5, 1
s_add_u32 s47, s47, s53
s_lshl_b32 s47, s47, 17
s_add_u32 s46, s46, s47
v_lshl_add_u32 v%d, v4, 4, s46
v_bfe_u32 v11, v4, 4, 1
v_lshlrev_b32 v11, 16, v11
v_lshl_add_u32 v11, v12, 8, v11
v_and_b32 v10, 15, v4
v_lshl_add_u32 v11, v10, 4, v11
v_add_u32 v%d, s46, v11
v_mov_b32 v167, v4
s_mov_b32 s62, 0x%x
s_mov_b32 s64, %d
s_mov_b32 s65, %d
s_mov_b32 s63, %d
s_lshl_b32 s54, s52, 12
s_lshl_b32 s47, s53, 11
s_add_u32 s54, s54, s47
s_add_u32 s54, s54, %d
s_lshl_b32 s56, s5, 6
s_add_u32 s56, s56, %d
s_lshl_b32 s55, s4, 9
s_add_u32 s55, s55, s56
s_waitcnt lgkmcnt(0)''' % (OA, OV, f2u(QSCALE), KF, KF + 65536, VF, QX, FL1))
    srd(a, 8, 38, WS_BYTES)
    PD = 3

    def chunk_of(s):
        p, kk = s >> 5, s & 31
        return (kk >> 2, kk & 3) if p == 0 else (8 + 4 * (p - 1) + (kk >> 3), kk & 7)

    def nreads(s):
        return 0 if s >= 96 else (3 if s < 32 else 2)

    def reads(s):
        c, j = chunk_of(s)
        if j == 0:
            a('s_barrier')
            if c == 0:
                stamp(a, 2)
                if 'dbgt' in OPT:
                    a('s_memrealtime s[72:73]')
            if c % 3 == 0 and c > 0:
                op = 'v_add_u32' if c % 6 == 3 else 'v_subrev_u32'
                for r in ([XA, XA + 1, XA + 2, XA + 3] if c < 8 else []) + [WA]:
                    a('%s v%d, 0xc000, v%d' % (op, r, r))
        so = (c % 3) * 16384
        if c < 8:
            a('ds_read_b128 %s, v%d offset:%d' % (vr(XR + 4 * s, 4), XA + j, so))
            so += 8192
        for rd in range(2):
            a('ds_read_b64_tr_b16 %s, v%d offset:%d' % (vr(WF[s % 4] + 2 * rd, 2), WA, so + j * 2048 + rd * 512))

    def epilogue(p):
        lo, hi = vr(ACC, 4), vr(ACC + 4, 4)
        if SEG[p] == 0:
            a('v_mov_b32 v4, v167')
            a('v_lshl_add_u32 v10, v167, 4, s54')
            a('s_nop 13')
            for i in range(16):
                a('v_mul_f32 v%d, s62, v%d' % (ACC + i, ACC + i))
        else:
            a('s_nop 15')
        for j in range(8):
            a('v_cvt_pk_bf16_f32 v%d, v%d, v%d' % (ACC + j, ACC + 2 * j, ACC + 2 * j + 1))
        if SEG[p] == 0:
            a('ds_write_b128 v10, %s' % lo)
            a('ds_write_b128 v10, %s offset:1024' % hi)
        elif SEG[p] == 1:
            a('buffer_store_dwordx4 %s, v%d, s[8:11], s64 offen sc1' % (lo, OA))
            a('buffer_store_dwordx4 %s, v%d, s[8:11], s65 offen sc1' % (hi, OA))
        else:
            a('buffer_store_dwordx4 %s, v%d, s[8:11], s63 offen sc1' % (lo, OV))
            a('buffer_store_dwordx4 %s, v%d, s[8:11], s63 offen offset:512 sc1' % (hi, OV))

    for s in range(PD):
        reads(s)
    for s in range(96):
        p, kk = s >> 5, s & 31
        if s + PD < 96:
            reads(s + PD)
        a('s_waitcnt lgkmcnt(%d)' % sum(nreads(t) for t in range(s + 1, s + PD + 1)))
        x, w = XR + 4 * kk, WF[s % 4]
        if SEG[p] == 2:
            a(mfma(ACC, x, w, None if kk == 0 else ACC))
        else:
            a(mfma(ACC, w, x, None if kk == 0 else ACC))
        if s == 80:
            a('v_mov_b32 v12, %d' % CNT)
            a('ds_read_b32 v1, v12 offset:%d' % C_TAG)
            a('s_waitcnt vmcnt(0) lgkmcnt(0)')
            a('v_readfirstlane_b32 s7, v1')
            arrive_publish(a, 12, 1, C_KV, 4, 55, 2)
            if 'rt' in OPT:
                stamp(a, 2)
        if kk == 31:
            stamp(a, 3 + p)
            epilogue(p)
    a('''s_waitcnt lgkmcnt(0)
s_barrier
s_cmp_eq_u32 s3, 8
s_cbranch_scc0 L_att
v_and_b32 v6, 31, v4
v_lshlrev_b32 v6, 9, v6''')
    flag_poll(a, 6, 1, 2, 56)
    lds_add(a, 12, 3, C_GO)

    S = [16, 32]
    Pp = [48, 56]
    O = [64, 80]
    Q = [96, 100]
    DK = int(OPTV.get('dk', 4))
    NB, NBV = DK + 1, DK + 1 if DK == 3 else DK
    K = [104 + 4 * b for b in range(NB)]
    V0 = 104 + 4 * NB
    V = [[V0 + 8 * b, V0 + 4 + 8 * b] for b in range(NBV)]
    KA, VA = 14, 15
    assert V0 + 8 * NBV <= 168
    a('''L_att:
s_lshr_b32 s19, s3, 3
s_and_b32 s18, s3, 1
s_lshl_b32 s24, s19, 1
s_add_u32 s18, s18, s24
s_bfe_u32 s24, s3, 0x10001
v_lshlrev_b32 v5, 4, v4
s_lshl_b32 s26, s18, 10
s_add_u32 s26, s26, %d
v_add_u32 v6, s26, v5
ds_read_b128 %s, v6
ds_read_b128 %s, v6 offset:4096
s_lshl_b32 s27, s5, 2
s_add_u32 s18, s18, s27
s_lshl_b32 s22, s18, 16
s_add_u32 s27, s22, %d
v_add_u32 v%d, s27, v5
s_lshl_b32 s36, s24, 10
s_mov_b32 s37, s36
v_lshrrev_b32 v6, 5, v4
v_and_b32 v7, 15, v4
v_lshlrev_b32 v7, 4, v7
v_lshl_add_u32 v7, v6, 8, v7
s_add_u32 s27, s22, %d
v_add_u32 v%d, s27, v7
v_and_b32 v6, 31, v4
v_cmp_eq_u32 vcc, 16, v6
v_cmp_eq_u32 s[28:29], 20, v6
s_mov_b32 s30, 0x3f803f80
s_or_b64 vcc, vcc, s[28:29]
v_mov_b32 v7, s30
s_mov_b32 s40, 0xffff
s_mov_b32 s41, 0xffff
v_cndmask_b32 v6, 0, v7, vcc''' % (QX, vr(Q[0], 4), vr(Q[1], 4), KF, KA, VF, VA))
    for b in range(NBV):
        for u in range(2):
            for j in range(4):
                a('v_mov_b32 v%d, v6' % (V[b][u] + j))
    for q in range(2):
        for j in range(16):
            a('v_mov_b32 v%d, 0' % (O[q] + j))

    def rdk(i):
        return ['buffer_load_dwordx4 %s, v%d, s[8:11], s36 offen sc1' % (vr(K[i % NB], 4), KA),
                's_add_u32 s36, s36, 2048']

    def rdv(i):
        return ['s_mov_b64 exec, s[40:41]',
                'buffer_load_dwordx4 %s, v%d, s[8:11], s37 offen sc1' % (vr(V[i % NBV][0], 4), VA),
                'buffer_load_dwordx4 %s, v%d, s[8:11], s37 offen offset:512 sc1' % (vr(V[i % NBV][1], 4), VA),
                's_mov_b64 exec, -1', 's_add_u32 s37, s37, 2048']

    a('''v_and_b32 v13, 7, v4
v_lshlrev_b32 v13, 7, v13
v_bfe_u32 v7, v4, 3, 1
v_lshl_add_u32 v13, v7, 21, v13
s_add_u32 s27, s22, %d
v_add_u32 v13, s27, v13
s_and_b32 s38, s4, 7
s_lshl_b32 s38, s38, 11
s_add_u32 s38, s38, s36
s_waitcnt lgkmcnt(0)''' % KF)
    lds_add(a, 12, 3, C_Q)
    stamp(a, 6)
    lds_spin(a, 12, 3, C_GO, 1)
    stamp(a, 7)
    PF = 'pf' in OPT
    pfl = ['buffer_load_dword v11, v13, s[8:11], s38 offen sc1', 's_add_u32 s38, s38, 0x4000'] if PF else []
    issue = []
    pro = rdk(0) + (['s_add_u32 s38, s38, 0x4000'] if PF else [])
    issue += [('k', 0)]
    if 'hs' in OPTV:
        a('s_cmp_eq_u32 s19, 0')
        a('s_cbranch_scc1 L_hs')
        a('s_sleep %s' % OPTV['hs'])
        a('L_hs:')
    for i in range(1, DK):
        issue += [('k', i), ('v', i - 1), ('v', i - 1)]
        pro += rdk(i) + rdv(i - 1)
    a('\n'.join(pro))
    a('s_setprio 3')
    a('s_waitcnt vmcnt(%d)' % (len(issue) - 1))
    stamp(a, 8)
    if 'dbgt' in OPT:
        a('s_memrealtime s[74:75]')
    a(mfma(S[0], K[0], Q[0], None))
    a('s_nop 7')
    a('s_nop 3')
    PRIO = {7: 2, 15: 1, 23: 0}

    def unit(i, q):
        u = 2 * i + q
        sc, sn = S[u % 2], S[(u + 1) % 2]
        pc, pp = Pp[u % 2], Pp[(u + 1) % 2]
        i1, q1 = (i, 1) if q == 0 else (i + 1, 0)
        i0, q0 = (i - 1, 1) if q == 0 else (i, 0)
        qk = mfma(sn, K[i1 % NB], Q[q1], None)
        pv0 = mfma(O[q0], V[i0 % NBV][0], pp, O[q0])
        pv1 = mfma(O[q0], V[i0 % NBV][1], pp + 4, O[q0])
        e = ['v_exp_f32 v%d, v%d' % (sc + j, sc + j) for j in range(16)]
        c = ['v_cvt_pk_bf16_f32 v%d, v%d, v%d' % (pc + j, sc + 2 * j, sc + 2 * j + 1) for j in range(8)]
        c7prev = 'v_cvt_pk_bf16_f32 v%d, v%d, v%d' % (pp + 7, sn + 14, sn + 15)
        out = [e[0]]
        if q == 1:
            last = max(n for n, x in enumerate(issue) if x in (('k', i + 1), ('v', i)))
            out.append('s_waitcnt vmcnt(%d)' % (len(issue) - 1 - last))
        if u > 0:
            out.append(c7prev)
        if u < 63:
            out.append(qk)
        kl = rdk(i + DK) if q == 0 and i + DK < 32 else []
        vl = rdv(i + DK - 1) if q == 1 and i + DK - 1 < 32 else []
        issue.extend([('k', i + DK)] * bool(kl) + [('v', i + DK - 1)] * 2 * bool(vl))
        out += kl[:1] + vl[:4]
        out += [e[1], e[2], c[0], e[3], e[4], c[1], e[5]]
        if u > 0:
            out.append(pv0)
        out += kl[1:] + vl[4:]
        out += [e[6], c[2], e[7], e[8], c[3], e[9], e[10], c[4]]
        if u > 0:
            out.append(pv1)
        if q == 0 and i in (1, 8, 16) and PF:
            out += pfl
            issue.append(('p',))
        if q == 1 and i in PRIO:
            out.append('s_setprio %d' % PRIO[i])
            if DIAG and 'qs' in OPT:
                n = 3 + i // 8
                out.append('s_memtime s[%d:%d]' % (ST0 + 2 * n, ST0 + 2 * n + 1))
        out += [e[11], e[12], c[5], e[13], e[14], c[6], e[15]]
        return out

    for i in range(32):
        for q in range(2):
            if (i, q) == (31, 0):
                a('''s_and_b32 s26, s3, 3
s_xor_b32 s27, s26, 2
s_mul_i32 s26, s26, 2304
s_add_u32 s26, s26, {ox}
s_mul_i32 s27, s27, 2304
s_add_u32 s27, s27, {ox}
v_add_u32 v6, s26, v5
v_add_u32 v7, s27, v5
v_lshlrev_b32 v8, 2, v4
v_add_u32 v9, s27, v8
v_add_u32 v8, s26, v8
s_sub_u32 s26, s3, 4
s_lshl_b32 s26, s26, 2
v_add_u32 v10, s26, v12
s_xor_b32 s26, s26, 8
v_add_u32 v11, s26, v12
s_cmp_eq_u32 s19, 0
s_cbranch_scc0 L_xa'''.format(ox=OX))
                lds_spin(a, 12, 3, C_Q, 8)
                a('s_branch L_xb')
                a('L_xa:')
                lds_spin(a, 12, 3, C_O, 4)
                a('L_xb:')
            for s in unit(i, q):
                a(s)
    a('s_nop 0')
    a('v_cvt_pk_bf16_f32 v%d, v%d, v%d' % (Pp[1] + 7, S[1] + 14, S[1] + 15))
    stamp(a, 9)
    if 'dbgt' in OPT:
        a('s_memrealtime s[76:77]')
    a('s_setprio 3')
    a('s_nop 0')
    a(mfma(O[1], V[31 % NBV][0], Pp[1], O[1]))
    a(mfma(O[1], V[31 % NBV][1], Pp[1] + 4, O[1]))
    a('''s_nop 9
s_cmp_eq_u32 s24, 0
s_cbranch_scc0 L_x1''')
    F = 32
    for own, lab in ((0, None), (1, 'L_x1')):
        if lab:
            a(lab + ':')
        oth = 1 - own
        a('ds_write_b128 v6, %s' % vr(O[oth], 4))
        a('ds_write_b128 v6, %s offset:1024' % vr(O[oth] + 4, 4))
        a('ds_write_b32 v8, v%d offset:2048' % (O[oth] + 8))
        for j in range(9):
            a('v_mov_b32 v%d, v%d' % (F + j, O[own] + j))
        if own == 1:
            for j in range(4):
                a('v_mov_b32 v%d, v%d' % (Q[0] + j, Q[1] + j))
        if own == 0:
            a('s_branch L_x2')
    a('L_x2:')
    a('v_mov_b32 v3, 1')
    a('ds_write_b32 v10, v3 offset:%d' % C_X)
    a('''s_lshl_b32 s25, s4, 1
s_add_u32 s25, s25, s24
s_lshl_b32 s25, s25, 15
s_lshl_b32 s26, s18, 10
s_add_u32 s25, s25, s26
s_add_u32 s25, s25, %d
s_mov_b32 s44, 0x%x
s_mov_b32 s45, 0x%x
s_mov_b32 s46, 0x7f7fffff
s_lshl_b32 s55, s4, 3
s_add_u32 s55, s55, s5
s_lshl_b32 s55, s55, 1
s_add_u32 s55, s55, s19
s_lshl_b32 s55, s55, 6
s_add_u32 s55, s55, %d
s_lshl_b32 s26, s19, 2
v_add_u32 v13, s26, v12''' % (OF, f2u(2.0 ** -64), f2u(2.0 ** 64), FL2))
    a('''s_mov_b32 s66, 0
L_xw:
ds_read_b32 v3, v11 offset:%d
ds_read_b128 v[48:51], v7
ds_read_b128 v[52:55], v7 offset:1024
ds_read_b32 v56, v9 offset:2048
s_add_u32 s66, s66, 1
s_waitcnt lgkmcnt(0)
v_readfirstlane_b32 s67, v3
s_cmp_ge_u32 s66, %d
s_cbranch_scc1 L_xe
s_cmp_eq_u32 s67, 0
s_cbranch_scc1 L_xw
L_xe:''' % (C_X, SPIN_MAX * 16))
    stamp(a, 10)
    for j in range(9):
        a('v_add_f32 v%d, v%d, v%d' % (F + j, F + j, 48 + j))
    a('''v_max3_f32 v48, abs(v32), abs(v33), abs(v34)
v_max3_f32 v49, abs(v35), abs(v36), abs(v37)
v_max3_f32 v48, v48, abs(v38), abs(v39)
v_cmp_le_f32 s[28:29], s44, v40
v_cmp_ge_f32 s[30:31], s45, v40
v_add_f32 v50, v32, v33
v_add_f32 v51, v34, v35
v_add_f32 v52, v36, v37
v_add_f32 v53, v38, v39
v_max_f32 v48, v48, v49
v_add_f32 v50, v50, v51
v_add_f32 v52, v52, v53
v_cmp_ge_f32 s[32:33], s46, v48
v_cmp_o_f32 s[34:35], v50, v52
v_rcp_f32 v48, v40
s_and_b64 s[28:29], s[28:29], s[30:31]
s_and_b64 s[32:33], s[32:33], s[34:35]
s_and_b64 s[28:29], s[28:29], s[32:33]
s_cmp_eq_u64 s[28:29], -1
s_cbranch_scc0 L_slow
L_fin:''')
    for j in range(8):
        a('v_mul_f32 v%d, v%d, v48' % (F + j, F + j))
    for j in range(4):
        a('v_cvt_pk_bf16_f32 v%d, v%d, v%d' % (52 + j, F + 2 * j, F + 2 * j + 1))
    a('buffer_store_dwordx4 v[52:55], v5, s[8:11], s25 offen sc1')
    a('''s_load_dwordx2 s[34:35], s[0:1], 96
s_and_b32 s21, s3, 1
s_bfe_u32 s22, s3, 0x10001
s_lshl_b32 s30, s21, 15
s_add_u32 s30, s30, %d
v_add_u32 v10, s30, v5
v_lshrrev_b32 v14, 5, v4
v_bfe_u32 v11, v4, 2, 2
v_lshl_add_u32 v11, v14, 2, v11
v_lshlrev_b32 v11, 7, v11
v_bfe_u32 v16, v4, 3, 1
v_xor_b32 v16, s22, v16
v_lshl_add_u32 v11, v16, 6, v11
v_and_b32 v16, 1, v4
v_lshl_add_u32 v11, v16, 5, v11
v_bfe_u32 v16, v4, 4, 1
v_lshl_add_u32 v11, v16, 4, v11
v_bfe_u32 v16, v4, 1, 1
v_lshl_add_u32 v11, v16, 3, v11
v_and_b32 v15, 31, v4
v_lshlrev_b32 v15, 11, v15
v_lshl_add_u32 v15, v14, 5, v15
s_lshl_b32 s30, s4, 17
s_lshl_b32 s37, s21, 16
s_add_u32 s30, s30, s37
s_lshl_b32 s31, s5, 7
s_add_u32 s30, s30, s31
s_lshl_b32 s37, s22, 6
s_add_u32 s37, s37, s30
s_add_u32 s37, s37, 1024
s_waitcnt vmcnt(0) lgkmcnt(0)''' % GEN)
    arrive_publish(a, 13, 1, C_O, 4, 55, 2)
    stamp(a, 11)
    ld = 'buffer_load_dword v%d, v6, s[8:11], s46 offen sc1'
    a('''s_cmp_lt_u32 s3, 8
s_cbranch_scc1 L_p3
s_cmp_eq_u32 s3, 8
s_cbranch_scc0 L_bend
v_and_b32 v6, 7, v4
v_lshlrev_b32 v6, 7, v6
s_lshl_b32 s46, s4, 10
s_add_u32 s46, s46, %d
s_mov_b32 s66, 0
%s
L_mp:
%s
s_waitcnt vmcnt(1)
v_cmp_eq_u32 vcc, s7, v1
s_add_u32 s66, s66, 1
s_nop 0
v_mov_b32 v3, vcc_lo
ds_write_b32 v12, v3 offset:%d
s_cmp_eq_u64 vcc, -1
s_cbranch_scc1 L_bend
%s
s_waitcnt vmcnt(1)
v_cmp_eq_u32 vcc, s7, v2
s_cmp_ge_u32 s66, %d
s_cbranch_scc1 L_bend
v_mov_b32 v3, vcc_lo
ds_write_b32 v12, v3 offset:%d
s_cmp_eq_u64 vcc, -1
s_cbranch_scc0 L_mp
s_branch L_bend
L_p3:''' % (FL2 + 64, ld % 1, ld % 2, C_MASK, ld % 1, SPIN_MAX, C_MASK))
    lds_spin(a, 12, 3, C_Y2, 4, nap=4)
    srd(a, 16, 34, 2048 * 2048)
    a('s_lshl_b32 s30, s21, 2')
    a('v_add_u32 v9, s30, v12')
    a('s_mov_b32 s67, 0')
    AC3 = 20
    FB = [36, 44, 52, 60]

    def reads3(hd):
        if hd == 0:
            lds_spin(a, 12, 3, C_GOE, 1, nap=8)
        if hd == 16:
            lds_spin(a, 12, 3, C_O1, 4, nap=4)
        if hd % 2 == 0 and (hd == 0 or hd >= 16):
            l, e = label('pp'), label('pe')
            a('''s_cmp_gt_u32 s67, {c}
s_cbranch_scc1 {e}
s_mov_b32 s66, 0
{l}:
ds_read2_b32 v[2:3], v9 offset0:{o} offset1:{o2}
s_add_u32 s66, s66, 1
s_waitcnt lgkmcnt(0)
v_min_u32 v2, v2, v3
s_cmp_ge_u32 s66, {n}
v_readfirstlane_b32 s67, v2
s_cbranch_scc1 {e}
s_cmp_gt_u32 s67, {c}
s_cbranch_scc0 {l}
{e}:'''.format(l=l, e=e, c=(7 if hd == 0 else hd // 2), o=C_P3 // 4, o2=C_P3 // 4 + 2, n=SPIN_MAX * 16))
        b = FB[hd % 4]
        a('ds_read_b128 %s, v10 offset:%d' % (vr(b, 4), hd * 1024))
        a('ds_read_b64_tr_b16 %s, v11 offset:%d' % (vr(b + 4, 2), hd * 2048))
        a('ds_read_b64_tr_b16 %s, v11 offset:%d' % (vr(b + 6, 2), hd * 2048 + 1024))

    for hd in range(PD):
        reads3(hd)
    for hd in range(32):
        if hd + PD < 32:
            reads3(hd + PD)
        a('s_waitcnt lgkmcnt(%d)' % (3 * min(PD, 31 - hd)))
        b = FB[hd % 4]
        a(mfma(AC3, b + 4, b, None if hd == 0 else AC3))
    stamp(a, 12)
    a('s_nop 15')
    for j in range(8):
        a('v_cvt_pk_bf16_f32 v%d, v%d, v%d' % (36 + j, AC3 + 2 * j, AC3 + 2 * j + 1))
    st3 = OPTV.get('st3', '').replace('+', ' ')
    a('buffer_store_dwordx4 v[36:39], v15, s[16:19], s37 offen' + st3)
    a('buffer_store_dwordx4 v[40:43], v15, s[16:19], s37 offen offset:16' + st3)
    if 'dbgt' in OPT:
        a('s_waitcnt vmcnt(0)')
        a('s_memrealtime s[78:79]')
        a('s_load_dwordx2 s[36:37], s[0:1], 104')
        a('s_waitcnt lgkmcnt(0)')
        srd(a, 12, 36, 256)
        a('v_mov_b32 v2, 0')
        a('s_mov_b64 exec, 1')
        for i in range(5):
            a('s_sub_u32 s66, s%d, s7' % (70 + 2 * i))
            a('s_add_u32 s66, s66, 1000')
            a('v_mov_b32 v1, s66')
            a('buffer_atomic_umax v1, v2, s[12:15], 0 offen offset:%d sc1' % (4 + 4 * i))
            a('s_sub_u32 s66, 100000, s66')
            a('v_mov_b32 v3, s66')
            a('buffer_atomic_umax v3, v2, s[12:15], 0 offen offset:%d sc1' % (36 + 4 * i))
        a('s_mov_b64 exec, -1')
        a('s_waitcnt vmcnt(0)')
    a('L_bend:')
    stamp_dump(a)
    a('s_endpgm')

    for t in ('',):
        OS, SS, M, PS, KS, MX = 80, 16, 64, 48, 104, 58
        a('''L_slow%s:
v_mov_b32 v%d, 0xff800000
s_mov_b32 s42, 0
L_s1%s:
buffer_load_dwordx4 %s, v%d, s[8:11], s42 offen sc1
s_waitcnt vmcnt(0)
%s
s_nop 15''' % (t, MX, t, vr(KS, 4), KA, mfma(SS, KS, Q[0], None)))
        for j in range(8):
            a('v_max3_f32 v%d, v%d, v%d, v%d' % (MX, MX, SS + 2 * j, SS + 2 * j + 1))
        a('''s_add_u32 s42, s42, 1024
s_cmp_lt_u32 s42, 0x10000
s_cbranch_scc1 L_s1%s
v_mov_b32 v%d, v%d
s_nop 1
v_permlane32_swap_b32 v%d, v%d
s_nop 1
v_max_f32 v%d, v%d, v%d''' % (t, MX + 1, MX, MX, MX + 1, MX, MX, MX + 1))
        for j in range(16):
            a('v_sub_f32 v%d, 0, v%d' % (M + j, MX))
            a('v_mov_b32 v%d, 0' % (OS + j))
        a('''s_mov_b32 s42, 0
L_s2%s:
buffer_load_dwordx4 %s, v%d, s[8:11], s42 offen sc1
s_mov_b64 exec, s[40:41]
buffer_load_dwordx4 %s, v%d, s[8:11], s42 offen sc1
buffer_load_dwordx4 %s, v%d, s[8:11], s42 offen offset:512 sc1
s_mov_b64 exec, -1
s_waitcnt vmcnt(0)
%s
s_nop 15''' % (t, vr(KS, 4), KA, vr(V[0][0], 4), VA, vr(V[0][1], 4), VA, mfma(SS, KS, Q[0], M)))
        for j in range(16):
            a('v_exp_f32 v%d, v%d' % (SS + j, SS + j))
        a('s_nop 0')
        for j in range(8):
            a('v_cvt_pk_bf16_f32 v%d, v%d, v%d' % (PS + j, SS + 2 * j, SS + 2 * j + 1))
        a('s_nop 1')
        a(mfma(OS, V[0][0], PS, OS))
        a(mfma(OS, V[0][1], PS + 4, OS))
        a('''s_add_u32 s42, s42, 1024
s_cmp_lt_u32 s42, 0x10000
s_cbranch_scc1 L_s2%s
s_nop 15''' % t)
        for j in range(9):
            a('v_mov_b32 v%d, v%d' % (F + j, OS + j))
        a('''v_rcp_f32 v48, v40
s_nop 0
s_branch L_fin''')
    a('''L_end:
s_endpgm''')
    return a.text()


def main(path):
    KN = NAME + '_kernel'
    t = kernel()
    hdr = '''; fused kernel: projections + S4 kernel generation | attention + causal convolution | output projection
; @launch grid=(256,1,1) block=(768,1,1) lds=%d
.amdgcn_target "amdgcn-amd-amdhsa--gfx950"
.text
.globl %s
''' % (LDS_BYTES, KN)
    pad = '.p2align 8\n.fill 4096, 4, 0xbf800000\n'
    kd = '''.section .rodata,"a"
.p2align 6
.amdhsa_kernel %s
  .amdhsa_next_free_vgpr 168
  .amdhsa_next_free_sgpr 102
  .amdhsa_accum_offset 168
  .amdhsa_group_segment_fixed_size 0
  .amdhsa_kernarg_size 120
  .amdhsa_user_sgpr_count 2
  .amdhsa_user_sgpr_kernarg_segment_ptr 1
  .amdhsa_system_sgpr_workgroup_id_x 1
.end_amdhsa_kernel
''' % KN
    open(path, 'w').write(hdr + t + pad + kd)


if __name__ == '__main__':
    for arg in sys.argv[1:]:
        OPT.add(arg)
        if '=' in arg:
            OPTV[arg.split('=')[0]] = arg.split('=')[1]
    DIAG = 'diag' in OPT
    main(sys.argv[1] if len(sys.argv) > 1 else 'cdna_kernels/%s.s' % NAME)
```

```python
import sys
import struct

NAME = 'concat_heads__ssm_conv_s4__softmax_full_mha__prompt'

KF = 0x200000
VF = 0x400000
OF = 0x600000
RS = 4224
UT = 0x800000
YT = 0x1400000
FL1 = 0xC00000
FLU = 0xC04000
FL2 = 0xC08000
FL3 = 0xC10000
WS_BYTES = 0x2000000

GEN = 6 * 16384
LDS_BYTES = GEN + 65536
QX = 65536
USI = 74752
USO = 82944
OX = 65536
YI = 73728
CNT = 94208
C_TAG, C_KV, C_GO, C_PAIR, C_CONV, C_O, C_Y, C_GOU, C_GOY, C_Y2, C_X = 0, 4, 8, 80, 24, 16, 32, 36, 40, 44, 48
C_U, C_P3, C_O1, C_Q = 12, 96, 20, 116
KCOPY = 4096
UIMG = 9216

LOG2E = 1.4426950408889634
QSCALE = 0.25 * LOG2E
OPT = set()
OPTV = {}
DIAG = False
DIAG_BASE = 0xF00000
ST0 = 70
SPIN_MAX = 1 << 16
ROWS = {0: [0, 1, 2, 3, 4, 5, 6, 7, 8, 1024, 1032, 1280, 1288, 1536, 1544, None],
        1: [256, 258, 260, 262, 264, 512, 516, 520, 768, 772, 776, 1792, 1800, None, None, None]}


def f2u(x):
    return struct.unpack('<I', struct.pack('<f', x))[0]


class A:
    def __init__(self):
        self.L = []

    def __call__(self, s):
        for line in s.split('\n'):
            line = line.strip()
            if not line:
                continue
            if line.endswith(':') or line.startswith('.'):
                self.L.append(line)
            else:
                self.L.append('    ' + line)

    def text(self):
        return '\n'.join(self.L) + '\n'


def vr(a, n=1):
    return 'v%d' % a if n == 1 else 'v[%d:%d]' % (a, a + n - 1)


def sr(a, n=1):
    return 's%d' % a if n == 1 else 's[%d:%d]' % (a, a + n - 1)


def srd(a, dst, base, nbytes):
    a('s_mov_b32 s%d, s%d' % (dst, base))
    a('s_mov_b32 s%d, s%d' % (dst + 1, base + 1))
    a('s_mov_b32 s%d, 0x%x' % (dst + 2, nbytes))
    a('s_mov_b32 s%d, 0x00020000' % (dst + 3))


def mfma(d, x, y, c):
    cs = '0' if c is None else vr(c, 16)
    return 'v_mfma_f32_32x32x16_bf16 %s, %s, %s, %s' % (vr(d, 16), vr(x, 4), vr(y, 4), cs)


def cmul_many(a, items):
    for d, x, y in items:
        a('v_mul_f32 v%d, v%d, v%d' % (d, x, y))
        a('v_mul_f32 v%d, v%d, v%d' % (d + 1, x + 1, y))
    for d, x, y in items:
        a('v_fma_f32 v%d, -v%d, v%d, v%d' % (d, x + 1, y + 1, d))
        a('v_fmac_f32 v%d, v%d, v%d' % (d + 1, x, y + 1))


def stamp(a, i, real=False):
    if DIAG and ('se' not in OPT or i in (0, 13) or str(i) in OPTV.get('only', '').split(',')):
        a('%s s[%d:%d]' % ('s_memrealtime' if real or 'rt' in OPT else 's_memtime', ST0 + 2 * i, ST0 + 2 * i + 1))


def stamp_dump(a, n=14):
    if DIAG:
        a('s_waitcnt vmcnt(0)')
        stamp(a, 13, True)
        a('s_waitcnt lgkmcnt(0)')
        a('s_lshl_b32 s68, s2, 4')
        a('s_add_u32 s68, s68, s3')
        a('s_lshl_b32 s68, s68, 6')
        a('s_add_u32 s68, s68, %d' % DIAG_BASE)
        a('v_mov_b32 v1, 0')
        a('s_mov_b64 exec, 1')
        for i in range(n):
            a('v_mov_b32 v2, s%d' % (ST0 + 2 * i))
            a('buffer_store_dword v2, v1, s[8:11], s68 offen offset:%d' % (4 * i))
        a('s_mov_b64 exec, -1')


_lab = [0]


def label(p):
    _lab[0] += 1
    return 'L_%s%d' % (p, _lab[0])


def lds_spin(a, va, vt, off, thr, st=66, nap=1):
    l, e = label('sp'), label('se')
    a('''s_mov_b32 s%d, 0
%s:
ds_read_b32 v%d, v%d offset:%d
s_add_u32 s%d, s%d, 1
s_waitcnt lgkmcnt(0)
v_readfirstlane_b32 s%d, v%d
s_cmp_ge_u32 s%d, %d
s_cbranch_scc1 %s
s_cmp_ge_u32 s%d, %d
s_cbranch_scc1 %s
s_sleep %d
s_branch %s
%s:''' % (st, l, vt, va, off, st, st, st + 1, vt, st, SPIN_MAX, e, st + 1, thr, e, nap, l, e))


def lds_add(a, va, vt, off):
    a('''v_mov_b32 v%d, 1
s_mov_b64 exec, 1
ds_add_u32 v%d, v%d offset:%d
s_mov_b64 exec, -1''' % (vt, va, vt, off))


def arrive_publish(a, va, vt, off, nwaves, sflag, vz):
    e = label('np')
    a('''v_mov_b32 v%d, 1
s_mov_b64 exec, 1
ds_add_rtn_u32 v%d, v%d, v%d offset:%d
v_mov_b32 v%d, 0
s_waitcnt lgkmcnt(0)
v_readfirstlane_b32 s66, v%d
v_mov_b32 v%d, s7
s_cmp_eq_u32 s66, %d
s_cbranch_scc0 %s
buffer_store_dword v%d, v%d, s[8:11], s%d offen sc1
%s:
s_mov_b64 exec, -1''' % (vt, vt, va, vt, off, vz, vt, vt, nwaves - 1, e, vt, vz, sflag, e))


def flag_poll(a, voff, vt, vt2, sbase):
    l, e = label('fp'), label('fe')
    ld = 'buffer_load_dword v%d, v%d, s[8:11], s%d offen sc1'
    a('''s_mov_b32 s66, 0
%s
s_sleep 4
%s:
%s
s_waitcnt vmcnt(1)
v_cmp_eq_u32 vcc, s7, v%d
s_add_u32 s66, s66, 1
s_cmp_eq_u64 vcc, -1
s_cbranch_scc1 %s
s_sleep 2
%s
s_waitcnt vmcnt(1)
v_cmp_eq_u32 vcc, s7, v%d
s_cmp_ge_u32 s66, %d
s_cbranch_scc1 %s
s_cmp_eq_u64 vcc, -1
s_cbranch_scc0 %s
%s:''' % (ld % (vt, voff, sbase), l, ld % (vt2, voff, sbase), vt, e, ld % (vt, voff, sbase), vt2, SPIN_MAX, e, l, e))


def flag_poll_lazy(a, voff, vt, sbase, nap):
    l, e = label('fp'), label('fe')
    a('''s_mov_b32 s66, 0
%s:
buffer_load_dword v%d, v%d, s[8:11], s%d offen sc1
s_add_u32 s66, s66, 1
s_waitcnt vmcnt(0)
v_cmp_eq_u32 vcc, s7, v%d
s_cmp_ge_u32 s66, %d
s_cbranch_scc1 %s
s_cmp_eq_u64 vcc, -1
s_cbranch_scc1 %s
s_sleep %d
s_branch %s
%s:''' % (l, vt, voff, sbase, vt, SPIN_MAX, e, e, nap, l, e))


def tag_check(a, vt, vz, srd0):
    l, e = label('tp'), label('te')
    a('''s_mov_b32 s66, 0
%s:
v_readfirstlane_b32 s7, v%d
s_add_u32 s66, s66, 1
s_cmp_lg_u32 s7, 0
s_cbranch_scc1 %s
s_cmp_ge_u32 s66, %d
s_cbranch_scc1 %s
buffer_load_dword v%d, v%d, s[%d:%d], 0 offen sc1
s_waitcnt vmcnt(0)
s_branch %s
%s:''' % (l, vt, e, SPIN_MAX, e, vt, vz, srd0, srd0 + 3, l, e))


def kgen_stream():
    a = A()
    P = 20
    for i in range(8):
        a('v_lshlrev_b32 %s, 16, %s' % (vr(P + i), vr(P + i)))
    Are, Aim, Bre, Bim, Cre, Cim, LDT, DSK = range(P, P + 8)
    a('v_mul_f32 v%d, s51, v%d' % (LDT, LDT))
    a('v_exp_f32 v%d, v%d' % (LDT, LDT))
    a('s_nop 0')
    a('v_cvt_pk_bf16_f32 v%d, v%d, v%d' % (LDT, LDT, LDT))
    a('v_lshlrev_b32 v%d, 16, v%d' % (LDT, LDT))
    a('v_mul_f32 v%d, v%d, v%d' % (Are, LDT, Are))
    a('v_mul_f32 v%d, v%d, v%d' % (Aim, LDT, Aim))
    a('v_mul_f32 v%d, v%d, v%d' % (Bre, LDT, Bre))
    a('v_mul_f32 v%d, v%d, v%d' % (Bim, LDT, Bim))
    a('v_mul_f32 v%d, s51, v%d' % (Are, Are))
    a('v_mul_f32 v%d, 0.15915494, v%d' % (Aim, Aim))
    G = [32 + 2 * i for i in range(32)]
    W = [96 + 2 * i for i in range(9)]
    Z1, Z2, Z4, Z32 = 114, 116, 118, 120
    ZB = {256: 122, 512: 124, 768: 126, 1024: 128, 1280: 130, 1536: 132, 1792: 134}
    T0, PK, AD = 136, 146, 154
    R = {}
    nxt = 32
    for h in (0, 1):
        for e in ROWS[h]:
            if e is None:
                continue
            if e <= 8:
                R[e] = W[e]
            else:
                R[e] = nxt
                nxt += 2
    cmul_many(a, [(W[0], Cre, Bre)])
    direct = [(Z1, 1.0), (G[1], 8.0), (Z32, 32.0), (ZB[256], 256.0), (ZB[1024], 1024.0)]
    for i, (z, e) in enumerate(direct):
        a('v_mul_f32 v%d, 0x%x, v%d' % (T0 + 2 * i, f2u(e), Are))
        a('v_mul_f32 v%d, 0x%x, v%d' % (T0 + 2 * i + 1, f2u(e), Aim))
    for i, (z, e) in enumerate(direct):
        a('v_exp_f32 v%d, v%d' % (T0 + 2 * i, T0 + 2 * i))
        a('v_fract_f32 v%d, v%d' % (T0 + 2 * i + 1, T0 + 2 * i + 1))
    for i, (z, e) in enumerate(direct):
        a('v_cos_f32 v%d, v%d' % (z, T0 + 2 * i + 1))
        a('v_sin_f32 v%d, v%d' % (z + 1, T0 + 2 * i + 1))
    a('v_mov_b32 v%d, 1.0' % G[0])
    a('v_mov_b32 v%d, 0' % (G[0] + 1))
    for i, (z, e) in enumerate(direct):
        a('v_mul_f32 v%d, v%d, v%d' % (z, z, T0 + 2 * i))
        a('v_mul_f32 v%d, v%d, v%d' % (z + 1, z + 1, T0 + 2 * i))
    cmul_many(a, [(G[2], G[1], G[1]), (Z2, Z1, Z1), (W[1], W[0], Z1), (W[8], W[0], G[1]), (ZB[512], ZB[256], ZB[256]),
                  (ZB[1280], ZB[1024], ZB[256]), (G[5], G[1], Z32)])
    a('v_mov_b32 v%d, v%d' % (G[4], Z32))
    a('v_mov_b32 v%d, v%d' % (G[4] + 1, Z32 + 1))
    cmul_many(a, [(G[3], G[2], G[1]), (Z4, Z2, Z2), (W[2], W[0], Z2), (W[3], W[1], Z2), (ZB[768], ZB[512], ZB[256]),
                  (ZB[1536], ZB[1024], ZB[512]), (G[6], G[2], Z32)])
    cmul_many(a, [(G[7], G[3], Z32), (W[4], W[0], Z4), (W[5], W[1], Z4), (W[6], W[2], Z4), (W[7], W[3], Z4),
                  (ZB[1792], ZB[1024], ZB[768])])
    for i0 in range(8, 32, 4):
        cmul_many(a, [(G[i], G[i - 4], Z32) for i in range(i0, i0 + 4)])
    nvalu = len(a.L)
    for c in range(8):
        a('v_xor_b32 v%d, %d, v13' % (AD + c, c << 4))
    rowidx = [None] * 32
    for h in (0, 1):
        for r in range(16):
            rowidx[8 * (r >> 2) + 4 * h + (r & 3)] = ROWS[h][r]
    nput = [0]

    def put(c, regs, neg, off):
        pk = PK + 4 * (nput[0] & 1)
        nput[0] += 1
        for j in range(4):
            a('v_cvt_pk_bf16_f32 v%d, %sv%d, %sv%d' % (pk + j, neg, regs[2 * j], neg, regs[2 * j + 1]))
        a('ds_write_b128 v%d, %s%s' % (AD + c, vr(pk, 4), off))

    for c in range(8):
        put(c, [G[8 * (c & 3) + j] + (c >> 2) for j in range(8)], '', '')
    big = [e for e in R if e > 8]
    items = [(R[e], W[e & 255], ZB[e & ~255]) for e in big]
    for i0 in range(0, len(items), 5):
        cmul_many(a, items[i0:i0 + 5])
    for c in range(8):
        comp = c >> 2
        regs = [(R[e] if e is not None else W[0]) + comp for e in rowidx[8 * (c & 3):8 * (c & 3) + 8]]
        put(c, regs, '-' if comp else '', ' offset:8192')
    a('s_waitcnt lgkmcnt(0)')
    KD, FR, NB = 32, 48, 4

    def gen_reads(s):
        off = s * 1024
        b = FR + 8 * (s % NB)
        a('ds_read_b64_tr_b16 %s, v14 offset:%d' % (vr(b, 2), off + 8192))
        a('ds_read_b64_tr_b16 %s, v15 offset:%d' % (vr(b + 2, 2), off + 8192))
        a('ds_read_b64_tr_b16 %s, v14 offset:%d' % (vr(b + 4, 2), off))
        a('ds_read_b64_tr_b16 %s, v15 offset:%d' % (vr(b + 6, 2), off))

    for s in range(3):
        gen_reads(s)
    for s in range(8):
        if s + 3 < 8:
            gen_reads(s + 3)
        a('s_waitcnt lgkmcnt(%d)' % (4 * min(3, 7 - s)))
        b = FR + 8 * (s % NB)
        a(mfma(KD, b, b + 4, None if s == 0 else KD))
    a('s_nop 15')
    for j in range(4):
        a('ds_write_b128 v16, %s offset:%d' % (vr(KD + 4 * j, 4), 1024 * j))
    a('s_waitcnt lgkmcnt(0)')
    return a.L, nvalu


def transpose_addrs(a, sw, vrd, vwr, vlin, t0, t1, usi, uso):
    a('''v_lshrrev_b32 v{t0}, 4, v4
v_bfe_u32 v{t1}, v4, 2, 2
v_lshl_add_u32 v{t1}, v{t0}, 3, v{t1}
v_lshlrev_b32 v{rd}, 7, v{t1}
v_and_b32 v{t1}, 3, v4
v_lshl_add_u32 v{rd}, v{t1}, 3, v{rd}
s_lshl_b32 s66, s{w}, 5
s_add_u32 s66, s66, {usi}
v_add_u32 v{rd}, s66, v{rd}
v_and_b32 v{t1}, 7, v4
v_xor_b32 v{t0}, v{t0}, v{t1}
v_lshlrev_b32 v{t0}, 4, v{t0}
v_and_b32 v{t1}, 15, v4
v_lshl_add_u32 v{wr}, v{t1}, 7, v{t0}
s_lshl_b32 s66, s{w}, 11
s_add_u32 s66, s66, {uso}
v_add_u32 v{wr}, s66, v{wr}
v_lshl_add_u32 v{lin}, v4, 4, s66
v_lshrrev_b32 v{t0}, 3, v4
v_and_b32 v{t1}, 7, v4
v_xor_b32 v{t1}, v{t1}, v{t0}'''.format(t0=t0, t1=t1, rd=vrd, wr=vwr, lin=vlin, w=sw, usi=usi, uso=uso))


def transpose_a(a, vrd, vwr, d, t):
    a('''ds_read_b64_tr_b16 v[{d0}:{d1}], v{rd}
ds_read_b64_tr_b16 v[{d2}:{d3}], v{rd} offset:512
ds_read_b64_tr_b16 v[{d4}:{d5}], v{rd} offset:4096
ds_read_b64_tr_b16 v[{d6}:{d7}], v{rd} offset:4608
v_xor_b32 v{t}, 64, v{wr}
s_waitcnt lgkmcnt(2)
ds_write_b128 v{wr}, v[{d0}:{d3}]
s_waitcnt lgkmcnt(1)
ds_write_b128 v{t}, v[{d4}:{d7}]
s_waitcnt lgkmcnt(0)'''.format(rd=vrd, wr=vwr, t=t, **{'d%d' % i: d + i for i in range(8)}))


def kernel():
    a = A()
    KN = NAME + '_kernel'
    a('''.p2align 8
.type {k},@function
{k}:
s_cmp_ge_u32 s2, 256
s_cbranch_scc1 L_end
s_load_dwordx16 s[16:31], s[0:1], 8
s_load_dwordx4 s[32:35], s[0:1], 72
s_load_dwordx4 s[36:39], s[0:1], 104'''.format(k=KN))
    stamp(a, 0, True)
    stamp(a, 1)
    a('''v_lshrrev_b32 v3, 6, v0
v_and_b32 v4, 63, v0
s_and_b32 s44, s2, 7
s_lshr_b32 s45, s2, 3
v_readfirstlane_b32 s3, v3
s_lshl_b32 s60, s44, 6
s_lshl_b32 s46, s45, 1
s_add_u32 s60, s60, s46
s_lshl_b32 s46, s60, 8
v_lshl_add_u32 v5, v0, 1, s46
s_lshr_b32 s4, s44, 1
s_lshl_b32 s4, s4, 3
s_and_b32 s46, s45, 7
s_add_u32 s4, s4, s46
s_and_b32 s5, s44, 1
s_lshl_b32 s5, s5, 2
s_lshr_b32 s47, s45, 3
s_add_u32 s5, s5, s47
s_lshl_b32 s47, s47, 1
%s
s_cmp_lt_u32 s3, 4
s_cbranch_scc1 L_gen
s_cmp_ge_u32 s3, 8
s_cbranch_scc1 L_mm''' % {'0': 's_mov_b32 s6, 0', '1': 's_add_u32 s6, s46, s47', '2': 's_and_b32 s6, s46, 4', '3': 's_and_b32 s6, s46, 6'}[OPTV.get('rot', '1')])
    SEG = (1, 2, 0)

    a('''s_setprio 2
s_sub_u32 s61, s3, 4
v_lshrrev_b32 v10, 3, v4
v_lshrrev_b32 v11, 4, v4
v_and_b32 v12, 7, v4
v_xor_b32 v13, v12, v11
s_lshl_b32 s47, s61, 4
v_add_u32 v10, s47, v10
s_lshl_b32 s46, s4, 16
v_lshl_add_u32 v14, v10, 10, s46
v_lshl_add_u32 v6, v13, 4, v14
v_xor_b32 v7, 64, v6
v_add_u32 v7, 0x1c00, v7
v_lshlrev_b32 v16, 10, v10
v_lshl_add_u32 v16, v12, 4, v16
v_mul_u32_u24 v10, 3072, v10
v_and_b32 v11, 1, v11
v_lshlrev_b32 v11, 2, v11
v_xor_b32 v12, v12, v11
v_lshl_add_u32 v8, v12, 4, v10
s_lshl_b32 s46, s5, 7
v_add_u32 v8, s46, v8
v_add_u32 v9, %d, v8
s_lshl_b32 s48, s61, 11
s_waitcnt lgkmcnt(0)''' % (8 * 3072 - 1024))
    srd(a, 16, 32, 2048 * 1024)
    srd(a, 12, 34, 512 * 3072)

    def dma_chunk(c):
        slot = (c % 6) * 16384
        if c < 8:
            a('s_add_u32 s50, s6, %d' % c)
            a('s_and_b32 s50, s50, 7')
            a('s_mul_i32 s49, s50, %d' % (64 * 3072))
            a('s_add_u32 m0, s48, %d' % slot)
            a('s_lshl_b32 s50, s50, 7')
            a('buffer_load_dwordx4 v6, s[16:19], s50 offen lds')
            a('buffer_load_dwordx4 v7, s[16:19], s50 offen offset:1024 lds')
            a('s_add_u32 m0, s48, %d' % (slot + 8192))
            a('s_add_u32 s49, s49, %d' % (SEG[0] * 1024))
            a('buffer_load_dwordx4 v8, s[12:15], s49 offen lds')
            a('buffer_load_dwordx4 v9, s[12:15], s49 offen offset:1024 lds')
        else:
            p, j = 1 + ((c - 8) >> 2), (c - 8) & 3
            for hf in range(2):
                a('s_add_u32 s50, s6, %d' % (2 * j + hf))
                a('s_and_b32 s50, s50, 7')
                a('s_mul_i32 s49, s50, %d' % (64 * 3072))
                a('s_add_u32 m0, s48, %d' % (slot + hf * 8192))
                a('s_add_u32 s49, s49, %d' % (SEG[p] * 1024))
                a('buffer_load_dwordx4 v8, s[12:15], s49 offen lds')
                a('buffer_load_dwordx4 v9, s[12:15], s49 offen offset:1024 lds')

    dma_chunk(0)
    dma_chunk(1)
    a('s_branch L_ldm')

    a('''L_gen:
s_lshr_b32 s61, s3, 1
s_add_u32 s52, s60, s61
s_lshl_b32 s46, s52, 1
v_mov_b32 v19, s46
s_and_b32 s53, s3, 1
s_waitcnt lgkmcnt(0)''')
    P = 20
    a('global_load_ushort %s, v19, s[28:29]' % vr(P + 6))
    for i in range(6):
        a('global_load_ushort %s, v5, %s' % (vr(P + i), sr(16 + 2 * i, 2)))
    a('global_load_ushort %s, v19, s[30:31]' % vr(P + 7))
    a('''s_getpc_b64 s[40:41]
v_and_b32 v1, 7, v0
v_lshlrev_b32 v1, 7, v1
s_lshl_b32 s46, s45, 10
v_add_u32 v1, s46, v1
global_load_dword v2, v1, s[40:41]''')
    srd(a, 8, 38, WS_BYTES)
    srd(a, 12, 36, 256)
    a('''v_mov_b32 v18, 0
s_or_b32 s46, s2, s3
s_cmp_eq_u32 s46, 0
s_cbranch_scc0 L_notag
s_memrealtime s[46:47]
s_waitcnt lgkmcnt(0)
s_or_b32 s46, s46, 1
v_mov_b32 v1, s46
s_mov_b64 exec, 1
buffer_store_dword v1, v18, s[12:15], 0 offen sc1
s_mov_b64 exec, -1
s_waitcnt vmcnt(0)
L_notag:''')
    a('''s_lshl_b32 s62, s3, 14
s_add_u32 s62, s62, %d
v_and_b32 v10, 7, v4
v_lshlrev_b32 v10, 4, v10
v_lshl_add_u32 v13, v4, 7, v10
v_add_u32 v13, s62, v13
v_lshrrev_b32 v10, 5, v4
v_bfe_u32 v11, v4, 3, 1
v_lshl_add_u32 v10, v10, 2, v11
v_bfe_u32 v11, v4, 2, 1
v_lshlrev_b32 v11, 2, v11
v_bfe_u32 v12, v4, 4, 1
v_lshl_add_u32 v11, v12, 1, v11
v_bfe_u32 v12, v4, 1, 1
v_add_u32 v11, v11, v12
v_xor_b32 v11, v11, v10
v_lshlrev_b32 v11, 4, v11
v_lshl_add_u32 v11, v10, 7, v11
v_and_b32 v12, 1, v4
v_lshl_add_u32 v11, v12, 3, v11
v_add_u32 v14, s62, v11
v_xor_b32 v15, 32, v14
v_add_u32 v15, 256, v15
v_lshl_add_u32 v16, v4, 4, s62
v_xor_b32 v17, 0x4000, v16
v_mov_b32 v12, %d
s_mov_b32 s51, 0x%x''' % (GEN, CNT, f2u(LOG2E)))
    p1, nvalu = kgen_stream()
    sizes = [int(x) for x in OPTV.get('sl', '80,140,31').split(',')]
    cuts = [0]
    for z in sizes:
        cuts.append(min(len(p1), cuts[-1] + z))
    print('kgen instructions', len(p1), 'pure valu', nvalu, cuts, file=sys.stderr)
    a('s_load_dwordx4 s[32:35], s[0:1], 88')
    stamp(a, 2)
    a('s_waitcnt vmcnt(1) lgkmcnt(0)')
    for c in range(16):
        if c < len(sizes):
            a.L += p1[cuts[c]:cuts[c + 1]]
        if c == 8:
            a('buffer_load_dword v1, v18, s[12:15], 0 offen sc1')
        if c == 14:
            a('s_waitcnt vmcnt(0)')
            tag_check(a, 1, 18, 12)
            a('''v_cmp_eq_u32 vcc, 0, v4
v_lshl_add_u32 v2, v4, 2, v12
s_cmp_eq_u32 s3, 0
v_cndmask_b32 v1, 0, v1, vcc
s_cbranch_scc0 L_tagd
ds_write_b32 v2, v1
s_waitcnt lgkmcnt(0)
L_tagd:''')
        a('s_barrier')
    a('s_barrier')
    stamp(a, 3)
    a('s_setprio 3')
    a('''s_lshl_b32 s46, s3, 11
s_add_u32 s46, s46, %d
v_lshl_add_u32 v6, v4, 4, s46
ds_read_b128 v[8:11], v6
ds_read_b128 v[28:31], v6 offset:1024
v_lshrrev_b32 v6, 3, v4
v_and_b32 v7, 7, v4
v_xor_b32 v7, v7, v6
v_mul_u32_u24 v6, %d, v6
v_lshl_add_u32 v6, v7, 4, v6
s_mul_i32 s46, s44, %d
s_mul_i32 s47, s3, %d
s_add_u32 s46, s46, s47
s_lshl_b32 s47, s45, 7
s_add_u32 s46, s46, s47
s_add_u32 s46, s46, %d
s_add_u32 s47, s46, %d
s_lshl_b32 s65, s44, 5
s_add_u32 s65, s65, s45
s_lshl_b32 s65, s65, 6
s_add_u32 s65, s65, %d
s_waitcnt lgkmcnt(1)
buffer_store_dwordx4 v[8:11], v6, s[8:11], s46 offen sc1
s_waitcnt lgkmcnt(0)
buffer_store_dwordx4 v[28:31], v6, s[8:11], s47 offen sc1''' % (USO, RS, 64 * RS, 16 * RS, UT, 8 * RS, FLU))
    srd(a, 16, 34, 2048 * 2048)
    srd(a, 12, 32, 512 * 1024)
    a.L += p1[cuts[-1]:]
    a('s_waitcnt vmcnt(0)')
    arrive_publish(a, 12, 1, C_U, 4, 65, 2)
    a('s_lshl_b32 s63, s61, 2')
    a('v_add_u32 v11, s63, v12')
    lds_add(a, 11, 1, C_PAIR)
    KD = 32
    a('''v_and_b32 v28, 31, v4
v_lshrrev_b32 v29, 5, v4
s_lshl_b32 s46, s53, 6
s_add_u32 s46, s46, s62
s_add_u32 s46, s46, %d
v_lshlrev_b32 v10, 4, v28
v_sub_u32 v18, s46, v10
v_and_b32 v10, 1, v4
v_cmp_eq_u32 s[54:55], 1, v10
v_cmp_eq_u32 s[56:57], 0, v4
s_mov_b32 s58, -1
s_mov_b32 s59, 0
s_mov_b32 s40, 0
s_mov_b32 s41, -1''' % (KCOPY + 255 * 16))
    for sl, (b0, b1) in enumerate([(0, 32), (128, 64), (160, 96), (192, 224)]):
        a('v_mul_i32_i24 v10, %d, v29' % ((b1 - b0) * 16))
        a('v_sub_u32 v%d, v18, v10' % (80 + sl))
        if b0:
            a('v_subrev_u32 v%d, %d, v%d' % (80 + sl, b0 * 16, 80 + sl))
    a('''v_lshl_add_u32 v87, v4, 4, s46
v_add_u32 v87, 16, v87
s_lshl_b32 s64, s61, 15
s_add_u32 s64, s64, %d
s_lshl_b32 s47, s53, 1
v_add_u32 v10, s47, v29
v_mul_u32_u24 v10, 1536, v10
v_lshl_add_u32 v10, v28, 4, v10
v_add_u32 v10, s64, v10
v_mov_b32 v88, 0
v_mov_b32 v89, 0
v_mov_b32 v90, 0
v_mov_b32 v91, 0''' % (GEN + UIMG))
    lds_spin(a, 11, 1, C_PAIR, 2)
    a('ds_write_b128 v10, v[88:91]')
    for j in range(4):
        a('ds_read_b128 %s, v17 offset:%d' % (vr(48 + 4 * j, 4), 1024 * j))
    a('v_cndmask_b32 v9, 0, v27, s[56:57]')
    a('v_add_f32 v%d, v%d, v9' % (KD, KD))
    a('s_waitcnt lgkmcnt(0)')
    for j in range(16):
        a('v_add_f32 v%d, v%d, v%d' % (KD + j, KD + j, 48 + j))
    for i, r in enumerate((9, 11, 13)):
        a('v_cndmask_b32 v%d, v%d, v%d, s[54:55]' % (84 + i, KD + r, KD + r + 1))
    OB = 64

    def pack(dst, vals):
        for j in range(4):
            a('v_cvt_pk_bf16_f32 v%d, v%d, v%d' % (dst + j, vals[2 * j], vals[2 * j + 1]))

    def emit_copy(cp):
        k = lambda r: KD + r
        r0 = [k(i) for i in range(9)]
        r1 = [k(0), k(0), k(1), k(2), k(2), k(2), k(3), k(4), k(4)]
        r2 = lambda b: [k(b), k(b), k(b), k(b + 1), k(b + 1), k(b + 1), k(b + 2), k(b + 2), k(b + 2)]
        r3 = lambda b, x: [k(b)] * 4 + [x] + [k(b + 1)] * 4
        sel = (lambda p: p[8:0:-1]) if cp == 0 else (lambda p: p[7::-1])
        a('s_mov_b64 exec, s[58:59]')
        pack(OB, sel(r0))
        pack(OB + 4, sel(r3(9, 84)))
        pack(OB + 8, sel(r3(11, 85)))
        pack(OB + 12, sel(r3(13, 86)))
        a('s_mov_b64 exec, s[40:41]')
        pack(OB, sel(r1))
        pack(OB + 4, sel(r2(5)))
        pack(OB + 8, sel(r2(8)))
        pack(OB + 12, sel(r3(11, 85)))
        a('s_mov_b64 exec, -1')
        if cp == 0:
            a('v_cvt_pk_bf16_f32 v10, v%d, v88' % KD)
            a('v_cndmask_b32 v88, 0, v10, s[56:57]')

    a('s_cmp_eq_u32 s53, 0')
    a('s_cbranch_scc0 L_copy1')
    emit_copy(0)
    a('s_branch L_copyd')
    a('L_copy1:')
    emit_copy(1)
    a('L_copyd:')
    for sl in range(4):
        a('ds_write_b128 v%d, %s' % (80 + sl, vr(OB + 4 * sl, 4)))
    a('s_mov_b64 exec, 15')
    a('ds_write_b128 v87, v[88:91]')
    a('s_mov_b64 exec, -1')
    stamp(a, 4)
    a('''v_lshlrev_b32 v6, 6, v28
s_lshl_b32 s46, s44, 11
s_add_u32 s46, s46, %d
s_cmp_eq_u32 s3, 0
s_cbranch_scc0 L_uw''' % FLU)
    flag_poll_lazy(a, 6, 1, 46, 8)
    lds_add(a, 12, 3, C_GOU)
    a('L_uw:')
    lds_spin(a, 12, 3, C_GOU, 1, nap=4)
    a('''v_lshlrev_b32 v6, 6, v4
s_mul_i32 s46, s52, %d
s_lshl_b32 s47, s53, 5
s_add_u32 s46, s46, s47
s_add_u32 s46, s46, %d
s_mul_i32 s47, s53, 3072
s_add_u32 s47, s47, s64
s_add_u32 m0, s47, 512
s_nop 0
buffer_load_dwordx4 v6, s[8:11], s46 offen sc1 lds
s_add_u32 m0, s47, 2048
s_add_u32 s46, s46, 16
buffer_load_dwordx4 v6, s[8:11], s46 offen sc1 lds''' % (RS, UT))
    a('''v_bfe_u32 v18, v4, 4, 1
v_lshlrev_b32 v18, 4, v18
v_bfe_u32 v19, v4, 2, 1
v_lshl_add_u32 v18, v19, 3, v18
v_and_b32 v19, 3, v4
v_lshl_add_u32 v18, v19, 1, v18
v_bfe_u32 v19, v4, 3, 1
v_lshlrev_b32 v24, 3, v29
v_sub_u32 v24, v24, v18
v_add_u32 v24, 32, v24
v_lshlrev_b32 v24, 1, v24
v_mul_u32_u24 v19, %d, v19
v_add_u32 v24, v24, v19
s_add_u32 s46, s64, %d
v_add_u32 v24, s46, v24
s_lshl_b32 s46, s53, 9
s_add_u32 s46, s46, s64
s_add_u32 s46, s46, %d
v_mul_u32_u24 v25, 1536, v29
v_lshl_add_u32 v25, v28, 4, v25
v_add_u32 v25, s46, v25''' % (16384 + 64 - 4, KCOPY - UIMG + 32 * 120, 512 - 3 * 16))
    TB, UB, CA = 32, 40, 48
    CB = 64
    for j in range(32):
        a('v_mov_b32 v%d, 0' % (CA + j))
    a('''s_lshl_b32 s34, s53, 2
s_add_u32 s34, s34, 8
s_mov_b32 s35, 0
s_waitcnt vmcnt(0) lgkmcnt(0)''')
    lds_add(a, 12, 1, C_CONV)
    a('''s_and_b32 s46, s45, 7
s_lshl_b32 s46, s46, 16
s_lshl_b32 s47, s5, 7
s_add_u32 s46, s46, s47
s_lshl_b32 s47, s3, 14
s_add_u32 s46, s46, s47
v_and_b32 v6, 15, v4
v_lshlrev_b32 v6, 10, v6
buffer_load_dword v31, v6, s[12:15], s46 offen''')
    lds_spin(a, 12, 1, C_CONV, 4)
    stamp(a, 5)

    def conv_loop(lab, acc, send):
        a(lab + ':')
        for j in range(8):
            t = TB + 4 * (j & 1)
            a('ds_read2_b32 %s, v24 offset0:%d offset1:%d' % (vr(t, 2), 8 * (7 - j), 8 * (7 - j) + 1))
            a('ds_read2_b32 %s, v24 offset0:%d offset1:%d' % (vr(t + 2, 2), 8 * (7 - j) + 2, 8 * (7 - j) + 3))
            a('ds_read_b128 %s, v25 offset:%d' % (vr(UB + 4 * (j & 1), 4), (3072 if j % 2 == 0 else 0) + (3 - (j >> 1)) * 16))
            a('s_waitcnt lgkmcnt(0)')
            a(mfma(acc, t, UB + 4 * (j & 1), acc))
        a('''v_subrev_u32 v24, 256, v24
v_subrev_u32 v25, 64, v25
s_add_u32 s35, s35, 1
s_cmp_lt_u32 s35, %s
s_cbranch_scc1 %s''' % (send, lab))

    if 'noconv' not in OPT:
        conv_loop('L_cl', CA, 's34')
        a('''s_cmp_eq_u32 s53, 0
s_cbranch_scc0 L_cr
v_subrev_u32 v24, 1024, v24
v_add_u32 v25, 256, v25''')
        conv_loop('L_cm', CB, '12')
        a('s_nop 11')
        for j in range(4):
            a('ds_write_b128 v16, %s offset:%d' % (vr(CB + 4 * j, 4), 1024 * j))
        a('s_waitcnt lgkmcnt(0)')
        lds_add(a, 11, 1, C_PAIR)
        a('s_branch L_cd')
        a('L_cr:')
        lds_spin(a, 11, 1, C_PAIR, 3, nap=2)
        for j in range(4):
            a('ds_read_b128 %s, v17 offset:%d' % (vr(CB + 4 * j, 4), 1024 * j))
        a('s_waitcnt lgkmcnt(0)')
        for j in range(16):
            a('v_add_f32 v%d, v%d, v%d' % (CA + j, CA + j, CB + j))
        a('L_cd:')
    stamp(a, 6)
    a('''s_nop 0
s_mul_i32 s46, s52, %d
s_lshl_b32 s47, s53, 11
s_add_u32 s46, s46, s47
s_add_u32 s46, s46, %d
v_lshlrev_b32 v6, 6, v28
v_lshl_add_u32 v6, v29, 4, v6
s_lshl_b32 s47, s53, 9
s_add_u32 s47, s47, s52
s_lshl_b32 s47, s47, 6
s_add_u32 s47, s47, %d
v_mov_b32 v1, s7
v_mov_b32 v2, 0''' % (RS, YT, FL3))
    for s in range(2):
        for i in range(4):
            a('v_cvt_pk_bf16_f32 v%d, v%d, v%d' % (32 + 4 * s + i, CA + 8 * s + i, CA + 8 * s + 4 + i))
    a('''buffer_store_dwordx4 v[32:35], v6, s[8:11], s46 offen sc1
buffer_store_dwordx4 v[36:39], v6, s[8:11], s46 offen offset:32 sc1
s_waitcnt vmcnt(0) lgkmcnt(0)
s_mov_b64 exec, 1
buffer_store_dword v1, v2, s[8:11], s47 offen sc1
s_mov_b64 exec, -1''')
    a('''v_lshrrev_b32 v6, 3, v4
v_lshlrev_b32 v6, 10, v6
v_bfe_u32 v7, v4, 4, 1
v_lshlrev_b32 v7, 2, v7
v_and_b32 v8, 7, v4
v_xor_b32 v7, v7, v8
v_lshl_add_u32 v6, v7, 4, v6
s_lshl_b32 s23, s53, 10
s_lshl_b32 s24, s61, 11
s_add_u32 s24, s23, s24
s_lshl_b32 s26, s5, 7
s_lshl_b32 s27, s53, 13
s_add_u32 s26, s26, s27
s_lshl_b32 s27, s61, 14
s_add_u32 s26, s26, s27
s_nop 0''')
    for c in range(8):
        a('s_add_u32 s38, s5, %d' % c)
        a('s_and_b32 s38, s38, 7')
        a('s_lshl_b32 s30, s38, 16')
        a('s_add_u32 m0, s24, %d' % (c * 4096))
        a('s_add_u32 s30, s30, s26')
        if 'nowo' in OPT:
            continue
        a('buffer_load_dwordx4 v6, s[12:15], s30 offen lds')
        a('s_add_u32 m0, s24, %d' % (32768 + c * 4096))
        a('s_add_u32 s30, s30, 0x8000')
        a('buffer_load_dwordx4 v6, s[12:15], s30 offen lds')
        a('s_waitcnt vmcnt(%s)' % OPTV.get('wot', '2'))
    stamp(a, 7)
    a('''v_lshlrev_b32 v6, 6, v4
s_lshr_b32 s46, s4, 4
s_lshl_b32 s46, s46, 15
s_lshl_b32 s47, s5, 12
s_add_u32 s46, s46, s47
s_add_u32 s46, s46, %d
s_cmp_eq_u32 s3, 0
s_cbranch_scc0 L_yw''' % FL3)
    flag_poll_lazy(a, 6, 1, 46, 32)
    lds_add(a, 12, 3, C_GOY)
    a('L_yw:')
    transpose_addrs(a, 3, 20, 21, 22, 8, 9, USI, USO)
    a('''v_mul_u32_u24 v10, %d, v8
v_and_b32 v11, 7, v4
v_lshl_add_u32 v10, v11, 4, v10
v_add_u32 v11, %d, v10
s_mul_i32 s46, s5, %d
s_mul_i32 s47, s3, %d
s_add_u32 s46, s46, s47
s_lshl_b32 s47, s4, 7
s_add_u32 s46, s46, s47
s_add_u32 s46, s46, %d
s_lshl_b32 s47, s3, 11
s_add_u32 s47, s47, %d''' % (RS, 8 * RS - 1024, 64 * RS, 16 * RS, YT, USI))
    lds_spin(a, 12, 3, C_GOY, 1, nap=8)
    a('''s_mov_b32 m0, s47
v_lshlrev_b32 v8, 11, v8
buffer_load_dwordx4 v10, s[8:11], s46 offen sc1 lds
buffer_load_dwordx4 v11, s[8:11], s46 offen offset:1024 sc1 lds
v_lshl_add_u32 v8, v9, 4, v8
s_lshl_b32 s46, s4, 17
s_lshl_b32 s47, s3, 15
s_add_u32 s46, s46, s47
s_lshl_b32 s47, s5, 7
s_add_u32 s46, s46, s47
s_add_u32 s47, s46, 0x4000
s_waitcnt vmcnt(0)''')
    lds_add(a, 12, 1, C_Y)
    lds_spin(a, 12, 1, C_Y, 4)
    transpose_a(a, 20, 21, 32, 23)
    a('''ds_read_b128 v[32:35], v22
ds_read_b128 v[36:39], v22 offset:1024
s_waitcnt lgkmcnt(1)
buffer_store_dwordx4 v[32:35], v8, s[16:19], s46 offen nt
s_waitcnt lgkmcnt(0)
buffer_store_dwordx4 v[36:39], v8, s[16:19], s47 offen nt''')
    lds_add(a, 12, 1, C_Y2)
    stamp(a, 8)
    a('s_waitcnt lgkmcnt(0)')
    stamp(a, 12)
    stamp_dump(a)
    a('s_endpgm')

    a('L_ldm:')
    a('s_load_dwordx2 s[20:21], s[0:1], 0')
    srd(a, 8, 38, WS_BYTES)
    transpose_addrs(a, 61, 20, 21, 22, 23, 24, USI, USO)
    a('''s_lshl_b32 s46, s45, 16
s_lshl_b32 s47, s44, 7
s_add_u32 s52, s46, s47
v_add_u32 v17, 0x1c00, v16
v_mov_b32 v12, %d
s_waitcnt lgkmcnt(0)''' % CNT)
    srd(a, 24, 20, 2048 * 1024)
    order = [0, 1]
    cnt = lambda x: 4 if isinstance(x, int) else x[1]
    stamp(a, 2)
    for c in range(16):
        a('s_waitcnt vmcnt(%d)' % (sum(cnt(x) for x in order[order.index(c) + 1:]) if c < 15 else 0))
        if c in (0, 8, 12):
            stamp(a, {0: 3, 8: 4, 12: 5}[c])
        a('s_barrier')
        for n in {0: [2, 3], 1: [4, 5]}.get(c, [c + 4] if c + 4 < 16 else []):
            dma_chunk(n)
            order.append(n)
        if c == 13:
            a('s_add_u32 m0, s48, %d' % USI)
            a('s_nop 0')
            a('buffer_load_dwordx4 v16, s[24:27], s52 offen lds')
            a('buffer_load_dwordx4 v17, s[24:27], s52 offen offset:1024 lds')
            order.append(('u', 2))
        if c == 15:
            transpose_a(a, 20, 21, 32, 25)
    a('''s_barrier
ds_read_b32 v1, v12 offset:%d
s_waitcnt lgkmcnt(0)
v_readfirstlane_b32 s7, v1''' % C_TAG)
    a('s_branch L_att')

    XA, WA, OA, OV = 160, 164, 165, 166
    XR, ACC = 0, 128
    WF = [144, 148, 152, 156]
    a('''L_mm:
%s
s_setprio 3
s_and_b32 s52, s3, 1
s_bfe_u32 s53, s3, 0x10001
v_and_b32 v10, 31, v4
v_bfe_u32 v11, v4, 1, 3
v_lshrrev_b32 v12, 5, v4
v_xor_b32 v11, v11, v12
v_lshlrev_b32 v11, 4, v11
v_lshl_add_u32 v10, v10, 7, v11
s_lshl_b32 s46, s52, 12
v_add_u32 v%d, s46, v10''' % ('s_memrealtime s[70:71]' if 'dbgt' in OPT else '', XA))
    for jq in range(1, 4):
        a('v_xor_b32 v%d, %d, v%d' % (XA + jq, jq << 5, XA))
    a('''v_lshlrev_b32 v10, 10, v12
v_bfe_u32 v11, v4, 2, 2
v_lshl_add_u32 v10, v11, 7, v10
v_bfe_u32 v11, v4, 3, 1
v_xor_b32 v11, s53, v11
v_lshl_add_u32 v10, v11, 6, v10
v_bfe_u32 v11, v4, 4, 1
v_lshl_add_u32 v10, v11, 5, v10
v_and_b32 v11, 3, v4
v_lshl_add_u32 v%d, v11, 3, v10''' % WA)
    a('''s_lshl_b32 s46, s4, 1
s_add_u32 s46, s46, s52
s_lshl_b32 s46, s46, 10
s_lshl_b32 s47, s5, 1
s_add_u32 s47, s47, s53
s_lshl_b32 s47, s47, 17
s_add_u32 s46, s46, s47
v_lshl_add_u32 v%d, v4, 4, s46
v_bfe_u32 v11, v4, 4, 1
v_lshlrev_b32 v11, 16, v11
v_lshl_add_u32 v11, v12, 8, v11
v_and_b32 v10, 15, v4
v_lshl_add_u32 v11, v10, 4, v11
v_add_u32 v%d, s46, v11
v_mov_b32 v167, v4
s_mov_b32 s62, 0x%x
s_mov_b32 s64, %d
s_mov_b32 s65, %d
s_mov_b32 s63, %d
s_lshl_b32 s54, s52, 12
s_lshl_b32 s47, s53, 11
s_add_u32 s54, s54, s47
s_add_u32 s54, s54, %d
s_lshl_b32 s56, s5, 6
s_add_u32 s56, s56, %d
s_lshl_b32 s55, s4, 9
s_add_u32 s55, s55, s56
s_waitcnt lgkmcnt(0)''' % (OA, OV, f2u(QSCALE), KF, KF + 65536, VF, QX, FL1))
    srd(a, 8, 38, WS_BYTES)
    if 'nowpf' not in OPT:
        srd(a, 12, 34, 512 * 3072)
        a('''s_cmp_ge_u32 s3, 10
s_cbranch_scc1 L_nopf
v_mul_u32_u24 v10, 3072, v4
s_and_b32 s46, s4, 7
s_mul_i32 s46, s46, %d
s_lshl_b32 s47, s5, 7
s_add_u32 s46, s46, s47
s_xor_b32 s47, s52, 1
s_lshl_b32 s47, s47, 11
s_add_u32 s46, s46, s47
%s
buffer_load_dword v%d, v10, s[12:15], s46 offen
L_nopf:''' % (64 * 3072, 's_sleep %s' % OPTV['wps'] if 'wps' in OPTV else '', 127))
    PD = 3

    def chunk_of(s):
        p, kk = s >> 5, s & 31
        return (kk >> 2, kk & 3) if p == 0 else (8 + 4 * (p - 1) + (kk >> 3), kk & 7)

    def nreads(s):
        return 0 if s >= 96 else (3 if s < 32 else 2)

    def reads(s):
        c, j = chunk_of(s)
        if j == 0:
            a('s_barrier')
            if c == 0:
                stamp(a, 2)
                if 'dbgt' in OPT:
                    a('s_memrealtime s[72:73]')
            if c == 6:
                a('s_waitcnt vmcnt(0)')
            if c % 3 == 0 and c > 0:
                op = 'v_add_u32' if c % 6 == 3 else 'v_subrev_u32'
                for r in ([XA, XA + 1, XA + 2, XA + 3] if c < 8 else []) + [WA]:
                    a('%s v%d, 0xc000, v%d' % (op, r, r))
        so = (c % 3) * 16384
        if c < 8:
            a('ds_read_b128 %s, v%d offset:%d' % (vr(XR + 4 * s, 4), XA + j, so))
            so += 8192
        for rd in range(2):
            a('ds_read_b64_tr_b16 %s, v%d offset:%d' % (vr(WF[s % 4] + 2 * rd, 2), WA, so + j * 2048 + rd * 512))

    def epilogue(p):
        lo, hi = vr(ACC, 4), vr(ACC + 4, 4)
        if SEG[p] == 0:
            a('v_mov_b32 v4, v167')
            a('v_lshl_add_u32 v10, v167, 4, s54')
            a('s_nop 13')
            for i in range(16):
                a('v_mul_f32 v%d, s62, v%d' % (ACC + i, ACC + i))
        else:
            a('s_nop 15')
        for j in range(8):
            a('v_cvt_pk_bf16_f32 v%d, v%d, v%d' % (ACC + j, ACC + 2 * j, ACC + 2 * j + 1))
        if SEG[p] == 0:
            a('ds_write_b128 v10, %s' % lo)
            a('ds_write_b128 v10, %s offset:1024' % hi)
        elif SEG[p] == 1:
            a('buffer_store_dwordx4 %s, v%d, s[8:11], s64 offen sc1' % (lo, OA))
            a('buffer_store_dwordx4 %s, v%d, s[8:11], s65 offen sc1' % (hi, OA))
        else:
            a('buffer_store_dwordx4 %s, v%d, s[8:11], s63 offen sc1' % (lo, OV))
            a('buffer_store_dwordx4 %s, v%d, s[8:11], s63 offen offset:512 sc1' % (hi, OV))

    for s in range(PD):
        reads(s)
    for s in range(96):
        p, kk = s >> 5, s & 31
        if s + PD < 96:
            reads(s + PD)
        a('s_waitcnt lgkmcnt(%d)' % sum(nreads(t) for t in range(s + 1, s + PD + 1)))
        x, w = XR + 4 * kk, WF[s % 4]
        if SEG[p] == 2:
            a(mfma(ACC, x, w, None if kk == 0 else ACC))
        else:
            a(mfma(ACC, w, x, None if kk == 0 else ACC))
        if s == 80:
            a('v_mov_b32 v12, %d' % CNT)
            a('ds_read_b32 v1, v12 offset:%d' % C_TAG)
            a('s_waitcnt vmcnt(0) lgkmcnt(0)')
            a('v_readfirstlane_b32 s7, v1')
            arrive_publish(a, 12, 1, C_KV, 4, 55, 2)
            if 'rt' in OPT:
                stamp(a, 2)
        if kk == 31:
            stamp(a, 3 + p)
            epilogue(p)
    a('''s_waitcnt lgkmcnt(0)
s_barrier
s_cmp_eq_u32 s3, 8
s_cbranch_scc0 L_att
v_and_b32 v6, 31, v4
v_lshlrev_b32 v6, 9, v6''')
    if 'p2' not in OPT:
        flag_poll_lazy(a, 6, 1, 56, 1)
    else:
        flag_poll(a, 6, 1, 2, 56)
    lds_add(a, 12, 3, C_GO)

    S = [16, 32]
    Pp = [48, 56]
    O = [64, 80]
    Q = [96, 100]
    DK = int(OPTV.get('dk', 3))
    NB, NBV = DK + 1, DK + 1 if DK == 3 else DK
    K = [104 + 4 * b for b in range(NB)]
    V0 = 104 + 4 * NB
    V = [[V0 + 8 * b, V0 + 4 + 8 * b] for b in range(NBV)]
    KA, VA = 14, 15
    assert V0 + 8 * NBV <= 152
    a('''L_att:
s_lshr_b32 s19, s3, 3
s_and_b32 s18, s3, 1
s_lshl_b32 s24, s19, 1
s_add_u32 s18, s18, s24
s_bfe_u32 s24, s3, 0x10001
v_lshlrev_b32 v5, 4, v4
s_lshl_b32 s26, s18, 10
s_add_u32 s26, s26, %d
v_add_u32 v6, s26, v5
ds_read_b128 %s, v6
ds_read_b128 %s, v6 offset:4096
s_lshl_b32 s27, s5, 2
s_add_u32 s18, s18, s27
s_lshl_b32 s22, s18, 16
s_add_u32 s27, s22, %d
v_add_u32 v%d, s27, v5
s_lshl_b32 s36, s24, 10
s_mov_b32 s37, s36
v_lshrrev_b32 v6, 5, v4
v_and_b32 v7, 15, v4
v_lshlrev_b32 v7, 4, v7
v_lshl_add_u32 v7, v6, 8, v7
s_add_u32 s27, s22, %d
v_add_u32 v%d, s27, v7
v_and_b32 v6, 31, v4
v_cmp_eq_u32 vcc, 16, v6
v_cmp_eq_u32 s[28:29], 20, v6
s_mov_b32 s30, 0x3f803f80
s_or_b64 vcc, vcc, s[28:29]
v_mov_b32 v7, s30
s_mov_b32 s40, 0xffff
s_mov_b32 s41, 0xffff
v_cndmask_b32 v6, 0, v7, vcc''' % (QX, vr(Q[0], 4), vr(Q[1], 4), KF, KA, VF, VA))
    for b in range(NBV):
        for u in range(2):
            for j in range(4):
                a('v_mov_b32 v%d, v6' % (V[b][u] + j))
    for q in range(2):
        for j in range(16):
            a('v_mov_b32 v%d, 0' % (O[q] + j))

    def rdk(i):
        return ['buffer_load_dwordx4 %s, v%d, s[8:11], s36 offen sc1' % (vr(K[i % NB], 4), KA),
                's_add_u32 s36, s36, 2048']

    def rdv(i):
        return ['s_mov_b64 exec, s[40:41]',
                'buffer_load_dwordx4 %s, v%d, s[8:11], s37 offen sc1' % (vr(V[i % NBV][0], 4), VA),
                'buffer_load_dwordx4 %s, v%d, s[8:11], s37 offen offset:512 sc1' % (vr(V[i % NBV][1], 4), VA),
                's_mov_b64 exec, -1', 's_add_u32 s37, s37, 2048']

    a('''s_and_b32 s48, s3, 1
s_bfe_u32 s49, s3, 0x10001
v_lshrrev_b32 v8, 5, v4
v_bfe_u32 v152, v4, 2, 2
v_lshl_add_u32 v152, v8, 2, v152
v_lshlrev_b32 v152, 7, v152
v_bfe_u32 v9, v4, 3, 1
v_lshl_add_u32 v152, v9, 6, v152
v_and_b32 v9, 1, v4
v_lshl_add_u32 v152, v9, 5, v152
v_bfe_u32 v9, v4, 4, 1
v_lshl_add_u32 v152, v9, 4, v152
v_bfe_u32 v9, v4, 1, 1
v_lshl_add_u32 v152, v9, 3, v152
s_lshl_b32 s26, s49, 14
v_add_u32 v152, s26, v152
v_xor_b32 v153, 64, v152
v_and_b32 v154, 31, v4
v_lshlrev_b32 v154, 11, v154
v_lshl_add_u32 v154, v8, 5, v154
s_lshl_b32 s26, s4, 17
s_lshl_b32 s50, s48, 16
s_add_u32 s26, s26, s50
s_lshl_b32 s27, s5, 7
s_add_u32 s26, s26, s27
s_lshl_b32 s50, s49, 6
s_add_u32 s50, s50, s26
s_add_u32 s50, s50, 1024
s_lshl_b32 s51, s49, 2
s_add_u32 s51, s51, s5
v_and_b32 v155, 3, v4
v_add_u32 v155, s51, v155
v_and_b32 v155, 7, v155
v_lshlrev_b32 v155, 7, v155
s_lshl_b32 s52, s4, 10
s_add_u32 s52, s52, %d
s_lshl_b32 s53, s4, 16
s_lshl_b32 s26, s48, 15
s_add_u32 s53, s53, s26
s_add_u32 s53, s53, %d
s_sub_u32 s26, s3, 4
s_lshl_b32 s27, s26, 12
s_add_u32 s27, s27, %d
v_add_u32 v156, s27, v5
v_xor_b32 v157, 0x2000, v156
s_lshl_b32 s26, s26, 2
v_add_u32 v158, s26, v12
v_xor_b32 v159, 8, v158''' % (FL2, OF, GEN))
    a('''v_and_b32 v13, 7, v4
v_lshlrev_b32 v13, 7, v13
v_bfe_u32 v7, v4, 3, 1
v_lshl_add_u32 v13, v7, 21, v13
s_add_u32 s27, s22, %d
v_add_u32 v13, s27, v13
s_and_b32 s38, s4, 7
s_lshl_b32 s38, s38, 11
s_add_u32 s38, s38, s36
s_waitcnt lgkmcnt(0)''' % KF)
    lds_add(a, 12, 3, C_Q)
    stamp(a, 6)
    lds_spin(a, 12, 3, C_GO, 1)
    stamp(a, 7)
    PF = 'pf' in OPT
    pfl = ['buffer_load_dword v11, v13, s[8:11], s38 offen sc1', 's_add_u32 s38, s38, 0x4000'] if PF else []
    issue = []
    pro = rdk(0) + (['s_add_u32 s38, s38, 0x4000'] if PF else [])
    issue += [('k', 0)]
    if 'hs' in OPTV:
        a('s_cmp_eq_u32 s19, 0')
        a('s_cbranch_scc1 L_hs')
        a('s_sleep %s' % OPTV['hs'])
        a('L_hs:')
    for i in range(1, DK):
        issue += [('k', i), ('v', i - 1), ('v', i - 1)]
        pro += rdk(i) + rdv(i - 1)
    a('\n'.join(pro))
    a('s_setprio 3')
    a('s_waitcnt vmcnt(%d)' % (len(issue) - 1))
    stamp(a, 8)
    if 'dbgt' in OPT:
        a('s_memrealtime s[74:75]')
    a(mfma(S[0], K[0], Q[0], None))
    a('s_nop 7')
    a('s_nop 3')
    PRIO = {7: 2, 15: 1, 23: 0}

    def unit(i, q):
        u = 2 * i + q
        sc, sn = S[u % 2], S[(u + 1) % 2]
        pc, pp = Pp[u % 2], Pp[(u + 1) % 2]
        i1, q1 = (i, 1) if q == 0 else (i + 1, 0)
        i0, q0 = (i - 1, 1) if q == 0 else (i, 0)
        qk = mfma(sn, K[i1 % NB], Q[q1], None)
        pv0 = mfma(O[q0], V[i0 % NBV][0], pp, O[q0])
        pv1 = mfma(O[q0], V[i0 % NBV][1], pp + 4, O[q0])
        e = ['v_exp_f32 v%d, v%d' % (sc + j, sc + j) for j in range(16)]
        c = ['v_cvt_pk_bf16_f32 v%d, v%d, v%d' % (pc + j, sc + 2 * j, sc + 2 * j + 1) for j in range(8)]
        c7prev = 'v_cvt_pk_bf16_f32 v%d, v%d, v%d' % (pp + 7, sn + 14, sn + 15)
        out = [e[0]]
        if q == 1:
            last = max(n for n, x in enumerate(issue) if x in (('k', i + 1), ('v', i)))
            out.append('s_waitcnt vmcnt(%d)' % (len(issue) - 1 - last))
        if u > 0:
            out.append(c7prev)
        if u < 63:
            out.append(qk)
        kl = rdk(i + DK) if q == 0 and i + DK < 32 else []
        vl = rdv(i + DK - 1) if q == 1 and i + DK - 1 < 32 else []
        issue.extend([('k', i + DK)] * bool(kl) + [('v', i + DK - 1)] * 2 * bool(vl))
        out += kl[:1] + vl[:4]
        out += [e[1], e[2], c[0], e[3], e[4], c[1], e[5]]
        if u > 0:
            out.append(pv0)
        out += kl[1:] + vl[4:]
        out += [e[6], c[2], e[7], e[8], c[3], e[9], e[10], c[4]]
        if u > 0:
            out.append(pv1)
        if q == 0 and i in (1, 8, 16) and PF:
            out += pfl
            issue.append(('p',))
        if q == 1 and i in PRIO:
            out.append('s_setprio %d' % PRIO[i])
            if DIAG and 'qs' in OPT:
                n = 3 + i // 8
                out.append('s_memtime s[%d:%d]' % (ST0 + 2 * n, ST0 + 2 * n + 1))
        out += [e[11], e[12], c[5], e[13], e[14], c[6], e[15]]
        return out

    for i in range(32):
        for q in range(2):
            if (i, q) == (31, 0):
                a('''s_and_b32 s26, s3, 3
s_xor_b32 s27, s26, 2
s_mul_i32 s26, s26, 2304
s_add_u32 s26, s26, {ox}
s_mul_i32 s27, s27, 2304
s_add_u32 s27, s27, {ox}
v_add_u32 v6, s26, v5
v_add_u32 v7, s27, v5
v_lshlrev_b32 v8, 2, v4
v_add_u32 v9, s27, v8
v_add_u32 v8, s26, v8
s_sub_u32 s26, s3, 4
s_lshl_b32 s26, s26, 2
v_add_u32 v10, s26, v12
s_xor_b32 s26, s26, 8
v_add_u32 v11, s26, v12
s_cmp_eq_u32 s19, 0
s_cbranch_scc0 L_xa'''.format(ox=OX))
                lds_spin(a, 12, 3, C_Q, 8)
                a('s_branch L_xb')
                a('L_xa:')
                lds_spin(a, 12, 3, C_O, 4)
                a('L_xb:')
            for s in unit(i, q):
                a(s)
    a('s_nop 0')
    a('v_cvt_pk_bf16_f32 v%d, v%d, v%d' % (Pp[1] + 7, S[1] + 14, S[1] + 15))
    stamp(a, 9)
    if 'dbgt' in OPT:
        a('s_memrealtime s[76:77]')
    a('s_setprio 3')
    a('s_nop 0')
    a(mfma(O[1], V[31 % NBV][0], Pp[1], O[1]))
    a(mfma(O[1], V[31 % NBV][1], Pp[1] + 4, O[1]))
    a('''s_nop 9
s_cmp_eq_u32 s24, 0
s_cbranch_scc0 L_x1''')
    F = 32
    for own, lab in ((0, None), (1, 'L_x1')):
        if lab:
            a(lab + ':')
        oth = 1 - own
        a('ds_write_b128 v6, %s' % vr(O[oth], 4))
        a('ds_write_b128 v6, %s offset:1024' % vr(O[oth] + 4, 4))
        a('ds_write_b32 v8, v%d offset:2048' % (O[oth] + 8))
        for j in range(9):
            a('v_mov_b32 v%d, v%d' % (F + j, O[own] + j))
        if own == 1:
            for j in range(4):
                a('v_mov_b32 v%d, v%d' % (Q[0] + j, Q[1] + j))
        if own == 0:
            a('s_branch L_x2')
    a('L_x2:')
    a('v_mov_b32 v3, 1')
    a('ds_write_b32 v10, v3 offset:%d' % C_X)
    a('''s_lshl_b32 s25, s4, 1
s_add_u32 s25, s25, s24
s_lshl_b32 s25, s25, 15
s_lshl_b32 s26, s18, 10
s_add_u32 s25, s25, s26
s_add_u32 s25, s25, %d
s_mov_b32 s44, 0x%x
s_mov_b32 s45, 0x%x
s_mov_b32 s46, 0x7f7fffff
s_lshl_b32 s55, s4, 3
s_add_u32 s55, s55, s5
s_lshl_b32 s55, s55, 1
s_add_u32 s55, s55, s19
s_lshl_b32 s55, s55, 6
s_add_u32 s55, s55, %d
s_lshl_b32 s26, s19, 2
v_add_u32 v13, s26, v12''' % (OF, f2u(2.0 ** -64), f2u(2.0 ** 64), FL2))
    a('''s_mov_b32 s66, 0
L_xw:
ds_read_b32 v3, v11 offset:%d
ds_read_b128 v[48:51], v7
ds_read_b128 v[52:55], v7 offset:1024
ds_read_b32 v56, v9 offset:2048
s_add_u32 s66, s66, 1
s_waitcnt lgkmcnt(0)
v_readfirstlane_b32 s67, v3
s_cmp_ge_u32 s66, %d
s_cbranch_scc1 L_xe
s_cmp_eq_u32 s67, 0
s_cbranch_scc1 L_xw
L_xe:''' % (C_X, SPIN_MAX * 16))
    stamp(a, 10)
    for j in range(9):
        a('v_add_f32 v%d, v%d, v%d' % (F + j, F + j, 48 + j))
    a('''v_max3_f32 v48, abs(v32), abs(v33), abs(v34)
v_max3_f32 v49, abs(v35), abs(v36), abs(v37)
v_max3_f32 v48, v48, abs(v38), abs(v39)
v_cmp_le_f32 s[28:29], s44, v40
v_cmp_ge_f32 s[30:31], s45, v40
v_add_f32 v50, v32, v33
v_add_f32 v51, v34, v35
v_add_f32 v52, v36, v37
v_add_f32 v53, v38, v39
v_max_f32 v48, v48, v49
v_add_f32 v50, v50, v51
v_add_f32 v52, v52, v53
v_cmp_ge_f32 s[32:33], s46, v48
v_cmp_o_f32 s[34:35], v50, v52
v_rcp_f32 v48, v40
s_and_b64 s[28:29], s[28:29], s[30:31]
s_and_b64 s[32:33], s[32:33], s[34:35]
s_and_b64 s[28:29], s[28:29], s[32:33]
s_cmp_eq_u64 s[28:29], -1
s_cbranch_scc0 L_slow
L_fin:''')
    for j in range(8):
        a('v_mul_f32 v%d, v%d, v48' % (F + j, F + j))
    for j in range(4):
        a('v_cvt_pk_bf16_f32 v%d, v%d, v%d' % (52 + j, F + 2 * j, F + 2 * j + 1))
    a('buffer_store_dwordx4 v[52:55], v5, s[8:11], s25 offen sc1')
    a('s_load_dwordx2 s[34:35], s[0:1], 96')
    a('s_waitcnt vmcnt(0) lgkmcnt(0)')
    arrive_publish(a, 13, 1, C_O, 4, 55, 2)
    stamp(a, 11)
    a('s_cmp_ge_u32 s3, 8')
    a('s_cbranch_scc1 L_bend')
    srd(a, 16, 34, 2048 * 2048)
    AC = [20, 36]
    OFR, WR = 56, 88

    def wo_frags(g):
        for cc in range(4):
            for n in range(2):
                for nt in range(2):
                    for rd in range(2):
                        a('ds_read_b64_tr_b16 %s, v%d offset:%d' % (vr(WR + 16 * cc + 8 * n + 4 * nt + 2 * rd, 2), (152, 153)[nt],
                                                                    g * 32768 + cc * 4096 + n * 2048 + rd * 1024))

    def o_loads(cc):
        a('''s_add_u32 s38, s51, %d
s_and_b32 s38, s38, 7
s_lshl_b32 s30, s38, 12
s_add_u32 s30, s30, s53
buffer_load_dwordx4 %s, v5, s[8:11], s30 offen sc1
buffer_load_dwordx4 %s, v5, s[8:11], s30 offen offset:1024 sc1''' % (cc, vr(OFR + 8 * cc, 4), vr(OFR + 8 * cc + 4, 4)))

    def o_mfma(cc, first):
        for n in range(2):
            for nt in range(2):
                a(mfma(AC[nt], WR + 16 * cc + 8 * n + 4 * nt, OFR + 8 * cc + 4 * n, None if first and n == 0 else AC[nt]))

    lds_spin(a, 12, 3, C_Y2, 4, nap=8)
    wo_frags(0)
    flag_poll_lazy(a, 155, 1, 52, 6)
    for cc in range(4):
        o_loads(cc)
    a('s_waitcnt lgkmcnt(0)')
    for cc in range(4):
        a('s_waitcnt vmcnt(%d)' % (6 - 2 * cc))
        o_mfma(cc, cc == 0)
    wo_frags(1)
    a('''s_add_u32 s52, s52, 64
s_add_u32 s53, s53, 2048
s_xor_b32 s23, s49, 1''')
    stamp(a, 10)
    lds_spin(a, 12, 3, C_O1, 4, nap=2)
    a('s_mov_b32 s66, 0')
    for cc in range(4):
        l, e = label('lp'), label('le')
        a('''{l}:
s_bitcmp1_b32 s23, {cc}
s_cbranch_scc1 {e}
s_cmp_ge_u32 s66, {n}
s_cbranch_scc1 {e}
buffer_load_dword v1, v155, s[8:11], s52 offen sc1
s_add_u32 s66, s66, 1
s_waitcnt vmcnt(0)
v_cmp_eq_u32 vcc, s7, v1
s_nop 1
s_or_b32 s23, s23, vcc_lo
s_branch {l}
{e}:'''.format(l=l, e=e, cc=cc, n=SPIN_MAX))
        o_loads(cc)
        if cc > 0:
            a('s_waitcnt vmcnt(2)')
            o_mfma(cc - 1, False)
    a('s_waitcnt vmcnt(0)')
    o_mfma(3, False)
    stamp(a, 12)
    a('''v_mov_b32 v3, 1
s_cmp_eq_u32 s49, 0
s_nop 12
s_cbranch_scc0 L_r1''')
    for own in range(2):
        if own:
            a('L_r1:')
        for j in range(4):
            a('ds_write_b128 v156, %s offset:%d' % (vr(AC[1 - own] + 4 * j, 4), 1024 * j))
        a('ds_write_b32 v158, v3 offset:%d' % C_P3)
        if not own:
            a('s_branch L_r2')
    a('''L_r2:
s_mov_b32 s66, 0
L_rw:
ds_read_b32 v3, v159 offset:%d''' % C_P3)
    for j in range(4):
        a('ds_read_b128 %s, v157 offset:%d' % (vr(64 + 4 * j, 4), 1024 * j))
    a('''s_add_u32 s66, s66, 1
s_waitcnt lgkmcnt(0)
v_readfirstlane_b32 s67, v3
s_cmp_ge_u32 s66, %d
s_cbranch_scc1 L_re
s_cmp_eq_u32 s67, 0
s_cbranch_scc1 L_rw
L_re:''' % (SPIN_MAX * 16))
    a('s_cmp_eq_u32 s49, 0')
    a('s_cbranch_scc0 L_r3')
    for own in range(2):
        if own:
            a('L_r3:')
        for j in range(16):
            a('v_add_f32 v%d, v%d, v%d' % (64 + j, AC[own] + j, 64 + j))
        if not own:
            a('s_branch L_r4')
    a('L_r4:')
    for j in range(8):
        a('v_cvt_pk_bf16_f32 v%d, v%d, v%d' % (80 + j, 64 + 2 * j, 65 + 2 * j))
    st3 = OPTV.get('st3', '').replace('+', ' ')
    a('buffer_store_dwordx4 v[80:83], v154, s[16:19], s50 offen' + st3)
    a('buffer_store_dwordx4 v[84:87], v154, s[16:19], s50 offen offset:16' + st3)
    if 'dbgt' in OPT:
        a('s_waitcnt vmcnt(0)')
        a('s_memrealtime s[78:79]')
        a('s_load_dwordx2 s[36:37], s[0:1], 104')
        a('s_waitcnt lgkmcnt(0)')
        srd(a, 12, 36, 256)
        a('v_mov_b32 v2, 0')
        a('s_mov_b64 exec, 1')
        for i in range(5):
            a('s_sub_u32 s66, s%d, s7' % (70 + 2 * i))
            a('s_add_u32 s66, s66, 1000')
            a('v_mov_b32 v1, s66')
            a('buffer_atomic_umax v1, v2, s[12:15], 0 offen offset:%d sc1' % (4 + 4 * i))
            a('s_sub_u32 s66, 100000, s66')
            a('v_mov_b32 v3, s66')
            a('buffer_atomic_umax v3, v2, s[12:15], 0 offen offset:%d sc1' % (36 + 4 * i))
        a('s_mov_b64 exec, -1')
        a('s_waitcnt vmcnt(0)')
    a('L_bend:')
    stamp_dump(a)
    a('s_endpgm')

    for t in ('',):
        OS, SS, M, PS, KS, MX = 80, 16, 64, 48, 104, 58
        a('''L_slow%s:
v_mov_b32 v%d, 0xff800000
s_mov_b32 s42, 0
L_s1%s:
buffer_load_dwordx4 %s, v%d, s[8:11], s42 offen sc1
s_waitcnt vmcnt(0)
%s
s_nop 15''' % (t, MX, t, vr(KS, 4), KA, mfma(SS, KS, Q[0], None)))
        for j in range(8):
            a('v_max3_f32 v%d, v%d, v%d, v%d' % (MX, MX, SS + 2 * j, SS + 2 * j + 1))
        a('''s_add_u32 s42, s42, 1024
s_cmp_lt_u32 s42, 0x10000
s_cbranch_scc1 L_s1%s
v_mov_b32 v%d, v%d
s_nop 1
v_permlane32_swap_b32 v%d, v%d
s_nop 1
v_max_f32 v%d, v%d, v%d''' % (t, MX + 1, MX, MX, MX + 1, MX, MX, MX + 1))
        for j in range(16):
            a('v_sub_f32 v%d, 0, v%d' % (M + j, MX))
            a('v_mov_b32 v%d, 0' % (OS + j))
        a('''s_mov_b32 s42, 0
L_s2%s:
buffer_load_dwordx4 %s, v%d, s[8:11], s42 offen sc1
s_mov_b64 exec, s[40:41]
buffer_load_dwordx4 %s, v%d, s[8:11], s42 offen sc1
buffer_load_dwordx4 %s, v%d, s[8:11], s42 offen offset:512 sc1
s_mov_b64 exec, -1
s_waitcnt vmcnt(0)
%s
s_nop 15''' % (t, vr(KS, 4), KA, vr(V[0][0], 4), VA, vr(V[0][1], 4), VA, mfma(SS, KS, Q[0], M)))
        for j in range(16):
            a('v_exp_f32 v%d, v%d' % (SS + j, SS + j))
        a('s_nop 0')
        for j in range(8):
            a('v_cvt_pk_bf16_f32 v%d, v%d, v%d' % (PS + j, SS + 2 * j, SS + 2 * j + 1))
        a('s_nop 1')
        a(mfma(OS, V[0][0], PS, OS))
        a(mfma(OS, V[0][1], PS + 4, OS))
        a('''s_add_u32 s42, s42, 1024
s_cmp_lt_u32 s42, 0x10000
s_cbranch_scc1 L_s2%s
s_nop 15''' % t)
        for j in range(9):
            a('v_mov_b32 v%d, v%d' % (F + j, OS + j))
        a('''v_rcp_f32 v48, v40
s_nop 0
s_branch L_fin''')
    a('''L_end:
s_endpgm''')
    return a.text()


def main(path):
    KN = NAME + '_kernel'
    t = kernel()
    hdr = '''; fused kernel: projections + S4 kernel generation | attention + causal convolution | output projection
; @launch grid=(256,1,1) block=(768,1,1) lds=%d
.amdgcn_target "amdgcn-amd-amdhsa--gfx950"
.text
.globl %s
''' % (LDS_BYTES, KN)
    pad = '.p2align 8\n.fill 4096, 4, 0xbf800000\n'
    kd = '''.section .rodata,"a"
.p2align 6
.amdhsa_kernel %s
  .amdhsa_next_free_vgpr 168
  .amdhsa_next_free_sgpr 102
  .amdhsa_accum_offset 168
  .amdhsa_group_segment_fixed_size 0
  .amdhsa_kernarg_size 120
  .amdhsa_user_sgpr_count 2
  .amdhsa_user_sgpr_kernarg_segment_ptr 1
  .amdhsa_system_sgpr_workgroup_id_x 1
.end_amdhsa_kernel
''' % KN
    open(path, 'w').write(hdr + t + pad + kd)


if __name__ == '__main__':
    for arg in sys.argv[1:]:
        OPT.add(arg)
        if '=' in arg:
            OPTV[arg.split('=')[0]] = arg.split('=')[1]
    DIAG = 'diag' in OPT
    main(sys.argv[1] if len(sys.argv) > 1 else 'cdna_kernels/%s.s' % NAME)
```

```python
import sys
import struct

NAME = 'concat_heads__ssm_conv_s4__softmax_full_mha__prompt'

KF = 0x200000
VF = 0x400000
OF = 0x600000
RS = 4224
UT = 0x800000
YT = 0x1400000
FL1 = 0xC00000
FLU = 0xC04000
FL2 = 0xC08000
FL3 = 0xC10000
WS_BYTES = 0x2000000

GEN = 6 * 16384
LDS_BYTES = GEN + 65536
QX = 65536
USI = 74752
USO = 82944
OX = 65536
YI = 73728
CNT = 94208
C_TAG, C_KV, C_GO, C_PAIR, C_CONV, C_O, C_Y, C_GOU, C_GOY, C_Y2, C_X = 0, 4, 8, 80, 24, 16, 32, 36, 40, 44, 48
C_U, C_P3, C_O1, C_Q = 12, 96, 20, 116
KCOPY = 4096
UIMG = 9216

LOG2E = 1.4426950408889634
QSCALE = 0.25 * LOG2E
OPT = set()
OPTV = {}
DIAG = False
DIAG_BASE = 0xF00000
ST0 = 70
SPIN_MAX = 1 << 16
ROWS = {0: [0, 1, 2, 3, 4, 5, 6, 7, 8, 1024, 1032, 1280, 1288, 1536, 1544, None],
        1: [256, 258, 260, 262, 264, 512, 516, 520, 768, 772, 776, 1792, 1800, None, None, None]}


def f2u(x):
    return struct.unpack('<I', struct.pack('<f', x))[0]


class A:
    def __init__(self):
        self.L = []

    def __call__(self, s):
        for line in s.split('\n'):
            line = line.strip()
            if not line:
                continue
            if line.endswith(':') or line.startswith('.'):
                self.L.append(line)
            else:
                self.L.append('    ' + line)

    def text(self):
        return '\n'.join(self.L) + '\n'


def vr(a, n=1):
    return 'v%d' % a if n == 1 else 'v[%d:%d]' % (a, a + n - 1)


def sr(a, n=1):
    return 's%d' % a if n == 1 else 's[%d:%d]' % (a, a + n - 1)


def srd(a, dst, base, nbytes):
    a('s_mov_b32 s%d, s%d' % (dst, base))
    a('s_mov_b32 s%d, s%d' % (dst + 1, base + 1))
    a('s_mov_b32 s%d, 0x%x' % (dst + 2, nbytes))
    a('s_mov_b32 s%d, 0x00020000' % (dst + 3))


def mfma(d, x, y, c):
    cs = '0' if c is None else vr(c, 16)
    return 'v_mfma_f32_32x32x16_bf16 %s, %s, %s, %s' % (vr(d, 16), vr(x, 4), vr(y, 4), cs)


def cmul_many(a, items):
    for d, x, y in items:
        a('v_mul_f32 v%d, v%d, v%d' % (d, x, y))
        a('v_mul_f32 v%d, v%d, v%d' % (d + 1, x + 1, y))
    for d, x, y in items:
        a('v_fma_f32 v%d, -v%d, v%d, v%d' % (d, x + 1, y + 1, d))
        a('v_fmac_f32 v%d, v%d, v%d' % (d + 1, x, y + 1))


def stamp(a, i, real=False):
    if DIAG and ('se' not in OPT or i in (0, 13) or str(i) in OPTV.get('only', '').split(',')):
        a('%s s[%d:%d]' % ('s_memrealtime' if real or 'rt' in OPT else 's_memtime', ST0 + 2 * i, ST0 + 2 * i + 1))


def stamp_dump(a, n=14):
    if DIAG:
        a('s_waitcnt vmcnt(0)')
        stamp(a, 13, True)
        a('s_waitcnt lgkmcnt(0)')
        a('s_lshl_b32 s68, s2, 4')
        a('s_add_u32 s68, s68, s3')
        a('s_lshl_b32 s68, s68, 6')
        a('s_add_u32 s68, s68, %d' % DIAG_BASE)
        a('v_mov_b32 v1, 0')
        a('s_mov_b64 exec, 1')
        for i in range(n):
            a('v_mov_b32 v2, s%d' % (ST0 + 2 * i))
            a('buffer_store_dword v2, v1, s[8:11], s68 offen offset:%d' % (4 * i))
        a('s_mov_b64 exec, -1')


_lab = [0]


def label(p):
    _lab[0] += 1
    return 'L_%s%d' % (p, _lab[0])


def lds_spin(a, va, vt, off, thr, st=66, nap=1):
    l, e = label('sp'), label('se')
    a('''s_mov_b32 s%d, 0
%s:
ds_read_b32 v%d, v%d offset:%d
s_add_u32 s%d, s%d, 1
s_waitcnt lgkmcnt(0)
v_readfirstlane_b32 s%d, v%d
s_cmp_ge_u32 s%d, %d
s_cbranch_scc1 %s
s_cmp_ge_u32 s%d, %d
s_cbranch_scc1 %s
s_sleep %d
s_branch %s
%s:''' % (st, l, vt, va, off, st, st, st + 1, vt, st, SPIN_MAX, e, st + 1, thr, e, nap, l, e))


def lds_add(a, va, vt, off):
    a('''v_mov_b32 v%d, 1
s_mov_b64 exec, 1
ds_add_u32 v%d, v%d offset:%d
s_mov_b64 exec, -1''' % (vt, va, vt, off))


def arrive_publish(a, va, vt, off, nwaves, sflag, vz):
    e = label('np')
    a('''v_mov_b32 v%d, 1
s_mov_b64 exec, 1
ds_add_rtn_u32 v%d, v%d, v%d offset:%d
v_mov_b32 v%d, 0
s_waitcnt lgkmcnt(0)
v_readfirstlane_b32 s66, v%d
v_mov_b32 v%d, s7
s_cmp_eq_u32 s66, %d
s_cbranch_scc0 %s
buffer_store_dword v%d, v%d, s[8:11], s%d offen sc1
%s:
s_mov_b64 exec, -1''' % (vt, vt, va, vt, off, vz, vt, vt, nwaves - 1, e, vt, vz, sflag, e))


def flag_poll(a, voff, vt, vt2, sbase):
    l, e = label('fp'), label('fe')
    ld = 'buffer_load_dword v%d, v%d, s[8:11], s%d offen sc1'
    a('''s_mov_b32 s66, 0
%s
s_sleep 4
%s:
%s
s_waitcnt vmcnt(1)
v_cmp_eq_u32 vcc, s7, v%d
s_add_u32 s66, s66, 1
s_cmp_eq_u64 vcc, -1
s_cbranch_scc1 %s
s_sleep 2
%s
s_waitcnt vmcnt(1)
v_cmp_eq_u32 vcc, s7, v%d
s_cmp_ge_u32 s66, %d
s_cbranch_scc1 %s
s_cmp_eq_u64 vcc, -1
s_cbranch_scc0 %s
%s:''' % (ld % (vt, voff, sbase), l, ld % (vt2, voff, sbase), vt, e, ld % (vt, voff, sbase), vt2, SPIN_MAX, e, l, e))


def flag_poll_lazy(a, voff, vt, sbase, nap):
    l, e = label('fp'), label('fe')
    a('''s_mov_b32 s66, 0
%s:
buffer_load_dword v%d, v%d, s[8:11], s%d offen sc1
s_add_u32 s66, s66, 1
s_waitcnt vmcnt(0)
v_cmp_eq_u32 vcc, s7, v%d
s_cmp_ge_u32 s66, %d
s_cbranch_scc1 %s
s_cmp_eq_u64 vcc, -1
s_cbranch_scc1 %s
s_sleep %d
s_branch %s
%s:''' % (l, vt, voff, sbase, vt, SPIN_MAX, e, e, nap, l, e))


def tag_check(a, vt, vz, srd0):
    l, e = label('tp'), label('te')
    a('''s_mov_b32 s66, 0
%s:
v_readfirstlane_b32 s7, v%d
s_add_u32 s66, s66, 1
s_cmp_lg_u32 s7, 0
s_cbranch_scc1 %s
s_cmp_ge_u32 s66, %d
s_cbranch_scc1 %s
buffer_load_dword v%d, v%d, s[%d:%d], 0 offen sc1
s_waitcnt vmcnt(0)
s_branch %s
%s:''' % (l, vt, e, SPIN_MAX, e, vt, vz, srd0, srd0 + 3, l, e))


def kgen_stream():
    a = A()
    P = 20
    for i in range(8):
        a('v_lshlrev_b32 %s, 16, %s' % (vr(P + i), vr(P + i)))
    Are, Aim, Bre, Bim, Cre, Cim, LDT, DSK = range(P, P + 8)
    a('v_mul_f32 v%d, s51, v%d' % (LDT, LDT))
    a('v_exp_f32 v%d, v%d' % (LDT, LDT))
    a('s_nop 0')
    a('v_cvt_pk_bf16_f32 v%d, v%d, v%d' % (LDT, LDT, LDT))
    a('v_lshlrev_b32 v%d, 16, v%d' % (LDT, LDT))
    a('v_mul_f32 v%d, v%d, v%d' % (Are, LDT, Are))
    a('v_mul_f32 v%d, v%d, v%d' % (Aim, LDT, Aim))
    a('v_mul_f32 v%d, v%d, v%d' % (Bre, LDT, Bre))
    a('v_mul_f32 v%d, v%d, v%d' % (Bim, LDT, Bim))
    a('v_mul_f32 v%d, s51, v%d' % (Are, Are))
    a('v_mul_f32 v%d, 0.15915494, v%d' % (Aim, Aim))
    G = [32 + 2 * i for i in range(32)]
    W = [96 + 2 * i for i in range(9)]
    Z1, Z2, Z4, Z32 = 114, 116, 118, 120
    ZB = {256: 122, 512: 124, 768: 126, 1024: 128, 1280: 130, 1536: 132, 1792: 134}
    T0, PK, AD = 136, 146, 154
    R = {}
    nxt = 32
    for h in (0, 1):
        for e in ROWS[h]:
            if e is None:
                continue
            if e <= 8:
                R[e] = W[e]
            else:
                R[e] = nxt
                nxt += 2
    cmul_many(a, [(W[0], Cre, Bre)])
    direct = [(Z1, 1.0), (G[1], 8.0), (Z32, 32.0), (ZB[256], 256.0), (ZB[1024], 1024.0)]
    for i, (z, e) in enumerate(direct):
        a('v_mul_f32 v%d, 0x%x, v%d' % (T0 + 2 * i, f2u(e), Are))
        a('v_mul_f32 v%d, 0x%x, v%d' % (T0 + 2 * i + 1, f2u(e), Aim))
    for i, (z, e) in enumerate(direct):
        a('v_exp_f32 v%d, v%d' % (T0 + 2 * i, T0 + 2 * i))
        a('v_fract_f32 v%d, v%d' % (T0 + 2 * i + 1, T0 + 2 * i + 1))
    for i, (z, e) in enumerate(direct):
        a('v_cos_f32 v%d, v%d' % (z, T0 + 2 * i + 1))
        a('v_sin_f32 v%d, v%d' % (z + 1, T0 + 2 * i + 1))
    a('v_mov_b32 v%d, 1.0' % G[0])
    a('v_mov_b32 v%d, 0' % (G[0] + 1))
    for i, (z, e) in enumerate(direct):
        a('v_mul_f32 v%d, v%d, v%d' % (z, z, T0 + 2 * i))
        a('v_mul_f32 v%d, v%d, v%d' % (z + 1, z + 1, T0 + 2 * i))
    cmul_many(a, [(G[2], G[1], G[1]), (Z2, Z1, Z1), (W[1], W[0], Z1), (W[8], W[0], G[1]), (ZB[512], ZB[256], ZB[256]),
                  (ZB[1280], ZB[1024], ZB[256]), (G[5], G[1], Z32)])
    a('v_mov_b32 v%d, v%d' % (G[4], Z32))
    a('v_mov_b32 v%d, v%d' % (G[4] + 1, Z32 + 1))
    cmul_many(a, [(G[3], G[2], G[1]), (Z4, Z2, Z2), (W[2], W[0], Z2), (W[3], W[1], Z2), (ZB[768], ZB[512], ZB[256]),
                  (ZB[1536], ZB[1024], ZB[512]), (G[6], G[2], Z32)])
    cmul_many(a, [(G[7], G[3], Z32), (W[4], W[0], Z4), (W[5], W[1], Z4), (W[6], W[2], Z4), (W[7], W[3], Z4),
                  (ZB[1792], ZB[1024], ZB[768])])
    for i0 in range(8, 32, 4):
        cmul_many(a, [(G[i], G[i - 4], Z32) for i in range(i0, i0 + 4)])
    nvalu = len(a.L)
    for c in range(8):
        a('v_xor_b32 v%d, %d, v13' % (AD + c, c << 4))
    rowidx = [None] * 32
    for h in (0, 1):
        for r in range(16):
            rowidx[8 * (r >> 2) + 4 * h + (r & 3)] = ROWS[h][r]
    nput = [0]

    def put(c, regs, neg, off):
        pk = PK + 4 * (nput[0] & 1)
        nput[0] += 1
        for j in range(4):
            a('v_cvt_pk_bf16_f32 v%d, %sv%d, %sv%d' % (pk + j, neg, regs[2 * j], neg, regs[2 * j + 1]))
        a('ds_write_b128 v%d, %s%s' % (AD + c, vr(pk, 4), off))

    for c in range(8):
        put(c, [G[8 * (c & 3) + j] + (c >> 2) for j in range(8)], '', '')
    big = [e for e in R if e > 8]
    items = [(R[e], W[e & 255], ZB[e & ~255]) for e in big]
    for i0 in range(0, len(items), 5):
        cmul_many(a, items[i0:i0 + 5])
    for c in range(8):
        comp = c >> 2
        regs = [(R[e] if e is not None else W[0]) + comp for e in rowidx[8 * (c & 3):8 * (c & 3) + 8]]
        put(c, regs, '-' if comp else '', ' offset:8192')
    a('s_waitcnt lgkmcnt(0)')
    KD, FR, NB = 32, 48, 4

    def gen_reads(s):
        off = s * 1024
        b = FR + 8 * (s % NB)
        a('ds_read_b64_tr_b16 %s, v14 offset:%d' % (vr(b, 2), off + 8192))
        a('ds_read_b64_tr_b16 %s, v15 offset:%d' % (vr(b + 2, 2), off + 8192))
        a('ds_read_b64_tr_b16 %s, v14 offset:%d' % (vr(b + 4, 2), off))
        a('ds_read_b64_tr_b16 %s, v15 offset:%d' % (vr(b + 6, 2), off))

    for s in range(3):
        gen_reads(s)
    for s in range(8):
        if s + 3 < 8:
            gen_reads(s + 3)
        a('s_waitcnt lgkmcnt(%d)' % (4 * min(3, 7 - s)))
        b = FR + 8 * (s % NB)
        a(mfma(KD, b, b + 4, None if s == 0 else KD))
    a('s_nop 15')
    for j in range(4):
        a('ds_write_b128 v16, %s offset:%d' % (vr(KD + 4 * j, 4), 1024 * j))
    a('s_waitcnt lgkmcnt(0)')
    return a.L, nvalu


def transpose_addrs(a, sw, vrd, vwr, vlin, t0, t1, usi, uso):
    a('''v_lshrrev_b32 v{t0}, 4, v4
v_bfe_u32 v{t1}, v4, 2, 2
v_lshl_add_u32 v{t1}, v{t0}, 3, v{t1}
v_lshlrev_b32 v{rd}, 7, v{t1}
v_and_b32 v{t1}, 3, v4
v_lshl_add_u32 v{rd}, v{t1}, 3, v{rd}
s_lshl_b32 s66, s{w}, 5
s_add_u32 s66, s66, {usi}
v_add_u32 v{rd}, s66, v{rd}
v_and_b32 v{t1}, 7, v4
v_xor_b32 v{t0}, v{t0}, v{t1}
v_lshlrev_b32 v{t0}, 4, v{t0}
v_and_b32 v{t1}, 15, v4
v_lshl_add_u32 v{wr}, v{t1}, 7, v{t0}
s_lshl_b32 s66, s{w}, 11
s_add_u32 s66, s66, {uso}
v_add_u32 v{wr}, s66, v{wr}
v_lshl_add_u32 v{lin}, v4, 4, s66
v_lshrrev_b32 v{t0}, 3, v4
v_and_b32 v{t1}, 7, v4
v_xor_b32 v{t1}, v{t1}, v{t0}'''.format(t0=t0, t1=t1, rd=vrd, wr=vwr, lin=vlin, w=sw, usi=usi, uso=uso))


def transpose_a(a, vrd, vwr, d, t):
    a('''ds_read_b64_tr_b16 v[{d0}:{d1}], v{rd}
ds_read_b64_tr_b16 v[{d2}:{d3}], v{rd} offset:512
ds_read_b64_tr_b16 v[{d4}:{d5}], v{rd} offset:4096
ds_read_b64_tr_b16 v[{d6}:{d7}], v{rd} offset:4608
v_xor_b32 v{t}, 64, v{wr}
s_waitcnt lgkmcnt(2)
ds_write_b128 v{wr}, v[{d0}:{d3}]
s_waitcnt lgkmcnt(1)
ds_write_b128 v{t}, v[{d4}:{d7}]
s_waitcnt lgkmcnt(0)'''.format(rd=vrd, wr=vwr, t=t, **{'d%d' % i: d + i for i in range(8)}))


def kernel():
    a = A()
    KN = NAME + '_kernel'
    a('''.p2align 8
.type {k},@function
{k}:
s_cmp_ge_u32 s2, 256
s_cbranch_scc1 L_end
s_load_dwordx16 s[16:31], s[0:1], 8
s_load_dwordx4 s[32:35], s[0:1], 72
s_load_dwordx4 s[36:39], s[0:1], 104'''.format(k=KN))
    stamp(a, 0, True)
    stamp(a, 1)
    a('''v_lshrrev_b32 v3, 6, v0
v_and_b32 v4, 63, v0
s_and_b32 s44, s2, 7
s_lshr_b32 s45, s2, 3
v_readfirstlane_b32 s3, v3
s_lshl_b32 s60, s44, 6
s_lshl_b32 s46, s45, 1
s_add_u32 s60, s60, s46
s_lshl_b32 s46, s60, 8
v_lshl_add_u32 v5, v0, 1, s46
s_lshr_b32 s4, s44, 1
s_lshl_b32 s4, s4, 3
s_and_b32 s46, s45, 7
s_add_u32 s4, s4, s46
s_and_b32 s5, s44, 1
s_lshl_b32 s5, s5, 2
s_lshr_b32 s47, s45, 3
s_add_u32 s5, s5, s47
s_lshl_b32 s47, s47, 1
%s
s_cmp_ge_u32 s3, 4
s_cbranch_scc1 L_gemm''' % {'0': 's_mov_b32 s6, 0', '1': 's_add_u32 s6, s46, s47', '2': 's_and_b32 s6, s46, 4', '3': 's_and_b32 s6, s46, 6'}[OPTV.get('rot', '1')])
    SEG = (1, 2, 0)

    a('''s_lshr_b32 s61, s3, 1
s_add_u32 s52, s60, s61
s_lshl_b32 s46, s52, 1
v_mov_b32 v19, s46
s_and_b32 s53, s3, 1
s_waitcnt lgkmcnt(0)''')
    P = 20
    a('global_load_ushort %s, v19, s[28:29]' % vr(P + 6))
    for i in range(6):
        a('global_load_ushort %s, v5, %s' % (vr(P + i), sr(16 + 2 * i, 2)))
    a('global_load_ushort %s, v19, s[30:31]' % vr(P + 7))
    a('''s_getpc_b64 s[40:41]
v_and_b32 v1, 7, v0
v_lshlrev_b32 v1, 7, v1
s_lshl_b32 s46, s45, 10
v_add_u32 v1, s46, v1
global_load_dword v2, v1, s[40:41]''')
    srd(a, 8, 38, WS_BYTES)
    srd(a, 12, 36, 256)
    a('''v_mov_b32 v18, 0
s_or_b32 s46, s2, s3
s_cmp_eq_u32 s46, 0
s_cbranch_scc0 L_notag
s_memrealtime s[46:47]
s_waitcnt lgkmcnt(0)
s_or_b32 s46, s46, 1
v_mov_b32 v1, s46
s_mov_b64 exec, 1
buffer_store_dword v1, v18, s[12:15], 0 offen sc1
s_mov_b64 exec, -1
s_waitcnt vmcnt(0)
L_notag:''')
    a('''s_lshl_b32 s62, s3, 14
s_add_u32 s62, s62, %d
v_and_b32 v10, 7, v4
v_lshlrev_b32 v10, 4, v10
v_lshl_add_u32 v13, v4, 7, v10
v_add_u32 v13, s62, v13
v_lshrrev_b32 v10, 5, v4
v_bfe_u32 v11, v4, 3, 1
v_lshl_add_u32 v10, v10, 2, v11
v_bfe_u32 v11, v4, 2, 1
v_lshlrev_b32 v11, 2, v11
v_bfe_u32 v12, v4, 4, 1
v_lshl_add_u32 v11, v12, 1, v11
v_bfe_u32 v12, v4, 1, 1
v_add_u32 v11, v11, v12
v_xor_b32 v11, v11, v10
v_lshlrev_b32 v11, 4, v11
v_lshl_add_u32 v11, v10, 7, v11
v_and_b32 v12, 1, v4
v_lshl_add_u32 v11, v12, 3, v11
v_add_u32 v14, s62, v11
v_xor_b32 v15, 32, v14
v_add_u32 v15, 256, v15
v_lshl_add_u32 v16, v4, 4, s62
v_xor_b32 v17, 0x4000, v16
v_mov_b32 v12, %d
s_mov_b32 s51, 0x%x''' % (GEN, CNT, f2u(LOG2E)))
    p1, nvalu = kgen_stream()
    sizes = [int(x) for x in OPTV.get('sl', '80,140,31').split(',')]
    cuts = [0]
    for z in sizes:
        cuts.append(min(len(p1), cuts[-1] + z))
    print('kgen instructions', len(p1), 'pure valu', nvalu, cuts, file=sys.stderr)
    a('s_load_dwordx4 s[32:35], s[0:1], 88')
    stamp(a, 2)
    a('s_waitcnt vmcnt(1) lgkmcnt(0)')
    for c in range(16):
        if c < len(sizes):
            a.L += p1[cuts[c]:cuts[c + 1]]
        if c == 8:
            a('buffer_load_dword v1, v18, s[12:15], 0 offen sc1')
        if c == 14:
            a('s_waitcnt vmcnt(0)')
            tag_check(a, 1, 18, 12)
            a('''v_cmp_eq_u32 vcc, 0, v4
v_lshl_add_u32 v2, v4, 2, v12
s_cmp_eq_u32 s3, 0
v_cndmask_b32 v1, 0, v1, vcc
s_cbranch_scc0 L_tagd
ds_write_b32 v2, v1
s_waitcnt lgkmcnt(0)
L_tagd:''')
        a('s_barrier')
    a('s_barrier')
    stamp(a, 3)
    a('s_setprio 3')
    a('''s_lshl_b32 s46, s3, 11
s_add_u32 s46, s46, %d
v_lshl_add_u32 v6, v4, 4, s46
ds_read_b128 v[8:11], v6
ds_read_b128 v[28:31], v6 offset:1024
v_lshrrev_b32 v6, 3, v4
v_and_b32 v7, 7, v4
v_xor_b32 v7, v7, v6
v_mul_u32_u24 v6, %d, v6
v_lshl_add_u32 v6, v7, 4, v6
s_mul_i32 s46, s44, %d
s_mul_i32 s47, s3, %d
s_add_u32 s46, s46, s47
s_lshl_b32 s47, s45, 7
s_add_u32 s46, s46, s47
s_add_u32 s46, s46, %d
s_add_u32 s47, s46, %d
s_lshl_b32 s65, s44, 5
s_add_u32 s65, s65, s45
s_lshl_b32 s65, s65, 6
s_add_u32 s65, s65, %d
s_waitcnt lgkmcnt(1)
buffer_store_dwordx4 v[8:11], v6, s[8:11], s46 offen sc1
s_waitcnt lgkmcnt(0)
buffer_store_dwordx4 v[28:31], v6, s[8:11], s47 offen sc1''' % (USO, RS, 64 * RS, 16 * RS, UT, 8 * RS, FLU))
    srd(a, 16, 34, 2048 * 2048)
    srd(a, 12, 32, 512 * 1024)
    a.L += p1[cuts[-1]:]
    a('s_waitcnt vmcnt(0)')
    arrive_publish(a, 12, 1, C_U, 4, 65, 2)
    a('s_lshl_b32 s63, s61, 2')
    a('v_add_u32 v11, s63, v12')
    lds_add(a, 11, 1, C_PAIR)
    KD = 32
    a('''v_and_b32 v28, 31, v4
v_lshrrev_b32 v29, 5, v4
s_lshl_b32 s46, s53, 6
s_add_u32 s46, s46, s62
s_add_u32 s46, s46, %d
v_lshlrev_b32 v10, 4, v28
v_sub_u32 v18, s46, v10
v_and_b32 v10, 1, v4
v_cmp_eq_u32 s[54:55], 1, v10
v_cmp_eq_u32 s[56:57], 0, v4
s_mov_b32 s58, -1
s_mov_b32 s59, 0
s_mov_b32 s40, 0
s_mov_b32 s41, -1''' % (KCOPY + 255 * 16))
    for sl, (b0, b1) in enumerate([(0, 32), (128, 64), (160, 96), (192, 224)]):
        a('v_mul_i32_i24 v10, %d, v29' % ((b1 - b0) * 16))
        a('v_sub_u32 v%d, v18, v10' % (80 + sl))
        if b0:
            a('v_subrev_u32 v%d, %d, v%d' % (80 + sl, b0 * 16, 80 + sl))
    a('''v_lshl_add_u32 v87, v4, 4, s46
v_add_u32 v87, 16, v87
s_lshl_b32 s64, s61, 15
s_add_u32 s64, s64, %d
s_lshl_b32 s47, s53, 1
v_add_u32 v10, s47, v29
v_mul_u32_u24 v10, 1536, v10
v_lshl_add_u32 v10, v28, 4, v10
v_add_u32 v10, s64, v10
v_mov_b32 v88, 0
v_mov_b32 v89, 0
v_mov_b32 v90, 0
v_mov_b32 v91, 0''' % (GEN + UIMG))
    lds_spin(a, 11, 1, C_PAIR, 2)
    a('ds_write_b128 v10, v[88:91]')
    for j in range(4):
        a('ds_read_b128 %s, v17 offset:%d' % (vr(48 + 4 * j, 4), 1024 * j))
    a('v_cndmask_b32 v9, 0, v27, s[56:57]')
    a('v_add_f32 v%d, v%d, v9' % (KD, KD))
    a('s_waitcnt lgkmcnt(0)')
    for j in range(16):
        a('v_add_f32 v%d, v%d, v%d' % (KD + j, KD + j, 48 + j))
    for i, r in enumerate((9, 11, 13)):
        a('v_cndmask_b32 v%d, v%d, v%d, s[54:55]' % (84 + i, KD + r, KD + r + 1))
    OB = 64

    def pack(dst, vals):
        for j in range(4):
            a('v_cvt_pk_bf16_f32 v%d, v%d, v%d' % (dst + j, vals[2 * j], vals[2 * j + 1]))

    def emit_copy(cp):
        k = lambda r: KD + r
        r0 = [k(i) for i in range(9)]
        r1 = [k(0), k(0), k(1), k(2), k(2), k(2), k(3), k(4), k(4)]
        r2 = lambda b: [k(b), k(b), k(b), k(b + 1), k(b + 1), k(b + 1), k(b + 2), k(b + 2), k(b + 2)]
        r3 = lambda b, x: [k(b)] * 4 + [x] + [k(b + 1)] * 4
        sel = (lambda p: p[8:0:-1]) if cp == 0 else (lambda p: p[7::-1])
        a('s_mov_b64 exec, s[58:59]')
        pack(OB, sel(r0))
        pack(OB + 4, sel(r3(9, 84)))
        pack(OB + 8, sel(r3(11, 85)))
        pack(OB + 12, sel(r3(13, 86)))
        a('s_mov_b64 exec, s[40:41]')
        pack(OB, sel(r1))
        pack(OB + 4, sel(r2(5)))
        pack(OB + 8, sel(r2(8)))
        pack(OB + 12, sel(r3(11, 85)))
        a('s_mov_b64 exec, -1')
        if cp == 0:
            a('v_cvt_pk_bf16_f32 v10, v%d, v88' % KD)
            a('v_cndmask_b32 v88, 0, v10, s[56:57]')

    a('s_cmp_eq_u32 s53, 0')
    a('s_cbranch_scc0 L_copy1')
    emit_copy(0)
    a('s_branch L_copyd')
    a('L_copy1:')
    emit_copy(1)
    a('L_copyd:')
    for sl in range(4):
        a('ds_write_b128 v%d, %s' % (80 + sl, vr(OB + 4 * sl, 4)))
    a('s_mov_b64 exec, 15')
    a('ds_write_b128 v87, v[88:91]')
    a('s_mov_b64 exec, -1')
    stamp(a, 4)
    a('''v_lshlrev_b32 v6, 6, v28
s_lshl_b32 s46, s44, 11
s_add_u32 s46, s46, %d
s_cmp_eq_u32 s3, 0
s_cbranch_scc0 L_uw''' % FLU)
    flag_poll_lazy(a, 6, 1, 46, 8)
    lds_add(a, 12, 3, C_GOU)
    a('L_uw:')
    lds_spin(a, 12, 3, C_GOU, 1, nap=4)
    a('''v_lshlrev_b32 v6, 6, v4
s_mul_i32 s46, s52, %d
s_lshl_b32 s47, s53, 5
s_add_u32 s46, s46, s47
s_add_u32 s46, s46, %d
s_mul_i32 s47, s53, 3072
s_add_u32 s47, s47, s64
s_add_u32 m0, s47, 512
s_nop 0
buffer_load_dwordx4 v6, s[8:11], s46 offen sc1 lds
s_add_u32 m0, s47, 2048
s_add_u32 s46, s46, 16
buffer_load_dwordx4 v6, s[8:11], s46 offen sc1 lds''' % (RS, UT))
    a('''v_bfe_u32 v18, v4, 4, 1
v_lshlrev_b32 v18, 4, v18
v_bfe_u32 v19, v4, 2, 1
v_lshl_add_u32 v18, v19, 3, v18
v_and_b32 v19, 3, v4
v_lshl_add_u32 v18, v19, 1, v18
v_bfe_u32 v19, v4, 3, 1
v_lshlrev_b32 v24, 3, v29
v_sub_u32 v24, v24, v18
v_add_u32 v24, 32, v24
v_lshlrev_b32 v24, 1, v24
v_mul_u32_u24 v19, %d, v19
v_add_u32 v24, v24, v19
s_add_u32 s46, s64, %d
v_add_u32 v24, s46, v24
s_lshl_b32 s46, s53, 9
s_add_u32 s46, s46, s64
s_add_u32 s46, s46, %d
v_mul_u32_u24 v25, 1536, v29
v_lshl_add_u32 v25, v28, 4, v25
v_add_u32 v25, s46, v25''' % (16384 + 64 - 4, KCOPY - UIMG + 32 * 120, 512 - 3 * 16))
    TB, UB, CA = 32, 40, 48
    CB = 64
    for j in range(32):
        a('v_mov_b32 v%d, 0' % (CA + j))
    a('''s_lshl_b32 s34, s53, 2
s_add_u32 s34, s34, 8
s_mov_b32 s35, 0
s_waitcnt vmcnt(0) lgkmcnt(0)''')
    lds_add(a, 12, 1, C_CONV)
    a('''s_and_b32 s46, s45, 7
s_lshl_b32 s46, s46, 16
s_lshl_b32 s47, s5, 7
s_add_u32 s46, s46, s47
s_lshl_b32 s47, s3, 14
s_add_u32 s46, s46, s47
v_and_b32 v6, 15, v4
v_lshlrev_b32 v6, 10, v6
buffer_load_dword v31, v6, s[12:15], s46 offen''')
    lds_spin(a, 12, 1, C_CONV, 4)
    stamp(a, 5)

    def conv_loop(lab, acc, send):
        a(lab + ':')
        for j in range(8):
            t = TB + 4 * (j & 1)
            a('ds_read2_b32 %s, v24 offset0:%d offset1:%d' % (vr(t, 2), 8 * (7 - j), 8 * (7 - j) + 1))
            a('ds_read2_b32 %s, v24 offset0:%d offset1:%d' % (vr(t + 2, 2), 8 * (7 - j) + 2, 8 * (7 - j) + 3))
            a('ds_read_b128 %s, v25 offset:%d' % (vr(UB + 4 * (j & 1), 4), (3072 if j % 2 == 0 else 0) + (3 - (j >> 1)) * 16))
            a('s_waitcnt lgkmcnt(0)')
            a(mfma(acc, t, UB + 4 * (j & 1), acc))
        a('''v_subrev_u32 v24, 256, v24
v_subrev_u32 v25, 64, v25
s_add_u32 s35, s35, 1
s_cmp_lt_u32 s35, %s
s_cbranch_scc1 %s''' % (send, lab))

    if 'noconv' not in OPT:
        conv_loop('L_cl', CA, 's34')
        a('''s_cmp_eq_u32 s53, 0
s_cbranch_scc0 L_cr
v_subrev_u32 v24, 1024, v24
v_add_u32 v25, 256, v25''')
        conv_loop('L_cm', CB, '12')
        a('s_nop 11')
        for j in range(4):
            a('ds_write_b128 v16, %s offset:%d' % (vr(CB + 4 * j, 4), 1024 * j))
        a('s_waitcnt lgkmcnt(0)')
        lds_add(a, 11, 1, C_PAIR)
        a('s_branch L_cd')
        a('L_cr:')
        lds_spin(a, 11, 1, C_PAIR, 3, nap=2)
        for j in range(4):
            a('ds_read_b128 %s, v17 offset:%d' % (vr(CB + 4 * j, 4), 1024 * j))
        a('s_waitcnt lgkmcnt(0)')
        for j in range(16):
            a('v_add_f32 v%d, v%d, v%d' % (CA + j, CA + j, CB + j))
        a('L_cd:')
    stamp(a, 6)
    a('''s_nop 0
s_mul_i32 s46, s52, %d
s_lshl_b32 s47, s53, 11
s_add_u32 s46, s46, s47
s_add_u32 s46, s46, %d
v_lshlrev_b32 v6, 6, v28
v_lshl_add_u32 v6, v29, 4, v6
s_lshl_b32 s47, s53, 9
s_add_u32 s47, s47, s52
s_lshl_b32 s47, s47, 6
s_add_u32 s47, s47, %d
v_mov_b32 v1, s7
v_mov_b32 v2, 0''' % (RS, YT, FL3))
    for s in range(2):
        for i in range(4):
            a('v_cvt_pk_bf16_f32 v%d, v%d, v%d' % (32 + 4 * s + i, CA + 8 * s + i, CA + 8 * s + 4 + i))
    a('''buffer_store_dwordx4 v[32:35], v6, s[8:11], s46 offen sc1
buffer_store_dwordx4 v[36:39], v6, s[8:11], s46 offen offset:32 sc1
s_waitcnt vmcnt(0) lgkmcnt(0)
s_mov_b64 exec, 1
buffer_store_dword v1, v2, s[8:11], s47 offen sc1
s_mov_b64 exec, -1''')
    a('''v_lshrrev_b32 v6, 3, v4
v_lshlrev_b32 v6, 10, v6
v_bfe_u32 v7, v4, 4, 1
v_lshlrev_b32 v7, 2, v7
v_and_b32 v8, 7, v4
v_xor_b32 v7, v7, v8
v_lshl_add_u32 v6, v7, 4, v6
s_lshl_b32 s23, s53, 10
s_lshl_b32 s24, s61, 11
s_add_u32 s24, s23, s24
s_lshl_b32 s26, s5, 7
s_lshl_b32 s27, s53, 13
s_add_u32 s26, s26, s27
s_lshl_b32 s27, s61, 14
s_add_u32 s26, s26, s27
s_nop 0''')
    for c in range(8):
        a('s_add_u32 s38, s5, %d' % c)
        a('s_and_b32 s38, s38, 7')
        a('s_lshl_b32 s30, s38, 16')
        a('s_add_u32 m0, s24, %d' % (c * 4096))
        a('s_add_u32 s30, s30, s26')
        if 'nowo' in OPT:
            continue
        a('buffer_load_dwordx4 v6, s[12:15], s30 offen lds')
        a('s_add_u32 m0, s24, %d' % (32768 + c * 4096))
        a('s_add_u32 s30, s30, 0x8000')
        a('buffer_load_dwordx4 v6, s[12:15], s30 offen lds')
        a('s_waitcnt vmcnt(%s)' % OPTV.get('wot', '2'))
    stamp(a, 7)
    a('''v_lshlrev_b32 v6, 6, v4
s_lshr_b32 s46, s4, 4
s_lshl_b32 s46, s46, 15
s_lshl_b32 s47, s5, 12
s_add_u32 s46, s46, s47
s_add_u32 s46, s46, %d
s_cmp_eq_u32 s3, 0
s_cbranch_scc0 L_yw''' % FL3)
    flag_poll_lazy(a, 6, 1, 46, 32)
    lds_add(a, 12, 3, C_GOY)
    a('L_yw:')
    transpose_addrs(a, 3, 20, 21, 22, 8, 9, USI, USO)
    a('''v_mul_u32_u24 v10, %d, v8
v_and_b32 v11, 7, v4
v_lshl_add_u32 v10, v11, 4, v10
v_add_u32 v11, %d, v10
s_mul_i32 s46, s5, %d
s_mul_i32 s47, s3, %d
s_add_u32 s46, s46, s47
s_lshl_b32 s47, s4, 7
s_add_u32 s46, s46, s47
s_add_u32 s46, s46, %d
s_lshl_b32 s47, s3, 11
s_add_u32 s47, s47, %d''' % (RS, 8 * RS - 1024, 64 * RS, 16 * RS, YT, USI))
    lds_spin(a, 12, 3, C_GOY, 1, nap=8)
    a('''s_mov_b32 m0, s47
v_lshlrev_b32 v8, 11, v8
buffer_load_dwordx4 v10, s[8:11], s46 offen sc1 lds
buffer_load_dwordx4 v11, s[8:11], s46 offen offset:1024 sc1 lds
v_lshl_add_u32 v8, v9, 4, v8
s_lshl_b32 s46, s4, 17
s_lshl_b32 s47, s3, 15
s_add_u32 s46, s46, s47
s_lshl_b32 s47, s5, 7
s_add_u32 s46, s46, s47
s_add_u32 s47, s46, 0x4000
s_waitcnt vmcnt(0)''')
    lds_add(a, 12, 1, C_Y)
    lds_spin(a, 12, 1, C_Y, 4)
    transpose_a(a, 20, 21, 32, 23)
    a('''ds_read_b128 v[32:35], v22
ds_read_b128 v[36:39], v22 offset:1024
s_waitcnt lgkmcnt(1)
buffer_store_dwordx4 v[32:35], v8, s[16:19], s46 offen nt
s_waitcnt lgkmcnt(0)
buffer_store_dwordx4 v[36:39], v8, s[16:19], s47 offen nt''')
    lds_add(a, 12, 1, C_Y2)
    stamp(a, 8)
    a('s_waitcnt lgkmcnt(0)')
    stamp(a, 12)
    stamp_dump(a)
    a('s_endpgm')

    a('''L_gemm:
s_cmp_ge_u32 s3, 8
s_cbranch_scc1 L_mm
s_setprio 2
s_sub_u32 s61, s3, 4
v_lshrrev_b32 v10, 3, v4
v_lshrrev_b32 v11, 4, v4
v_and_b32 v12, 7, v4
v_xor_b32 v13, v12, v11
s_lshl_b32 s47, s61, 4
v_add_u32 v10, s47, v10
s_lshl_b32 s46, s4, 16
v_lshl_add_u32 v14, v10, 10, s46
v_lshl_add_u32 v6, v13, 4, v14
v_xor_b32 v7, 64, v6
v_add_u32 v7, 0x1c00, v7
v_lshlrev_b32 v16, 10, v10
v_lshl_add_u32 v16, v12, 4, v16
v_mul_u32_u24 v10, 3072, v10
v_and_b32 v11, 1, v11
v_lshlrev_b32 v11, 2, v11
v_xor_b32 v12, v12, v11
v_lshl_add_u32 v8, v12, 4, v10
s_lshl_b32 s46, s5, 7
v_add_u32 v8, s46, v8
v_add_u32 v9, %d, v8
s_lshl_b32 s48, s61, 11
s_waitcnt lgkmcnt(0)''' % (8 * 3072 - 1024))
    srd(a, 16, 32, 2048 * 1024)
    srd(a, 12, 34, 512 * 3072)

    def dma_chunk(c):
        slot = (c % 6) * 16384
        if c < 8:
            a('s_add_u32 s50, s6, %d' % c)
            a('s_and_b32 s50, s50, 7')
            a('s_mul_i32 s49, s50, %d' % (64 * 3072))
            a('s_add_u32 m0, s48, %d' % slot)
            a('s_lshl_b32 s50, s50, 7')
            a('buffer_load_dwordx4 v6, s[16:19], s50 offen lds')
            a('buffer_load_dwordx4 v7, s[16:19], s50 offen offset:1024 lds')
            a('s_add_u32 m0, s48, %d' % (slot + 8192))
            a('s_add_u32 s49, s49, %d' % (SEG[0] * 1024))
            a('buffer_load_dwordx4 v8, s[12:15], s49 offen lds')
            a('buffer_load_dwordx4 v9, s[12:15], s49 offen offset:1024 lds')
        else:
            p, j = 1 + ((c - 8) >> 2), (c - 8) & 3
            for hf in range(2):
                a('s_add_u32 s50, s6, %d' % (2 * j + hf))
                a('s_and_b32 s50, s50, 7')
                a('s_mul_i32 s49, s50, %d' % (64 * 3072))
                a('s_add_u32 m0, s48, %d' % (slot + hf * 8192))
                a('s_add_u32 s49, s49, %d' % (SEG[p] * 1024))
                a('buffer_load_dwordx4 v8, s[12:15], s49 offen lds')
                a('buffer_load_dwordx4 v9, s[12:15], s49 offen offset:1024 lds')

    dma_chunk(0)
    dma_chunk(1)
    a('s_load_dwordx2 s[20:21], s[0:1], 0')
    srd(a, 8, 38, WS_BYTES)
    transpose_addrs(a, 61, 20, 21, 22, 23, 24, USI, USO)
    a('''s_lshl_b32 s46, s45, 16
s_lshl_b32 s47, s44, 7
s_add_u32 s52, s46, s47
v_add_u32 v17, 0x1c00, v16
v_mov_b32 v12, %d
s_waitcnt lgkmcnt(0)''' % CNT)
    srd(a, 24, 20, 2048 * 1024)
    order = [0, 1]
    cnt = lambda x: 4 if isinstance(x, int) else x[1]
    stamp(a, 2)
    for c in range(16):
        a('s_waitcnt vmcnt(%d)' % (sum(cnt(x) for x in order[order.index(c) + 1:]) if c < 15 else 0))
        if c in (0, 8, 12):
            stamp(a, {0: 3, 8: 4, 12: 5}[c])
        a('s_barrier')
        for n in {0: [2, 3], 1: [4, 5]}.get(c, [c + 4] if c + 4 < 16 else []):
            dma_chunk(n)
            order.append(n)
        if c == 13:
            a('s_add_u32 m0, s48, %d' % USI)
            a('s_nop 0')
            a('buffer_load_dwordx4 v16, s[24:27], s52 offen lds')
            a('buffer_load_dwordx4 v17, s[24:27], s52 offen offset:1024 lds')
            order.append(('u', 2))
        if c == 15:
            transpose_a(a, 20, 21, 32, 25)
    a('''s_barrier
ds_read_b32 v1, v12 offset:%d
s_waitcnt lgkmcnt(0)
v_readfirstlane_b32 s7, v1''' % C_TAG)
    a('s_branch L_att')

    XA, WA, OA, OV = 160, 164, 165, 166
    XR, ACC = 0, 128
    WF = [144, 148, 152, 156]
    a('''L_mm:
%s
s_setprio 3
s_and_b32 s52, s3, 1
s_bfe_u32 s53, s3, 0x10001
v_and_b32 v10, 31, v4
v_bfe_u32 v11, v4, 1, 3
v_lshrrev_b32 v12, 5, v4
v_xor_b32 v11, v11, v12
v_lshlrev_b32 v11, 4, v11
v_lshl_add_u32 v10, v10, 7, v11
s_lshl_b32 s46, s52, 12
v_add_u32 v%d, s46, v10''' % ('s_memrealtime s[70:71]' if 'dbgt' in OPT else '', XA))
    for jq in range(1, 4):
        a('v_xor_b32 v%d, %d, v%d' % (XA + jq, jq << 5, XA))
    a('''v_lshlrev_b32 v10, 10, v12
v_bfe_u32 v11, v4, 2, 2
v_lshl_add_u32 v10, v11, 7, v10
v_bfe_u32 v11, v4, 3, 1
v_xor_b32 v11, s53, v11
v_lshl_add_u32 v10, v11, 6, v10
v_bfe_u32 v11, v4, 4, 1
v_lshl_add_u32 v10, v11, 5, v10
v_and_b32 v11, 3, v4
v_lshl_add_u32 v%d, v11, 3, v10''' % WA)
    a('''s_lshl_b32 s46, s4, 1
s_add_u32 s46, s46, s52
s_lshl_b32 s46, s46, 10
s_lshl_b32 s47, s5, 1
s_add_u32 s47, s47, s53
s_lshl_b32 s47, s47, 17
s_add_u32 s46, s46, s47
v_lshl_add_u32 v%d, v4, 4, s46
v_bfe_u32 v11, v4, 4, 1
v_lshlrev_b32 v11, 16, v11
v_lshl_add_u32 v11, v12, 8, v11
v_and_b32 v10, 15, v4
v_lshl_add_u32 v11, v10, 4, v11
v_add_u32 v%d, s46, v11
v_mov_b32 v167, v4
s_mov_b32 s62, 0x%x
s_mov_b32 s64, %d
s_mov_b32 s65, %d
s_mov_b32 s63, %d
s_lshl_b32 s54, s52, 12
s_lshl_b32 s47, s53, 11
s_add_u32 s54, s54, s47
s_add_u32 s54, s54, %d
s_lshl_b32 s56, s5, 6
s_add_u32 s56, s56, %d
s_lshl_b32 s55, s4, 9
s_add_u32 s55, s55, s56
s_waitcnt lgkmcnt(0)''' % (OA, OV, f2u(QSCALE), KF, KF + 65536, VF, QX, FL1))
    srd(a, 8, 38, WS_BYTES)
    if 'nowpf' not in OPT:
        srd(a, 12, 34, 512 * 3072)
        a('''s_cmp_ge_u32 s3, 10
s_cbranch_scc1 L_nopf
v_mul_u32_u24 v10, 3072, v4
s_and_b32 s46, s4, 7
s_mul_i32 s46, s46, %d
s_lshl_b32 s47, s5, 7
s_add_u32 s46, s46, s47
s_xor_b32 s47, s52, 1
s_lshl_b32 s47, s47, 11
s_add_u32 s46, s46, s47
%s
buffer_load_dword v%d, v10, s[12:15], s46 offen
L_nopf:''' % (64 * 3072, 's_sleep %s' % OPTV['wps'] if 'wps' in OPTV else '', 127))
    PD = 3

    def chunk_of(s):
        p, kk = s >> 5, s & 31
        return (kk >> 2, kk & 3) if p == 0 else (8 + 4 * (p - 1) + (kk >> 3), kk & 7)

    def nreads(s):
        return 0 if s >= 96 else (3 if s < 32 else 2)

    def reads(s):
        c, j = chunk_of(s)
        if j == 0:
            a('s_barrier')
            if c == 0:
                stamp(a, 2)
                if 'dbgt' in OPT:
                    a('s_memrealtime s[72:73]')
            if c == 6:
                a('s_waitcnt vmcnt(0)')
            if c % 3 == 0 and c > 0:
                op = 'v_add_u32' if c % 6 == 3 else 'v_subrev_u32'
                for r in ([XA, XA + 1, XA + 2, XA + 3] if c < 8 else []) + [WA]:
                    a('%s v%d, 0xc000, v%d' % (op, r, r))
        so = (c % 3) * 16384
        if c < 8:
            a('ds_read_b128 %s, v%d offset:%d' % (vr(XR + 4 * s, 4), XA + j, so))
            so += 8192
        for rd in range(2):
            a('ds_read_b64_tr_b16 %s, v%d offset:%d' % (vr(WF[s % 4] + 2 * rd, 2), WA, so + j * 2048 + rd * 512))

    def epilogue(p):
        lo, hi = vr(ACC, 4), vr(ACC + 4, 4)
        if SEG[p] == 0:
            a('v_mov_b32 v4, v167')
            a('v_lshl_add_u32 v10, v167, 4, s54')
            a('s_nop 13')
            for i in range(16):
                a('v_mul_f32 v%d, s62, v%d' % (ACC + i, ACC + i))
        else:
            a('s_nop 15')
        for j in range(8):
            a('v_cvt_pk_bf16_f32 v%d, v%d, v%d' % (ACC + j, ACC + 2 * j, ACC + 2 * j + 1))
        if SEG[p] == 0:
            a('ds_write_b128 v10, %s' % lo)
            a('ds_write_b128 v10, %s offset:1024' % hi)
        elif SEG[p] == 1:
            a('buffer_store_dwordx4 %s, v%d, s[8:11], s64 offen sc1' % (lo, OA))
            a('buffer_store_dwordx4 %s, v%d, s[8:11], s65 offen sc1' % (hi, OA))
        else:
            a('buffer_store_dwordx4 %s, v%d, s[8:11], s63 offen sc1' % (lo, OV))
            a('buffer_store_dwordx4 %s, v%d, s[8:11], s63 offen offset:512 sc1' % (hi, OV))

    for s in range(PD):
        reads(s)
    for s in range(96):
        p, kk = s >> 5, s & 31
        if s + PD < 96:
            reads(s + PD)
        a('s_waitcnt lgkmcnt(%d)' % sum(nreads(t) for t in range(s + 1, s + PD + 1)))
        x, w = XR + 4 * kk, WF[s % 4]
        if SEG[p] == 2:
            a(mfma(ACC, x, w, None if kk == 0 else ACC))
        else:
            a(mfma(ACC, w, x, None if kk == 0 else ACC))
        if s == 80:
            a('v_mov_b32 v12, %d' % CNT)
            a('ds_read_b32 v1, v12 offset:%d' % C_TAG)
            a('s_waitcnt vmcnt(0) lgkmcnt(0)')
            a('v_readfirstlane_b32 s7, v1')
            arrive_publish(a, 12, 1, C_KV, 4, 55, 2)
            if 'rt' in OPT:
                stamp(a, 2)
        if kk == 31:
            stamp(a, 3 + p)
            epilogue(p)
    a('''s_waitcnt lgkmcnt(0)
s_barrier
s_cmp_eq_u32 s3, 8
s_cbranch_scc0 L_att
v_and_b32 v6, 31, v4
v_lshlrev_b32 v6, 9, v6''')
    if 'p2' not in OPT:
        flag_poll_lazy(a, 6, 1, 56, 1)
    else:
        flag_poll(a, 6, 1, 2, 56)
    lds_add(a, 12, 3, C_GO)

    S = [16, 32]
    Pp = [48, 56]
    O = [64, 80]
    Q = [96, 100]
    DK = int(OPTV.get('dk', 3))
    NB, NBV = DK + 1, DK + 1 if DK == 3 else DK
    K = [104 + 4 * b for b in range(NB)]
    V0 = 104 + 4 * NB
    V = [[V0 + 8 * b, V0 + 4 + 8 * b] for b in range(NBV)]
    KA, VA = 14, 15
    assert V0 + 8 * NBV <= 152
    a('''L_att:
s_lshr_b32 s19, s3, 3
s_and_b32 s18, s3, 1
s_lshl_b32 s24, s19, 1
s_add_u32 s18, s18, s24
s_bfe_u32 s24, s3, 0x10001
v_lshlrev_b32 v5, 4, v4
s_lshl_b32 s26, s18, 10
s_add_u32 s26, s26, %d
v_add_u32 v6, s26, v5
ds_read_b128 %s, v6
ds_read_b128 %s, v6 offset:4096
s_lshl_b32 s27, s5, 2
s_add_u32 s18, s18, s27
s_lshl_b32 s22, s18, 16
s_add_u32 s27, s22, %d
v_add_u32 v%d, s27, v5
s_lshl_b32 s36, s24, 10
s_mov_b32 s37, s36
v_lshrrev_b32 v6, 5, v4
v_and_b32 v7, 15, v4
v_lshlrev_b32 v7, 4, v7
v_lshl_add_u32 v7, v6, 8, v7
s_add_u32 s27, s22, %d
v_add_u32 v%d, s27, v7
v_and_b32 v6, 31, v4
v_cmp_eq_u32 vcc, 16, v6
v_cmp_eq_u32 s[28:29], 20, v6
s_mov_b32 s30, 0x3f803f80
s_or_b64 vcc, vcc, s[28:29]
v_mov_b32 v7, s30
s_mov_b32 s40, 0xffff
s_mov_b32 s41, 0xffff
v_cndmask_b32 v6, 0, v7, vcc''' % (QX, vr(Q[0], 4), vr(Q[1], 4), KF, KA, VF, VA))
    for b in range(NBV):
        for u in range(2):
            for j in range(4):
                a('v_mov_b32 v%d, v6' % (V[b][u] + j))
    for q in range(2):
        for j in range(16):
            a('v_mov_b32 v%d, 0' % (O[q] + j))

    def rdk(i):
        return ['buffer_load_dwordx4 %s, v%d, s[8:11], s36 offen sc1' % (vr(K[i % NB], 4), KA),
                's_add_u32 s36, s36, 2048']

    def rdv(i):
        return ['s_mov_b64 exec, s[40:41]',
                'buffer_load_dwordx4 %s, v%d, s[8:11], s37 offen sc1' % (vr(V[i % NBV][0], 4), VA),
                'buffer_load_dwordx4 %s, v%d, s[8:11], s37 offen offset:512 sc1' % (vr(V[i % NBV][1], 4), VA),
                's_mov_b64 exec, -1', 's_add_u32 s37, s37, 2048']

    a('''s_and_b32 s48, s3, 1
s_bfe_u32 s49, s3, 0x10001
v_lshrrev_b32 v8, 5, v4
v_bfe_u32 v152, v4, 2, 2
v_lshl_add_u32 v152, v8, 2, v152
v_lshlrev_b32 v152, 7, v152
v_bfe_u32 v9, v4, 3, 1
v_lshl_add_u32 v152, v9, 6, v152
v_and_b32 v9, 1, v4
v_lshl_add_u32 v152, v9, 5, v152
v_bfe_u32 v9, v4, 4, 1
v_lshl_add_u32 v152, v9, 4, v152
v_bfe_u32 v9, v4, 1, 1
v_lshl_add_u32 v152, v9, 3, v152
s_lshl_b32 s26, s49, 14
v_add_u32 v152, s26, v152
v_xor_b32 v153, 64, v152
v_and_b32 v154, 31, v4
v_lshlrev_b32 v154, 11, v154
v_lshl_add_u32 v154, v8, 5, v154
s_lshl_b32 s26, s4, 17
s_lshl_b32 s50, s48, 16
s_add_u32 s26, s26, s50
s_lshl_b32 s27, s5, 7
s_add_u32 s26, s26, s27
s_lshl_b32 s50, s49, 6
s_add_u32 s50, s50, s26
s_add_u32 s50, s50, 1024
s_lshl_b32 s51, s49, 2
s_add_u32 s51, s51, s5
v_and_b32 v155, 3, v4
v_add_u32 v155, s51, v155
v_and_b32 v155, 7, v155
v_lshlrev_b32 v155, 7, v155
s_lshl_b32 s52, s4, 10
s_add_u32 s52, s52, %d
s_lshl_b32 s53, s4, 16
s_lshl_b32 s26, s48, 15
s_add_u32 s53, s53, s26
s_add_u32 s53, s53, %d
s_sub_u32 s26, s3, 4
s_lshl_b32 s27, s26, 12
s_add_u32 s27, s27, %d
v_add_u32 v156, s27, v5
v_xor_b32 v157, 0x2000, v156
s_lshl_b32 s26, s26, 2
v_add_u32 v158, s26, v12
v_xor_b32 v159, 8, v158''' % (FL2, OF, GEN))
    a('''v_and_b32 v13, 7, v4
v_lshlrev_b32 v13, 7, v13
v_bfe_u32 v7, v4, 3, 1
v_lshl_add_u32 v13, v7, 21, v13
s_add_u32 s27, s22, %d
v_add_u32 v13, s27, v13
s_and_b32 s38, s4, 7
s_lshl_b32 s38, s38, 11
s_add_u32 s38, s38, s36
s_waitcnt lgkmcnt(0)''' % KF)
    lds_add(a, 12, 3, C_Q)
    stamp(a, 6)
    lds_spin(a, 12, 3, C_GO, 1)
    stamp(a, 7)
    PF = 'pf' in OPT
    pfl = ['buffer_load_dword v11, v13, s[8:11], s38 offen sc1', 's_add_u32 s38, s38, 0x4000'] if PF else []
    issue = []
    pro = rdk(0) + (['s_add_u32 s38, s38, 0x4000'] if PF else [])
    issue += [('k', 0)]
    if 'hs' in OPTV:
        a('s_cmp_eq_u32 s19, 0')
        a('s_cbranch_scc1 L_hs')
        a('s_sleep %s' % OPTV['hs'])
        a('L_hs:')
    for i in range(1, DK):
        issue += [('k', i), ('v', i - 1), ('v', i - 1)]
        pro += rdk(i) + rdv(i - 1)
    a('\n'.join(pro))
    a('s_setprio 3')
    a('s_waitcnt vmcnt(%d)' % (len(issue) - 1))
    stamp(a, 8)
    if 'dbgt' in OPT:
        a('s_memrealtime s[74:75]')
    a(mfma(S[0], K[0], Q[0], None))
    a('s_nop 7')
    a('s_nop 3')
    PRIO = {7: 2, 15: 1, 23: 0}

    def unit(i, q):
        u = 2 * i + q
        sc, sn = S[u % 2], S[(u + 1) % 2]
        pc, pp = Pp[u % 2], Pp[(u + 1) % 2]
        i1, q1 = (i, 1) if q == 0 else (i + 1, 0)
        i0, q0 = (i - 1, 1) if q == 0 else (i, 0)
        qk = mfma(sn, K[i1 % NB], Q[q1], None)
        pv0 = mfma(O[q0], V[i0 % NBV][0], pp, O[q0])
        pv1 = mfma(O[q0], V[i0 % NBV][1], pp + 4, O[q0])
        e = ['v_exp_f32 v%d, v%d' % (sc + j, sc + j) for j in range(16)]
        c = ['v_cvt_pk_bf16_f32 v%d, v%d, v%d' % (pc + j, sc + 2 * j, sc + 2 * j + 1) for j in range(8)]
        c7prev = 'v_cvt_pk_bf16_f32 v%d, v%d, v%d' % (pp + 7, sn + 14, sn + 15)
        out = [e[0]]
        if q == 1:
            last = max(n for n, x in enumerate(issue) if x in (('k', i + 1), ('v', i)))
            out.append('s_waitcnt vmcnt(%d)' % (len(issue) - 1 - last))
        if u > 0:
            out.append(c7prev)
        if u < 63:
            out.append(qk)
        kl = rdk(i + DK) if q == 0 and i + DK < 32 else []
        vl = rdv(i + DK - 1) if q == 1 and i + DK - 1 < 32 else []
        issue.extend([('k', i + DK)] * bool(kl) + [('v', i + DK - 1)] * 2 * bool(vl))
        out += kl[:1] + vl[:4]
        out += [e[1], e[2], c[0], e[3], e[4], c[1], e[5]]
        if u > 0:
            out.append(pv0)
        out += kl[1:] + vl[4:]
        out += [e[6], c[2], e[7], e[8], c[3], e[9], e[10], c[4]]
        if u > 0:
            out.append(pv1)
        if q == 0 and i in (1, 8, 16) and PF:
            out += pfl
            issue.append(('p',))
        if q == 1 and i in PRIO:
            out.append('s_setprio %d' % PRIO[i])
            if DIAG and 'qs' in OPT:
                n = 3 + i // 8
                out.append('s_memtime s[%d:%d]' % (ST0 + 2 * n, ST0 + 2 * n + 1))
        out += [e[11], e[12], c[5], e[13], e[14], c[6], e[15]]
        return out

    for i in range(32):
        for q in range(2):
            if (i, q) == (31, 0):
                a('''s_and_b32 s26, s3, 3
s_xor_b32 s27, s26, 2
s_mul_i32 s26, s26, 2304
s_add_u32 s26, s26, {ox}
s_mul_i32 s27, s27, 2304
s_add_u32 s27, s27, {ox}
v_add_u32 v6, s26, v5
v_add_u32 v7, s27, v5
v_lshlrev_b32 v8, 2, v4
v_add_u32 v9, s27, v8
v_add_u32 v8, s26, v8
s_sub_u32 s26, s3, 4
s_lshl_b32 s26, s26, 2
v_add_u32 v10, s26, v12
s_xor_b32 s26, s26, 8
v_add_u32 v11, s26, v12
s_cmp_eq_u32 s19, 0
s_cbranch_scc0 L_xa'''.format(ox=OX))
                lds_spin(a, 12, 3, C_Q, 8)
                a('s_branch L_xb')
                a('L_xa:')
                lds_spin(a, 12, 3, C_O, 4)
                a('L_xb:')
            for s in unit(i, q):
                a(s)
    a('s_nop 0')
    a('v_cvt_pk_bf16_f32 v%d, v%d, v%d' % (Pp[1] + 7, S[1] + 14, S[1] + 15))
    stamp(a, 9)
    if 'dbgt' in OPT:
        a('s_memrealtime s[76:77]')
    a('s_setprio 3')
    a('s_nop 0')
    a(mfma(O[1], V[31 % NBV][0], Pp[1], O[1]))
    a(mfma(O[1], V[31 % NBV][1], Pp[1] + 4, O[1]))
    a('''s_nop 9
s_cmp_eq_u32 s24, 0
s_cbranch_scc0 L_x1''')
    F = 32
    for own, lab in ((0, None), (1, 'L_x1')):
        if lab:
            a(lab + ':')
        oth = 1 - own
        a('ds_write_b128 v6, %s' % vr(O[oth], 4))
        a('ds_write_b128 v6, %s offset:1024' % vr(O[oth] + 4, 4))
        a('ds_write_b32 v8, v%d offset:2048' % (O[oth] + 8))
        for j in range(9):
            a('v_mov_b32 v%d, v%d' % (F + j, O[own] + j))
        if own == 1:
            for j in range(4):
                a('v_mov_b32 v%d, v%d' % (Q[0] + j, Q[1] + j))
        if own == 0:
            a('s_branch L_x2')
    a('L_x2:')
    a('v_mov_b32 v3, 1')
    a('ds_write_b32 v10, v3 offset:%d' % C_X)
    a('''s_lshl_b32 s25, s4, 1
s_add_u32 s25, s25, s24
s_lshl_b32 s25, s25, 15
s_lshl_b32 s26, s18, 10
s_add_u32 s25, s25, s26
s_add_u32 s25, s25, %d
s_mov_b32 s44, 0x%x
s_mov_b32 s45, 0x%x
s_mov_b32 s46, 0x7f7fffff
s_lshl_b32 s55, s4, 3
s_add_u32 s55, s55, s5
s_lshl_b32 s55, s55, 1
s_add_u32 s55, s55, s19
s_lshl_b32 s55, s55, 6
s_add_u32 s55, s55, %d
s_lshl_b32 s26, s19, 2
v_add_u32 v13, s26, v12''' % (OF, f2u(2.0 ** -64), f2u(2.0 ** 64), FL2))
    a('''s_mov_b32 s66, 0
L_xw:
ds_read_b32 v3, v11 offset:%d
ds_read_b128 v[48:51], v7
ds_read_b128 v[52:55], v7 offset:1024
ds_read_b32 v56, v9 offset:2048
s_add_u32 s66, s66, 1
s_waitcnt lgkmcnt(0)
v_readfirstlane_b32 s67, v3
s_cmp_ge_u32 s66, %d
s_cbranch_scc1 L_xe
s_cmp_eq_u32 s67, 0
s_cbranch_scc1 L_xw
L_xe:''' % (C_X, SPIN_MAX * 16))
    stamp(a, 10)
    for j in range(9):
        a('v_add_f32 v%d, v%d, v%d' % (F + j, F + j, 48 + j))
    a('''v_max3_f32 v48, abs(v32), abs(v33), abs(v34)
v_max3_f32 v49, abs(v35), abs(v36), abs(v37)
v_max3_f32 v48, v48, abs(v38), abs(v39)
v_cmp_le_f32 s[28:29], s44, v40
v_cmp_ge_f32 s[30:31], s45, v40
v_add_f32 v50, v32, v33
v_add_f32 v51, v34, v35
v_add_f32 v52, v36, v37
v_add_f32 v53, v38, v39
v_max_f32 v48, v48, v49
v_add_f32 v50, v50, v51
v_add_f32 v52, v52, v53
v_cmp_ge_f32 s[32:33], s46, v48
v_cmp_o_f32 s[34:35], v50, v52
v_rcp_f32 v48, v40
s_and_b64 s[28:29], s[28:29], s[30:31]
s_and_b64 s[32:33], s[32:33], s[34:35]
s_and_b64 s[28:29], s[28:29], s[32:33]
s_cmp_eq_u64 s[28:29], -1
s_cbranch_scc0 L_slow
L_fin:''')
    for j in range(8):
        a('v_mul_f32 v%d, v%d, v48' % (F + j, F + j))
    for j in range(4):
        a('v_cvt_pk_bf16_f32 v%d, v%d, v%d' % (52 + j, F + 2 * j, F + 2 * j + 1))
    a('buffer_store_dwordx4 v[52:55], v5, s[8:11], s25 offen sc1')
    a('s_load_dwordx2 s[34:35], s[0:1], 96')
    a('s_waitcnt vmcnt(0) lgkmcnt(0)')
    arrive_publish(a, 13, 1, C_O, 4, 55, 2)
    stamp(a, 11)
    a('s_cmp_ge_u32 s3, 8')
    a('s_cbranch_scc1 L_bend')
    srd(a, 16, 34, 2048 * 2048)
    AC = [20, 36]
    OFR, WR = 56, 88

    def wo_frags(g):
        for cc in range(4):
            for n in range(2):
                for nt in range(2):
                    for rd in range(2):
                        a('ds_read_b64_tr_b16 %s, v%d offset:%d' % (vr(WR + 16 * cc + 8 * n + 4 * nt + 2 * rd, 2), (152, 153)[nt],
                                                                    g * 32768 + cc * 4096 + n * 2048 + rd * 1024))

    def o_loads(cc):
        a('''s_add_u32 s38, s51, %d
s_and_b32 s38, s38, 7
s_lshl_b32 s30, s38, 12
s_add_u32 s30, s30, s53
buffer_load_dwordx4 %s, v5, s[8:11], s30 offen sc1
buffer_load_dwordx4 %s, v5, s[8:11], s30 offen offset:1024 sc1''' % (cc, vr(OFR + 8 * cc, 4), vr(OFR + 8 * cc + 4, 4)))

    def o_mfma(cc, first):
        for n in range(2):
            for nt in range(2):
                a(mfma(AC[nt], WR + 16 * cc + 8 * n + 4 * nt, OFR + 8 * cc + 4 * n, None if first and n == 0 else AC[nt]))

    lds_spin(a, 12, 3, C_Y2, 4, nap=8)
    wo_frags(0)
    flag_poll_lazy(a, 155, 1, 52, 6)
    for cc in range(4):
        o_loads(cc)
    a('s_waitcnt lgkmcnt(0)')
    for cc in range(4):
        a('s_waitcnt vmcnt(%d)' % (6 - 2 * cc))
        o_mfma(cc, cc == 0)
    wo_frags(1)
    a('''s_add_u32 s52, s52, 64
s_add_u32 s53, s53, 2048
s_xor_b32 s23, s49, 1''')
    stamp(a, 10)
    lds_spin(a, 12, 3, C_O1, 4, nap=2)
    a('s_mov_b32 s66, 0')
    for cc in range(4):
        l, e = label('lp'), label('le')
        a('''{l}:
s_bitcmp1_b32 s23, {cc}
s_cbranch_scc1 {e}
s_cmp_ge_u32 s66, {n}
s_cbranch_scc1 {e}
buffer_load_dword v1, v155, s[8:11], s52 offen sc1
s_add_u32 s66, s66, 1
s_waitcnt vmcnt(0)
v_cmp_eq_u32 vcc, s7, v1
s_nop 1
s_or_b32 s23, s23, vcc_lo
s_branch {l}
{e}:'''.format(l=l, e=e, cc=cc, n=SPIN_MAX))
        o_loads(cc)
        if cc > 0:
            a('s_waitcnt vmcnt(2)')
            o_mfma(cc - 1, False)
    a('s_waitcnt vmcnt(0)')
    o_mfma(3, False)
    stamp(a, 12)
    a('''v_mov_b32 v3, 1
s_cmp_eq_u32 s49, 0
s_nop 12
s_cbranch_scc0 L_r1''')
    for own in range(2):
        if own:
            a('L_r1:')
        for j in range(4):
            a('ds_write_b128 v156, %s offset:%d' % (vr(AC[1 - own] + 4 * j, 4), 1024 * j))
        a('ds_write_b32 v158, v3 offset:%d' % C_P3)
        if not own:
            a('s_branch L_r2')
    a('''L_r2:
s_mov_b32 s66, 0
L_rw:
ds_read_b32 v3, v159 offset:%d''' % C_P3)
    for j in range(4):
        a('ds_read_b128 %s, v157 offset:%d' % (vr(64 + 4 * j, 4), 1024 * j))
    a('''s_add_u32 s66, s66, 1
s_waitcnt lgkmcnt(0)
v_readfirstlane_b32 s67, v3
s_cmp_ge_u32 s66, %d
s_cbranch_scc1 L_re
s_cmp_eq_u32 s67, 0
s_cbranch_scc1 L_rw
L_re:''' % (SPIN_MAX * 16))
    a('s_cmp_eq_u32 s49, 0')
    a('s_cbranch_scc0 L_r3')
    for own in range(2):
        if own:
            a('L_r3:')
        for j in range(16):
            a('v_add_f32 v%d, v%d, v%d' % (64 + j, AC[own] + j, 64 + j))
        if not own:
            a('s_branch L_r4')
    a('L_r4:')
    for j in range(8):
        a('v_cvt_pk_bf16_f32 v%d, v%d, v%d' % (80 + j, 64 + 2 * j, 65 + 2 * j))
    st3 = OPTV.get('st3', '').replace('+', ' ')
    a('buffer_store_dwordx4 v[80:83], v154, s[16:19], s50 offen' + st3)
    a('buffer_store_dwordx4 v[84:87], v154, s[16:19], s50 offen offset:16' + st3)
    if 'dbgt' in OPT:
        a('s_waitcnt vmcnt(0)')
        a('s_memrealtime s[78:79]')
        a('s_load_dwordx2 s[36:37], s[0:1], 104')
        a('s_waitcnt lgkmcnt(0)')
        srd(a, 12, 36, 256)
        a('v_mov_b32 v2, 0')
        a('s_mov_b64 exec, 1')
        for i in range(5):
            a('s_sub_u32 s66, s%d, s7' % (70 + 2 * i))
            a('s_add_u32 s66, s66, 1000')
            a('v_mov_b32 v1, s66')
            a('buffer_atomic_umax v1, v2, s[12:15], 0 offen offset:%d sc1' % (4 + 4 * i))
            a('s_sub_u32 s66, 100000, s66')
            a('v_mov_b32 v3, s66')
            a('buffer_atomic_umax v3, v2, s[12:15], 0 offen offset:%d sc1' % (36 + 4 * i))
        a('s_mov_b64 exec, -1')
        a('s_waitcnt vmcnt(0)')
    a('L_bend:')
    stamp_dump(a)
    a('s_endpgm')

    for t in ('',):
        OS, SS, M, PS, KS, MX = 80, 16, 64, 48, 104, 58
        a('''L_slow%s:
v_mov_b32 v%d, 0xff800000
s_mov_b32 s42, 0
L_s1%s:
buffer_load_dwordx4 %s, v%d, s[8:11], s42 offen sc1
s_waitcnt vmcnt(0)
%s
s_nop 15''' % (t, MX, t, vr(KS, 4), KA, mfma(SS, KS, Q[0], None)))
        for j in range(8):
            a('v_max3_f32 v%d, v%d, v%d, v%d' % (MX, MX, SS + 2 * j, SS + 2 * j + 1))
        a('''s_add_u32 s42, s42, 1024
s_cmp_lt_u32 s42, 0x10000
s_cbranch_scc1 L_s1%s
v_mov_b32 v%d, v%d
s_nop 1
v_permlane32_swap_b32 v%d, v%d
s_nop 1
v_max_f32 v%d, v%d, v%d''' % (t, MX + 1, MX, MX, MX + 1, MX, MX, MX + 1))
        for j in range(16):
            a('v_sub_f32 v%d, 0, v%d' % (M + j, MX))
            a('v_mov_b32 v%d, 0' % (OS + j))
        a('''s_mov_b32 s42, 0
L_s2%s:
buffer_load_dwordx4 %s, v%d, s[8:11], s42 offen sc1
s_mov_b64 exec, s[40:41]
buffer_load_dwordx4 %s, v%d, s[8:11], s42 offen sc1
buffer_load_dwordx4 %s, v%d, s[8:11], s42 offen offset:512 sc1
s_mov_b64 exec, -1
s_waitcnt vmcnt(0)
%s
s_nop 15''' % (t, vr(KS, 4), KA, vr(V[0][0], 4), VA, vr(V[0][1], 4), VA, mfma(SS, KS, Q[0], M)))
        for j in range(16):
            a('v_exp_f32 v%d, v%d' % (SS + j, SS + j))
        a('s_nop 0')
        for j in range(8):
            a('v_cvt_pk_bf16_f32 v%d, v%d, v%d' % (PS + j, SS + 2 * j, SS + 2 * j + 1))
        a('s_nop 1')
        a(mfma(OS, V[0][0], PS, OS))
        a(mfma(OS, V[0][1], PS + 4, OS))
        a('''s_add_u32 s42, s42, 1024
s_cmp_lt_u32 s42, 0x10000
s_cbranch_scc1 L_s2%s
s_nop 15''' % t)
        for j in range(9):
            a('v_mov_b32 v%d, v%d' % (F + j, OS + j))
        a('''v_rcp_f32 v48, v40
s_nop 0
s_branch L_fin''')
    a('''L_end:
s_endpgm''')
    return a.text()


def main(path):
    KN = NAME + '_kernel'
    t = kernel()
    hdr = '''; fused kernel: projections + S4 kernel generation | attention + causal convolution | output projection
; @launch grid=(256,1,1) block=(768,1,1) lds=%d
.amdgcn_target "amdgcn-amd-amdhsa--gfx950"
.text
.globl %s
''' % (LDS_BYTES, KN)
    pad = '.p2align 8\n.fill 4096, 4, 0xbf800000\n'
    kd = '''.section .rodata,"a"
.p2align 6
.amdhsa_kernel %s
  .amdhsa_next_free_vgpr 168
  .amdhsa_next_free_sgpr 102
  .amdhsa_accum_offset 168
  .amdhsa_group_segment_fixed_size 0
  .amdhsa_kernarg_size 120
  .amdhsa_user_sgpr_count 2
  .amdhsa_user_sgpr_kernarg_segment_ptr 1
  .amdhsa_system_sgpr_workgroup_id_x 1
.end_amdhsa_kernel
''' % KN
    open(path, 'w').write(hdr + t + pad + kd)


if __name__ == '__main__':
    for arg in sys.argv[1:]:
        OPT.add(arg)
        if '=' in arg:
            OPTV[arg.split('=')[0]] = arg.split('=')[1]
    DIAG = 'diag' in OPT
    main(sys.argv[1] if len(sys.argv) > 1 else 'cdna_kernels/%s.s' % NAME)
```

```python
import sys
import struct

NAME = 'concat_heads__ssm_conv_s4__softmax_full_mha__prompt'

KF = 0x200000
VF = 0x400000
OF = 0x600000
RS = 4224
UT = 0x800000
YT = 0x1400000
FL1 = 0xC00000
FLU = 0xC04000
FL2 = 0xC08000
FL3 = 0xC10000
WS_BYTES = 0x2000000

GEN = 6 * 16384
LDS_BYTES = GEN + 65536
QX = 65536
USI = 74752
USO = 82944
OX = 65536
YI = 73728
CNT = 94208
C_TAG, C_KV, C_GO, C_PAIR, C_CONV, C_O, C_Y, C_GOU, C_GOY, C_Y2, C_X = 0, 4, 8, 80, 24, 16, 32, 36, 40, 44, 48
C_U, C_P3, C_O1, C_Q = 12, 96, 20, 116
KCOPY = 4096
UIMG = 9216

LOG2E = 1.4426950408889634
QSCALE = 0.25 * LOG2E
OPT = set()
OPTV = {}
DIAG = False
DIAG_BASE = 0xF00000
ST0 = 70
SPIN_MAX = 1 << 16
ROWS = {0: [0, 1, 2, 3, 4, 5, 6, 7, 8, 1024, 1032, 1280, 1288, 1536, 1544, None],
        1: [256, 258, 260, 262, 264, 512, 516, 520, 768, 772, 776, 1792, 1800, None, None, None]}


def f2u(x):
    return struct.unpack('<I', struct.pack('<f', x))[0]


class A:
    def __init__(self):
        self.L = []

    def __call__(self, s):
        for line in s.split('\n'):
            line = line.strip()
            if not line:
                continue
            if line.endswith(':') or line.startswith('.'):
                self.L.append(line)
            else:
                self.L.append('    ' + line)

    def text(self):
        return '\n'.join(self.L) + '\n'


def vr(a, n=1):
    return 'v%d' % a if n == 1 else 'v[%d:%d]' % (a, a + n - 1)


def sr(a, n=1):
    return 's%d' % a if n == 1 else 's[%d:%d]' % (a, a + n - 1)


def srd(a, dst, base, nbytes):
    a('s_mov_b32 s%d, s%d' % (dst, base))
    a('s_mov_b32 s%d, s%d' % (dst + 1, base + 1))
    a('s_mov_b32 s%d, 0x%x' % (dst + 2, nbytes))
    a('s_mov_b32 s%d, 0x00020000' % (dst + 3))


def mfma(d, x, y, c):
    cs = '0' if c is None else vr(c, 16)
    return 'v_mfma_f32_32x32x16_bf16 %s, %s, %s, %s' % (vr(d, 16), vr(x, 4), vr(y, 4), cs)


def cmul_many(a, items):
    for d, x, y in items:
        a('v_mul_f32 v%d, v%d, v%d' % (d, x, y))
        a('v_mul_f32 v%d, v%d, v%d' % (d + 1, x + 1, y))
    for d, x, y in items:
        a('v_fma_f32 v%d, -v%d, v%d, v%d' % (d, x + 1, y + 1, d))
        a('v_fmac_f32 v%d, v%d, v%d' % (d + 1, x, y + 1))


def stamp(a, i, real=False):
    if DIAG and ('se' not in OPT or i in (0, 13) or str(i) in OPTV.get('only', '').split(',')):
        a('%s s[%d:%d]' % ('s_memrealtime' if real or 'rt' in OPT else 's_memtime', ST0 + 2 * i, ST0 + 2 * i + 1))


def stamp_dump(a, n=14):
    if DIAG:
        a('s_waitcnt vmcnt(0)')
        stamp(a, 13, True)
        a('s_waitcnt lgkmcnt(0)')
        a('s_lshl_b32 s68, s2, 4')
        a('s_add_u32 s68, s68, s3')
        a('s_lshl_b32 s68, s68, 6')
        a('s_add_u32 s68, s68, %d' % DIAG_BASE)
        a('v_mov_b32 v1, 0')
        a('s_mov_b64 exec, 1')
        for i in range(n):
            a('v_mov_b32 v2, s%d' % (ST0 + 2 * i))
            a('buffer_store_dword v2, v1, s[8:11], s68 offen offset:%d' % (4 * i))
        a('s_mov_b64 exec, -1')


_lab = [0]


def label(p):
    _lab[0] += 1
    return 'L_%s%d' % (p, _lab[0])


def lds_spin(a, va, vt, off, thr, st=66, nap=1):
    l, e = label('sp'), label('se')
    a('''s_mov_b32 s%d, 0
%s:
ds_read_b32 v%d, v%d offset:%d
s_add_u32 s%d, s%d, 1
s_waitcnt lgkmcnt(0)
v_readfirstlane_b32 s%d, v%d
s_cmp_ge_u32 s%d, %d
s_cbranch_scc1 %s
s_cmp_ge_u32 s%d, %d
s_cbranch_scc1 %s
s_sleep %d
s_branch %s
%s:''' % (st, l, vt, va, off, st, st, st + 1, vt, st, SPIN_MAX, e, st + 1, thr, e, nap, l, e))


def lds_add(a, va, vt, off):
    a('''v_mov_b32 v%d, 1
s_mov_b64 exec, 1
ds_add_u32 v%d, v%d offset:%d
s_mov_b64 exec, -1''' % (vt, va, vt, off))


def arrive_publish(a, va, vt, off, nwaves, sflag, vz):
    e = label('np')
    a('''v_mov_b32 v%d, 1
s_mov_b64 exec, 1
ds_add_rtn_u32 v%d, v%d, v%d offset:%d
v_mov_b32 v%d, 0
s_waitcnt lgkmcnt(0)
v_readfirstlane_b32 s66, v%d
v_mov_b32 v%d, s7
s_cmp_eq_u32 s66, %d
s_cbranch_scc0 %s
buffer_store_dword v%d, v%d, s[8:11], s%d offen sc1
%s:
s_mov_b64 exec, -1''' % (vt, vt, va, vt, off, vz, vt, vt, nwaves - 1, e, vt, vz, sflag, e))


def flag_poll(a, voff, vt, vt2, sbase):
    l, e = label('fp'), label('fe')
    ld = 'buffer_load_dword v%d, v%d, s[8:11], s%d offen sc1'
    a('''s_mov_b32 s66, 0
%s
s_sleep 4
%s:
%s
s_waitcnt vmcnt(1)
v_cmp_eq_u32 vcc, s7, v%d
s_add_u32 s66, s66, 1
s_cmp_eq_u64 vcc, -1
s_cbranch_scc1 %s
s_sleep 2
%s
s_waitcnt vmcnt(1)
v_cmp_eq_u32 vcc, s7, v%d
s_cmp_ge_u32 s66, %d
s_cbranch_scc1 %s
s_cmp_eq_u64 vcc, -1
s_cbranch_scc0 %s
%s:''' % (ld % (vt, voff, sbase), l, ld % (vt2, voff, sbase), vt, e, ld % (vt, voff, sbase), vt2, SPIN_MAX, e, l, e))


def flag_poll_lazy(a, voff, vt, sbase, nap):
    l, e = label('fp'), label('fe')
    a('''s_mov_b32 s66, 0
%s:
buffer_load_dword v%d, v%d, s[8:11], s%d offen sc1
s_add_u32 s66, s66, 1
s_waitcnt vmcnt(0)
v_cmp_eq_u32 vcc, s7, v%d
s_cmp_ge_u32 s66, %d
s_cbranch_scc1 %s
s_cmp_eq_u64 vcc, -1
s_cbranch_scc1 %s
s_sleep %d
s_branch %s
%s:''' % (l, vt, voff, sbase, vt, SPIN_MAX, e, e, nap, l, e))


def tag_check(a, vt, vz, srd0):
    l, e = label('tp'), label('te')
    a('''s_mov_b32 s66, 0
%s:
v_readfirstlane_b32 s7, v%d
s_add_u32 s66, s66, 1
s_cmp_lg_u32 s7, 0
s_cbranch_scc1 %s
s_cmp_ge_u32 s66, %d
s_cbranch_scc1 %s
buffer_load_dword v%d, v%d, s[%d:%d], 0 offen sc1
s_waitcnt vmcnt(0)
s_branch %s
%s:''' % (l, vt, e, SPIN_MAX, e, vt, vz, srd0, srd0 + 3, l, e))


def kgen_stream():
    a = A()
    P = 20
    for i in range(8):
        a('v_lshlrev_b32 %s, 16, %s' % (vr(P + i), vr(P + i)))
    Are, Aim, Bre, Bim, Cre, Cim, LDT, DSK = range(P, P + 8)
    a('v_mul_f32 v%d, s51, v%d' % (LDT, LDT))
    a('v_exp_f32 v%d, v%d' % (LDT, LDT))
    a('s_nop 0')
    a('v_cvt_pk_bf16_f32 v%d, v%d, v%d' % (LDT, LDT, LDT))
    a('v_lshlrev_b32 v%d, 16, v%d' % (LDT, LDT))
    a('v_mul_f32 v%d, v%d, v%d' % (Are, LDT, Are))
    a('v_mul_f32 v%d, v%d, v%d' % (Aim, LDT, Aim))
    a('v_mul_f32 v%d, v%d, v%d' % (Bre, LDT, Bre))
    a('v_mul_f32 v%d, v%d, v%d' % (Bim, LDT, Bim))
    a('v_mul_f32 v%d, s51, v%d' % (Are, Are))
    a('v_mul_f32 v%d, 0.15915494, v%d' % (Aim, Aim))
    G = [32 + 2 * i for i in range(32)]
    W = [96 + 2 * i for i in range(9)]
    Z1, Z2, Z4, Z32 = 114, 116, 118, 120
    ZB = {256: 122, 512: 124, 768: 126, 1024: 128, 1280: 130, 1536: 132, 1792: 134}
    T0, PK, AD = 136, 146, 154
    R = {}
    nxt = 32
    for h in (0, 1):
        for e in ROWS[h]:
            if e is None:
                continue
            if e <= 8:
                R[e] = W[e]
            else:
                R[e] = nxt
                nxt += 2
    cmul_many(a, [(W[0], Cre, Bre)])
    direct = [(Z1, 1.0), (G[1], 8.0), (Z32, 32.0), (ZB[256], 256.0), (ZB[1024], 1024.0)]
    for i, (z, e) in enumerate(direct):
        a('v_mul_f32 v%d, 0x%x, v%d' % (T0 + 2 * i, f2u(e), Are))
        a('v_mul_f32 v%d, 0x%x, v%d' % (T0 + 2 * i + 1, f2u(e), Aim))
    for i, (z, e) in enumerate(direct):
        a('v_exp_f32 v%d, v%d' % (T0 + 2 * i, T0 + 2 * i))
        a('v_fract_f32 v%d, v%d' % (T0 + 2 * i + 1, T0 + 2 * i + 1))
    for i, (z, e) in enumerate(direct):
        a('v_cos_f32 v%d, v%d' % (z, T0 + 2 * i + 1))
        a('v_sin_f32 v%d, v%d' % (z + 1, T0 + 2 * i + 1))
    a('v_mov_b32 v%d, 1.0' % G[0])
    a('v_mov_b32 v%d, 0' % (G[0] + 1))
    for i, (z, e) in enumerate(direct):
        a('v_mul_f32 v%d, v%d, v%d' % (z, z, T0 + 2 * i))
        a('v_mul_f32 v%d, v%d, v%d' % (z + 1, z + 1, T0 + 2 * i))
    cmul_many(a, [(G[2], G[1], G[1]), (Z2, Z1, Z1), (W[1], W[0], Z1), (W[8], W[0], G[1]), (ZB[512], ZB[256], ZB[256]),
                  (ZB[1280], ZB[1024], ZB[256]), (G[5], G[1], Z32)])
    a('v_mov_b32 v%d, v%d' % (G[4], Z32))
    a('v_mov_b32 v%d, v%d' % (G[4] + 1, Z32 + 1))
    cmul_many(a, [(G[3], G[2], G[1]), (Z4, Z2, Z2), (W[2], W[0], Z2), (W[3], W[1], Z2), (ZB[768], ZB[512], ZB[256]),
                  (ZB[1536], ZB[1024], ZB[512]), (G[6], G[2], Z32)])
    cmul_many(a, [(G[7], G[3], Z32), (W[4], W[0], Z4), (W[5], W[1], Z4), (W[6], W[2], Z4), (W[7], W[3], Z4),
                  (ZB[1792], ZB[1024], ZB[768])])
    for i0 in range(8, 32, 4):
        cmul_many(a, [(G[i], G[i - 4], Z32) for i in range(i0, i0 + 4)])
    nvalu = len(a.L)
    for c in range(8):
        a('v_xor_b32 v%d, %d, v13' % (AD + c, c << 4))
    rowidx = [None] * 32
    for h in (0, 1):
        for r in range(16):
            rowidx[8 * (r >> 2) + 4 * h + (r & 3)] = ROWS[h][r]
    nput = [0]

    def put(c, regs, neg, off):
        pk = PK + 4 * (nput[0] & 1)
        nput[0] += 1
        for j in range(4):
            a('v_cvt_pk_bf16_f32 v%d, %sv%d, %sv%d' % (pk + j, neg, regs[2 * j], neg, regs[2 * j + 1]))
        a('ds_write_b128 v%d, %s%s' % (AD + c, vr(pk, 4), off))

    for c in range(8):
        put(c, [G[8 * (c & 3) + j] + (c >> 2) for j in range(8)], '', '')
    big = [e for e in R if e > 8]
    items = [(R[e], W[e & 255], ZB[e & ~255]) for e in big]
    for i0 in range(0, len(items), 5):
        cmul_many(a, items[i0:i0 + 5])
    for c in range(8):
        comp = c >> 2
        regs = [(R[e] if e is not None else W[0]) + comp for e in rowidx[8 * (c & 3):8 * (c & 3) + 8]]
        put(c, regs, '-' if comp else '', ' offset:8192')
    a('s_waitcnt lgkmcnt(0)')
    KD, FR, NB = 32, 48, 4

    def gen_reads(s):
        off = s * 1024
        b = FR + 8 * (s % NB)
        a('ds_read_b64_tr_b16 %s, v14 offset:%d' % (vr(b, 2), off + 8192))
        a('ds_read_b64_tr_b16 %s, v15 offset:%d' % (vr(b + 2, 2), off + 8192))
        a('ds_read_b64_tr_b16 %s, v14 offset:%d' % (vr(b + 4, 2), off))
        a('ds_read_b64_tr_b16 %s, v15 offset:%d' % (vr(b + 6, 2), off))

    for s in range(3):
        gen_reads(s)
    for s in range(8):
        if s + 3 < 8:
            gen_reads(s + 3)
        a('s_waitcnt lgkmcnt(%d)' % (4 * min(3, 7 - s)))
        b = FR + 8 * (s % NB)
        a(mfma(KD, b, b + 4, None if s == 0 else KD))
    a('s_nop 15')
    for j in range(4):
        a('ds_write_b128 v16, %s offset:%d' % (vr(KD + 4 * j, 4), 1024 * j))
    a('s_waitcnt lgkmcnt(0)')
    return a.L, nvalu


def transpose_addrs(a, sw, vrd, vwr, vlin, t0, t1, usi, uso):
    a('''v_lshrrev_b32 v{t0}, 4, v4
v_bfe_u32 v{t1}, v4, 2, 2
v_lshl_add_u32 v{t1}, v{t0}, 3, v{t1}
v_lshlrev_b32 v{rd}, 7, v{t1}
v_and_b32 v{t1}, 3, v4
v_lshl_add_u32 v{rd}, v{t1}, 3, v{rd}
s_lshl_b32 s66, s{w}, 5
s_add_u32 s66, s66, {usi}
v_add_u32 v{rd}, s66, v{rd}
v_and_b32 v{t1}, 7, v4
v_xor_b32 v{t0}, v{t0}, v{t1}
v_lshlrev_b32 v{t0}, 4, v{t0}
v_and_b32 v{t1}, 15, v4
v_lshl_add_u32 v{wr}, v{t1}, 7, v{t0}
s_lshl_b32 s66, s{w}, 11
s_add_u32 s66, s66, {uso}
v_add_u32 v{wr}, s66, v{wr}
v_lshl_add_u32 v{lin}, v4, 4, s66
v_lshrrev_b32 v{t0}, 3, v4
v_and_b32 v{t1}, 7, v4
v_xor_b32 v{t1}, v{t1}, v{t0}'''.format(t0=t0, t1=t1, rd=vrd, wr=vwr, lin=vlin, w=sw, usi=usi, uso=uso))


def transpose_a(a, vrd, vwr, d, t):
    a('''ds_read_b64_tr_b16 v[{d0}:{d1}], v{rd}
ds_read_b64_tr_b16 v[{d2}:{d3}], v{rd} offset:512
ds_read_b64_tr_b16 v[{d4}:{d5}], v{rd} offset:4096
ds_read_b64_tr_b16 v[{d6}:{d7}], v{rd} offset:4608
v_xor_b32 v{t}, 64, v{wr}
s_waitcnt lgkmcnt(2)
ds_write_b128 v{wr}, v[{d0}:{d3}]
s_waitcnt lgkmcnt(1)
ds_write_b128 v{t}, v[{d4}:{d7}]
s_waitcnt lgkmcnt(0)'''.format(rd=vrd, wr=vwr, t=t, **{'d%d' % i: d + i for i in range(8)}))


def kernel():
    a = A()
    KN = NAME + '_kernel'
    a('''.p2align 8
.type {k},@function
{k}:
s_cmp_ge_u32 s2, 256
s_cbranch_scc1 L_end
s_load_dwordx16 s[16:31], s[0:1], 8
s_load_dwordx4 s[32:35], s[0:1], 72
s_load_dwordx4 s[36:39], s[0:1], 104'''.format(k=KN))
    stamp(a, 0, True)
    stamp(a, 1)
    if 'enc' in OPTV:
        a('s_memrealtime s[90:91]')
    a('''v_lshrrev_b32 v3, 6, v0
v_and_b32 v4, 63, v0
s_and_b32 s44, s2, 7
s_lshr_b32 s45, s2, 3
v_readfirstlane_b32 s3, v3
s_lshl_b32 s60, s44, 6
s_lshl_b32 s46, s45, 1
s_add_u32 s60, s60, s46
s_lshl_b32 s46, s60, 8
v_lshl_add_u32 v5, v0, 1, s46
s_lshr_b32 s4, s44, 1
s_lshl_b32 s4, s4, 3
s_and_b32 s46, s45, 7
s_add_u32 s4, s4, s46
s_and_b32 s5, s44, 1
s_lshl_b32 s5, s5, 2
s_lshr_b32 s47, s45, 3
s_add_u32 s5, s5, s47
s_lshl_b32 s47, s47, 1
%s
s_cmp_ge_u32 s3, 4
s_cbranch_scc1 L_gemm''' % {'0': 's_mov_b32 s6, 0', '1': 's_add_u32 s6, s46, s47', '2': 's_and_b32 s6, s46, 4', '3': 's_and_b32 s6, s46, 6'}[OPTV.get('rot', '1')])
    SEG = (1, 2, 0)

    a('''s_lshr_b32 s61, s3, 1
s_add_u32 s52, s60, s61
s_lshl_b32 s46, s52, 1
v_mov_b32 v19, s46
s_and_b32 s53, s3, 1
s_waitcnt lgkmcnt(0)''')
    P = 20
    a('global_load_ushort %s, v19, s[28:29]' % vr(P + 6))
    for i in range(6):
        a('global_load_ushort %s, v5, %s' % (vr(P + i), sr(16 + 2 * i, 2)))
    a('global_load_ushort %s, v19, s[30:31]' % vr(P + 7))
    a('''s_getpc_b64 s[40:41]
v_and_b32 v1, 7, v0
v_lshlrev_b32 v1, 7, v1
s_lshl_b32 s46, s45, 10
v_add_u32 v1, s46, v1
global_load_dword v2, v1, s[40:41]''')
    srd(a, 8, 38, WS_BYTES)
    srd(a, 12, 36, 256)
    a('''v_mov_b32 v18, 0
s_or_b32 s46, s2, s3
s_cmp_eq_u32 s46, 0
s_cbranch_scc0 L_notag
s_memrealtime s[46:47]
s_waitcnt lgkmcnt(0)
s_or_b32 s46, s46, 1
v_mov_b32 v1, s46
s_mov_b64 exec, 1
buffer_store_dword v1, v18, s[12:15], 0 offen sc1
s_mov_b64 exec, -1
s_waitcnt vmcnt(0)
L_notag:''')
    a('''s_lshl_b32 s62, s3, 14
s_add_u32 s62, s62, %d
v_and_b32 v10, 7, v4
v_lshlrev_b32 v10, 4, v10
v_lshl_add_u32 v13, v4, 7, v10
v_add_u32 v13, s62, v13
v_lshrrev_b32 v10, 5, v4
v_bfe_u32 v11, v4, 3, 1
v_lshl_add_u32 v10, v10, 2, v11
v_bfe_u32 v11, v4, 2, 1
v_lshlrev_b32 v11, 2, v11
v_bfe_u32 v12, v4, 4, 1
v_lshl_add_u32 v11, v12, 1, v11
v_bfe_u32 v12, v4, 1, 1
v_add_u32 v11, v11, v12
v_xor_b32 v11, v11, v10
v_lshlrev_b32 v11, 4, v11
v_lshl_add_u32 v11, v10, 7, v11
v_and_b32 v12, 1, v4
v_lshl_add_u32 v11, v12, 3, v11
v_add_u32 v14, s62, v11
v_xor_b32 v15, 32, v14
v_add_u32 v15, 256, v15
v_lshl_add_u32 v16, v4, 4, s62
v_xor_b32 v17, 0x4000, v16
v_mov_b32 v12, %d
s_mov_b32 s51, 0x%x''' % (GEN, CNT, f2u(LOG2E)))
    p1, nvalu = kgen_stream()
    sizes = [int(x) for x in OPTV.get('sl', '80,140,31').split(',')]
    cuts = [0]
    for z in sizes:
        cuts.append(min(len(p1), cuts[-1] + z))
    print('kgen instructions', len(p1), 'pure valu', nvalu, cuts, file=sys.stderr)
    a('s_load_dwordx4 s[32:35], s[0:1], 88')
    stamp(a, 2)
    a('s_waitcnt vmcnt(1) lgkmcnt(0)')
    for c in range(16):
        if c < len(sizes):
            a.L += p1[cuts[c]:cuts[c + 1]]
        if c == 8:
            a('buffer_load_dword v1, v18, s[12:15], 0 offen sc1')
        if c == 14:
            a('s_waitcnt vmcnt(0)')
            tag_check(a, 1, 18, 12)
            a('''v_cmp_eq_u32 vcc, 0, v4
v_lshl_add_u32 v2, v4, 2, v12
s_cmp_eq_u32 s3, 0
v_cndmask_b32 v1, 0, v1, vcc
s_cbranch_scc0 L_tagd
ds_write_b32 v2, v1
s_waitcnt lgkmcnt(0)
L_tagd:''')
        a('s_barrier')
    a('s_barrier')
    stamp(a, 3)
    a('s_setprio 3')
    a('''s_lshl_b32 s46, s3, 11
s_add_u32 s46, s46, %d
v_lshl_add_u32 v6, v4, 4, s46
ds_read_b128 v[8:11], v6
ds_read_b128 v[28:31], v6 offset:1024
v_lshrrev_b32 v6, 3, v4
v_and_b32 v7, 7, v4
v_xor_b32 v7, v7, v6
v_mul_u32_u24 v6, %d, v6
v_lshl_add_u32 v6, v7, 4, v6
s_mul_i32 s46, s44, %d
s_mul_i32 s47, s3, %d
s_add_u32 s46, s46, s47
s_lshl_b32 s47, s45, 7
s_add_u32 s46, s46, s47
s_add_u32 s46, s46, %d
s_add_u32 s47, s46, %d
s_lshl_b32 s65, s44, 5
s_add_u32 s65, s65, s45
s_lshl_b32 s65, s65, 6
s_add_u32 s65, s65, %d
s_waitcnt lgkmcnt(1)
buffer_store_dwordx4 v[8:11], v6, s[8:11], s46 offen sc1
s_waitcnt lgkmcnt(0)
buffer_store_dwordx4 v[28:31], v6, s[8:11], s47 offen sc1''' % (USO, RS, 64 * RS, 16 * RS, UT, 8 * RS, FLU))
    srd(a, 16, 34, 2048 * 2048)
    srd(a, 12, 32, 512 * 1024)
    a.L += p1[cuts[-1]:]
    a('s_waitcnt vmcnt(0)')
    arrive_publish(a, 12, 1, C_U, 4, 65, 2)
    a('s_lshl_b32 s63, s61, 2')
    a('v_add_u32 v11, s63, v12')
    lds_add(a, 11, 1, C_PAIR)
    KD = 32
    a('''v_and_b32 v28, 31, v4
v_lshrrev_b32 v29, 5, v4
s_lshl_b32 s46, s53, 6
s_add_u32 s46, s46, s62
s_add_u32 s46, s46, %d
v_lshlrev_b32 v10, 4, v28
v_sub_u32 v18, s46, v10
v_and_b32 v10, 1, v4
v_cmp_eq_u32 s[54:55], 1, v10
v_cmp_eq_u32 s[56:57], 0, v4
s_mov_b32 s58, -1
s_mov_b32 s59, 0
s_mov_b32 s40, 0
s_mov_b32 s41, -1''' % (KCOPY + 255 * 16))
    for sl, (b0, b1) in enumerate([(0, 32), (128, 64), (160, 96), (192, 224)]):
        a('v_mul_i32_i24 v10, %d, v29' % ((b1 - b0) * 16))
        a('v_sub_u32 v%d, v18, v10' % (80 + sl))
        if b0:
            a('v_subrev_u32 v%d, %d, v%d' % (80 + sl, b0 * 16, 80 + sl))
    a('''v_lshl_add_u32 v87, v4, 4, s46
v_add_u32 v87, 16, v87
s_lshl_b32 s64, s61, 15
s_add_u32 s64, s64, %d
s_lshl_b32 s47, s53, 1
v_add_u32 v10, s47, v29
v_mul_u32_u24 v10, 1536, v10
v_lshl_add_u32 v10, v28, 4, v10
v_add_u32 v10, s64, v10
v_mov_b32 v88, 0
v_mov_b32 v89, 0
v_mov_b32 v90, 0
v_mov_b32 v91, 0''' % (GEN + UIMG))
    lds_spin(a, 11, 1, C_PAIR, 2)
    a('ds_write_b128 v10, v[88:91]')
    for j in range(4):
        a('ds_read_b128 %s, v17 offset:%d' % (vr(48 + 4 * j, 4), 1024 * j))
    a('v_cndmask_b32 v9, 0, v27, s[56:57]')
    a('v_add_f32 v%d, v%d, v9' % (KD, KD))
    a('s_waitcnt lgkmcnt(0)')
    for j in range(16):
        a('v_add_f32 v%d, v%d, v%d' % (KD + j, KD + j, 48 + j))
    for i, r in enumerate((9, 11, 13)):
        a('v_cndmask_b32 v%d, v%d, v%d, s[54:55]' % (84 + i, KD + r, KD + r + 1))
    OB = 64

    def pack(dst, vals):
        for j in range(4):
            a('v_cvt_pk_bf16_f32 v%d, v%d, v%d' % (dst + j, vals[2 * j], vals[2 * j + 1]))

    def emit_copy(cp):
        k = lambda r: KD + r
        r0 = [k(i) for i in range(9)]
        r1 = [k(0), k(0), k(1), k(2), k(2), k(2), k(3), k(4), k(4)]
        r2 = lambda b: [k(b), k(b), k(b), k(b + 1), k(b + 1), k(b + 1), k(b + 2), k(b + 2), k(b + 2)]
        r3 = lambda b, x: [k(b)] * 4 + [x] + [k(b + 1)] * 4
        sel = (lambda p: p[8:0:-1]) if cp == 0 else (lambda p: p[7::-1])
        a('s_mov_b64 exec, s[58:59]')
        pack(OB, sel(r0))
        pack(OB + 4, sel(r3(9, 84)))
        pack(OB + 8, sel(r3(11, 85)))
        pack(OB + 12, sel(r3(13, 86)))
        a('s_mov_b64 exec, s[40:41]')
        pack(OB, sel(r1))
        pack(OB + 4, sel(r2(5)))
        pack(OB + 8, sel(r2(8)))
        pack(OB + 12, sel(r3(11, 85)))
        a('s_mov_b64 exec, -1')
        if cp == 0:
            a('v_cvt_pk_bf16_f32 v10, v%d, v88' % KD)
            a('v_cndmask_b32 v88, 0, v10, s[56:57]')

    a('s_cmp_eq_u32 s53, 0')
    a('s_cbranch_scc0 L_copy1')
    emit_copy(0)
    a('s_branch L_copyd')
    a('L_copy1:')
    emit_copy(1)
    a('L_copyd:')
    for sl in range(4):
        a('ds_write_b128 v%d, %s' % (80 + sl, vr(OB + 4 * sl, 4)))
    a('s_mov_b64 exec, 15')
    a('ds_write_b128 v87, v[88:91]')
    a('s_mov_b64 exec, -1')
    stamp(a, 4)
    a('''v_lshlrev_b32 v6, 6, v28
s_lshl_b32 s46, s44, 11
s_add_u32 s46, s46, %d
s_cmp_eq_u32 s3, 0
s_cbranch_scc0 L_uw''' % FLU)
    flag_poll_lazy(a, 6, 1, 46, 8)
    lds_add(a, 12, 3, C_GOU)
    a('L_uw:')
    lds_spin(a, 12, 3, C_GOU, 1, nap=4)
    a('''v_lshlrev_b32 v6, 6, v4
s_mul_i32 s46, s52, %d
s_lshl_b32 s47, s53, 5
s_add_u32 s46, s46, s47
s_add_u32 s46, s46, %d
s_mul_i32 s47, s53, 3072
s_add_u32 s47, s47, s64
s_add_u32 m0, s47, 512
s_nop 0
buffer_load_dwordx4 v6, s[8:11], s46 offen sc1 lds
s_add_u32 m0, s47, 2048
s_add_u32 s46, s46, 16
buffer_load_dwordx4 v6, s[8:11], s46 offen sc1 lds''' % (RS, UT))
    a('''v_bfe_u32 v18, v4, 4, 1
v_lshlrev_b32 v18, 4, v18
v_bfe_u32 v19, v4, 2, 1
v_lshl_add_u32 v18, v19, 3, v18
v_and_b32 v19, 3, v4
v_lshl_add_u32 v18, v19, 1, v18
v_bfe_u32 v19, v4, 3, 1
v_lshlrev_b32 v24, 3, v29
v_sub_u32 v24, v24, v18
v_add_u32 v24, 32, v24
v_lshlrev_b32 v24, 1, v24
v_mul_u32_u24 v19, %d, v19
v_add_u32 v24, v24, v19
s_add_u32 s46, s64, %d
v_add_u32 v24, s46, v24
s_lshl_b32 s46, s53, 9
s_add_u32 s46, s46, s64
s_add_u32 s46, s46, %d
v_mul_u32_u24 v25, 1536, v29
v_lshl_add_u32 v25, v28, 4, v25
v_add_u32 v25, s46, v25''' % (16384 + 64 - 4, KCOPY - UIMG + 32 * 120, 512 - 3 * 16))
    TB, UB, CA = 32, 40, 48
    CB = 64
    for j in range(32):
        a('v_mov_b32 v%d, 0' % (CA + j))
    a('''s_lshl_b32 s34, s53, 2
s_add_u32 s34, s34, 8
s_mov_b32 s35, 0
s_waitcnt vmcnt(0) lgkmcnt(0)''')
    lds_add(a, 12, 1, C_CONV)
    a('''s_and_b32 s46, s45, 7
s_lshl_b32 s46, s46, 16
s_lshl_b32 s47, s5, 7
s_add_u32 s46, s46, s47
s_lshl_b32 s47, s3, 14
s_add_u32 s46, s46, s47
v_and_b32 v6, 15, v4
v_lshlrev_b32 v6, 10, v6
buffer_load_dword v31, v6, s[12:15], s46 offen''')
    lds_spin(a, 12, 1, C_CONV, 4)
    stamp(a, 5)

    def conv_loop(lab, acc, send):
        a(lab + ':')
        for j in range(8):
            t = TB + 4 * (j & 1)
            a('ds_read2_b32 %s, v24 offset0:%d offset1:%d' % (vr(t, 2), 8 * (7 - j), 8 * (7 - j) + 1))
            a('ds_read2_b32 %s, v24 offset0:%d offset1:%d' % (vr(t + 2, 2), 8 * (7 - j) + 2, 8 * (7 - j) + 3))
            a('ds_read_b128 %s, v25 offset:%d' % (vr(UB + 4 * (j & 1), 4), (3072 if j % 2 == 0 else 0) + (3 - (j >> 1)) * 16))
            a('s_waitcnt lgkmcnt(0)')
            a(mfma(acc, t, UB + 4 * (j & 1), acc))
        a('''v_subrev_u32 v24, 256, v24
v_subrev_u32 v25, 64, v25
s_add_u32 s35, s35, 1
s_cmp_lt_u32 s35, %s
s_cbranch_scc1 %s''' % (send, lab))

    if 'noconv' not in OPT:
        conv_loop('L_cl', CA, 's34')
        a('''s_cmp_eq_u32 s53, 0
s_cbranch_scc0 L_cr
v_subrev_u32 v24, 1024, v24
v_add_u32 v25, 256, v25''')
        conv_loop('L_cm', CB, '12')
        a('s_nop 11')
        for j in range(4):
            a('ds_write_b128 v16, %s offset:%d' % (vr(CB + 4 * j, 4), 1024 * j))
        a('s_waitcnt lgkmcnt(0)')
        lds_add(a, 11, 1, C_PAIR)
        a('s_branch L_cd')
        a('L_cr:')
        lds_spin(a, 11, 1, C_PAIR, 3, nap=2)
        for j in range(4):
            a('ds_read_b128 %s, v17 offset:%d' % (vr(CB + 4 * j, 4), 1024 * j))
        a('s_waitcnt lgkmcnt(0)')
        for j in range(16):
            a('v_add_f32 v%d, v%d, v%d' % (CA + j, CA + j, CB + j))
        a('L_cd:')
    stamp(a, 6)
    a('''s_nop 0
s_mul_i32 s46, s52, %d
s_lshl_b32 s47, s53, 11
s_add_u32 s46, s46, s47
s_add_u32 s46, s46, %d
v_lshlrev_b32 v6, 6, v28
v_lshl_add_u32 v6, v29, 4, v6
s_lshl_b32 s47, s53, 9
s_add_u32 s47, s47, s52
s_lshl_b32 s47, s47, 6
s_add_u32 s47, s47, %d
v_mov_b32 v1, s7
v_mov_b32 v2, 0''' % (RS, YT, FL3))
    for s in range(2):
        for i in range(4):
            a('v_cvt_pk_bf16_f32 v%d, v%d, v%d' % (32 + 4 * s + i, CA + 8 * s + i, CA + 8 * s + 4 + i))
    a('''buffer_store_dwordx4 v[32:35], v6, s[8:11], s46 offen sc1
buffer_store_dwordx4 v[36:39], v6, s[8:11], s46 offen offset:32 sc1
s_waitcnt vmcnt(0) lgkmcnt(0)
s_mov_b64 exec, 1
buffer_store_dword v1, v2, s[8:11], s47 offen sc1
s_mov_b64 exec, -1''')
    a('''v_lshrrev_b32 v6, 3, v4
v_lshlrev_b32 v6, 10, v6
v_bfe_u32 v7, v4, 4, 1
v_lshlrev_b32 v7, 2, v7
v_and_b32 v8, 7, v4
v_xor_b32 v7, v7, v8
v_lshl_add_u32 v6, v7, 4, v6
s_lshl_b32 s23, s53, 10
s_lshl_b32 s24, s61, 11
s_add_u32 s24, s23, s24
s_lshl_b32 s26, s5, 7
s_lshl_b32 s27, s53, 13
s_add_u32 s26, s26, s27
s_lshl_b32 s27, s61, 14
s_add_u32 s26, s26, s27
s_nop 0''')
    for c in range(8):
        a('s_add_u32 s38, s5, %d' % c)
        a('s_and_b32 s38, s38, 7')
        a('s_lshl_b32 s30, s38, 16')
        a('s_add_u32 m0, s24, %d' % (c * 4096))
        a('s_add_u32 s30, s30, s26')
        if 'nowo' in OPT:
            continue
        a('buffer_load_dwordx4 v6, s[12:15], s30 offen lds')
        a('s_add_u32 m0, s24, %d' % (32768 + c * 4096))
        a('s_add_u32 s30, s30, 0x8000')
        a('buffer_load_dwordx4 v6, s[12:15], s30 offen lds')
        a('s_waitcnt vmcnt(%s)' % OPTV.get('wot', '2'))
    stamp(a, 7)
    a('''v_lshlrev_b32 v6, 6, v4
s_lshr_b32 s46, s4, 4
s_lshl_b32 s46, s46, 15
s_lshl_b32 s47, s5, 12
s_add_u32 s46, s46, s47
s_add_u32 s46, s46, %d
s_cmp_eq_u32 s3, 0
s_cbranch_scc0 L_yw''' % FL3)
    flag_poll_lazy(a, 6, 1, 46, 32)
    lds_add(a, 12, 3, C_GOY)
    a('L_yw:')
    transpose_addrs(a, 3, 20, 21, 22, 8, 9, USI, USO)
    a('''v_mul_u32_u24 v10, %d, v8
v_and_b32 v11, 7, v4
v_lshl_add_u32 v10, v11, 4, v10
v_add_u32 v11, %d, v10
s_mul_i32 s46, s5, %d
s_mul_i32 s47, s3, %d
s_add_u32 s46, s46, s47
s_lshl_b32 s47, s4, 7
s_add_u32 s46, s46, s47
s_add_u32 s46, s46, %d
s_lshl_b32 s47, s3, 11
s_add_u32 s47, s47, %d''' % (RS, 8 * RS - 1024, 64 * RS, 16 * RS, YT, USI))
    lds_spin(a, 12, 3, C_GOY, 1, nap=8)
    a('''s_mov_b32 m0, s47
v_lshlrev_b32 v8, 11, v8
buffer_load_dwordx4 v10, s[8:11], s46 offen sc1 lds
buffer_load_dwordx4 v11, s[8:11], s46 offen offset:1024 sc1 lds
v_lshl_add_u32 v8, v9, 4, v8
s_lshl_b32 s46, s4, 17
s_lshl_b32 s47, s3, 15
s_add_u32 s46, s46, s47
s_lshl_b32 s47, s5, 7
s_add_u32 s46, s46, s47
s_add_u32 s47, s46, 0x4000
s_waitcnt vmcnt(0)''')
    lds_add(a, 12, 1, C_Y)
    lds_spin(a, 12, 1, C_Y, 4)
    transpose_a(a, 20, 21, 32, 23)
    a('''ds_read_b128 v[32:35], v22
ds_read_b128 v[36:39], v22 offset:1024
s_waitcnt lgkmcnt(1)
buffer_store_dwordx4 v[32:35], v8, s[16:19], s46 offen nt
s_waitcnt lgkmcnt(0)
buffer_store_dwordx4 v[36:39], v8, s[16:19], s47 offen nt''')
    lds_add(a, 12, 1, C_Y2)
    stamp(a, 8)
    a('s_waitcnt lgkmcnt(0)')
    stamp(a, 12)
    stamp_dump(a)
    a('s_endpgm')

    a('''L_gemm:
s_cmp_ge_u32 s3, 8
s_cbranch_scc1 L_mm
s_setprio 2
s_sub_u32 s61, s3, 4
v_lshrrev_b32 v10, 3, v4
v_lshrrev_b32 v11, 4, v4
v_and_b32 v12, 7, v4
v_xor_b32 v13, v12, v11
s_lshl_b32 s47, s61, 4
v_add_u32 v10, s47, v10
s_lshl_b32 s46, s4, 16
v_lshl_add_u32 v14, v10, 10, s46
v_lshl_add_u32 v6, v13, 4, v14
v_xor_b32 v7, 64, v6
v_add_u32 v7, 0x1c00, v7
v_lshlrev_b32 v16, 10, v10
v_lshl_add_u32 v16, v12, 4, v16
v_mul_u32_u24 v10, 3072, v10
v_and_b32 v11, 1, v11
v_lshlrev_b32 v11, 2, v11
v_xor_b32 v12, v12, v11
v_lshl_add_u32 v8, v12, 4, v10
s_lshl_b32 s46, s5, 7
v_add_u32 v8, s46, v8
v_add_u32 v9, %d, v8
s_lshl_b32 s48, s61, 11
s_waitcnt lgkmcnt(0)''' % (8 * 3072 - 1024))
    srd(a, 16, 32, 2048 * 1024)
    srd(a, 12, 34, 512 * 3072)

    def dma_chunk(c):
        slot = (c % 6) * 16384
        if c < 8:
            a('s_add_u32 s50, s6, %d' % c)
            a('s_and_b32 s50, s50, 7')
            a('s_mul_i32 s49, s50, %d' % (64 * 3072))
            a('s_add_u32 m0, s48, %d' % slot)
            a('s_lshl_b32 s50, s50, 7')
            a('buffer_load_dwordx4 v6, s[16:19], s50 offen lds')
            a('buffer_load_dwordx4 v7, s[16:19], s50 offen offset:1024 lds')
            a('s_add_u32 m0, s48, %d' % (slot + 8192))
            a('s_add_u32 s49, s49, %d' % (SEG[0] * 1024))
            a('buffer_load_dwordx4 v8, s[12:15], s49 offen lds')
            a('buffer_load_dwordx4 v9, s[12:15], s49 offen offset:1024 lds')
        else:
            p, j = 1 + ((c - 8) >> 2), (c - 8) & 3
            for hf in range(2):
                a('s_add_u32 s50, s6, %d' % (2 * j + hf))
                a('s_and_b32 s50, s50, 7')
                a('s_mul_i32 s49, s50, %d' % (64 * 3072))
                a('s_add_u32 m0, s48, %d' % (slot + hf * 8192))
                a('s_add_u32 s49, s49, %d' % (SEG[p] * 1024))
                a('buffer_load_dwordx4 v8, s[12:15], s49 offen lds')
                a('buffer_load_dwordx4 v9, s[12:15], s49 offen offset:1024 lds')

    dma_chunk(0)
    dma_chunk(1)
    a('s_load_dwordx2 s[20:21], s[0:1], 0')
    srd(a, 8, 38, WS_BYTES)
    transpose_addrs(a, 61, 20, 21, 22, 23, 24, USI, USO)
    a('''s_lshl_b32 s46, s45, 16
s_lshl_b32 s47, s44, 7
s_add_u32 s52, s46, s47
v_add_u32 v17, 0x1c00, v16
v_mov_b32 v12, %d
s_waitcnt lgkmcnt(0)''' % CNT)
    srd(a, 24, 20, 2048 * 1024)
    order = [0, 1]
    cnt = lambda x: 4 if isinstance(x, int) else x[1]
    stamp(a, 2)
    for c in range(16):
        a('s_waitcnt vmcnt(%d)' % (sum(cnt(x) for x in order[order.index(c) + 1:]) if c < 15 else 0))
        if c in (0, 8, 12):
            stamp(a, {0: 3, 8: 4, 12: 5}[c])
        a('s_barrier')
        for n in {0: [2, 3], 1: [4, 5]}.get(c, [c + 4] if c + 4 < 16 else []):
            dma_chunk(n)
            order.append(n)
        if c == 13:
            a('s_add_u32 m0, s48, %d' % USI)
            a('s_nop 0')
            a('buffer_load_dwordx4 v16, s[24:27], s52 offen lds')
            a('buffer_load_dwordx4 v17, s[24:27], s52 offen offset:1024 lds')
            order.append(('u', 2))
        if c == 15:
            transpose_a(a, 20, 21, 32, 25)
    a('''s_barrier
ds_read_b32 v1, v12 offset:%d
s_waitcnt lgkmcnt(0)
v_readfirstlane_b32 s7, v1''' % C_TAG)
    a('s_branch L_att')

    XA, WA, OA, OV = 160, 164, 165, 166
    XR, ACC = 0, 128
    WF = [144, 148, 152, 156]
    a('''L_mm:
%s
s_setprio 3
s_and_b32 s52, s3, 1
s_bfe_u32 s53, s3, 0x10001
v_and_b32 v10, 31, v4
v_bfe_u32 v11, v4, 1, 3
v_lshrrev_b32 v12, 5, v4
v_xor_b32 v11, v11, v12
v_lshlrev_b32 v11, 4, v11
v_lshl_add_u32 v10, v10, 7, v11
s_lshl_b32 s46, s52, 12
v_add_u32 v%d, s46, v10''' % ('s_memrealtime s[70:71]' if 'dbgt' in OPT else '', XA))
    for jq in range(1, 4):
        a('v_xor_b32 v%d, %d, v%d' % (XA + jq, jq << 5, XA))
    a('''v_lshlrev_b32 v10, 10, v12
v_bfe_u32 v11, v4, 2, 2
v_lshl_add_u32 v10, v11, 7, v10
v_bfe_u32 v11, v4, 3, 1
v_xor_b32 v11, s53, v11
v_lshl_add_u32 v10, v11, 6, v10
v_bfe_u32 v11, v4, 4, 1
v_lshl_add_u32 v10, v11, 5, v10
v_and_b32 v11, 3, v4
v_lshl_add_u32 v%d, v11, 3, v10''' % WA)
    a('''s_lshl_b32 s46, s4, 1
s_add_u32 s46, s46, s52
s_lshl_b32 s46, s46, 10
s_lshl_b32 s47, s5, 1
s_add_u32 s47, s47, s53
s_lshl_b32 s47, s47, 17
s_add_u32 s46, s46, s47
v_lshl_add_u32 v%d, v4, 4, s46
v_bfe_u32 v11, v4, 4, 1
v_lshlrev_b32 v11, 16, v11
v_lshl_add_u32 v11, v12, 8, v11
v_and_b32 v10, 15, v4
v_lshl_add_u32 v11, v10, 4, v11
v_add_u32 v%d, s46, v11
v_mov_b32 v167, v4
s_mov_b32 s62, 0x%x
s_mov_b32 s64, %d
s_mov_b32 s65, %d
s_mov_b32 s63, %d
s_lshl_b32 s54, s52, 12
s_lshl_b32 s47, s53, 11
s_add_u32 s54, s54, s47
s_add_u32 s54, s54, %d
s_lshl_b32 s56, s5, 6
s_add_u32 s56, s56, %d
s_lshl_b32 s55, s4, 9
s_add_u32 s55, s55, s56
s_waitcnt lgkmcnt(0)''' % (OA, OV, f2u(QSCALE), KF, KF + 65536, VF, QX, FL1))
    srd(a, 8, 38, WS_BYTES)
    if 'nowpf' not in OPT:
        srd(a, 12, 34, 512 * 3072)
        a('''s_cmp_ge_u32 s3, 10
s_cbranch_scc1 L_nopf
v_mul_u32_u24 v10, 3072, v4
s_and_b32 s46, s4, 7
s_mul_i32 s46, s46, %d
s_lshl_b32 s47, s5, 7
s_add_u32 s46, s46, s47
s_xor_b32 s47, s52, 1
s_lshl_b32 s47, s47, 11
s_add_u32 s46, s46, s47
%s
buffer_load_dword v%d, v10, s[12:15], s46 offen
L_nopf:''' % (64 * 3072, 's_sleep %s' % OPTV['wps'] if 'wps' in OPTV else '', 127))
    PD = 3

    def chunk_of(s):
        p, kk = s >> 5, s & 31
        return (kk >> 2, kk & 3) if p == 0 else (8 + 4 * (p - 1) + (kk >> 3), kk & 7)

    def nreads(s):
        return 0 if s >= 96 else (3 if s < 32 else 2)

    def reads(s):
        c, j = chunk_of(s)
        if j == 0:
            a('s_barrier')
            if c == 0:
                if OPTV.get('enc') == 'b0':
                    a('s_memrealtime s[92:93]')
                stamp(a, 2)
                if 'dbgt' in OPT:
                    a('s_memrealtime s[72:73]')
            if c == 6:
                a('s_waitcnt vmcnt(0)')
            if c % 3 == 0 and c > 0:
                op = 'v_add_u32' if c % 6 == 3 else 'v_subrev_u32'
                for r in ([XA, XA + 1, XA + 2, XA + 3] if c < 8 else []) + [WA]:
                    a('%s v%d, 0xc000, v%d' % (op, r, r))
        so = (c % 3) * 16384
        if c < 8:
            a('ds_read_b128 %s, v%d offset:%d' % (vr(XR + 4 * s, 4), XA + j, so))
            so += 8192
        for rd in range(2):
            a('ds_read_b64_tr_b16 %s, v%d offset:%d' % (vr(WF[s % 4] + 2 * rd, 2), WA, so + j * 2048 + rd * 512))

    def epilogue(p):
        lo, hi = vr(ACC, 4), vr(ACC + 4, 4)
        if SEG[p] == 0:
            a('v_mov_b32 v4, v167')
            a('v_lshl_add_u32 v10, v167, 4, s54')
            a('s_nop 13')
            for i in range(16):
                a('v_mul_f32 v%d, s62, v%d' % (ACC + i, ACC + i))
        else:
            a('s_nop 15')
        for j in range(8):
            a('v_cvt_pk_bf16_f32 v%d, v%d, v%d' % (ACC + j, ACC + 2 * j, ACC + 2 * j + 1))
        if SEG[p] == 0:
            a('ds_write_b128 v10, %s' % lo)
            a('ds_write_b128 v10, %s offset:1024' % hi)
        elif SEG[p] == 1:
            a('buffer_store_dwordx4 %s, v%d, s[8:11], s64 offen sc1' % (lo, OA))
            a('buffer_store_dwordx4 %s, v%d, s[8:11], s65 offen sc1' % (hi, OA))
        else:
            a('buffer_store_dwordx4 %s, v%d, s[8:11], s63 offen sc1' % (lo, OV))
            a('buffer_store_dwordx4 %s, v%d, s[8:11], s63 offen offset:512 sc1' % (hi, OV))

    for s in range(PD):
        reads(s)
    for s in range(96):
        p, kk = s >> 5, s & 31
        if s + PD < 96:
            reads(s + PD)
        a('s_waitcnt lgkmcnt(%d)' % sum(nreads(t) for t in range(s + 1, s + PD + 1)))
        x, w = XR + 4 * kk, WF[s % 4]
        if SEG[p] == 2:
            a(mfma(ACC, x, w, None if kk == 0 else ACC))
        else:
            a(mfma(ACC, w, x, None if kk == 0 else ACC))
        if s == 80:
            a('v_mov_b32 v12, %d' % CNT)
            a('ds_read_b32 v1, v12 offset:%d' % C_TAG)
            a('s_waitcnt vmcnt(0) lgkmcnt(0)')
            a('v_readfirstlane_b32 s7, v1')
            arrive_publish(a, 12, 1, C_KV, 4, 55, 2)
            if 'rt' in OPT:
                stamp(a, 2)
        if kk == 31:
            if OPTV.get('enc') == 'v' and p == 1:
                a('s_memrealtime s[92:93]')
            stamp(a, 3 + p)
            epilogue(p)
    a('''s_waitcnt lgkmcnt(0)
s_barrier
s_cmp_eq_u32 s3, 8
s_cbranch_scc0 L_att
v_and_b32 v6, 31, v4
v_lshlrev_b32 v6, 9, v6''')
    if 'p2' not in OPT:
        flag_poll_lazy(a, 6, 1, 56, 1)
    else:
        flag_poll(a, 6, 1, 2, 56)
    lds_add(a, 12, 3, C_GO)

    S = [16, 32]
    Pp = [48, 56]
    O = [64, 80]
    Q = [96, 100]
    DK = int(OPTV.get('dk', 3))
    NB, NBV = DK + 1, DK + 1 if DK == 3 else DK
    K = [104 + 4 * b for b in range(NB)]
    V0 = 104 + 4 * NB
    V = [[V0 + 8 * b, V0 + 4 + 8 * b] for b in range(NBV)]
    KA, VA = 14, 15
    assert V0 + 8 * NBV <= 152
    a('''L_att:
s_lshr_b32 s19, s3, 3
s_and_b32 s18, s3, 1
s_lshl_b32 s24, s19, 1
s_add_u32 s18, s18, s24
s_bfe_u32 s24, s3, 0x10001
v_lshlrev_b32 v5, 4, v4
s_lshl_b32 s26, s18, 10
s_add_u32 s26, s26, %d
v_add_u32 v6, s26, v5
ds_read_b128 %s, v6
ds_read_b128 %s, v6 offset:4096
s_lshl_b32 s27, s5, 2
s_add_u32 s18, s18, s27
s_lshl_b32 s22, s18, 16
s_add_u32 s27, s22, %d
v_add_u32 v%d, s27, v5
s_lshl_b32 s36, s24, 10
s_mov_b32 s37, s36
v_lshrrev_b32 v6, 5, v4
v_and_b32 v7, 15, v4
v_lshlrev_b32 v7, 4, v7
v_lshl_add_u32 v7, v6, 8, v7
s_add_u32 s27, s22, %d
v_add_u32 v%d, s27, v7
v_and_b32 v6, 31, v4
v_cmp_eq_u32 vcc, 16, v6
v_cmp_eq_u32 s[28:29], 20, v6
s_mov_b32 s30, 0x3f803f80
s_or_b64 vcc, vcc, s[28:29]
v_mov_b32 v7, s30
s_mov_b32 s40, 0xffff
s_mov_b32 s41, 0xffff
v_cndmask_b32 v6, 0, v7, vcc''' % (QX, vr(Q[0], 4), vr(Q[1], 4), KF, KA, VF, VA))
    for b in range(NBV):
        for u in range(2):
            for j in range(4):
                a('v_mov_b32 v%d, v6' % (V[b][u] + j))
    for q in range(2):
        for j in range(16):
            a('v_mov_b32 v%d, 0' % (O[q] + j))

    def rdk(i):
        return ['buffer_load_dwordx4 %s, v%d, s[8:11], s36 offen sc1' % (vr(K[i % NB], 4), KA),
                's_add_u32 s36, s36, 2048']

    def rdv(i):
        return ['s_mov_b64 exec, s[40:41]',
                'buffer_load_dwordx4 %s, v%d, s[8:11], s37 offen sc1' % (vr(V[i % NBV][0], 4), VA),
                'buffer_load_dwordx4 %s, v%d, s[8:11], s37 offen offset:512 sc1' % (vr(V[i % NBV][1], 4), VA),
                's_mov_b64 exec, -1', 's_add_u32 s37, s37, 2048']

    a('''s_and_b32 s48, s3, 1
s_bfe_u32 s49, s3, 0x10001
v_lshrrev_b32 v8, 5, v4
v_bfe_u32 v152, v4, 2, 2
v_lshl_add_u32 v152, v8, 2, v152
v_lshlrev_b32 v152, 7, v152
v_bfe_u32 v9, v4, 3, 1
v_lshl_add_u32 v152, v9, 6, v152
v_and_b32 v9, 1, v4
v_lshl_add_u32 v152, v9, 5, v152
v_bfe_u32 v9, v4, 4, 1
v_lshl_add_u32 v152, v9, 4, v152
v_bfe_u32 v9, v4, 1, 1
v_lshl_add_u32 v152, v9, 3, v152
s_lshl_b32 s26, s49, 14
v_add_u32 v152, s26, v152
v_xor_b32 v153, 64, v152
v_and_b32 v154, 31, v4
v_lshlrev_b32 v154, 11, v154
v_lshl_add_u32 v154, v8, 5, v154
s_lshl_b32 s26, s4, 17
s_lshl_b32 s50, s48, 16
s_add_u32 s26, s26, s50
s_lshl_b32 s27, s5, 7
s_add_u32 s26, s26, s27
s_lshl_b32 s50, s49, 6
s_add_u32 s50, s50, s26
s_add_u32 s50, s50, 1024
s_lshl_b32 s51, s49, 2
s_add_u32 s51, s51, s5
v_and_b32 v155, 3, v4
v_add_u32 v155, s51, v155
v_and_b32 v155, 7, v155
v_lshlrev_b32 v155, 7, v155
s_lshl_b32 s52, s4, 10
s_add_u32 s52, s52, %d
s_lshl_b32 s53, s4, 16
s_lshl_b32 s26, s48, 15
s_add_u32 s53, s53, s26
s_add_u32 s53, s53, %d
s_sub_u32 s26, s3, 4
s_lshl_b32 s27, s26, 12
s_add_u32 s27, s27, %d
v_add_u32 v156, s27, v5
v_xor_b32 v157, 0x2000, v156
s_lshl_b32 s26, s26, 2
v_add_u32 v158, s26, v12
v_xor_b32 v159, 8, v158''' % (FL2, OF, GEN))
    a('''v_and_b32 v13, 7, v4
v_lshlrev_b32 v13, 7, v13
v_bfe_u32 v7, v4, 3, 1
v_lshl_add_u32 v13, v7, 21, v13
s_add_u32 s27, s22, %d
v_add_u32 v13, s27, v13
s_and_b32 s38, s4, 7
s_lshl_b32 s38, s38, 11
s_add_u32 s38, s38, s36
s_waitcnt lgkmcnt(0)''' % KF)
    lds_add(a, 12, 3, C_Q)
    stamp(a, 6)
    lds_spin(a, 12, 3, C_GO, 1)
    stamp(a, 7)
    PF = 'pf' in OPT
    pfl = ['buffer_load_dword v11, v13, s[8:11], s38 offen sc1', 's_add_u32 s38, s38, 0x4000'] if PF else []
    issue = []
    pro = rdk(0) + (['s_add_u32 s38, s38, 0x4000'] if PF else [])
    issue += [('k', 0)]
    if 'hs' in OPTV:
        a('s_cmp_eq_u32 s19, 0')
        a('s_cbranch_scc1 L_hs')
        a('s_sleep %s' % OPTV['hs'])
        a('L_hs:')
    for i in range(1, DK):
        issue += [('k', i), ('v', i - 1), ('v', i - 1)]
        pro += rdk(i) + rdv(i - 1)
    a('\n'.join(pro))
    a('s_setprio 3')
    a('s_waitcnt vmcnt(%d)' % (len(issue) - 1))
    if OPTV.get('enc') == 'go':
        a('s_memrealtime s[92:93]')
    stamp(a, 8)
    if 'dbgt' in OPT:
        a('s_memrealtime s[74:75]')
    a(mfma(S[0], K[0], Q[0], None))
    a('s_nop 7')
    a('s_nop 3')
    PRIO = {7: 2, 15: 1, 23: 0}

    def unit(i, q):
        u = 2 * i + q
        sc, sn = S[u % 2], S[(u + 1) % 2]
        pc, pp = Pp[u % 2], Pp[(u + 1) % 2]
        i1, q1 = (i, 1) if q == 0 else (i + 1, 0)
        i0, q0 = (i - 1, 1) if q == 0 else (i, 0)
        qk = mfma(sn, K[i1 % NB], Q[q1], None)
        pv0 = mfma(O[q0], V[i0 % NBV][0], pp, O[q0])
        pv1 = mfma(O[q0], V[i0 % NBV][1], pp + 4, O[q0])
        e = ['v_exp_f32 v%d, v%d' % (sc + j, sc + j) for j in range(16)]
        c = ['v_cvt_pk_bf16_f32 v%d, v%d, v%d' % (pc + j, sc + 2 * j, sc + 2 * j + 1) for j in range(8)]
        c7prev = 'v_cvt_pk_bf16_f32 v%d, v%d, v%d' % (pp + 7, sn + 14, sn + 15)
        out = [e[0]]
        if q == 1:
            last = max(n for n, x in enumerate(issue) if x in (('k', i + 1), ('v', i)))
            out.append('s_waitcnt vmcnt(%d)' % (len(issue) - 1 - last))
        if u > 0:
            out.append(c7prev)
        if u < 63:
            out.append(qk)
        kl = rdk(i + DK) if q == 0 and i + DK < 32 else []
        vl = rdv(i + DK - 1) if q == 1 and i + DK - 1 < 32 else []
        issue.extend([('k', i + DK)] * bool(kl) + [('v', i + DK - 1)] * 2 * bool(vl))
        out += kl[:1] + vl[:4]
        out += [e[1], e[2], c[0], e[3], e[4], c[1], e[5]]
        if u > 0:
            out.append(pv0)
        out += kl[1:] + vl[4:]
        out += [e[6], c[2], e[7], e[8], c[3], e[9], e[10], c[4]]
        if u > 0:
            out.append(pv1)
        if q == 0 and i in (1, 8, 16) and PF:
            out += pfl
            issue.append(('p',))
        if q == 1 and i in PRIO:
            out.append('s_setprio %d' % PRIO[i])
            if DIAG and 'qs' in OPT:
                n = 3 + i // 8
                out.append('s_memtime s[%d:%d]' % (ST0 + 2 * n, ST0 + 2 * n + 1))
        out += [e[11], e[12], c[5], e[13], e[14], c[6], e[15]]
        return out

    for i in range(32):
        for q in range(2):
            if (i, q) == (31, 0):
                a('''s_and_b32 s26, s3, 3
s_xor_b32 s27, s26, 2
s_mul_i32 s26, s26, 2304
s_add_u32 s26, s26, {ox}
s_mul_i32 s27, s27, 2304
s_add_u32 s27, s27, {ox}
v_add_u32 v6, s26, v5
v_add_u32 v7, s27, v5
v_lshlrev_b32 v8, 2, v4
v_add_u32 v9, s27, v8
v_add_u32 v8, s26, v8
s_sub_u32 s26, s3, 4
s_lshl_b32 s26, s26, 2
v_add_u32 v10, s26, v12
s_xor_b32 s26, s26, 8
v_add_u32 v11, s26, v12
s_cmp_eq_u32 s19, 0
s_cbranch_scc0 L_xa'''.format(ox=OX))
                lds_spin(a, 12, 3, C_Q, 8)
                a('s_branch L_xb')
                a('L_xa:')
                lds_spin(a, 12, 3, C_O, 4)
                a('L_xb:')
            for s in unit(i, q):
                a(s)
    a('s_nop 0')
    a('v_cvt_pk_bf16_f32 v%d, v%d, v%d' % (Pp[1] + 7, S[1] + 14, S[1] + 15))
    if OPTV.get('enc') == 'loop':
        a('s_memrealtime s[92:93]')
    stamp(a, 9)
    if 'dbgt' in OPT:
        a('s_memrealtime s[76:77]')
    a('s_setprio 3')
    a('s_nop 0')
    a(mfma(O[1], V[31 % NBV][0], Pp[1], O[1]))
    a(mfma(O[1], V[31 % NBV][1], Pp[1] + 4, O[1]))
    a('''s_nop 9
s_cmp_eq_u32 s24, 0
s_cbranch_scc0 L_x1''')
    F = 32
    for own, lab in ((0, None), (1, 'L_x1')):
        if lab:
            a(lab + ':')
        oth = 1 - own
        a('ds_write_b128 v6, %s' % vr(O[oth], 4))
        a('ds_write_b128 v6, %s offset:1024' % vr(O[oth] + 4, 4))
        a('ds_write_b32 v8, v%d offset:2048' % (O[oth] + 8))
        for j in range(9):
            a('v_mov_b32 v%d, v%d' % (F + j, O[own] + j))
        if own == 1:
            for j in range(4):
                a('v_mov_b32 v%d, v%d' % (Q[0] + j, Q[1] + j))
        if own == 0:
            a('s_branch L_x2')
    a('L_x2:')
    a('v_mov_b32 v3, 1')
    a('ds_write_b32 v10, v3 offset:%d' % C_X)
    a('''s_lshl_b32 s25, s4, 1
s_add_u32 s25, s25, s24
s_lshl_b32 s25, s25, 15
s_lshl_b32 s26, s18, 10
s_add_u32 s25, s25, s26
s_add_u32 s25, s25, %d
s_mov_b32 s44, 0x%x
s_mov_b32 s45, 0x%x
s_mov_b32 s46, 0x7f7fffff
s_lshl_b32 s55, s4, 3
s_add_u32 s55, s55, s5
s_lshl_b32 s55, s55, 1
s_add_u32 s55, s55, s19
s_lshl_b32 s55, s55, 6
s_add_u32 s55, s55, %d
s_lshl_b32 s26, s19, 2
v_add_u32 v13, s26, v12''' % (OF, f2u(2.0 ** -64), f2u(2.0 ** 64), FL2))
    a('''s_mov_b32 s66, 0
L_xw:
ds_read_b32 v3, v11 offset:%d
ds_read_b128 v[48:51], v7
ds_read_b128 v[52:55], v7 offset:1024
ds_read_b32 v56, v9 offset:2048
s_add_u32 s66, s66, 1
s_waitcnt lgkmcnt(0)
v_readfirstlane_b32 s67, v3
s_cmp_ge_u32 s66, %d
s_cbranch_scc1 L_xe
s_cmp_eq_u32 s67, 0
s_cbranch_scc1 L_xw
L_xe:''' % (C_X, SPIN_MAX * 16))
    stamp(a, 10)
    for j in range(9):
        a('v_add_f32 v%d, v%d, v%d' % (F + j, F + j, 48 + j))
    a('''v_max3_f32 v48, abs(v32), abs(v33), abs(v34)
v_max3_f32 v49, abs(v35), abs(v36), abs(v37)
v_max3_f32 v48, v48, abs(v38), abs(v39)
v_cmp_le_f32 s[28:29], s44, v40
v_cmp_ge_f32 s[30:31], s45, v40
v_add_f32 v50, v32, v33
v_add_f32 v51, v34, v35
v_add_f32 v52, v36, v37
v_add_f32 v53, v38, v39
v_max_f32 v48, v48, v49
v_add_f32 v50, v50, v51
v_add_f32 v52, v52, v53
v_cmp_ge_f32 s[32:33], s46, v48
v_cmp_o_f32 s[34:35], v50, v52
v_rcp_f32 v48, v40
s_and_b64 s[28:29], s[28:29], s[30:31]
s_and_b64 s[32:33], s[32:33], s[34:35]
s_and_b64 s[28:29], s[28:29], s[32:33]
s_cmp_eq_u64 s[28:29], -1
s_cbranch_scc0 L_slow
L_fin:''')
    for j in range(8):
        a('v_mul_f32 v%d, v%d, v48' % (F + j, F + j))
    for j in range(4):
        a('v_cvt_pk_bf16_f32 v%d, v%d, v%d' % (52 + j, F + 2 * j, F + 2 * j + 1))
    a('buffer_store_dwordx4 v[52:55], v5, s[8:11], s25 offen sc1')
    a('s_load_dwordx2 s[34:35], s[0:1], 96')
    a('s_waitcnt vmcnt(0) lgkmcnt(0)')
    arrive_publish(a, 13, 1, C_O, 4, 55, 2)
    stamp(a, 11)
    a('s_cmp_ge_u32 s3, 8')
    a('s_cbranch_scc1 L_bend')
    srd(a, 16, 34, 2048 * 2048)
    AC = [20, 36]
    OFR, WR = 56, 88

    def wo_frags(g):
        for cc in range(4):
            for n in range(2):
                for nt in range(2):
                    for rd in range(2):
                        a('ds_read_b64_tr_b16 %s, v%d offset:%d' % (vr(WR + 16 * cc + 8 * n + 4 * nt + 2 * rd, 2), (152, 153)[nt],
                                                                    g * 32768 + cc * 4096 + n * 2048 + rd * 1024))

    def o_loads(cc):
        a('''s_add_u32 s38, s51, %d
s_and_b32 s38, s38, 7
s_lshl_b32 s30, s38, 12
s_add_u32 s30, s30, s53
buffer_load_dwordx4 %s, v5, s[8:11], s30 offen sc1
buffer_load_dwordx4 %s, v5, s[8:11], s30 offen offset:1024 sc1''' % (cc, vr(OFR + 8 * cc, 4), vr(OFR + 8 * cc + 4, 4)))

    def o_mfma(cc, first):
        for n in range(2):
            for nt in range(2):
                a(mfma(AC[nt], WR + 16 * cc + 8 * n + 4 * nt, OFR + 8 * cc + 4 * n, None if first and n == 0 else AC[nt]))

    lds_spin(a, 12, 3, C_Y2, 4, nap=8)
    wo_frags(0)
    flag_poll_lazy(a, 155, 1, 52, 6)
    for cc in range(4):
        o_loads(cc)
    a('s_waitcnt lgkmcnt(0)')
    for cc in range(4):
        a('s_waitcnt vmcnt(%d)' % (6 - 2 * cc))
        o_mfma(cc, cc == 0)
    wo_frags(1)
    a('''s_add_u32 s52, s52, 64
s_add_u32 s53, s53, 2048
s_xor_b32 s23, s49, 1''')
    stamp(a, 10)
    lds_spin(a, 12, 3, C_O1, 4, nap=2)
    a('s_mov_b32 s66, 0')
    for cc in range(4):
        l, e = label('lp'), label('le')
        a('''{l}:
s_bitcmp1_b32 s23, {cc}
s_cbranch_scc1 {e}
s_cmp_ge_u32 s66, {n}
s_cbranch_scc1 {e}
buffer_load_dword v1, v155, s[8:11], s52 offen sc1
s_add_u32 s66, s66, 1
s_waitcnt vmcnt(0)
v_cmp_eq_u32 vcc, s7, v1
s_nop 1
s_or_b32 s23, s23, vcc_lo
s_branch {l}
{e}:'''.format(l=l, e=e, cc=cc, n=SPIN_MAX))
        o_loads(cc)
        if cc > 0:
            a('s_waitcnt vmcnt(2)')
            o_mfma(cc - 1, False)
    a('s_waitcnt vmcnt(0)')
    o_mfma(3, False)
    stamp(a, 12)
    a('''v_mov_b32 v3, 1
s_cmp_eq_u32 s49, 0
s_nop 12
s_cbranch_scc0 L_r1''')
    for own in range(2):
        if own:
            a('L_r1:')
        for j in range(4):
            a('ds_write_b128 v156, %s offset:%d' % (vr(AC[1 - own] + 4 * j, 4), 1024 * j))
        a('ds_write_b32 v158, v3 offset:%d' % C_P3)
        if not own:
            a('s_branch L_r2')
    a('''L_r2:
s_mov_b32 s66, 0
L_rw:
ds_read_b32 v3, v159 offset:%d''' % C_P3)
    for j in range(4):
        a('ds_read_b128 %s, v157 offset:%d' % (vr(64 + 4 * j, 4), 1024 * j))
    a('''s_add_u32 s66, s66, 1
s_waitcnt lgkmcnt(0)
v_readfirstlane_b32 s67, v3
s_cmp_ge_u32 s66, %d
s_cbranch_scc1 L_re
s_cmp_eq_u32 s67, 0
s_cbranch_scc1 L_rw
L_re:''' % (SPIN_MAX * 16))
    a('s_cmp_eq_u32 s49, 0')
    a('s_cbranch_scc0 L_r3')
    for own in range(2):
        if own:
            a('L_r3:')
        for j in range(16):
            a('v_add_f32 v%d, v%d, v%d' % (64 + j, AC[own] + j, 64 + j))
        if not own:
            a('s_branch L_r4')
    a('L_r4:')
    for j in range(8):
        a('v_cvt_pk_bf16_f32 v%d, v%d, v%d' % (80 + j, 64 + 2 * j, 65 + 2 * j))
    st3 = OPTV.get('st3', '').replace('+', ' ')
    a('buffer_store_dwordx4 v[80:83], v154, s[16:19], s50 offen' + st3)
    a('buffer_store_dwordx4 v[84:87], v154, s[16:19], s50 offen offset:16' + st3)
    if 'dbgt' in OPT:
        a('s_waitcnt vmcnt(0)')
        a('s_memrealtime s[78:79]')
        a('s_load_dwordx2 s[36:37], s[0:1], 104')
        a('s_waitcnt lgkmcnt(0)')
        srd(a, 12, 36, 256)
        a('v_mov_b32 v2, 0')
        a('s_mov_b64 exec, 1')
        for i in range(5):
            a('s_sub_u32 s66, s%d, s7' % (70 + 2 * i))
            a('s_add_u32 s66, s66, 1000')
            a('v_mov_b32 v1, s66')
            a('buffer_atomic_umax v1, v2, s[12:15], 0 offen offset:%d sc1' % (4 + 4 * i))
            a('s_sub_u32 s66, 100000, s66')
            a('v_mov_b32 v3, s66')
            a('buffer_atomic_umax v3, v2, s[12:15], 0 offen offset:%d sc1' % (36 + 4 * i))
        a('s_mov_b64 exec, -1')
        a('s_waitcnt vmcnt(0)')
    a('L_bend:')
    if 'enc' in OPTV:
        e = OPTV['enc']
        if e != 'skew':
            a('s_cmp_eq_u32 s2, %s' % OPTV.get('ewg', '0'))
            a('s_cbranch_scc0 L_encd')
        a('s_cmp_eq_u32 s3, 8')
        a('s_cbranch_scc0 L_encd')
        a('s_waitcnt lgkmcnt(0)')
        a('s_sub_u32 s94, s92, s90' if e not in ('f', 'skew') else 's_mov_b32 s94, 0')
        a('s_add_u32 s94, s94, 6000')
        a('''L_encw:
s_memrealtime s[96:97]
s_waitcnt lgkmcnt(0)
s_sub_u32 s96, s96, s90
s_cmp_lt_u32 s96, s94
s_cbranch_scc1 L_encw
L_encd:''')
    stamp_dump(a)
    a('s_endpgm')

    for t in ('',):
        OS, SS, M, PS, KS, MX = 80, 16, 64, 48, 104, 58
        a('''L_slow%s:
v_mov_b32 v%d, 0xff800000
s_mov_b32 s42, 0
L_s1%s:
buffer_load_dwordx4 %s, v%d, s[8:11], s42 offen sc1
s_waitcnt vmcnt(0)
%s
s_nop 15''' % (t, MX, t, vr(KS, 4), KA, mfma(SS, KS, Q[0], None)))
        for j in range(8):
            a('v_max3_f32 v%d, v%d, v%d, v%d' % (MX, MX, SS + 2 * j, SS + 2 * j + 1))
        a('''s_add_u32 s42, s42, 1024
s_cmp_lt_u32 s42, 0x10000
s_cbranch_scc1 L_s1%s
v_mov_b32 v%d, v%d
s_nop 1
v_permlane32_swap_b32 v%d, v%d
s_nop 1
v_max_f32 v%d, v%d, v%d''' % (t, MX + 1, MX, MX, MX + 1, MX, MX, MX + 1))
        for j in range(16):
            a('v_sub_f32 v%d, 0, v%d' % (M + j, MX))
            a('v_mov_b32 v%d, 0' % (OS + j))
        a('''s_mov_b32 s42, 0
L_s2%s:
buffer_load_dwordx4 %s, v%d, s[8:11], s42 offen sc1
s_mov_b64 exec, s[40:41]
buffer_load_dwordx4 %s, v%d, s[8:11], s42 offen sc1
buffer_load_dwordx4 %s, v%d, s[8:11], s42 offen offset:512 sc1
s_mov_b64 exec, -1
s_waitcnt vmcnt(0)
%s
s_nop 15''' % (t, vr(KS, 4), KA, vr(V[0][0], 4), VA, vr(V[0][1], 4), VA, mfma(SS, KS, Q[0], M)))
        for j in range(16):
            a('v_exp_f32 v%d, v%d' % (SS + j, SS + j))
        a('s_nop 0')
        for j in range(8):
            a('v_cvt_pk_bf16_f32 v%d, v%d, v%d' % (PS + j, SS + 2 * j, SS + 2 * j + 1))
        a('s_nop 1')
        a(mfma(OS, V[0][0], PS, OS))
        a(mfma(OS, V[0][1], PS + 4, OS))
        a('''s_add_u32 s42, s42, 1024
s_cmp_lt_u32 s42, 0x10000
s_cbranch_scc1 L_s2%s
s_nop 15''' % t)
        for j in range(9):
            a('v_mov_b32 v%d, v%d' % (F + j, OS + j))
        a('''v_rcp_f32 v48, v40
s_nop 0
s_branch L_fin''')
    a('''L_end:
s_endpgm''')
    return a.text()


def main(path):
    KN = NAME + '_kernel'
    t = kernel()
    hdr = '''; fused kernel: projections + S4 kernel generation | attention + causal convolution | output projection
; @launch grid=(256,1,1) block=(768,1,1) lds=%d
.amdgcn_target "amdgcn-amd-amdhsa--gfx950"
.text
.globl %s
''' % (LDS_BYTES, KN)
    pad = '.p2align 8\n.fill 4096, 4, 0xbf800000\n'
    kd = '''.section .rodata,"a"
.p2align 6
.amdhsa_kernel %s
  .amdhsa_next_free_vgpr 168
  .amdhsa_next_free_sgpr 102
  .amdhsa_accum_offset 168
  .amdhsa_group_segment_fixed_size 0
  .amdhsa_kernarg_size 120
  .amdhsa_user_sgpr_count 2
  .amdhsa_user_sgpr_kernarg_segment_ptr 1
  .amdhsa_system_sgpr_workgroup_id_x 1
.end_amdhsa_kernel
''' % KN
    open(path, 'w').write(hdr + t + pad + kd)


if __name__ == '__main__':
    for arg in sys.argv[1:]:
        OPT.add(arg)
        if '=' in arg:
            OPTV[arg.split('=')[0]] = arg.split('=')[1]
    DIAG = 'diag' in OPT
    main(sys.argv[1] if len(sys.argv) > 1 else 'cdna_kernels/%s.s' % NAME)
```

```python
import sys
import struct

NAME = 'concat_heads__ssm_conv_s4__softmax_full_mha__prompt'

KF = 0x200000
VF = 0x400000
OF = 0x600000
RS = 4224
UT = 0x800000
YT = 0x1400000
FL1 = 0xC00000
FLU = 0xC04000
FL2 = 0xC08000
FL3 = 0xC10000
WS_BYTES = 0x2000000

GEN = 6 * 16384
LDS_BYTES = GEN + 65536
QX = 65536
USI = 74752
USO = 82944
OX = 65536
YI = 73728
CNT = 94208
C_TAG, C_KV, C_GO, C_PAIR, C_CONV, C_O, C_Y, C_GOU, C_GOY, C_Y2, C_X = 0, 4, 8, 80, 24, 16, 32, 36, 40, 44, 48
C_U, C_P3, C_O1, C_Q = 12, 96, 20, 116
KCOPY = 4096
UIMG = 9216

LOG2E = 1.4426950408889634
QSCALE = 0.25 * LOG2E
OPT = set()
OPTV = {}
DIAG = False
DIAG_BASE = 0xF00000
ST0 = 70
SPIN_MAX = 1 << 16
ROWS = {0: [0, 1, 2, 3, 4, 5, 6, 7, 8, 1024, 1032, 1280, 1288, 1536, 1544, None],
        1: [256, 258, 260, 262, 264, 512, 516, 520, 768, 772, 776, 1792, 1800, None, None, None]}


def f2u(x):
    return struct.unpack('<I', struct.pack('<f', x))[0]


class A:
    def __init__(self):
        self.L = []

    def __call__(self, s):
        for line in s.split('\n'):
            line = line.strip()
            if not line:
                continue
            if line.endswith(':') or line.startswith('.'):
                self.L.append(line)
            else:
                self.L.append('    ' + line)

    def text(self):
        return '\n'.join(self.L) + '\n'


def vr(a, n=1):
    return 'v%d' % a if n == 1 else 'v[%d:%d]' % (a, a + n - 1)


def sr(a, n=1):
    return 's%d' % a if n == 1 else 's[%d:%d]' % (a, a + n - 1)


def srd(a, dst, base, nbytes):
    a('s_mov_b32 s%d, s%d' % (dst, base))
    a('s_mov_b32 s%d, s%d' % (dst + 1, base + 1))
    a('s_mov_b32 s%d, 0x%x' % (dst + 2, nbytes))
    a('s_mov_b32 s%d, 0x00020000' % (dst + 3))


def mfma(d, x, y, c):
    cs = '0' if c is None else vr(c, 16)
    return 'v_mfma_f32_32x32x16_bf16 %s, %s, %s, %s' % (vr(d, 16), vr(x, 4), vr(y, 4), cs)


def cmul_many(a, items):
    for d, x, y in items:
        a('v_mul_f32 v%d, v%d, v%d' % (d, x, y))
        a('v_mul_f32 v%d, v%d, v%d' % (d + 1, x + 1, y))
    for d, x, y in items:
        a('v_fma_f32 v%d, -v%d, v%d, v%d' % (d, x + 1, y + 1, d))
        a('v_fmac_f32 v%d, v%d, v%d' % (d + 1, x, y + 1))


def stamp(a, i, real=False):
    if DIAG and ('se' not in OPT or i in (0, 13) or str(i) in OPTV.get('only', '').split(',')):
        a('%s s[%d:%d]' % ('s_memrealtime' if real or 'rt' in OPT else 's_memtime', ST0 + 2 * i, ST0 + 2 * i + 1))


def stamp_dump(a, n=14):
    if DIAG:
        a('s_waitcnt vmcnt(0)')
        stamp(a, 13, True)
        a('s_waitcnt lgkmcnt(0)')
        a('s_lshl_b32 s68, s2, 4')
        a('s_add_u32 s68, s68, s3')
        a('s_lshl_b32 s68, s68, 6')
        a('s_add_u32 s68, s68, %d' % DIAG_BASE)
        a('v_mov_b32 v1, 0')
        a('s_mov_b64 exec, 1')
        for i in range(n):
            a('v_mov_b32 v2, s%d' % (ST0 + 2 * i))
            a('buffer_store_dword v2, v1, s[8:11], s68 offen offset:%d' % (4 * i))
        a('s_mov_b64 exec, -1')


_lab = [0]


def label(p):
    _lab[0] += 1
    return 'L_%s%d' % (p, _lab[0])


def lds_spin(a, va, vt, off, thr, st=66, nap=1):
    l, e = label('sp'), label('se')
    a('''s_mov_b32 s%d, 0
%s:
ds_read_b32 v%d, v%d offset:%d
s_add_u32 s%d, s%d, 1
s_waitcnt lgkmcnt(0)
v_readfirstlane_b32 s%d, v%d
s_cmp_ge_u32 s%d, %d
s_cbranch_scc1 %s
s_cmp_ge_u32 s%d, %d
s_cbranch_scc1 %s
s_sleep %d
s_branch %s
%s:''' % (st, l, vt, va, off, st, st, st + 1, vt, st, SPIN_MAX, e, st + 1, thr, e, nap, l, e))


def lds_add(a, va, vt, off):
    a('''v_mov_b32 v%d, 1
s_mov_b64 exec, 1
ds_add_u32 v%d, v%d offset:%d
s_mov_b64 exec, -1''' % (vt, va, vt, off))


def arrive_publish(a, va, vt, off, nwaves, sflag, vz):
    e = label('np')
    a('''v_mov_b32 v%d, 1
s_mov_b64 exec, 1
ds_add_rtn_u32 v%d, v%d, v%d offset:%d
v_mov_b32 v%d, 0
s_waitcnt lgkmcnt(0)
v_readfirstlane_b32 s66, v%d
v_mov_b32 v%d, s7
s_cmp_eq_u32 s66, %d
s_cbranch_scc0 %s
buffer_store_dword v%d, v%d, s[8:11], s%d offen sc1
%s:
s_mov_b64 exec, -1''' % (vt, vt, va, vt, off, vz, vt, vt, nwaves - 1, e, vt, vz, sflag, e))


def flag_poll(a, voff, vt, vt2, sbase):
    l, e = label('fp'), label('fe')
    ld = 'buffer_load_dword v%d, v%d, s[8:11], s%d offen sc1'
    a('''s_mov_b32 s66, 0
%s
s_sleep 4
%s:
%s
s_waitcnt vmcnt(1)
v_cmp_eq_u32 vcc, s7, v%d
s_add_u32 s66, s66, 1
s_cmp_eq_u64 vcc, -1
s_cbranch_scc1 %s
s_sleep 2
%s
s_waitcnt vmcnt(1)
v_cmp_eq_u32 vcc, s7, v%d
s_cmp_ge_u32 s66, %d
s_cbranch_scc1 %s
s_cmp_eq_u64 vcc, -1
s_cbranch_scc0 %s
%s:''' % (ld % (vt, voff, sbase), l, ld % (vt2, voff, sbase), vt, e, ld % (vt, voff, sbase), vt2, SPIN_MAX, e, l, e))


def flag_poll_lazy(a, voff, vt, sbase, nap):
    l, e = label('fp'), label('fe')
    a('''s_mov_b32 s66, 0
%s:
buffer_load_dword v%d, v%d, s[8:11], s%d offen sc1
s_add_u32 s66, s66, 1
s_waitcnt vmcnt(0)
v_cmp_eq_u32 vcc, s7, v%d
s_cmp_ge_u32 s66, %d
s_cbranch_scc1 %s
s_cmp_eq_u64 vcc, -1
s_cbranch_scc1 %s
s_sleep %d
s_branch %s
%s:''' % (l, vt, voff, sbase, vt, SPIN_MAX, e, e, nap, l, e))


def tag_check(a, vt, vz, srd0):
    l, e = label('tp'), label('te')
    a('''s_mov_b32 s66, 0
%s:
v_readfirstlane_b32 s7, v%d
s_add_u32 s66, s66, 1
s_cmp_lg_u32 s7, 0
s_cbranch_scc1 %s
s_cmp_ge_u32 s66, %d
s_cbranch_scc1 %s
buffer_load_dword v%d, v%d, s[%d:%d], 0 offen sc1
s_waitcnt vmcnt(0)
s_branch %s
%s:''' % (l, vt, e, SPIN_MAX, e, vt, vz, srd0, srd0 + 3, l, e))


def kgen_stream():
    a = A()
    P = 20
    for i in range(8):
        a('v_lshlrev_b32 %s, 16, %s' % (vr(P + i), vr(P + i)))
    Are, Aim, Bre, Bim, Cre, Cim, LDT, DSK = range(P, P + 8)
    a('v_mul_f32 v%d, s51, v%d' % (LDT, LDT))
    a('v_exp_f32 v%d, v%d' % (LDT, LDT))
    a('s_nop 0')
    a('v_cvt_pk_bf16_f32 v%d, v%d, v%d' % (LDT, LDT, LDT))
    a('v_lshlrev_b32 v%d, 16, v%d' % (LDT, LDT))
    a('v_mul_f32 v%d, v%d, v%d' % (Are, LDT, Are))
    a('v_mul_f32 v%d, v%d, v%d' % (Aim, LDT, Aim))
    a('v_mul_f32 v%d, v%d, v%d' % (Bre, LDT, Bre))
    a('v_mul_f32 v%d, v%d, v%d' % (Bim, LDT, Bim))
    a('v_mul_f32 v%d, s51, v%d' % (Are, Are))
    a('v_mul_f32 v%d, 0.15915494, v%d' % (Aim, Aim))
    G = [32 + 2 * i for i in range(32)]
    W = [96 + 2 * i for i in range(9)]
    Z1, Z2, Z4, Z32 = 114, 116, 118, 120
    ZB = {256: 122, 512: 124, 768: 126, 1024: 128, 1280: 130, 1536: 132, 1792: 134}
    T0, PK, AD = 136, 146, 154
    R = {}
    nxt = 32
    for h in (0, 1):
        for e in ROWS[h]:
            if e is None:
                continue
            if e <= 8:
                R[e] = W[e]
            else:
                R[e] = nxt
                nxt += 2
    cmul_many(a, [(W[0], Cre, Bre)])
    direct = [(Z1, 1.0), (G[1], 8.0), (Z32, 32.0), (ZB[256], 256.0), (ZB[1024], 1024.0)]
    for i, (z, e) in enumerate(direct):
        a('v_mul_f32 v%d, 0x%x, v%d' % (T0 + 2 * i, f2u(e), Are))
        a('v_mul_f32 v%d, 0x%x, v%d' % (T0 + 2 * i + 1, f2u(e), Aim))
    for i, (z, e) in enumerate(direct):
        a('v_exp_f32 v%d, v%d' % (T0 + 2 * i, T0 + 2 * i))
        a('v_fract_f32 v%d, v%d' % (T0 + 2 * i + 1, T0 + 2 * i + 1))
    for i, (z, e) in enumerate(direct):
        a('v_cos_f32 v%d, v%d' % (z, T0 + 2 * i + 1))
        a('v_sin_f32 v%d, v%d' % (z + 1, T0 + 2 * i + 1))
    a('v_mov_b32 v%d, 1.0' % G[0])
    a('v_mov_b32 v%d, 0' % (G[0] + 1))
    for i, (z, e) in enumerate(direct):
        a('v_mul_f32 v%d, v%d, v%d' % (z, z, T0 + 2 * i))
        a('v_mul_f32 v%d, v%d, v%d' % (z + 1, z + 1, T0 + 2 * i))
    cmul_many(a, [(G[2], G[1], G[1]), (Z2, Z1, Z1), (W[1], W[0], Z1), (W[8], W[0], G[1]), (ZB[512], ZB[256], ZB[256]),
                  (ZB[1280], ZB[1024], ZB[256]), (G[5], G[1], Z32)])
    a('v_mov_b32 v%d, v%d' % (G[4], Z32))
    a('v_mov_b32 v%d, v%d' % (G[4] + 1, Z32 + 1))
    cmul_many(a, [(G[3], G[2], G[1]), (Z4, Z2, Z2), (W[2], W[0], Z2), (W[3], W[1], Z2), (ZB[768], ZB[512], ZB[256]),
                  (ZB[1536], ZB[1024], ZB[512]), (G[6], G[2], Z32)])
    cmul_many(a, [(G[7], G[3], Z32), (W[4], W[0], Z4), (W[5], W[1], Z4), (W[6], W[2], Z4), (W[7], W[3], Z4),
                  (ZB[1792], ZB[1024], ZB[768])])
    for i0 in range(8, 32, 4):
        cmul_many(a, [(G[i], G[i - 4], Z32) for i in range(i0, i0 + 4)])
    nvalu = len(a.L)
    for c in range(8):
        a('v_xor_b32 v%d, %d, v13' % (AD + c, c << 4))
    rowidx = [None] * 32
    for h in (0, 1):
        for r in range(16):
            rowidx[8 * (r >> 2) + 4 * h + (r & 3)] = ROWS[h][r]
    nput = [0]

    def put(c, regs, neg, off):
        pk = PK + 4 * (nput[0] & 1)
        nput[0] += 1
        for j in range(4):
            a('v_cvt_pk_bf16_f32 v%d, %sv%d, %sv%d' % (pk + j, neg, regs[2 * j], neg, regs[2 * j + 1]))
        a('ds_write_b128 v%d, %s%s' % (AD + c, vr(pk, 4), off))

    for c in range(8):
        put(c, [G[8 * (c & 3) + j] + (c >> 2) for j in range(8)], '', '')
    big = [e for e in R if e > 8]
    items = [(R[e], W[e & 255], ZB[e & ~255]) for e in big]
    for i0 in range(0, len(items), 5):
        cmul_many(a, items[i0:i0 + 5])
    for c in range(8):
        comp = c >> 2
        regs = [(R[e] if e is not None else W[0]) + comp for e in rowidx[8 * (c & 3):8 * (c & 3) + 8]]
        put(c, regs, '-' if comp else '', ' offset:8192')
    a('s_waitcnt lgkmcnt(0)')
    KD, FR, NB = 32, 48, 4

    def gen_reads(s):
        off = s * 1024
        b = FR + 8 * (s % NB)
        a('ds_read_b64_tr_b16 %s, v14 offset:%d' % (vr(b, 2), off + 8192))
        a('ds_read_b64_tr_b16 %s, v15 offset:%d' % (vr(b + 2, 2), off + 8192))
        a('ds_read_b64_tr_b16 %s, v14 offset:%d' % (vr(b + 4, 2), off))
        a('ds_read_b64_tr_b16 %s, v15 offset:%d' % (vr(b + 6, 2), off))

    for s in range(3):
        gen_reads(s)
    for s in range(8):
        if s + 3 < 8:
            gen_reads(s + 3)
        a('s_waitcnt lgkmcnt(%d)' % (4 * min(3, 7 - s)))
        b = FR + 8 * (s % NB)
        a(mfma(KD, b, b + 4, None if s == 0 else KD))
    a('s_nop 15')
    for j in range(4):
        a('ds_write_b128 v16, %s offset:%d' % (vr(KD + 4 * j, 4), 1024 * j))
    a('s_waitcnt lgkmcnt(0)')
    return a.L, nvalu


def transpose_addrs(a, sw, vrd, vwr, vlin, t0, t1, usi, uso):
    a('''v_lshrrev_b32 v{t0}, 4, v4
v_bfe_u32 v{t1}, v4, 2, 2
v_lshl_add_u32 v{t1}, v{t0}, 3, v{t1}
v_lshlrev_b32 v{rd}, 7, v{t1}
v_and_b32 v{t1}, 3, v4
v_lshl_add_u32 v{rd}, v{t1}, 3, v{rd}
s_lshl_b32 s66, s{w}, 5
s_add_u32 s66, s66, {usi}
v_add_u32 v{rd}, s66, v{rd}
v_and_b32 v{t1}, 7, v4
v_xor_b32 v{t0}, v{t0}, v{t1}
v_lshlrev_b32 v{t0}, 4, v{t0}
v_and_b32 v{t1}, 15, v4
v_lshl_add_u32 v{wr}, v{t1}, 7, v{t0}
s_lshl_b32 s66, s{w}, 11
s_add_u32 s66, s66, {uso}
v_add_u32 v{wr}, s66, v{wr}
v_lshl_add_u32 v{lin}, v4, 4, s66
v_lshrrev_b32 v{t0}, 3, v4
v_and_b32 v{t1}, 7, v4
v_xor_b32 v{t1}, v{t1}, v{t0}'''.format(t0=t0, t1=t1, rd=vrd, wr=vwr, lin=vlin, w=sw, usi=usi, uso=uso))


def transpose_a(a, vrd, vwr, d, t):
    a('''ds_read_b64_tr_b16 v[{d0}:{d1}], v{rd}
ds_read_b64_tr_b16 v[{d2}:{d3}], v{rd} offset:512
ds_read_b64_tr_b16 v[{d4}:{d5}], v{rd} offset:4096
ds_read_b64_tr_b16 v[{d6}:{d7}], v{rd} offset:4608
v_xor_b32 v{t}, 64, v{wr}
s_waitcnt lgkmcnt(2)
ds_write_b128 v{wr}, v[{d0}:{d3}]
s_waitcnt lgkmcnt(1)
ds_write_b128 v{t}, v[{d4}:{d7}]
s_waitcnt lgkmcnt(0)'''.format(rd=vrd, wr=vwr, t=t, **{'d%d' % i: d + i for i in range(8)}))


def kernel():
    a = A()
    KN = NAME + '_kernel'
    a('''.p2align 8
.type {k},@function
{k}:
s_cmp_ge_u32 s2, 256
s_cbranch_scc1 L_end
s_load_dwordx16 s[16:31], s[0:1], 8
s_load_dwordx4 s[32:35], s[0:1], 72
s_load_dwordx4 s[36:39], s[0:1], 104'''.format(k=KN))
    stamp(a, 0, True)
    stamp(a, 1)
    if 'enc' in OPTV:
        a('s_memrealtime s[90:91]')
    a('''v_lshrrev_b32 v3, 6, v0
v_and_b32 v4, 63, v0
s_and_b32 s44, s2, 7
s_lshr_b32 s45, s2, 3
v_readfirstlane_b32 s3, v3
s_lshl_b32 s60, s44, 6
s_lshl_b32 s46, s45, 1
s_add_u32 s60, s60, s46
s_lshl_b32 s46, s60, 8
v_lshl_add_u32 v5, v0, 1, s46
s_lshr_b32 s4, s44, 1
s_lshl_b32 s4, s4, 3
s_and_b32 s46, s45, 7
s_add_u32 s4, s4, s46
s_and_b32 s5, s44, 1
s_lshl_b32 s5, s5, 2
s_lshr_b32 s47, s45, 3
s_add_u32 s5, s5, s47
s_lshl_b32 s47, s47, 1
%s
s_cmp_ge_u32 s3, 4
s_cbranch_scc1 L_gemm''' % {'0': 's_mov_b32 s6, 0', '1': 's_add_u32 s6, s46, s47', '2': 's_and_b32 s6, s46, 4', '3': 's_and_b32 s6, s46, 6'}[OPTV.get('rot', '1')])
    SEG = (1, 2, 0)
    S = [16, 32]
    Pp = [48, 56]
    O = [64, 80]
    Q = [96, 100]
    OWN = 'own' in OPT
    DK = int(OPTV.get('dk', 3))
    NB, NBV = DK + 1, DK + 1 if DK == 3 else DK
    K = [104 + 4 * b for b in range(NB)]
    V0 = 104 + 4 * NB
    V = [[V0 + 8 * b, V0 + 4 + 8 * b] for b in range(NBV)]
    KA, VA = 14, 15
    assert V0 + 8 * NBV <= 160

    def att_prologue(early):
        a('''s_lshr_b32 s19, s3, 3
s_and_b32 s18, s3, 1
s_lshl_b32 s24, s19, 1
s_add_u32 s18, s18, s24
s_bfe_u32 s24, s3, 0x10001
v_lshlrev_b32 v5, 4, v4
s_lshl_b32 s26, s18, 10
s_add_u32 s26, s26, %d
s_lshl_b32 s27, s24, 12
s_add_u32 s26, s26, s27
v_add_u32 v13, s26, v5
s_lshl_b32 s27, s5, 2
s_add_u32 s18, s18, s27
s_lshl_b32 s22, s18, 16
s_add_u32 s27, s22, %d
v_add_u32 v%d, s27, v5
s_lshl_b32 s36, s24, 10
%s
s_mov_b32 s37, s36
v_lshrrev_b32 v6, 5, v4
v_and_b32 v7, 15, v4
v_lshlrev_b32 v7, 4, v7
v_lshl_add_u32 v7, v6, 8, v7
s_add_u32 s27, s22, %d
v_add_u32 v%d, s27, v7
v_and_b32 v6, 31, v4
v_cmp_eq_u32 vcc, 16, v6
v_cmp_eq_u32 s[28:29], 20, v6
s_mov_b32 s30, 0x3f803f80
s_or_b64 vcc, vcc, s[28:29]
v_mov_b32 v7, s30
s_mov_b32 s40, 0xffff
s_mov_b32 s41, 0xffff
v_cndmask_b32 v6, 0, v7, vcc''' % (QX, KF, KA, 's_lshl_b32 s37, s4, 11\ns_add_u32 s36, s36, s37' if OWN else '', VF, VA))
        for b in range(NBV):
            for u in range(2):
                for j in range(4):
                    a('v_mov_b32 v%d, v6' % (V[b][u] + j))
        for q in range(2):
            for j in range(16):
                a('v_mov_b32 v%d, 0' % (O[q] + j))

        if early:
            a('''s_and_b32 s48, s3, 1
s_bfe_u32 s49, s3, 0x10001
v_lshrrev_b32 v8, 5, v4
v_bfe_u32 v160, v4, 2, 2
v_lshl_add_u32 v160, v8, 2, v160
v_lshlrev_b32 v160, 7, v160
v_bfe_u32 v9, v4, 3, 1
v_lshl_add_u32 v160, v9, 6, v160
v_and_b32 v9, 1, v4
v_lshl_add_u32 v160, v9, 5, v160
v_bfe_u32 v9, v4, 4, 1
v_lshl_add_u32 v160, v9, 4, v160
v_bfe_u32 v9, v4, 1, 1
v_lshl_add_u32 v160, v9, 3, v160
s_lshl_b32 s26, s49, 14
v_add_u32 v160, s26, v160
v_xor_b32 v161, 64, v160
v_and_b32 v162, 31, v4
v_lshlrev_b32 v162, 11, v162
v_lshl_add_u32 v162, v8, 5, v162
s_lshl_b32 s26, s4, 17
s_lshl_b32 s50, s48, 16
s_add_u32 s26, s26, s50
s_lshl_b32 s27, s5, 7
s_add_u32 s26, s26, s27
s_lshl_b32 s50, s49, 6
s_add_u32 s50, s50, s26
s_add_u32 s50, s50, 1024
s_lshl_b32 s51, s49, 2
s_add_u32 s51, s51, s5
v_and_b32 v163, 3, v4
v_add_u32 v163, s51, v163
v_and_b32 v163, 7, v163
v_lshlrev_b32 v163, 7, v163
s_lshl_b32 s52, s4, 10
s_add_u32 s52, s52, %d
s_lshl_b32 s53, s4, 16
s_lshl_b32 s26, s48, 15
s_add_u32 s53, s53, s26
s_add_u32 s53, s53, %d
s_sub_u32 s26, s3, 4
s_lshl_b32 s27, s26, 12
s_add_u32 s27, s27, %d
v_add_u32 v164, s27, v5
v_xor_b32 v165, 0x2000, v164
s_lshl_b32 s26, s26, 2
v_add_u32 v166, s26, v12
v_xor_b32 v167, 8, v166''' % (FL2, OF, GEN))
        else:
            a('v_mov_b32 v163, 0')
            a('s_mov_b32 s52, %d' % FL2)
        a('''s_lshl_b32 s54, s4, 1
s_add_u32 s54, s54, s24
s_lshl_b32 s54, s54, 15
s_lshl_b32 s26, s18, 10
s_add_u32 s54, s54, s26
s_add_u32 s54, s54, %d
v_mov_b32 v8, -1
v_mov_b32 v9, -1
v_mov_b32 v10, -1
v_mov_b32 v11, -1
s_lshl_b32 s55, s4, 3
s_add_u32 s55, s55, s5
s_lshl_b32 s55, s55, 7
s_add_u32 s55, s55, %d
buffer_store_dwordx4 v[8:11], v5, s[8:11], s54 offen sc1''' % (OF, FL2))


    a('''s_lshr_b32 s61, s3, 1
s_add_u32 s52, s60, s61
s_lshl_b32 s46, s52, 1
v_mov_b32 v19, s46
s_and_b32 s53, s3, 1
s_waitcnt lgkmcnt(0)''')
    P = 20
    a('global_load_ushort %s, v19, s[28:29]' % vr(P + 6))
    for i in range(6):
        a('global_load_ushort %s, v5, %s' % (vr(P + i), sr(16 + 2 * i, 2)))
    a('global_load_ushort %s, v19, s[30:31]' % vr(P + 7))
    a('''s_getpc_b64 s[40:41]
v_and_b32 v1, 7, v0
v_lshlrev_b32 v1, 7, v1
s_lshl_b32 s46, s45, 10
v_add_u32 v1, s46, v1
global_load_dword v2, v1, s[40:41]''')
    srd(a, 8, 38, WS_BYTES)
    srd(a, 12, 36, 256)
    a('''v_mov_b32 v18, 0
s_or_b32 s46, s2, s3
s_cmp_eq_u32 s46, 0
s_cbranch_scc0 L_notag
s_memrealtime s[46:47]
s_waitcnt lgkmcnt(0)
s_or_b32 s46, s46, 1
v_mov_b32 v1, s46
s_mov_b64 exec, 1
buffer_store_dword v1, v18, s[12:15], 0 offen sc1
s_mov_b64 exec, -1
s_waitcnt vmcnt(0)
L_notag:''')
    a('''s_lshl_b32 s62, s3, 14
s_add_u32 s62, s62, %d
v_and_b32 v10, 7, v4
v_lshlrev_b32 v10, 4, v10
v_lshl_add_u32 v13, v4, 7, v10
v_add_u32 v13, s62, v13
v_lshrrev_b32 v10, 5, v4
v_bfe_u32 v11, v4, 3, 1
v_lshl_add_u32 v10, v10, 2, v11
v_bfe_u32 v11, v4, 2, 1
v_lshlrev_b32 v11, 2, v11
v_bfe_u32 v12, v4, 4, 1
v_lshl_add_u32 v11, v12, 1, v11
v_bfe_u32 v12, v4, 1, 1
v_add_u32 v11, v11, v12
v_xor_b32 v11, v11, v10
v_lshlrev_b32 v11, 4, v11
v_lshl_add_u32 v11, v10, 7, v11
v_and_b32 v12, 1, v4
v_lshl_add_u32 v11, v12, 3, v11
v_add_u32 v14, s62, v11
v_xor_b32 v15, 32, v14
v_add_u32 v15, 256, v15
v_lshl_add_u32 v16, v4, 4, s62
v_xor_b32 v17, 0x4000, v16
v_mov_b32 v12, %d
s_mov_b32 s51, 0x%x''' % (GEN, CNT, f2u(LOG2E)))
    p1, nvalu = kgen_stream()
    sizes = [int(x) for x in OPTV.get('sl', '80,140,31').split(',')]
    cuts = [0]
    for z in sizes:
        cuts.append(min(len(p1), cuts[-1] + z))
    print('kgen instructions', len(p1), 'pure valu', nvalu, cuts, file=sys.stderr)
    a('s_load_dwordx4 s[32:35], s[0:1], 88')
    stamp(a, 2)
    a('s_waitcnt vmcnt(1) lgkmcnt(0)')
    for c in range(16):
        if c < len(sizes):
            a.L += p1[cuts[c]:cuts[c + 1]]
        if c == 8:
            a('buffer_load_dword v1, v18, s[12:15], 0 offen sc1')
        if c == 14:
            a('s_waitcnt vmcnt(0)')
            tag_check(a, 1, 18, 12)
            a('''v_cmp_eq_u32 vcc, 0, v4
v_lshl_add_u32 v2, v4, 2, v12
s_cmp_eq_u32 s3, 0
v_cndmask_b32 v1, 0, v1, vcc
s_cbranch_scc0 L_tagd
ds_write_b32 v2, v1
s_waitcnt lgkmcnt(0)
L_tagd:''')
        a('s_barrier')
    a('s_barrier')
    stamp(a, 3)
    a('s_setprio 3')
    a('''s_lshl_b32 s46, s3, 11
s_add_u32 s46, s46, %d
v_lshl_add_u32 v6, v4, 4, s46
ds_read_b128 v[8:11], v6
ds_read_b128 v[28:31], v6 offset:1024
v_lshrrev_b32 v6, 3, v4
v_and_b32 v7, 7, v4
v_xor_b32 v7, v7, v6
v_mul_u32_u24 v6, %d, v6
v_lshl_add_u32 v6, v7, 4, v6
s_mul_i32 s46, s44, %d
s_mul_i32 s47, s3, %d
s_add_u32 s46, s46, s47
s_lshl_b32 s47, s45, 7
s_add_u32 s46, s46, s47
s_add_u32 s46, s46, %d
s_add_u32 s47, s46, %d
s_lshl_b32 s65, s44, 5
s_add_u32 s65, s65, s45
s_lshl_b32 s65, s65, 6
s_add_u32 s65, s65, %d
s_waitcnt lgkmcnt(1)
buffer_store_dwordx4 v[8:11], v6, s[8:11], s46 offen sc1
s_waitcnt lgkmcnt(0)
buffer_store_dwordx4 v[28:31], v6, s[8:11], s47 offen sc1''' % (USO, RS, 64 * RS, 16 * RS, UT, 8 * RS, FLU))
    srd(a, 16, 34, 2048 * 2048)
    srd(a, 12, 32, 512 * 1024)
    a.L += p1[cuts[-1]:]
    a('s_waitcnt vmcnt(0)')
    arrive_publish(a, 12, 1, C_U, 4, 65, 2)
    a('s_lshl_b32 s63, s61, 2')
    a('v_add_u32 v11, s63, v12')
    lds_add(a, 11, 1, C_PAIR)
    KD = 32
    a('''v_and_b32 v28, 31, v4
v_lshrrev_b32 v29, 5, v4
s_lshl_b32 s46, s53, 6
s_add_u32 s46, s46, s62
s_add_u32 s46, s46, %d
v_lshlrev_b32 v10, 4, v28
v_sub_u32 v18, s46, v10
v_and_b32 v10, 1, v4
v_cmp_eq_u32 s[54:55], 1, v10
v_cmp_eq_u32 s[56:57], 0, v4
s_mov_b32 s58, -1
s_mov_b32 s59, 0
s_mov_b32 s40, 0
s_mov_b32 s41, -1''' % (KCOPY + 255 * 16))
    for sl, (b0, b1) in enumerate([(0, 32), (128, 64), (160, 96), (192, 224)]):
        a('v_mul_i32_i24 v10, %d, v29' % ((b1 - b0) * 16))
        a('v_sub_u32 v%d, v18, v10' % (80 + sl))
        if b0:
            a('v_subrev_u32 v%d, %d, v%d' % (80 + sl, b0 * 16, 80 + sl))
    a('''v_lshl_add_u32 v87, v4, 4, s46
v_add_u32 v87, 16, v87
s_lshl_b32 s64, s61, 15
s_add_u32 s64, s64, %d
s_lshl_b32 s47, s53, 1
v_add_u32 v10, s47, v29
v_mul_u32_u24 v10, 1536, v10
v_lshl_add_u32 v10, v28, 4, v10
v_add_u32 v10, s64, v10
v_mov_b32 v88, 0
v_mov_b32 v89, 0
v_mov_b32 v90, 0
v_mov_b32 v91, 0''' % (GEN + UIMG))
    lds_spin(a, 11, 1, C_PAIR, 2)
    a('ds_write_b128 v10, v[88:91]')
    for j in range(4):
        a('ds_read_b128 %s, v17 offset:%d' % (vr(48 + 4 * j, 4), 1024 * j))
    a('v_cndmask_b32 v9, 0, v27, s[56:57]')
    a('v_add_f32 v%d, v%d, v9' % (KD, KD))
    a('s_waitcnt lgkmcnt(0)')
    for j in range(16):
        a('v_add_f32 v%d, v%d, v%d' % (KD + j, KD + j, 48 + j))
    for i, r in enumerate((9, 11, 13)):
        a('v_cndmask_b32 v%d, v%d, v%d, s[54:55]' % (84 + i, KD + r, KD + r + 1))
    OB = 64

    def pack(dst, vals):
        for j in range(4):
            a('v_cvt_pk_bf16_f32 v%d, v%d, v%d' % (dst + j, vals[2 * j], vals[2 * j + 1]))

    def emit_copy(cp):
        k = lambda r: KD + r
        r0 = [k(i) for i in range(9)]
        r1 = [k(0), k(0), k(1), k(2), k(2), k(2), k(3), k(4), k(4)]
        r2 = lambda b: [k(b), k(b), k(b), k(b + 1), k(b + 1), k(b + 1), k(b + 2), k(b + 2), k(b + 2)]
        r3 = lambda b, x: [k(b)] * 4 + [x] + [k(b + 1)] * 4
        sel = (lambda p: p[8:0:-1]) if cp == 0 else (lambda p: p[7::-1])
        a('s_mov_b64 exec, s[58:59]')
        pack(OB, sel(r0))
        pack(OB + 4, sel(r3(9, 84)))
        pack(OB + 8, sel(r3(11, 85)))
        pack(OB + 12, sel(r3(13, 86)))
        a('s_mov_b64 exec, s[40:41]')
        pack(OB, sel(r1))
        pack(OB + 4, sel(r2(5)))
        pack(OB + 8, sel(r2(8)))
        pack(OB + 12, sel(r3(11, 85)))
        a('s_mov_b64 exec, -1')
        if cp == 0:
            a('v_cvt_pk_bf16_f32 v10, v%d, v88' % KD)
            a('v_cndmask_b32 v88, 0, v10, s[56:57]')

    a('s_cmp_eq_u32 s53, 0')
    a('s_cbranch_scc0 L_copy1')
    emit_copy(0)
    a('s_branch L_copyd')
    a('L_copy1:')
    emit_copy(1)
    a('L_copyd:')
    for sl in range(4):
        a('ds_write_b128 v%d, %s' % (80 + sl, vr(OB + 4 * sl, 4)))
    a('s_mov_b64 exec, 15')
    a('ds_write_b128 v87, v[88:91]')
    a('s_mov_b64 exec, -1')
    stamp(a, 4)
    a('''v_lshlrev_b32 v6, 6, v28
s_lshl_b32 s46, s44, 11
s_add_u32 s46, s46, %d
s_cmp_eq_u32 s3, 0
s_cbranch_scc0 L_uw''' % FLU)
    flag_poll_lazy(a, 6, 1, 46, 8)
    lds_add(a, 12, 3, C_GOU)
    a('L_uw:')
    lds_spin(a, 12, 3, C_GOU, 1, nap=4)
    a('''v_lshlrev_b32 v6, 6, v4
s_mul_i32 s46, s52, %d
s_lshl_b32 s47, s53, 5
s_add_u32 s46, s46, s47
s_add_u32 s46, s46, %d
s_mul_i32 s47, s53, 3072
s_add_u32 s47, s47, s64
s_add_u32 m0, s47, 512
s_nop 0
buffer_load_dwordx4 v6, s[8:11], s46 offen sc1 lds
s_add_u32 m0, s47, 2048
s_add_u32 s46, s46, 16
buffer_load_dwordx4 v6, s[8:11], s46 offen sc1 lds''' % (RS, UT))
    a('''v_bfe_u32 v18, v4, 4, 1
v_lshlrev_b32 v18, 4, v18
v_bfe_u32 v19, v4, 2, 1
v_lshl_add_u32 v18, v19, 3, v18
v_and_b32 v19, 3, v4
v_lshl_add_u32 v18, v19, 1, v18
v_bfe_u32 v19, v4, 3, 1
v_lshlrev_b32 v24, 3, v29
v_sub_u32 v24, v24, v18
v_add_u32 v24, 32, v24
v_lshlrev_b32 v24, 1, v24
v_mul_u32_u24 v19, %d, v19
v_add_u32 v24, v24, v19
s_add_u32 s46, s64, %d
v_add_u32 v24, s46, v24
s_lshl_b32 s46, s53, 9
s_add_u32 s46, s46, s64
s_add_u32 s46, s46, %d
v_mul_u32_u24 v25, 1536, v29
v_lshl_add_u32 v25, v28, 4, v25
v_add_u32 v25, s46, v25''' % (16384 + 64 - 4, KCOPY - UIMG + 32 * 120, 512 - 3 * 16))
    TB, UB, CA = 32, 40, 48
    CB = 64
    for j in range(32):
        a('v_mov_b32 v%d, 0' % (CA + j))
    a('''s_lshl_b32 s34, s53, 2
s_add_u32 s34, s34, 8
s_mov_b32 s35, 0
s_waitcnt vmcnt(0) lgkmcnt(0)''')
    lds_add(a, 12, 1, C_CONV)
    a('''s_and_b32 s46, s45, 7
s_lshl_b32 s46, s46, 16
s_lshl_b32 s47, s5, 7
s_add_u32 s46, s46, s47
s_lshl_b32 s47, s3, 14
s_add_u32 s46, s46, s47
v_and_b32 v6, 15, v4
v_lshlrev_b32 v6, 10, v6
buffer_load_dword v31, v6, s[12:15], s46 offen''')
    lds_spin(a, 12, 1, C_CONV, 4)
    stamp(a, 5)

    def conv_loop(lab, acc, send):
        a(lab + ':')
        for j in range(8):
            t = TB + 4 * (j & 1)
            a('ds_read2_b32 %s, v24 offset0:%d offset1:%d' % (vr(t, 2), 8 * (7 - j), 8 * (7 - j) + 1))
            a('ds_read2_b32 %s, v24 offset0:%d offset1:%d' % (vr(t + 2, 2), 8 * (7 - j) + 2, 8 * (7 - j) + 3))
            a('ds_read_b128 %s, v25 offset:%d' % (vr(UB + 4 * (j & 1), 4), (3072 if j % 2 == 0 else 0) + (3 - (j >> 1)) * 16))
            a('s_waitcnt lgkmcnt(0)')
            a(mfma(acc, t, UB + 4 * (j & 1), acc))
        a('''v_subrev_u32 v24, 256, v24
v_subrev_u32 v25, 64, v25
s_add_u32 s35, s35, 1
s_cmp_lt_u32 s35, %s
s_cbranch_scc1 %s''' % (send, lab))

    if 'noconv' not in OPT:
        conv_loop('L_cl', CA, 's34')
        a('''s_cmp_eq_u32 s53, 0
s_cbranch_scc0 L_cr
v_subrev_u32 v24, 1024, v24
v_add_u32 v25, 256, v25''')
        conv_loop('L_cm', CB, '12')
        a('s_nop 11')
        for j in range(4):
            a('ds_write_b128 v16, %s offset:%d' % (vr(CB + 4 * j, 4), 1024 * j))
        a('s_waitcnt lgkmcnt(0)')
        lds_add(a, 11, 1, C_PAIR)
        a('s_branch L_cd')
        a('L_cr:')
        lds_spin(a, 11, 1, C_PAIR, 3, nap=2)
        for j in range(4):
            a('ds_read_b128 %s, v17 offset:%d' % (vr(CB + 4 * j, 4), 1024 * j))
        a('s_waitcnt lgkmcnt(0)')
        for j in range(16):
            a('v_add_f32 v%d, v%d, v%d' % (CA + j, CA + j, CB + j))
        a('L_cd:')
    stamp(a, 6)
    a('''s_nop 0
s_mul_i32 s46, s52, %d
s_lshl_b32 s47, s53, 11
s_add_u32 s46, s46, s47
s_add_u32 s46, s46, %d
v_lshlrev_b32 v6, 6, v28
v_lshl_add_u32 v6, v29, 4, v6
s_lshl_b32 s47, s53, 9
s_add_u32 s47, s47, s52
s_lshl_b32 s47, s47, 6
s_add_u32 s47, s47, %d
v_mov_b32 v1, s7
v_mov_b32 v2, 0''' % (RS, YT, FL3))
    for s in range(2):
        for i in range(4):
            a('v_cvt_pk_bf16_f32 v%d, v%d, v%d' % (32 + 4 * s + i, CA + 8 * s + i, CA + 8 * s + 4 + i))
    a('''buffer_store_dwordx4 v[32:35], v6, s[8:11], s46 offen sc1
buffer_store_dwordx4 v[36:39], v6, s[8:11], s46 offen offset:32 sc1
s_waitcnt vmcnt(0) lgkmcnt(0)
s_mov_b64 exec, 1
buffer_store_dword v1, v2, s[8:11], s47 offen sc1
s_mov_b64 exec, -1''')
    a('''v_lshrrev_b32 v6, 3, v4
v_lshlrev_b32 v6, 10, v6
v_bfe_u32 v7, v4, 4, 1
v_lshlrev_b32 v7, 2, v7
v_and_b32 v8, 7, v4
v_xor_b32 v7, v7, v8
v_lshl_add_u32 v6, v7, 4, v6
s_lshl_b32 s23, s53, 10
s_lshl_b32 s24, s61, 11
s_add_u32 s24, s23, s24
s_lshl_b32 s26, s5, 7
s_lshl_b32 s27, s53, 13
s_add_u32 s26, s26, s27
s_lshl_b32 s27, s61, 14
s_add_u32 s26, s26, s27
s_nop 0''')
    for c in range(8):
        a('s_add_u32 s38, s5, %d' % c)
        a('s_and_b32 s38, s38, 7')
        a('s_lshl_b32 s30, s38, 16')
        a('s_add_u32 m0, s24, %d' % (c * 4096))
        a('s_add_u32 s30, s30, s26')
        if 'nowo' in OPT:
            continue
        a('buffer_load_dwordx4 v6, s[12:15], s30 offen lds')
        a('s_add_u32 m0, s24, %d' % (32768 + c * 4096))
        a('s_add_u32 s30, s30, 0x8000')
        a('buffer_load_dwordx4 v6, s[12:15], s30 offen lds')
        a('s_waitcnt vmcnt(%s)' % OPTV.get('wot', '2'))
    stamp(a, 7)
    a('''v_lshlrev_b32 v6, 6, v4
s_lshr_b32 s46, s4, 4
s_lshl_b32 s46, s46, 15
s_lshl_b32 s47, s5, 12
s_add_u32 s46, s46, s47
s_add_u32 s46, s46, %d
s_cmp_eq_u32 s3, 0
s_cbranch_scc0 L_yw''' % FL3)
    flag_poll_lazy(a, 6, 1, 46, 32)
    lds_add(a, 12, 3, C_GOY)
    a('L_yw:')
    transpose_addrs(a, 3, 20, 21, 22, 8, 9, USI, USO)
    a('''v_mul_u32_u24 v10, %d, v8
v_and_b32 v11, 7, v4
v_lshl_add_u32 v10, v11, 4, v10
v_add_u32 v11, %d, v10
s_mul_i32 s46, s5, %d
s_mul_i32 s47, s3, %d
s_add_u32 s46, s46, s47
s_lshl_b32 s47, s4, 7
s_add_u32 s46, s46, s47
s_add_u32 s46, s46, %d
s_lshl_b32 s47, s3, 11
s_add_u32 s47, s47, %d''' % (RS, 8 * RS - 1024, 64 * RS, 16 * RS, YT, USI))
    lds_spin(a, 12, 3, C_GOY, 1, nap=8)
    a('''s_mov_b32 m0, s47
v_lshlrev_b32 v8, 11, v8
buffer_load_dwordx4 v10, s[8:11], s46 offen sc1 lds
buffer_load_dwordx4 v11, s[8:11], s46 offen offset:1024 sc1 lds
v_lshl_add_u32 v8, v9, 4, v8
s_lshl_b32 s46, s4, 17
s_lshl_b32 s47, s3, 15
s_add_u32 s46, s46, s47
s_lshl_b32 s47, s5, 7
s_add_u32 s46, s46, s47
s_add_u32 s47, s46, 0x4000
s_waitcnt vmcnt(0)''')
    lds_add(a, 12, 1, C_Y)
    lds_spin(a, 12, 1, C_Y, 4)
    transpose_a(a, 20, 21, 32, 23)
    a('''ds_read_b128 v[32:35], v22
ds_read_b128 v[36:39], v22 offset:1024
s_waitcnt lgkmcnt(1)
buffer_store_dwordx4 v[32:35], v8, s[16:19], s46 offen nt
s_waitcnt lgkmcnt(0)
buffer_store_dwordx4 v[36:39], v8, s[16:19], s47 offen nt''')
    lds_add(a, 12, 1, C_Y2)
    stamp(a, 8)
    a('s_waitcnt lgkmcnt(0)')
    stamp(a, 12)
    stamp_dump(a)
    a('s_endpgm')

    a('''L_gemm:
s_cmp_ge_u32 s3, 8
s_cbranch_scc1 L_mm
s_setprio 2
s_sub_u32 s61, s3, 4
v_lshrrev_b32 v10, 3, v4
v_lshrrev_b32 v11, 4, v4
v_and_b32 v12, 7, v4
v_xor_b32 v13, v12, v11
s_lshl_b32 s47, s61, 4
v_add_u32 v10, s47, v10
s_lshl_b32 s46, s4, 16
v_lshl_add_u32 v14, v10, 10, s46
v_lshl_add_u32 v6, v13, 4, v14
v_xor_b32 v7, 64, v6
v_add_u32 v7, 0x1c00, v7
v_lshlrev_b32 v16, 10, v10
v_lshl_add_u32 v16, v12, 4, v16
v_mul_u32_u24 v10, 3072, v10
v_and_b32 v11, 1, v11
v_lshlrev_b32 v11, 2, v11
v_xor_b32 v12, v12, v11
v_lshl_add_u32 v8, v12, 4, v10
s_lshl_b32 s46, s5, 7
v_add_u32 v8, s46, v8
v_add_u32 v9, %d, v8
s_lshl_b32 s48, s61, 11
s_waitcnt lgkmcnt(0)''' % (8 * 3072 - 1024))
    srd(a, 16, 32, 2048 * 1024)
    srd(a, 12, 34, 512 * 3072)

    def dma_chunk(c):
        slot = (c % 6) * 16384
        if c < 8:
            a('s_add_u32 s50, s6, %d' % c)
            a('s_and_b32 s50, s50, 7')
            a('s_mul_i32 s49, s50, %d' % (64 * 3072))
            a('s_add_u32 m0, s48, %d' % slot)
            a('s_lshl_b32 s50, s50, 7')
            a('buffer_load_dwordx4 v6, s[16:19], s50 offen lds')
            a('buffer_load_dwordx4 v7, s[16:19], s50 offen offset:1024 lds')
            a('s_add_u32 m0, s48, %d' % (slot + 8192))
            a('s_add_u32 s49, s49, %d' % (SEG[0] * 1024))
            a('buffer_load_dwordx4 v8, s[12:15], s49 offen lds')
            a('buffer_load_dwordx4 v9, s[12:15], s49 offen offset:1024 lds')
        else:
            p, j = 1 + ((c - 8) >> 2), (c - 8) & 3
            for hf in range(2):
                a('s_add_u32 s50, s6, %d' % (2 * j + hf))
                a('s_and_b32 s50, s50, 7')
                a('s_mul_i32 s49, s50, %d' % (64 * 3072))
                a('s_add_u32 m0, s48, %d' % (slot + hf * 8192))
                a('s_add_u32 s49, s49, %d' % (SEG[p] * 1024))
                a('buffer_load_dwordx4 v8, s[12:15], s49 offen lds')
                a('buffer_load_dwordx4 v9, s[12:15], s49 offen offset:1024 lds')

    dma_chunk(0)
    dma_chunk(1)
    a('s_load_dwordx2 s[20:21], s[0:1], 0')
    srd(a, 8, 38, WS_BYTES)
    transpose_addrs(a, 61, 20, 21, 22, 23, 24, USI, USO)
    a('''s_lshl_b32 s46, s45, 16
s_lshl_b32 s47, s44, 7
s_add_u32 s58, s46, s47
s_add_u32 s59, s48, %d
v_add_u32 v17, 0x1c00, v16
v_mov_b32 v12, %d
s_waitcnt lgkmcnt(0)''' % (USI, CNT))
    srd(a, 60, 20, 2048 * 1024)
    order = [0, 1]
    cnt = lambda x: 4 if isinstance(x, int) else x[1]
    stamp(a, 2)
    for c in range(16):
        a('s_waitcnt vmcnt(%d)' % (sum(cnt(x) for x in order[order.index(c) + 1:]) if c < 15 else 0))
        if c in (0, 8, 12):
            stamp(a, {0: 3, 8: 4, 12: 5}[c])
        a('s_barrier')
        if 'bars' in OPT and c <= 12 and c != 1:
            n = 1 + c - (c > 1)
            a('s_memrealtime s[%d:%d]' % (ST0 + 2 * n, ST0 + 2 * n + 1))
        for n in {0: [2, 3], 1: [4, 5]}.get(c, [c + 4] if c + 4 < 16 else []):
            dma_chunk(n)
            order.append(n)
        if c == 12:
            att_prologue(True)
            order.append(('m', 1))
        if c == 13:
            a('s_mov_b32 m0, s59')
            a('s_nop 0')
            a('buffer_load_dwordx4 v16, s[60:63], s58 offen lds')
            a('buffer_load_dwordx4 v17, s[60:63], s58 offen offset:1024 lds')
            order.append(('u', 2))
        if c == 15:
            transpose_a(a, 20, 21, 32, 25)
    a('''s_barrier
ds_read_b32 v1, v12 offset:%d
s_waitcnt lgkmcnt(0)
v_readfirstlane_b32 s7, v1''' % C_TAG)
    a('s_branch L_att')

    XA, WA, OA, OV = 160, 164, 165, 166
    XR, ACC = 0, 128
    WF = [144, 148, 152, 156]
    a('''L_mm:
%s
s_setprio 3
s_and_b32 s52, s3, 1
s_bfe_u32 s53, s3, 0x10001
v_and_b32 v10, 31, v4
v_bfe_u32 v11, v4, 1, 3
v_lshrrev_b32 v12, 5, v4
v_xor_b32 v11, v11, v12
v_lshlrev_b32 v11, 4, v11
v_lshl_add_u32 v10, v10, 7, v11
s_lshl_b32 s46, s52, 12
v_add_u32 v%d, s46, v10''' % ('s_memrealtime s[70:71]' if 'dbgt' in OPT else '', XA))
    for jq in range(1, 4):
        a('v_xor_b32 v%d, %d, v%d' % (XA + jq, jq << 5, XA))
    a('''v_lshlrev_b32 v10, 10, v12
v_bfe_u32 v11, v4, 2, 2
v_lshl_add_u32 v10, v11, 7, v10
v_bfe_u32 v11, v4, 3, 1
v_xor_b32 v11, s53, v11
v_lshl_add_u32 v10, v11, 6, v10
v_bfe_u32 v11, v4, 4, 1
v_lshl_add_u32 v10, v11, 5, v10
v_and_b32 v11, 3, v4
v_lshl_add_u32 v%d, v11, 3, v10''' % WA)
    a('''s_lshl_b32 s46, s4, 1
s_add_u32 s46, s46, s52
s_lshl_b32 s46, s46, 10
s_lshl_b32 s47, s5, 1
s_add_u32 s47, s47, s53
s_lshl_b32 s47, s47, 17
s_add_u32 s46, s46, s47
v_lshl_add_u32 v%d, v4, 4, s46
v_bfe_u32 v11, v4, 4, 1
v_lshlrev_b32 v11, 16, v11
v_lshl_add_u32 v11, v12, 8, v11
v_and_b32 v10, 15, v4
v_lshl_add_u32 v11, v10, 4, v11
v_add_u32 v%d, s46, v11
v_mov_b32 v167, v4
s_mov_b32 s62, 0x%x
s_mov_b32 s64, %d
s_mov_b32 s65, %d
s_mov_b32 s63, %d
s_lshl_b32 s54, s52, 12
s_lshl_b32 s47, s53, 11
s_add_u32 s54, s54, s47
s_add_u32 s54, s54, %d
s_lshl_b32 s56, s5, 6
s_add_u32 s56, s56, %d
s_lshl_b32 s55, s4, 9
s_add_u32 s55, s55, s56
s_waitcnt lgkmcnt(0)''' % (OA, OV, f2u(QSCALE), KF, KF + 65536, VF, QX, FL1))
    srd(a, 8, 38, WS_BYTES)
    if 'nowpf' not in OPT:
        srd(a, 12, 34, 512 * 3072)
        a('''v_mul_u32_u24 v126, 3072, v4
s_and_b32 s46, s4, 7
s_mul_i32 s46, s46, %d
s_lshl_b32 s47, s5, 7
s_add_u32 s46, s46, s47
s_xor_b32 s47, s52, 1
s_lshl_b32 s47, s47, 11
s_add_u32 s57, s46, s47''' % (64 * 3072))

    def wpf(wave):
        l = label('pf')
        a('s_cmp_eq_u32 s3, %d' % wave)
        a('s_cbranch_scc0 %s' % l)
        a('buffer_load_dword v127, v126, s[12:15], s57 offen')
        a(l + ':')

    WPV, WPQ = int(OPTV.get('wpv', -1)), int(OPTV.get('wpq', -1))
    if WPV < 0:
        wpf(8)
    if WPQ < 0:
        wpf(9)
    if 'upf' in OPT:
        a('''s_cmp_eq_u32 s3, 10
s_cbranch_scc0 L_noupf
s_load_dwordx2 s[20:21], s[0:1], 0
v_lshlrev_b32 v126, 10, v4
s_lshl_b32 s46, s45, 16
s_lshl_b32 s47, s44, 7
s_add_u32 s46, s46, s47
v_add_u32 v126, s46, v126
s_waitcnt lgkmcnt(0)
global_load_dword v127, v126, s[20:21]
L_noupf:''')
    PD = 3

    def chunk_of(s):
        p, kk = s >> 5, s & 31
        return (kk >> 2, kk & 3) if p == 0 else (8 + 4 * (p - 1) + (kk >> 3), kk & 7)

    def nreads(s):
        return 0 if s >= 96 else (3 if s < 32 else 2)

    def reads(s):
        c, j = chunk_of(s)
        if j == 0:
            a('s_barrier')
            if c == 0:
                if OPTV.get('enc') == 'b0':
                    a('s_memrealtime s[92:93]')
                stamp(a, 2)
                if 'dbgt' in OPT:
                    a('s_memrealtime s[72:73]')
            if c == WPV:
                wpf(8)
            if c == WPQ:
                wpf(9)
            if c == 6:
                a('s_waitcnt vmcnt(0)')
            if c % 3 == 0 and c > 0:
                op = 'v_add_u32' if c % 6 == 3 else 'v_subrev_u32'
                for r in ([XA, XA + 1, XA + 2, XA + 3] if c < 8 else []) + [WA]:
                    a('%s v%d, 0xc000, v%d' % (op, r, r))
        so = (c % 3) * 16384
        if c < 8:
            a('ds_read_b128 %s, v%d offset:%d' % (vr(XR + 4 * s, 4), XA + j, so))
            so += 8192
        for rd in range(2):
            a('ds_read_b64_tr_b16 %s, v%d offset:%d' % (vr(WF[s % 4] + 2 * rd, 2), WA, so + j * 2048 + rd * 512))

    def epilogue(p):
        lo, hi = vr(ACC, 4), vr(ACC + 4, 4)
        if SEG[p] == 0:
            a('v_mov_b32 v4, v167')
            a('v_lshl_add_u32 v10, v167, 4, s54')
            a('s_nop 13')
            for i in range(16):
                a('v_mul_f32 v%d, s62, v%d' % (ACC + i, ACC + i))
        else:
            a('s_nop 15')
        for j in range(8):
            a('v_cvt_pk_bf16_f32 v%d, v%d, v%d' % (ACC + j, ACC + 2 * j, ACC + 2 * j + 1))
        if SEG[p] == 0:
            a('ds_write_b128 v10, %s' % lo)
            a('ds_write_b128 v10, %s offset:1024' % hi)
        elif SEG[p] == 1:
            a('buffer_store_dwordx4 %s, v%d, s[8:11], s64 offen sc1' % (lo, OA))
            a('buffer_store_dwordx4 %s, v%d, s[8:11], s65 offen sc1' % (hi, OA))
        else:
            a('buffer_store_dwordx4 %s, v%d, s[8:11], s63 offen sc1' % (lo, OV))
            a('buffer_store_dwordx4 %s, v%d, s[8:11], s63 offen offset:512 sc1' % (hi, OV))

    for s in range(PD):
        reads(s)
    for s in range(96):
        p, kk = s >> 5, s & 31
        if s + PD < 96:
            reads(s + PD)
        a('s_waitcnt lgkmcnt(%d)' % sum(nreads(t) for t in range(s + 1, s + PD + 1)))
        x, w = XR + 4 * kk, WF[s % 4]
        if SEG[p] == 2:
            a(mfma(ACC, x, w, None if kk == 0 else ACC))
        else:
            a(mfma(ACC, w, x, None if kk == 0 else ACC))
        if s == 80:
            a('v_mov_b32 v12, %d' % CNT)
            a('ds_read_b32 v1, v12 offset:%d' % C_TAG)
            a('s_waitcnt vmcnt(0) lgkmcnt(0)')
            a('v_readfirstlane_b32 s7, v1')
            arrive_publish(a, 12, 1, C_KV, 4, 55, 2)
            if 'rt' in OPT:
                stamp(a, 2)
        if kk == 31:
            if OPTV.get('enc') == 'v' and p == 1:
                a('s_memrealtime s[92:93]')
            stamp(a, 3 + p)
            epilogue(p)
    a('s_waitcnt lgkmcnt(0)')
    a('s_barrier')
    a('''s_cmp_eq_u32 s3, 8
s_cbranch_scc0 L_apro
v_and_b32 v6, 31, v4
v_lshlrev_b32 v6, 9, v6''')
    if 'p2' not in OPT:
        flag_poll_lazy(a, 6, 1, 56, 1)
    else:
        flag_poll(a, 6, 1, 2, 56)
    lds_add(a, 12, 3, C_GO)

    a('L_apro:')
    att_prologue(False)
    a('''L_att:
v_xor_b32 v6, 0x1000, v13
ds_read_b128 %s, v13
ds_read_b128 %s, v6''' % (vr(Q[1], 4), vr(Q[0], 4)))

    def rdk(i):
        return ['buffer_load_dwordx4 %s, v%d, s[8:11], s36 offen sc1' % (vr(K[i % NB], 4), KA),
                's_add_u32 s36, s36, 2048'] + ['s_and_b32 s36, s36, 0xffff'] * OWN

    def rdv(i):
        return ['s_mov_b64 exec, s[40:41]',
                'buffer_load_dwordx4 %s, v%d, s[8:11], s37 offen sc1' % (vr(V[i % NBV][0], 4), VA),
                'buffer_load_dwordx4 %s, v%d, s[8:11], s37 offen offset:512 sc1' % (vr(V[i % NBV][1], 4), VA),
                's_mov_b64 exec, -1', 's_add_u32 s37, s37, 2048'] + ['s_and_b32 s37, s37, 0xffff'] * OWN

    PF = False
    pfl = []
    issue = []
    if OWN:
        lds_spin(a, 12, 3, C_KV, 4)
        a('\n'.join(rdk(0) + rdv(0)))
        issue += [('k', 0), ('v', 0), ('v', 0)]
    stamp(a, 6)
    lds_spin(a, 12, 3, C_GO, 1)
    stamp(a, 7)
    pro = []
    if not OWN:
        pro = rdk(0)
        issue += [('k', 0)]
    for i in range(1, DK):
        pro += rdk(i)
        issue += [('k', i)]
        if i > 1 or not OWN:
            pro += rdv(i - 1)
            issue += [('v', i - 1), ('v', i - 1)]
    a('\n'.join(pro))
    a('s_setprio 3')
    a('s_waitcnt vmcnt(%d)' % (len(issue) - 1))
    if OPTV.get('enc') == 'go':
        a('s_memrealtime s[92:93]')
    arrive_publish(a, 12, 3, C_Q, 8, 55, 2)
    issue.append(('f',))
    stamp(a, 8)
    if 'dbgt' in OPT:
        a('s_memrealtime s[74:75]')
    a(mfma(S[0], K[0], Q[0], None))
    a('s_nop 7')
    a('s_nop 3')
    PRIO = {7: 2, 15: 1, 23: 0}

    def unit(i, q):
        u = 2 * i + q
        sc, sn = S[u % 2], S[(u + 1) % 2]
        pc, pp = Pp[u % 2], Pp[(u + 1) % 2]
        i1, q1 = (i, 1) if q == 0 else (i + 1, 0)
        i0, q0 = (i - 1, 1) if q == 0 else (i, 0)
        qk = mfma(sn, K[i1 % NB], Q[q1], None)
        pv0 = mfma(O[q0], V[i0 % NBV][0], pp, O[q0])
        pv1 = mfma(O[q0], V[i0 % NBV][1], pp + 4, O[q0])
        e = ['v_exp_f32 v%d, v%d' % (sc + j, sc + j) for j in range(16)]
        c = ['v_cvt_pk_bf16_f32 v%d, v%d, v%d' % (pc + j, sc + 2 * j, sc + 2 * j + 1) for j in range(8)]
        c7prev = 'v_cvt_pk_bf16_f32 v%d, v%d, v%d' % (pp + 7, sn + 14, sn + 15)
        out = [e[0]]
        late_qk = OWN and u == 1
        if late_qk:
            last = max(n for n, x in enumerate(issue) if x == ('v', 0))
            out.append('s_waitcnt vmcnt(%d)' % sum(x != ('f',) for x in issue[last + 1:]))
        elif q == 1:
            last = max(n for n, x in enumerate(issue) if x in (('k', i + 1), ('v', i)))
            out.append('s_waitcnt vmcnt(%d)' % sum(x != ('f',) for x in issue[last + 1:]))
        if u > 0:
            out.append(c7prev)
        if u < 63 and not late_qk:
            out.append(qk)
        kl = rdk(i + DK) if q == 0 and i + DK < 32 else []
        vl = rdv(i + DK - 1) if q == 1 and i + DK - 1 < 32 else []
        issue.extend([('k', i + DK)] * bool(kl) + [('v', i + DK - 1)] * 2 * bool(vl))
        out += kl[:1] + vl[:4]
        out += [e[1], e[2], c[0], e[3], e[4], c[1], e[5]]
        if u > 0:
            out.append(pv0)
        out += kl[1:2] + vl[4:5]
        out += [e[6], c[2], e[7], e[8], c[3], e[9], e[10], c[4]]
        if u > 0:
            out.append(pv1)
        out += kl[2:] + vl[5:]
        if q == 0 and i in (1, 8, 16) and PF:
            out += pfl
            issue.append(('p',))
        if q == 1 and i in PRIO:
            out.append('s_setprio %d' % PRIO[i])
            if DIAG and 'qs' in OPT:
                n = 3 + i // 8
                out.append('s_memtime s[%d:%d]' % (ST0 + 2 * n, ST0 + 2 * n + 1))
        out += [e[11], e[12], c[5], e[13], e[14], c[6], e[15]]
        if late_qk:
            last = issue.index(('k', 1))
            out += ['s_waitcnt vmcnt(%d)' % sum(x != ('f',) for x in issue[last + 1:]), qk, 's_nop 11']
        return out

    for i in range(32):
        for q in range(2):
            if (i, q) == (31, 0):
                a('''s_and_b32 s26, s3, 3
s_xor_b32 s27, s26, 2
s_mul_i32 s26, s26, 2304
s_add_u32 s26, s26, {ox}
s_mul_i32 s27, s27, 2304
s_add_u32 s27, s27, {ox}
v_add_u32 v6, s26, v5
v_add_u32 v7, s27, v5
v_lshlrev_b32 v8, 2, v4
v_add_u32 v9, s27, v8
v_add_u32 v8, s26, v8
s_sub_u32 s26, s3, 4
s_lshl_b32 s26, s26, 2
v_add_u32 v10, s26, v12
s_xor_b32 s26, s26, 8
v_add_u32 v11, s26, v12
s_cmp_eq_u32 s19, 0
s_cbranch_scc0 L_xa'''.format(ox=OX))
                lds_spin(a, 12, 3, C_Q, 8)
                a('s_branch L_xb')
                a('L_xa:')
                lds_spin(a, 12, 3, C_O, 4)
                a('''L_xb:
s_mov_b32 s44, 0x%x
s_mov_b32 s45, 0x%x
s_mov_b32 s46, 0x7f7fffff
s_lshl_b32 s26, s19, 2
v_add_u32 v13, s26, v12
v_mov_b32 v3, 1
buffer_load_dword v1, v163, s[8:11], s52 offen sc1''' % (f2u(2.0 ** -64), f2u(2.0 ** 64)))
                issue.append(('m',))
            for s in unit(i, q):
                a(s)
    a('s_nop 0')
    a('v_cvt_pk_bf16_f32 v%d, v%d, v%d' % (Pp[1] + 7, S[1] + 14, S[1] + 15))
    if OPTV.get('enc') == 'loop':
        a('s_memrealtime s[92:93]')
    stamp(a, 9)
    if 'dbgt' in OPT:
        a('s_memrealtime s[76:77]')
    a('s_setprio 3')
    a('s_nop 0')
    a(mfma(O[1], V[31 % NBV][0], Pp[1], O[1]))
    a(mfma(O[1], V[31 % NBV][1], Pp[1] + 4, O[1]))
    F = O[1]
    a('''ds_write_b128 v6, %s
ds_write_b128 v6, %s offset:1024
ds_write_b32 v8, v%d offset:2048
ds_write_b32 v10, v3 offset:%d''' % (vr(O[0], 4), vr(O[0] + 4, 4), O[0] + 8, C_X))
    a('''s_mov_b32 s66, 0
L_xw:
ds_read_b32 v2, v11 offset:%d
ds_read_b128 v[48:51], v7
ds_read_b128 v[52:55], v7 offset:1024
ds_read_b32 v56, v9 offset:2048
s_add_u32 s66, s66, 1
s_waitcnt lgkmcnt(0)
v_readfirstlane_b32 s67, v2
s_cmp_ge_u32 s66, %d
s_cbranch_scc1 L_xe
s_cmp_eq_u32 s67, 0
s_cbranch_scc1 L_xw
L_xe:''' % (C_X, SPIN_MAX * 16))
    stamp(a, 10)
    for j in range(9):
        a('v_add_f32 v%d, v%d, v%d' % (F + j, F + j, 48 + j))
    a('''v_rcp_f32 v48, v{8}
v_add_f32 v50, abs(v{0}), abs(v{1})
v_add_f32 v51, abs(v{2}), abs(v{3})
v_add_f32 v52, abs(v{4}), abs(v{5})
v_add_f32 v53, abs(v{6}), abs(v{7})
v_cmp_le_f32 s[28:29], s44, v{8}
v_add_f32 v50, v50, v51
v_add_f32 v52, v52, v53
v_cmp_ge_f32 s[30:31], s45, v{8}
v_add_f32 v50, v50, v52
v_cmp_ge_f32 s[32:33], s46, v50
s_and_b64 s[28:29], s[28:29], s[30:31]
s_nop 0
s_and_b64 s[28:29], s[28:29], s[32:33]
s_cmp_eq_u64 s[28:29], -1
s_cbranch_scc0 L_slow
L_fin:'''.format(*range(F, F + 9)))
    for j in range(8):
        a('v_mul_f32 v%d, v%d, v48' % (F + j, F + j))
    for j in range(4):
        a('v_cvt_pk_bf16_f32 v%d, v%d, v%d' % (52 + j, F + 2 * j, F + 2 * j + 1))
    a('buffer_store_dwordx4 v[52:55], v5, s[8:11], s54 offen sc1')
    lds_add(a, 13, 3, C_O)
    stamp(a, 11)
    a('s_cmp_ge_u32 s3, 8')
    a('s_cbranch_scc1 L_bend')
    a('s_load_dwordx2 s[34:35], s[0:1], 96')
    a('s_waitcnt lgkmcnt(0)')
    srd(a, 16, 34, 2048 * 2048)
    AC = [20, 36]
    OFR, WR = 56, 88

    def wo_frags(g):
        for cc in range(4):
            for n in range(2):
                for nt in range(2):
                    for rd in range(2):
                        a('ds_read_b64_tr_b16 %s, v%d offset:%d' % (vr(WR + 16 * cc + 8 * n + 4 * nt + 2 * rd, 2), (160, 161)[nt],
                                                                    g * 32768 + cc * 4096 + n * 2048 + rd * 1024))

    def o_loads(cc):
        a('''s_add_u32 s38, s51, %d
s_and_b32 s38, s38, 7
s_lshl_b32 s30, s38, 12
s_add_u32 s30, s30, s53
buffer_load_dwordx4 %s, v5, s[8:11], s30 offen sc1
buffer_load_dwordx4 %s, v5, s[8:11], s30 offen offset:1024 sc1''' % (cc, vr(OFR + 8 * cc, 4), vr(OFR + 8 * cc + 4, 4)))

    def o_mfma(cc, first):
        for n in range(2):
            for nt in range(2):
                a(mfma(AC[nt], WR + 16 * cc + 8 * n + 4 * nt, OFR + 8 * cc + 4 * n, None if first and n == 0 else AC[nt]))

    def poll_half(g, nap):
        lp, le = label('hp'), label('he')
        a('s_mov_b32 s23, 0')
        a('s_mov_b32 s66, 0')
        a(lp + ':')
        for cc in range(4):
            e = label('ls')
            a('s_bitcmp1_b32 s23, %d' % cc)
            a('s_cbranch_scc1 %s' % e)
            o_loads(cc)
            a(e + ':')
        a('s_add_u32 s66, s66, 1')
        a('s_waitcnt vmcnt(0) lgkmcnt(0)')
        for cc in range(4):
            e, gl = label('lc'), label('lg')
            b = OFR + 8 * cc
            a('''s_bitcmp1_b32 s23, {cc}
s_cbranch_scc1 {e}
v_max3_u32 v1, v{0}, v{1}, v{2}
v_max3_u32 v2, v{3}, v{4}, v{5}
v_max3_u32 v1, v1, v{6}, v{7}
v_max_u32 v1, v1, v2
v_cmp_eq_u32 vcc, -1, v1
s_cmp_ge_u32 s66, {n}
s_cbranch_scc1 {g}
s_cbranch_vccnz {e}
{g}:
s_bitset1_b32 s23, {cc}'''.format(*range(b, b + 8), cc=cc, e=e, g=gl, n=SPIN_MAX))
            o_mfma(cc, False)
            a(e + ':')
        a('''s_cmp_eq_u32 s23, 15
s_cbranch_scc1 %s
s_sleep %s
s_branch %s
%s:''' % (le, nap, lp, le))

    for j in range(32):
        a('v_mov_b32 v%d, 0' % (AC[0] + j))
    a('''s_waitcnt vmcnt(1)
v_cmp_eq_u32 vcc, s7, v1
s_nop 1
s_cmp_eq_u64 vcc, -1
s_cbranch_scc1 L_mok''')
    flag_poll_lazy(a, 163, 1, 52, 8)
    a('L_mok:')
    lds_spin(a, 12, 3, C_Y2, 4, nap=8)
    wo_frags(0)
    a('s_sleep %s' % OPTV.get('ein', '28'))
    poll_half(0, OPTV.get('esl', '8'))
    wo_frags(1)
    a('s_add_u32 s53, s53, 2048')
    stamp(a, 10)
    lds_spin(a, 12, 3, C_O1, 4, nap=2)
    if 'lin' in OPTV:
        a('s_sleep %s' % OPTV['lin'])
    poll_half(1, OPTV.get('lsl', '6'))
    stamp(a, 12)
    a('''v_mov_b32 v3, 1
s_cmp_eq_u32 s49, 0
s_nop 12
s_cbranch_scc0 L_r1''')
    for own in range(2):
        if own:
            a('L_r1:')
        for j in range(4):
            a('ds_write_b128 v164, %s offset:%d' % (vr(AC[1 - own] + 4 * j, 4), 1024 * j))
        a('ds_write_b32 v166, v3 offset:%d' % C_P3)
        if not own:
            a('s_branch L_r2')
    a('''L_r2:
s_mov_b32 s66, 0
L_rw:
ds_read_b32 v3, v167 offset:%d''' % C_P3)
    for j in range(4):
        a('ds_read_b128 %s, v165 offset:%d' % (vr(64 + 4 * j, 4), 1024 * j))
    a('''s_add_u32 s66, s66, 1
s_waitcnt lgkmcnt(0)
v_readfirstlane_b32 s67, v3
s_cmp_ge_u32 s66, %d
s_cbranch_scc1 L_re
s_cmp_eq_u32 s67, 0
s_cbranch_scc1 L_rw
L_re:''' % (SPIN_MAX * 16))
    a('s_cmp_eq_u32 s49, 0')
    a('s_cbranch_scc0 L_r3')
    for own in range(2):
        if own:
            a('L_r3:')
        for j in range(16):
            a('v_add_f32 v%d, v%d, v%d' % (64 + j, AC[own] + j, 64 + j))
        if not own:
            a('s_branch L_r4')
    a('L_r4:')
    for j in range(8):
        a('v_cvt_pk_bf16_f32 v%d, v%d, v%d' % (80 + j, 64 + 2 * j, 65 + 2 * j))
    st3 = OPTV.get('st3', '').replace('+', ' ')
    a('buffer_store_dwordx4 v[80:83], v162, s[16:19], s50 offen' + st3)
    a('buffer_store_dwordx4 v[84:87], v162, s[16:19], s50 offen offset:16' + st3)
    if 'dbgt' in OPT:
        a('s_waitcnt vmcnt(0)')
        a('s_memrealtime s[78:79]')
        a('s_load_dwordx2 s[36:37], s[0:1], 104')
        a('s_waitcnt lgkmcnt(0)')
        srd(a, 12, 36, 256)
        a('v_mov_b32 v2, 0')
        a('s_mov_b64 exec, 1')
        for i in range(5):
            a('s_sub_u32 s66, s%d, s7' % (70 + 2 * i))
            a('s_add_u32 s66, s66, 1000')
            a('v_mov_b32 v1, s66')
            a('buffer_atomic_umax v1, v2, s[12:15], 0 offen offset:%d sc1' % (4 + 4 * i))
            a('s_sub_u32 s66, 100000, s66')
            a('v_mov_b32 v3, s66')
            a('buffer_atomic_umax v3, v2, s[12:15], 0 offen offset:%d sc1' % (36 + 4 * i))
        a('s_mov_b64 exec, -1')
        a('s_waitcnt vmcnt(0)')
    a('L_bend:')
    if 'enc' in OPTV:
        e = OPTV['enc']
        if e != 'skew':
            a('s_cmp_eq_u32 s2, %s' % OPTV.get('ewg', '0'))
            a('s_cbranch_scc0 L_encd')
        a('s_cmp_eq_u32 s3, 8')
        a('s_cbranch_scc0 L_encd')
        a('s_waitcnt lgkmcnt(0)')
        a('s_sub_u32 s94, s92, s90' if e not in ('f', 'skew') else 's_mov_b32 s94, 0')
        a('s_add_u32 s94, s94, 6000')
        a('''L_encw:
s_memrealtime s[96:97]
s_waitcnt lgkmcnt(0)
s_sub_u32 s96, s96, s90
s_cmp_lt_u32 s96, s94
s_cbranch_scc1 L_encw
L_encd:''')
    stamp_dump(a)
    a('s_endpgm')

    for t in ('',):
        OS, SS, M, PS, KS, MX = 80, 16, 64, 48, 104, 58
        a('''L_slow%s:
v_mov_b32 v%d, 0xff800000
s_mov_b32 s42, 0
L_s1%s:
buffer_load_dwordx4 %s, v%d, s[8:11], s42 offen sc1
s_waitcnt vmcnt(0)
%s
s_nop 15''' % (t, MX, t, vr(KS, 4), KA, mfma(SS, KS, Q[1], None)))
        for j in range(8):
            a('v_max3_f32 v%d, v%d, v%d, v%d' % (MX, MX, SS + 2 * j, SS + 2 * j + 1))
        a('''s_add_u32 s42, s42, 1024
s_cmp_lt_u32 s42, 0x10000
s_cbranch_scc1 L_s1%s
v_mov_b32 v%d, v%d
s_nop 1
v_permlane32_swap_b32 v%d, v%d
s_nop 1
v_max_f32 v%d, v%d, v%d''' % (t, MX + 1, MX, MX, MX + 1, MX, MX, MX + 1))
        for j in range(16):
            a('v_sub_f32 v%d, 0, v%d' % (M + j, MX))
            a('v_mov_b32 v%d, 0' % (OS + j))
        a('''s_mov_b32 s42, 0
L_s2%s:
buffer_load_dwordx4 %s, v%d, s[8:11], s42 offen sc1
s_mov_b64 exec, s[40:41]
buffer_load_dwordx4 %s, v%d, s[8:11], s42 offen sc1
buffer_load_dwordx4 %s, v%d, s[8:11], s42 offen offset:512 sc1
s_mov_b64 exec, -1
s_waitcnt vmcnt(0)
%s
s_nop 15''' % (t, vr(KS, 4), KA, vr(V[0][0], 4), VA, vr(V[0][1], 4), VA, mfma(SS, KS, Q[1], M)))
        for j in range(16):
            a('v_exp_f32 v%d, v%d' % (SS + j, SS + j))
        a('s_nop 0')
        for j in range(8):
            a('v_cvt_pk_bf16_f32 v%d, v%d, v%d' % (PS + j, SS + 2 * j, SS + 2 * j + 1))
        a('s_nop 1')
        a(mfma(OS, V[0][0], PS, OS))
        a(mfma(OS, V[0][1], PS + 4, OS))
        a('''s_add_u32 s42, s42, 1024
s_cmp_lt_u32 s42, 0x10000
s_cbranch_scc1 L_s2%s
s_nop 15''' % t)
        a('''v_rcp_f32 v48, v88
s_nop 0
s_branch L_fin''')
    a('''L_end:
s_endpgm''')
    return a.text()


def main(path):
    KN = NAME + '_kernel'
    t = kernel()
    hdr = '''; fused kernel: projections + S4 kernel generation | attention + causal convolution | output projection
; @launch grid=(256,1,1) block=(768,1,1) lds=%d
.amdgcn_target "amdgcn-amd-amdhsa--gfx950"
.text
.globl %s
''' % (LDS_BYTES, KN)
    pad = '.p2align 8\n.fill 4096, 4, 0xbf800000\n'
    kd = '''.section .rodata,"a"
.p2align 6
.amdhsa_kernel %s
  .amdhsa_next_free_vgpr 168
  .amdhsa_next_free_sgpr 102
  .amdhsa_accum_offset 168
  .amdhsa_group_segment_fixed_size 0
  .amdhsa_kernarg_size 120
  .amdhsa_user_sgpr_count 2
  .amdhsa_user_sgpr_kernarg_segment_ptr 1
  .amdhsa_system_sgpr_workgroup_id_x 1
.end_amdhsa_kernel
''' % KN
    open(path, 'w').write(hdr + t + pad + kd)


if __name__ == '__main__':
    for arg in sys.argv[1:]:
        OPT.add(arg)
        if '=' in arg:
            OPTV[arg.split('=')[0]] = arg.split('=')[1]
    DIAG = 'diag' in OPT
    main(sys.argv[1] if len(sys.argv) > 1 else 'cdna_kernels/%s.s' % NAME)
```

```python
import sys
import struct

NAME = 'concat_heads__ssm_conv_s4__softmax_full_mha__prompt'

KF = 0x200000
VF = 0x400000
OF = 0x600000
RS = 4224
UT = 0x800000
YT = 0x1400000
FL1 = 0xC00000
FLU = 0xC04000
FL2 = 0xC08000
FL3 = 0xC10000
WS_BYTES = 0x2000000

GEN = 6 * 16384
LDS_BYTES = GEN + 65536
QX = 65536
USI = 74752
USO = 82944
OX = 65536
YI = 73728
CNT = 94208
C_TAG, C_KV, C_GO, C_PAIR, C_CONV, C_O, C_Y, C_GOU, C_GOY, C_Y2, C_X = 0, 4, 8, 80, 24, 16, 32, 36, 40, 44, 48
C_U, C_P3, C_O1, C_Q = 12, 96, 20, 116
KCOPY = 4096
UIMG = 9216

LOG2E = 1.4426950408889634
QSCALE = 0.25 * LOG2E
OPT = set()
OPTV = {}
DIAG = False
DIAG_BASE = 0xF00000
ST0 = 70
SPIN_MAX = 1 << 16
ROWS = {0: [0, 1, 2, 3, 4, 5, 6, 7, 8, 1024, 1032, 1280, 1288, 1536, 1544, None],
        1: [256, 258, 260, 262, 264, 512, 516, 520, 768, 772, 776, 1792, 1800, None, None, None]}


def f2u(x):
    return struct.unpack('<I', struct.pack('<f', x))[0]


class A:
    def __init__(self):
        self.L = []

    def __call__(self, s):
        for line in s.split('\n'):
            line = line.strip()
            if not line:
                continue
            if line.endswith(':') or line.startswith('.'):
                self.L.append(line)
            else:
                self.L.append('    ' + line)

    def text(self):
        return '\n'.join(self.L) + '\n'


def vr(a, n=1):
    return 'v%d' % a if n == 1 else 'v[%d:%d]' % (a, a + n - 1)


def sr(a, n=1):
    return 's%d' % a if n == 1 else 's[%d:%d]' % (a, a + n - 1)


def srd(a, dst, base, nbytes):
    a('s_mov_b32 s%d, s%d' % (dst, base))
    a('s_mov_b32 s%d, s%d' % (dst + 1, base + 1))
    a('s_mov_b32 s%d, 0x%x' % (dst + 2, nbytes))
    a('s_mov_b32 s%d, 0x00020000' % (dst + 3))


def mfma(d, x, y, c):
    cs = '0' if c is None else vr(c, 16)
    return 'v_mfma_f32_32x32x16_bf16 %s, %s, %s, %s' % (vr(d, 16), vr(x, 4), vr(y, 4), cs)


def cmul_many(a, items):
    for d, x, y in items:
        a('v_mul_f32 v%d, v%d, v%d' % (d, x, y))
        a('v_mul_f32 v%d, v%d, v%d' % (d + 1, x + 1, y))
    for d, x, y in items:
        a('v_fma_f32 v%d, -v%d, v%d, v%d' % (d, x + 1, y + 1, d))
        a('v_fmac_f32 v%d, v%d, v%d' % (d + 1, x, y + 1))


def stamp(a, i, real=False):
    if DIAG and ('se' not in OPT or i in (0, 13) or str(i) in OPTV.get('only', '').split(',')):
        a('%s s[%d:%d]' % ('s_memrealtime' if real or 'rt' in OPT else 's_memtime', ST0 + 2 * i, ST0 + 2 * i + 1))


def stamp_dump(a, n=14):
    if DIAG:
        a('s_waitcnt vmcnt(0)')
        stamp(a, 13, True)
        a('s_waitcnt lgkmcnt(0)')
        a('s_lshl_b32 s68, s2, 4')
        a('s_add_u32 s68, s68, s3')
        a('s_lshl_b32 s68, s68, 6')
        a('s_add_u32 s68, s68, %d' % DIAG_BASE)
        a('v_mov_b32 v1, 0')
        a('s_mov_b64 exec, 1')
        for i in range(n):
            a('v_mov_b32 v2, s%d' % (ST0 + 2 * i))
            a('buffer_store_dword v2, v1, s[8:11], s68 offen offset:%d' % (4 * i))
        a('s_mov_b64 exec, -1')


_lab = [0]


def label(p):
    _lab[0] += 1
    return 'L_%s%d' % (p, _lab[0])


def lds_spin(a, va, vt, off, thr, st=66, nap=1):
    l, e = label('sp'), label('se')
    a('''s_mov_b32 s%d, 0
%s:
ds_read_b32 v%d, v%d offset:%d
s_add_u32 s%d, s%d, 1
s_waitcnt lgkmcnt(0)
v_readfirstlane_b32 s%d, v%d
s_cmp_ge_u32 s%d, %d
s_cbranch_scc1 %s
s_cmp_ge_u32 s%d, %d
s_cbranch_scc1 %s
s_sleep %d
s_branch %s
%s:''' % (st, l, vt, va, off, st, st, st + 1, vt, st, SPIN_MAX, e, st + 1, thr, e, nap, l, e))


def lds_add(a, va, vt, off):
    a('''v_mov_b32 v%d, 1
s_mov_b64 exec, 1
ds_add_u32 v%d, v%d offset:%d
s_mov_b64 exec, -1''' % (vt, va, vt, off))


def arrive_publish(a, va, vt, off, nwaves, sflag, vz):
    e = label('np')
    a('''v_mov_b32 v%d, 1
s_mov_b64 exec, 1
ds_add_rtn_u32 v%d, v%d, v%d offset:%d
v_mov_b32 v%d, 0
s_waitcnt lgkmcnt(0)
v_readfirstlane_b32 s66, v%d
v_mov_b32 v%d, s7
s_cmp_eq_u32 s66, %d
s_cbranch_scc0 %s
buffer_store_dword v%d, v%d, s[8:11], s%d offen sc1
%s:
s_mov_b64 exec, -1''' % (vt, vt, va, vt, off, vz, vt, vt, nwaves - 1, e, vt, vz, sflag, e))


def flag_poll(a, voff, vt, vt2, sbase):
    l, e = label('fp'), label('fe')
    ld = 'buffer_load_dword v%d, v%d, s[8:11], s%d offen sc1'
    a('''s_mov_b32 s66, 0
%s
s_sleep 4
%s:
%s
s_waitcnt vmcnt(1)
v_cmp_eq_u32 vcc, s7, v%d
s_add_u32 s66, s66, 1
s_cmp_eq_u64 vcc, -1
s_cbranch_scc1 %s
s_sleep 2
%s
s_waitcnt vmcnt(1)
v_cmp_eq_u32 vcc, s7, v%d
s_cmp_ge_u32 s66, %d
s_cbranch_scc1 %s
s_cmp_eq_u64 vcc, -1
s_cbranch_scc0 %s
%s:''' % (ld % (vt, voff, sbase), l, ld % (vt2, voff, sbase), vt, e, ld % (vt, voff, sbase), vt2, SPIN_MAX, e, l, e))


def flag_poll_lazy(a, voff, vt, sbase, nap):
    l, e = label('fp'), label('fe')
    a('''s_mov_b32 s66, 0
%s:
buffer_load_dword v%d, v%d, s[8:11], s%d offen sc1
s_add_u32 s66, s66, 1
s_waitcnt vmcnt(0)
v_cmp_eq_u32 vcc, s7, v%d
s_cmp_ge_u32 s66, %d
s_cbranch_scc1 %s
s_cmp_eq_u64 vcc, -1
s_cbranch_scc1 %s
s_sleep %d
s_branch %s
%s:''' % (l, vt, voff, sbase, vt, SPIN_MAX, e, e, nap, l, e))


def tag_check(a, vt, vz, srd0):
    l, e = label('tp'), label('te')
    a('''s_mov_b32 s66, 0
%s:
v_readfirstlane_b32 s7, v%d
s_add_u32 s66, s66, 1
s_cmp_lg_u32 s7, 0
s_cbranch_scc1 %s
s_cmp_ge_u32 s66, %d
s_cbranch_scc1 %s
buffer_load_dword v%d, v%d, s[%d:%d], 0 offen sc1
s_waitcnt vmcnt(0)
s_branch %s
%s:''' % (l, vt, e, SPIN_MAX, e, vt, vz, srd0, srd0 + 3, l, e))


def kgen_stream():
    a = A()
    P = 20
    for i in range(8):
        a('v_lshlrev_b32 %s, 16, %s' % (vr(P + i), vr(P + i)))
    Are, Aim, Bre, Bim, Cre, Cim, LDT, DSK = range(P, P + 8)
    a('v_mul_f32 v%d, s51, v%d' % (LDT, LDT))
    a('v_exp_f32 v%d, v%d' % (LDT, LDT))
    a('s_nop 0')
    a('v_cvt_pk_bf16_f32 v%d, v%d, v%d' % (LDT, LDT, LDT))
    a('v_lshlrev_b32 v%d, 16, v%d' % (LDT, LDT))
    a('v_mul_f32 v%d, v%d, v%d' % (Are, LDT, Are))
    a('v_mul_f32 v%d, v%d, v%d' % (Aim, LDT, Aim))
    a('v_mul_f32 v%d, v%d, v%d' % (Bre, LDT, Bre))
    a('v_mul_f32 v%d, v%d, v%d' % (Bim, LDT, Bim))
    a('v_mul_f32 v%d, s51, v%d' % (Are, Are))
    a('v_mul_f32 v%d, 0.15915494, v%d' % (Aim, Aim))
    G = [32 + 2 * i for i in range(32)]
    W = [96 + 2 * i for i in range(9)]
    Z1, Z2, Z4, Z32 = 114, 116, 118, 120
    ZB = {256: 122, 512: 124, 768: 126, 1024: 128, 1280: 130, 1536: 132, 1792: 134}
    T0, PK, AD = 136, 146, 154
    R = {}
    nxt = 32
    for h in (0, 1):
        for e in ROWS[h]:
            if e is None:
                continue
            if e <= 8:
                R[e] = W[e]
            else:
                R[e] = nxt
                nxt += 2
    cmul_many(a, [(W[0], Cre, Bre)])
    direct = [(Z1, 1.0), (G[1], 8.0), (Z32, 32.0), (ZB[256], 256.0), (ZB[1024], 1024.0)]
    for i, (z, e) in enumerate(direct):
        a('v_mul_f32 v%d, 0x%x, v%d' % (T0 + 2 * i, f2u(e), Are))
        a('v_mul_f32 v%d, 0x%x, v%d' % (T0 + 2 * i + 1, f2u(e), Aim))
    for i, (z, e) in enumerate(direct):
        a('v_exp_f32 v%d, v%d' % (T0 + 2 * i, T0 + 2 * i))
        a('v_fract_f32 v%d, v%d' % (T0 + 2 * i + 1, T0 + 2 * i + 1))
    for i, (z, e) in enumerate(direct):
        a('v_cos_f32 v%d, v%d' % (z, T0 + 2 * i + 1))
        a('v_sin_f32 v%d, v%d' % (z + 1, T0 + 2 * i + 1))
    a('v_mov_b32 v%d, 1.0' % G[0])
    a('v_mov_b32 v%d, 0' % (G[0] + 1))
    for i, (z, e) in enumerate(direct):
        a('v_mul_f32 v%d, v%d, v%d' % (z, z, T0 + 2 * i))
        a('v_mul_f32 v%d, v%d, v%d' % (z + 1, z + 1, T0 + 2 * i))
    cmul_many(a, [(G[2], G[1], G[1]), (Z2, Z1, Z1), (W[1], W[0], Z1), (W[8], W[0], G[1]), (ZB[512], ZB[256], ZB[256]),
                  (ZB[1280], ZB[1024], ZB[256]), (G[5], G[1], Z32)])
    a('v_mov_b32 v%d, v%d' % (G[4], Z32))
    a('v_mov_b32 v%d, v%d' % (G[4] + 1, Z32 + 1))
    cmul_many(a, [(G[3], G[2], G[1]), (Z4, Z2, Z2), (W[2], W[0], Z2), (W[3], W[1], Z2), (ZB[768], ZB[512], ZB[256]),
                  (ZB[1536], ZB[1024], ZB[512]), (G[6], G[2], Z32)])
    cmul_many(a, [(G[7], G[3], Z32), (W[4], W[0], Z4), (W[5], W[1], Z4), (W[6], W[2], Z4), (W[7], W[3], Z4),
                  (ZB[1792], ZB[1024], ZB[768])])
    for i0 in range(8, 32, 4):
        cmul_many(a, [(G[i], G[i - 4], Z32) for i in range(i0, i0 + 4)])
    nvalu = len(a.L)
    for c in range(8):
        a('v_xor_b32 v%d, %d, v13' % (AD + c, c << 4))
    rowidx = [None] * 32
    for h in (0, 1):
        for r in range(16):
            rowidx[8 * (r >> 2) + 4 * h + (r & 3)] = ROWS[h][r]
    nput = [0]

    def put(c, regs, neg, off):
        pk = PK + 4 * (nput[0] & 1)
        nput[0] += 1
        for j in range(4):
            a('v_cvt_pk_bf16_f32 v%d, %sv%d, %sv%d' % (pk + j, neg, regs[2 * j], neg, regs[2 * j + 1]))
        a('ds_write_b128 v%d, %s%s' % (AD + c, vr(pk, 4), off))

    for c in range(8):
        put(c, [G[8 * (c & 3) + j] + (c >> 2) for j in range(8)], '', '')
    big = [e for e in R if e > 8]
    items = [(R[e], W[e & 255], ZB[e & ~255]) for e in big]
    for i0 in range(0, len(items), 5):
        cmul_many(a, items[i0:i0 + 5])
    for c in range(8):
        comp = c >> 2
        regs = [(R[e] if e is not None else W[0]) + comp for e in rowidx[8 * (c & 3):8 * (c & 3) + 8]]
        put(c, regs, '-' if comp else '', ' offset:8192')
    a('s_waitcnt lgkmcnt(0)')
    KD, FR, NB = 32, 48, 4

    def gen_reads(s):
        off = s * 1024
        b = FR + 8 * (s % NB)
        a('ds_read_b64_tr_b16 %s, v14 offset:%d' % (vr(b, 2), off + 8192))
        a('ds_read_b64_tr_b16 %s, v15 offset:%d' % (vr(b + 2, 2), off + 8192))
        a('ds_read_b64_tr_b16 %s, v14 offset:%d' % (vr(b + 4, 2), off))
        a('ds_read_b64_tr_b16 %s, v15 offset:%d' % (vr(b + 6, 2), off))

    for s in range(3):
        gen_reads(s)
    for s in range(8):
        if s + 3 < 8:
            gen_reads(s + 3)
        a('s_waitcnt lgkmcnt(%d)' % (4 * min(3, 7 - s)))
        b = FR + 8 * (s % NB)
        a(mfma(KD, b, b + 4, None if s == 0 else KD))
    a('s_nop 15')
    for j in range(4):
        a('ds_write_b128 v16, %s offset:%d' % (vr(KD + 4 * j, 4), 1024 * j))
    a('s_waitcnt lgkmcnt(0)')
    return a.L, nvalu


def transpose_addrs(a, sw, vrd, vwr, vlin, t0, t1, usi, uso):
    a('''v_lshrrev_b32 v{t0}, 4, v4
v_bfe_u32 v{t1}, v4, 2, 2
v_lshl_add_u32 v{t1}, v{t0}, 3, v{t1}
v_lshlrev_b32 v{rd}, 7, v{t1}
v_and_b32 v{t1}, 3, v4
v_lshl_add_u32 v{rd}, v{t1}, 3, v{rd}
s_lshl_b32 s66, s{w}, 5
s_add_u32 s66, s66, {usi}
v_add_u32 v{rd}, s66, v{rd}
v_and_b32 v{t1}, 7, v4
v_xor_b32 v{t0}, v{t0}, v{t1}
v_lshlrev_b32 v{t0}, 4, v{t0}
v_and_b32 v{t1}, 15, v4
v_lshl_add_u32 v{wr}, v{t1}, 7, v{t0}
s_lshl_b32 s66, s{w}, 11
s_add_u32 s66, s66, {uso}
v_add_u32 v{wr}, s66, v{wr}
v_lshl_add_u32 v{lin}, v4, 4, s66
v_lshrrev_b32 v{t0}, 3, v4
v_and_b32 v{t1}, 7, v4
v_xor_b32 v{t1}, v{t1}, v{t0}'''.format(t0=t0, t1=t1, rd=vrd, wr=vwr, lin=vlin, w=sw, usi=usi, uso=uso))


def transpose_a(a, vrd, vwr, d, t):
    a('''ds_read_b64_tr_b16 v[{d0}:{d1}], v{rd}
ds_read_b64_tr_b16 v[{d2}:{d3}], v{rd} offset:512
ds_read_b64_tr_b16 v[{d4}:{d5}], v{rd} offset:4096
ds_read_b64_tr_b16 v[{d6}:{d7}], v{rd} offset:4608
v_xor_b32 v{t}, 64, v{wr}
s_waitcnt lgkmcnt(2)
ds_write_b128 v{wr}, v[{d0}:{d3}]
s_waitcnt lgkmcnt(1)
ds_write_b128 v{t}, v[{d4}:{d7}]
s_waitcnt lgkmcnt(0)'''.format(rd=vrd, wr=vwr, t=t, **{'d%d' % i: d + i for i in range(8)}))


def kernel():
    a = A()
    KN = NAME + '_kernel'
    a('''.p2align 8
.type {k},@function
{k}:
s_cmp_ge_u32 s2, 256
s_cbranch_scc1 L_end
s_load_dwordx16 s[16:31], s[0:1], 8
s_load_dwordx4 s[32:35], s[0:1], 72
s_load_dwordx4 s[36:39], s[0:1], 104'''.format(k=KN))
    stamp(a, 0, True)
    stamp(a, 1)
    a('''v_lshrrev_b32 v3, 6, v0
v_and_b32 v4, 63, v0
s_and_b32 s44, s2, 7
s_lshr_b32 s45, s2, 3
v_readfirstlane_b32 s3, v3
s_lshl_b32 s60, s44, 6
s_lshl_b32 s46, s45, 1
s_add_u32 s60, s60, s46
s_lshl_b32 s46, s60, 8
v_lshl_add_u32 v5, v0, 1, s46
s_lshr_b32 s4, s44, 1
s_lshl_b32 s4, s4, 3
s_and_b32 s46, s45, 7
s_add_u32 s4, s4, s46
s_and_b32 s5, s44, 1
s_lshl_b32 s5, s5, 2
s_lshr_b32 s47, s45, 3
s_add_u32 s5, s5, s47
s_lshl_b32 s47, s47, 1
%s
s_cmp_ge_u32 s3, 4
s_cbranch_scc1 L_gemm''' % {'0': 's_mov_b32 s6, 0', '1': 's_add_u32 s6, s46, s47', '2': 's_and_b32 s6, s46, 4', '3': 's_and_b32 s6, s46, 6'}[OPTV.get('rot', '1')])
    SEG = (1, 2, 0)

    a('''s_lshr_b32 s61, s3, 1
s_add_u32 s52, s60, s61
s_lshl_b32 s46, s52, 1
v_mov_b32 v19, s46
s_and_b32 s53, s3, 1
s_waitcnt lgkmcnt(0)''')
    P = 20
    a('global_load_ushort %s, v19, s[28:29]' % vr(P + 6))
    for i in range(6):
        a('global_load_ushort %s, v5, %s' % (vr(P + i), sr(16 + 2 * i, 2)))
    a('global_load_ushort %s, v19, s[30:31]' % vr(P + 7))
    a('''s_getpc_b64 s[40:41]
v_and_b32 v1, 7, v0
v_lshlrev_b32 v1, 7, v1
s_lshl_b32 s46, s45, 10
v_add_u32 v1, s46, v1
global_load_dword v2, v1, s[40:41]''')
    srd(a, 8, 38, WS_BYTES)
    srd(a, 12, 36, 256)
    a('''v_mov_b32 v18, 0
s_or_b32 s46, s2, s3
s_cmp_eq_u32 s46, 0
s_cbranch_scc0 L_notag
s_memrealtime s[46:47]
s_waitcnt lgkmcnt(0)
s_or_b32 s46, s46, 1
v_mov_b32 v1, s46
s_mov_b64 exec, 1
buffer_store_dword v1, v18, s[12:15], 0 offen sc1
s_mov_b64 exec, -1
s_waitcnt vmcnt(0)
L_notag:''')
    a('''s_lshl_b32 s62, s3, 14
s_add_u32 s62, s62, %d
v_and_b32 v10, 7, v4
v_lshlrev_b32 v10, 4, v10
v_lshl_add_u32 v13, v4, 7, v10
v_add_u32 v13, s62, v13
v_lshrrev_b32 v10, 5, v4
v_bfe_u32 v11, v4, 3, 1
v_lshl_add_u32 v10, v10, 2, v11
v_bfe_u32 v11, v4, 2, 1
v_lshlrev_b32 v11, 2, v11
v_bfe_u32 v12, v4, 4, 1
v_lshl_add_u32 v11, v12, 1, v11
v_bfe_u32 v12, v4, 1, 1
v_add_u32 v11, v11, v12
v_xor_b32 v11, v11, v10
v_lshlrev_b32 v11, 4, v11
v_lshl_add_u32 v11, v10, 7, v11
v_and_b32 v12, 1, v4
v_lshl_add_u32 v11, v12, 3, v11
v_add_u32 v14, s62, v11
v_xor_b32 v15, 32, v14
v_add_u32 v15, 256, v15
v_lshl_add_u32 v16, v4, 4, s62
v_xor_b32 v17, 0x4000, v16
v_mov_b32 v12, %d
s_mov_b32 s51, 0x%x''' % (GEN, CNT, f2u(LOG2E)))
    p1, nvalu = kgen_stream()
    sizes = [int(x) for x in OPTV.get('sl', '80,140,31').split(',')]
    cuts = [0]
    for z in sizes:
        cuts.append(min(len(p1), cuts[-1] + z))
    print('kgen instructions', len(p1), 'pure valu', nvalu, cuts, file=sys.stderr)
    a('s_load_dwordx4 s[32:35], s[0:1], 88')
    stamp(a, 2)
    a('s_waitcnt vmcnt(1) lgkmcnt(0)')
    for c in range(16):
        if c < len(sizes):
            a.L += p1[cuts[c]:cuts[c + 1]]
        if c == 8:
            a('buffer_load_dword v1, v18, s[12:15], 0 offen sc1')
        if c == 14:
            a('s_waitcnt vmcnt(0)')
            tag_check(a, 1, 18, 12)
            a('''v_cmp_eq_u32 vcc, 0, v4
v_lshl_add_u32 v2, v4, 2, v12
s_cmp_eq_u32 s3, 0
v_cndmask_b32 v1, 0, v1, vcc
s_cbranch_scc0 L_tagd
ds_write_b32 v2, v1
s_waitcnt lgkmcnt(0)
L_tagd:''')
        a('s_barrier')
    a('s_barrier')
    stamp(a, 3)
    a('s_setprio 3')
    a('''s_lshl_b32 s46, s3, 11
s_add_u32 s46, s46, %d
v_lshl_add_u32 v6, v4, 4, s46
ds_read_b128 v[8:11], v6
ds_read_b128 v[28:31], v6 offset:1024
v_lshrrev_b32 v6, 3, v4
v_and_b32 v7, 7, v4
v_xor_b32 v7, v7, v6
v_mul_u32_u24 v6, %d, v6
v_lshl_add_u32 v6, v7, 4, v6
s_mul_i32 s46, s44, %d
s_mul_i32 s47, s3, %d
s_add_u32 s46, s46, s47
s_lshl_b32 s47, s45, 7
s_add_u32 s46, s46, s47
s_add_u32 s46, s46, %d
s_add_u32 s47, s46, %d
s_lshl_b32 s65, s44, 5
s_add_u32 s65, s65, s45
s_lshl_b32 s65, s65, 6
s_add_u32 s65, s65, %d
s_waitcnt lgkmcnt(1)
buffer_store_dwordx4 v[8:11], v6, s[8:11], s46 offen sc1
s_waitcnt lgkmcnt(0)
buffer_store_dwordx4 v[28:31], v6, s[8:11], s47 offen sc1''' % (USO, RS, 64 * RS, 16 * RS, UT, 8 * RS, FLU))
    srd(a, 16, 34, 2048 * 2048)
    srd(a, 12, 32, 512 * 1024)
    a.L += p1[cuts[-1]:]
    a('s_waitcnt vmcnt(0)')
    arrive_publish(a, 12, 1, C_U, 4, 65, 2)
    a('s_lshl_b32 s63, s61, 2')
    a('v_add_u32 v11, s63, v12')
    lds_add(a, 11, 1, C_PAIR)
    KD = 32
    a('''v_and_b32 v28, 31, v4
v_lshrrev_b32 v29, 5, v4
s_lshl_b32 s46, s53, 6
s_add_u32 s46, s46, s62
s_add_u32 s46, s46, %d
v_lshlrev_b32 v10, 4, v28
v_sub_u32 v18, s46, v10
v_and_b32 v10, 1, v4
v_cmp_eq_u32 s[54:55], 1, v10
v_cmp_eq_u32 s[56:57], 0, v4
s_mov_b32 s58, -1
s_mov_b32 s59, 0
s_mov_b32 s40, 0
s_mov_b32 s41, -1''' % (KCOPY + 255 * 16))
    for sl, (b0, b1) in enumerate([(0, 32), (128, 64), (160, 96), (192, 224)]):
        a('v_mul_i32_i24 v10, %d, v29' % ((b1 - b0) * 16))
        a('v_sub_u32 v%d, v18, v10' % (80 + sl))
        if b0:
            a('v_subrev_u32 v%d, %d, v%d' % (80 + sl, b0 * 16, 80 + sl))
    a('''v_lshl_add_u32 v87, v4, 4, s46
v_add_u32 v87, 16, v87
s_lshl_b32 s64, s61, 15
s_add_u32 s64, s64, %d
s_lshl_b32 s47, s53, 1
v_add_u32 v10, s47, v29
v_mul_u32_u24 v10, 1536, v10
v_lshl_add_u32 v10, v28, 4, v10
v_add_u32 v10, s64, v10
v_mov_b32 v88, 0
v_mov_b32 v89, 0
v_mov_b32 v90, 0
v_mov_b32 v91, 0''' % (GEN + UIMG))
    lds_spin(a, 11, 1, C_PAIR, 2)
    a('ds_write_b128 v10, v[88:91]')
    for j in range(4):
        a('ds_read_b128 %s, v17 offset:%d' % (vr(48 + 4 * j, 4), 1024 * j))
    a('v_cndmask_b32 v9, 0, v27, s[56:57]')
    a('v_add_f32 v%d, v%d, v9' % (KD, KD))
    a('s_waitcnt lgkmcnt(0)')
    for j in range(16):
        a('v_add_f32 v%d, v%d, v%d' % (KD + j, KD + j, 48 + j))
    for i, r in enumerate((9, 11, 13)):
        a('v_cndmask_b32 v%d, v%d, v%d, s[54:55]' % (84 + i, KD + r, KD + r + 1))
    OB = 64

    def pack(dst, vals):
        for j in range(4):
            a('v_cvt_pk_bf16_f32 v%d, v%d, v%d' % (dst + j, vals[2 * j], vals[2 * j + 1]))

    def emit_copy(cp):
        k = lambda r: KD + r
        r0 = [k(i) for i in range(9)]
        r1 = [k(0), k(0), k(1), k(2), k(2), k(2), k(3), k(4), k(4)]
        r2 = lambda b: [k(b), k(b), k(b), k(b + 1), k(b + 1), k(b + 1), k(b + 2), k(b + 2), k(b + 2)]
        r3 = lambda b, x: [k(b)] * 4 + [x] + [k(b + 1)] * 4
        sel = (lambda p: p[8:0:-1]) if cp == 0 else (lambda p: p[7::-1])
        a('s_mov_b64 exec, s[58:59]')
        pack(OB, sel(r0))
        pack(OB + 4, sel(r3(9, 84)))
        pack(OB + 8, sel(r3(11, 85)))
        pack(OB + 12, sel(r3(13, 86)))
        a('s_mov_b64 exec, s[40:41]')
        pack(OB, sel(r1))
        pack(OB + 4, sel(r2(5)))
        pack(OB + 8, sel(r2(8)))
        pack(OB + 12, sel(r3(11, 85)))
        a('s_mov_b64 exec, -1')
        if cp == 0:
            a('v_cvt_pk_bf16_f32 v10, v%d, v88' % KD)
            a('v_cndmask_b32 v88, 0, v10, s[56:57]')

    a('s_cmp_eq_u32 s53, 0')
    a('s_cbranch_scc0 L_copy1')
    emit_copy(0)
    a('s_branch L_copyd')
    a('L_copy1:')
    emit_copy(1)
    a('L_copyd:')
    for sl in range(4):
        a('ds_write_b128 v%d, %s' % (80 + sl, vr(OB + 4 * sl, 4)))
    a('s_mov_b64 exec, 15')
    a('ds_write_b128 v87, v[88:91]')
    a('s_mov_b64 exec, -1')
    stamp(a, 4)
    a('''v_lshlrev_b32 v6, 6, v28
s_lshl_b32 s46, s44, 11
s_add_u32 s46, s46, %d
s_cmp_eq_u32 s3, 0
s_cbranch_scc0 L_uw''' % FLU)
    flag_poll_lazy(a, 6, 1, 46, 8)
    lds_add(a, 12, 3, C_GOU)
    a('L_uw:')
    lds_spin(a, 12, 3, C_GOU, 1, nap=4)
    a('''v_lshlrev_b32 v6, 6, v4
s_mul_i32 s46, s52, %d
s_lshl_b32 s47, s53, 5
s_add_u32 s46, s46, s47
s_add_u32 s46, s46, %d
s_mul_i32 s47, s53, 3072
s_add_u32 s47, s47, s64
s_add_u32 m0, s47, 512
s_nop 0
buffer_load_dwordx4 v6, s[8:11], s46 offen sc1 lds
s_add_u32 m0, s47, 2048
s_add_u32 s46, s46, 16
buffer_load_dwordx4 v6, s[8:11], s46 offen sc1 lds''' % (RS, UT))
    a('''v_bfe_u32 v18, v4, 4, 1
v_lshlrev_b32 v18, 4, v18
v_bfe_u32 v19, v4, 2, 1
v_lshl_add_u32 v18, v19, 3, v18
v_and_b32 v19, 3, v4
v_lshl_add_u32 v18, v19, 1, v18
v_bfe_u32 v19, v4, 3, 1
v_lshlrev_b32 v24, 3, v29
v_sub_u32 v24, v24, v18
v_add_u32 v24, 32, v24
v_lshlrev_b32 v24, 1, v24
v_mul_u32_u24 v19, %d, v19
v_add_u32 v24, v24, v19
s_add_u32 s46, s64, %d
v_add_u32 v24, s46, v24
s_lshl_b32 s46, s53, 9
s_add_u32 s46, s46, s64
s_add_u32 s46, s46, %d
v_mul_u32_u24 v25, 1536, v29
v_lshl_add_u32 v25, v28, 4, v25
v_add_u32 v25, s46, v25''' % (16384 + 64 - 4, KCOPY - UIMG + 32 * 120, 512 - 3 * 16))
    TB, UB, CA = 32, 40, 48
    CB = 64
    for j in range(32):
        a('v_mov_b32 v%d, 0' % (CA + j))
    a('''s_lshl_b32 s34, s53, 2
s_add_u32 s34, s34, 8
s_mov_b32 s35, 0
s_waitcnt vmcnt(0) lgkmcnt(0)''')
    lds_add(a, 12, 1, C_CONV)
    a('''s_and_b32 s46, s45, 7
s_lshl_b32 s46, s46, 16
s_lshl_b32 s47, s5, 7
s_add_u32 s46, s46, s47
s_lshl_b32 s47, s3, 14
s_add_u32 s46, s46, s47
v_and_b32 v6, 15, v4
v_lshlrev_b32 v6, 10, v6
buffer_load_dword v31, v6, s[12:15], s46 offen''')
    lds_spin(a, 12, 1, C_CONV, 4)
    stamp(a, 5)

    def conv_loop(lab, acc, send):
        a(lab + ':')
        for j in range(8):
            t = TB + 4 * (j & 1)
            a('ds_read2_b32 %s, v24 offset0:%d offset1:%d' % (vr(t, 2), 8 * (7 - j), 8 * (7 - j) + 1))
            a('ds_read2_b32 %s, v24 offset0:%d offset1:%d' % (vr(t + 2, 2), 8 * (7 - j) + 2, 8 * (7 - j) + 3))
            a('ds_read_b128 %s, v25 offset:%d' % (vr(UB + 4 * (j & 1), 4), (3072 if j % 2 == 0 else 0) + (3 - (j >> 1)) * 16))
            a('s_waitcnt lgkmcnt(0)')
            a(mfma(acc, t, UB + 4 * (j & 1), acc))
        a('''v_subrev_u32 v24, 256, v24
v_subrev_u32 v25, 64, v25
s_add_u32 s35, s35, 1
s_cmp_lt_u32 s35, %s
s_cbranch_scc1 %s''' % (send, lab))

    if 'noconv' not in OPT:
        conv_loop('L_cl', CA, 's34')
        a('''s_cmp_eq_u32 s53, 0
s_cbranch_scc0 L_cr
v_subrev_u32 v24, 1024, v24
v_add_u32 v25, 256, v25''')
        conv_loop('L_cm', CB, '12')
        a('s_nop 11')
        for j in range(4):
            a('ds_write_b128 v16, %s offset:%d' % (vr(CB + 4 * j, 4), 1024 * j))
        a('s_waitcnt lgkmcnt(0)')
        lds_add(a, 11, 1, C_PAIR)
        a('s_branch L_cd')
        a('L_cr:')
        lds_spin(a, 11, 1, C_PAIR, 3, nap=2)
        for j in range(4):
            a('ds_read_b128 %s, v17 offset:%d' % (vr(CB + 4 * j, 4), 1024 * j))
        a('s_waitcnt lgkmcnt(0)')
        for j in range(16):
            a('v_add_f32 v%d, v%d, v%d' % (CA + j, CA + j, CB + j))
        a('L_cd:')
    stamp(a, 6)
    a('''s_nop 0
s_mul_i32 s46, s52, %d
s_lshl_b32 s47, s53, 11
s_add_u32 s46, s46, s47
s_add_u32 s46, s46, %d
v_lshlrev_b32 v6, 6, v28
v_lshl_add_u32 v6, v29, 4, v6
s_lshl_b32 s47, s53, 9
s_add_u32 s47, s47, s52
s_lshl_b32 s47, s47, 6
s_add_u32 s47, s47, %d
v_mov_b32 v1, s7
v_mov_b32 v2, 0''' % (RS, YT, FL3))
    for s in range(2):
        for i in range(4):
            a('v_cvt_pk_bf16_f32 v%d, v%d, v%d' % (32 + 4 * s + i, CA + 8 * s + i, CA + 8 * s + 4 + i))
    a('''buffer_store_dwordx4 v[32:35], v6, s[8:11], s46 offen sc1
buffer_store_dwordx4 v[36:39], v6, s[8:11], s46 offen offset:32 sc1
s_waitcnt vmcnt(0) lgkmcnt(0)
s_mov_b64 exec, 1
buffer_store_dword v1, v2, s[8:11], s47 offen sc1
s_mov_b64 exec, -1''')
    a('''v_lshrrev_b32 v6, 3, v4
v_lshlrev_b32 v6, 10, v6
v_bfe_u32 v7, v4, 4, 1
v_lshlrev_b32 v7, 2, v7
v_and_b32 v8, 7, v4
v_xor_b32 v7, v7, v8
v_lshl_add_u32 v6, v7, 4, v6
s_lshl_b32 s23, s53, 10
s_lshl_b32 s24, s61, 11
s_add_u32 s24, s23, s24
s_lshl_b32 s26, s5, 7
s_lshl_b32 s27, s53, 13
s_add_u32 s26, s26, s27
s_lshl_b32 s27, s61, 14
s_add_u32 s26, s26, s27
s_nop 0''')
    for c in range(8):
        a('s_add_u32 s38, s5, %d' % c)
        a('s_and_b32 s38, s38, 7')
        a('s_lshl_b32 s30, s38, 16')
        a('s_add_u32 m0, s24, %d' % (c * 4096))
        a('s_add_u32 s30, s30, s26')
        if 'nowo' in OPT:
            continue
        a('buffer_load_dwordx4 v6, s[12:15], s30 offen lds')
        a('s_add_u32 m0, s24, %d' % (32768 + c * 4096))
        a('s_add_u32 s30, s30, 0x8000')
        a('buffer_load_dwordx4 v6, s[12:15], s30 offen lds')
        a('s_waitcnt vmcnt(%s)' % OPTV.get('wot', '2'))
    stamp(a, 7)
    a('''v_lshlrev_b32 v6, 6, v4
s_lshr_b32 s46, s4, 4
s_lshl_b32 s46, s46, 15
s_lshl_b32 s47, s5, 12
s_add_u32 s46, s46, s47
s_add_u32 s46, s46, %d
s_cmp_eq_u32 s3, 0
s_cbranch_scc0 L_yw''' % FL3)
    flag_poll_lazy(a, 6, 1, 46, 32)
    lds_add(a, 12, 3, C_GOY)
    a('L_yw:')
    transpose_addrs(a, 3, 20, 21, 22, 8, 9, USI, USO)
    a('''v_mul_u32_u24 v10, %d, v8
v_and_b32 v11, 7, v4
v_lshl_add_u32 v10, v11, 4, v10
v_add_u32 v11, %d, v10
s_mul_i32 s46, s5, %d
s_mul_i32 s47, s3, %d
s_add_u32 s46, s46, s47
s_lshl_b32 s47, s4, 7
s_add_u32 s46, s46, s47
s_add_u32 s46, s46, %d
s_lshl_b32 s47, s3, 11
s_add_u32 s47, s47, %d''' % (RS, 8 * RS - 1024, 64 * RS, 16 * RS, YT, USI))
    lds_spin(a, 12, 3, C_GOY, 1, nap=8)
    a('''s_mov_b32 m0, s47
v_lshlrev_b32 v8, 11, v8
buffer_load_dwordx4 v10, s[8:11], s46 offen sc1 lds
buffer_load_dwordx4 v11, s[8:11], s46 offen offset:1024 sc1 lds
v_lshl_add_u32 v8, v9, 4, v8
s_lshl_b32 s46, s4, 17
s_lshl_b32 s47, s3, 15
s_add_u32 s46, s46, s47
s_lshl_b32 s47, s5, 7
s_add_u32 s46, s46, s47
s_add_u32 s47, s46, 0x4000
s_waitcnt vmcnt(0)''')
    lds_add(a, 12, 1, C_Y)
    lds_spin(a, 12, 1, C_Y, 4)
    transpose_a(a, 20, 21, 32, 23)
    a('''ds_read_b128 v[32:35], v22
ds_read_b128 v[36:39], v22 offset:1024
s_waitcnt lgkmcnt(1)
buffer_store_dwordx4 v[32:35], v8, s[16:19], s46 offen nt
s_waitcnt lgkmcnt(0)
buffer_store_dwordx4 v[36:39], v8, s[16:19], s47 offen nt''')
    lds_add(a, 12, 1, C_Y2)
    stamp(a, 8)
    a('s_waitcnt lgkmcnt(0)')
    stamp(a, 12)
    stamp_dump(a)
    a('s_endpgm')

    a('''L_gemm:
s_cmp_ge_u32 s3, 8
s_cbranch_scc1 L_mm
s_setprio 2
s_sub_u32 s61, s3, 4
v_lshrrev_b32 v10, 3, v4
v_lshrrev_b32 v11, 4, v4
v_and_b32 v12, 7, v4
v_xor_b32 v13, v12, v11
s_lshl_b32 s47, s61, 4
v_add_u32 v10, s47, v10
s_lshl_b32 s46, s4, 16
v_lshl_add_u32 v14, v10, 10, s46
v_lshl_add_u32 v6, v13, 4, v14
v_xor_b32 v7, 64, v6
v_add_u32 v7, 0x1c00, v7
v_lshlrev_b32 v16, 10, v10
v_lshl_add_u32 v16, v12, 4, v16
v_mul_u32_u24 v10, 3072, v10
v_and_b32 v11, 1, v11
v_lshlrev_b32 v11, 2, v11
v_xor_b32 v12, v12, v11
v_lshl_add_u32 v8, v12, 4, v10
s_lshl_b32 s46, s5, 7
v_add_u32 v8, s46, v8
v_add_u32 v9, %d, v8
s_lshl_b32 s48, s61, 11
s_waitcnt lgkmcnt(0)''' % (8 * 3072 - 1024))
    srd(a, 16, 32, 2048 * 1024)
    srd(a, 12, 34, 512 * 3072)

    def dma_chunk(c):
        slot = (c % 6) * 16384
        if c < 8:
            a('s_add_u32 s50, s6, %d' % c)
            a('s_and_b32 s50, s50, 7')
            a('s_mul_i32 s49, s50, %d' % (64 * 3072))
            a('s_add_u32 m0, s48, %d' % slot)
            a('s_lshl_b32 s50, s50, 7')
            a('buffer_load_dwordx4 v6, s[16:19], s50 offen lds')
            a('buffer_load_dwordx4 v7, s[16:19], s50 offen offset:1024 lds')
            a('s_add_u32 m0, s48, %d' % (slot + 8192))
            a('s_add_u32 s49, s49, %d' % (SEG[0] * 1024))
            a('buffer_load_dwordx4 v8, s[12:15], s49 offen lds')
            a('buffer_load_dwordx4 v9, s[12:15], s49 offen offset:1024 lds')
        else:
            p, j = 1 + ((c - 8) >> 2), (c - 8) & 3
            for hf in range(2):
                a('s_add_u32 s50, s6, %d' % (2 * j + hf))
                a('s_and_b32 s50, s50, 7')
                a('s_mul_i32 s49, s50, %d' % (64 * 3072))
                a('s_add_u32 m0, s48, %d' % (slot + hf * 8192))
                a('s_add_u32 s49, s49, %d' % (SEG[p] * 1024))
                a('buffer_load_dwordx4 v8, s[12:15], s49 offen lds')
                a('buffer_load_dwordx4 v9, s[12:15], s49 offen offset:1024 lds')

    dma_chunk(0)
    dma_chunk(1)
    a('s_load_dwordx2 s[20:21], s[0:1], 0')
    srd(a, 8, 38, WS_BYTES)
    transpose_addrs(a, 61, 20, 21, 22, 23, 24, USI, USO)
    a('''s_lshl_b32 s46, s45, 16
s_lshl_b32 s47, s44, 7
s_add_u32 s52, s46, s47
v_add_u32 v17, 0x1c00, v16
v_mov_b32 v12, %d
s_waitcnt lgkmcnt(0)''' % CNT)
    srd(a, 24, 20, 2048 * 1024)
    order = [0, 1]
    cnt = lambda x: 4 if isinstance(x, int) else x[1]
    stamp(a, 2)
    for c in range(16):
        a('s_waitcnt vmcnt(%d)' % (sum(cnt(x) for x in order[order.index(c) + 1:]) if c < 15 else 0))
        if c in (0, 8, 12):
            stamp(a, {0: 3, 8: 4, 12: 5}[c])
        a('s_barrier')
        for n in {0: [2, 3], 1: [4, 5]}.get(c, [c + 4] if c + 4 < 16 else []):
            dma_chunk(n)
            order.append(n)
        if c == 13:
            a('s_add_u32 m0, s48, %d' % USI)
            a('s_nop 0')
            a('buffer_load_dwordx4 v16, s[24:27], s52 offen lds')
            a('buffer_load_dwordx4 v17, s[24:27], s52 offen offset:1024 lds')
            order.append(('u', 2))
        if c == 15:
            transpose_a(a, 20, 21, 32, 25)
    a('''s_barrier
ds_read_b32 v1, v12 offset:%d
s_waitcnt lgkmcnt(0)
v_readfirstlane_b32 s7, v1''' % C_TAG)
    a('s_branch L_att')

    XA, WA, OA, OV = 160, 164, 165, 166
    XR, ACC = 0, 128
    WF = [144, 148, 152, 156]
    a('''L_mm:
%s
s_setprio 3
s_and_b32 s52, s3, 1
s_bfe_u32 s53, s3, 0x10001
v_and_b32 v10, 31, v4
v_bfe_u32 v11, v4, 1, 3
v_lshrrev_b32 v12, 5, v4
v_xor_b32 v11, v11, v12
v_lshlrev_b32 v11, 4, v11
v_lshl_add_u32 v10, v10, 7, v11
s_lshl_b32 s46, s52, 12
v_add_u32 v%d, s46, v10''' % ('s_memrealtime s[70:71]' if 'dbgt' in OPT else '', XA))
    for jq in range(1, 4):
        a('v_xor_b32 v%d, %d, v%d' % (XA + jq, jq << 5, XA))
    a('''v_lshlrev_b32 v10, 10, v12
v_bfe_u32 v11, v4, 2, 2
v_lshl_add_u32 v10, v11, 7, v10
v_bfe_u32 v11, v4, 3, 1
v_xor_b32 v11, s53, v11
v_lshl_add_u32 v10, v11, 6, v10
v_bfe_u32 v11, v4, 4, 1
v_lshl_add_u32 v10, v11, 5, v10
v_and_b32 v11, 3, v4
v_lshl_add_u32 v%d, v11, 3, v10''' % WA)
    a('''s_lshl_b32 s46, s4, 1
s_add_u32 s46, s46, s52
s_lshl_b32 s46, s46, 10
s_lshl_b32 s47, s5, 1
s_add_u32 s47, s47, s53
s_lshl_b32 s47, s47, 17
s_add_u32 s46, s46, s47
v_lshl_add_u32 v%d, v4, 4, s46
v_bfe_u32 v11, v4, 4, 1
v_lshlrev_b32 v11, 16, v11
v_lshl_add_u32 v11, v12, 8, v11
v_and_b32 v10, 15, v4
v_lshl_add_u32 v11, v10, 4, v11
v_add_u32 v%d, s46, v11
v_mov_b32 v167, v4
s_mov_b32 s62, 0x%x
s_mov_b32 s64, %d
s_mov_b32 s65, %d
s_mov_b32 s63, %d
s_lshl_b32 s54, s52, 12
s_lshl_b32 s47, s53, 11
s_add_u32 s54, s54, s47
s_add_u32 s54, s54, %d
s_lshl_b32 s56, s5, 6
s_add_u32 s56, s56, %d
s_lshl_b32 s55, s4, 9
s_add_u32 s55, s55, s56
s_waitcnt lgkmcnt(0)''' % (OA, OV, f2u(QSCALE), KF, KF + 65536, VF, QX, FL1))
    srd(a, 8, 38, WS_BYTES)
    if 'nowpf' not in OPT:
        srd(a, 12, 34, 512 * 3072)
        a('''s_cmp_ge_u32 s3, 10
s_cbranch_scc1 L_nopf
v_mul_u32_u24 v10, 3072, v4
s_and_b32 s46, s4, 7
s_mul_i32 s46, s46, %d
s_lshl_b32 s47, s5, 7
s_add_u32 s46, s46, s47
s_xor_b32 s47, s52, 1
s_lshl_b32 s47, s47, 11
s_add_u32 s46, s46, s47
%s
buffer_load_dword v%d, v10, s[12:15], s46 offen
L_nopf:''' % (64 * 3072, 's_sleep %s' % OPTV['wps'] if 'wps' in OPTV else '', 127))
    PD = 3

    def chunk_of(s):
        p, kk = s >> 5, s & 31
        return (kk >> 2, kk & 3) if p == 0 else (8 + 4 * (p - 1) + (kk >> 3), kk & 7)

    def nreads(s):
        return 0 if s >= 96 else (3 if s < 32 else 2)

    def reads(s):
        c, j = chunk_of(s)
        if j == 0:
            a('s_barrier')
            if c == 0:
                stamp(a, 2)
                if 'dbgt' in OPT:
                    a('s_memrealtime s[72:73]')
            if c == 6:
                a('s_waitcnt vmcnt(0)')
            if c % 3 == 0 and c > 0:
                op = 'v_add_u32' if c % 6 == 3 else 'v_subrev_u32'
                for r in ([XA, XA + 1, XA + 2, XA + 3] if c < 8 else []) + [WA]:
                    a('%s v%d, 0xc000, v%d' % (op, r, r))
        so = (c % 3) * 16384
        if c < 8:
            a('ds_read_b128 %s, v%d offset:%d' % (vr(XR + 4 * s, 4), XA + j, so))
            so += 8192
        for rd in range(2):
            a('ds_read_b64_tr_b16 %s, v%d offset:%d' % (vr(WF[s % 4] + 2 * rd, 2), WA, so + j * 2048 + rd * 512))

    def epilogue(p):
        lo, hi = vr(ACC, 4), vr(ACC + 4, 4)
        if SEG[p] == 0:
            a('v_mov_b32 v4, v167')
            a('v_lshl_add_u32 v10, v167, 4, s54')
            a('s_nop 13')
            for i in range(16):
                a('v_mul_f32 v%d, s62, v%d' % (ACC + i, ACC + i))
        else:
            a('s_nop 15')
        for j in range(8):
            a('v_cvt_pk_bf16_f32 v%d, v%d, v%d' % (ACC + j, ACC + 2 * j, ACC + 2 * j + 1))
        if SEG[p] == 0:
            a('ds_write_b128 v10, %s' % lo)
            a('ds_write_b128 v10, %s offset:1024' % hi)
        elif SEG[p] == 1:
            a('buffer_store_dwordx4 %s, v%d, s[8:11], s64 offen sc1' % (lo, OA))
            a('buffer_store_dwordx4 %s, v%d, s[8:11], s65 offen sc1' % (hi, OA))
        else:
            a('buffer_store_dwordx4 %s, v%d, s[8:11], s63 offen sc1' % (lo, OV))
            a('buffer_store_dwordx4 %s, v%d, s[8:11], s63 offen offset:512 sc1' % (hi, OV))

    for s in range(PD):
        reads(s)
    for s in range(96):
        p, kk = s >> 5, s & 31
        if s + PD < 96:
            reads(s + PD)
        a('s_waitcnt lgkmcnt(%d)' % sum(nreads(t) for t in range(s + 1, s + PD + 1)))
        x, w = XR + 4 * kk, WF[s % 4]
        if SEG[p] == 2:
            a(mfma(ACC, x, w, None if kk == 0 else ACC))
        else:
            a(mfma(ACC, w, x, None if kk == 0 else ACC))
        if s == 80:
            a('v_mov_b32 v12, %d' % CNT)
            a('ds_read_b32 v1, v12 offset:%d' % C_TAG)
            a('s_waitcnt vmcnt(0) lgkmcnt(0)')
            a('v_readfirstlane_b32 s7, v1')
            arrive_publish(a, 12, 1, C_KV, 4, 55, 2)
            if 'rt' in OPT:
                stamp(a, 2)
        if kk == 31:
            stamp(a, 3 + p)
            epilogue(p)
    a('''s_waitcnt lgkmcnt(0)
s_barrier
s_cmp_eq_u32 s3, 8
s_cbranch_scc0 L_att
v_and_b32 v6, 31, v4
v_lshlrev_b32 v6, 9, v6''')
    if 'p2' not in OPT:
        flag_poll_lazy(a, 6, 1, 56, 1)
    else:
        flag_poll(a, 6, 1, 2, 56)
    lds_add(a, 12, 3, C_GO)

    S = [16, 32]
    Pp = [48, 56]
    O = [64, 80]
    Q = [96, 100]
    DK = int(OPTV.get('dk', 3))
    NB, NBV = DK + 1, DK + 1 if DK == 3 else DK
    K = [104 + 4 * b for b in range(NB)]
    V0 = 104 + 4 * NB
    V = [[V0 + 8 * b, V0 + 4 + 8 * b] for b in range(NBV)]
    KA, VA = 14, 15
    assert V0 + 8 * NBV <= 168
    a('''L_att:
s_lshr_b32 s19, s3, 3
s_and_b32 s18, s3, 1
s_lshl_b32 s24, s19, 1
s_add_u32 s18, s18, s24
s_bfe_u32 s24, s3, 0x10001
v_lshlrev_b32 v5, 4, v4
s_lshl_b32 s26, s18, 10
s_add_u32 s26, s26, %d
v_add_u32 v6, s26, v5
ds_read_b128 %s, v6
ds_read_b128 %s, v6 offset:4096
s_lshl_b32 s27, s5, 2
s_add_u32 s18, s18, s27
s_lshl_b32 s22, s18, 16
s_add_u32 s27, s22, %d
v_add_u32 v%d, s27, v5
s_lshl_b32 s36, s24, 10
s_mov_b32 s37, s36
v_lshrrev_b32 v6, 5, v4
v_and_b32 v7, 15, v4
v_lshlrev_b32 v7, 4, v7
v_lshl_add_u32 v7, v6, 8, v7
s_add_u32 s27, s22, %d
v_add_u32 v%d, s27, v7
v_and_b32 v6, 31, v4
v_cmp_eq_u32 vcc, 16, v6
v_cmp_eq_u32 s[28:29], 20, v6
s_mov_b32 s30, 0x3f803f80
s_or_b64 vcc, vcc, s[28:29]
v_mov_b32 v7, s30
s_mov_b32 s40, 0xffff
s_mov_b32 s41, 0xffff
v_cndmask_b32 v6, 0, v7, vcc''' % (QX, vr(Q[0], 4), vr(Q[1], 4), KF, KA, VF, VA))
    for b in range(NBV):
        for u in range(2):
            for j in range(4):
                a('v_mov_b32 v%d, v6' % (V[b][u] + j))
    for q in range(2):
        for j in range(16):
            a('v_mov_b32 v%d, 0' % (O[q] + j))

    def rdk(i):
        return ['buffer_load_dwordx4 %s, v%d, s[8:11], s36 offen sc1' % (vr(K[i % NB], 4), KA),
                's_add_u32 s36, s36, 2048']

    def rdv(i):
        return ['s_mov_b64 exec, s[40:41]',
                'buffer_load_dwordx4 %s, v%d, s[8:11], s37 offen sc1' % (vr(V[i % NBV][0], 4), VA),
                'buffer_load_dwordx4 %s, v%d, s[8:11], s37 offen offset:512 sc1' % (vr(V[i % NBV][1], 4), VA),
                's_mov_b64 exec, -1', 's_add_u32 s37, s37, 2048']

    a('''v_and_b32 v13, 7, v4
v_lshlrev_b32 v13, 7, v13
v_bfe_u32 v7, v4, 3, 1
v_lshl_add_u32 v13, v7, 21, v13
s_add_u32 s27, s22, %d
v_add_u32 v13, s27, v13
s_and_b32 s38, s4, 7
s_lshl_b32 s38, s38, 11
s_add_u32 s38, s38, s36
s_waitcnt lgkmcnt(0)''' % KF)
    lds_add(a, 12, 3, C_Q)
    stamp(a, 6)
    lds_spin(a, 12, 3, C_GO, 1)
    stamp(a, 7)
    PF = 'pf' in OPT
    pfl = ['buffer_load_dword v11, v13, s[8:11], s38 offen sc1', 's_add_u32 s38, s38, 0x4000'] if PF else []
    issue = []
    pro = rdk(0) + (['s_add_u32 s38, s38, 0x4000'] if PF else [])
    issue += [('k', 0)]
    if 'hs' in OPTV:
        a('s_cmp_eq_u32 s19, 0')
        a('s_cbranch_scc1 L_hs')
        a('s_sleep %s' % OPTV['hs'])
        a('L_hs:')
    for i in range(1, DK):
        issue += [('k', i), ('v', i - 1), ('v', i - 1)]
        pro += rdk(i) + rdv(i - 1)
    a('\n'.join(pro))
    a('s_setprio 3')
    a('s_waitcnt vmcnt(%d)' % (len(issue) - 1))
    stamp(a, 8)
    if 'dbgt' in OPT:
        a('s_memrealtime s[74:75]')
    a(mfma(S[0], K[0], Q[0], None))
    a('s_nop 7')
    a('s_nop 3')
    PRIO = {7: 2, 15: 1, 23: 0}

    def unit(i, q):
        u = 2 * i + q
        sc, sn = S[u % 2], S[(u + 1) % 2]
        pc, pp = Pp[u % 2], Pp[(u + 1) % 2]
        i1, q1 = (i, 1) if q == 0 else (i + 1, 0)
        i0, q0 = (i - 1, 1) if q == 0 else (i, 0)
        qk = mfma(sn, K[i1 % NB], Q[q1], None)
        pv0 = mfma(O[q0], V[i0 % NBV][0], pp, O[q0])
        pv1 = mfma(O[q0], V[i0 % NBV][1], pp + 4, O[q0])
        e = ['v_exp_f32 v%d, v%d' % (sc + j, sc + j) for j in range(16)]
        c = ['v_cvt_pk_bf16_f32 v%d, v%d, v%d' % (pc + j, sc + 2 * j, sc + 2 * j + 1) for j in range(8)]
        c7prev = 'v_cvt_pk_bf16_f32 v%d, v%d, v%d' % (pp + 7, sn + 14, sn + 15)
        out = [e[0]]
        if q == 1:
            last = max(n for n, x in enumerate(issue) if x in (('k', i + 1), ('v', i)))
            out.append('s_waitcnt vmcnt(%d)' % (len(issue) - 1 - last))
        if u > 0:
            out.append(c7prev)
        if u < 63:
            out.append(qk)
        kl = rdk(i + DK) if q == 0 and i + DK < 32 else []
        vl = rdv(i + DK - 1) if q == 1 and i + DK - 1 < 32 else []
        issue.extend([('k', i + DK)] * bool(kl) + [('v', i + DK - 1)] * 2 * bool(vl))
        out += kl[:1] + vl[:4]
        out += [e[1], e[2], c[0], e[3], e[4], c[1], e[5]]
        if u > 0:
            out.append(pv0)
        out += kl[1:] + vl[4:]
        out += [e[6], c[2], e[7], e[8], c[3], e[9], e[10], c[4]]
        if u > 0:
            out.append(pv1)
        if q == 0 and i in (1, 8, 16) and PF:
            out += pfl
            issue.append(('p',))
        if q == 1 and i in PRIO:
            out.append('s_setprio %d' % PRIO[i])
            if DIAG and 'qs' in OPT:
                n = 3 + i // 8
                out.append('s_memtime s[%d:%d]' % (ST0 + 2 * n, ST0 + 2 * n + 1))
        out += [e[11], e[12], c[5], e[13], e[14], c[6], e[15]]
        return out

    for i in range(32):
        for q in range(2):
            if (i, q) == (31, 0):
                a('''s_and_b32 s26, s3, 3
s_xor_b32 s27, s26, 2
s_mul_i32 s26, s26, 2304
s_add_u32 s26, s26, {ox}
s_mul_i32 s27, s27, 2304
s_add_u32 s27, s27, {ox}
v_add_u32 v6, s26, v5
v_add_u32 v7, s27, v5
v_lshlrev_b32 v8, 2, v4
v_add_u32 v9, s27, v8
v_add_u32 v8, s26, v8
s_sub_u32 s26, s3, 4
s_lshl_b32 s26, s26, 2
v_add_u32 v10, s26, v12
s_xor_b32 s26, s26, 8
v_add_u32 v11, s26, v12
s_cmp_eq_u32 s19, 0
s_cbranch_scc0 L_xa'''.format(ox=OX))
                lds_spin(a, 12, 3, C_Q, 8)
                a('s_branch L_xb')
                a('L_xa:')
                lds_spin(a, 12, 3, C_O, 4)
                a('L_xb:')
            for s in unit(i, q):
                a(s)
    a('s_nop 0')
    a('v_cvt_pk_bf16_f32 v%d, v%d, v%d' % (Pp[1] + 7, S[1] + 14, S[1] + 15))
    stamp(a, 9)
    if 'dbgt' in OPT:
        a('s_memrealtime s[76:77]')
    a('s_setprio 3')
    a('s_nop 0')
    a(mfma(O[1], V[31 % NBV][0], Pp[1], O[1]))
    a(mfma(O[1], V[31 % NBV][1], Pp[1] + 4, O[1]))
    a('''s_nop 9
s_cmp_eq_u32 s24, 0
s_cbranch_scc0 L_x1''')
    F = 32
    for own, lab in ((0, None), (1, 'L_x1')):
        if lab:
            a(lab + ':')
        oth = 1 - own
        a('ds_write_b128 v6, %s' % vr(O[oth], 4))
        a('ds_write_b128 v6, %s offset:1024' % vr(O[oth] + 4, 4))
        a('ds_write_b32 v8, v%d offset:2048' % (O[oth] + 8))
        for j in range(9):
            a('v_mov_b32 v%d, v%d' % (F + j, O[own] + j))
        if own == 1:
            for j in range(4):
                a('v_mov_b32 v%d, v%d' % (Q[0] + j, Q[1] + j))
        if own == 0:
            a('s_branch L_x2')
    a('L_x2:')
    a('v_mov_b32 v3, 1')
    a('ds_write_b32 v10, v3 offset:%d' % C_X)
    a('''s_lshl_b32 s25, s4, 1
s_add_u32 s25, s25, s24
s_lshl_b32 s25, s25, 15
s_lshl_b32 s26, s18, 10
s_add_u32 s25, s25, s26
s_add_u32 s25, s25, %d
s_mov_b32 s44, 0x%x
s_mov_b32 s45, 0x%x
s_mov_b32 s46, 0x7f7fffff
s_lshl_b32 s55, s4, 3
s_add_u32 s55, s55, s5
s_lshl_b32 s55, s55, 1
s_add_u32 s55, s55, s19
s_lshl_b32 s55, s55, 6
s_add_u32 s55, s55, %d
s_lshl_b32 s26, s19, 2
v_add_u32 v13, s26, v12''' % (OF, f2u(2.0 ** -64), f2u(2.0 ** 64), FL2))
    a('''s_mov_b32 s66, 0
L_xw:
ds_read_b32 v3, v11 offset:%d
ds_read_b128 v[48:51], v7
ds_read_b128 v[52:55], v7 offset:1024
ds_read_b32 v56, v9 offset:2048
s_add_u32 s66, s66, 1
s_waitcnt lgkmcnt(0)
v_readfirstlane_b32 s67, v3
s_cmp_ge_u32 s66, %d
s_cbranch_scc1 L_xe
s_cmp_eq_u32 s67, 0
s_cbranch_scc1 L_xw
L_xe:''' % (C_X, SPIN_MAX * 16))
    stamp(a, 10)
    for j in range(9):
        a('v_add_f32 v%d, v%d, v%d' % (F + j, F + j, 48 + j))
    a('''v_max3_f32 v48, abs(v32), abs(v33), abs(v34)
v_max3_f32 v49, abs(v35), abs(v36), abs(v37)
v_max3_f32 v48, v48, abs(v38), abs(v39)
v_cmp_le_f32 s[28:29], s44, v40
v_cmp_ge_f32 s[30:31], s45, v40
v_add_f32 v50, v32, v33
v_add_f32 v51, v34, v35
v_add_f32 v52, v36, v37
v_add_f32 v53, v38, v39
v_max_f32 v48, v48, v49
v_add_f32 v50, v50, v51
v_add_f32 v52, v52, v53
v_cmp_ge_f32 s[32:33], s46, v48
v_cmp_o_f32 s[34:35], v50, v52
v_rcp_f32 v48, v40
s_and_b64 s[28:29], s[28:29], s[30:31]
s_and_b64 s[32:33], s[32:33], s[34:35]
s_and_b64 s[28:29], s[28:29], s[32:33]
s_cmp_eq_u64 s[28:29], -1
s_cbranch_scc0 L_slow
L_fin:''')
    for j in range(8):
        a('v_mul_f32 v%d, v%d, v48' % (F + j, F + j))
    for j in range(4):
        a('v_cvt_pk_bf16_f32 v%d, v%d, v%d' % (52 + j, F + 2 * j, F + 2 * j + 1))
    a('buffer_store_dwordx4 v[52:55], v5, s[8:11], s25 offen sc1')
    a('s_load_dwordx2 s[34:35], s[0:1], 96')
    a('s_waitcnt vmcnt(0) lgkmcnt(0)')
    arrive_publish(a, 13, 1, C_O, 4, 55, 2)
    stamp(a, 11)
    a('s_cmp_ge_u32 s3, 8')
    a('s_cbranch_scc1 L_bend')
    srd(a, 16, 34, 2048 * 2048)
    a('''s_and_b32 s21, s3, 1
s_bfe_u32 s22, s3, 0x10001
v_lshrrev_b32 v14, 5, v4
v_bfe_u32 v11, v4, 2, 2
v_lshl_add_u32 v11, v14, 2, v11
v_lshlrev_b32 v11, 7, v11
v_bfe_u32 v16, v4, 3, 1
v_lshl_add_u32 v11, v16, 6, v11
v_and_b32 v16, 1, v4
v_lshl_add_u32 v11, v16, 5, v11
v_bfe_u32 v16, v4, 4, 1
v_lshl_add_u32 v11, v16, 4, v11
v_bfe_u32 v16, v4, 1, 1
v_lshl_add_u32 v11, v16, 3, v11
s_lshl_b32 s30, s22, 14
v_add_u32 v11, s30, v11
v_xor_b32 v17, 64, v11
v_and_b32 v15, 31, v4
v_lshlrev_b32 v15, 11, v15
v_lshl_add_u32 v15, v14, 5, v15
s_lshl_b32 s30, s4, 17
s_lshl_b32 s37, s21, 16
s_add_u32 s30, s30, s37
s_lshl_b32 s31, s5, 7
s_add_u32 s30, s30, s31
s_lshl_b32 s37, s22, 6
s_add_u32 s37, s37, s30
s_add_u32 s37, s37, 1024
s_lshl_b32 s39, s22, 2
s_add_u32 s39, s39, s5
v_and_b32 v6, 3, v4
v_add_u32 v6, s39, v6
v_and_b32 v6, 7, v6
v_lshlrev_b32 v6, 7, v6
s_lshl_b32 s46, s4, 10
s_add_u32 s46, s46, %d
s_lshl_b32 s25, s4, 16
s_lshl_b32 s26, s21, 15
s_add_u32 s25, s25, s26
s_add_u32 s25, s25, %d
s_sub_u32 s26, s3, 4
s_lshl_b32 s27, s26, 12
s_add_u32 s27, s27, %d
v_add_u32 v7, s27, v5
v_xor_b32 v8, 0x2000, v7
s_lshl_b32 s26, s26, 2
v_add_u32 v9, s26, v12
v_xor_b32 v10, 8, v9''' % (FL2, OF, GEN))
    AC = [20, 36]
    OFR, WR = 64, 100

    def wo_frags(g):
        for cc in range(4):
            for n in range(2):
                for nt in range(2):
                    for rd in range(2):
                        a('ds_read_b64_tr_b16 %s, v%d offset:%d' % (vr(WR + 16 * cc + 8 * n + 4 * nt + 2 * rd, 2), (11, 17)[nt],
                                                                    g * 32768 + cc * 4096 + n * 2048 + rd * 1024))

    def o_loads(cc):
        a('''s_add_u32 s38, s39, %d
s_and_b32 s38, s38, 7
s_lshl_b32 s30, s38, 12
s_add_u32 s30, s30, s25
buffer_load_dwordx4 %s, v5, s[8:11], s30 offen sc1
buffer_load_dwordx4 %s, v5, s[8:11], s30 offen offset:1024 sc1''' % (cc, vr(OFR + 8 * cc, 4), vr(OFR + 8 * cc + 4, 4)))

    def o_mfma(cc, first):
        for n in range(2):
            for nt in range(2):
                a(mfma(AC[nt], WR + 16 * cc + 8 * n + 4 * nt, OFR + 8 * cc + 4 * n, None if first and n == 0 else AC[nt]))

    lds_spin(a, 12, 3, C_Y2, 4, nap=8)
    wo_frags(0)
    flag_poll_lazy(a, 6, 1, 46, 6)
    for cc in range(4):
        o_loads(cc)
    a('s_waitcnt lgkmcnt(0)')
    for cc in range(4):
        a('s_waitcnt vmcnt(%d)' % (6 - 2 * cc))
        o_mfma(cc, cc == 0)
    wo_frags(1)
    a('''s_add_u32 s46, s46, 64
s_add_u32 s25, s25, 2048
s_xor_b32 s23, s22, 1''')
    stamp(a, 10)
    lds_spin(a, 12, 3, C_O1, 4, nap=2)
    a('s_mov_b32 s66, 0')
    for cc in range(4):
        l, e = label('lp'), label('le')
        a('''{l}:
s_bitcmp1_b32 s23, {cc}
s_cbranch_scc1 {e}
s_cmp_ge_u32 s66, {n}
s_cbranch_scc1 {e}
buffer_load_dword v1, v6, s[8:11], s46 offen sc1
s_add_u32 s66, s66, 1
s_waitcnt vmcnt(0)
v_cmp_eq_u32 vcc, s7, v1
s_nop 1
s_or_b32 s23, s23, vcc_lo
s_branch {l}
{e}:'''.format(l=l, e=e, cc=cc, n=SPIN_MAX))
        o_loads(cc)
        if cc > 0:
            a('s_waitcnt vmcnt(2)')
            o_mfma(cc - 1, False)
    a('s_waitcnt vmcnt(0)')
    o_mfma(3, False)
    stamp(a, 12)
    a('''v_mov_b32 v3, 1
s_cmp_eq_u32 s22, 0
s_nop 12
s_cbranch_scc0 L_r1''')
    for own in range(2):
        if own:
            a('L_r1:')
        for j in range(4):
            a('ds_write_b128 v7, %s offset:%d' % (vr(AC[1 - own] + 4 * j, 4), 1024 * j))
        a('ds_write_b32 v9, v3 offset:%d' % C_P3)
        if not own:
            a('s_branch L_r2')
    a('''L_r2:
s_mov_b32 s66, 0
L_rw:
ds_read_b32 v3, v10 offset:%d''' % C_P3)
    for j in range(4):
        a('ds_read_b128 %s, v8 offset:%d' % (vr(64 + 4 * j, 4), 1024 * j))
    a('''s_add_u32 s66, s66, 1
s_waitcnt lgkmcnt(0)
v_readfirstlane_b32 s67, v3
s_cmp_ge_u32 s66, %d
s_cbranch_scc1 L_re
s_cmp_eq_u32 s67, 0
s_cbranch_scc1 L_rw
L_re:''' % (SPIN_MAX * 16))
    a('s_cmp_eq_u32 s22, 0')
    a('s_cbranch_scc0 L_r3')
    for own in range(2):
        if own:
            a('L_r3:')
        for j in range(16):
            a('v_add_f32 v%d, v%d, v%d' % (64 + j, AC[own] + j, 64 + j))
        if not own:
            a('s_branch L_r4')
    a('L_r4:')
    for j in range(8):
        a('v_cvt_pk_bf16_f32 v%d, v%d, v%d' % (80 + j, 64 + 2 * j, 65 + 2 * j))
    st3 = OPTV.get('st3', '').replace('+', ' ')
    a('buffer_store_dwordx4 v[80:83], v15, s[16:19], s37 offen' + st3)
    a('buffer_store_dwordx4 v[84:87], v15, s[16:19], s37 offen offset:16' + st3)
    if 'dbgt' in OPT:
        a('s_waitcnt vmcnt(0)')
        a('s_memrealtime s[78:79]')
        a('s_load_dwordx2 s[36:37], s[0:1], 104')
        a('s_waitcnt lgkmcnt(0)')
        srd(a, 12, 36, 256)
        a('v_mov_b32 v2, 0')
        a('s_mov_b64 exec, 1')
        for i in range(5):
            a('s_sub_u32 s66, s%d, s7' % (70 + 2 * i))
            a('s_add_u32 s66, s66, 1000')
            a('v_mov_b32 v1, s66')
            a('buffer_atomic_umax v1, v2, s[12:15], 0 offen offset:%d sc1' % (4 + 4 * i))
            a('s_sub_u32 s66, 100000, s66')
            a('v_mov_b32 v3, s66')
            a('buffer_atomic_umax v3, v2, s[12:15], 0 offen offset:%d sc1' % (36 + 4 * i))
        a('s_mov_b64 exec, -1')
        a('s_waitcnt vmcnt(0)')
    a('L_bend:')
    stamp_dump(a)
    a('s_endpgm')

    for t in ('',):
        OS, SS, M, PS, KS, MX = 80, 16, 64, 48, 104, 58
        a('''L_slow%s:
v_mov_b32 v%d, 0xff800000
s_mov_b32 s42, 0
L_s1%s:
buffer_load_dwordx4 %s, v%d, s[8:11], s42 offen sc1
s_waitcnt vmcnt(0)
%s
s_nop 15''' % (t, MX, t, vr(KS, 4), KA, mfma(SS, KS, Q[0], None)))
        for j in range(8):
            a('v_max3_f32 v%d, v%d, v%d, v%d' % (MX, MX, SS + 2 * j, SS + 2 * j + 1))
        a('''s_add_u32 s42, s42, 1024
s_cmp_lt_u32 s42, 0x10000
s_cbranch_scc1 L_s1%s
v_mov_b32 v%d, v%d
s_nop 1
v_permlane32_swap_b32 v%d, v%d
s_nop 1
v_max_f32 v%d, v%d, v%d''' % (t, MX + 1, MX, MX, MX + 1, MX, MX, MX + 1))
        for j in range(16):
            a('v_sub_f32 v%d, 0, v%d' % (M + j, MX))
            a('v_mov_b32 v%d, 0' % (OS + j))
        a('''s_mov_b32 s42, 0
L_s2%s:
buffer_load_dwordx4 %s, v%d, s[8:11], s42 offen sc1
s_mov_b64 exec, s[40:41]
buffer_load_dwordx4 %s, v%d, s[8:11], s42 offen sc1
buffer_load_dwordx4 %s, v%d, s[8:11], s42 offen offset:512 sc1
s_mov_b64 exec, -1
s_waitcnt vmcnt(0)
%s
s_nop 15''' % (t, vr(KS, 4), KA, vr(V[0][0], 4), VA, vr(V[0][1], 4), VA, mfma(SS, KS, Q[0], M)))
        for j in range(16):
            a('v_exp_f32 v%d, v%d' % (SS + j, SS + j))
        a('s_nop 0')
        for j in range(8):
            a('v_cvt_pk_bf16_f32 v%d, v%d, v%d' % (PS + j, SS + 2 * j, SS + 2 * j + 1))
        a('s_nop 1')
        a(mfma(OS, V[0][0], PS, OS))
        a(mfma(OS, V[0][1], PS + 4, OS))
        a('''s_add_u32 s42, s42, 1024
s_cmp_lt_u32 s42, 0x10000
s_cbranch_scc1 L_s2%s
s_nop 15''' % t)
        for j in range(9):
            a('v_mov_b32 v%d, v%d' % (F + j, OS + j))
        a('''v_rcp_f32 v48, v40
s_nop 0
s_branch L_fin''')
    a('''L_end:
s_endpgm''')
    return a.text()


def main(path):
    KN = NAME + '_kernel'
    t = kernel()
    hdr = '''; fused kernel: projections + S4 kernel generation | attention + causal convolution | output projection
; @launch grid=(256,1,1) block=(768,1,1) lds=%d
.amdgcn_target "amdgcn-amd-amdhsa--gfx950"
.text
.globl %s
''' % (LDS_BYTES, KN)
    pad = '.p2align 8\n.fill 4096, 4, 0xbf800000\n'
    kd = '''.section .rodata,"a"
.p2align 6
.amdhsa_kernel %s
  .amdhsa_next_free_vgpr 168
  .amdhsa_next_free_sgpr 102
  .amdhsa_accum_offset 168
  .amdhsa_group_segment_fixed_size 0
  .amdhsa_kernarg_size 120
  .amdhsa_user_sgpr_count 2
  .amdhsa_user_sgpr_kernarg_segment_ptr 1
  .amdhsa_system_sgpr_workgroup_id_x 1
.end_amdhsa_kernel
''' % KN
    open(path, 'w').write(hdr + t + pad + kd)


if __name__ == '__main__':
    for arg in sys.argv[1:]:
        OPT.add(arg)
        if '=' in arg:
            OPTV[arg.split('=')[0]] = arg.split('=')[1]
    DIAG = 'diag' in OPT
    main(sys.argv[1] if len(sys.argv) > 1 else 'cdna_kernels/%s.s' % NAME)
```

```python
import sys
import struct

NAME = 'concat_heads__ssm_conv_s4__softmax_full_mha__prompt'

KF = 0x200000
VF = 0x400000
OF = 0x600000
RS = 4224
UT = 0x800000
YT = 0x1400000
FL1 = 0xC00000
FLU = 0xC04000
FL2 = 0xC08000
FL3 = 0xC10000
WS_BYTES = 0x2000000

GEN = 6 * 16384
LDS_BYTES = GEN + 65536
QX = 65536
USI = 74752
USO = 82944
OX = 65536
YI = 73728
CNT = 94208
C_TAG, C_KV, C_GO, C_PAIR, C_CONV, C_O, C_Y, C_GOU, C_GOY, C_Y2, C_X = 0, 4, 8, 80, 24, 16, 32, 36, 40, 44, 48
C_U, C_P3, C_O1, C_Q, C_W = 12, 96, 20, 116, 120
KCOPY = 4096
UIMG = 9216

LOG2E = 1.4426950408889634
QSCALE = 0.25 * LOG2E
OPT = set()
OPTV = {}
DIAG = False
DIAG_BASE = 0xF00000
ST0 = 70
SPIN_MAX = 1 << 16
ROWS = {0: [0, 1, 2, 3, 4, 5, 6, 7, 8, 1024, 1032, 1280, 1288, 1536, 1544, None],
        1: [256, 258, 260, 262, 264, 512, 516, 520, 768, 772, 776, 1792, 1800, None, None, None]}


def f2u(x):
    return struct.unpack('<I', struct.pack('<f', x))[0]


class A:
    def __init__(self):
        self.L = []

    def __call__(self, s):
        for line in s.split('\n'):
            line = line.strip()
            if not line:
                continue
            if line.endswith(':') or line.startswith('.'):
                self.L.append(line)
            else:
                self.L.append('    ' + line)

    def text(self):
        return '\n'.join(self.L) + '\n'


def vr(a, n=1):
    return 'v%d' % a if n == 1 else 'v[%d:%d]' % (a, a + n - 1)


def sr(a, n=1):
    return 's%d' % a if n == 1 else 's[%d:%d]' % (a, a + n - 1)


def srd(a, dst, base, nbytes):
    a('s_mov_b32 s%d, s%d' % (dst, base))
    a('s_mov_b32 s%d, s%d' % (dst + 1, base + 1))
    a('s_mov_b32 s%d, 0x%x' % (dst + 2, nbytes))
    a('s_mov_b32 s%d, 0x00020000' % (dst + 3))


def mfma(d, x, y, c):
    cs = '0' if c is None else vr(c, 16)
    return 'v_mfma_f32_32x32x16_bf16 %s, %s, %s, %s' % (vr(d, 16), vr(x, 4), vr(y, 4), cs)


def cmul_many(a, items):
    for d, x, y in items:
        a('v_mul_f32 v%d, v%d, v%d' % (d, x, y))
        a('v_mul_f32 v%d, v%d, v%d' % (d + 1, x + 1, y))
    for d, x, y in items:
        a('v_fma_f32 v%d, -v%d, v%d, v%d' % (d, x + 1, y + 1, d))
        a('v_fmac_f32 v%d, v%d, v%d' % (d + 1, x, y + 1))


def stamp(a, i, real=False):
    if DIAG and ('se' not in OPT or i in (0, 13) or str(i) in OPTV.get('only', '').split(',')):
        a('%s s[%d:%d]' % ('s_memrealtime' if real or 'rt' in OPT else 's_memtime', ST0 + 2 * i, ST0 + 2 * i + 1))


def stamp_dump(a, n=14):
    if DIAG:
        a('s_waitcnt vmcnt(0)')
        stamp(a, 13, True)
        a('s_waitcnt lgkmcnt(0)')
        a('s_lshl_b32 s68, s2, 4')
        a('s_add_u32 s68, s68, s3')
        a('s_lshl_b32 s68, s68, 6')
        a('s_add_u32 s68, s68, %d' % DIAG_BASE)
        a('v_mov_b32 v1, 0')
        a('s_mov_b64 exec, 1')
        for i in range(n):
            a('v_mov_b32 v2, s%d' % (ST0 + 2 * i))
            a('buffer_store_dword v2, v1, s[8:11], s68 offen offset:%d' % (4 * i))
        a('s_mov_b64 exec, -1')


_lab = [0]


def label(p):
    _lab[0] += 1
    return 'L_%s%d' % (p, _lab[0])


def lds_spin(a, va, vt, off, thr, st=66, nap=1):
    l, e = label('sp'), label('se')
    a('''s_mov_b32 s%d, 0
%s:
ds_read_b32 v%d, v%d offset:%d
s_add_u32 s%d, s%d, 1
s_waitcnt lgkmcnt(0)
v_readfirstlane_b32 s%d, v%d
s_cmp_ge_u32 s%d, %d
s_cbranch_scc1 %s
s_cmp_ge_u32 s%d, %d
s_cbranch_scc1 %s
s_sleep %d
s_branch %s
%s:''' % (st, l, vt, va, off, st, st, st + 1, vt, st, SPIN_MAX, e, st + 1, thr, e, nap, l, e))


def lds_add(a, va, vt, off):
    a('''v_mov_b32 v%d, 1
s_mov_b64 exec, 1
ds_add_u32 v%d, v%d offset:%d
s_mov_b64 exec, -1''' % (vt, va, vt, off))


def arrive_publish(a, va, vt, off, nwaves, sflag, vz):
    e = label('np')
    a('''v_mov_b32 v%d, 1
s_mov_b64 exec, 1
ds_add_rtn_u32 v%d, v%d, v%d offset:%d
v_mov_b32 v%d, 0
s_waitcnt lgkmcnt(0)
v_readfirstlane_b32 s66, v%d
v_mov_b32 v%d, s7
s_cmp_eq_u32 s66, %d
s_cbranch_scc0 %s
buffer_store_dword v%d, v%d, s[8:11], s%d offen sc1
%s:
s_mov_b64 exec, -1''' % (vt, vt, va, vt, off, vz, vt, vt, nwaves - 1, e, vt, vz, sflag, e))


def flag_poll(a, voff, vt, vt2, sbase):
    l, e = label('fp'), label('fe')
    ld = 'buffer_load_dword v%d, v%d, s[8:11], s%d offen sc1'
    a('''s_mov_b32 s66, 0
%s
s_sleep 4
%s:
%s
s_waitcnt vmcnt(1)
v_cmp_eq_u32 vcc, s7, v%d
s_add_u32 s66, s66, 1
s_cmp_eq_u64 vcc, -1
s_cbranch_scc1 %s
s_sleep 2
%s
s_waitcnt vmcnt(1)
v_cmp_eq_u32 vcc, s7, v%d
s_cmp_ge_u32 s66, %d
s_cbranch_scc1 %s
s_cmp_eq_u64 vcc, -1
s_cbranch_scc0 %s
%s:''' % (ld % (vt, voff, sbase), l, ld % (vt2, voff, sbase), vt, e, ld % (vt, voff, sbase), vt2, SPIN_MAX, e, l, e))


def flag_poll_lazy(a, voff, vt, sbase, nap):
    l, e = label('fp'), label('fe')
    a('''s_mov_b32 s66, 0
%s:
buffer_load_dword v%d, v%d, s[8:11], s%d offen sc1
s_add_u32 s66, s66, 1
s_waitcnt vmcnt(0)
v_cmp_eq_u32 vcc, s7, v%d
s_cmp_ge_u32 s66, %d
s_cbranch_scc1 %s
s_cmp_eq_u64 vcc, -1
s_cbranch_scc1 %s
s_sleep %d
s_branch %s
%s:''' % (l, vt, voff, sbase, vt, SPIN_MAX, e, e, nap, l, e))


def tag_check(a, vt, vz, srd0):
    l, e = label('tp'), label('te')
    a('''s_mov_b32 s66, 0
%s:
v_readfirstlane_b32 s7, v%d
s_add_u32 s66, s66, 1
s_cmp_lg_u32 s7, 0
s_cbranch_scc1 %s
s_cmp_ge_u32 s66, %d
s_cbranch_scc1 %s
buffer_load_dword v%d, v%d, s[%d:%d], 0 offen sc1
s_waitcnt vmcnt(0)
s_branch %s
%s:''' % (l, vt, e, SPIN_MAX, e, vt, vz, srd0, srd0 + 3, l, e))


def kgen_stream():
    a = A()
    P = 20
    for i in range(8):
        a('v_lshlrev_b32 %s, 16, %s' % (vr(P + i), vr(P + i)))
    Are, Aim, Bre, Bim, Cre, Cim, LDT, DSK = range(P, P + 8)
    a('v_mul_f32 v%d, s51, v%d' % (LDT, LDT))
    a('v_exp_f32 v%d, v%d' % (LDT, LDT))
    a('s_nop 0')
    a('v_cvt_pk_bf16_f32 v%d, v%d, v%d' % (LDT, LDT, LDT))
    a('v_lshlrev_b32 v%d, 16, v%d' % (LDT, LDT))
    a('v_mul_f32 v%d, v%d, v%d' % (Are, LDT, Are))
    a('v_mul_f32 v%d, v%d, v%d' % (Aim, LDT, Aim))
    a('v_mul_f32 v%d, v%d, v%d' % (Bre, LDT, Bre))
    a('v_mul_f32 v%d, v%d, v%d' % (Bim, LDT, Bim))
    a('v_mul_f32 v%d, s51, v%d' % (Are, Are))
    a('v_mul_f32 v%d, 0.15915494, v%d' % (Aim, Aim))
    G = [32 + 2 * i for i in range(32)]
    W = [96 + 2 * i for i in range(9)]
    Z1, Z2, Z4, Z32 = 114, 116, 118, 120
    ZB = {256: 122, 512: 124, 768: 126, 1024: 128, 1280: 130, 1536: 132, 1792: 134}
    T0, PK, AD = 136, 146, 154
    R = {}
    nxt = 32
    for h in (0, 1):
        for e in ROWS[h]:
            if e is None:
                continue
            if e <= 8:
                R[e] = W[e]
            else:
                R[e] = nxt
                nxt += 2
    cmul_many(a, [(W[0], Cre, Bre)])
    direct = [(Z1, 1.0), (G[1], 8.0), (Z32, 32.0), (ZB[256], 256.0), (ZB[1024], 1024.0)]
    for i, (z, e) in enumerate(direct):
        a('v_mul_f32 v%d, 0x%x, v%d' % (T0 + 2 * i, f2u(e), Are))
        a('v_mul_f32 v%d, 0x%x, v%d' % (T0 + 2 * i + 1, f2u(e), Aim))
    for i, (z, e) in enumerate(direct):
        a('v_exp_f32 v%d, v%d' % (T0 + 2 * i, T0 + 2 * i))
        a('v_fract_f32 v%d, v%d' % (T0 + 2 * i + 1, T0 + 2 * i + 1))
    for i, (z, e) in enumerate(direct):
        a('v_cos_f32 v%d, v%d' % (z, T0 + 2 * i + 1))
        a('v_sin_f32 v%d, v%d' % (z + 1, T0 + 2 * i + 1))
    a('v_mov_b32 v%d, 1.0' % G[0])
    a('v_mov_b32 v%d, 0' % (G[0] + 1))
    for i, (z, e) in enumerate(direct):
        a('v_mul_f32 v%d, v%d, v%d' % (z, z, T0 + 2 * i))
        a('v_mul_f32 v%d, v%d, v%d' % (z + 1, z + 1, T0 + 2 * i))
    cmul_many(a, [(G[2], G[1], G[1]), (Z2, Z1, Z1), (W[1], W[0], Z1), (W[8], W[0], G[1]), (ZB[512], ZB[256], ZB[256]),
                  (ZB[1280], ZB[1024], ZB[256]), (G[5], G[1], Z32)])
    a('v_mov_b32 v%d, v%d' % (G[4], Z32))
    a('v_mov_b32 v%d, v%d' % (G[4] + 1, Z32 + 1))
    cmul_many(a, [(G[3], G[2], G[1]), (Z4, Z2, Z2), (W[2], W[0], Z2), (W[3], W[1], Z2), (ZB[768], ZB[512], ZB[256]),
                  (ZB[1536], ZB[1024], ZB[512]), (G[6], G[2], Z32)])
    cmul_many(a, [(G[7], G[3], Z32), (W[4], W[0], Z4), (W[5], W[1], Z4), (W[6], W[2], Z4), (W[7], W[3], Z4),
                  (ZB[1792], ZB[1024], ZB[768])])
    for i0 in range(8, 32, 4):
        cmul_many(a, [(G[i], G[i - 4], Z32) for i in range(i0, i0 + 4)])
    nvalu = len(a.L)
    for c in range(8):
        a('v_xor_b32 v%d, %d, v13' % (AD + c, c << 4))
    rowidx = [None] * 32
    for h in (0, 1):
        for r in range(16):
            rowidx[8 * (r >> 2) + 4 * h + (r & 3)] = ROWS[h][r]
    nput = [0]

    def put(c, regs, neg, off):
        pk = PK + 4 * (nput[0] & 1)
        nput[0] += 1
        for j in range(4):
            a('v_cvt_pk_bf16_f32 v%d, %sv%d, %sv%d' % (pk + j, neg, regs[2 * j], neg, regs[2 * j + 1]))
        a('ds_write_b128 v%d, %s%s' % (AD + c, vr(pk, 4), off))

    for c in range(8):
        put(c, [G[8 * (c & 3) + j] + (c >> 2) for j in range(8)], '', '')
    big = [e for e in R if e > 8]
    items = [(R[e], W[e & 255], ZB[e & ~255]) for e in big]
    for i0 in range(0, len(items), 5):
        cmul_many(a, items[i0:i0 + 5])
    for c in range(8):
        comp = c >> 2
        regs = [(R[e] if e is not None else W[0]) + comp for e in rowidx[8 * (c & 3):8 * (c & 3) + 8]]
        put(c, regs, '-' if comp else '', ' offset:8192')
    a('s_waitcnt lgkmcnt(0)')
    KD, FR, NB = 32, 48, 4

    def gen_reads(s):
        off = s * 1024
        b = FR + 8 * (s % NB)
        a('ds_read_b64_tr_b16 %s, v14 offset:%d' % (vr(b, 2), off + 8192))
        a('ds_read_b64_tr_b16 %s, v15 offset:%d' % (vr(b + 2, 2), off + 8192))
        a('ds_read_b64_tr_b16 %s, v14 offset:%d' % (vr(b + 4, 2), off))
        a('ds_read_b64_tr_b16 %s, v15 offset:%d' % (vr(b + 6, 2), off))

    for s in range(3):
        gen_reads(s)
    for s in range(8):
        if s + 3 < 8:
            gen_reads(s + 3)
        a('s_waitcnt lgkmcnt(%d)' % (4 * min(3, 7 - s)))
        b = FR + 8 * (s % NB)
        a(mfma(KD, b, b + 4, None if s == 0 else KD))
    a('s_nop 15')
    for j in range(4):
        a('ds_write_b128 v16, %s offset:%d' % (vr(KD + 4 * j, 4), 1024 * j))
    a('s_waitcnt lgkmcnt(0)')
    return a.L, nvalu


def transpose_addrs(a, sw, vrd, vwr, vlin, t0, t1, usi, uso):
    a('''v_lshrrev_b32 v{t0}, 4, v4
v_bfe_u32 v{t1}, v4, 2, 2
v_lshl_add_u32 v{t1}, v{t0}, 3, v{t1}
v_lshlrev_b32 v{rd}, 7, v{t1}
v_and_b32 v{t1}, 3, v4
v_lshl_add_u32 v{rd}, v{t1}, 3, v{rd}
s_lshl_b32 s66, s{w}, 5
s_add_u32 s66, s66, {usi}
v_add_u32 v{rd}, s66, v{rd}
v_and_b32 v{t1}, 7, v4
v_xor_b32 v{t0}, v{t0}, v{t1}
v_lshlrev_b32 v{t0}, 4, v{t0}
v_and_b32 v{t1}, 15, v4
v_lshl_add_u32 v{wr}, v{t1}, 7, v{t0}
s_lshl_b32 s66, s{w}, 11
s_add_u32 s66, s66, {uso}
v_add_u32 v{wr}, s66, v{wr}
v_lshl_add_u32 v{lin}, v4, 4, s66
v_lshrrev_b32 v{t0}, 3, v4
v_and_b32 v{t1}, 7, v4
v_xor_b32 v{t1}, v{t1}, v{t0}'''.format(t0=t0, t1=t1, rd=vrd, wr=vwr, lin=vlin, w=sw, usi=usi, uso=uso))


def transpose_a(a, vrd, vwr, d, t):
    a('''ds_read_b64_tr_b16 v[{d0}:{d1}], v{rd}
ds_read_b64_tr_b16 v[{d2}:{d3}], v{rd} offset:512
ds_read_b64_tr_b16 v[{d4}:{d5}], v{rd} offset:4096
ds_read_b64_tr_b16 v[{d6}:{d7}], v{rd} offset:4608
v_xor_b32 v{t}, 64, v{wr}
s_waitcnt lgkmcnt(2)
ds_write_b128 v{wr}, v[{d0}:{d3}]
s_waitcnt lgkmcnt(1)
ds_write_b128 v{t}, v[{d4}:{d7}]
s_waitcnt lgkmcnt(0)'''.format(rd=vrd, wr=vwr, t=t, **{'d%d' % i: d + i for i in range(8)}))


def kernel():
    a = A()
    KN = NAME + '_kernel'
    a('''.p2align 8
.type {k},@function
{k}:
s_cmp_ge_u32 s2, 256
s_cbranch_scc1 L_end
s_load_dwordx16 s[16:31], s[0:1], 8
s_load_dwordx4 s[32:35], s[0:1], 72
s_load_dwordx4 s[36:39], s[0:1], 104'''.format(k=KN))
    stamp(a, 0, True)
    stamp(a, 1)
    if 'enc' in OPTV:
        a('s_memrealtime s[90:91]')
    a('''v_lshrrev_b32 v3, 6, v0
v_and_b32 v4, 63, v0
s_and_b32 s44, s2, 7
s_lshr_b32 s45, s2, 3
v_readfirstlane_b32 s3, v3
s_lshl_b32 s60, s44, 6
s_lshl_b32 s46, s45, 1
s_add_u32 s60, s60, s46
s_lshl_b32 s46, s60, 8
v_lshl_add_u32 v5, v0, 1, s46
s_lshr_b32 s4, s44, 1
s_lshl_b32 s4, s4, 3
s_and_b32 s46, s45, 7
s_add_u32 s4, s4, s46
s_and_b32 s5, s44, 1
s_lshl_b32 s5, s5, 2
s_lshr_b32 s47, s45, 3
s_add_u32 s5, s5, s47
s_lshl_b32 s47, s47, 1
%s
s_cmp_ge_u32 s3, 4
s_cbranch_scc1 L_gemm''' % {'0': 's_mov_b32 s6, 0', '1': 's_add_u32 s6, s46, s47', '2': 's_and_b32 s6, s46, 4', '3': 's_and_b32 s6, s46, 6'}[OPTV.get('rot', '1')])
    SEG = (1, 2, 0)
    S = [16, 32]
    Pp = [48, 56]
    O = [64, 80]
    Q = [96, 100]
    OWN = 'own' in OPT
    DK = int(OPTV.get('dk', 3))
    NB, NBV = DK + 1, DK + 1 if DK == 3 else DK
    K = [104 + 4 * b for b in range(NB)]
    V0 = 104 + 4 * NB
    V = [[V0 + 8 * b, V0 + 4 + 8 * b] for b in range(NBV)]
    KA, VA = 14, 15
    assert V0 + 8 * NBV <= 160

    WOW = OPTV.get('wow', 'mid')

    def wo_dma():
        srd(a, 12, 32, 512 * 1024)
        a('''v_lshrrev_b32 v6, 3, v4
v_lshlrev_b32 v6, 10, v6
v_bfe_u32 v7, v4, 4, 1
v_lshlrev_b32 v7, 2, v7
v_and_b32 v8, 7, v4
v_xor_b32 v7, v7, v8
v_lshl_add_u32 v6, v7, 4, v6
v_add_u32 v7, %d, v6
s_lshl_b32 s57, s48, 10
s_lshl_b32 s26, s49, 14
s_add_u32 s57, s57, s26
s_lshl_b32 s26, s5, 7
s_lshl_b32 s27, s48, 13
s_add_u32 s26, s26, s27''' % (16384 - 2048))
        for cc in range(4):
            a('s_add_u32 s38, s51, %d' % cc)
            a('s_and_b32 s38, s38, 7')
            a('s_lshl_b32 s30, s38, 16')
            for g in range(2):
                a('s_add_u32 m0, s57, %d' % (g * 32768 + cc * 4096))
                a('s_add_u32 s30, s30, s26' if g == 0 else 's_add_u32 s30, s30, 0x8000')
                a('buffer_load_dwordx4 v6, s[12:15], s30 offen lds')
                a('buffer_load_dwordx4 v7, s[12:15], s30 offen offset:2048 lds')

    def att_prologue(early):
        a('''s_lshr_b32 s19, s3, 3
s_and_b32 s18, s3, 1
s_lshl_b32 s24, s19, 1
s_add_u32 s18, s18, s24
s_bfe_u32 s24, s3, 0x10001
v_lshlrev_b32 v5, 4, v4
s_lshl_b32 s26, s18, 10
s_add_u32 s26, s26, %d
s_lshl_b32 s27, s24, 12
s_add_u32 s26, s26, s27
v_add_u32 v13, s26, v5
s_lshl_b32 s27, s5, 2
s_add_u32 s18, s18, s27
s_lshl_b32 s22, s18, 16
s_add_u32 s27, s22, %d
v_add_u32 v%d, s27, v5
s_lshl_b32 s36, s24, 10
%s
s_mov_b32 s37, s36
v_lshrrev_b32 v6, 5, v4
v_and_b32 v7, 15, v4
v_lshlrev_b32 v7, 4, v7
v_lshl_add_u32 v7, v6, 8, v7
s_add_u32 s27, s22, %d
v_add_u32 v%d, s27, v7
v_and_b32 v6, 31, v4
v_cmp_eq_u32 vcc, 16, v6
v_cmp_eq_u32 s[28:29], 20, v6
s_mov_b32 s30, 0x3f803f80
s_or_b64 vcc, vcc, s[28:29]
v_mov_b32 v7, s30
s_mov_b32 s40, 0xffff
s_mov_b32 s41, 0xffff
v_cndmask_b32 v6, 0, v7, vcc''' % (QX, KF, KA, 's_lshl_b32 s37, s4, 11\ns_add_u32 s36, s36, s37' if OWN else '', VF, VA))
        for b in range(NBV):
            for u in range(2):
                for j in range(4):
                    a('v_mov_b32 v%d, v6' % (V[b][u] + j))
        for q in range(2):
            for j in range(16):
                a('v_mov_b32 v%d, 0' % (O[q] + j))

        if early:
            a('''s_and_b32 s48, s3, 1
s_bfe_u32 s49, s3, 0x10001
v_lshrrev_b32 v8, 5, v4
v_bfe_u32 v160, v4, 2, 2
v_lshl_add_u32 v160, v8, 2, v160
v_lshlrev_b32 v160, 7, v160
v_bfe_u32 v9, v4, 3, 1
v_lshl_add_u32 v160, v9, 6, v160
v_and_b32 v9, 1, v4
v_lshl_add_u32 v160, v9, 5, v160
v_bfe_u32 v9, v4, 4, 1
v_lshl_add_u32 v160, v9, 4, v160
v_bfe_u32 v9, v4, 1, 1
v_lshl_add_u32 v160, v9, 3, v160
s_lshl_b32 s26, s49, 14
v_add_u32 v160, s26, v160
v_xor_b32 v161, 64, v160
v_and_b32 v162, 31, v4
v_lshlrev_b32 v162, 11, v162
v_lshl_add_u32 v162, v8, 5, v162
s_lshl_b32 s26, s4, 17
s_lshl_b32 s50, s48, 16
s_add_u32 s26, s26, s50
s_lshl_b32 s27, s5, 7
s_add_u32 s26, s26, s27
s_lshl_b32 s50, s49, 6
s_add_u32 s50, s50, s26
s_add_u32 s50, s50, 1024
s_lshl_b32 s51, s49, 2
s_add_u32 s51, s51, s5
v_and_b32 v163, 3, v4
v_add_u32 v163, s51, v163
v_and_b32 v163, 7, v163
v_lshlrev_b32 v163, 7, v163
s_lshl_b32 s52, s4, 10
s_add_u32 s52, s52, %d
s_lshl_b32 s53, s4, 16
s_lshl_b32 s26, s48, 15
s_add_u32 s53, s53, s26
s_add_u32 s53, s53, %d
s_sub_u32 s26, s3, 4
s_lshl_b32 s27, s26, 12
s_add_u32 s27, s27, %d
v_add_u32 v164, s27, v5
v_xor_b32 v165, 0x2000, v164
s_lshl_b32 s26, s26, 2
v_add_u32 v166, s26, v12
v_xor_b32 v167, 8, v166''' % (FL2, OF, GEN))
        else:
            a('v_mov_b32 v163, 0')
            a('s_mov_b32 s52, %d' % FL2)
        a('''s_lshl_b32 s54, s4, 1
s_add_u32 s54, s54, s24
s_lshl_b32 s54, s54, 15
s_lshl_b32 s26, s18, 10
s_add_u32 s54, s54, s26
s_add_u32 s54, s54, %d
v_mov_b32 v8, -1
v_mov_b32 v9, -1
v_mov_b32 v10, -1
v_mov_b32 v11, -1
s_lshl_b32 s55, s4, 3
s_add_u32 s55, s55, s5
s_lshl_b32 s55, s55, 7
s_add_u32 s55, s55, %d
buffer_store_dwordx4 v[8:11], v5, s[8:11], s54 offen sc1''' % (OF, FL2))


    a('''s_lshr_b32 s61, s3, 1
s_add_u32 s52, s60, s61
s_lshl_b32 s46, s52, 1
v_mov_b32 v19, s46
s_and_b32 s53, s3, 1
s_waitcnt lgkmcnt(0)''')
    P = 20
    a('global_load_ushort %s, v19, s[28:29]' % vr(P + 6))
    for i in range(6):
        a('global_load_ushort %s, v5, %s' % (vr(P + i), sr(16 + 2 * i, 2)))
    a('global_load_ushort %s, v19, s[30:31]' % vr(P + 7))
    a('''s_getpc_b64 s[40:41]
v_and_b32 v1, 7, v0
v_lshlrev_b32 v1, 7, v1
s_lshl_b32 s46, s45, 10
v_add_u32 v1, s46, v1
global_load_dword v2, v1, s[40:41]''')
    srd(a, 8, 38, WS_BYTES)
    srd(a, 12, 36, 256)
    a('''v_mov_b32 v18, 0
s_or_b32 s46, s2, s3
s_cmp_eq_u32 s46, 0
s_cbranch_scc0 L_notag
s_memrealtime s[46:47]
s_waitcnt lgkmcnt(0)
s_or_b32 s46, s46, 1
v_mov_b32 v1, s46
s_mov_b64 exec, 1
buffer_store_dword v1, v18, s[12:15], 0 offen sc1
s_mov_b64 exec, -1
s_waitcnt vmcnt(0)
L_notag:''')
    a('''s_lshl_b32 s62, s3, 14
s_add_u32 s62, s62, %d
v_and_b32 v10, 7, v4
v_lshlrev_b32 v10, 4, v10
v_lshl_add_u32 v13, v4, 7, v10
v_add_u32 v13, s62, v13
v_lshrrev_b32 v10, 5, v4
v_bfe_u32 v11, v4, 3, 1
v_lshl_add_u32 v10, v10, 2, v11
v_bfe_u32 v11, v4, 2, 1
v_lshlrev_b32 v11, 2, v11
v_bfe_u32 v12, v4, 4, 1
v_lshl_add_u32 v11, v12, 1, v11
v_bfe_u32 v12, v4, 1, 1
v_add_u32 v11, v11, v12
v_xor_b32 v11, v11, v10
v_lshlrev_b32 v11, 4, v11
v_lshl_add_u32 v11, v10, 7, v11
v_and_b32 v12, 1, v4
v_lshl_add_u32 v11, v12, 3, v11
v_add_u32 v14, s62, v11
v_xor_b32 v15, 32, v14
v_add_u32 v15, 256, v15
v_lshl_add_u32 v16, v4, 4, s62
v_xor_b32 v17, 0x4000, v16
v_mov_b32 v12, %d
s_mov_b32 s51, 0x%x''' % (GEN, CNT, f2u(LOG2E)))
    p1, nvalu = kgen_stream()
    sizes = [int(x) for x in OPTV.get('sl', '80,140,31').split(',')]
    cuts = [0]
    for z in sizes:
        cuts.append(min(len(p1), cuts[-1] + z))
    print('kgen instructions', len(p1), 'pure valu', nvalu, cuts, file=sys.stderr)
    a('s_load_dwordx4 s[32:35], s[0:1], 88')
    stamp(a, 2)
    a('s_waitcnt vmcnt(1) lgkmcnt(0)')
    for c in range(16):
        if c < len(sizes):
            a.L += p1[cuts[c]:cuts[c + 1]]
        if c == 8:
            a('buffer_load_dword v1, v18, s[12:15], 0 offen sc1')
        if c == 14:
            a('s_waitcnt vmcnt(0)')
            tag_check(a, 1, 18, 12)
            a('''v_cmp_eq_u32 vcc, 0, v4
v_lshl_add_u32 v2, v4, 2, v12
s_cmp_eq_u32 s3, 0
v_cndmask_b32 v1, 0, v1, vcc
s_cbranch_scc0 L_tagd
ds_write_b32 v2, v1
s_waitcnt lgkmcnt(0)
L_tagd:''')
        a('s_barrier')
    a('s_barrier')
    stamp(a, 3)
    if 'noc' in OPT:
        lds_add(a, 12, 1, C_Y2)
        a('s_waitcnt lgkmcnt(0)')
        stamp_dump(a)
        a('s_endpgm')
    a('s_setprio %s' % OPTV.get('cprio', '3'))
    a('''s_lshl_b32 s46, s3, 11
s_add_u32 s46, s46, %d
v_lshl_add_u32 v6, v4, 4, s46
ds_read_b128 v[8:11], v6
ds_read_b128 v[28:31], v6 offset:1024
v_lshrrev_b32 v6, 3, v4
v_and_b32 v7, 7, v4
v_xor_b32 v7, v7, v6
v_mul_u32_u24 v6, %d, v6
v_lshl_add_u32 v6, v7, 4, v6
s_mul_i32 s46, s44, %d
s_mul_i32 s47, s3, %d
s_add_u32 s46, s46, s47
s_lshl_b32 s47, s45, 7
s_add_u32 s46, s46, s47
s_add_u32 s46, s46, %d
s_add_u32 s47, s46, %d
s_lshl_b32 s65, s44, 5
s_add_u32 s65, s65, s45
s_lshl_b32 s65, s65, 6
s_add_u32 s65, s65, %d
s_waitcnt lgkmcnt(1)
buffer_store_dwordx4 v[8:11], v6, s[8:11], s46 offen sc1
s_waitcnt lgkmcnt(0)
buffer_store_dwordx4 v[28:31], v6, s[8:11], s47 offen sc1''' % (USO, RS, 64 * RS, 16 * RS, UT, 8 * RS, FLU))
    srd(a, 16, 34, 2048 * 2048)
    srd(a, 12, 32, 512 * 1024)
    a.L += p1[cuts[-1]:]
    a('s_waitcnt vmcnt(0)')
    arrive_publish(a, 12, 1, C_U, 4, 65, 2)
    a('s_lshl_b32 s63, s61, 2')
    a('v_add_u32 v11, s63, v12')
    lds_add(a, 11, 1, C_PAIR)
    KD = 32
    a('''v_and_b32 v28, 31, v4
v_lshrrev_b32 v29, 5, v4
s_lshl_b32 s46, s53, 6
s_add_u32 s46, s46, s62
s_add_u32 s46, s46, %d
v_lshlrev_b32 v10, 4, v28
v_sub_u32 v18, s46, v10
v_and_b32 v10, 1, v4
v_cmp_eq_u32 s[54:55], 1, v10
v_cmp_eq_u32 s[56:57], 0, v4
s_mov_b32 s58, -1
s_mov_b32 s59, 0
s_mov_b32 s40, 0
s_mov_b32 s41, -1''' % (KCOPY + 255 * 16))
    for sl, (b0, b1) in enumerate([(0, 32), (128, 64), (160, 96), (192, 224)]):
        a('v_mul_i32_i24 v10, %d, v29' % ((b1 - b0) * 16))
        a('v_sub_u32 v%d, v18, v10' % (80 + sl))
        if b0:
            a('v_subrev_u32 v%d, %d, v%d' % (80 + sl, b0 * 16, 80 + sl))
    a('''v_lshl_add_u32 v87, v4, 4, s46
v_add_u32 v87, 16, v87
s_lshl_b32 s64, s61, 15
s_add_u32 s64, s64, %d
s_lshl_b32 s47, s53, 1
v_add_u32 v10, s47, v29
v_mul_u32_u24 v10, 1536, v10
v_lshl_add_u32 v10, v28, 4, v10
v_add_u32 v10, s64, v10
v_mov_b32 v88, 0
v_mov_b32 v89, 0
v_mov_b32 v90, 0
v_mov_b32 v91, 0''' % (GEN + UIMG))
    lds_spin(a, 11, 1, C_PAIR, 2)
    a('ds_write_b128 v10, v[88:91]')
    for j in range(4):
        a('ds_read_b128 %s, v17 offset:%d' % (vr(48 + 4 * j, 4), 1024 * j))
    a('v_cndmask_b32 v9, 0, v27, s[56:57]')
    a('v_add_f32 v%d, v%d, v9' % (KD, KD))
    a('s_waitcnt lgkmcnt(0)')
    for j in range(16):
        a('v_add_f32 v%d, v%d, v%d' % (KD + j, KD + j, 48 + j))
    for i, r in enumerate((9, 11, 13)):
        a('v_cndmask_b32 v%d, v%d, v%d, s[54:55]' % (84 + i, KD + r, KD + r + 1))
    OB = 64

    def pack(dst, vals):
        for j in range(4):
            a('v_cvt_pk_bf16_f32 v%d, v%d, v%d' % (dst + j, vals[2 * j], vals[2 * j + 1]))

    def emit_copy(cp):
        k = lambda r: KD + r
        r0 = [k(i) for i in range(9)]
        r1 = [k(0), k(0), k(1), k(2), k(2), k(2), k(3), k(4), k(4)]
        r2 = lambda b: [k(b), k(b), k(b), k(b + 1), k(b + 1), k(b + 1), k(b + 2), k(b + 2), k(b + 2)]
        r3 = lambda b, x: [k(b)] * 4 + [x] + [k(b + 1)] * 4
        sel = (lambda p: p[8:0:-1]) if cp == 0 else (lambda p: p[7::-1])
        a('s_mov_b64 exec, s[58:59]')
        pack(OB, sel(r0))
        pack(OB + 4, sel(r3(9, 84)))
        pack(OB + 8, sel(r3(11, 85)))
        pack(OB + 12, sel(r3(13, 86)))
        a('s_mov_b64 exec, s[40:41]')
        pack(OB, sel(r1))
        pack(OB + 4, sel(r2(5)))
        pack(OB + 8, sel(r2(8)))
        pack(OB + 12, sel(r3(11, 85)))
        a('s_mov_b64 exec, -1')
        if cp == 0:
            a('v_cvt_pk_bf16_f32 v10, v%d, v88' % KD)
            a('v_cndmask_b32 v88, 0, v10, s[56:57]')

    a('s_cmp_eq_u32 s53, 0')
    a('s_cbranch_scc0 L_copy1')
    emit_copy(0)
    a('s_branch L_copyd')
    a('L_copy1:')
    emit_copy(1)
    a('L_copyd:')
    for sl in range(4):
        a('ds_write_b128 v%d, %s' % (80 + sl, vr(OB + 4 * sl, 4)))
    a('s_mov_b64 exec, 15')
    a('ds_write_b128 v87, v[88:91]')
    a('s_mov_b64 exec, -1')
    if 'x1' in OPT:
        lds_add(a, 12, 1, C_Y2)
        a('s_waitcnt lgkmcnt(0)')
        stamp_dump(a)
        a('s_endpgm')
    stamp(a, 4)
    a('''v_lshlrev_b32 v6, 6, v28
s_lshl_b32 s46, s44, 11
s_add_u32 s46, s46, %d
s_cmp_eq_u32 s3, 0
s_cbranch_scc0 L_uw''' % FLU)
    flag_poll_lazy(a, 6, 1, 46, 8)
    lds_add(a, 12, 3, C_GOU)
    a('L_uw:')
    lds_spin(a, 12, 3, C_GOU, 1, nap=4)
    a('''v_lshlrev_b32 v6, 6, v4
s_mul_i32 s46, s52, %d
s_lshl_b32 s47, s53, 5
s_add_u32 s46, s46, s47
s_add_u32 s46, s46, %d
s_mul_i32 s47, s53, 3072
s_add_u32 s47, s47, s64
s_add_u32 m0, s47, 512
s_nop 0
buffer_load_dwordx4 v6, s[8:11], s46 offen sc1 lds
s_add_u32 m0, s47, 2048
s_add_u32 s46, s46, 16
buffer_load_dwordx4 v6, s[8:11], s46 offen sc1 lds''' % (RS, UT))
    a('''v_and_b32 v18, 30, v4
v_and_b32 v19, 1, v4
v_lshlrev_b32 v24, 3, v29
v_sub_u32 v24, v24, v18
v_add_u32 v24, 32, v24
v_lshlrev_b32 v24, 1, v24
v_mul_u32_u24 v19, %d, v19
v_add_u32 v24, v24, v19
s_add_u32 s46, s64, %d
v_add_u32 v24, s46, v24
s_lshl_b32 s46, s53, 9
s_add_u32 s46, s46, s64
s_add_u32 s46, s46, %d
v_mul_u32_u24 v25, 1536, v29
v_lshl_add_u32 v25, v28, 4, v25
v_add_u32 v25, s46, v25''' % (16384 + 64 - 4, KCOPY - UIMG + 32 * 120, 512 - 3 * 16))
    TB, UB, CA = 32, 40, 48
    CB = 64
    for j in range(32):
        a('v_mov_b32 v%d, 0' % (CA + j))
    a('''s_lshl_b32 s34, s53, 2
s_add_u32 s34, s34, 8
s_mov_b32 s35, 0
s_waitcnt vmcnt(0) lgkmcnt(0)''')
    lds_add(a, 12, 1, C_CONV)
    if WOW != 'win':
        a('''s_and_b32 s46, s45, 7
s_lshl_b32 s46, s46, 16
s_lshl_b32 s47, s5, 7
s_add_u32 s46, s46, s47
s_lshl_b32 s47, s3, 14
s_add_u32 s46, s46, s47
v_and_b32 v6, 15, v4
v_lshlrev_b32 v6, 10, v6
buffer_load_dword v31, v6, s[12:15], s46 offen''')
    lds_spin(a, 12, 1, C_CONV, 4)
    if 'x2' in OPT:
        lds_add(a, 12, 1, C_Y2)
        a('s_waitcnt lgkmcnt(0)')
        stamp_dump(a)
        a('s_endpgm')
    stamp(a, 5)

    def conv_loop(lab, acc, send):
        a(lab + ':')
        for j in range(8):
            t = TB + 4 * (j & 1)
            if 'not' not in OPT or j == 0:
                a('ds_read2_b32 %s, v24 offset0:%d offset1:%d' % (vr(t, 2), 8 * (7 - j), 8 * (7 - j) + 1))
                a('ds_read2_b32 %s, v24 offset0:%d offset1:%d' % (vr(t + 2, 2), 8 * (7 - j) + 2, 8 * (7 - j) + 3))
            a('ds_read_b128 %s, v25 offset:%d' % (vr(UB + 4 * (j & 1), 4), (3072 if j % 2 == 0 else 0) + (3 - (j >> 1)) * 16))
            a('s_waitcnt lgkmcnt(0)')
            a(mfma(acc, UB + 4 * (j & 1), t, acc))
            if 'cs' in OPTV:
                a('s_sleep %s' % OPTV['cs'])
        a('''v_subrev_u32 v24, 256, v24
v_subrev_u32 v25, 64, v25
s_add_u32 s35, s35, 1
s_cmp_lt_u32 s35, %s
s_cbranch_scc1 %s''' % (send, lab))

    if 'noconv' not in OPT:
        conv_loop('L_cl', CA, 's34')
        a('''s_cmp_eq_u32 s53, 0
s_cbranch_scc0 L_cr
v_subrev_u32 v24, 1024, v24
v_add_u32 v25, 256, v25''')
        conv_loop('L_cm', CB, '12')
        a('s_nop 11')
        for j in range(4):
            a('ds_write_b128 v16, %s offset:%d' % (vr(CB + 4 * j, 4), 1024 * j))
        a('s_waitcnt lgkmcnt(0)')
        lds_add(a, 11, 1, C_PAIR)
        a('s_branch L_cd')
        a('L_cr:')
        lds_spin(a, 11, 1, C_PAIR, 3, nap=2)
        for j in range(4):
            a('ds_read_b128 %s, v17 offset:%d' % (vr(CB + 4 * j, 4), 1024 * j))
        a('s_waitcnt lgkmcnt(0)')
        for j in range(16):
            a('v_add_f32 v%d, v%d, v%d' % (CA + j, CA + j, CB + j))
        a('L_cd:')
    stamp(a, 6)
    a('''s_nop 0
s_mul_i32 s46, s52, %d
s_lshl_b32 s47, s53, 11
s_add_u32 s46, s46, s47
s_add_u32 s46, s46, %d
v_lshlrev_b32 v6, 2, v28
v_lshl_add_u32 v6, v29, 8, v6
s_lshl_b32 s47, s53, 9
s_add_u32 s47, s47, s52
s_lshl_b32 s47, s47, 6
s_add_u32 s47, s47, %d
v_mov_b32 v1, s7
v_mov_b32 v2, 0''' % (RS, YT, FL3))
    for k in range(8):
        a('v_cvt_pk_bf16_f32 v%d, v%d, v%d' % (32 + k, CA + 2 * k, CA + 2 * k + 1))
    for k in range(8):
        a('buffer_store_dword v%d, v6, s[8:11], s46 offen offset:%d sc1' % (32 + k, (4 * (k >> 1) + (k & 1)) * 128))
    a('''s_waitcnt vmcnt(0) lgkmcnt(0)
s_mov_b64 exec, 1
buffer_store_dword v1, v2, s[8:11], s47 offen sc1
s_mov_b64 exec, -1''')
    if 'x3' in OPT:
        lds_add(a, 12, 1, C_Y2)
        a('s_waitcnt lgkmcnt(0)')
        stamp_dump(a)
        a('s_endpgm')
    if WOW == 'mid':
        a('''v_lshrrev_b32 v6, 3, v4
v_lshlrev_b32 v6, 10, v6
v_bfe_u32 v7, v4, 4, 1
v_lshlrev_b32 v7, 2, v7
v_and_b32 v8, 7, v4
v_xor_b32 v7, v7, v8
v_lshl_add_u32 v6, v7, 4, v6
s_lshl_b32 s23, s53, 10
s_lshl_b32 s24, s61, 11
s_add_u32 s24, s23, s24
s_lshl_b32 s26, s5, 7
s_lshl_b32 s27, s53, 13
s_add_u32 s26, s26, s27
s_lshl_b32 s27, s61, 14
s_add_u32 s26, s26, s27
s_nop 0''')
        for c in range(8):
            a('s_add_u32 s38, s5, %d' % c)
            a('s_and_b32 s38, s38, 7')
            a('s_lshl_b32 s30, s38, 16')
            a('s_add_u32 m0, s24, %d' % (c * 4096))
            a('s_add_u32 s30, s30, s26')
            if 'nowo' in OPT:
                continue
            a('buffer_load_dwordx4 v6, s[12:15], s30 offen lds')
            a('s_add_u32 m0, s24, %d' % (32768 + c * 4096))
            a('s_add_u32 s30, s30, 0x8000')
            a('buffer_load_dwordx4 v6, s[12:15], s30 offen lds')
            a('s_waitcnt vmcnt(%s)' % OPTV.get('wot', '2'))
    if 'x4' in OPT:
        lds_add(a, 12, 1, C_Y2)
        a('s_waitcnt lgkmcnt(0)')
        stamp_dump(a)
        a('s_endpgm')
    stamp(a, 7)
    a('''v_lshlrev_b32 v6, 6, v4
s_lshr_b32 s46, s4, 4
s_lshl_b32 s46, s46, 15
s_lshl_b32 s47, s5, 12
s_add_u32 s46, s46, s47
s_add_u32 s46, s46, %d
s_cmp_eq_u32 s3, 0
s_cbranch_scc0 L_yw''' % FL3)
    flag_poll_lazy(a, 6, 1, 46, 32)
    lds_add(a, 12, 3, C_GOY)
    a('L_yw:')
    transpose_addrs(a, 3, 20, 21, 22, 8, 9, USI, USO)
    a('''v_mul_u32_u24 v10, %d, v8
v_and_b32 v11, 7, v4
v_lshl_add_u32 v10, v11, 4, v10
v_add_u32 v11, %d, v10
s_mul_i32 s46, s5, %d
s_mul_i32 s47, s3, %d
s_add_u32 s46, s46, s47
s_lshl_b32 s47, s4, 7
s_add_u32 s46, s46, s47
s_add_u32 s46, s46, %d
s_lshl_b32 s47, s3, 11
s_add_u32 s47, s47, %d''' % (RS, 8 * RS - 1024, 64 * RS, 16 * RS, YT, USI))
    lds_spin(a, 12, 3, C_GOY, 1, nap=8)
    a('''s_mov_b32 m0, s47
v_and_b32 v7, 1, v8
v_lshrrev_b32 v8, 1, v8
v_lshl_add_u32 v8, v7, 5, v8
v_lshlrev_b32 v8, 11, v8
buffer_load_dwordx4 v10, s[8:11], s46 offen sc1 lds
buffer_load_dwordx4 v11, s[8:11], s46 offen offset:1024 sc1 lds
v_lshl_add_u32 v8, v9, 4, v8
s_lshl_b32 s46, s4, 17
s_lshl_b32 s47, s3, 14
s_add_u32 s46, s46, s47
s_lshl_b32 s47, s5, 7
s_add_u32 s46, s46, s47
s_add_u32 s47, s46, 0x2000
s_waitcnt vmcnt(0)''')
    lds_add(a, 12, 1, C_Y)
    lds_spin(a, 12, 1, C_Y, 4)
    transpose_a(a, 20, 21, 32, 23)
    a('''ds_read_b128 v[32:35], v22
ds_read_b128 v[36:39], v22 offset:1024
s_waitcnt lgkmcnt(1)
buffer_store_dwordx4 v[32:35], v8, s[16:19], s46 offen nt
s_waitcnt lgkmcnt(0)
buffer_store_dwordx4 v[36:39], v8, s[16:19], s47 offen nt''')
    lds_add(a, 12, 1, C_Y2)
    stamp(a, 8)
    a('s_waitcnt lgkmcnt(0)')
    stamp(a, 12)
    stamp_dump(a)
    a('s_endpgm')

    a('''L_gemm:
s_cmp_ge_u32 s3, 8
s_cbranch_scc1 L_mm
s_setprio 2
s_sub_u32 s61, s3, 4
v_lshrrev_b32 v10, 3, v4
v_lshrrev_b32 v11, 4, v4
v_and_b32 v12, 7, v4
v_xor_b32 v13, v12, v11
s_lshl_b32 s47, s61, 4
v_add_u32 v10, s47, v10
s_lshl_b32 s46, s4, 16
v_lshl_add_u32 v14, v10, 10, s46
v_lshl_add_u32 v6, v13, 4, v14
v_xor_b32 v7, 64, v6
v_add_u32 v7, 0x1c00, v7
v_lshlrev_b32 v16, 10, v10
v_lshl_add_u32 v16, v12, 4, v16
v_mul_u32_u24 v10, 3072, v10
v_and_b32 v11, 1, v11
v_lshlrev_b32 v11, 2, v11
v_xor_b32 v12, v12, v11
v_lshl_add_u32 v8, v12, 4, v10
s_lshl_b32 s46, s5, 7
v_add_u32 v8, s46, v8
v_add_u32 v9, %d, v8
s_lshl_b32 s48, s61, 11
s_waitcnt lgkmcnt(0)''' % (8 * 3072 - 1024))
    srd(a, 16, 32, 2048 * 1024)
    srd(a, 12, 34, 512 * 3072)

    def dma_chunk(c):
        slot = (c % 6) * 16384
        if c < 8:
            a('s_add_u32 s50, s6, %d' % c)
            a('s_and_b32 s50, s50, 7')
            a('s_mul_i32 s49, s50, %d' % (64 * 3072))
            a('s_add_u32 m0, s48, %d' % slot)
            a('s_lshl_b32 s50, s50, 7')
            a('buffer_load_dwordx4 v6, s[16:19], s50 offen lds')
            a('buffer_load_dwordx4 v7, s[16:19], s50 offen offset:1024 lds')
            a('s_add_u32 m0, s48, %d' % (slot + 8192))
            a('s_add_u32 s49, s49, %d' % (SEG[0] * 1024))
            a('buffer_load_dwordx4 v8, s[12:15], s49 offen lds')
            a('buffer_load_dwordx4 v9, s[12:15], s49 offen offset:1024 lds')
        else:
            p, j = 1 + ((c - 8) >> 2), (c - 8) & 3
            for hf in range(2):
                a('s_add_u32 s50, s6, %d' % (2 * j + hf))
                a('s_and_b32 s50, s50, 7')
                a('s_mul_i32 s49, s50, %d' % (64 * 3072))
                a('s_add_u32 m0, s48, %d' % (slot + hf * 8192))
                a('s_add_u32 s49, s49, %d' % (SEG[p] * 1024))
                a('buffer_load_dwordx4 v8, s[12:15], s49 offen lds')
                a('buffer_load_dwordx4 v9, s[12:15], s49 offen offset:1024 lds')

    dma_chunk(0)
    dma_chunk(1)
    a('s_load_dwordx2 s[20:21], s[0:1], 0')
    srd(a, 8, 38, WS_BYTES)
    transpose_addrs(a, 61, 20, 21, 22, 23, 24, USI, USO)
    a('''s_lshl_b32 s46, s45, 16
s_lshl_b32 s47, s44, 7
s_add_u32 s58, s46, s47
s_add_u32 s59, s48, %d
v_add_u32 v17, 0x1c00, v16
v_mov_b32 v12, %d
s_waitcnt lgkmcnt(0)''' % (USI, CNT))
    srd(a, 60, 20, 2048 * 1024)
    order = [0, 1]
    cnt = lambda x: 4 if isinstance(x, int) else x[1]
    stamp(a, 2)
    for c in range(16):
        a('s_waitcnt vmcnt(%d)' % (sum(cnt(x) for x in order[order.index(c) + 1:]) if c < 15 else 0))
        if c in (0, 8, 12):
            stamp(a, {0: 3, 8: 4, 12: 5}[c])
        a('s_barrier')
        if 'bars' in OPT and c <= 12 and c != 1:
            n = 1 + c - (c > 1)
            a('s_memrealtime s[%d:%d]' % (ST0 + 2 * n, ST0 + 2 * n + 1))
        for n in {0: [2, 3], 1: [4, 5]}.get(c, [c + 4] if c + 4 < 16 else []):
            dma_chunk(n)
            order.append(n)
        if c == int(OPTV.get('wpo', 11)) and WOW == 'win':
            a('''s_load_dwordx2 s[32:33], s[0:1], 88
v_and_b32 v26, 15, v4
v_lshlrev_b32 v26, 10, v26
s_and_b32 s46, s4, 7
s_lshl_b32 s46, s46, 16
s_lshl_b32 s47, s5, 7
s_add_u32 s46, s46, s47
s_lshl_b32 s47, s48, 3
s_add_u32 s46, s46, s47
v_add_u32 v26, s46, v26
s_waitcnt lgkmcnt(0)
global_load_dword v27, v26, s[32:33]''')
            order.append(('w', 1))
        if c == 12:
            att_prologue(True)
            order.append(('m', 1))
        if c == 13:
            a('s_mov_b32 m0, s59')
            a('s_nop 0')
            a('buffer_load_dwordx4 v16, s[60:63], s58 offen lds')
            a('buffer_load_dwordx4 v17, s[60:63], s58 offen offset:1024 lds')
            order.append(('u', 2))
        if c == 15:
            transpose_a(a, 20, 21, 32, 25)
    a('''s_load_dwordx2 s[32:33], s[0:1], 88
s_waitcnt lgkmcnt(0)
s_barrier
ds_read_b32 v1, v12 offset:%d
s_waitcnt lgkmcnt(0)
v_readfirstlane_b32 s7, v1''' % C_TAG)
    if WOW == 'win':
        wo_dma()
    a('s_branch L_att')

    XA, WA, OA, OV = 160, 164, 165, 166
    XR, ACC = 0, 128
    WF = [144, 148, 152, 156]
    a('''L_mm:
%s
s_setprio 3
s_and_b32 s52, s3, 1
s_bfe_u32 s53, s3, 0x10001
v_and_b32 v10, 31, v4
v_bfe_u32 v11, v4, 1, 3
v_lshrrev_b32 v12, 5, v4
v_xor_b32 v11, v11, v12
v_lshlrev_b32 v11, 4, v11
v_lshl_add_u32 v10, v10, 7, v11
s_lshl_b32 s46, s52, 12
v_add_u32 v%d, s46, v10''' % ('s_memrealtime s[70:71]' if 'dbgt' in OPT else '', XA))
    for jq in range(1, 4):
        a('v_xor_b32 v%d, %d, v%d' % (XA + jq, jq << 5, XA))
    a('''v_lshlrev_b32 v10, 10, v12
v_bfe_u32 v11, v4, 2, 2
v_lshl_add_u32 v10, v11, 7, v10
v_bfe_u32 v11, v4, 3, 1
v_xor_b32 v11, s53, v11
v_lshl_add_u32 v10, v11, 6, v10
v_bfe_u32 v11, v4, 4, 1
v_lshl_add_u32 v10, v11, 5, v10
v_and_b32 v11, 3, v4
v_lshl_add_u32 v%d, v11, 3, v10''' % WA)
    a('''s_lshl_b32 s46, s4, 1
s_add_u32 s46, s46, s52
s_lshl_b32 s46, s46, 10
s_lshl_b32 s47, s5, 1
s_add_u32 s47, s47, s53
s_lshl_b32 s47, s47, 17
s_add_u32 s46, s46, s47
v_lshl_add_u32 v%d, v4, 4, s46
v_bfe_u32 v11, v4, 4, 1
v_lshlrev_b32 v11, 16, v11
v_lshl_add_u32 v11, v12, 8, v11
v_and_b32 v10, 15, v4
v_lshl_add_u32 v11, v10, 4, v11
v_add_u32 v%d, s46, v11
v_mov_b32 v167, v4
s_mov_b32 s62, 0x%x
s_mov_b32 s64, %d
s_mov_b32 s65, %d
s_mov_b32 s63, %d
s_lshl_b32 s54, s52, 12
s_lshl_b32 s47, s53, 11
s_add_u32 s54, s54, s47
s_add_u32 s54, s54, %d
s_lshl_b32 s56, s5, 6
s_add_u32 s56, s56, %d
s_lshl_b32 s55, s4, 9
s_add_u32 s55, s55, s56
s_waitcnt lgkmcnt(0)''' % (OA, OV, f2u(QSCALE), KF, KF + 65536, VF, QX, FL1))
    srd(a, 8, 38, WS_BYTES)
    if 'nowpf' not in OPT:
        srd(a, 12, 34, 512 * 3072)
        a('''v_mul_u32_u24 v126, 3072, v4
s_and_b32 s46, s4, 7
s_mul_i32 s46, s46, %d
s_lshl_b32 s47, s5, 7
s_add_u32 s46, s46, s47
s_xor_b32 s47, s52, 1
s_lshl_b32 s47, s47, 11
s_add_u32 s57, s46, s47''' % (64 * 3072))

    def wpf(wave):
        l = label('pf')
        a('s_cmp_eq_u32 s3, %d' % wave)
        a('s_cbranch_scc0 %s' % l)
        a('buffer_load_dword v127, v126, s[12:15], s57 offen')
        a(l + ':')

    WPV, WPQ = int(OPTV.get('wpv', -1)), int(OPTV.get('wpq', -1))
    if WPV < 0:
        wpf(8)
    if WPQ < 0:
        wpf(9)
    if 'upf' in OPT:
        a('''s_cmp_eq_u32 s3, 10
s_cbranch_scc0 L_noupf
s_load_dwordx2 s[20:21], s[0:1], 0
v_lshlrev_b32 v126, 10, v4
s_lshl_b32 s46, s45, 16
s_lshl_b32 s47, s44, 7
s_add_u32 s46, s46, s47
v_add_u32 v126, s46, v126
s_waitcnt lgkmcnt(0)
global_load_dword v127, v126, s[20:21]
L_noupf:''')
    PD = 3

    def chunk_of(s):
        p, kk = s >> 5, s & 31
        return (kk >> 2, kk & 3) if p == 0 else (8 + 4 * (p - 1) + (kk >> 3), kk & 7)

    def nreads(s):
        return 0 if s >= 96 else (3 if s < 32 else 2)

    def reads(s):
        c, j = chunk_of(s)
        if j == 0:
            a('s_barrier')
            if c == 0:
                if OPTV.get('enc') == 'b0':
                    a('s_memrealtime s[92:93]')
                stamp(a, 2)
                if 'dbgt' in OPT:
                    a('s_memrealtime s[72:73]')
            if c == WPV:
                wpf(8)
            if c == WPQ:
                wpf(9)
            if c == 6:
                a('s_waitcnt vmcnt(0)')
            if c % 3 == 0 and c > 0:
                op = 'v_add_u32' if c % 6 == 3 else 'v_subrev_u32'
                for r in ([XA, XA + 1, XA + 2, XA + 3] if c < 8 else []) + [WA]:
                    a('%s v%d, 0xc000, v%d' % (op, r, r))
        so = (c % 3) * 16384
        if c < 8:
            a('ds_read_b128 %s, v%d offset:%d' % (vr(XR + 4 * s, 4), XA + j, so))
            so += 8192
        for rd in range(2):
            a('ds_read_b64_tr_b16 %s, v%d offset:%d' % (vr(WF[s % 4] + 2 * rd, 2), WA, so + j * 2048 + rd * 512))

    def epilogue(p):
        lo, hi = vr(ACC, 4), vr(ACC + 4, 4)
        if SEG[p] == 0:
            a('v_mov_b32 v4, v167')
            a('v_lshl_add_u32 v10, v167, 4, s54')
            a('s_nop 13')
            for i in range(16):
                a('v_mul_f32 v%d, s62, v%d' % (ACC + i, ACC + i))
        else:
            a('s_nop 15')
        for j in range(8):
            a('v_cvt_pk_bf16_f32 v%d, v%d, v%d' % (ACC + j, ACC + 2 * j, ACC + 2 * j + 1))
        if SEG[p] == 0:
            a('ds_write_b128 v10, %s' % lo)
            a('ds_write_b128 v10, %s offset:1024' % hi)
        elif SEG[p] == 1:
            a('buffer_store_dwordx4 %s, v%d, s[8:11], s64 offen sc1' % (lo, OA))
            a('buffer_store_dwordx4 %s, v%d, s[8:11], s65 offen sc1' % (hi, OA))
        else:
            a('buffer_store_dwordx4 %s, v%d, s[8:11], s63 offen sc1' % (lo, OV))
            a('buffer_store_dwordx4 %s, v%d, s[8:11], s63 offen offset:512 sc1' % (hi, OV))

    for s in range(PD):
        reads(s)
    for s in range(96):
        p, kk = s >> 5, s & 31
        if s + PD < 96:
            reads(s + PD)
        a('s_waitcnt lgkmcnt(%d)' % sum(nreads(t) for t in range(s + 1, s + PD + 1)))
        x, w = XR + 4 * kk, WF[s % 4]
        if SEG[p] == 2:
            a(mfma(ACC, x, w, None if kk == 0 else ACC))
        else:
            a(mfma(ACC, w, x, None if kk == 0 else ACC))
        if s == 80:
            a('v_mov_b32 v12, %d' % CNT)
            a('ds_read_b32 v1, v12 offset:%d' % C_TAG)
            a('s_waitcnt vmcnt(0) lgkmcnt(0)')
            a('v_readfirstlane_b32 s7, v1')
            arrive_publish(a, 12, 1, C_KV, 4, 55, 2)
            if 'rt' in OPT:
                stamp(a, 2)
        if kk == 31:
            if OPTV.get('enc') == 'v' and p == 1:
                a('s_memrealtime s[92:93]')
            stamp(a, 3 + p)
            epilogue(p)
    a('s_waitcnt lgkmcnt(0)')
    a('s_barrier')
    a('''s_cmp_eq_u32 s3, 8
s_cbranch_scc0 L_apro
v_and_b32 v6, 31, v4
v_lshlrev_b32 v6, 9, v6''')
    if 'p2' not in OPT:
        flag_poll_lazy(a, 6, 1, 56, 1)
    else:
        flag_poll(a, 6, 1, 2, 56)
    lds_add(a, 12, 3, C_GO)

    a('L_apro:')
    att_prologue(False)
    a('''L_att:
v_xor_b32 v6, 0x1000, v13
ds_read_b128 %s, v13
ds_read_b128 %s, v6''' % (vr(Q[1], 4), vr(Q[0], 4)))

    def rdk(i):
        return ['buffer_load_dwordx4 %s, v%d, s[8:11], s36 offen sc1' % (vr(K[i % NB], 4), KA),
                's_add_u32 s36, s36, 2048'] + ['s_and_b32 s36, s36, 0xffff'] * OWN

    def rdv(i):
        return ['s_mov_b64 exec, s[40:41]',
                'buffer_load_dwordx4 %s, v%d, s[8:11], s37 offen sc1' % (vr(V[i % NBV][0], 4), VA),
                'buffer_load_dwordx4 %s, v%d, s[8:11], s37 offen offset:512 sc1' % (vr(V[i % NBV][1], 4), VA),
                's_mov_b64 exec, -1', 's_add_u32 s37, s37, 2048'] + ['s_and_b32 s37, s37, 0xffff'] * OWN

    PF = False
    pfl = []
    issue = []
    if OWN:
        lds_spin(a, 12, 3, C_KV, 4)
        a('\n'.join(rdk(0) + rdv(0)))
        issue += [('k', 0), ('v', 0), ('v', 0)]
    stamp(a, 6)
    lds_spin(a, 12, 3, C_GO, 1)
    stamp(a, 7)
    pro = []
    if not OWN:
        pro = rdk(0)
        issue += [('k', 0)]
    for i in range(1, DK):
        pro += rdk(i)
        issue += [('k', i)]
        if i > 1 or not OWN:
            pro += rdv(i - 1)
            issue += [('v', i - 1), ('v', i - 1)]
    a('\n'.join(pro))
    a('s_setprio 3')
    a('s_waitcnt vmcnt(%d)' % (len(issue) - 1))
    if OPTV.get('enc') == 'go':
        a('s_memrealtime s[92:93]')
    if 'pubq0' in OPT:
        arrive_publish(a, 12, 3, C_Q, 8, 55, 2)
        issue.append(('f',))
    stamp(a, 8)
    if 'dbgt' in OPT:
        a('s_memrealtime s[74:75]')
    a(mfma(S[0], K[0], Q[0], None))
    a('s_nop 7')
    a('s_nop 3')
    pp_ = [int(x) for x in OPTV.get('pr', '7,15,23').split(',')]
    PRIO = {pp_[0]: 2, pp_[1]: 1, pp_[2]: 0}

    def unit(i, q):
        u = 2 * i + q
        sc, sn = S[u % 2], S[(u + 1) % 2]
        pc, pp = Pp[u % 2], Pp[(u + 1) % 2]
        i1, q1 = (i, 1) if q == 0 else (i + 1, 0)
        i0, q0 = (i - 1, 1) if q == 0 else (i, 0)
        qk = mfma(sn, K[i1 % NB], Q[q1], None)
        pv0 = mfma(O[q0], V[i0 % NBV][0], pp, O[q0])
        pv1 = mfma(O[q0], V[i0 % NBV][1], pp + 4, O[q0])
        if 'swp' in OPT:
            pv0 = mfma(O[q0], pp, V[i0 % NBV][0], O[q0])
            pv1 = mfma(O[q0], pp + 4, V[i0 % NBV][1], O[q0])
        e = ['v_exp_f32 v%d, v%d' % (sc + j, sc + j) for j in range(16)]
        c = ['v_cvt_pk_bf16_f32 v%d, v%d, v%d' % (pc + j, sc + 2 * j, sc + 2 * j + 1) for j in range(8)]
        c7prev = 'v_cvt_pk_bf16_f32 v%d, v%d, v%d' % (pp + 7, sn + 14, sn + 15)
        out = [e[0]]
        late_qk = OWN and u == 1
        if late_qk:
            last = max(n for n, x in enumerate(issue) if x == ('v', 0))
            out.append('s_waitcnt vmcnt(%d)' % sum(x != ('f',) for x in issue[last + 1:]))
        elif q == 1:
            last = max(n for n, x in enumerate(issue) if x in (('k', i + 1), ('v', i)))
            out.append('s_waitcnt vmcnt(%d)' % sum(x != ('f',) for x in issue[last + 1:]))
        if u > 0:
            out.append(c7prev)
        if u < 63 and not late_qk:
            out.append(qk)
        kl = rdk(i + DK) if q == 0 and i + DK < 32 else []
        vl = rdv(i + DK - 1) if q == 1 and i + DK - 1 < 32 else []
        issue.extend([('k', i + DK)] * bool(kl) + [('v', i + DK - 1)] * 2 * bool(vl))
        out += kl[:1] + vl[:4]
        out += [e[1], e[2], c[0], e[3], e[4], c[1], e[5]]
        if u > 0:
            out.append(pv0)
        out += kl[1:2] + vl[4:5]
        out += [e[6], c[2], e[7], e[8], c[3], e[9], e[10], c[4]]
        if u > 0:
            out.append(pv1)
        out += kl[2:] + vl[5:]
        if q == 0 and i in (1, 8, 16) and PF:
            out += pfl
            issue.append(('p',))
        if q == 1 and i in PRIO:
            out.append('s_setprio %d' % PRIO[i])
            if DIAG and 'qs' in OPT:
                n = 3 + i // 8
                out.append('s_memtime s[%d:%d]' % (ST0 + 2 * n, ST0 + 2 * n + 1))
        out += [e[11], e[12], c[5], e[13], e[14], c[6], e[15]]
        if late_qk:
            last = issue.index(('k', 1))
            out += ['s_waitcnt vmcnt(%d)' % sum(x != ('f',) for x in issue[last + 1:]), qk, 's_nop 11']
        return out

    for i in range(32):
        for q in range(2):
            if (i, q) == (31, 0):
                a('''s_and_b32 s26, s3, 3
s_xor_b32 s27, s26, 2
s_mul_i32 s26, s26, 2304
s_add_u32 s26, s26, {ox}
s_mul_i32 s27, s27, 2304
s_add_u32 s27, s27, {ox}
v_add_u32 v6, s26, v5
v_add_u32 v7, s27, v5
v_lshlrev_b32 v8, 2, v4
v_add_u32 v9, s27, v8
v_add_u32 v8, s26, v8
s_sub_u32 s26, s3, 4
s_lshl_b32 s26, s26, 2
v_add_u32 v10, s26, v12
s_xor_b32 s26, s26, 8
v_add_u32 v11, s26, v12
s_cmp_eq_u32 s19, 0
s_cbranch_scc0 L_xa'''.format(ox=OX))
                lds_spin(a, 12, 3, C_Q, 8)
                a('s_branch L_xb')
                a('L_xa:')
                lds_spin(a, 12, 3, C_O, 4)
                a('''L_xb:
s_mov_b32 s44, 0x%x
s_mov_b32 s45, 0x%x
s_mov_b32 s46, 0x7f7fffff
s_lshl_b32 s26, s19, 2
v_add_u32 v13, s26, v12
v_mov_b32 v3, 1
buffer_load_dword v1, v163, s[8:11], s52 offen sc1''' % (f2u(2.0 ** -64), f2u(2.0 ** 64)))
                issue.append(('m',))
            if (i, q) == (2, 0) and 'pubq0' not in OPT:
                arrive_publish(a, 12, 3, C_Q, 8, 55, 2)
                issue.append(('f',))
            for s in unit(i, q):
                a(s)
    a('s_nop 0')
    a('v_cvt_pk_bf16_f32 v%d, v%d, v%d' % (Pp[1] + 7, S[1] + 14, S[1] + 15))
    if OPTV.get('enc') == 'loop':
        a('s_memrealtime s[92:93]')
    stamp(a, 9)
    if 'dbgt' in OPT:
        a('s_memrealtime s[76:77]')
    a('s_setprio 3')
    a('s_nop 0')
    a(mfma(O[1], V[31 % NBV][0], Pp[1], O[1]))
    a(mfma(O[1], V[31 % NBV][1], Pp[1] + 4, O[1]))
    F = O[1]
    a('''ds_write_b128 v6, %s
ds_write_b128 v6, %s offset:1024
ds_write_b32 v8, v%d offset:2048
ds_write_b32 v10, v3 offset:%d''' % (vr(O[0], 4), vr(O[0] + 4, 4), O[0] + 8, C_X))
    a('''s_mov_b32 s66, 0
L_xw:
ds_read_b32 v2, v11 offset:%d
ds_read_b128 v[48:51], v7
ds_read_b128 v[52:55], v7 offset:1024
ds_read_b32 v56, v9 offset:2048
s_add_u32 s66, s66, 1
s_waitcnt lgkmcnt(0)
v_readfirstlane_b32 s67, v2
s_cmp_ge_u32 s66, %d
s_cbranch_scc1 L_xe
s_cmp_eq_u32 s67, 0
s_cbranch_scc1 L_xw
L_xe:''' % (C_X, SPIN_MAX * 16))
    stamp(a, 10)
    for j in range(9):
        a('v_add_f32 v%d, v%d, v%d' % (F + j, F + j, 48 + j))
    a('''v_rcp_f32 v48, v{8}
v_add_f32 v50, abs(v{0}), abs(v{1})
v_add_f32 v51, abs(v{2}), abs(v{3})
v_add_f32 v52, abs(v{4}), abs(v{5})
v_add_f32 v53, abs(v{6}), abs(v{7})
v_cmp_le_f32 s[28:29], s44, v{8}
v_add_f32 v50, v50, v51
v_add_f32 v52, v52, v53
v_cmp_ge_f32 s[30:31], s45, v{8}
v_add_f32 v50, v50, v52
v_cmp_ge_f32 s[32:33], s46, v50
s_and_b64 s[28:29], s[28:29], s[30:31]
s_nop 0
s_and_b64 s[28:29], s[28:29], s[32:33]
s_cmp_eq_u64 s[28:29], -1
s_cbranch_scc0 {9}
L_fin:'''.format(*(list(range(F, F + 9)) + ['L_fin' if 'swp' in OPT else 'L_slow'])))
    for j in range(8):
        a('v_mul_f32 v%d, v%d, v48' % (F + j, F + j))
    for j in range(4):
        a('v_cvt_pk_bf16_f32 v%d, v%d, v%d' % (52 + j, F + 2 * j, F + 2 * j + 1))
    a('buffer_store_dwordx4 v[52:55], v5, s[8:11], s54 offen sc1')
    lds_add(a, 13, 3, C_O)
    stamp(a, 11)
    a('s_cmp_ge_u32 s3, 8')
    a('s_cbranch_scc1 L_bend')
    a('s_load_dwordx4 s[32:35], s[0:1], 88')
    a('s_waitcnt lgkmcnt(0)')
    srd(a, 16, 34, 2048 * 2048)
    AC = [20, 36]
    OFR, WR = 56, 88

    def wo_frags(g):
        for cc in range(4):
            for n in range(2):
                for nt in range(2):
                    for rd in range(2):
                        a('ds_read_b64_tr_b16 %s, v%d offset:%d' % (vr(WR + 16 * cc + 8 * n + 4 * nt + 2 * rd, 2), (160, 161)[nt],
                                                                    g * 32768 + cc * 4096 + n * 2048 + rd * 1024))

    def o_loads(cc):
        a('''s_add_u32 s38, s51, %d
s_and_b32 s38, s38, 7
s_lshl_b32 s30, s38, 12
s_add_u32 s30, s30, s53
buffer_load_dwordx4 %s, v5, s[8:11], s30 offen sc1
buffer_load_dwordx4 %s, v5, s[8:11], s30 offen offset:1024 sc1''' % (cc, vr(OFR + 8 * cc, 4), vr(OFR + 8 * cc + 4, 4)))

    def o_mfma(cc, first):
        for n in range(2):
            for nt in range(2):
                a(mfma(AC[nt], WR + 16 * cc + 8 * n + 4 * nt, OFR + 8 * cc + 4 * n, None if first and n == 0 else AC[nt]))

    def poll_half(g, nap):
        lp, le = label('hp'), label('he')
        a('s_mov_b32 s23, 0')
        a('s_mov_b32 s66, 0')
        a(lp + ':')
        for cc in range(4):
            e = label('ls')
            a('s_bitcmp1_b32 s23, %d' % cc)
            a('s_cbranch_scc1 %s' % e)
            o_loads(cc)
            a(e + ':')
        a('s_add_u32 s66, s66, 1')
        a('s_waitcnt vmcnt(0) lgkmcnt(0)')
        for cc in range(4):
            e, gl = label('lc'), label('lg')
            b = OFR + 8 * cc
            a('''s_bitcmp1_b32 s23, {cc}
s_cbranch_scc1 {e}
v_max3_u32 v1, v{0}, v{1}, v{2}
v_max3_u32 v2, v{3}, v{4}, v{5}
v_max3_u32 v1, v1, v{6}, v{7}
v_max_u32 v1, v1, v2
v_cmp_eq_u32 vcc, -1, v1
s_cmp_ge_u32 s66, {n}
s_cbranch_scc1 {g}
s_cbranch_vccnz {e}
{g}:
s_bitset1_b32 s23, {cc}'''.format(*range(b, b + 8), cc=cc, e=e, g=gl, n=SPIN_MAX))
            o_mfma(cc, False)
            a(e + ':')
        a('''s_cmp_eq_u32 s23, 15
s_cbranch_scc1 %s
s_sleep %s
s_branch %s
%s:''' % (le, nap, lp, le))

    if WOW == 'end':
        wo_dma()
    for j in range(32):
        a('v_mov_b32 v%d, 0' % (AC[0] + j))
    a('s_lshl_b32 s26, s49, 2')
    a('v_add_u32 v8, s26, v12')
    a('s_waitcnt vmcnt(%d)' % (WOW != 'end'))
    a('''v_cmp_eq_u32 vcc, s7, v1
s_nop 1
s_cmp_eq_u64 vcc, -1
s_cbranch_scc1 L_mok''')
    flag_poll_lazy(a, 163, 1, 52, 8)
    a('L_mok:')
    if WOW == 'mid':
        lds_spin(a, 12, 3, C_Y2, 4, nap=8)
    else:
        lds_add(a, 8, 3, C_W)
        lds_spin(a, 8, 3, C_W, 2)
    wo_frags(0)
    a('s_sleep %s' % OPTV.get('ein', '28' if WOW != 'end' else '16'))
    poll_half(0, OPTV.get('esl', '8'))
    wo_frags(1)
    a('s_add_u32 s53, s53, 2048')
    lds_spin(a, 12, 3, C_Y2, 4, nap=2)
    stamp(a, 10)
    lds_spin(a, 12, 3, C_O1, 4, nap=2)
    if 'lin' in OPTV:
        a('s_sleep %s' % OPTV['lin'])
    poll_half(1, OPTV.get('lsl', '6'))
    stamp(a, 12)
    a('''v_mov_b32 v3, 1
s_cmp_eq_u32 s49, 0
s_nop 12
s_cbranch_scc0 L_r1''')
    for own in range(2):
        if own:
            a('L_r1:')
        for j in range(4):
            a('ds_write_b128 v164, %s offset:%d' % (vr(AC[1 - own] + 4 * j, 4), 1024 * j))
        a('ds_write_b32 v166, v3 offset:%d' % C_P3)
        if not own:
            a('s_branch L_r2')
    a('''L_r2:
s_mov_b32 s66, 0
L_rw:
ds_read_b32 v3, v167 offset:%d''' % C_P3)
    for j in range(4):
        a('ds_read_b128 %s, v165 offset:%d' % (vr(64 + 4 * j, 4), 1024 * j))
    a('''s_add_u32 s66, s66, 1
s_waitcnt lgkmcnt(0)
v_readfirstlane_b32 s67, v3
s_cmp_ge_u32 s66, %d
s_cbranch_scc1 L_re
s_cmp_eq_u32 s67, 0
s_cbranch_scc1 L_rw
L_re:''' % (SPIN_MAX * 16))
    a('s_cmp_eq_u32 s49, 0')
    a('s_cbranch_scc0 L_r3')
    for own in range(2):
        if own:
            a('L_r3:')
        for j in range(16):
            a('v_add_f32 v%d, v%d, v%d' % (64 + j, AC[own] + j, 64 + j))
        if not own:
            a('s_branch L_r4')
    a('L_r4:')
    for j in range(8):
        a('v_cvt_pk_bf16_f32 v%d, v%d, v%d' % (80 + j, 64 + 2 * j, 65 + 2 * j))
    st3 = OPTV.get('st3', '').replace('+', ' ')
    a('buffer_store_dwordx4 v[80:83], v162, s[16:19], s50 offen' + st3)
    a('buffer_store_dwordx4 v[84:87], v162, s[16:19], s50 offen offset:16' + st3)
    if 'dbgt' in OPT:
        a('s_waitcnt vmcnt(0)')
        a('s_memrealtime s[78:79]')
        a('s_load_dwordx2 s[36:37], s[0:1], 104')
        a('s_waitcnt lgkmcnt(0)')
        srd(a, 12, 36, 256)
        a('v_mov_b32 v2, 0')
        a('s_mov_b64 exec, 1')
        for i in range(5):
            a('s_sub_u32 s66, s%d, s7' % (70 + 2 * i))
            a('s_add_u32 s66, s66, 1000')
            a('v_mov_b32 v1, s66')
            a('buffer_atomic_umax v1, v2, s[12:15], 0 offen offset:%d sc1' % (4 + 4 * i))
            a('s_sub_u32 s66, 100000, s66')
            a('v_mov_b32 v3, s66')
            a('buffer_atomic_umax v3, v2, s[12:15], 0 offen offset:%d sc1' % (36 + 4 * i))
        a('s_mov_b64 exec, -1')
        a('s_waitcnt vmcnt(0)')
    a('L_bend:')
    if 'enc' in OPTV:
        e = OPTV['enc']
        if e != 'skew':
            a('s_cmp_eq_u32 s2, %s' % OPTV.get('ewg', '0'))
            a('s_cbranch_scc0 L_encd')
        a('s_cmp_eq_u32 s3, 8')
        a('s_cbranch_scc0 L_encd')
        a('s_waitcnt lgkmcnt(0)')
        a('s_sub_u32 s94, s92, s90' if e not in ('f', 'skew') else 's_mov_b32 s94, 0')
        a('s_add_u32 s94, s94, 6000')
        a('''L_encw:
s_memrealtime s[96:97]
s_waitcnt lgkmcnt(0)
s_sub_u32 s96, s96, s90
s_cmp_lt_u32 s96, s94
s_cbranch_scc1 L_encw
L_encd:''')
    stamp_dump(a)
    a('s_endpgm')

    for t in ('',):
        OS, SS, M, PS, KS, MX = 80, 16, 64, 48, 104, 58
        a('''L_slow%s:
v_mov_b32 v%d, 0xff800000
s_mov_b32 s42, 0
L_s1%s:
buffer_load_dwordx4 %s, v%d, s[8:11], s42 offen sc1
s_waitcnt vmcnt(0)
%s
s_nop 15''' % (t, MX, t, vr(KS, 4), KA, mfma(SS, KS, Q[1], None)))
        for j in range(8):
            a('v_max3_f32 v%d, v%d, v%d, v%d' % (MX, MX, SS + 2 * j, SS + 2 * j + 1))
        a('''s_add_u32 s42, s42, 1024
s_cmp_lt_u32 s42, 0x10000
s_cbranch_scc1 L_s1%s
v_mov_b32 v%d, v%d
s_nop 1
v_permlane32_swap_b32 v%d, v%d
s_nop 1
v_max_f32 v%d, v%d, v%d''' % (t, MX + 1, MX, MX, MX + 1, MX, MX, MX + 1))
        for j in range(16):
            a('v_sub_f32 v%d, 0, v%d' % (M + j, MX))
            a('v_mov_b32 v%d, 0' % (OS + j))
        a('''s_mov_b32 s42, 0
L_s2%s:
buffer_load_dwordx4 %s, v%d, s[8:11], s42 offen sc1
s_mov_b64 exec, s[40:41]
buffer_load_dwordx4 %s, v%d, s[8:11], s42 offen sc1
buffer_load_dwordx4 %s, v%d, s[8:11], s42 offen offset:512 sc1
s_mov_b64 exec, -1
s_waitcnt vmcnt(0)
%s
s_nop 15''' % (t, vr(KS, 4), KA, vr(V[0][0], 4), VA, vr(V[0][1], 4), VA, mfma(SS, KS, Q[1], M)))
        for j in range(16):
            a('v_exp_f32 v%d, v%d' % (SS + j, SS + j))
        a('s_nop 0')
        for j in range(8):
            a('v_cvt_pk_bf16_f32 v%d, v%d, v%d' % (PS + j, SS + 2 * j, SS + 2 * j + 1))
        a('s_nop 1')
        a(mfma(OS, V[0][0], PS, OS))
        a(mfma(OS, V[0][1], PS + 4, OS))
        a('''s_add_u32 s42, s42, 1024
s_cmp_lt_u32 s42, 0x10000
s_cbranch_scc1 L_s2%s
s_nop 15''' % t)
        a('''v_rcp_f32 v48, v88
s_nop 0
s_branch L_fin''')
    a('''L_end:
s_endpgm''')
    return a.text()


def main(path):
    KN = NAME + '_kernel'
    t = kernel()
    hdr = '''; fused kernel: projections + S4 kernel generation | attention + causal convolution | output projection
; @launch grid=(256,1,1) block=(768,1,1) lds=%d
.amdgcn_target "amdgcn-amd-amdhsa--gfx950"
.text
.globl %s
''' % (LDS_BYTES, KN)
    pad = '.p2align 8\n.fill 4096, 4, 0xbf800000\n'
    kd = '''.section .rodata,"a"
.p2align 6
.amdhsa_kernel %s
  .amdhsa_next_free_vgpr 168
  .amdhsa_next_free_sgpr 102
  .amdhsa_accum_offset 168
  .amdhsa_group_segment_fixed_size 0
  .amdhsa_kernarg_size 120
  .amdhsa_user_sgpr_count 2
  .amdhsa_user_sgpr_kernarg_segment_ptr 1
  .amdhsa_system_sgpr_workgroup_id_x 1
.end_amdhsa_kernel
''' % KN
    open(path, 'w').write(hdr + t + pad + kd)


if __name__ == '__main__':
    for arg in sys.argv[1:]:
        OPT.add(arg)
        if '=' in arg:
            OPTV[arg.split('=')[0]] = arg.split('=')[1]
    DIAG = 'diag' in OPT
    main(sys.argv[1] if len(sys.argv) > 1 else 'cdna_kernels/%s.s' % NAME)
```

```python
import sys
import struct

NAME = 'concat_heads__ssm_conv_s4__softmax_full_mha__prompt'

KF = 0x200000
VF = 0x400000
OF = 0x600000
RS = 4224
UT = 0x800000
YT = 0x1400000
FL1 = 0xC00000
FLU = 0xC04000
FL2 = 0xC08000
FL3 = 0xC10000
WS_BYTES = 0x2000000

GEN = 6 * 16384
LDS_BYTES = GEN + 65536
QX = 65536
USI = 74752
USO = 82944
OX = 65536
YI = 73728
CNT = 94208
C_TAG, C_KV, C_GO, C_PAIR, C_CONV, C_O, C_Y, C_GOU, C_GOY, C_Y2, C_X = 0, 4, 8, 80, 24, 16, 32, 36, 40, 44, 48
C_U, C_P3, C_O1, C_Q, C_W = 12, 96, 20, 116, 120
KCOPY = 4096
UIMG = 9216

LOG2E = 1.4426950408889634
QSCALE = 0.25 * LOG2E
OPT = set()
OPTV = {}
DIAG = False
DIAG_BASE = 0xF00000
ST0 = 70
SPIN_MAX = 1 << 19
ROWS = {0: [0, 1, 2, 3, 4, 5, 6, 7, 8, 1024, 1032, 1280, 1288, 1536, 1544, None],
        1: [256, 258, 260, 262, 264, 512, 516, 520, 768, 772, 776, 1792, 1800, None, None, None]}


def f2u(x):
    return struct.unpack('<I', struct.pack('<f', x))[0]


class A:
    def __init__(self):
        self.L = []

    def __call__(self, s):
        for line in s.split('\n'):
            line = line.strip()
            if not line:
                continue
            if line.endswith(':') or line.startswith('.'):
                self.L.append(line)
            else:
                self.L.append('    ' + line)

    def text(self):
        return '\n'.join(self.L) + '\n'


def vr(a, n=1):
    return 'v%d' % a if n == 1 else 'v[%d:%d]' % (a, a + n - 1)


def sr(a, n=1):
    return 's%d' % a if n == 1 else 's[%d:%d]' % (a, a + n - 1)


def srd(a, dst, base, nbytes):
    a('s_mov_b32 s%d, s%d' % (dst, base))
    a('s_mov_b32 s%d, s%d' % (dst + 1, base + 1))
    a('s_mov_b32 s%d, 0x%x' % (dst + 2, nbytes))
    a('s_mov_b32 s%d, 0x00020000' % (dst + 3))


def mfma(d, x, y, c):
    cs = '0' if c is None else vr(c, 16)
    return 'v_mfma_f32_32x32x16_bf16 %s, %s, %s, %s' % (vr(d, 16), vr(x, 4), vr(y, 4), cs)


def cmul_many(a, items):
    for d, x, y in items:
        a('v_mul_f32 v%d, v%d, v%d' % (d, x, y))
        a('v_mul_f32 v%d, v%d, v%d' % (d + 1, x + 1, y))
    for d, x, y in items:
        a('v_fma_f32 v%d, -v%d, v%d, v%d' % (d, x + 1, y + 1, d))
        a('v_fmac_f32 v%d, v%d, v%d' % (d + 1, x, y + 1))


def stamp(a, i, real=False):
    if DIAG and ('se' not in OPT or i in (0, 13) or str(i) in OPTV.get('only', '').split(',')):
        a('%s s[%d:%d]' % ('s_memrealtime' if real or 'rt' in OPT else 's_memtime', ST0 + 2 * i, ST0 + 2 * i + 1))


def stamp_dump(a, n=14):
    if DIAG:
        a('s_waitcnt vmcnt(0)')
        stamp(a, 13, True)
        a('s_waitcnt lgkmcnt(0)')
        a('s_lshl_b32 s68, s2, 4')
        a('s_add_u32 s68, s68, s3')
        a('s_lshl_b32 s68, s68, 6')
        a('s_add_u32 s68, s68, %d' % DIAG_BASE)
        a('v_mov_b32 v1, 0')
        a('s_mov_b64 exec, 1')
        for i in range(n):
            a('v_mov_b32 v2, s%d' % (ST0 + 2 * i))
            a('buffer_store_dword v2, v1, s[8:11], s68 offen offset:%d' % (4 * i))
        a('s_mov_b64 exec, -1')


def jitter(a, k):
    if 'jit' in OPTV:
        l = label('jt')
        a('''s_mul_i32 s69, s2, %d
s_add_u32 s69, s69, s3
s_mul_i32 s69, s69, %d
s_lshr_b32 s69, s69, 7
s_and_b32 s69, s69, 3
s_cmp_lg_u32 s69, 0
s_cbranch_scc1 %s
s_sleep %s
%s:''' % (13 + 2 * k, 0x9e37 + 64 * k + int(OPTV.get('js', 0)), l, OPTV['jit'], l))


_lab = [0]


def label(p):
    _lab[0] += 1
    return 'L_%s%d' % (p, _lab[0])


def lds_spin(a, va, vt, off, thr, st=66, nap=1):
    l, e = label('sp'), label('se')
    a('''s_mov_b32 s%d, 0
%s:
ds_read_b32 v%d, v%d offset:%d
s_add_u32 s%d, s%d, 1
s_waitcnt lgkmcnt(0)
v_readfirstlane_b32 s%d, v%d
s_cmp_ge_u32 s%d, %d
s_cbranch_scc1 %s
s_cmp_ge_u32 s%d, %d
s_cbranch_scc1 %s
s_sleep %d
s_branch %s
%s:''' % (st, l, vt, va, off, st, st, st + 1, vt, st, SPIN_MAX, e, st + 1, thr, e, nap, l, e))


def lds_add(a, va, vt, off):
    a('''v_mov_b32 v%d, 1
s_mov_b64 exec, 1
ds_add_u32 v%d, v%d offset:%d
s_mov_b64 exec, -1''' % (vt, va, vt, off))


def arrive_publish(a, va, vt, off, nwaves, sflag, vz):
    e = label('np')
    a('''v_mov_b32 v%d, 1
s_mov_b64 exec, 1
ds_add_rtn_u32 v%d, v%d, v%d offset:%d
v_mov_b32 v%d, 0
s_waitcnt lgkmcnt(0)
v_readfirstlane_b32 s66, v%d
v_mov_b32 v%d, s7
s_cmp_eq_u32 s66, %d
s_cbranch_scc0 %s
buffer_store_dword v%d, v%d, s[8:11], s%d offen sc1
%s:
s_mov_b64 exec, -1''' % (vt, vt, va, vt, off, vz, vt, vt, nwaves - 1, e, vt, vz, sflag, e))


def flag_poll(a, voff, vt, vt2, sbase):
    l, e = label('fp'), label('fe')
    ld = 'buffer_load_dword v%d, v%d, s[8:11], s%d offen sc1'
    a('''s_mov_b32 s66, 0
%s
s_sleep 4
%s:
%s
s_waitcnt vmcnt(1)
v_cmp_eq_u32 vcc, s7, v%d
s_add_u32 s66, s66, 1
s_cmp_eq_u64 vcc, -1
s_cbranch_scc1 %s
s_sleep 2
%s
s_waitcnt vmcnt(1)
v_cmp_eq_u32 vcc, s7, v%d
s_cmp_ge_u32 s66, %d
s_cbranch_scc1 %s
s_cmp_eq_u64 vcc, -1
s_cbranch_scc0 %s
%s:''' % (ld % (vt, voff, sbase), l, ld % (vt2, voff, sbase), vt, e, ld % (vt, voff, sbase), vt2, SPIN_MAX, e, l, e))


def flag_poll_lazy(a, voff, vt, sbase, nap):
    l, e = label('fp'), label('fe')
    a('''s_mov_b32 s66, 0
%s:
buffer_load_dword v%d, v%d, s[8:11], s%d offen sc1
s_add_u32 s66, s66, 1
s_waitcnt vmcnt(0)
v_cmp_eq_u32 vcc, s7, v%d
s_cmp_ge_u32 s66, %d
s_cbranch_scc1 %s
s_cmp_eq_u64 vcc, -1
s_cbranch_scc1 %s
s_sleep %d
s_branch %s
%s:''' % (l, vt, voff, sbase, vt, SPIN_MAX, e, e, nap, l, e))


def tag_check(a, vt, vz, srd0):
    l, e = label('tp'), label('te')
    a('''s_mov_b32 s66, 0
%s:
v_readfirstlane_b32 s7, v%d
s_add_u32 s66, s66, 1
s_cmp_lg_u32 s7, 0
s_cbranch_scc1 %s
s_cmp_ge_u32 s66, %d
s_cbranch_scc1 %s
buffer_load_dword v%d, v%d, s[%d:%d], 0 offen sc1
s_waitcnt vmcnt(0)
s_branch %s
%s:''' % (l, vt, e, SPIN_MAX, e, vt, vz, srd0, srd0 + 3, l, e))


def kgen_stream():
    a = A()
    P = 20
    for i in range(8):
        a('v_lshlrev_b32 %s, 16, %s' % (vr(P + i), vr(P + i)))
    Are, Aim, Bre, Bim, Cre, Cim, LDT, DSK = range(P, P + 8)
    a('v_mul_f32 v%d, s51, v%d' % (LDT, LDT))
    a('v_exp_f32 v%d, v%d' % (LDT, LDT))
    a('s_nop 0')
    a('v_cvt_pk_bf16_f32 v%d, v%d, v%d' % (LDT, LDT, LDT))
    a('v_lshlrev_b32 v%d, 16, v%d' % (LDT, LDT))
    a('v_mul_f32 v%d, v%d, v%d' % (Are, LDT, Are))
    a('v_mul_f32 v%d, v%d, v%d' % (Aim, LDT, Aim))
    a('v_mul_f32 v%d, v%d, v%d' % (Bre, LDT, Bre))
    a('v_mul_f32 v%d, v%d, v%d' % (Bim, LDT, Bim))
    a('v_mul_f32 v%d, s51, v%d' % (Are, Are))
    a('v_mul_f32 v%d, 0.15915494, v%d' % (Aim, Aim))
    G = [32 + 2 * i for i in range(32)]
    W = [96 + 2 * i for i in range(9)]
    Z1, Z2, Z4, Z32 = 114, 116, 118, 120
    ZB = {256: 122, 512: 124, 768: 126, 1024: 128, 1280: 130, 1536: 132, 1792: 134}
    T0, PK, AD = 136, 146, 154
    R = {}
    nxt = 32
    for h in (0, 1):
        for e in ROWS[h]:
            if e is None:
                continue
            if e <= 8:
                R[e] = W[e]
            else:
                R[e] = nxt
                nxt += 2
    cmul_many(a, [(W[0], Cre, Bre)])
    direct = [(Z1, 1.0), (G[1], 8.0), (Z32, 32.0), (ZB[256], 256.0), (ZB[1024], 1024.0)]
    for i, (z, e) in enumerate(direct):
        a('v_mul_f32 v%d, 0x%x, v%d' % (T0 + 2 * i, f2u(e), Are))
        a('v_mul_f32 v%d, 0x%x, v%d' % (T0 + 2 * i + 1, f2u(e), Aim))
    for i, (z, e) in enumerate(direct):
        a('v_exp_f32 v%d, v%d' % (T0 + 2 * i, T0 + 2 * i))
        a('v_fract_f32 v%d, v%d' % (T0 + 2 * i + 1, T0 + 2 * i + 1))
    for i, (z, e) in enumerate(direct):
        a('v_cos_f32 v%d, v%d' % (z, T0 + 2 * i + 1))
        a('v_sin_f32 v%d, v%d' % (z + 1, T0 + 2 * i + 1))
    a('v_mov_b32 v%d, 1.0' % G[0])
    a('v_mov_b32 v%d, 0' % (G[0] + 1))
    for i, (z, e) in enumerate(direct):
        a('v_mul_f32 v%d, v%d, v%d' % (z, z, T0 + 2 * i))
        a('v_mul_f32 v%d, v%d, v%d' % (z + 1, z + 1, T0 + 2 * i))
    cmul_many(a, [(G[2], G[1], G[1]), (Z2, Z1, Z1), (W[1], W[0], Z1), (W[8], W[0], G[1]), (ZB[512], ZB[256], ZB[256]),
                  (ZB[1280], ZB[1024], ZB[256]), (G[5], G[1], Z32)])
    a('v_mov_b32 v%d, v%d' % (G[4], Z32))
    a('v_mov_b32 v%d, v%d' % (G[4] + 1, Z32 + 1))
    cmul_many(a, [(G[3], G[2], G[1]), (Z4, Z2, Z2), (W[2], W[0], Z2), (W[3], W[1], Z2), (ZB[768], ZB[512], ZB[256]),
                  (ZB[1536], ZB[1024], ZB[512]), (G[6], G[2], Z32)])
    cmul_many(a, [(G[7], G[3], Z32), (W[4], W[0], Z4), (W[5], W[1], Z4), (W[6], W[2], Z4), (W[7], W[3], Z4),
                  (ZB[1792], ZB[1024], ZB[768])])
    for i0 in range(8, 32, 4):
        cmul_many(a, [(G[i], G[i - 4], Z32) for i in range(i0, i0 + 4)])
    nvalu = len(a.L)
    for c in range(8):
        a('v_xor_b32 v%d, %d, v13' % (AD + c, c << 4))
    rowidx = [None] * 32
    for h in (0, 1):
        for r in range(16):
            rowidx[8 * (r >> 2) + 4 * h + (r & 3)] = ROWS[h][r]
    nput = [0]

    def put(c, regs, neg, off):
        pk = PK + 4 * (nput[0] & 1)
        nput[0] += 1
        for j in range(4):
            a('v_cvt_pk_bf16_f32 v%d, %sv%d, %sv%d' % (pk + j, neg, regs[2 * j], neg, regs[2 * j + 1]))
        a('ds_write_b128 v%d, %s%s' % (AD + c, vr(pk, 4), off))

    for c in range(8):
        put(c, [G[8 * (c & 3) + j] + (c >> 2) for j in range(8)], '', '')
    big = [e for e in R if e > 8]
    items = [(R[e], W[e & 255], ZB[e & ~255]) for e in big]
    for i0 in range(0, len(items), 5):
        cmul_many(a, items[i0:i0 + 5])
    for c in range(8):
        comp = c >> 2
        regs = [(R[e] if e is not None else W[0]) + comp for e in rowidx[8 * (c & 3):8 * (c & 3) + 8]]
        put(c, regs, '-' if comp else '', ' offset:8192')
    a('s_waitcnt lgkmcnt(0)')
    KD, FR, NB = 32, 48, 4

    def gen_reads(s):
        off = s * 1024
        b = FR + 8 * (s % NB)
        a('ds_read_b64_tr_b16 %s, v14 offset:%d' % (vr(b, 2), off + 8192))
        a('ds_read_b64_tr_b16 %s, v15 offset:%d' % (vr(b + 2, 2), off + 8192))
        a('ds_read_b64_tr_b16 %s, v14 offset:%d' % (vr(b + 4, 2), off))
        a('ds_read_b64_tr_b16 %s, v15 offset:%d' % (vr(b + 6, 2), off))

    for s in range(3):
        gen_reads(s)
    for s in range(8):
        if s + 3 < 8:
            gen_reads(s + 3)
        a('s_waitcnt lgkmcnt(%d)' % (4 * min(3, 7 - s)))
        b = FR + 8 * (s % NB)
        a(mfma(KD, b, b + 4, None if s == 0 else KD))
    a('s_nop 15')
    for j in range(4):
        a('ds_write_b128 v16, %s offset:%d' % (vr(KD + 4 * j, 4), 1024 * j))
    a('s_waitcnt lgkmcnt(0)')
    return a.L, nvalu


def transpose_addrs(a, sw, vrd, vwr, vlin, t0, t1, usi, uso):
    a('''v_lshrrev_b32 v{t0}, 4, v4
v_bfe_u32 v{t1}, v4, 2, 2
v_lshl_add_u32 v{t1}, v{t0}, 3, v{t1}
v_lshlrev_b32 v{rd}, 7, v{t1}
v_and_b32 v{t1}, 3, v4
v_lshl_add_u32 v{rd}, v{t1}, 3, v{rd}
s_lshl_b32 s66, s{w}, 5
s_add_u32 s66, s66, {usi}
v_add_u32 v{rd}, s66, v{rd}
v_and_b32 v{t1}, 7, v4
v_xor_b32 v{t0}, v{t0}, v{t1}
v_lshlrev_b32 v{t0}, 4, v{t0}
v_and_b32 v{t1}, 15, v4
v_lshl_add_u32 v{wr}, v{t1}, 7, v{t0}
s_lshl_b32 s66, s{w}, 11
s_add_u32 s66, s66, {uso}
v_add_u32 v{wr}, s66, v{wr}
v_lshl_add_u32 v{lin}, v4, 4, s66
v_lshrrev_b32 v{t0}, 3, v4
v_and_b32 v{t1}, 7, v4
v_xor_b32 v{t1}, v{t1}, v{t0}'''.format(t0=t0, t1=t1, rd=vrd, wr=vwr, lin=vlin, w=sw, usi=usi, uso=uso))


def transpose_a(a, vrd, vwr, d, t):
    a('''ds_read_b64_tr_b16 v[{d0}:{d1}], v{rd}
ds_read_b64_tr_b16 v[{d2}:{d3}], v{rd} offset:512
ds_read_b64_tr_b16 v[{d4}:{d5}], v{rd} offset:4096
ds_read_b64_tr_b16 v[{d6}:{d7}], v{rd} offset:4608
v_xor_b32 v{t}, 64, v{wr}
s_waitcnt lgkmcnt(2)
ds_write_b128 v{wr}, v[{d0}:{d3}]
s_waitcnt lgkmcnt(1)
ds_write_b128 v{t}, v[{d4}:{d7}]
s_waitcnt lgkmcnt(0)'''.format(rd=vrd, wr=vwr, t=t, **{'d%d' % i: d + i for i in range(8)}))


def kernel():
    a = A()
    KN = NAME + '_kernel'
    a('''.p2align 8
.type {k},@function
{k}:
s_cmp_ge_u32 s2, 256
s_cbranch_scc1 L_end
s_load_dwordx16 s[16:31], s[0:1], 8
s_load_dwordx4 s[32:35], s[0:1], 72
s_load_dwordx4 s[36:39], s[0:1], 104'''.format(k=KN))
    stamp(a, 0, True)
    stamp(a, 1)
    if 'enc' in OPTV:
        a('s_memrealtime s[90:91]')
    a('''v_lshrrev_b32 v3, 6, v0
v_and_b32 v4, 63, v0
s_and_b32 s44, s2, 7
s_lshr_b32 s45, s2, 3
v_readfirstlane_b32 s3, v3
s_lshl_b32 s60, s44, 6
s_lshl_b32 s46, s45, 1
s_add_u32 s60, s60, s46
s_lshl_b32 s46, s60, 8
v_lshl_add_u32 v5, v0, 1, s46
s_lshr_b32 s4, s44, 1
s_lshl_b32 s4, s4, 3
s_and_b32 s46, s45, 7
s_add_u32 s4, s4, s46
s_and_b32 s5, s44, 1
s_lshl_b32 s5, s5, 2
s_lshr_b32 s47, s45, 3
s_add_u32 s5, s5, s47
s_lshl_b32 s47, s47, 1
%s
s_cmp_ge_u32 s3, 4
s_cbranch_scc1 L_gemm''' % {'0': 's_mov_b32 s6, 0', '1': 's_add_u32 s6, s46, s47', '2': 's_and_b32 s6, s46, 4', '3': 's_and_b32 s6, s46, 6'}[OPTV.get('rot', '1')])
    SEG = (1, 2, 0)
    S = [16, 32]
    Pp = [48, 56]
    O = [64, 80]
    Q = [96, 100]
    OWN = 'own' in OPT
    DK = int(OPTV.get('dk', 3))
    NB, NBV = DK + 1, DK + 1 if DK == 3 else DK
    K = [104 + 4 * b for b in range(NB)]
    V0 = 104 + 4 * NB
    V = [[V0 + 8 * b, V0 + 4 + 8 * b] for b in range(NBV)]
    KA, VA = 14, 15
    assert V0 + 8 * NBV <= 160

    WOW = OPTV.get('wow', 'mid')

    def wo_dma():
        srd(a, 12, 32, 512 * 1024)
        a('''v_lshrrev_b32 v6, 3, v4
v_lshlrev_b32 v6, 10, v6
v_bfe_u32 v7, v4, 4, 1
v_lshlrev_b32 v7, 2, v7
v_and_b32 v8, 7, v4
v_xor_b32 v7, v7, v8
v_lshl_add_u32 v6, v7, 4, v6
v_add_u32 v7, %d, v6
s_lshl_b32 s57, s48, 10
s_lshl_b32 s26, s49, 14
s_add_u32 s57, s57, s26
s_lshl_b32 s26, s5, 7
s_lshl_b32 s27, s48, 13
s_add_u32 s26, s26, s27''' % (16384 - 2048))
        for cc in range(4):
            a('s_add_u32 s38, s51, %d' % cc)
            a('s_and_b32 s38, s38, 7')
            a('s_lshl_b32 s30, s38, 16')
            for g in range(2):
                a('s_add_u32 m0, s57, %d' % (g * 32768 + cc * 4096))
                a('s_add_u32 s30, s30, s26' if g == 0 else 's_add_u32 s30, s30, 0x8000')
                a('buffer_load_dwordx4 v6, s[12:15], s30 offen lds')
                a('buffer_load_dwordx4 v7, s[12:15], s30 offen offset:2048 lds')

    def att_prologue(early):
        a('''s_lshr_b32 s19, s3, 3
s_and_b32 s18, s3, 1
s_lshl_b32 s24, s19, 1
s_add_u32 s18, s18, s24
s_bfe_u32 s24, s3, 0x10001
v_lshlrev_b32 v5, 4, v4
s_lshl_b32 s26, s18, 10
s_add_u32 s26, s26, %d
s_lshl_b32 s27, s24, 12
s_add_u32 s26, s26, s27
v_add_u32 v13, s26, v5
s_lshl_b32 s27, s5, 2
s_add_u32 s18, s18, s27
s_lshl_b32 s22, s18, 16
s_add_u32 s27, s22, %d
v_add_u32 v%d, s27, v5
s_lshl_b32 s36, s24, 10
%s
s_mov_b32 s37, s36
v_lshrrev_b32 v6, 5, v4
v_and_b32 v7, 15, v4
v_lshlrev_b32 v7, 4, v7
v_lshl_add_u32 v7, v6, 8, v7
s_add_u32 s27, s22, %d
v_add_u32 v%d, s27, v7
v_and_b32 v6, 31, v4
v_cmp_eq_u32 vcc, 16, v6
v_cmp_eq_u32 s[28:29], 20, v6
s_mov_b32 s30, 0x3f803f80
s_or_b64 vcc, vcc, s[28:29]
v_mov_b32 v7, s30
s_mov_b32 s40, 0xffff
s_mov_b32 s41, 0xffff
v_cndmask_b32 v6, 0, v7, vcc''' % (QX, KF, KA, 's_lshl_b32 s37, s4, 11\ns_add_u32 s36, s36, s37' if OWN else '', VF, VA))
        for b in range(NBV):
            for u in range(2):
                for j in range(4):
                    a('v_mov_b32 v%d, v6' % (V[b][u] + j))
        for q in range(2):
            for j in range(16):
                a('v_mov_b32 v%d, 0' % (O[q] + j))

        if early:
            a('''s_and_b32 s48, s3, 1
s_bfe_u32 s49, s3, 0x10001
v_lshrrev_b32 v8, 5, v4
v_bfe_u32 v160, v4, 2, 2
v_lshl_add_u32 v160, v8, 2, v160
v_lshlrev_b32 v160, 7, v160
v_bfe_u32 v9, v4, 3, 1
v_lshl_add_u32 v160, v9, 6, v160
v_and_b32 v9, 1, v4
v_lshl_add_u32 v160, v9, 5, v160
v_bfe_u32 v9, v4, 4, 1
v_lshl_add_u32 v160, v9, 4, v160
v_bfe_u32 v9, v4, 1, 1
v_lshl_add_u32 v160, v9, 3, v160
s_lshl_b32 s26, s49, 14
v_add_u32 v160, s26, v160
v_xor_b32 v161, 64, v160
v_and_b32 v162, 31, v4
v_lshlrev_b32 v162, 11, v162
v_lshl_add_u32 v162, v8, 5, v162
s_lshl_b32 s26, s4, 17
s_lshl_b32 s50, s48, 16
s_add_u32 s26, s26, s50
s_lshl_b32 s27, s5, 7
s_add_u32 s26, s26, s27
s_lshl_b32 s50, s49, 6
s_add_u32 s50, s50, s26
s_add_u32 s50, s50, 1024
s_lshl_b32 s51, s49, 2
s_add_u32 s51, s51, s5
v_and_b32 v163, 3, v4
v_add_u32 v163, s51, v163
v_and_b32 v163, 7, v163
v_lshlrev_b32 v163, 7, v163
s_lshl_b32 s52, s4, 10
s_add_u32 s52, s52, %d
s_lshl_b32 s53, s4, 16
s_lshl_b32 s26, s48, 15
s_add_u32 s53, s53, s26
s_add_u32 s53, s53, %d
s_sub_u32 s26, s3, 4
s_lshl_b32 s27, s26, 12
s_add_u32 s27, s27, %d
v_add_u32 v164, s27, v5
v_xor_b32 v165, 0x2000, v164
s_lshl_b32 s26, s26, 2
v_add_u32 v166, s26, v12
v_xor_b32 v167, 8, v166''' % (FL2, OF, GEN))
        else:
            a('v_mov_b32 v163, 0')
            a('s_mov_b32 s52, %d' % FL2)
        a('''s_lshl_b32 s54, s4, 1
s_add_u32 s54, s54, s24
s_lshl_b32 s54, s54, 15
s_lshl_b32 s26, s18, 10
s_add_u32 s54, s54, s26
s_add_u32 s54, s54, %d
v_mov_b32 v8, -1
v_mov_b32 v9, -1
v_mov_b32 v10, -1
v_mov_b32 v11, -1
s_lshl_b32 s55, s4, 3
s_add_u32 s55, s55, s5
s_lshl_b32 s55, s55, 7
s_add_u32 s55, s55, %d
buffer_store_dwordx4 v[8:11], v5, s[8:11], s54 offen sc1''' % (OF, FL2))


    a('''s_lshr_b32 s61, s3, 1
s_add_u32 s52, s60, s61
s_lshl_b32 s46, s52, 1
v_mov_b32 v19, s46
s_and_b32 s53, s3, 1
s_waitcnt lgkmcnt(0)''')
    P = 20
    a('global_load_ushort %s, v19, s[28:29]' % vr(P + 6))
    for i in range(6):
        a('global_load_ushort %s, v5, %s' % (vr(P + i), sr(16 + 2 * i, 2)))
    a('global_load_ushort %s, v19, s[30:31]' % vr(P + 7))
    a('''s_getpc_b64 s[40:41]
v_and_b32 v1, 7, v0
v_lshlrev_b32 v1, 7, v1
s_lshl_b32 s46, s45, 10
v_add_u32 v1, s46, v1
global_load_dword v2, v1, s[40:41]''')
    srd(a, 8, 38, WS_BYTES)
    srd(a, 12, 36, 256)
    a('''v_mov_b32 v18, 0
s_or_b32 s46, s2, s3
s_cmp_eq_u32 s46, 0
s_cbranch_scc0 L_notag
s_memrealtime s[46:47]
s_waitcnt lgkmcnt(0)
s_or_b32 s46, s46, 1
v_mov_b32 v1, s46
s_mov_b64 exec, 1
buffer_store_dword v1, v18, s[12:15], 0 offen sc1
s_mov_b64 exec, -1
s_waitcnt vmcnt(0)
L_notag:''')
    a('''s_lshl_b32 s62, s3, 14
s_add_u32 s62, s62, %d
v_and_b32 v10, 7, v4
v_lshlrev_b32 v10, 4, v10
v_lshl_add_u32 v13, v4, 7, v10
v_add_u32 v13, s62, v13
v_lshrrev_b32 v10, 5, v4
v_bfe_u32 v11, v4, 3, 1
v_lshl_add_u32 v10, v10, 2, v11
v_bfe_u32 v11, v4, 2, 1
v_lshlrev_b32 v11, 2, v11
v_bfe_u32 v12, v4, 4, 1
v_lshl_add_u32 v11, v12, 1, v11
v_bfe_u32 v12, v4, 1, 1
v_add_u32 v11, v11, v12
v_xor_b32 v11, v11, v10
v_lshlrev_b32 v11, 4, v11
v_lshl_add_u32 v11, v10, 7, v11
v_and_b32 v12, 1, v4
v_lshl_add_u32 v11, v12, 3, v11
v_add_u32 v14, s62, v11
v_xor_b32 v15, 32, v14
v_add_u32 v15, 256, v15
v_lshl_add_u32 v16, v4, 4, s62
v_xor_b32 v17, 0x4000, v16
v_mov_b32 v12, %d
s_mov_b32 s51, 0x%x''' % (GEN, CNT, f2u(LOG2E)))
    p1, nvalu = kgen_stream()
    sizes = [int(x) for x in OPTV.get('sl', '80,140,31').split(',')]
    cuts = [0]
    for z in sizes:
        cuts.append(min(len(p1), cuts[-1] + z))
    print('kgen instructions', len(p1), 'pure valu', nvalu, cuts, file=sys.stderr)
    a('s_load_dwordx4 s[32:35], s[0:1], 88')
    stamp(a, 2)
    jitter(a, 1)
    a('s_waitcnt vmcnt(1) lgkmcnt(0)')
    for c in range(16):
        if c < len(sizes):
            a.L += p1[cuts[c]:cuts[c + 1]]
        if c == 8:
            a('buffer_load_dword v1, v18, s[12:15], 0 offen sc1')
        if c == 14:
            a('s_waitcnt vmcnt(0)')
            tag_check(a, 1, 18, 12)
            a('''v_cmp_eq_u32 vcc, 0, v4
v_lshl_add_u32 v2, v4, 2, v12
s_cmp_eq_u32 s3, 0
v_cndmask_b32 v1, 0, v1, vcc
s_cbranch_scc0 L_tagd
ds_write_b32 v2, v1
s_waitcnt lgkmcnt(0)
L_tagd:''')
        a('s_barrier')
    a('s_barrier')
    stamp(a, 3)
    if 'noc' in OPT:
        lds_add(a, 12, 1, C_Y2)
        a('s_waitcnt lgkmcnt(0)')
        stamp_dump(a)
        a('s_endpgm')
    a('s_setprio %s' % OPTV.get('cprio', '3'))
    a('''s_lshl_b32 s46, s3, 11
s_add_u32 s46, s46, %d
v_lshl_add_u32 v6, v4, 4, s46
ds_read_b128 v[8:11], v6
ds_read_b128 v[28:31], v6 offset:1024
v_lshrrev_b32 v6, 3, v4
v_and_b32 v7, 7, v4
v_xor_b32 v7, v7, v6
v_mul_u32_u24 v6, %d, v6
v_lshl_add_u32 v6, v7, 4, v6
s_mul_i32 s46, s44, %d
s_mul_i32 s47, s3, %d
s_add_u32 s46, s46, s47
s_lshl_b32 s47, s45, 7
s_add_u32 s46, s46, s47
s_add_u32 s46, s46, %d
s_add_u32 s47, s46, %d
s_lshl_b32 s65, s44, 5
s_add_u32 s65, s65, s45
s_lshl_b32 s65, s65, 6
s_add_u32 s65, s65, %d
s_waitcnt lgkmcnt(1)
buffer_store_dwordx4 v[8:11], v6, s[8:11], s46 offen sc1
s_waitcnt lgkmcnt(0)
buffer_store_dwordx4 v[28:31], v6, s[8:11], s47 offen sc1''' % (USO, RS, 64 * RS, 16 * RS, UT, 8 * RS, FLU))
    srd(a, 16, 34, 2048 * 2048)
    srd(a, 12, 32, 512 * 1024)
    jitter(a, 2)
    a.L += p1[cuts[-1]:]
    jitter(a, 3)
    a('s_waitcnt vmcnt(0)')
    arrive_publish(a, 12, 1, C_U, 4, 65, 2)
    a('s_lshl_b32 s63, s61, 2')
    a('v_add_u32 v11, s63, v12')
    lds_add(a, 11, 1, C_PAIR)
    KD = 32
    a('''v_and_b32 v28, 31, v4
v_lshrrev_b32 v29, 5, v4
s_lshl_b32 s46, s53, 6
s_add_u32 s46, s46, s62
s_add_u32 s46, s46, %d
v_lshlrev_b32 v10, 4, v28
v_sub_u32 v18, s46, v10
v_and_b32 v10, 1, v4
v_cmp_eq_u32 s[54:55], 1, v10
v_cmp_eq_u32 s[56:57], 0, v4
s_mov_b32 s58, -1
s_mov_b32 s59, 0
s_mov_b32 s40, 0
s_mov_b32 s41, -1''' % (KCOPY + 255 * 16))
    for sl, (b0, b1) in enumerate([(0, 32), (128, 64), (160, 96), (192, 224)]):
        a('v_mul_i32_i24 v10, %d, v29' % ((b1 - b0) * 16))
        a('v_sub_u32 v%d, v18, v10' % (80 + sl))
        if b0:
            a('v_subrev_u32 v%d, %d, v%d' % (80 + sl, b0 * 16, 80 + sl))
    a('''v_lshl_add_u32 v87, v4, 4, s46
v_add_u32 v87, 16, v87
s_lshl_b32 s64, s61, 15
s_add_u32 s64, s64, %d
s_lshl_b32 s47, s53, 1
v_add_u32 v10, s47, v29
v_mul_u32_u24 v10, 1536, v10
v_lshl_add_u32 v10, v28, 4, v10
v_add_u32 v10, s64, v10
v_mov_b32 v88, 0
v_mov_b32 v89, 0
v_mov_b32 v90, 0
v_mov_b32 v91, 0''' % (GEN + UIMG))
    lds_spin(a, 11, 1, C_PAIR, 2)
    a('ds_write_b128 v10, v[88:91]')
    for j in range(4):
        a('ds_read_b128 %s, v17 offset:%d' % (vr(48 + 4 * j, 4), 1024 * j))
    a('v_cndmask_b32 v9, 0, v27, s[56:57]')
    a('v_add_f32 v%d, v%d, v9' % (KD, KD))
    a('s_waitcnt lgkmcnt(0)')
    for j in range(16):
        a('v_add_f32 v%d, v%d, v%d' % (KD + j, KD + j, 48 + j))
    for i, r in enumerate((9, 11, 13)):
        a('v_cndmask_b32 v%d, v%d, v%d, s[54:55]' % (84 + i, KD + r, KD + r + 1))
    OB = 64

    def pack(dst, vals):
        for j in range(4):
            a('v_cvt_pk_bf16_f32 v%d, v%d, v%d' % (dst + j, vals[2 * j], vals[2 * j + 1]))

    def emit_copy(cp):
        k = lambda r: KD + r
        r0 = [k(i) for i in range(9)]
        r1 = [k(0), k(0), k(1), k(2), k(2), k(2), k(3), k(4), k(4)]
        r2 = lambda b: [k(b), k(b), k(b), k(b + 1), k(b + 1), k(b + 1), k(b + 2), k(b + 2), k(b + 2)]
        r3 = lambda b, x: [k(b)] * 4 + [x] + [k(b + 1)] * 4
        sel = (lambda p: p[8:0:-1]) if cp == 0 else (lambda p: p[7::-1])
        a('s_mov_b64 exec, s[58:59]')
        pack(OB, sel(r0))
        pack(OB + 4, sel(r3(9, 84)))
        pack(OB + 8, sel(r3(11, 85)))
        pack(OB + 12, sel(r3(13, 86)))
        a('s_mov_b64 exec, s[40:41]')
        pack(OB, sel(r1))
        pack(OB + 4, sel(r2(5)))
        pack(OB + 8, sel(r2(8)))
        pack(OB + 12, sel(r3(11, 85)))
        a('s_mov_b64 exec, -1')
        if cp == 0:
            a('v_cvt_pk_bf16_f32 v10, v%d, v88' % KD)
            a('v_cndmask_b32 v88, 0, v10, s[56:57]')

    a('s_cmp_eq_u32 s53, 0')
    a('s_cbranch_scc0 L_copy1')
    emit_copy(0)
    a('s_branch L_copyd')
    a('L_copy1:')
    emit_copy(1)
    a('L_copyd:')
    for sl in range(4):
        a('ds_write_b128 v%d, %s' % (80 + sl, vr(OB + 4 * sl, 4)))
    a('s_mov_b64 exec, 15')
    a('ds_write_b128 v87, v[88:91]')
    a('s_mov_b64 exec, -1')
    if 'x1' in OPT:
        lds_add(a, 12, 1, C_Y2)
        a('s_waitcnt lgkmcnt(0)')
        stamp_dump(a)
        a('s_endpgm')
    stamp(a, 4)
    a('''v_lshlrev_b32 v6, 6, v28
s_lshl_b32 s46, s44, 11
s_add_u32 s46, s46, %d
s_cmp_eq_u32 s3, 0
s_cbranch_scc0 L_uw''' % FLU)
    flag_poll_lazy(a, 6, 1, 46, 8)
    lds_add(a, 12, 3, C_GOU)
    a('L_uw:')
    lds_spin(a, 12, 3, C_GOU, 1, nap=4)
    a('''v_lshlrev_b32 v6, 6, v4
s_mul_i32 s46, s52, %d
s_lshl_b32 s47, s53, 5
s_add_u32 s46, s46, s47
s_add_u32 s46, s46, %d
s_mul_i32 s47, s53, 3072
s_add_u32 s47, s47, s64
s_add_u32 m0, s47, 512
s_nop 0
buffer_load_dwordx4 v6, s[8:11], s46 offen sc1 lds
s_add_u32 m0, s47, 2048
s_add_u32 s46, s46, 16
buffer_load_dwordx4 v6, s[8:11], s46 offen sc1 lds''' % (RS, UT))
    a('''v_and_b32 v18, 30, v4
v_and_b32 v19, 1, v4
v_lshlrev_b32 v24, 3, v29
v_sub_u32 v24, v24, v18
v_add_u32 v24, 32, v24
v_lshlrev_b32 v24, 1, v24
v_mul_u32_u24 v19, %d, v19
v_add_u32 v24, v24, v19
s_add_u32 s46, s64, %d
v_add_u32 v24, s46, v24
s_lshl_b32 s46, s53, 9
s_add_u32 s46, s46, s64
s_add_u32 s46, s46, %d
v_mul_u32_u24 v25, 1536, v29
v_lshl_add_u32 v25, v28, 4, v25
v_add_u32 v25, s46, v25''' % (16384 + 64 - 4, KCOPY - UIMG + 32 * 120, 512 - 3 * 16))
    TB, UB, CA = 32, 40, 48
    CB = 64
    for j in range(32):
        a('v_mov_b32 v%d, 0' % (CA + j))
    a('''s_lshl_b32 s34, s53, 2
s_add_u32 s34, s34, 8
s_mov_b32 s35, 0
s_waitcnt vmcnt(0) lgkmcnt(0)''')
    lds_add(a, 12, 1, C_CONV)
    if WOW != 'win':
        a('''s_and_b32 s46, s45, 7
s_lshl_b32 s46, s46, 16
s_lshl_b32 s47, s5, 7
s_add_u32 s46, s46, s47
s_lshl_b32 s47, s3, 14
s_add_u32 s46, s46, s47
v_and_b32 v6, 15, v4
v_lshlrev_b32 v6, 10, v6
buffer_load_dword v31, v6, s[12:15], s46 offen''')
    lds_spin(a, 12, 1, C_CONV, 4)
    if 'x2' in OPT:
        lds_add(a, 12, 1, C_Y2)
        a('s_waitcnt lgkmcnt(0)')
        stamp_dump(a)
        a('s_endpgm')
    stamp(a, 5)
    jitter(a, 4)

    def conv_loop(lab, acc, send):
        a(lab + ':')
        for j in range(8):
            t = TB + 4 * (j & 1)
            if 'not' not in OPT or j == 0:
                a('ds_read2_b32 %s, v24 offset0:%d offset1:%d' % (vr(t, 2), 8 * (7 - j), 8 * (7 - j) + 1))
                a('ds_read2_b32 %s, v24 offset0:%d offset1:%d' % (vr(t + 2, 2), 8 * (7 - j) + 2, 8 * (7 - j) + 3))
            a('ds_read_b128 %s, v25 offset:%d' % (vr(UB + 4 * (j & 1), 4), (3072 if j % 2 == 0 else 0) + (3 - (j >> 1)) * 16))
            a('s_waitcnt lgkmcnt(0)')
            a(mfma(acc, UB + 4 * (j & 1), t, acc))
            if 'cs' in OPTV:
                a('s_sleep %s' % OPTV['cs'])
        a('''v_subrev_u32 v24, 256, v24
v_subrev_u32 v25, 64, v25
s_add_u32 s35, s35, 1
s_cmp_lt_u32 s35, %s
s_cbranch_scc1 %s''' % (send, lab))

    if 'noconv' not in OPT:
        conv_loop('L_cl', CA, 's34')
        a('''s_cmp_eq_u32 s53, 0
s_cbranch_scc0 L_cr
v_subrev_u32 v24, 1024, v24
v_add_u32 v25, 256, v25''')
        conv_loop('L_cm', CB, '12')
        a('s_nop 11')
        for j in range(4):
            a('ds_write_b128 v16, %s offset:%d' % (vr(CB + 4 * j, 4), 1024 * j))
        a('s_waitcnt lgkmcnt(0)')
        lds_add(a, 11, 1, C_PAIR)
        a('s_branch L_cd')
        a('L_cr:')
        lds_spin(a, 11, 1, C_PAIR, 3, nap=2)
        for j in range(4):
            a('ds_read_b128 %s, v17 offset:%d' % (vr(CB + 4 * j, 4), 1024 * j))
        a('s_waitcnt lgkmcnt(0)')
        for j in range(16):
            a('v_add_f32 v%d, v%d, v%d' % (CA + j, CA + j, CB + j))
        a('L_cd:')
    jitter(a, 5)
    stamp(a, 6)
    a('''s_nop 0
s_mul_i32 s46, s52, %d
s_lshl_b32 s47, s53, 11
s_add_u32 s46, s46, s47
s_add_u32 s46, s46, %d
v_lshlrev_b32 v6, 2, v28
v_lshl_add_u32 v6, v29, 8, v6
s_lshl_b32 s47, s53, 9
s_add_u32 s47, s47, s52
s_lshl_b32 s47, s47, 6
s_add_u32 s47, s47, %d
v_mov_b32 v1, s7
v_mov_b32 v2, 0''' % (RS, YT, FL3))
    for k in range(8):
        a('v_cvt_pk_bf16_f32 v%d, v%d, v%d' % (32 + k, CA + 2 * k, CA + 2 * k + 1))
    for k in range(8):
        a('buffer_store_dword v%d, v6, s[8:11], s46 offen offset:%d sc1' % (32 + k, (4 * (k >> 1) + (k & 1)) * 128))
    a('''s_waitcnt vmcnt(0) lgkmcnt(0)
s_mov_b64 exec, 1
buffer_store_dword v1, v2, s[8:11], s47 offen sc1
s_mov_b64 exec, -1''')
    if 'x3' in OPT:
        lds_add(a, 12, 1, C_Y2)
        a('s_waitcnt lgkmcnt(0)')
        stamp_dump(a)
        a('s_endpgm')
    if WOW == 'mid':
        a('''v_lshrrev_b32 v6, 3, v4
v_lshlrev_b32 v6, 10, v6
v_bfe_u32 v7, v4, 4, 1
v_lshlrev_b32 v7, 2, v7
v_and_b32 v8, 7, v4
v_xor_b32 v7, v7, v8
v_lshl_add_u32 v6, v7, 4, v6
s_lshl_b32 s23, s53, 10
s_lshl_b32 s24, s61, 11
s_add_u32 s24, s23, s24
s_lshl_b32 s26, s5, 7
s_lshl_b32 s27, s53, 13
s_add_u32 s26, s26, s27
s_lshl_b32 s27, s61, 14
s_add_u32 s26, s26, s27
s_nop 0''')
        for c in range(8):
            a('s_add_u32 s38, s5, %d' % c)
            a('s_and_b32 s38, s38, 7')
            a('s_lshl_b32 s30, s38, 16')
            a('s_add_u32 m0, s24, %d' % (c * 4096))
            a('s_add_u32 s30, s30, s26')
            if 'nowo' in OPT:
                continue
            a('buffer_load_dwordx4 v6, s[12:15], s30 offen lds')
            a('s_add_u32 m0, s24, %d' % (32768 + c * 4096))
            a('s_add_u32 s30, s30, 0x8000')
            a('buffer_load_dwordx4 v6, s[12:15], s30 offen lds')
            a('s_waitcnt vmcnt(%s)' % OPTV.get('wot', '2'))
    if 'x4' in OPT:
        lds_add(a, 12, 1, C_Y2)
        a('s_waitcnt lgkmcnt(0)')
        stamp_dump(a)
        a('s_endpgm')
    stamp(a, 7)
    a('''v_lshlrev_b32 v6, 6, v4
s_lshr_b32 s46, s4, 4
s_lshl_b32 s46, s46, 15
s_lshl_b32 s47, s5, 12
s_add_u32 s46, s46, s47
s_add_u32 s46, s46, %d
s_cmp_eq_u32 s3, 0
s_cbranch_scc0 L_yw''' % FL3)
    flag_poll_lazy(a, 6, 1, 46, 32)
    lds_add(a, 12, 3, C_GOY)
    a('L_yw:')
    transpose_addrs(a, 3, 20, 21, 22, 8, 9, USI, USO)
    a('''v_mul_u32_u24 v10, %d, v8
v_and_b32 v11, 7, v4
v_lshl_add_u32 v10, v11, 4, v10
v_add_u32 v11, %d, v10
s_mul_i32 s46, s5, %d
s_mul_i32 s47, s3, %d
s_add_u32 s46, s46, s47
s_lshl_b32 s47, s4, 7
s_add_u32 s46, s46, s47
s_add_u32 s46, s46, %d
s_lshl_b32 s47, s3, 11
s_add_u32 s47, s47, %d''' % (RS, 8 * RS - 1024, 64 * RS, 16 * RS, YT, USI))
    lds_spin(a, 12, 3, C_GOY, 1, nap=8)
    a('''s_mov_b32 m0, s47
v_and_b32 v7, 1, v8
v_lshrrev_b32 v8, 1, v8
v_lshl_add_u32 v8, v7, 5, v8
v_lshlrev_b32 v8, 11, v8
buffer_load_dwordx4 v10, s[8:11], s46 offen sc1 lds
buffer_load_dwordx4 v11, s[8:11], s46 offen offset:1024 sc1 lds
v_lshl_add_u32 v8, v9, 4, v8
s_lshl_b32 s46, s4, 17
s_lshl_b32 s47, s3, 14
s_add_u32 s46, s46, s47
s_lshl_b32 s47, s5, 7
s_add_u32 s46, s46, s47
s_add_u32 s47, s46, 0x2000
s_waitcnt vmcnt(0)''')
    jitter(a, 6)
    lds_add(a, 12, 1, C_Y)
    lds_spin(a, 12, 1, C_Y, 4)
    transpose_a(a, 20, 21, 32, 23)
    a('''ds_read_b128 v[32:35], v22
ds_read_b128 v[36:39], v22 offset:1024
s_waitcnt lgkmcnt(1)
buffer_store_dwordx4 v[32:35], v8, s[16:19], s46 offen sc1
s_waitcnt lgkmcnt(0)
buffer_store_dwordx4 v[36:39], v8, s[16:19], s47 offen sc1''')
    lds_add(a, 12, 1, C_Y2)
    stamp(a, 8)
    a('s_waitcnt lgkmcnt(0)')
    stamp(a, 12)
    stamp_dump(a)
    a('s_endpgm')

    a('''L_gemm:
s_cmp_ge_u32 s3, 8
s_cbranch_scc1 L_mm
s_setprio 2
s_sub_u32 s61, s3, 4
v_lshrrev_b32 v10, 3, v4
v_lshrrev_b32 v11, 4, v4
v_and_b32 v12, 7, v4
v_xor_b32 v13, v12, v11
s_lshl_b32 s47, s61, 4
v_add_u32 v10, s47, v10
s_lshl_b32 s46, s4, 16
v_lshl_add_u32 v14, v10, 10, s46
v_lshl_add_u32 v6, v13, 4, v14
v_xor_b32 v7, 64, v6
v_add_u32 v7, 0x1c00, v7
v_lshlrev_b32 v16, 10, v10
v_lshl_add_u32 v16, v12, 4, v16
v_mul_u32_u24 v10, 3072, v10
v_and_b32 v11, 1, v11
v_lshlrev_b32 v11, 2, v11
v_xor_b32 v12, v12, v11
v_lshl_add_u32 v8, v12, 4, v10
s_lshl_b32 s46, s5, 7
v_add_u32 v8, s46, v8
v_add_u32 v9, %d, v8
s_lshl_b32 s48, s61, 11
s_waitcnt lgkmcnt(0)''' % (8 * 3072 - 1024))
    srd(a, 16, 32, 2048 * 1024)
    srd(a, 12, 34, 512 * 3072)

    def dma_chunk(c):
        slot = (c % 6) * 16384
        if c < 8:
            a('s_add_u32 s50, s6, %d' % c)
            a('s_and_b32 s50, s50, 7')
            a('s_mul_i32 s49, s50, %d' % (64 * 3072))
            a('s_add_u32 m0, s48, %d' % slot)
            a('s_lshl_b32 s50, s50, 7')
            a('buffer_load_dwordx4 v6, s[16:19], s50 offen lds')
            a('buffer_load_dwordx4 v7, s[16:19], s50 offen offset:1024 lds')
            a('s_add_u32 m0, s48, %d' % (slot + 8192))
            a('s_add_u32 s49, s49, %d' % (SEG[0] * 1024))
            a('buffer_load_dwordx4 v8, s[12:15], s49 offen lds')
            a('buffer_load_dwordx4 v9, s[12:15], s49 offen offset:1024 lds')
        else:
            p, j = 1 + ((c - 8) >> 2), (c - 8) & 3
            for hf in range(2):
                a('s_add_u32 s50, s6, %d' % (2 * j + hf))
                a('s_and_b32 s50, s50, 7')
                a('s_mul_i32 s49, s50, %d' % (64 * 3072))
                a('s_add_u32 m0, s48, %d' % (slot + hf * 8192))
                a('s_add_u32 s49, s49, %d' % (SEG[p] * 1024))
                a('buffer_load_dwordx4 v8, s[12:15], s49 offen lds')
                a('buffer_load_dwordx4 v9, s[12:15], s49 offen offset:1024 lds')

    dma_chunk(0)
    dma_chunk(1)
    a('s_load_dwordx2 s[20:21], s[0:1], 0')
    srd(a, 8, 38, WS_BYTES)
    transpose_addrs(a, 61, 20, 21, 22, 23, 24, USI, USO)
    a('''s_lshl_b32 s46, s45, 16
s_lshl_b32 s47, s44, 7
s_add_u32 s58, s46, s47
s_add_u32 s59, s48, %d
v_add_u32 v17, 0x1c00, v16
v_mov_b32 v12, %d
s_waitcnt lgkmcnt(0)''' % (USI, CNT))
    srd(a, 60, 20, 2048 * 1024)
    jitter(a, 7)
    order = [0, 1]
    cnt = lambda x: 4 if isinstance(x, int) else x[1]
    stamp(a, 2)
    for c in range(16):
        a('s_waitcnt vmcnt(%d)' % (sum(cnt(x) for x in order[order.index(c) + 1:]) if c < 15 else 0))
        if c in (0, 8, 12):
            stamp(a, {0: 3, 8: 4, 12: 5}[c])
        a('s_barrier')
        if 'bars' in OPT and c <= 12 and c != 1:
            n = 1 + c - (c > 1)
            a('s_memrealtime s[%d:%d]' % (ST0 + 2 * n, ST0 + 2 * n + 1))
        for n in {0: [2, 3], 1: [4, 5]}.get(c, [c + 4] if c + 4 < 16 else []):
            dma_chunk(n)
            order.append(n)
        if c == int(OPTV.get('wpo', 11)) and WOW == 'win':
            a('''s_load_dwordx2 s[32:33], s[0:1], 88
v_and_b32 v26, 15, v4
v_lshlrev_b32 v26, 10, v26
s_and_b32 s46, s4, 7
s_lshl_b32 s46, s46, 16
s_lshl_b32 s47, s5, 7
s_add_u32 s46, s46, s47
s_lshl_b32 s47, s48, 3
s_add_u32 s46, s46, s47
v_add_u32 v26, s46, v26
s_waitcnt lgkmcnt(0)
global_load_dword v27, v26, s[32:33]''')
            order.append(('w', 1))
        if c == 12:
            att_prologue(True)
            order.append(('m', 1))
        if c == 13:
            a('s_mov_b32 m0, s59')
            a('s_nop 0')
            a('buffer_load_dwordx4 v16, s[60:63], s58 offen lds')
            a('buffer_load_dwordx4 v17, s[60:63], s58 offen offset:1024 lds')
            order.append(('u', 2))
        if c == 15:
            transpose_a(a, 20, 21, 32, 25)
    a('''s_load_dwordx2 s[32:33], s[0:1], 88
s_waitcnt lgkmcnt(0)
s_barrier
ds_read_b32 v1, v12 offset:%d
s_waitcnt lgkmcnt(0)
v_readfirstlane_b32 s7, v1''' % C_TAG)
    if WOW == 'win':
        wo_dma()
    a('s_branch L_att')

    XA, WA, OA, OV = 160, 164, 165, 166
    XR, ACC = 0, 128
    WF = [144, 148, 152, 156]
    a('''L_mm:
%s
s_setprio 3
s_and_b32 s52, s3, 1
s_bfe_u32 s53, s3, 0x10001
v_and_b32 v10, 31, v4
v_bfe_u32 v11, v4, 1, 3
v_lshrrev_b32 v12, 5, v4
v_xor_b32 v11, v11, v12
v_lshlrev_b32 v11, 4, v11
v_lshl_add_u32 v10, v10, 7, v11
s_lshl_b32 s46, s52, 12
v_add_u32 v%d, s46, v10''' % ('s_memrealtime s[70:71]' if 'dbgt' in OPT else '', XA))
    for jq in range(1, 4):
        a('v_xor_b32 v%d, %d, v%d' % (XA + jq, jq << 5, XA))
    a('''v_lshlrev_b32 v10, 10, v12
v_bfe_u32 v11, v4, 2, 2
v_lshl_add_u32 v10, v11, 7, v10
v_bfe_u32 v11, v4, 3, 1
v_xor_b32 v11, s53, v11
v_lshl_add_u32 v10, v11, 6, v10
v_bfe_u32 v11, v4, 4, 1
v_lshl_add_u32 v10, v11, 5, v10
v_and_b32 v11, 3, v4
v_lshl_add_u32 v%d, v11, 3, v10''' % WA)
    a('''s_lshl_b32 s46, s4, 1
s_add_u32 s46, s46, s52
s_lshl_b32 s46, s46, 10
s_lshl_b32 s47, s5, 1
s_add_u32 s47, s47, s53
s_lshl_b32 s47, s47, 17
s_add_u32 s46, s46, s47
v_lshl_add_u32 v%d, v4, 4, s46
v_bfe_u32 v11, v4, 4, 1
v_lshlrev_b32 v11, 16, v11
v_lshl_add_u32 v11, v12, 8, v11
v_and_b32 v10, 15, v4
v_lshl_add_u32 v11, v10, 4, v11
v_add_u32 v%d, s46, v11
v_mov_b32 v167, v4
s_mov_b32 s62, 0x%x
s_mov_b32 s64, %d
s_mov_b32 s65, %d
s_mov_b32 s63, %d
s_lshl_b32 s54, s52, 12
s_lshl_b32 s47, s53, 11
s_add_u32 s54, s54, s47
s_add_u32 s54, s54, %d
s_lshl_b32 s56, s5, 6
s_add_u32 s56, s56, %d
s_lshl_b32 s55, s4, 9
s_add_u32 s55, s55, s56
s_waitcnt lgkmcnt(0)''' % (OA, OV, f2u(QSCALE), KF, KF + 65536, VF, QX, FL1))
    srd(a, 8, 38, WS_BYTES)
    if 'nowpf' not in OPT:
        srd(a, 12, 34, 512 * 3072)
        a('''v_mul_u32_u24 v126, 3072, v4
s_and_b32 s46, s4, 7
s_mul_i32 s46, s46, %d
s_lshl_b32 s47, s5, 7
s_add_u32 s46, s46, s47
s_xor_b32 s47, s52, 1
s_lshl_b32 s47, s47, 11
s_add_u32 s57, s46, s47''' % (64 * 3072))

    def wpf(wave):
        l = label('pf')
        a('s_cmp_eq_u32 s3, %d' % wave)
        a('s_cbranch_scc0 %s' % l)
        a('buffer_load_dword v127, v126, s[12:15], s57 offen')
        a(l + ':')

    WPV, WPQ = int(OPTV.get('wpv', -1)), int(OPTV.get('wpq', -1))
    if WPV < 0:
        wpf(8)
    if WPQ < 0:
        wpf(9)
    if 'upf' in OPT:
        a('''s_cmp_eq_u32 s3, 10
s_cbranch_scc0 L_noupf
s_load_dwordx2 s[20:21], s[0:1], 0
v_lshlrev_b32 v126, 10, v4
s_lshl_b32 s46, s45, 16
s_lshl_b32 s47, s44, 7
s_add_u32 s46, s46, s47
v_add_u32 v126, s46, v126
s_waitcnt lgkmcnt(0)
global_load_dword v127, v126, s[20:21]
L_noupf:''')
    PD = 3

    def chunk_of(s):
        p, kk = s >> 5, s & 31
        return (kk >> 2, kk & 3) if p == 0 else (8 + 4 * (p - 1) + (kk >> 3), kk & 7)

    def nreads(s):
        return 0 if s >= 96 else (3 if s < 32 else 2)

    def reads(s):
        c, j = chunk_of(s)
        if j == 0:
            a('s_barrier')
            if c == 0:
                if OPTV.get('enc') == 'b0':
                    a('s_memrealtime s[92:93]')
                stamp(a, 2)
                if 'dbgt' in OPT:
                    a('s_memrealtime s[72:73]')
            if c == WPV:
                wpf(8)
            if c == WPQ:
                wpf(9)
            if c == 6:
                a('s_waitcnt vmcnt(0)')
            if c % 3 == 0 and c > 0:
                op = 'v_add_u32' if c % 6 == 3 else 'v_subrev_u32'
                for r in ([XA, XA + 1, XA + 2, XA + 3] if c < 8 else []) + [WA]:
                    a('%s v%d, 0xc000, v%d' % (op, r, r))
        so = (c % 3) * 16384
        if c < 8:
            a('ds_read_b128 %s, v%d offset:%d' % (vr(XR + 4 * s, 4), XA + j, so))
            so += 8192
        for rd in range(2):
            a('ds_read_b64_tr_b16 %s, v%d offset:%d' % (vr(WF[s % 4] + 2 * rd, 2), WA, so + j * 2048 + rd * 512))

    def epilogue(p):
        lo, hi = vr(ACC, 4), vr(ACC + 4, 4)
        if SEG[p] == 0:
            a('v_mov_b32 v4, v167')
            a('v_lshl_add_u32 v10, v167, 4, s54')
            a('s_nop 13')
            for i in range(16):
                a('v_mul_f32 v%d, s62, v%d' % (ACC + i, ACC + i))
        else:
            a('s_nop 15')
        for j in range(8):
            a('v_cvt_pk_bf16_f32 v%d, v%d, v%d' % (ACC + j, ACC + 2 * j, ACC + 2 * j + 1))
        if SEG[p] == 0:
            a('ds_write_b128 v10, %s' % lo)
            a('ds_write_b128 v10, %s offset:1024' % hi)
        elif SEG[p] == 1:
            a('buffer_store_dwordx4 %s, v%d, s[8:11], s64 offen sc1' % (lo, OA))
            a('buffer_store_dwordx4 %s, v%d, s[8:11], s65 offen sc1' % (hi, OA))
        else:
            a('buffer_store_dwordx4 %s, v%d, s[8:11], s63 offen sc1' % (lo, OV))
            a('buffer_store_dwordx4 %s, v%d, s[8:11], s63 offen offset:512 sc1' % (hi, OV))

    jitter(a, 8)
    for s in range(PD):
        reads(s)
    for s in range(96):
        p, kk = s >> 5, s & 31
        if s + PD < 96:
            reads(s + PD)
        a('s_waitcnt lgkmcnt(%d)' % sum(nreads(t) for t in range(s + 1, s + PD + 1)))
        x, w = XR + 4 * kk, WF[s % 4]
        if SEG[p] == 2:
            a(mfma(ACC, x, w, None if kk == 0 else ACC))
        else:
            a(mfma(ACC, w, x, None if kk == 0 else ACC))
        if s == 80:
            a('v_mov_b32 v12, %d' % CNT)
            a('ds_read_b32 v1, v12 offset:%d' % C_TAG)
            a('s_waitcnt vmcnt(0) lgkmcnt(0)')
            a('v_readfirstlane_b32 s7, v1')
            jitter(a, 9)
            arrive_publish(a, 12, 1, C_KV, 4, 55, 2)
            if 'rt' in OPT:
                stamp(a, 2)
        if kk == 31:
            if OPTV.get('enc') == 'v' and p == 1:
                a('s_memrealtime s[92:93]')
            stamp(a, 3 + p)
            epilogue(p)
    a('s_waitcnt lgkmcnt(0)')
    a('s_barrier')
    a('''s_cmp_eq_u32 s3, 8
s_cbranch_scc0 L_apro
v_and_b32 v6, 31, v4
v_lshlrev_b32 v6, 9, v6''')
    if 'p2' not in OPT:
        flag_poll_lazy(a, 6, 1, 56, 1)
    else:
        flag_poll(a, 6, 1, 2, 56)
    lds_add(a, 12, 3, C_GO)

    a('L_apro:')
    att_prologue(False)
    a('''L_att:
v_xor_b32 v6, 0x1000, v13
ds_read_b128 %s, v13
ds_read_b128 %s, v6''' % (vr(Q[1], 4), vr(Q[0], 4)))

    def rdk(i):
        return ['buffer_load_dwordx4 %s, v%d, s[8:11], s36 offen sc1' % (vr(K[i % NB], 4), KA),
                's_add_u32 s36, s36, 2048'] + ['s_and_b32 s36, s36, 0xffff'] * OWN

    def rdv(i):
        return ['s_mov_b64 exec, s[40:41]',
                'buffer_load_dwordx4 %s, v%d, s[8:11], s37 offen sc1' % (vr(V[i % NBV][0], 4), VA),
                'buffer_load_dwordx4 %s, v%d, s[8:11], s37 offen offset:512 sc1' % (vr(V[i % NBV][1], 4), VA),
                's_mov_b64 exec, -1', 's_add_u32 s37, s37, 2048'] + ['s_and_b32 s37, s37, 0xffff'] * OWN

    PF = False
    pfl = []
    issue = []
    if OWN:
        lds_spin(a, 12, 3, C_KV, 4)
        a('\n'.join(rdk(0) + rdv(0)))
        issue += [('k', 0), ('v', 0), ('v', 0)]
    jitter(a, 10)
    stamp(a, 6)
    lds_spin(a, 12, 3, C_GO, 1)
    stamp(a, 7)
    pro = []
    if not OWN:
        pro = rdk(0)
        issue += [('k', 0)]
    for i in range(1, DK):
        pro += rdk(i)
        issue += [('k', i)]
        if i > 1 or not OWN:
            pro += rdv(i - 1)
            issue += [('v', i - 1), ('v', i - 1)]
    a('\n'.join(pro))
    a('s_setprio 3')
    a('s_waitcnt vmcnt(%d)' % (len(issue) - 1))
    if OPTV.get('enc') == 'go':
        a('s_memrealtime s[92:93]')
    if 'pubq0' in OPT:
        arrive_publish(a, 12, 3, C_Q, 8, 55, 2)
        issue.append(('f',))
    stamp(a, 8)
    if 'dbgt' in OPT:
        a('s_memrealtime s[74:75]')
    a(mfma(S[0], K[0], Q[0], None))
    a('s_nop 7')
    a('s_nop 3')
    pp_ = [int(x) for x in OPTV.get('pr', '7,15,23').split(',')]
    PRIO = {pp_[0]: 2, pp_[1]: 1, pp_[2]: 0}

    def unit(i, q):
        u = 2 * i + q
        sc, sn = S[u % 2], S[(u + 1) % 2]
        pc, pp = Pp[u % 2], Pp[(u + 1) % 2]
        i1, q1 = (i, 1) if q == 0 else (i + 1, 0)
        i0, q0 = (i - 1, 1) if q == 0 else (i, 0)
        qk = mfma(sn, K[i1 % NB], Q[q1], None)
        pv0 = mfma(O[q0], V[i0 % NBV][0], pp, O[q0])
        pv1 = mfma(O[q0], V[i0 % NBV][1], pp + 4, O[q0])
        if 'swp' in OPT:
            pv0 = mfma(O[q0], pp, V[i0 % NBV][0], O[q0])
            pv1 = mfma(O[q0], pp + 4, V[i0 % NBV][1], O[q0])
        e = ['v_exp_f32 v%d, v%d' % (sc + j, sc + j) for j in range(16)]
        c = ['v_cvt_pk_bf16_f32 v%d, v%d, v%d' % (pc + j, sc + 2 * j, sc + 2 * j + 1) for j in range(8)]
        c7prev = 'v_cvt_pk_bf16_f32 v%d, v%d, v%d' % (pp + 7, sn + 14, sn + 15)
        out = [e[0]]
        late_qk = OWN and u == 1
        if late_qk:
            last = max(n for n, x in enumerate(issue) if x == ('v', 0))
            out.append('s_waitcnt vmcnt(%d)' % sum(x != ('f',) for x in issue[last + 1:]))
        elif q == 1:
            last = max(n for n, x in enumerate(issue) if x in (('k', i + 1), ('v', i)))
            out.append('s_waitcnt vmcnt(%d)' % sum(x != ('f',) for x in issue[last + 1:]))
        if u > 0:
            out.append(c7prev)
        if u < 63 and not late_qk:
            out.append(qk)
        kl = rdk(i + DK) if q == 0 and i + DK < 32 else []
        vl = rdv(i + DK - 1) if q == 1 and i + DK - 1 < 32 else []
        issue.extend([('k', i + DK)] * bool(kl) + [('v', i + DK - 1)] * 2 * bool(vl))
        out += kl[:1] + vl[:4]
        out += [e[1], e[2], c[0], e[3], e[4], c[1], e[5]]
        if u > 0:
            out.append(pv0)
        out += kl[1:2] + vl[4:5]
        out += [e[6], c[2], e[7], e[8], c[3], e[9], e[10], c[4]]
        if u > 0:
            out.append(pv1)
        out += kl[2:] + vl[5:]
        if q == 0 and i in (1, 8, 16) and PF:
            out += pfl
            issue.append(('p',))
        if q == 1 and i in PRIO:
            out.append('s_setprio %d' % PRIO[i])
            if DIAG and 'qs' in OPT:
                n = 3 + i // 8
                out.append('s_memtime s[%d:%d]' % (ST0 + 2 * n, ST0 + 2 * n + 1))
        out += [e[11], e[12], c[5], e[13], e[14], c[6], e[15]]
        if late_qk:
            last = issue.index(('k', 1))
            out += ['s_waitcnt vmcnt(%d)' % sum(x != ('f',) for x in issue[last + 1:]), qk, 's_nop 11']
        return out

    for i in range(32):
        for q in range(2):
            if (i, q) == (20, 0):
                jitter(a, 11)
            if (i, q) == (31, 0):
                jitter(a, 12)
                a('''s_and_b32 s26, s3, 3
s_xor_b32 s27, s26, 2
s_mul_i32 s26, s26, 2304
s_add_u32 s26, s26, {ox}
s_mul_i32 s27, s27, 2304
s_add_u32 s27, s27, {ox}
v_add_u32 v6, s26, v5
v_add_u32 v7, s27, v5
v_lshlrev_b32 v8, 2, v4
v_add_u32 v9, s27, v8
v_add_u32 v8, s26, v8
s_sub_u32 s26, s3, 4
s_lshl_b32 s26, s26, 2
v_add_u32 v10, s26, v12
s_xor_b32 s26, s26, 8
v_add_u32 v11, s26, v12
s_cmp_eq_u32 s19, 0
s_cbranch_scc0 L_xa'''.format(ox=OX))
                lds_spin(a, 12, 3, C_Q, 8)
                a('s_branch L_xb')
                a('L_xa:')
                lds_spin(a, 12, 3, C_O, 4)
                a('''L_xb:
s_mov_b32 s44, 0x%x
s_mov_b32 s45, 0x%x
s_mov_b32 s46, 0x7f7fffff
s_lshl_b32 s26, s19, 2
v_add_u32 v13, s26, v12
v_mov_b32 v3, 1
buffer_load_dword v1, v163, s[8:11], s52 offen sc1''' % (f2u(2.0 ** -64), f2u(2.0 ** 64)))
                issue.append(('m',))
            if (i, q) == (2, 0) and 'pubq0' not in OPT:
                arrive_publish(a, 12, 3, C_Q, 8, 55, 2)
                issue.append(('f',))
            for s in unit(i, q):
                a(s)
    a('s_nop 0')
    a('v_cvt_pk_bf16_f32 v%d, v%d, v%d' % (Pp[1] + 7, S[1] + 14, S[1] + 15))
    if OPTV.get('enc') == 'loop':
        a('s_memrealtime s[92:93]')
    stamp(a, 9)
    if 'dbgt' in OPT:
        a('s_memrealtime s[76:77]')
    a('s_setprio 3')
    a('s_nop 0')
    a(mfma(O[1], V[31 % NBV][0], Pp[1], O[1]))
    a(mfma(O[1], V[31 % NBV][1], Pp[1] + 4, O[1]))
    F = O[1]
    a('''ds_write_b128 v6, %s
ds_write_b128 v6, %s offset:1024
ds_write_b32 v8, v%d offset:2048
ds_write_b32 v10, v3 offset:%d''' % (vr(O[0], 4), vr(O[0] + 4, 4), O[0] + 8, C_X))
    a('''s_mov_b32 s66, 0
L_xw:
ds_read_b32 v2, v11 offset:%d
ds_read_b128 v[48:51], v7
ds_read_b128 v[52:55], v7 offset:1024
ds_read_b32 v56, v9 offset:2048
s_add_u32 s66, s66, 1
s_waitcnt lgkmcnt(0)
v_readfirstlane_b32 s67, v2
s_cmp_ge_u32 s66, %d
s_cbranch_scc1 L_xe
s_cmp_eq_u32 s67, 0
s_cbranch_scc1 L_xw
L_xe:''' % (C_X, SPIN_MAX * 4))
    stamp(a, 10)
    for j in range(9):
        a('v_add_f32 v%d, v%d, v%d' % (F + j, F + j, 48 + j))
    a('''v_rcp_f32 v48, v{8}
v_add_f32 v50, abs(v{0}), abs(v{1})
v_add_f32 v51, abs(v{2}), abs(v{3})
v_add_f32 v52, abs(v{4}), abs(v{5})
v_add_f32 v53, abs(v{6}), abs(v{7})
v_cmp_le_f32 s[28:29], s44, v{8}
v_add_f32 v50, v50, v51
v_add_f32 v52, v52, v53
v_cmp_ge_f32 s[30:31], s45, v{8}
v_add_f32 v50, v50, v52
v_cmp_ge_f32 s[32:33], s46, v50
s_and_b64 s[28:29], s[28:29], s[30:31]
s_nop 0
s_and_b64 s[28:29], s[28:29], s[32:33]
s_cmp_eq_u64 s[28:29], -1
s_cbranch_scc0 {9}
L_fin:'''.format(*(list(range(F, F + 9)) + ['L_fin' if 'swp' in OPT else 'L_slow'])))
    for j in range(8):
        a('v_mul_f32 v%d, v%d, v48' % (F + j, F + j))
    for j in range(4):
        a('v_cvt_pk_bf16_f32 v%d, v%d, v%d' % (52 + j, F + 2 * j, F + 2 * j + 1))
    a('buffer_store_dwordx4 v[52:55], v5, s[8:11], s54 offen sc1')
    jitter(a, 13)
    lds_add(a, 13, 3, C_O)
    stamp(a, 11)
    a('s_cmp_ge_u32 s3, 8')
    a('s_cbranch_scc1 L_bend')
    a('s_load_dwordx4 s[32:35], s[0:1], 88')
    a('s_waitcnt lgkmcnt(0)')
    srd(a, 16, 34, 2048 * 2048)
    AC = [20, 36]
    OFR, WR = 56, 88

    def wo_frags(g):
        for cc in range(4):
            for n in range(2):
                for nt in range(2):
                    for rd in range(2):
                        a('ds_read_b64_tr_b16 %s, v%d offset:%d' % (vr(WR + 16 * cc + 8 * n + 4 * nt + 2 * rd, 2), (160, 161)[nt],
                                                                    g * 32768 + cc * 4096 + n * 2048 + rd * 1024))

    def o_loads(cc):
        a('''s_add_u32 s38, s51, %d
s_and_b32 s38, s38, 7
s_lshl_b32 s30, s38, 12
s_add_u32 s30, s30, s53
buffer_load_dwordx4 %s, v5, s[8:11], s30 offen sc1
buffer_load_dwordx4 %s, v5, s[8:11], s30 offen offset:1024 sc1''' % (cc, vr(OFR + 8 * cc, 4), vr(OFR + 8 * cc + 4, 4)))

    def o_mfma(cc, first):
        for n in range(2):
            for nt in range(2):
                a(mfma(AC[nt], WR + 16 * cc + 8 * n + 4 * nt, OFR + 8 * cc + 4 * n, None if first and n == 0 else AC[nt]))

    def poll_half(g, nap):
        lp, le = label('hp'), label('he')
        a('s_mov_b32 s23, 0')
        a('s_mov_b32 s66, 0')
        a(lp + ':')
        for cc in range(4):
            e = label('ls')
            a('s_bitcmp1_b32 s23, %d' % cc)
            a('s_cbranch_scc1 %s' % e)
            o_loads(cc)
            a(e + ':')
        a('s_add_u32 s66, s66, 1')
        a('s_waitcnt vmcnt(0) lgkmcnt(0)')
        for cc in range(4):
            e, gl = label('lc'), label('lg')
            b = OFR + 8 * cc
            a('''s_bitcmp1_b32 s23, {cc}
s_cbranch_scc1 {e}
v_max3_u32 v1, v{0}, v{1}, v{2}
v_max3_u32 v2, v{3}, v{4}, v{5}
v_max3_u32 v1, v1, v{6}, v{7}
v_max_u32 v1, v1, v2
v_cmp_eq_u32 vcc, -1, v1
s_cmp_ge_u32 s66, {n}
s_cbranch_scc1 {g}
s_cbranch_vccnz {e}
{g}:
s_bitset1_b32 s23, {cc}'''.format(*range(b, b + 8), cc=cc, e=e, g=gl, n=SPIN_MAX))
            o_mfma(cc, False)
            a(e + ':')
        a('''s_cmp_eq_u32 s23, 15
s_cbranch_scc1 %s
s_sleep %s
s_branch %s
%s:''' % (le, nap, lp, le))

    if WOW == 'end':
        wo_dma()
    for j in range(32):
        a('v_mov_b32 v%d, 0' % (AC[0] + j))
    a('s_lshl_b32 s26, s49, 2')
    a('v_add_u32 v8, s26, v12')
    a('s_waitcnt vmcnt(%d)' % (WOW != 'end'))
    a('''v_cmp_eq_u32 vcc, s7, v1
s_nop 1
s_cmp_eq_u64 vcc, -1
s_cbranch_scc1 L_mok''')
    flag_poll_lazy(a, 163, 1, 52, 8)
    a('L_mok:')
    if WOW == 'mid':
        lds_spin(a, 12, 3, C_Y2, 4, nap=8)
    else:
        lds_add(a, 8, 3, C_W)
        lds_spin(a, 8, 3, C_W, 2)
    wo_frags(0)
    a('s_sleep %s' % OPTV.get('ein', '28' if WOW != 'end' else '16'))
    poll_half(0, OPTV.get('esl', '8'))
    wo_frags(1)
    a('s_add_u32 s53, s53, 2048')
    lds_spin(a, 12, 3, C_Y2, 4, nap=2)
    stamp(a, 10)
    lds_spin(a, 12, 3, C_O1, 4, nap=2)
    if 'lin' in OPTV:
        a('s_sleep %s' % OPTV['lin'])
    poll_half(1, OPTV.get('lsl', '6'))
    jitter(a, 14)
    stamp(a, 12)
    a('''v_mov_b32 v3, 1
s_cmp_eq_u32 s49, 0
s_nop 12
s_cbranch_scc0 L_r1''')
    for own in range(2):
        if own:
            a('L_r1:')
        for j in range(4):
            a('ds_write_b128 v164, %s offset:%d' % (vr(AC[1 - own] + 4 * j, 4), 1024 * j))
        a('ds_write_b32 v166, v3 offset:%d' % C_P3)
        if not own:
            a('s_branch L_r2')
    a('''L_r2:
s_mov_b32 s66, 0
L_rw:
ds_read_b32 v3, v167 offset:%d''' % C_P3)
    for j in range(4):
        a('ds_read_b128 %s, v165 offset:%d' % (vr(64 + 4 * j, 4), 1024 * j))
    a('''s_add_u32 s66, s66, 1
s_waitcnt lgkmcnt(0)
v_readfirstlane_b32 s67, v3
s_cmp_ge_u32 s66, %d
s_cbranch_scc1 L_re
s_cmp_eq_u32 s67, 0
s_cbranch_scc1 L_rw
L_re:''' % (SPIN_MAX * 4))
    a('s_cmp_eq_u32 s49, 0')
    a('s_cbranch_scc0 L_r3')
    for own in range(2):
        if own:
            a('L_r3:')
        for j in range(16):
            a('v_add_f32 v%d, v%d, v%d' % (64 + j, AC[own] + j, 64 + j))
        if not own:
            a('s_branch L_r4')
    a('L_r4:')
    for j in range(8):
        a('v_cvt_pk_bf16_f32 v%d, v%d, v%d' % (80 + j, 64 + 2 * j, 65 + 2 * j))
    st3 = OPTV.get('st3', '').replace('+', ' ')
    a('buffer_store_dwordx4 v[80:83], v162, s[16:19], s50 offen' + st3)
    a('buffer_store_dwordx4 v[84:87], v162, s[16:19], s50 offen offset:16' + st3)
    if 'dbgt' in OPT:
        a('s_waitcnt vmcnt(0)')
        a('s_memrealtime s[78:79]')
        a('s_load_dwordx2 s[36:37], s[0:1], 104')
        a('s_waitcnt lgkmcnt(0)')
        srd(a, 12, 36, 256)
        a('v_mov_b32 v2, 0')
        a('s_mov_b64 exec, 1')
        for i in range(5):
            a('s_sub_u32 s66, s%d, s7' % (70 + 2 * i))
            a('s_add_u32 s66, s66, 1000')
            a('v_mov_b32 v1, s66')
            a('buffer_atomic_umax v1, v2, s[12:15], 0 offen offset:%d sc1' % (4 + 4 * i))
            a('s_sub_u32 s66, 100000, s66')
            a('v_mov_b32 v3, s66')
            a('buffer_atomic_umax v3, v2, s[12:15], 0 offen offset:%d sc1' % (36 + 4 * i))
        a('s_mov_b64 exec, -1')
        a('s_waitcnt vmcnt(0)')
    a('L_bend:')
    if 'enc' in OPTV:
        e = OPTV['enc']
        if e != 'skew':
            a('s_cmp_eq_u32 s2, %s' % OPTV.get('ewg', '0'))
            a('s_cbranch_scc0 L_encd')
        a('s_cmp_eq_u32 s3, 8')
        a('s_cbranch_scc0 L_encd')
        a('s_waitcnt lgkmcnt(0)')
        a('s_sub_u32 s94, s92, s90' if e not in ('f', 'skew') else 's_mov_b32 s94, 0')
        a('s_add_u32 s94, s94, 6000')
        a('''L_encw:
s_memrealtime s[96:97]
s_waitcnt lgkmcnt(0)
s_sub_u32 s96, s96, s90
s_cmp_lt_u32 s96, s94
s_cbranch_scc1 L_encw
L_encd:''')
    stamp_dump(a)
    a('s_endpgm')

    for t in ('',):
        OS, SS, M, PS, KS, MX = 80, 16, 64, 48, 104, 58
        a('''L_slow%s:
v_mov_b32 v%d, 0xff800000
s_mov_b32 s42, 0
L_s1%s:
buffer_load_dwordx4 %s, v%d, s[8:11], s42 offen sc1
s_waitcnt vmcnt(0)
%s
s_nop 15''' % (t, MX, t, vr(KS, 4), KA, mfma(SS, KS, Q[1], None)))
        for j in range(8):
            a('v_max3_f32 v%d, v%d, v%d, v%d' % (MX, MX, SS + 2 * j, SS + 2 * j + 1))
        a('''s_add_u32 s42, s42, 1024
s_cmp_lt_u32 s42, 0x10000
s_cbranch_scc1 L_s1%s
v_mov_b32 v%d, v%d
s_nop 1
v_permlane32_swap_b32 v%d, v%d
s_nop 1
v_max_f32 v%d, v%d, v%d''' % (t, MX + 1, MX, MX, MX + 1, MX, MX, MX + 1))
        for j in range(16):
            a('v_sub_f32 v%d, 0, v%d' % (M + j, MX))
            a('v_mov_b32 v%d, 0' % (OS + j))
        a('''s_mov_b32 s42, 0
L_s2%s:
buffer_load_dwordx4 %s, v%d, s[8:11], s42 offen sc1
s_mov_b64 exec, s[40:41]
buffer_load_dwordx4 %s, v%d, s[8:11], s42 offen sc1
buffer_load_dwordx4 %s, v%d, s[8:11], s42 offen offset:512 sc1
s_mov_b64 exec, -1
s_waitcnt vmcnt(0)
%s
s_nop 15''' % (t, vr(KS, 4), KA, vr(V[0][0], 4), VA, vr(V[0][1], 4), VA, mfma(SS, KS, Q[1], M)))
        for j in range(16):
            a('v_exp_f32 v%d, v%d' % (SS + j, SS + j))
        a('s_nop 0')
        for j in range(8):
            a('v_cvt_pk_bf16_f32 v%d, v%d, v%d' % (PS + j, SS + 2 * j, SS + 2 * j + 1))
        a('s_nop 1')
        a(mfma(OS, V[0][0], PS, OS))
        a(mfma(OS, V[0][1], PS + 4, OS))
        a('''s_add_u32 s42, s42, 1024
s_cmp_lt_u32 s42, 0x10000
s_cbranch_scc1 L_s2%s
s_nop 15''' % t)
        a('''v_rcp_f32 v48, v88
s_nop 0
s_branch L_fin''')
    a('''L_end:
s_endpgm''')
    return a.text()


def main(path):
    KN = NAME + '_kernel'
    t = kernel()
    hdr = '''; @launch grid=(256,1,1) block=(768,1,1) lds=%d
; One launch, one workgroup of 12 waves per CU (256 workgroups, all resident; surplus workgroups exit at once).
; Workgroup = (64-token block tb, quad of heads hq) for the attention branch and 2 channels for the S4 branch.
;  phase 1  waves 4-7 stream x / wqkv tiles into an LDS ring, waves 8-11 compute the K, V, Q tiles (MFMA);
;           K and V go to the workspace in MFMA fragment order, Q stays in LDS. Waves 0-3 build the S4 kernel
;           K[l] = Re sum_n C_n dB_n exp(dt A_n lq(l)) (lq = position rounded to bf16, as in the reference) as a
;           product of two power tables on the matrix core; Dskip is added to K[0]. A tile of u is transposed.
;  phase 2  waves 4-11: softmax(QK^T)V, exp2 of the scaled scores without a shift, row sums from a ones row of V.
;           A run-time check (row sum inside [2^-64, 2^64] and finite outputs) sends a tile to L_slow, which redoes
;           it with the exact row maximum. Waves 0-3: causal convolution as Toeplitz MFMAs, transposition of y.
;  phase 3  waves 4-7: output projection of the (tb, 64-column) tile.
; Hand-offs between workgroups: write-through stores, drained, then a flag word carrying this launch's tag
; (a clock value that workgroup 0 puts into the zeroed debug buffer); attention outputs replace a marker that
; their producer wrote (and announced) earlier, so readers recognise every dword. All waits are bounded;
; s_sleep only backs off inside these waits.
.amdgcn_target "amdgcn-amd-amdhsa--gfx950"
.text
.globl %s
''' % (LDS_BYTES, KN)
    pad = '.p2align 8\n.fill 4096, 4, 0xbf800000\n'
    kd = '''.section .rodata,"a"
.p2align 6
.amdhsa_kernel %s
  .amdhsa_next_free_vgpr 168
  .amdhsa_next_free_sgpr 102
  .amdhsa_accum_offset 168
  .amdhsa_group_segment_fixed_size 0
  .amdhsa_kernarg_size 120
  .amdhsa_user_sgpr_count 2
  .amdhsa_user_sgpr_kernarg_segment_ptr 1
  .amdhsa_system_sgpr_workgroup_id_x 1
.end_amdhsa_kernel
''' % KN
    open(path, 'w').write(hdr + t + pad + kd)


if __name__ == '__main__':
    for arg in sys.argv[1:]:
        OPT.add(arg)
        if '=' in arg:
            OPTV[arg.split('=')[0]] = arg.split('=')[1]
    DIAG = 'diag' in OPT
    main(sys.argv[1] if len(sys.argv) > 1 else 'cdna_kernels/%s.s' % NAME)
```

```python
import sys
import struct

NAME = 'concat_heads__ssm_conv_s4__softmax_full_mha__prompt'

KF = 0x200000
VF = 0x400000
OF = 0x600000
RS = 4224
UT = 0x800000
YT = 0x1400000
FL1 = 0xC00000
FLU = 0xC04000
FL2 = 0xC08000
FL3 = 0xC10000
WS_BYTES = 0x2000000

GEN = 6 * 16384
LDS_BYTES = GEN + 65536
QX = 65536
USI = 74752
USO = 82944
OX = 65536
YI = 73728
CNT = 94208
C_TAG, C_KV, C_GO, C_PAIR, C_CONV, C_O, C_Y, C_GOU, C_GOY, C_Y2, C_X = 0, 4, 8, 80, 24, 16, 32, 36, 40, 44, 48
C_U, C_P3, C_O1, C_Q, C_W = 12, 96, 20, 116, 120
KCOPY = 4096
ZOFF = 640
UIMG = 9216

LOG2E = 1.4426950408889634
QSCALE = 0.25 * LOG2E
OPT = set()
OPTV = {}
DIAG = False
DIAG_BASE = 0xF00000
ST0 = 70
SPIN_MAX = 1 << 19
ROWS = {0: [0, 1, 2, 3, 4, 5, 6, 7, 8, 1024, 1032, 1280, 1288, 1536, 1544, None],
        1: [256, 258, 260, 262, 264, 512, 516, 520, 768, 772, 776, 1792, 1800, None, None, None]}


def f2u(x):
    return struct.unpack('<I', struct.pack('<f', x))[0]


class A:
    def __init__(self):
        self.L = []

    def __call__(self, s):
        for line in s.split('\n'):
            line = line.strip()
            if not line:
                continue
            if line.endswith(':') or line.startswith('.'):
                self.L.append(line)
            else:
                self.L.append('    ' + line)

    def text(self):
        return '\n'.join(self.L) + '\n'


def vr(a, n=1):
    return 'v%d' % a if n == 1 else 'v[%d:%d]' % (a, a + n - 1)


def sr(a, n=1):
    return 's%d' % a if n == 1 else 's[%d:%d]' % (a, a + n - 1)


def srd(a, dst, base, nbytes):
    a('s_mov_b32 s%d, s%d' % (dst, base))
    a('s_mov_b32 s%d, s%d' % (dst + 1, base + 1))
    a('s_mov_b32 s%d, 0x%x' % (dst + 2, nbytes))
    a('s_mov_b32 s%d, 0x00020000' % (dst + 3))


def mfma(d, x, y, c):
    cs = '0' if c is None else vr(c, 16)
    return 'v_mfma_f32_32x32x16_bf16 %s, %s, %s, %s' % (vr(d, 16), vr(x, 4), vr(y, 4), cs)


def cmul_many(a, items):
    for d, x, y in items:
        a('v_mul_f32 v%d, v%d, v%d' % (d, x, y))
        a('v_mul_f32 v%d, v%d, v%d' % (d + 1, x + 1, y))
    for d, x, y in items:
        a('v_fma_f32 v%d, -v%d, v%d, v%d' % (d, x + 1, y + 1, d))
        a('v_fmac_f32 v%d, v%d, v%d' % (d + 1, x, y + 1))


def stamp(a, i, real=False):
    if DIAG and ('se' not in OPT or i in (0, 13) or str(i) in OPTV.get('only', '').split(',')):
        a('%s s[%d:%d]' % ('s_memrealtime' if real or 'rt' in OPT else 's_memtime', ST0 + 2 * i, ST0 + 2 * i + 1))


def stamp_dump(a, n=14):
    if DIAG:
        a('s_waitcnt vmcnt(0)')
        stamp(a, 13, True)
        a('s_waitcnt lgkmcnt(0)')
        a('s_lshl_b32 s68, s2, 4')
        a('s_add_u32 s68, s68, s3')
        a('s_lshl_b32 s68, s68, 6')
        a('s_add_u32 s68, s68, %d' % DIAG_BASE)
        a('v_mov_b32 v1, 0')
        a('s_mov_b64 exec, 1')
        for i in range(n):
            a('v_mov_b32 v2, s%d' % (ST0 + 2 * i))
            a('buffer_store_dword v2, v1, s[8:11], s68 offen offset:%d' % (4 * i))
        a('s_mov_b64 exec, -1')


def jitter(a, k):
    if 'jit' in OPTV:
        l = label('jt')
        a('''s_mul_i32 s69, s2, %d
s_add_u32 s69, s69, s3
s_mul_i32 s69, s69, %d
s_lshr_b32 s69, s69, 7
s_and_b32 s69, s69, 3
s_cmp_lg_u32 s69, 0
s_cbranch_scc1 %s
s_sleep %s
%s:''' % (13 + 2 * k, 0x9e37 + 64 * k + int(OPTV.get('js', 0)), l, OPTV['jit'], l))


_lab = [0]


def label(p):
    _lab[0] += 1
    return 'L_%s%d' % (p, _lab[0])


def lds_spin(a, va, vt, off, thr, st=66, nap=1):
    l, e = label('sp'), label('se')
    a('''s_mov_b32 s%d, 0
%s:
ds_read_b32 v%d, v%d offset:%d
s_add_u32 s%d, s%d, 1
s_waitcnt lgkmcnt(0)
v_readfirstlane_b32 s%d, v%d
s_cmp_ge_u32 s%d, %d
s_cbranch_scc1 %s
s_cmp_ge_u32 s%d, %d
s_cbranch_scc1 %s
s_sleep %d
s_branch %s
%s:''' % (st, l, vt, va, off, st, st, st + 1, vt, st, SPIN_MAX, e, st + 1, thr, e, nap, l, e))


def lds_add(a, va, vt, off):
    a('''v_mov_b32 v%d, 1
s_mov_b64 exec, 1
ds_add_u32 v%d, v%d offset:%d
s_mov_b64 exec, -1''' % (vt, va, vt, off))


def arrive_publish(a, va, vt, off, nwaves, sflag, vz):
    e = label('np')
    a('''v_mov_b32 v%d, 1
s_mov_b64 exec, 1
ds_add_rtn_u32 v%d, v%d, v%d offset:%d
v_mov_b32 v%d, 0
s_waitcnt lgkmcnt(0)
v_readfirstlane_b32 s66, v%d
v_mov_b32 v%d, s7
s_cmp_eq_u32 s66, %d
s_cbranch_scc0 %s
buffer_store_dword v%d, v%d, s[8:11], s%d offen sc1
%s:
s_mov_b64 exec, -1''' % (vt, vt, va, vt, off, vz, vt, vt, nwaves - 1, e, vt, vz, sflag, e))


def flag_poll(a, voff, vt, vt2, sbase):
    l, e = label('fp'), label('fe')
    ld = 'buffer_load_dword v%d, v%d, s[8:11], s%d offen sc1'
    a('''s_mov_b32 s66, 0
%s
s_sleep 4
%s:
%s
s_waitcnt vmcnt(1)
v_cmp_eq_u32 vcc, s7, v%d
s_add_u32 s66, s66, 1
s_cmp_eq_u64 vcc, -1
s_cbranch_scc1 %s
s_sleep 2
%s
s_waitcnt vmcnt(1)
v_cmp_eq_u32 vcc, s7, v%d
s_cmp_ge_u32 s66, %d
s_cbranch_scc1 %s
s_cmp_eq_u64 vcc, -1
s_cbranch_scc0 %s
%s:''' % (ld % (vt, voff, sbase), l, ld % (vt2, voff, sbase), vt, e, ld % (vt, voff, sbase), vt2, SPIN_MAX, e, l, e))


def flag_poll_lazy(a, voff, vt, sbase, nap):
    l, e = label('fp'), label('fe')
    a('''s_mov_b32 s66, 0
%s:
buffer_load_dword v%d, v%d, s[8:11], s%d offen sc1
s_add_u32 s66, s66, 1
s_waitcnt vmcnt(0)
v_cmp_eq_u32 vcc, s7, v%d
s_cmp_ge_u32 s66, %d
s_cbranch_scc1 %s
s_cmp_eq_u64 vcc, -1
s_cbranch_scc1 %s
s_sleep %d
s_branch %s
%s:''' % (l, vt, voff, sbase, vt, SPIN_MAX, e, e, nap, l, e))


def tag_check(a, vt, vz, srd0):
    l, e = label('tp'), label('te')
    a('''s_mov_b32 s66, 0
%s:
v_readfirstlane_b32 s7, v%d
s_add_u32 s66, s66, 1
s_cmp_lg_u32 s7, 0
s_cbranch_scc1 %s
s_cmp_ge_u32 s66, %d
s_cbranch_scc1 %s
buffer_load_dword v%d, v%d, s[%d:%d], 0 offen sc1
s_waitcnt vmcnt(0)
s_branch %s
%s:''' % (l, vt, e, SPIN_MAX, e, vt, vz, srd0, srd0 + 3, l, e))


def kgen_stream():
    a = A()
    P = 20
    for i in range(8):
        a('v_lshlrev_b32 %s, 16, %s' % (vr(P + i), vr(P + i)))
    Are, Aim, Bre, Bim, Cre, Cim, LDT, DSK = range(P, P + 8)
    a('v_mul_f32 v%d, s51, v%d' % (LDT, LDT))
    a('v_exp_f32 v%d, v%d' % (LDT, LDT))
    a('s_nop 0')
    a('v_cvt_pk_bf16_f32 v%d, v%d, v%d' % (LDT, LDT, LDT))
    a('v_lshlrev_b32 v%d, 16, v%d' % (LDT, LDT))
    a('v_mul_f32 v%d, v%d, v%d' % (Are, LDT, Are))
    a('v_mul_f32 v%d, v%d, v%d' % (Aim, LDT, Aim))
    a('v_mul_f32 v%d, v%d, v%d' % (Bre, LDT, Bre))
    a('v_mul_f32 v%d, v%d, v%d' % (Bim, LDT, Bim))
    a('v_mul_f32 v%d, s51, v%d' % (Are, Are))
    a('v_mul_f32 v%d, 0.15915494, v%d' % (Aim, Aim))
    G = [32 + 2 * i for i in range(32)]
    W = [96 + 2 * i for i in range(9)]
    Z1, Z2, Z4, Z32 = 114, 116, 118, 120
    ZB = {256: 122, 512: 124, 768: 126, 1024: 128, 1280: 130, 1536: 132, 1792: 134}
    T0, PK, AD = 136, 146, 154
    R = {}
    nxt = 32
    for h in (0, 1):
        for e in ROWS[h]:
            if e is None:
                continue
            if e <= 8:
                R[e] = W[e]
            else:
                R[e] = nxt
                nxt += 2
    cmul_many(a, [(W[0], Cre, Bre)])
    direct = [(Z1, 1.0), (G[1], 8.0), (Z32, 32.0), (ZB[256], 256.0), (ZB[1024], 1024.0)]
    for i, (z, e) in enumerate(direct):
        a('v_mul_f32 v%d, 0x%x, v%d' % (T0 + 2 * i, f2u(e), Are))
        a('v_mul_f32 v%d, 0x%x, v%d' % (T0 + 2 * i + 1, f2u(e), Aim))
    for i, (z, e) in enumerate(direct):
        a('v_exp_f32 v%d, v%d' % (T0 + 2 * i, T0 + 2 * i))
        a('v_fract_f32 v%d, v%d' % (T0 + 2 * i + 1, T0 + 2 * i + 1))
    for i, (z, e) in enumerate(direct):
        a('v_cos_f32 v%d, v%d' % (z, T0 + 2 * i + 1))
        a('v_sin_f32 v%d, v%d' % (z + 1, T0 + 2 * i + 1))
    a('v_mov_b32 v%d, 1.0' % G[0])
    a('v_mov_b32 v%d, 0' % (G[0] + 1))
    for i, (z, e) in enumerate(direct):
        a('v_mul_f32 v%d, v%d, v%d' % (z, z, T0 + 2 * i))
        a('v_mul_f32 v%d, v%d, v%d' % (z + 1, z + 1, T0 + 2 * i))
    cmul_many(a, [(G[2], G[1], G[1]), (Z2, Z1, Z1), (W[1], W[0], Z1), (W[8], W[0], G[1]), (ZB[512], ZB[256], ZB[256]),
                  (ZB[1280], ZB[1024], ZB[256]), (G[5], G[1], Z32)])
    a('v_mov_b32 v%d, v%d' % (G[4], Z32))
    a('v_mov_b32 v%d, v%d' % (G[4] + 1, Z32 + 1))
    cmul_many(a, [(G[3], G[2], G[1]), (Z4, Z2, Z2), (W[2], W[0], Z2), (W[3], W[1], Z2), (ZB[768], ZB[512], ZB[256]),
                  (ZB[1536], ZB[1024], ZB[512]), (G[6], G[2], Z32)])
    cmul_many(a, [(G[7], G[3], Z32), (W[4], W[0], Z4), (W[5], W[1], Z4), (W[6], W[2], Z4), (W[7], W[3], Z4),
                  (ZB[1792], ZB[1024], ZB[768])])
    for i0 in range(8, 32, 4):
        cmul_many(a, [(G[i], G[i - 4], Z32) for i in range(i0, i0 + 4)])
    nvalu = len(a.L)
    for c in range(8):
        a('v_xor_b32 v%d, %d, v13' % (AD + c, c << 4))
    rowidx = [None] * 32
    for h in (0, 1):
        for r in range(16):
            rowidx[8 * (r >> 2) + 4 * h + (r & 3)] = ROWS[h][r]
    nput = [0]

    def put(c, regs, neg, off):
        pk = PK + 4 * (nput[0] & 1)
        nput[0] += 1
        for j in range(4):
            a('v_cvt_pk_bf16_f32 v%d, %sv%d, %sv%d' % (pk + j, neg, regs[2 * j], neg, regs[2 * j + 1]))
        a('ds_write_b128 v%d, %s%s' % (AD + c, vr(pk, 4), off))

    for c in range(8):
        put(c, [G[8 * (c & 3) + j] + (c >> 2) for j in range(8)], '', '')
    big = [e for e in R if e > 8]
    items = [(R[e], W[e & 255], ZB[e & ~255]) for e in big]
    for i0 in range(0, len(items), 5):
        cmul_many(a, items[i0:i0 + 5])
    for c in range(8):
        comp = c >> 2
        regs = [(R[e] if e is not None else W[0]) + comp for e in rowidx[8 * (c & 3):8 * (c & 3) + 8]]
        put(c, regs, '-' if comp else '', ' offset:8192')
    a('s_waitcnt lgkmcnt(0)')
    KD, FR, NB = 32, 48, 4

    def gen_reads(s):
        off = s * 1024
        b = FR + 8 * (s % NB)
        a('ds_read_b64_tr_b16 %s, v14 offset:%d' % (vr(b, 2), off + 8192))
        a('ds_read_b64_tr_b16 %s, v15 offset:%d' % (vr(b + 2, 2), off + 8192))
        a('ds_read_b64_tr_b16 %s, v14 offset:%d' % (vr(b + 4, 2), off))
        a('ds_read_b64_tr_b16 %s, v15 offset:%d' % (vr(b + 6, 2), off))

    for s in range(3):
        gen_reads(s)
    for s in range(8):
        if s + 3 < 8:
            gen_reads(s + 3)
        a('s_waitcnt lgkmcnt(%d)' % (4 * min(3, 7 - s)))
        b = FR + 8 * (s % NB)
        a(mfma(KD, b, b + 4, None if s == 0 else KD))
    a('s_nop 15')
    for j in range(4):
        a('ds_write_b128 v16, %s offset:%d' % (vr(KD + 4 * j, 4), 1024 * j))
    a('s_waitcnt lgkmcnt(0)')
    return a.L, nvalu


def transpose_addrs(a, sw, vrd, vwr, vlin, t0, t1, usi, uso):
    a('''v_lshrrev_b32 v{t0}, 4, v4
v_bfe_u32 v{t1}, v4, 2, 2
v_lshl_add_u32 v{t1}, v{t0}, 3, v{t1}
v_lshlrev_b32 v{rd}, 7, v{t1}
v_and_b32 v{t1}, 3, v4
v_lshl_add_u32 v{rd}, v{t1}, 3, v{rd}
s_lshl_b32 s66, s{w}, 5
s_add_u32 s66, s66, {usi}
v_add_u32 v{rd}, s66, v{rd}
v_and_b32 v{t1}, 7, v4
v_xor_b32 v{t0}, v{t0}, v{t1}
v_lshlrev_b32 v{t0}, 4, v{t0}
v_and_b32 v{t1}, 15, v4
v_lshl_add_u32 v{wr}, v{t1}, 7, v{t0}
s_lshl_b32 s66, s{w}, 11
s_add_u32 s66, s66, {uso}
v_add_u32 v{wr}, s66, v{wr}
v_lshl_add_u32 v{lin}, v4, 4, s66
v_lshrrev_b32 v{t0}, 3, v4
v_and_b32 v{t1}, 7, v4
v_xor_b32 v{t1}, v{t1}, v{t0}'''.format(t0=t0, t1=t1, rd=vrd, wr=vwr, lin=vlin, w=sw, usi=usi, uso=uso))


def transpose_a(a, vrd, vwr, d, t):
    a('''ds_read_b64_tr_b16 v[{d0}:{d1}], v{rd}
ds_read_b64_tr_b16 v[{d2}:{d3}], v{rd} offset:512
ds_read_b64_tr_b16 v[{d4}:{d5}], v{rd} offset:4096
ds_read_b64_tr_b16 v[{d6}:{d7}], v{rd} offset:4608
v_xor_b32 v{t}, 64, v{wr}
s_waitcnt lgkmcnt(2)
ds_write_b128 v{wr}, v[{d0}:{d3}]
s_waitcnt lgkmcnt(1)
ds_write_b128 v{t}, v[{d4}:{d7}]
s_waitcnt lgkmcnt(0)'''.format(rd=vrd, wr=vwr, t=t, **{'d%d' % i: d + i for i in range(8)}))


def kernel():
    a = A()
    KN = NAME + '_kernel'
    a('''.p2align 8
.type {k},@function
{k}:
s_cmp_ge_u32 s2, 256
s_cbranch_scc1 L_end
s_load_dwordx16 s[16:31], s[0:1], 8
s_load_dwordx4 s[32:35], s[0:1], 72
s_load_dwordx4 s[36:39], s[0:1], 104'''.format(k=KN))
    stamp(a, 0, True)
    stamp(a, 1)
    if 'enc' in OPTV:
        a('s_memrealtime s[90:91]')
    a('''v_lshrrev_b32 v3, 6, v0
v_and_b32 v4, 63, v0
s_and_b32 s44, s2, 7
s_lshr_b32 s45, s2, 3
v_readfirstlane_b32 s3, v3
s_lshl_b32 s60, s44, 6
s_lshl_b32 s46, s45, 1
s_add_u32 s60, s60, s46
s_lshl_b32 s46, s60, 8
v_lshl_add_u32 v5, v0, 1, s46
s_lshr_b32 s4, s44, 1
s_lshl_b32 s4, s4, 3
s_and_b32 s46, s45, 7
s_add_u32 s4, s4, s46
s_and_b32 s5, s44, 1
s_lshl_b32 s5, s5, 2
s_lshr_b32 s47, s45, 3
s_add_u32 s5, s5, s47
s_lshl_b32 s47, s47, 1
%s
s_cmp_ge_u32 s3, 4
s_cbranch_scc1 L_gemm''' % {'0': 's_mov_b32 s6, 0', '1': 's_add_u32 s6, s46, s47', '2': 's_and_b32 s6, s46, 4', '3': 's_and_b32 s6, s46, 6'}[OPTV.get('rot', '1')])
    SEG = (1, 2, 0)
    S = [16, 32]
    Pp = [48, 56]
    O = [64, 80]
    Q = [96, 100]
    OWN = 'own' in OPT
    DK = int(OPTV.get('dk', 3))
    NB, NBV = DK + 1, DK + 1 if DK == 3 else DK
    K = [104 + 4 * b for b in range(NB)]
    V0 = 104 + 4 * NB
    V = [[V0 + 8 * b, V0 + 4 + 8 * b] for b in range(NBV)]
    KA, VA = 14, 15
    assert V0 + 8 * NBV <= 160

    WOW = OPTV.get('wow', 'mid')

    def wo_dma():
        srd(a, 12, 32, 512 * 1024)
        a('''v_lshrrev_b32 v6, 3, v4
v_lshlrev_b32 v6, 10, v6
v_bfe_u32 v7, v4, 4, 1
v_lshlrev_b32 v7, 2, v7
v_and_b32 v8, 7, v4
v_xor_b32 v7, v7, v8
v_lshl_add_u32 v6, v7, 4, v6
v_add_u32 v7, %d, v6
s_lshl_b32 s57, s48, 10
s_lshl_b32 s26, s49, 14
s_add_u32 s57, s57, s26
s_lshl_b32 s26, s5, 7
s_lshl_b32 s27, s48, 13
s_add_u32 s26, s26, s27''' % (16384 - 2048))
        for cc in range(4):
            a('s_add_u32 s38, s51, %d' % cc)
            a('s_and_b32 s38, s38, 7')
            a('s_lshl_b32 s30, s38, 16')
            for g in range(2):
                a('s_add_u32 m0, s57, %d' % (g * 32768 + cc * 4096))
                a('s_add_u32 s30, s30, s26' if g == 0 else 's_add_u32 s30, s30, 0x8000')
                a('buffer_load_dwordx4 v6, s[12:15], s30 offen lds')
                a('buffer_load_dwordx4 v7, s[12:15], s30 offen offset:2048 lds')

    def att_prologue(early):
        a('''s_lshr_b32 s19, s3, 3
s_and_b32 s18, s3, 1
s_lshl_b32 s24, s19, 1
s_add_u32 s18, s18, s24
s_bfe_u32 s24, s3, 0x10001
v_lshlrev_b32 v5, 4, v4
s_lshl_b32 s26, s18, 10
s_add_u32 s26, s26, %d
s_lshl_b32 s27, s24, 12
s_add_u32 s26, s26, s27
v_add_u32 v13, s26, v5
s_lshl_b32 s27, s5, 2
s_add_u32 s18, s18, s27
s_lshl_b32 s22, s18, 16
s_add_u32 s27, s22, %d
v_add_u32 v%d, s27, v5
s_lshl_b32 s36, s24, 10
%s
s_mov_b32 s37, s36
v_lshrrev_b32 v6, 5, v4
v_and_b32 v7, 15, v4
v_lshlrev_b32 v7, 4, v7
v_lshl_add_u32 v7, v6, 8, v7
s_add_u32 s27, s22, %d
v_add_u32 v%d, s27, v7
v_and_b32 v6, 31, v4
v_cmp_eq_u32 vcc, 16, v6
v_cmp_eq_u32 s[28:29], 20, v6
s_mov_b32 s30, 0x3f803f80
s_or_b64 vcc, vcc, s[28:29]
v_mov_b32 v7, s30
s_mov_b32 s40, 0xffff
s_mov_b32 s41, 0xffff
v_cndmask_b32 v6, 0, v7, vcc''' % (QX, KF, KA, 's_lshl_b32 s37, s4, 11\ns_add_u32 s36, s36, s37' if OWN else '', VF, VA))
        for b in range(NBV):
            for u in range(2):
                for j in range(4):
                    a('v_mov_b32 v%d, v6' % (V[b][u] + j))
        for q in range(2):
            for j in range(16):
                a('v_mov_b32 v%d, 0' % (O[q] + j))

        if early:
            a('''s_and_b32 s48, s3, 1
s_bfe_u32 s49, s3, 0x10001
v_lshrrev_b32 v8, 5, v4
v_bfe_u32 v160, v4, 2, 2
v_lshl_add_u32 v160, v8, 2, v160
v_lshlrev_b32 v160, 7, v160
v_bfe_u32 v9, v4, 3, 1
v_lshl_add_u32 v160, v9, 6, v160
v_and_b32 v9, 1, v4
v_lshl_add_u32 v160, v9, 5, v160
v_bfe_u32 v9, v4, 4, 1
v_lshl_add_u32 v160, v9, 4, v160
v_bfe_u32 v9, v4, 1, 1
v_lshl_add_u32 v160, v9, 3, v160
s_lshl_b32 s26, s49, 14
v_add_u32 v160, s26, v160
v_xor_b32 v161, 64, v160
v_and_b32 v162, 31, v4
v_lshlrev_b32 v162, 11, v162
v_lshl_add_u32 v162, v8, 5, v162
s_lshl_b32 s26, s4, 17
s_lshl_b32 s50, s48, 16
s_add_u32 s26, s26, s50
s_lshl_b32 s27, s5, 7
s_add_u32 s26, s26, s27
s_lshl_b32 s50, s49, 6
s_add_u32 s50, s50, s26
s_add_u32 s50, s50, 1024
s_lshl_b32 s51, s49, 2
s_add_u32 s51, s51, s5
v_and_b32 v163, 3, v4
v_add_u32 v163, s51, v163
v_and_b32 v163, 7, v163
v_lshlrev_b32 v163, 7, v163
s_lshl_b32 s52, s4, 10
s_add_u32 s52, s52, %d
s_lshl_b32 s53, s4, 16
s_lshl_b32 s26, s48, 15
s_add_u32 s53, s53, s26
s_add_u32 s53, s53, %d
s_sub_u32 s26, s3, 4
s_lshl_b32 s27, s26, 12
s_add_u32 s27, s27, %d
v_add_u32 v164, s27, v5
v_xor_b32 v165, 0x2000, v164
s_lshl_b32 s26, s26, 2
v_add_u32 v166, s26, v12
v_xor_b32 v167, 8, v166''' % (FL2, OF, GEN))
        else:
            a('v_mov_b32 v163, 0')
            a('s_mov_b32 s52, %d' % FL2)
        a('''s_lshl_b32 s54, s4, 1
s_add_u32 s54, s54, s24
s_lshl_b32 s54, s54, 15
s_lshl_b32 s26, s18, 10
s_add_u32 s54, s54, s26
s_add_u32 s54, s54, %d
v_mov_b32 v8, -1
v_mov_b32 v9, -1
v_mov_b32 v10, -1
v_mov_b32 v11, -1
s_lshl_b32 s55, s4, 3
s_add_u32 s55, s55, s5
s_lshl_b32 s55, s55, 7
s_add_u32 s55, s55, %d
buffer_store_dwordx4 v[8:11], v5, s[8:11], s54 offen sc1''' % (OF, FL2))


    a('''s_lshr_b32 s61, s3, 1
s_add_u32 s52, s60, s61
s_lshl_b32 s46, s52, 1
v_mov_b32 v19, s46
s_and_b32 s53, s3, 1
s_waitcnt lgkmcnt(0)''')
    P = 20
    a('global_load_ushort %s, v19, s[28:29]' % vr(P + 6))
    for i in range(6):
        a('global_load_ushort %s, v5, %s' % (vr(P + i), sr(16 + 2 * i, 2)))
    a('global_load_ushort %s, v19, s[30:31]' % vr(P + 7))
    a('''s_getpc_b64 s[40:41]
v_and_b32 v1, 7, v0
v_lshlrev_b32 v1, 7, v1
s_lshl_b32 s46, s45, 10
v_add_u32 v1, s46, v1
global_load_dword v2, v1, s[40:41]''')
    srd(a, 8, 38, WS_BYTES)
    srd(a, 12, 36, 256)
    a('''v_mov_b32 v18, 0
s_or_b32 s46, s2, s3
s_cmp_eq_u32 s46, 0
s_cbranch_scc0 L_notag
s_memrealtime s[46:47]
s_waitcnt lgkmcnt(0)
s_or_b32 s46, s46, 1
v_mov_b32 v1, s46
s_mov_b64 exec, 1
buffer_store_dword v1, v18, s[12:15], 0 offen sc1
s_mov_b64 exec, -1
s_waitcnt vmcnt(0)
L_notag:''')
    a('''s_lshl_b32 s62, s3, 14
s_add_u32 s62, s62, %d
v_and_b32 v10, 7, v4
v_lshlrev_b32 v10, 4, v10
v_lshl_add_u32 v13, v4, 7, v10
v_add_u32 v13, s62, v13
v_lshrrev_b32 v10, 5, v4
v_bfe_u32 v11, v4, 3, 1
v_lshl_add_u32 v10, v10, 2, v11
v_bfe_u32 v11, v4, 2, 1
v_lshlrev_b32 v11, 2, v11
v_bfe_u32 v12, v4, 4, 1
v_lshl_add_u32 v11, v12, 1, v11
v_bfe_u32 v12, v4, 1, 1
v_add_u32 v11, v11, v12
v_xor_b32 v11, v11, v10
v_lshlrev_b32 v11, 4, v11
v_lshl_add_u32 v11, v10, 7, v11
v_and_b32 v12, 1, v4
v_lshl_add_u32 v11, v12, 3, v11
v_add_u32 v14, s62, v11
v_xor_b32 v15, 32, v14
v_add_u32 v15, 256, v15
v_lshl_add_u32 v16, v4, 4, s62
v_xor_b32 v17, 0x4000, v16
v_mov_b32 v12, %d
s_mov_b32 s51, 0x%x''' % (GEN, CNT, f2u(LOG2E)))
    p1, nvalu = kgen_stream()
    sizes = [int(x) for x in OPTV.get('sl', '80,140,31').split(',')]
    cuts = [0]
    for z in sizes:
        cuts.append(min(len(p1), cuts[-1] + z))
    print('kgen instructions', len(p1), 'pure valu', nvalu, cuts, file=sys.stderr)
    a('s_load_dwordx4 s[32:35], s[0:1], 88')
    stamp(a, 2)
    jitter(a, 1)
    a('s_waitcnt vmcnt(1) lgkmcnt(0)')
    for c in range(16):
        if c < len(sizes):
            a.L += p1[cuts[c]:cuts[c + 1]]
        if c == 8:
            a('buffer_load_dword v1, v18, s[12:15], 0 offen sc1')
        if c == 14:
            a('s_waitcnt vmcnt(0)')
            tag_check(a, 1, 18, 12)
            a('''v_cmp_eq_u32 vcc, 0, v4
v_lshl_add_u32 v2, v4, 2, v12
s_cmp_eq_u32 s3, 0
v_cndmask_b32 v1, 0, v1, vcc
s_cbranch_scc0 L_tagd
ds_write_b32 v2, v1
s_waitcnt lgkmcnt(0)
L_tagd:''')
        a('s_barrier')
    a('s_barrier')
    stamp(a, 3)
    if 'noc' in OPT:
        lds_add(a, 12, 1, C_Y2)
        a('s_waitcnt lgkmcnt(0)')
        stamp_dump(a)
        a('s_endpgm')
    a('s_setprio %s' % OPTV.get('cprio', '3'))
    a('''s_lshl_b32 s46, s3, 11
s_add_u32 s46, s46, %d
v_lshl_add_u32 v6, v4, 4, s46
ds_read_b128 v[8:11], v6
ds_read_b128 v[28:31], v6 offset:1024
v_lshrrev_b32 v6, 3, v4
v_and_b32 v7, 7, v4
v_xor_b32 v7, v7, v6
v_mul_u32_u24 v6, %d, v6
v_lshl_add_u32 v6, v7, 4, v6
s_mul_i32 s46, s44, %d
s_mul_i32 s47, s3, %d
s_add_u32 s46, s46, s47
s_lshl_b32 s47, s45, 7
s_add_u32 s46, s46, s47
s_add_u32 s46, s46, %d
s_add_u32 s47, s46, %d
s_lshl_b32 s65, s44, 5
s_add_u32 s65, s65, s45
s_lshl_b32 s65, s65, 6
s_add_u32 s65, s65, %d
s_waitcnt lgkmcnt(1)
buffer_store_dwordx4 v[8:11], v6, s[8:11], s46 offen sc1
s_waitcnt lgkmcnt(0)
buffer_store_dwordx4 v[28:31], v6, s[8:11], s47 offen sc1''' % (USO, RS, 64 * RS, 16 * RS, UT, 8 * RS, FLU))
    srd(a, 16, 34, 2048 * 2048)
    srd(a, 12, 32, 512 * 1024)
    jitter(a, 2)
    a.L += p1[cuts[-1]:]
    jitter(a, 3)
    a('s_waitcnt vmcnt(0)')
    arrive_publish(a, 12, 1, C_U, 4, 65, 2)
    a('s_lshl_b32 s63, s61, 2')
    a('v_add_u32 v11, s63, v12')
    lds_add(a, 11, 1, C_PAIR)
    KD = 32
    a('''v_and_b32 v28, 31, v4
v_lshrrev_b32 v29, 5, v4
s_lshl_b32 s46, s53, 6
s_add_u32 s46, s46, s62
s_add_u32 s46, s46, %d
v_lshlrev_b32 v10, 4, v28
v_sub_u32 v18, s46, v10
v_cmp_eq_u32 s[56:57], 0, v4
s_mov_b32 s58, -1
s_mov_b32 s59, 0
s_mov_b32 s40, 0
s_mov_b32 s41, -1''' % (KCOPY + 255 * 16))
    for sl, (b0, b1) in enumerate([(0, 32), (128, 64)]):
        a('v_mul_i32_i24 v10, %d, v29' % ((b1 - b0) * 16))
        a('v_sub_u32 v%d, v18, v10' % (80 + sl))
        if b0:
            a('v_subrev_u32 v%d, %d, v%d' % (80 + sl, b0 * 16, 80 + sl))
    a('''v_subrev_u32 v82, %d, v18
v_lshrrev_b32 v10, 2, v28
v_lshlrev_b32 v10, 1, v10
v_lshl_add_u32 v10, v29, 5, v10
s_lshl_b32 s47, s53, 1
s_sub_u32 s47, s46, s47
s_add_u32 s48, s47, %d
v_sub_u32 v10, s48, v10
v_and_b32 v83, 3, v28
v_lshl_add_u32 v83, v83, 7, v10
v_bfe_u32 v84, v28, 1, 1
v_lshl_add_u32 v84, v84, 7, v10
s_add_u32 s48, s46, %d
v_lshl_add_u32 v85, v4, 4, s48
s_add_u32 s48, s47, %d
v_lshl_add_u32 v86, v4, 1, s48
s_mov_b32 s42, 0x55555555
s_mov_b32 s43, 0x55555555''' % (96 * 16, ZOFF + 62 - 32 - 255 * 16, 416 - 255 * 16, 490 - 255 * 16))
    a('''v_lshl_add_u32 v87, v4, 4, s46
v_add_u32 v87, 16, v87
s_lshl_b32 s64, s61, 15
s_add_u32 s64, s64, %d
s_lshl_b32 s47, s53, 1
v_add_u32 v10, s47, v29
v_mul_u32_u24 v10, 1536, v10
v_lshl_add_u32 v10, v28, 4, v10
v_add_u32 v10, s64, v10
v_mov_b32 v88, 0
v_mov_b32 v89, 0
v_mov_b32 v90, 0
v_mov_b32 v91, 0''' % (GEN + UIMG))
    lds_spin(a, 11, 1, C_PAIR, 2)
    a('ds_write_b128 v10, v[88:91]')
    a('ds_write_b128 v85, v[88:91]')
    for j in range(4):
        a('ds_read_b128 %s, v17 offset:%d' % (vr(48 + 4 * j, 4), 1024 * j))
    a('''v_mov_b32 v8, 0x3f80
s_mov_b64 exec, 0xff
ds_write_b16 v86, v8
s_mov_b64 exec, -1''')
    a('v_cndmask_b32 v9, 0, v27, s[56:57]')
    a('v_add_f32 v%d, v%d, v9' % (KD, KD))
    a('s_waitcnt lgkmcnt(0)')
    for j in range(16):
        a('v_add_f32 v%d, v%d, v%d' % (KD + j, KD + j, 48 + j))
    for i, r in enumerate((9, 11, 13)):
        a('v_sub_f32 v%d, v%d, v%d' % (48 + i, KD + r, KD + r + 1))
    for i, r in enumerate((9, 11, 13)):
        a('v_cvt_pk_bf16_f32 v%d, v%d, v%d' % (48 + i, KD + r + 1, 48 + i))
    a('v_cndmask_b32 v51, 0, v%d, s[56:57]' % (KD + 9))
    for i in (1, 0, 2):
        if i == 0:
            a('s_mov_b64 exec, s[58:59]')
        a('ds_write_b16 v83, v%d offset:%d' % (48 + i, 32 - 16 * i))
    a('s_mov_b64 exec, s[42:43]')
    for i in (1, 0, 2):
        if i == 0:
            a('s_mov_b32 exec_hi, 0')
        a('ds_write_b16_d16_hi v84, v%d offset:%d' % (48 + i, 512 + 32 - 16 * i))
    a('s_mov_b64 exec, -1')
    OB = 64

    def pack(dst, vals):
        for j in range(4):
            a('v_cvt_pk_bf16_f32 v%d, v%d, v%d' % (dst + j, vals[2 * j], vals[2 * j + 1]))

    def emit_copy(cp):
        k = lambda r: KD + r
        r0 = [k(i) for i in range(9)]
        r1 = [k(0), k(0), k(1), k(2), k(2), k(2), k(3), k(4), k(4)]
        r2 = lambda b: [k(b), k(b), k(b), k(b + 1), k(b + 1), k(b + 1), k(b + 2), k(b + 2), k(b + 2)]
        r3 = [51] * 4 + [89] * 5
        sel = (lambda p: p[8:0:-1]) if cp == 0 else (lambda p: p[7::-1])
        a('s_mov_b64 exec, s[58:59]')
        pack(OB, sel(r0))
        pack(OB + 4, sel(r3))
        a('s_mov_b64 exec, s[40:41]')
        pack(OB, sel(r1))
        pack(OB + 4, sel(r2(5)))
        pack(OB + 8, sel(r2(8)))
        a('s_mov_b64 exec, -1')
        if cp == 0:
            a('v_cvt_pk_bf16_f32 v10, v%d, v88' % KD)
            a('v_cndmask_b32 v88, 0, v10, s[56:57]')

    a('s_cmp_eq_u32 s53, 0')
    a('s_cbranch_scc0 L_copy1')
    emit_copy(0)
    a('s_branch L_copyd')
    a('L_copy1:')
    emit_copy(1)
    a('L_copyd:')
    for sl in range(2):
        a('ds_write_b128 v%d, %s' % (80 + sl, vr(OB + 4 * sl, 4)))
    a('s_mov_b64 exec, s[40:41]')
    a('ds_write_b128 v82, %s' % vr(OB + 8, 4))
    a('s_mov_b64 exec, 15')
    a('ds_write_b128 v87, v[88:91]')
    a('s_mov_b64 exec, -1')
    if 'x1' in OPT:
        lds_add(a, 12, 1, C_Y2)
        a('s_waitcnt lgkmcnt(0)')
        stamp_dump(a)
        a('s_endpgm')
    stamp(a, 4)
    a('''v_lshlrev_b32 v6, 6, v28
s_lshl_b32 s46, s44, 11
s_add_u32 s46, s46, %d
s_cmp_eq_u32 s3, 0
s_cbranch_scc0 L_uw''' % FLU)
    if 'usl' in OPTV:
        a('s_sleep %s' % OPTV['usl'])
    flag_poll_lazy(a, 6, 1, 46, int(OPTV.get('unap', 8)))
    lds_add(a, 12, 3, C_GOU)
    a('L_uw:')
    lds_spin(a, 12, 3, C_GOU, 1, nap=4)
    a('''v_lshlrev_b32 v6, 6, v4
s_mul_i32 s46, s52, %d
s_lshl_b32 s47, s53, 5
s_add_u32 s46, s46, s47
s_add_u32 s46, s46, %d
s_mul_i32 s47, s53, 3072
s_add_u32 s47, s47, s64
s_add_u32 m0, s47, 512
s_nop 0
buffer_load_dwordx4 v6, s[8:11], s46 offen sc1 lds
s_add_u32 m0, s47, 2048
s_add_u32 s46, s46, 16
buffer_load_dwordx4 v6, s[8:11], s46 offen sc1 lds''' % (RS, UT))
    a('''v_and_b32 v18, 30, v4
v_and_b32 v19, 1, v4
v_lshlrev_b32 v24, 3, v29
v_sub_u32 v24, v24, v18
v_add_u32 v24, 32, v24
v_lshlrev_b32 v24, 1, v24
v_mul_u32_u24 v19, %d, v19
v_add_u32 v24, v24, v19
s_add_u32 s46, s64, %d
v_add_u32 v24, s46, v24
s_lshl_b32 s46, s53, 9
s_add_u32 s46, s46, s64
s_add_u32 s46, s46, %d
v_mul_u32_u24 v25, 1536, v29
v_lshl_add_u32 v25, v28, 4, v25
v_add_u32 v25, s46, v25''' % (16384 + 64 - 4, KCOPY - UIMG + 32 * 120, 512 - 3 * 16))
    TB, UB, CA = 32, 40, 48
    CB = 64
    for j in range(16):
        a('v_mov_b32 v%d, 0' % (CA + j))
    a('''s_add_u32 s34, s53, 8
s_mov_b32 s35, 0
s_waitcnt vmcnt(0) lgkmcnt(0)''')
    lds_add(a, 12, 1, C_CONV)
    if WOW != 'win':
        a('''s_and_b32 s46, s45, 7
s_lshl_b32 s46, s46, 16
s_lshl_b32 s47, s5, 7
s_add_u32 s46, s46, s47
s_lshl_b32 s47, s3, 14
s_add_u32 s46, s46, s47
v_and_b32 v6, 15, v4
v_lshlrev_b32 v6, 10, v6
buffer_load_dword v31, v6, s[12:15], s46 offen''')
    lds_spin(a, 12, 1, C_CONV, 4)
    if 'x2' in OPT:
        lds_add(a, 12, 1, C_Y2)
        a('s_waitcnt lgkmcnt(0)')
        stamp_dump(a)
        a('s_endpgm')
    stamp(a, 5)
    jitter(a, 4)

    def conv_loop(lab, acc, send):
        a(lab + ':')
        for j in range(8):
            t = TB + 4 * (j & 1)
            if 'not' not in OPT or j == 0:
                a('ds_read2_b32 %s, v24 offset0:%d offset1:%d' % (vr(t, 2), 8 * (7 - j), 8 * (7 - j) + 1))
                a('ds_read2_b32 %s, v24 offset0:%d offset1:%d' % (vr(t + 2, 2), 8 * (7 - j) + 2, 8 * (7 - j) + 3))
            a('ds_read_b128 %s, v25 offset:%d' % (vr(UB + 4 * (j & 1), 4), (3072 if j % 2 == 0 else 0) + (3 - (j >> 1)) * 16))
            a('s_waitcnt lgkmcnt(0)')
            a(mfma(acc, UB + 4 * (j & 1), t, acc))
            if 'cs' in OPTV:
                a('s_sleep %s' % OPTV['cs'])
        a('''v_subrev_u32 v24, 256, v24
v_subrev_u32 v25, 64, v25
s_add_u32 s35, s35, 1
s_cmp_lt_u32 s35, %s
s_cbranch_scc1 %s''' % (send, lab))

    if 'noconv' not in OPT:
        conv_loop('L_cl', CA, 's34')
        a('''s_cmp_eq_u32 s53, 0
s_cbranch_scc0 L_cr
v_subrev_u32 v24, 1536, v24
v_add_u32 v25, 512, v25''')
        for j in range(3):
            t = 96 + 8 * j
            a('ds_read2_b32 %s, v24 offset0:%d offset1:%d' % (vr(t, 2), 8 * (7 - j), 8 * (7 - j) + 1))
            a('ds_read2_b32 %s, v24 offset0:%d offset1:%d' % (vr(t + 2, 2), 8 * (7 - j) + 2, 8 * (7 - j) + 3))
            a('ds_read_b128 %s, v25 offset:%d' % (vr(t + 4, 4), (3072 if j % 2 == 0 else 0) + (3 - (j >> 1)) * 16))
        a('''v_lshlrev_b32 v20, 1, v28
v_lshl_add_u32 v20, v29, 8, v20
s_add_u32 s46, s62, 64
v_add_u32 v20, s46, v20
v_mov_b32 v88, 0
v_and_b32 v10, 1, v4
v_xor_b32 v10, 1, v10
v_mul_u32_u24 v21, %d, v10
v_lshlrev_b32 v10, 3, v29
v_sub_u32 v10, v10, v28
v_lshl_add_u32 v21, v10, 1, v21
s_add_u32 s46, s62, %d
v_add_u32 v21, s46, v21
v_bfe_u32 v9, v4, 2, 2
v_lshl_add_u32 v9, v29, 3, v9
v_bfe_u32 v10, v4, 4, 1
v_lshlrev_b32 v10, 2, v10
v_and_b32 v8, 3, v4
v_add_u32 v10, v10, v8
v_lshlrev_b32 v22, 6, v9
v_lshl_add_u32 v22, v10, 3, v22
s_add_u32 s46, s62, 16
v_add_u32 v22, s46, v22
s_waitcnt lgkmcnt(6)''' % (16384 + 64 - 2, KCOPY + ZOFF + 62))
        a(mfma(CB, 100, 96, None))
        for r_, dst in ((0, 23), (1, 26)):
            a('''v_add_u32 v8, {o}, v10
v_and_b32 v7, 1, v8
v_lshlrev_b32 v{d}, 3, v7
v_bfe_u32 v7, v8, 1, 2
v_mul_u32_u24 v7, 1536, v7
v_add_u32 v{d}, v{d}, v7
v_lshrrev_b32 v8, 3, v8
v_add_u32 v8, v8, v9
v_lshl_add_u32 v{d}, v8, 4, v{d}
s_add_u32 s46, s64, 496
v_add_u32 v{d}, s46, v{d}'''.format(o=7 - 4 * r_, d=dst))
            a('s_waitcnt lgkmcnt(%d)' % (3 - 3 * r_))
            a(mfma(CB, 108 + 8 * r_, 104 + 8 * r_, CB))
        a('''s_mov_b64 exec, 15
ds_write_b128 v16, v[88:91]
s_mov_b64 exec, -1
s_nop 11''')
        for k in range(8):
            a('v_cvt_pk_bf16_f32 v%d, v%d, v%d' % (32 + k, CB + 2 * k, CB + 2 * k + 1))
        for k in range(8):
            r = 2 * k
            a('ds_write_b16 v20, v%d offset:%d' % (32 + k, (8 * (r >> 2) + (r & 3)) * 64))
            a('ds_write_b16_d16_hi v20, v%d offset:%d' % (32 + k, (8 * (r >> 2) + (r & 3) + 1) * 64))
        steps = [(i, st) for i in (4, 5, 0, 1, 2, 3) for st in range(2)]
        for n, (i, st) in enumerate(steps):
            t = 96 + 8 * (n & 1)
            o = i * 32 + st * 8
            a('ds_read2_b32 %s, v21 offset0:%d offset1:%d' % (vr(t, 2), o, o + 1))
            a('ds_read2_b32 %s, v21 offset0:%d offset1:%d' % (vr(t + 2, 2), o + 2, o + 3))
            for rd in range(2):
                if i < 4:
                    a('ds_read_b64_tr_b16 %s, v22 offset:%d' % (vr(t + 4 + 2 * rd, 2), st * 1024 + rd * 256 + 16 * (3 - i)))
                else:
                    a('ds_read_b64_tr_b16 %s, v%d offset:%d' % (vr(t + 4 + 2 * rd, 2), (23, 26)[i - 4], st * 256 + rd * 64))
            a('s_waitcnt lgkmcnt(0)')
            a(mfma(CB, t, t + 4, None if n == 0 else CB))
        a('s_nop 15')
        for j in range(4):
            a('ds_write_b128 v16, %s offset:%d' % (vr(CB + 4 * j, 4), 1024 * j))
        a('s_waitcnt lgkmcnt(0)')
        lds_add(a, 11, 1, C_PAIR)
        a('s_branch L_cd')
        a('L_cr:')
        lds_spin(a, 11, 1, C_PAIR, 3, nap=2)
        for j in range(4):
            a('ds_read_b128 %s, v17 offset:%d' % (vr(CB + 4 * j, 4), 1024 * j))
        a('s_waitcnt lgkmcnt(0)')
        for j in range(16):
            a('v_add_f32 v%d, v%d, v%d' % (CA + j, CA + j, CB + j))
        a('L_cd:')
    jitter(a, 5)
    stamp(a, 6)
    a('''s_nop 0
s_mul_i32 s46, s52, %d
s_lshl_b32 s47, s53, 11
s_add_u32 s46, s46, s47
s_add_u32 s46, s46, %d
v_lshlrev_b32 v6, 2, v28
v_lshl_add_u32 v6, v29, 8, v6
s_lshl_b32 s47, s53, 9
s_add_u32 s47, s47, s52
s_lshl_b32 s47, s47, 6
s_add_u32 s47, s47, %d
v_mov_b32 v1, s7
v_mov_b32 v2, 0''' % (RS, YT, FL3))
    for k in range(8):
        a('v_cvt_pk_bf16_f32 v%d, v%d, v%d' % (32 + k, CA + 2 * k, CA + 2 * k + 1))
    for k in range(8):
        a('buffer_store_dword v%d, v6, s[8:11], s46 offen offset:%d sc1' % (32 + k, (4 * (k >> 1) + (k & 1)) * 128))
    a('''s_waitcnt vmcnt(0) lgkmcnt(0)
s_mov_b64 exec, 1
buffer_store_dword v1, v2, s[8:11], s47 offen sc1
s_mov_b64 exec, -1''')
    if 'x3' in OPT:
        lds_add(a, 12, 1, C_Y2)
        a('s_waitcnt lgkmcnt(0)')
        stamp_dump(a)
        a('s_endpgm')
    if WOW == 'mid':
        a('''v_lshrrev_b32 v6, 3, v4
v_lshlrev_b32 v6, 10, v6
v_bfe_u32 v7, v4, 4, 1
v_lshlrev_b32 v7, 2, v7
v_and_b32 v8, 7, v4
v_xor_b32 v7, v7, v8
v_lshl_add_u32 v6, v7, 4, v6
s_lshl_b32 s23, s53, 10
s_lshl_b32 s24, s61, 11
s_add_u32 s24, s23, s24
s_lshl_b32 s26, s5, 7
s_lshl_b32 s27, s53, 13
s_add_u32 s26, s26, s27
s_lshl_b32 s27, s61, 14
s_add_u32 s26, s26, s27
s_nop 0''')
        for c in range(8):
            a('s_add_u32 s38, s5, %d' % c)
            a('s_and_b32 s38, s38, 7')
            a('s_lshl_b32 s30, s38, 16')
            a('s_add_u32 m0, s24, %d' % (c * 4096))
            a('s_add_u32 s30, s30, s26')
            if 'nowo' in OPT:
                continue
            a('buffer_load_dwordx4 v6, s[12:15], s30 offen lds')
            a('s_add_u32 m0, s24, %d' % (32768 + c * 4096))
            a('s_add_u32 s30, s30, 0x8000')
            a('buffer_load_dwordx4 v6, s[12:15], s30 offen lds')
            a('s_waitcnt vmcnt(%s)' % OPTV.get('wot', '2'))
    if 'x4' in OPT:
        lds_add(a, 12, 1, C_Y2)
        a('s_waitcnt lgkmcnt(0)')
        stamp_dump(a)
        a('s_endpgm')
    stamp(a, 7)
    a('''v_lshlrev_b32 v6, 6, v4
s_lshr_b32 s46, s4, 4
s_lshl_b32 s46, s46, 15
s_lshl_b32 s47, s5, 12
s_add_u32 s46, s46, s47
s_add_u32 s46, s46, %d
s_cmp_eq_u32 s3, 0
s_cbranch_scc0 L_yw''' % FL3)
    flag_poll_lazy(a, 6, 1, 46, 32)
    lds_add(a, 12, 3, C_GOY)
    a('L_yw:')
    transpose_addrs(a, 3, 20, 21, 22, 8, 9, USI, USO)
    a('''v_mul_u32_u24 v10, %d, v8
v_and_b32 v11, 7, v4
v_lshl_add_u32 v10, v11, 4, v10
v_add_u32 v11, %d, v10
s_mul_i32 s46, s5, %d
s_mul_i32 s47, s3, %d
s_add_u32 s46, s46, s47
s_lshl_b32 s47, s4, 7
s_add_u32 s46, s46, s47
s_add_u32 s46, s46, %d
s_lshl_b32 s47, s3, 11
s_add_u32 s47, s47, %d''' % (RS, 8 * RS - 1024, 64 * RS, 16 * RS, YT, USI))
    lds_spin(a, 12, 3, C_GOY, 1, nap=8)
    a('''s_mov_b32 m0, s47
v_and_b32 v7, 1, v8
v_lshrrev_b32 v8, 1, v8
v_lshl_add_u32 v8, v7, 5, v8
v_lshlrev_b32 v8, 11, v8
buffer_load_dwordx4 v10, s[8:11], s46 offen sc1 lds
buffer_load_dwordx4 v11, s[8:11], s46 offen offset:1024 sc1 lds
v_lshl_add_u32 v8, v9, 4, v8
s_lshl_b32 s46, s4, 17
s_lshl_b32 s47, s3, 14
s_add_u32 s46, s46, s47
s_lshl_b32 s47, s5, 7
s_add_u32 s46, s46, s47
s_add_u32 s47, s46, 0x2000
s_waitcnt vmcnt(0)''')
    jitter(a, 6)
    lds_add(a, 12, 1, C_Y)
    lds_spin(a, 12, 1, C_Y, 4)
    transpose_a(a, 20, 21, 32, 23)
    a('''ds_read_b128 v[32:35], v22
ds_read_b128 v[36:39], v22 offset:1024
s_waitcnt lgkmcnt(1)
buffer_store_dwordx4 v[32:35], v8, s[16:19], s46 offen sc1
s_waitcnt lgkmcnt(0)
buffer_store_dwordx4 v[36:39], v8, s[16:19], s47 offen sc1''')
    lds_add(a, 12, 1, C_Y2)
    stamp(a, 8)
    a('s_waitcnt lgkmcnt(0)')
    stamp(a, 12)
    stamp_dump(a)
    a('s_endpgm')

    a('''L_gemm:
s_cmp_ge_u32 s3, 8
s_cbranch_scc1 L_mm
s_setprio 2
s_sub_u32 s61, s3, 4
v_lshrrev_b32 v10, 3, v4
v_lshrrev_b32 v11, 4, v4
v_and_b32 v12, 7, v4
v_xor_b32 v13, v12, v11
s_lshl_b32 s47, s61, 4
v_add_u32 v10, s47, v10
s_lshl_b32 s46, s4, 16
v_lshl_add_u32 v14, v10, 10, s46
v_lshl_add_u32 v6, v13, 4, v14
v_xor_b32 v7, 64, v6
v_add_u32 v7, 0x1c00, v7
v_lshlrev_b32 v16, 10, v10
v_lshl_add_u32 v16, v12, 4, v16
v_mul_u32_u24 v10, 3072, v10
v_and_b32 v11, 1, v11
v_lshlrev_b32 v11, 2, v11
v_xor_b32 v12, v12, v11
v_lshl_add_u32 v8, v12, 4, v10
s_lshl_b32 s46, s5, 7
v_add_u32 v8, s46, v8
v_add_u32 v9, %d, v8
s_lshl_b32 s48, s61, 11
s_waitcnt lgkmcnt(0)''' % (8 * 3072 - 1024))
    srd(a, 16, 32, 2048 * 1024)
    srd(a, 12, 34, 512 * 3072)

    def dma_chunk(c):
        slot = (c % 6) * 16384
        if c < 8:
            a('s_add_u32 s50, s6, %d' % c)
            a('s_and_b32 s50, s50, 7')
            a('s_mul_i32 s49, s50, %d' % (64 * 3072))
            a('s_add_u32 m0, s48, %d' % slot)
            a('s_lshl_b32 s50, s50, 7')
            a('buffer_load_dwordx4 v6, s[16:19], s50 offen lds')
            a('buffer_load_dwordx4 v7, s[16:19], s50 offen offset:1024 lds')
            a('s_add_u32 m0, s48, %d' % (slot + 8192))
            a('s_add_u32 s49, s49, %d' % (SEG[0] * 1024))
            a('buffer_load_dwordx4 v8, s[12:15], s49 offen lds')
            a('buffer_load_dwordx4 v9, s[12:15], s49 offen offset:1024 lds')
        else:
            p, j = 1 + ((c - 8) >> 2), (c - 8) & 3
            for hf in range(2):
                a('s_add_u32 s50, s6, %d' % (2 * j + hf))
                a('s_and_b32 s50, s50, 7')
                a('s_mul_i32 s49, s50, %d' % (64 * 3072))
                a('s_add_u32 m0, s48, %d' % (slot + hf * 8192))
                a('s_add_u32 s49, s49, %d' % (SEG[p] * 1024))
                a('buffer_load_dwordx4 v8, s[12:15], s49 offen lds')
                a('buffer_load_dwordx4 v9, s[12:15], s49 offen offset:1024 lds')

    dma_chunk(0)
    dma_chunk(1)
    a('s_load_dwordx2 s[20:21], s[0:1], 0')
    srd(a, 8, 38, WS_BYTES)
    transpose_addrs(a, 61, 20, 21, 22, 23, 24, USI, USO)
    a('''s_lshl_b32 s46, s45, 16
s_lshl_b32 s47, s44, 7
s_add_u32 s58, s46, s47
s_add_u32 s59, s48, %d
v_add_u32 v17, 0x1c00, v16
v_mov_b32 v12, %d
s_waitcnt lgkmcnt(0)''' % (USI, CNT))
    srd(a, 60, 20, 2048 * 1024)
    jitter(a, 7)
    order = [0, 1]
    cnt = lambda x: 4 if isinstance(x, int) else x[1]
    stamp(a, 2)
    for c in range(16):
        a('s_waitcnt vmcnt(%d)' % (sum(cnt(x) for x in order[order.index(c) + 1:]) if c < 15 else 0))
        if c in (0, 8, 12):
            stamp(a, {0: 3, 8: 4, 12: 5}[c])
        a('s_barrier')
        if 'bars' in OPT and c <= 12 and c != 1:
            n = 1 + c - (c > 1)
            a('s_memrealtime s[%d:%d]' % (ST0 + 2 * n, ST0 + 2 * n + 1))
        for n in {0: [2, 3], 1: [4, 5]}.get(c, [c + 4] if c + 4 < 16 else []):
            dma_chunk(n)
            order.append(n)
        if c == int(OPTV.get('wpo', 11)) and WOW == 'win':
            a('''s_load_dwordx2 s[32:33], s[0:1], 88
v_and_b32 v26, 15, v4
v_lshlrev_b32 v26, 10, v26
s_and_b32 s46, s4, 7
s_lshl_b32 s46, s46, 16
s_lshl_b32 s47, s5, 7
s_add_u32 s46, s46, s47
s_lshl_b32 s47, s48, 3
s_add_u32 s46, s46, s47
v_add_u32 v26, s46, v26
s_waitcnt lgkmcnt(0)
global_load_dword v27, v26, s[32:33]''')
            order.append(('w', 1))
        if c == 12:
            att_prologue(True)
            order.append(('m', 1))
        if c == 13:
            a('s_mov_b32 m0, s59')
            a('s_nop 0')
            a('buffer_load_dwordx4 v16, s[60:63], s58 offen lds')
            a('buffer_load_dwordx4 v17, s[60:63], s58 offen offset:1024 lds')
            order.append(('u', 2))
        if c == 15:
            transpose_a(a, 20, 21, 32, 25)
    a('''s_load_dwordx2 s[32:33], s[0:1], 88
s_waitcnt lgkmcnt(0)
s_barrier
ds_read_b32 v1, v12 offset:%d
s_waitcnt lgkmcnt(0)
v_readfirstlane_b32 s7, v1''' % C_TAG)
    if WOW == 'win':
        wo_dma()
    a('s_branch L_att')

    XA, WA, OA, OV = 160, 164, 165, 166
    XR, ACC = 0, 128
    WF = [144, 148, 152, 156]
    a('''L_mm:
%s
s_setprio 3
s_and_b32 s52, s3, 1
s_bfe_u32 s53, s3, 0x10001
v_and_b32 v10, 31, v4
v_bfe_u32 v11, v4, 1, 3
v_lshrrev_b32 v12, 5, v4
v_xor_b32 v11, v11, v12
v_lshlrev_b32 v11, 4, v11
v_lshl_add_u32 v10, v10, 7, v11
s_lshl_b32 s46, s52, 12
v_add_u32 v%d, s46, v10''' % ('s_memrealtime s[70:71]' if 'dbgt' in OPT else '', XA))
    for jq in range(1, 4):
        a('v_xor_b32 v%d, %d, v%d' % (XA + jq, jq << 5, XA))
    a('''v_lshlrev_b32 v10, 10, v12
v_bfe_u32 v11, v4, 2, 2
v_lshl_add_u32 v10, v11, 7, v10
v_bfe_u32 v11, v4, 3, 1
v_xor_b32 v11, s53, v11
v_lshl_add_u32 v10, v11, 6, v10
v_bfe_u32 v11, v4, 4, 1
v_lshl_add_u32 v10, v11, 5, v10
v_and_b32 v11, 3, v4
v_lshl_add_u32 v%d, v11, 3, v10''' % WA)
    a('''s_lshl_b32 s46, s4, 1
s_add_u32 s46, s46, s52
s_lshl_b32 s46, s46, 10
s_lshl_b32 s47, s5, 1
s_add_u32 s47, s47, s53
s_lshl_b32 s47, s47, 17
s_add_u32 s46, s46, s47
v_lshl_add_u32 v%d, v4, 4, s46
v_bfe_u32 v11, v4, 4, 1
v_lshlrev_b32 v11, 16, v11
v_lshl_add_u32 v11, v12, 8, v11
v_and_b32 v10, 15, v4
v_lshl_add_u32 v11, v10, 4, v11
v_add_u32 v%d, s46, v11
v_mov_b32 v167, v4
s_mov_b32 s62, 0x%x
s_mov_b32 s64, %d
s_mov_b32 s65, %d
s_mov_b32 s63, %d
s_lshl_b32 s54, s52, 12
s_lshl_b32 s47, s53, 11
s_add_u32 s54, s54, s47
s_add_u32 s54, s54, %d
s_lshl_b32 s56, s5, 6
s_add_u32 s56, s56, %d
s_lshl_b32 s55, s4, 9
s_add_u32 s55, s55, s56
s_waitcnt lgkmcnt(0)''' % (OA, OV, f2u(QSCALE), KF, KF + 65536, VF, QX, FL1))
    srd(a, 8, 38, WS_BYTES)
    if 'nowpf' not in OPT:
        srd(a, 12, 34, 512 * 3072)
        a('''v_mul_u32_u24 v126, 3072, v4
s_and_b32 s46, s4, 7
s_mul_i32 s46, s46, %d
s_lshl_b32 s47, s5, 7
s_add_u32 s46, s46, s47
s_xor_b32 s47, s52, 1
s_lshl_b32 s47, s47, 11
s_add_u32 s57, s46, s47''' % (64 * 3072))

    def wpf(wave):
        l = label('pf')
        a('s_cmp_eq_u32 s3, %d' % wave)
        a('s_cbranch_scc0 %s' % l)
        a('buffer_load_dword v127, v126, s[12:15], s57 offen')
        a(l + ':')

    WPV, WPQ = int(OPTV.get('wpv', -1)), int(OPTV.get('wpq', -1))
    if WPV < 0:
        wpf(8)
    if WPQ < 0:
        wpf(9)
    if 'upf' in OPT:
        a('''s_cmp_eq_u32 s3, 10
s_cbranch_scc0 L_noupf
s_load_dwordx2 s[20:21], s[0:1], 0
v_lshlrev_b32 v126, 10, v4
s_lshl_b32 s46, s45, 16
s_lshl_b32 s47, s44, 7
s_add_u32 s46, s46, s47
v_add_u32 v126, s46, v126
s_waitcnt lgkmcnt(0)
global_load_dword v127, v126, s[20:21]
L_noupf:''')
    PD = 3

    def chunk_of(s):
        p, kk = s >> 5, s & 31
        return (kk >> 2, kk & 3) if p == 0 else (8 + 4 * (p - 1) + (kk >> 3), kk & 7)

    def nreads(s):
        return 0 if s >= 96 else (3 if s < 32 else 2)

    def reads(s):
        c, j = chunk_of(s)
        if j == 0:
            a('s_barrier')
            if c == 0:
                if OPTV.get('enc') == 'b0':
                    a('s_memrealtime s[92:93]')
                stamp(a, 2)
                if 'dbgt' in OPT:
                    a('s_memrealtime s[72:73]')
            if c == WPV:
                wpf(8)
            if c == WPQ:
                wpf(9)
            if c == 6:
                a('s_waitcnt vmcnt(0)')
            if c % 3 == 0 and c > 0:
                op = 'v_add_u32' if c % 6 == 3 else 'v_subrev_u32'
                for r in ([XA, XA + 1, XA + 2, XA + 3] if c < 8 else []) + [WA]:
                    a('%s v%d, 0xc000, v%d' % (op, r, r))
        so = (c % 3) * 16384
        if c < 8:
            a('ds_read_b128 %s, v%d offset:%d' % (vr(XR + 4 * s, 4), XA + j, so))
            so += 8192
        for rd in range(2):
            a('ds_read_b64_tr_b16 %s, v%d offset:%d' % (vr(WF[s % 4] + 2 * rd, 2), WA, so + j * 2048 + rd * 512))

    def epilogue(p):
        lo, hi = vr(ACC, 4), vr(ACC + 4, 4)
        if SEG[p] == 0:
            a('v_mov_b32 v4, v167')
            a('v_lshl_add_u32 v10, v167, 4, s54')
            a('s_nop 13')
            for i in range(16):
                a('v_mul_f32 v%d, s62, v%d' % (ACC + i, ACC + i))
        else:
            a('s_nop 15')
        for j in range(8):
            a('v_cvt_pk_bf16_f32 v%d, v%d, v%d' % (ACC + j, ACC + 2 * j, ACC + 2 * j + 1))
        if SEG[p] == 0:
            a('ds_write_b128 v10, %s' % lo)
            a('ds_write_b128 v10, %s offset:1024' % hi)
        elif SEG[p] == 1:
            a('buffer_store_dwordx4 %s, v%d, s[8:11], s64 offen sc1' % (lo, OA))
            a('buffer_store_dwordx4 %s, v%d, s[8:11], s65 offen sc1' % (hi, OA))
        else:
            a('buffer_store_dwordx4 %s, v%d, s[8:11], s63 offen sc1' % (lo, OV))
            a('buffer_store_dwordx4 %s, v%d, s[8:11], s63 offen offset:512 sc1' % (hi, OV))

    jitter(a, 8)
    for s in range(PD):
        reads(s)
    for s in range(96):
        p, kk = s >> 5, s & 31
        if s + PD < 96:
            reads(s + PD)
        a('s_waitcnt lgkmcnt(%d)' % sum(nreads(t) for t in range(s + 1, s + PD + 1)))
        x, w = XR + 4 * kk, WF[s % 4]
        if SEG[p] == 2:
            a(mfma(ACC, x, w, None if kk == 0 else ACC))
        else:
            a(mfma(ACC, w, x, None if kk == 0 else ACC))
        if s == 80:
            a('v_mov_b32 v12, %d' % CNT)
            a('ds_read_b32 v1, v12 offset:%d' % C_TAG)
            a('s_waitcnt vmcnt(0) lgkmcnt(0)')
            a('v_readfirstlane_b32 s7, v1')
            jitter(a, 9)
            arrive_publish(a, 12, 1, C_KV, 4, 55, 2)
            if 'rt' in OPT:
                stamp(a, 2)
        if kk == 31:
            if OPTV.get('enc') == 'v' and p == 1:
                a('s_memrealtime s[92:93]')
            stamp(a, 3 + p)
            epilogue(p)
    a('s_waitcnt lgkmcnt(0)')
    a('s_barrier')
    a('''s_cmp_eq_u32 s3, 8
s_cbranch_scc0 L_apro
v_and_b32 v6, 31, v4
v_lshlrev_b32 v6, 9, v6''')
    if 'p2' not in OPT:
        flag_poll_lazy(a, 6, 1, 56, 1)
    else:
        flag_poll(a, 6, 1, 2, 56)
    lds_add(a, 12, 3, C_GO)

    a('L_apro:')
    att_prologue(False)
    a('''L_att:
v_xor_b32 v6, 0x1000, v13
ds_read_b128 %s, v13
ds_read_b128 %s, v6''' % (vr(Q[1], 4), vr(Q[0], 4)))

    def rdk(i):
        return ['buffer_load_dwordx4 %s, v%d, s[8:11], s36 offen sc1' % (vr(K[i % NB], 4), KA),
                's_add_u32 s36, s36, 2048'] + ['s_and_b32 s36, s36, 0xffff'] * OWN

    def rdv(i):
        return ['s_mov_b64 exec, s[40:41]',
                'buffer_load_dwordx4 %s, v%d, s[8:11], s37 offen sc1' % (vr(V[i % NBV][0], 4), VA),
                'buffer_load_dwordx4 %s, v%d, s[8:11], s37 offen offset:512 sc1' % (vr(V[i % NBV][1], 4), VA),
                's_mov_b64 exec, -1', 's_add_u32 s37, s37, 2048'] + ['s_and_b32 s37, s37, 0xffff'] * OWN

    PF = False
    pfl = []
    issue = []
    if OWN:
        lds_spin(a, 12, 3, C_KV, 4)
        a('\n'.join(rdk(0) + rdv(0)))
        issue += [('k', 0), ('v', 0), ('v', 0)]
    jitter(a, 10)
    stamp(a, 6)
    lds_spin(a, 12, 3, C_GO, 1)
    stamp(a, 7)
    pro = []
    if not OWN:
        pro = rdk(0)
        issue += [('k', 0)]
    for i in range(1, DK):
        pro += rdk(i)
        issue += [('k', i)]
        if i > 1 or not OWN:
            pro += rdv(i - 1)
            issue += [('v', i - 1), ('v', i - 1)]
    a('\n'.join(pro))
    a('s_setprio 3')
    a('s_waitcnt vmcnt(%d)' % (len(issue) - 1))
    if OPTV.get('enc') == 'go':
        a('s_memrealtime s[92:93]')
    if 'pubq0' in OPT:
        arrive_publish(a, 12, 3, C_Q, 8, 55, 2)
        issue.append(('f',))
    stamp(a, 8)
    if 'dbgt' in OPT:
        a('s_memrealtime s[74:75]')
    a(mfma(S[0], K[0], Q[0], None))
    a('s_nop 7')
    a('s_nop 3')
    pp_ = [int(x) for x in OPTV.get('pr', '7,15,23').split(',')]
    PRIO = {pp_[0]: 2, pp_[1]: 1, pp_[2]: 0}

    def unit(i, q):
        u = 2 * i + q
        sc, sn = S[u % 2], S[(u + 1) % 2]
        pc, pp = Pp[u % 2], Pp[(u + 1) % 2]
        i1, q1 = (i, 1) if q == 0 else (i + 1, 0)
        i0, q0 = (i - 1, 1) if q == 0 else (i, 0)
        qk = mfma(sn, K[i1 % NB], Q[q1], None)
        pv0 = mfma(O[q0], V[i0 % NBV][0], pp, O[q0])
        pv1 = mfma(O[q0], V[i0 % NBV][1], pp + 4, O[q0])
        if 'swp' in OPT:
            pv0 = mfma(O[q0], pp, V[i0 % NBV][0], O[q0])
            pv1 = mfma(O[q0], pp + 4, V[i0 % NBV][1], O[q0])
        e = ['v_exp_f32 v%d, v%d' % (sc + j, sc + j) for j in range(16)]
        c = ['v_cvt_pk_bf16_f32 v%d, v%d, v%d' % (pc + j, sc + 2 * j, sc + 2 * j + 1) for j in range(8)]
        c7prev = 'v_cvt_pk_bf16_f32 v%d, v%d, v%d' % (pp + 7, sn + 14, sn + 15)
        out = [e[0]]
        late_qk = OWN and u == 1
        if late_qk:
            last = max(n for n, x in enumerate(issue) if x == ('v', 0))
            out.append('s_waitcnt vmcnt(%d)' % sum(x != ('f',) for x in issue[last + 1:]))
        elif q == 1:
            last = max(n for n, x in enumerate(issue) if x in (('k', i + 1), ('v', i)))
            out.append('s_waitcnt vmcnt(%d)' % sum(x != ('f',) for x in issue[last + 1:]))
        if u > 0:
            out.append(c7prev)
        if u < 63 and not late_qk:
            out.append(qk)
        kl = rdk(i + DK) if q == 0 and i + DK < 32 else []
        vl = rdv(i + DK - 1) if q == 1 and i + DK - 1 < 32 else []
        issue.extend([('k', i + DK)] * bool(kl) + [('v', i + DK - 1)] * 2 * bool(vl))
        out += kl[:1] + vl[:4]
        out += [e[1], e[2], c[0], e[3], e[4], c[1], e[5]]
        if u > 0:
            out.append(pv0)
        out += kl[1:2] + vl[4:5]
        out += [e[6], c[2], e[7], e[8], c[3], e[9], e[10], c[4]]
        if u > 0:
            out.append(pv1)
        out += kl[2:] + vl[5:]
        if q == 0 and i in (1, 8, 16) and PF:
            out += pfl
            issue.append(('p',))
        if q == 1 and i in PRIO:
            out.append('s_setprio %d' % PRIO[i])
            if DIAG and 'qs' in OPT:
                n = 3 + i // 8
                out.append('s_memrealtime s[%d:%d]' % (ST0 + 2 * n, ST0 + 2 * n + 1))
        out += [e[11], e[12], c[5], e[13], e[14], c[6], e[15]]
        if late_qk:
            last = issue.index(('k', 1))
            out += ['s_waitcnt vmcnt(%d)' % sum(x != ('f',) for x in issue[last + 1:]), qk, 's_nop 11']
        return out

    for i in range(32):
        for q in range(2):
            if (i, q) == (20, 0):
                jitter(a, 11)
            if (i, q) == (31, 0):
                jitter(a, 12)
                a('''s_and_b32 s26, s3, 3
s_xor_b32 s27, s26, 2
s_mul_i32 s26, s26, 2304
s_add_u32 s26, s26, {ox}
s_mul_i32 s27, s27, 2304
s_add_u32 s27, s27, {ox}
v_add_u32 v6, s26, v5
v_add_u32 v7, s27, v5
v_lshlrev_b32 v8, 2, v4
v_add_u32 v9, s27, v8
v_add_u32 v8, s26, v8
s_sub_u32 s26, s3, 4
s_lshl_b32 s26, s26, 2
v_add_u32 v10, s26, v12
s_xor_b32 s26, s26, 8
v_add_u32 v11, s26, v12
s_cmp_eq_u32 s19, 0
s_cbranch_scc0 L_xa'''.format(ox=OX))
                lds_spin(a, 12, 3, C_Q, 8)
                a('s_branch L_xb')
                a('L_xa:')
                lds_spin(a, 12, 3, C_O, 4)
                a('''L_xb:
s_mov_b32 s44, 0x%x
s_mov_b32 s45, 0x%x
s_mov_b32 s46, 0x7f7fffff
s_lshl_b32 s26, s19, 2
v_add_u32 v13, s26, v12
v_mov_b32 v3, 1
buffer_load_dword v1, v163, s[8:11], s52 offen sc1''' % (f2u(2.0 ** -64), f2u(2.0 ** 64)))
                issue.append(('m',))
            if (i, q) == (2, 0) and 'pubq0' not in OPT:
                arrive_publish(a, 12, 3, C_Q, 8, 55, 2)
                issue.append(('f',))
            for s in unit(i, q):
                a(s)
    a('s_nop 0')
    a('v_cvt_pk_bf16_f32 v%d, v%d, v%d' % (Pp[1] + 7, S[1] + 14, S[1] + 15))
    if OPTV.get('enc') == 'loop':
        a('s_memrealtime s[92:93]')
    stamp(a, 9)
    if 'dbgt' in OPT:
        a('s_memrealtime s[76:77]')
    a('s_setprio 3')
    a('s_nop 0')
    a(mfma(O[1], V[31 % NBV][0], Pp[1], O[1]))
    a(mfma(O[1], V[31 % NBV][1], Pp[1] + 4, O[1]))
    F = O[1]
    a('''ds_write_b128 v6, %s
ds_write_b128 v6, %s offset:1024
ds_write_b32 v8, v%d offset:2048
ds_write_b32 v10, v3 offset:%d''' % (vr(O[0], 4), vr(O[0] + 4, 4), O[0] + 8, C_X))
    a('''s_mov_b32 s66, 0
L_xw:
ds_read_b32 v2, v11 offset:%d
ds_read_b128 v[48:51], v7
ds_read_b128 v[52:55], v7 offset:1024
ds_read_b32 v56, v9 offset:2048
s_add_u32 s66, s66, 1
s_waitcnt lgkmcnt(0)
v_readfirstlane_b32 s67, v2
s_cmp_ge_u32 s66, %d
s_cbranch_scc1 L_xe
s_cmp_eq_u32 s67, 0
s_cbranch_scc1 L_xw
L_xe:''' % (C_X, SPIN_MAX * 4))
    stamp(a, 10)
    for j in range(9):
        a('v_add_f32 v%d, v%d, v%d' % (F + j, F + j, 48 + j))
    a('''v_rcp_f32 v48, v{8}
v_add_f32 v50, abs(v{0}), abs(v{1})
v_add_f32 v51, abs(v{2}), abs(v{3})
v_add_f32 v52, abs(v{4}), abs(v{5})
v_add_f32 v53, abs(v{6}), abs(v{7})
v_cmp_le_f32 s[28:29], s44, v{8}
v_add_f32 v50, v50, v51
v_add_f32 v52, v52, v53
v_cmp_ge_f32 s[30:31], s45, v{8}
v_add_f32 v50, v50, v52
v_cmp_ge_f32 s[32:33], s46, v50
s_and_b64 s[28:29], s[28:29], s[30:31]
s_nop 0
s_and_b64 s[28:29], s[28:29], s[32:33]
s_cmp_eq_u64 s[28:29], -1
s_cbranch_scc0 {9}
L_fin:'''.format(*(list(range(F, F + 9)) + ['L_fin' if 'swp' in OPT else 'L_slow'])))
    for j in range(8):
        a('v_mul_f32 v%d, v%d, v48' % (F + j, F + j))
    for j in range(4):
        a('v_cvt_pk_bf16_f32 v%d, v%d, v%d' % (52 + j, F + 2 * j, F + 2 * j + 1))
    a('buffer_store_dwordx4 v[52:55], v5, s[8:11], s54 offen sc1')
    jitter(a, 13)
    lds_add(a, 13, 3, C_O)
    stamp(a, 11)
    a('s_cmp_ge_u32 s3, 8')
    a('s_cbranch_scc1 L_bend')
    a('s_load_dwordx4 s[32:35], s[0:1], 88')
    a('s_waitcnt lgkmcnt(0)')
    srd(a, 16, 34, 2048 * 2048)
    AC = [20, 36]
    OFR, WR = 56, 88

    def wo_frags(g):
        for cc in range(4):
            for n in range(2):
                for nt in range(2):
                    for rd in range(2):
                        a('ds_read_b64_tr_b16 %s, v%d offset:%d' % (vr(WR + 16 * cc + 8 * n + 4 * nt + 2 * rd, 2), (160, 161)[nt],
                                                                    g * 32768 + cc * 4096 + n * 2048 + rd * 1024))

    def o_loads(cc):
        a('''s_add_u32 s38, s51, %d
s_and_b32 s38, s38, 7
s_lshl_b32 s30, s38, 12
s_add_u32 s30, s30, s53
buffer_load_dwordx4 %s, v5, s[8:11], s30 offen sc1
buffer_load_dwordx4 %s, v5, s[8:11], s30 offen offset:1024 sc1''' % (cc, vr(OFR + 8 * cc, 4), vr(OFR + 8 * cc + 4, 4)))

    def o_mfma(cc, first):
        for n in range(2):
            for nt in range(2):
                a(mfma(AC[nt], WR + 16 * cc + 8 * n + 4 * nt, OFR + 8 * cc + 4 * n, None if first and n == 0 else AC[nt]))

    def poll_half(g, nap):
        lp, le = label('hp'), label('he')
        a('s_mov_b32 s23, 0')
        a('s_mov_b32 s66, 0')
        a(lp + ':')
        for cc in range(4):
            e = label('ls')
            a('s_bitcmp1_b32 s23, %d' % cc)
            a('s_cbranch_scc1 %s' % e)
            o_loads(cc)
            a(e + ':')
        a('s_add_u32 s66, s66, 1')
        a('s_waitcnt vmcnt(0) lgkmcnt(0)')
        for cc in range(4):
            e, gl = label('lc'), label('lg')
            b = OFR + 8 * cc
            a('''s_bitcmp1_b32 s23, {cc}
s_cbranch_scc1 {e}
v_max3_u32 v1, v{0}, v{1}, v{2}
v_max3_u32 v2, v{3}, v{4}, v{5}
v_max3_u32 v1, v1, v{6}, v{7}
v_max_u32 v1, v1, v2
v_cmp_eq_u32 vcc, -1, v1
s_cmp_ge_u32 s66, {n}
s_cbranch_scc1 {g}
s_cbranch_vccnz {e}
{g}:
s_bitset1_b32 s23, {cc}'''.format(*range(b, b + 8), cc=cc, e=e, g=gl, n=SPIN_MAX))
            o_mfma(cc, False)
            a(e + ':')
        a('''s_cmp_eq_u32 s23, 15
s_cbranch_scc1 %s
s_sleep %s
s_branch %s
%s:''' % (le, nap, lp, le))

    if WOW == 'end':
        wo_dma()
    for j in range(32):
        a('v_mov_b32 v%d, 0' % (AC[0] + j))
    a('s_lshl_b32 s26, s49, 2')
    a('v_add_u32 v8, s26, v12')
    a('s_waitcnt vmcnt(%d)' % (WOW != 'end'))
    a('''v_cmp_eq_u32 vcc, s7, v1
s_nop 1
s_cmp_eq_u64 vcc, -1
s_cbranch_scc1 L_mok''')
    flag_poll_lazy(a, 163, 1, 52, 8)
    a('L_mok:')
    if WOW == 'mid':
        lds_spin(a, 12, 3, C_Y2, 4, nap=8)
    else:
        lds_add(a, 8, 3, C_W)
        lds_spin(a, 8, 3, C_W, 2)
    wo_frags(0)
    a('s_sleep %s' % OPTV.get('ein', '28' if WOW != 'end' else '16'))
    poll_half(0, OPTV.get('esl', '8'))
    wo_frags(1)
    a('s_add_u32 s53, s53, 2048')
    lds_spin(a, 12, 3, C_Y2, 4, nap=2)
    stamp(a, 10)
    lds_spin(a, 12, 3, C_O1, 4, nap=2)
    if 'lin' in OPTV:
        a('s_sleep %s' % OPTV['lin'])
    poll_half(1, OPTV.get('lsl', '6'))
    jitter(a, 14)
    stamp(a, 12)
    a('''v_mov_b32 v3, 1
s_cmp_eq_u32 s49, 0
s_nop 12
s_cbranch_scc0 L_r1''')
    for own in range(2):
        if own:
            a('L_r1:')
        for j in range(4):
            a('ds_write_b128 v164, %s offset:%d' % (vr(AC[1 - own] + 4 * j, 4), 1024 * j))
        a('ds_write_b32 v166, v3 offset:%d' % C_P3)
        if not own:
            a('s_branch L_r2')
    a('''L_r2:
s_mov_b32 s66, 0
L_rw:
ds_read_b32 v3, v167 offset:%d''' % C_P3)
    for j in range(4):
        a('ds_read_b128 %s, v165 offset:%d' % (vr(64 + 4 * j, 4), 1024 * j))
    a('''s_add_u32 s66, s66, 1
s_waitcnt lgkmcnt(0)
v_readfirstlane_b32 s67, v3
s_cmp_ge_u32 s66, %d
s_cbranch_scc1 L_re
s_cmp_eq_u32 s67, 0
s_cbranch_scc1 L_rw
L_re:''' % (SPIN_MAX * 4))
    a('s_cmp_eq_u32 s49, 0')
    a('s_cbranch_scc0 L_r3')
    for own in range(2):
        if own:
            a('L_r3:')
        for j in range(16):
            a('v_add_f32 v%d, v%d, v%d' % (64 + j, AC[own] + j, 64 + j))
        if not own:
            a('s_branch L_r4')
    a('L_r4:')
    for j in range(8):
        a('v_cvt_pk_bf16_f32 v%d, v%d, v%d' % (80 + j, 64 + 2 * j, 65 + 2 * j))
    st3 = OPTV.get('st3', '').replace('+', ' ')
    a('buffer_store_dwordx4 v[80:83], v162, s[16:19], s50 offen' + st3)
    a('buffer_store_dwordx4 v[84:87], v162, s[16:19], s50 offen offset:16' + st3)
    if 'dbgt' in OPT:
        a('s_waitcnt vmcnt(0)')
        a('s_memrealtime s[78:79]')
        a('s_load_dwordx2 s[36:37], s[0:1], 104')
        a('s_waitcnt lgkmcnt(0)')
        srd(a, 12, 36, 256)
        a('v_mov_b32 v2, 0')
        a('s_mov_b64 exec, 1')
        for i in range(5):
            a('s_sub_u32 s66, s%d, s7' % (70 + 2 * i))
            a('s_add_u32 s66, s66, 1000')
            a('v_mov_b32 v1, s66')
            a('buffer_atomic_umax v1, v2, s[12:15], 0 offen offset:%d sc1' % (4 + 4 * i))
            a('s_sub_u32 s66, 100000, s66')
            a('v_mov_b32 v3, s66')
            a('buffer_atomic_umax v3, v2, s[12:15], 0 offen offset:%d sc1' % (36 + 4 * i))
        a('s_mov_b64 exec, -1')
        a('s_waitcnt vmcnt(0)')
    a('L_bend:')
    if 'enc' in OPTV:
        e = OPTV['enc']
        if e != 'skew':
            a('s_cmp_eq_u32 s2, %s' % OPTV.get('ewg', '0'))
            a('s_cbranch_scc0 L_encd')
        a('s_cmp_eq_u32 s3, 8')
        a('s_cbranch_scc0 L_encd')
        a('s_waitcnt lgkmcnt(0)')
        a('s_sub_u32 s94, s92, s90' if e not in ('f', 'skew') else 's_mov_b32 s94, 0')
        a('s_add_u32 s94, s94, 6000')
        a('''L_encw:
s_memrealtime s[96:97]
s_waitcnt lgkmcnt(0)
s_sub_u32 s96, s96, s90
s_cmp_lt_u32 s96, s94
s_cbranch_scc1 L_encw
L_encd:''')
    stamp_dump(a)
    a('s_endpgm')

    for t in ('',):
        OS, SS, M, PS, KS, MX = 80, 16, 64, 48, 104, 58
        a('''L_slow%s:
v_mov_b32 v%d, 0xff800000
s_mov_b32 s42, 0
L_s1%s:
buffer_load_dwordx4 %s, v%d, s[8:11], s42 offen sc1
s_waitcnt vmcnt(0)
%s
s_nop 15''' % (t, MX, t, vr(KS, 4), KA, mfma(SS, KS, Q[1], None)))
        for j in range(8):
            a('v_max3_f32 v%d, v%d, v%d, v%d' % (MX, MX, SS + 2 * j, SS + 2 * j + 1))
        a('''s_add_u32 s42, s42, 1024
s_cmp_lt_u32 s42, 0x10000
s_cbranch_scc1 L_s1%s
v_mov_b32 v%d, v%d
s_nop 1
v_permlane32_swap_b32 v%d, v%d
s_nop 1
v_max_f32 v%d, v%d, v%d''' % (t, MX + 1, MX, MX, MX + 1, MX, MX, MX + 1))
        for j in range(16):
            a('v_sub_f32 v%d, 0, v%d' % (M + j, MX))
            a('v_mov_b32 v%d, 0' % (OS + j))
        a('''s_mov_b32 s42, 0
L_s2%s:
buffer_load_dwordx4 %s, v%d, s[8:11], s42 offen sc1
s_mov_b64 exec, s[40:41]
buffer_load_dwordx4 %s, v%d, s[8:11], s42 offen sc1
buffer_load_dwordx4 %s, v%d, s[8:11], s42 offen offset:512 sc1
s_mov_b64 exec, -1
s_waitcnt vmcnt(0)
%s
s_nop 15''' % (t, vr(KS, 4), KA, vr(V[0][0], 4), VA, vr(V[0][1], 4), VA, mfma(SS, KS, Q[1], M)))
        for j in range(16):
            a('v_exp_f32 v%d, v%d' % (SS + j, SS + j))
        a('s_nop 0')
        for j in range(8):
            a('v_cvt_pk_bf16_f32 v%d, v%d, v%d' % (PS + j, SS + 2 * j, SS + 2 * j + 1))
        a('s_nop 1')
        a(mfma(OS, V[0][0], PS, OS))
        a(mfma(OS, V[0][1], PS + 4, OS))
        a('''s_add_u32 s42, s42, 1024
s_cmp_lt_u32 s42, 0x10000
s_cbranch_scc1 L_s2%s
s_nop 15''' % t)
        a('''v_rcp_f32 v48, v88
s_nop 0
s_branch L_fin''')
    a('''L_end:
s_endpgm''')
    return a.text()


def main(path):
    KN = NAME + '_kernel'
    t = kernel()
    hdr = '''; @launch grid=(256,1,1) block=(768,1,1) lds=%d
; One launch, one workgroup of 12 waves per CU (256 workgroups, all resident; surplus workgroups exit at once).
; Workgroup = (64-token block tb, quad of heads hq) for the attention branch and 2 channels for the S4 branch.
;  phase 1  waves 4-7 stream x / wqkv tiles into an LDS ring, waves 8-11 compute the K, V, Q tiles (MFMA);
;           K and V go to the workspace in MFMA fragment order, Q stays in LDS. Waves 0-3 build the S4 kernel
;           K[l] = Re sum_n C_n dB_n exp(dt A_n lq(l)) (lq = position rounded to bf16, as in the reference) as a
;           product of two power tables on the matrix core; Dskip is added to K[0]. A tile of u is transposed.
;  phase 2  waves 4-11: softmax(QK^T)V, exp2 of the scaled scores without a shift, row sums from a ones row of V.
;           A run-time check (row sum inside [2^-64, 2^64] and finite outputs) sends a tile to L_slow, which redoes
;           it with the exact row maximum. Waves 0-3: causal convolution as Toeplitz MFMAs, transposition of y.
;  phase 3  waves 4-7: output projection of the (tb, 64-column) tile.
; Hand-offs between workgroups: write-through stores, drained, then a flag word carrying this launch's tag
; (a clock value that workgroup 0 puts into the zeroed debug buffer); attention outputs replace a marker that
; their producer wrote (and announced) earlier, so readers recognise every dword. All waits are bounded;
; s_sleep only backs off inside these waits.
.amdgcn_target "amdgcn-amd-amdhsa--gfx950"
.text
.globl %s
''' % (LDS_BYTES, KN)
    pad = '.p2align 8\n.fill 4096, 4, 0xbf800000\n'
    kd = '''.section .rodata,"a"
.p2align 6
.amdhsa_kernel %s
  .amdhsa_next_free_vgpr 168
  .amdhsa_next_free_sgpr 102
  .amdhsa_accum_offset 168
  .amdhsa_group_segment_fixed_size 0
  .amdhsa_kernarg_size 120
  .amdhsa_user_sgpr_count 2
  .amdhsa_user_sgpr_kernarg_segment_ptr 1
  .amdhsa_system_sgpr_workgroup_id_x 1
.end_amdhsa_kernel
''' % KN
    open(path, 'w').write(hdr + t + pad + kd)


if __name__ == '__main__':
    for arg in sys.argv[1:]:
        OPT.add(arg)
        if '=' in arg:
            OPTV[arg.split('=')[0]] = arg.split('=')[1]
    DIAG = 'diag' in OPT
    main(sys.argv[1] if len(sys.argv) > 1 else 'cdna_kernels/%s.s' % NAME)
```

```python
import sys
import struct

NAME = 'concat_heads__ssm_conv_s4__softmax_full_mha__prompt'

KF = 0x200000
VF = 0x400000
OF = 0x600000
RS = 4224
UT = 0x800000
YT = 0x1400000
FL1 = 0xC00000
FLU = 0xC04000
FL2 = 0xC08000
FL3 = 0xC10000
WS_BYTES = 0x2000000

GEN = 6 * 16384
LDS_BYTES = GEN + 65536
QX = 65536
USI = 74752
USO = 82944
OX = 65536
YI = 73728
CNT = 94208
C_TAG, C_KV, C_GO, C_PAIR, C_CONV, C_O, C_Y, C_GOU, C_GOY, C_Y2, C_X = 0, 4, 8, 80, 24, 16, 32, 36, 40, 44, 48
C_U, C_P3, C_O1, C_Q, C_W = 12, 96, 20, 116, 120
KCOPY = 4096
ZOFF = 640
UIMG = 9216

LOG2E = 1.4426950408889634
QSCALE = 0.25 * LOG2E
OPT = set()
OPTV = {}
DIAG = False
DIAG_BASE = 0xF00000
ST0 = 70
SPIN_MAX = 1 << 19
ROWS = {0: [0, 1, 2, 3, 4, 5, 6, 7, 8, 1024, 1032, 1280, 1288, 1536, 1544, None],
        1: [256, 258, 260, 262, 264, 512, 516, 520, 768, 772, 776, 1792, 1800, None, None, None]}


def f2u(x):
    return struct.unpack('<I', struct.pack('<f', x))[0]


class A:
    def __init__(self):
        self.L = []

    def __call__(self, s):
        for line in s.split('\n'):
            line = line.strip()
            if not line:
                continue
            if line.endswith(':') or line.startswith('.'):
                self.L.append(line)
            else:
                self.L.append('    ' + line)

    def text(self):
        return '\n'.join(self.L) + '\n'


def vr(a, n=1):
    return 'v%d' % a if n == 1 else 'v[%d:%d]' % (a, a + n - 1)


def sr(a, n=1):
    return 's%d' % a if n == 1 else 's[%d:%d]' % (a, a + n - 1)


def srd(a, dst, base, nbytes):
    a('s_mov_b32 s%d, s%d' % (dst, base))
    a('s_mov_b32 s%d, s%d' % (dst + 1, base + 1))
    a('s_mov_b32 s%d, 0x%x' % (dst + 2, nbytes))
    a('s_mov_b32 s%d, 0x00020000' % (dst + 3))


def mfma(d, x, y, c):
    cs = '0' if c is None else vr(c, 16)
    return 'v_mfma_f32_32x32x16_bf16 %s, %s, %s, %s' % (vr(d, 16), vr(x, 4), vr(y, 4), cs)


def cmul_many(a, items):
    for d, x, y in items:
        a('v_mul_f32 v%d, v%d, v%d' % (d, x, y))
        a('v_mul_f32 v%d, v%d, v%d' % (d + 1, x + 1, y))
    for d, x, y in items:
        a('v_fma_f32 v%d, -v%d, v%d, v%d' % (d, x + 1, y + 1, d))
        a('v_fmac_f32 v%d, v%d, v%d' % (d + 1, x, y + 1))


def stamp(a, i, real=False):
    if DIAG and ('se' not in OPT or i in (0, 13) or str(i) in OPTV.get('only', '').split(',')):
        a('%s s[%d:%d]' % ('s_memrealtime' if real or 'rt' in OPT else 's_memtime', ST0 + 2 * i, ST0 + 2 * i + 1))


def stamp_dump(a, n=14):
    if DIAG:
        a('s_waitcnt vmcnt(0)')
        stamp(a, 13, True)
        a('s_waitcnt lgkmcnt(0)')
        a('s_lshl_b32 s68, s2, 4')
        a('s_add_u32 s68, s68, s3')
        a('s_lshl_b32 s68, s68, 6')
        a('s_add_u32 s68, s68, %d' % DIAG_BASE)
        a('v_mov_b32 v1, 0')
        a('s_mov_b64 exec, 1')
        for i in range(n):
            a('v_mov_b32 v2, s%d' % (ST0 + 2 * i))
            a('buffer_store_dword v2, v1, s[8:11], s68 offen offset:%d' % (4 * i))
        a('s_mov_b64 exec, -1')


def jitter(a, k):
    if 'jit' in OPTV:
        l = label('jt')
        a('''s_mul_i32 s69, s2, %d
s_add_u32 s69, s69, s3
s_mul_i32 s69, s69, %d
s_lshr_b32 s69, s69, 7
s_and_b32 s69, s69, 3
s_cmp_lg_u32 s69, 0
s_cbranch_scc1 %s
s_sleep %s
%s:''' % (13 + 2 * k, 0x9e37 + 64 * k + int(OPTV.get('js', 0)), l, OPTV['jit'], l))


_lab = [0]


def label(p):
    _lab[0] += 1
    return 'L_%s%d' % (p, _lab[0])


def lds_spin(a, va, vt, off, thr, st=66, nap=1):
    l, e = label('sp'), label('se')
    a('''s_mov_b32 s%d, 0
%s:
ds_read_b32 v%d, v%d offset:%d
s_add_u32 s%d, s%d, 1
s_waitcnt lgkmcnt(0)
v_readfirstlane_b32 s%d, v%d
s_cmp_ge_u32 s%d, %d
s_cbranch_scc1 %s
s_cmp_ge_u32 s%d, %d
s_cbranch_scc1 %s
s_sleep %d
s_branch %s
%s:''' % (st, l, vt, va, off, st, st, st + 1, vt, st, SPIN_MAX, e, st + 1, thr, e, nap, l, e))


def lds_add(a, va, vt, off):
    a('''v_mov_b32 v%d, 1
s_mov_b64 exec, 1
ds_add_u32 v%d, v%d offset:%d
s_mov_b64 exec, -1''' % (vt, va, vt, off))


def arrive_publish(a, va, vt, off, nwaves, sflag, vz):
    e = label('np')
    a('''v_mov_b32 v%d, 1
s_mov_b64 exec, 1
ds_add_rtn_u32 v%d, v%d, v%d offset:%d
v_mov_b32 v%d, 0
s_waitcnt lgkmcnt(0)
v_readfirstlane_b32 s66, v%d
v_mov_b32 v%d, s7
s_cmp_eq_u32 s66, %d
s_cbranch_scc0 %s
buffer_store_dword v%d, v%d, s[8:11], s%d offen sc1
%s:
s_mov_b64 exec, -1''' % (vt, vt, va, vt, off, vz, vt, vt, nwaves - 1, e, vt, vz, sflag, e))


def flag_poll(a, voff, vt, vt2, sbase):
    l, e = label('fp'), label('fe')
    ld = 'buffer_load_dword v%d, v%d, s[8:11], s%d offen sc1'
    a('''s_mov_b32 s66, 0
%s
s_sleep 4
%s:
%s
s_waitcnt vmcnt(1)
v_cmp_eq_u32 vcc, s7, v%d
s_add_u32 s66, s66, 1
s_cmp_eq_u64 vcc, -1
s_cbranch_scc1 %s
s_sleep 2
%s
s_waitcnt vmcnt(1)
v_cmp_eq_u32 vcc, s7, v%d
s_cmp_ge_u32 s66, %d
s_cbranch_scc1 %s
s_cmp_eq_u64 vcc, -1
s_cbranch_scc0 %s
%s:''' % (ld % (vt, voff, sbase), l, ld % (vt2, voff, sbase), vt, e, ld % (vt, voff, sbase), vt2, SPIN_MAX, e, l, e))


def flag_poll_lazy(a, voff, vt, sbase, nap):
    l, e = label('fp'), label('fe')
    a('''s_mov_b32 s66, 0
%s:
buffer_load_dword v%d, v%d, s[8:11], s%d offen sc1
s_add_u32 s66, s66, 1
s_waitcnt vmcnt(0)
v_cmp_eq_u32 vcc, s7, v%d
s_cmp_ge_u32 s66, %d
s_cbranch_scc1 %s
s_cmp_eq_u64 vcc, -1
s_cbranch_scc1 %s
s_sleep %d
s_branch %s
%s:''' % (l, vt, voff, sbase, vt, SPIN_MAX, e, e, nap, l, e))


def tag_check(a, vt, vz, srd0):
    l, e = label('tp'), label('te')
    a('''s_mov_b32 s66, 0
%s:
v_readfirstlane_b32 s7, v%d
s_add_u32 s66, s66, 1
s_cmp_lg_u32 s7, 0
s_cbranch_scc1 %s
s_cmp_ge_u32 s66, %d
s_cbranch_scc1 %s
buffer_load_dword v%d, v%d, s[%d:%d], 0 offen sc1
s_waitcnt vmcnt(0)
s_branch %s
%s:''' % (l, vt, e, SPIN_MAX, e, vt, vz, srd0, srd0 + 3, l, e))


def kgen_stream():
    a = A()
    P = 20
    for i in range(8):
        a('v_lshlrev_b32 %s, 16, %s' % (vr(P + i), vr(P + i)))
    Are, Aim, Bre, Bim, Cre, Cim, LDT, DSK = range(P, P + 8)
    a('v_mul_f32 v%d, s51, v%d' % (LDT, LDT))
    a('v_exp_f32 v%d, v%d' % (LDT, LDT))
    a('s_nop 0')
    a('v_cvt_pk_bf16_f32 v%d, v%d, v%d' % (LDT, LDT, LDT))
    a('v_lshlrev_b32 v%d, 16, v%d' % (LDT, LDT))
    a('v_mul_f32 v%d, v%d, v%d' % (Are, LDT, Are))
    a('v_mul_f32 v%d, v%d, v%d' % (Aim, LDT, Aim))
    a('v_mul_f32 v%d, v%d, v%d' % (Bre, LDT, Bre))
    a('v_mul_f32 v%d, v%d, v%d' % (Bim, LDT, Bim))
    a('v_mul_f32 v%d, s51, v%d' % (Are, Are))
    a('v_mul_f32 v%d, 0.15915494, v%d' % (Aim, Aim))
    G = [32 + 2 * i for i in range(32)]
    W = [96 + 2 * i for i in range(9)]
    Z1, Z2, Z4, Z32 = 114, 116, 118, 120
    ZB = {256: 122, 512: 124, 768: 126, 1024: 128, 1280: 130, 1536: 132, 1792: 134}
    T0, PK, AD = 136, 146, 154
    R = {}
    nxt = 32
    for h in (0, 1):
        for e in ROWS[h]:
            if e is None:
                continue
            if e <= 8:
                R[e] = W[e]
            else:
                R[e] = nxt
                nxt += 2
    cmul_many(a, [(W[0], Cre, Bre)])
    direct = [(Z1, 1.0), (G[1], 8.0), (Z32, 32.0), (ZB[256], 256.0), (ZB[1024], 1024.0)]
    for i, (z, e) in enumerate(direct):
        a('v_mul_f32 v%d, 0x%x, v%d' % (T0 + 2 * i, f2u(e), Are))
        a('v_mul_f32 v%d, 0x%x, v%d' % (T0 + 2 * i + 1, f2u(e), Aim))
    for i, (z, e) in enumerate(direct):
        a('v_exp_f32 v%d, v%d' % (T0 + 2 * i, T0 + 2 * i))
        a('v_fract_f32 v%d, v%d' % (T0 + 2 * i + 1, T0 + 2 * i + 1))
    for i, (z, e) in enumerate(direct):
        a('v_cos_f32 v%d, v%d' % (z, T0 + 2 * i + 1))
        a('v_sin_f32 v%d, v%d' % (z + 1, T0 + 2 * i + 1))
    a('v_mov_b32 v%d, 1.0' % G[0])
    a('v_mov_b32 v%d, 0' % (G[0] + 1))
    for i, (z, e) in enumerate(direct):
        a('v_mul_f32 v%d, v%d, v%d' % (z, z, T0 + 2 * i))
        a('v_mul_f32 v%d, v%d, v%d' % (z + 1, z + 1, T0 + 2 * i))
    cmul_many(a, [(G[2], G[1], G[1]), (Z2, Z1, Z1), (W[1], W[0], Z1), (W[8], W[0], G[1]), (ZB[512], ZB[256], ZB[256]),
                  (ZB[1280], ZB[1024], ZB[256]), (G[5], G[1], Z32)])
    a('v_mov_b32 v%d, v%d' % (G[4], Z32))
    a('v_mov_b32 v%d, v%d' % (G[4] + 1, Z32 + 1))
    cmul_many(a, [(G[3], G[2], G[1]), (Z4, Z2, Z2), (W[2], W[0], Z2), (W[3], W[1], Z2), (ZB[768], ZB[512], ZB[256]),
                  (ZB[1536], ZB[1024], ZB[512]), (G[6], G[2], Z32)])
    cmul_many(a, [(G[7], G[3], Z32), (W[4], W[0], Z4), (W[5], W[1], Z4), (W[6], W[2], Z4), (W[7], W[3], Z4),
                  (ZB[1792], ZB[1024], ZB[768])])
    for i0 in range(8, 32, 4):
        cmul_many(a, [(G[i], G[i - 4], Z32) for i in range(i0, i0 + 4)])
    nvalu = len(a.L)
    for c in range(8):
        a('v_xor_b32 v%d, %d, v13' % (AD + c, c << 4))
    rowidx = [None] * 32
    for h in (0, 1):
        for r in range(16):
            rowidx[8 * (r >> 2) + 4 * h + (r & 3)] = ROWS[h][r]
    nput = [0]

    def put(c, regs, neg, off):
        pk = PK + 4 * (nput[0] & 1)
        nput[0] += 1
        for j in range(4):
            a('v_cvt_pk_bf16_f32 v%d, %sv%d, %sv%d' % (pk + j, neg, regs[2 * j], neg, regs[2 * j + 1]))
        a('ds_write_b128 v%d, %s%s' % (AD + c, vr(pk, 4), off))

    for c in range(8):
        put(c, [G[8 * (c & 3) + j] + (c >> 2) for j in range(8)], '', '')
    big = [e for e in R if e > 8]
    items = [(R[e], W[e & 255], ZB[e & ~255]) for e in big]
    for i0 in range(0, len(items), 5):
        cmul_many(a, items[i0:i0 + 5])
    for c in range(8):
        comp = c >> 2
        regs = [(R[e] if e is not None else W[0]) + comp for e in rowidx[8 * (c & 3):8 * (c & 3) + 8]]
        put(c, regs, '-' if comp else '', ' offset:8192')
    a('s_waitcnt lgkmcnt(0)')
    KD, FR, NB = 32, 48, 4

    def gen_reads(s):
        off = s * 1024
        b = FR + 8 * (s % NB)
        a('ds_read_b64_tr_b16 %s, v14 offset:%d' % (vr(b, 2), off + 8192))
        a('ds_read_b64_tr_b16 %s, v15 offset:%d' % (vr(b + 2, 2), off + 8192))
        a('ds_read_b64_tr_b16 %s, v14 offset:%d' % (vr(b + 4, 2), off))
        a('ds_read_b64_tr_b16 %s, v15 offset:%d' % (vr(b + 6, 2), off))

    for s in range(3):
        gen_reads(s)
    for s in range(8):
        if s + 3 < 8:
            gen_reads(s + 3)
        a('s_waitcnt lgkmcnt(%d)' % (4 * min(3, 7 - s)))
        b = FR + 8 * (s % NB)
        a(mfma(KD, b, b + 4, None if s == 0 else KD))
    a('s_nop 15')
    for j in range(4):
        a('ds_write_b128 v16, %s offset:%d' % (vr(KD + 4 * j, 4), 1024 * j))
    a('s_waitcnt lgkmcnt(0)')
    return a.L, nvalu


def transpose_addrs(a, sw, vrd, vwr, vlin, t0, t1, usi, uso):
    a('''v_lshrrev_b32 v{t0}, 4, v4
v_bfe_u32 v{t1}, v4, 2, 2
v_lshl_add_u32 v{t1}, v{t0}, 3, v{t1}
v_lshlrev_b32 v{rd}, 7, v{t1}
v_and_b32 v{t1}, 3, v4
v_lshl_add_u32 v{rd}, v{t1}, 3, v{rd}
s_lshl_b32 s66, s{w}, 5
s_add_u32 s66, s66, {usi}
v_add_u32 v{rd}, s66, v{rd}
v_and_b32 v{t1}, 7, v4
v_xor_b32 v{t0}, v{t0}, v{t1}
v_lshlrev_b32 v{t0}, 4, v{t0}
v_and_b32 v{t1}, 15, v4
v_lshl_add_u32 v{wr}, v{t1}, 7, v{t0}
s_lshl_b32 s66, s{w}, 11
s_add_u32 s66, s66, {uso}
v_add_u32 v{wr}, s66, v{wr}
v_lshl_add_u32 v{lin}, v4, 4, s66
v_lshrrev_b32 v{t0}, 3, v4
v_and_b32 v{t1}, 7, v4
v_xor_b32 v{t1}, v{t1}, v{t0}'''.format(t0=t0, t1=t1, rd=vrd, wr=vwr, lin=vlin, w=sw, usi=usi, uso=uso))


def transpose_a(a, vrd, vwr, d, t):
    a('''ds_read_b64_tr_b16 v[{d0}:{d1}], v{rd}
ds_read_b64_tr_b16 v[{d2}:{d3}], v{rd} offset:512
ds_read_b64_tr_b16 v[{d4}:{d5}], v{rd} offset:4096
ds_read_b64_tr_b16 v[{d6}:{d7}], v{rd} offset:4608
v_xor_b32 v{t}, 64, v{wr}
s_waitcnt lgkmcnt(2)
ds_write_b128 v{wr}, v[{d0}:{d3}]
s_waitcnt lgkmcnt(1)
ds_write_b128 v{t}, v[{d4}:{d7}]
s_waitcnt lgkmcnt(0)'''.format(rd=vrd, wr=vwr, t=t, **{'d%d' % i: d + i for i in range(8)}))


def kernel():
    a = A()
    KN = NAME + '_kernel'
    a('''.p2align 8
.type {k},@function
{k}:
s_cmp_ge_u32 s2, 256
s_cbranch_scc1 L_end
s_load_dwordx16 s[16:31], s[0:1], 8
s_load_dwordx4 s[32:35], s[0:1], 72
s_load_dwordx4 s[36:39], s[0:1], 104'''.format(k=KN))
    stamp(a, 0, True)
    stamp(a, 1)
    if 'enc' in OPTV:
        a('s_memrealtime s[90:91]')
    a('''v_lshrrev_b32 v3, 6, v0
v_and_b32 v4, 63, v0
s_and_b32 s44, s2, 7
s_lshr_b32 s45, s2, 3
v_readfirstlane_b32 s3, v3
s_lshl_b32 s60, s44, 6
s_lshl_b32 s46, s45, 1
s_add_u32 s60, s60, s46
s_lshl_b32 s46, s60, 8
v_lshl_add_u32 v5, v0, 1, s46
s_lshr_b32 s4, s44, 1
s_lshl_b32 s4, s4, 3
s_and_b32 s46, s45, 7
s_add_u32 s4, s4, s46
s_and_b32 s5, s44, 1
s_lshl_b32 s5, s5, 2
s_lshr_b32 s47, s45, 3
s_add_u32 s5, s5, s47
s_lshl_b32 s47, s47, 1
%s
s_cmp_ge_u32 s3, 4
s_cbranch_scc1 L_gemm''' % {'0': 's_mov_b32 s6, 0', '1': 's_add_u32 s6, s46, s47', '2': 's_and_b32 s6, s46, 4', '3': 's_and_b32 s6, s46, 6'}[OPTV.get('rot', '1')])
    SEG = (1, 2, 0)
    S = [16, 32]
    Pp = [48, 56]
    O = [64, 80]
    Q = [96, 100]
    OWN = 'own' in OPT
    DK = int(OPTV.get('dk', 3))
    NB, NBV = DK + 1, DK + 1 if DK == 3 else DK
    K = [104 + 4 * b for b in range(NB)]
    V0 = 104 + 4 * NB
    V = [[V0 + 8 * b, V0 + 4 + 8 * b] for b in range(NBV)]
    KA, VA = 14, 15
    assert V0 + 8 * NBV <= 160

    WOW = OPTV.get('wow', 'mid')

    def wo_dma():
        srd(a, 12, 32, 512 * 1024)
        a('''v_lshrrev_b32 v6, 3, v4
v_lshlrev_b32 v6, 10, v6
v_bfe_u32 v7, v4, 4, 1
v_lshlrev_b32 v7, 2, v7
v_and_b32 v8, 7, v4
v_xor_b32 v7, v7, v8
v_lshl_add_u32 v6, v7, 4, v6
v_add_u32 v7, %d, v6
s_lshl_b32 s57, s48, 10
s_lshl_b32 s26, s49, 14
s_add_u32 s57, s57, s26
s_lshl_b32 s26, s5, 7
s_lshl_b32 s27, s48, 13
s_add_u32 s26, s26, s27''' % (16384 - 2048))
        for cc in range(4):
            a('s_add_u32 s38, s51, %d' % cc)
            a('s_and_b32 s38, s38, 7')
            a('s_lshl_b32 s30, s38, 16')
            for g in range(2):
                a('s_add_u32 m0, s57, %d' % (g * 32768 + cc * 4096))
                a('s_add_u32 s30, s30, s26' if g == 0 else 's_add_u32 s30, s30, 0x8000')
                a('buffer_load_dwordx4 v6, s[12:15], s30 offen lds')
                a('buffer_load_dwordx4 v7, s[12:15], s30 offen offset:2048 lds')

    def att_prologue(early):
        a('''s_lshr_b32 s19, s3, 3
s_and_b32 s18, s3, 1
s_lshl_b32 s24, s19, 1
s_add_u32 s18, s18, s24
s_bfe_u32 s24, s3, 0x10001
v_lshlrev_b32 v5, 4, v4
s_lshl_b32 s26, s18, 10
s_add_u32 s26, s26, %d
s_lshl_b32 s27, s24, 12
s_add_u32 s26, s26, s27
v_add_u32 v13, s26, v5
s_lshl_b32 s27, s5, 2
s_add_u32 s18, s18, s27
s_lshl_b32 s22, s18, 16
s_add_u32 s27, s22, %d
v_add_u32 v%d, s27, v5
s_lshl_b32 s36, s24, 10
%s
s_mov_b32 s37, s36
v_lshrrev_b32 v6, 5, v4
v_and_b32 v7, 15, v4
v_lshlrev_b32 v7, 4, v7
v_lshl_add_u32 v7, v6, 8, v7
s_add_u32 s27, s22, %d
v_add_u32 v%d, s27, v7
v_and_b32 v6, 31, v4
v_cmp_eq_u32 vcc, 16, v6
v_cmp_eq_u32 s[28:29], 20, v6
s_mov_b32 s30, 0x3f803f80
s_or_b64 vcc, vcc, s[28:29]
v_mov_b32 v7, s30
s_mov_b32 s40, 0xffff
s_mov_b32 s41, 0xffff
v_cndmask_b32 v6, 0, v7, vcc''' % (QX, KF, KA, 's_lshl_b32 s37, s4, 11\ns_add_u32 s36, s36, s37' if OWN else '', VF, VA))
        for b in range(NBV):
            for u in range(2):
                for j in range(4):
                    a('v_mov_b32 v%d, v6' % (V[b][u] + j))
        for q in range(2):
            for j in range(16):
                a('v_mov_b32 v%d, 0' % (O[q] + j))

        if early:
            a('''s_and_b32 s48, s3, 1
s_bfe_u32 s49, s3, 0x10001
v_lshrrev_b32 v8, 5, v4
v_bfe_u32 v160, v4, 2, 2
v_lshl_add_u32 v160, v8, 2, v160
v_lshlrev_b32 v160, 7, v160
v_bfe_u32 v9, v4, 3, 1
v_lshl_add_u32 v160, v9, 6, v160
v_and_b32 v9, 1, v4
v_lshl_add_u32 v160, v9, 5, v160
v_bfe_u32 v9, v4, 4, 1
v_lshl_add_u32 v160, v9, 4, v160
v_bfe_u32 v9, v4, 1, 1
v_lshl_add_u32 v160, v9, 3, v160
s_lshl_b32 s26, s49, 14
v_add_u32 v160, s26, v160
v_xor_b32 v161, 64, v160
v_and_b32 v162, 31, v4
v_lshlrev_b32 v162, 11, v162
v_lshl_add_u32 v162, v8, 5, v162
s_lshl_b32 s26, s4, 17
s_lshl_b32 s50, s48, 16
s_add_u32 s26, s26, s50
s_lshl_b32 s27, s5, 7
s_add_u32 s26, s26, s27
s_lshl_b32 s50, s49, 6
s_add_u32 s50, s50, s26
s_add_u32 s50, s50, 1024
s_lshl_b32 s51, s49, 2
s_add_u32 s51, s51, s5
v_and_b32 v163, 3, v4
v_add_u32 v163, s51, v163
v_and_b32 v163, 7, v163
v_lshlrev_b32 v163, 7, v163
s_lshl_b32 s52, s4, 10
s_add_u32 s52, s52, %d
s_lshl_b32 s53, s4, 16
s_lshl_b32 s26, s48, 15
s_add_u32 s53, s53, s26
s_add_u32 s53, s53, %d
s_sub_u32 s26, s3, 4
s_lshl_b32 s27, s26, 12
s_add_u32 s27, s27, %d
v_add_u32 v164, s27, v5
v_xor_b32 v165, 0x2000, v164
s_lshl_b32 s26, s26, 2
v_add_u32 v166, s26, v12
v_xor_b32 v167, 8, v166''' % (FL2, OF, GEN))
        else:
            a('v_mov_b32 v163, 0')
            a('s_mov_b32 s52, %d' % FL2)
        a('''s_lshl_b32 s54, s4, 1
s_add_u32 s54, s54, s24
s_lshl_b32 s54, s54, 15
s_lshl_b32 s26, s18, 10
s_add_u32 s54, s54, s26
s_add_u32 s54, s54, %d
v_mov_b32 v8, -1
v_mov_b32 v9, -1
v_mov_b32 v10, -1
v_mov_b32 v11, -1
s_lshl_b32 s55, s4, 3
s_add_u32 s55, s55, s5
s_lshl_b32 s55, s55, 7
s_add_u32 s55, s55, %d
buffer_store_dwordx4 v[8:11], v5, s[8:11], s54 offen sc1''' % (OF, FL2))


    a('''s_lshr_b32 s61, s3, 1
s_add_u32 s52, s60, s61
s_lshl_b32 s46, s52, 1
v_mov_b32 v19, s46
s_and_b32 s53, s3, 1
s_waitcnt lgkmcnt(0)''')
    P = 20
    a('global_load_ushort %s, v19, s[28:29]' % vr(P + 6))
    for i in range(6):
        a('global_load_ushort %s, v5, %s' % (vr(P + i), sr(16 + 2 * i, 2)))
    a('global_load_ushort %s, v19, s[30:31]' % vr(P + 7))
    a('''s_getpc_b64 s[40:41]
v_and_b32 v1, 7, v0
v_lshlrev_b32 v1, 7, v1
s_lshl_b32 s46, s45, 10
v_add_u32 v1, s46, v1
global_load_dword v2, v1, s[40:41]''')
    a('s_branch L_gen2')

    a('''L_gemm:
s_cmp_ge_u32 s3, 8
s_cbranch_scc1 L_mm
s_setprio 2
s_sub_u32 s61, s3, 4
v_lshrrev_b32 v10, 3, v4
v_lshrrev_b32 v11, 4, v4
v_and_b32 v12, 7, v4
v_xor_b32 v13, v12, v11
s_lshl_b32 s47, s61, 4
v_add_u32 v10, s47, v10
s_lshl_b32 s46, s4, 16
v_lshl_add_u32 v14, v10, 10, s46
v_lshl_add_u32 v6, v13, 4, v14
v_xor_b32 v7, 64, v6
v_add_u32 v7, 0x1c00, v7
v_lshlrev_b32 v16, 10, v10
v_lshl_add_u32 v16, v12, 4, v16
v_mul_u32_u24 v10, 3072, v10
v_and_b32 v11, 1, v11
v_lshlrev_b32 v11, 2, v11
v_xor_b32 v12, v12, v11
v_lshl_add_u32 v8, v12, 4, v10
s_lshl_b32 s46, s5, 7
v_add_u32 v8, s46, v8
v_add_u32 v9, %d, v8
s_lshl_b32 s48, s61, 11
s_waitcnt lgkmcnt(0)''' % (8 * 3072 - 1024))
    srd(a, 16, 32, 2048 * 1024)
    srd(a, 12, 34, 512 * 3072)

    def dma_chunk(c):
        slot = (c % 6) * 16384
        if c < 8:
            a('s_add_u32 s50, s6, %d' % c)
            a('s_and_b32 s50, s50, 7')
            a('s_mul_i32 s49, s50, %d' % (64 * 3072))
            a('s_add_u32 m0, s48, %d' % slot)
            a('s_lshl_b32 s50, s50, 7')
            a('buffer_load_dwordx4 v6, s[16:19], s50 offen lds')
            a('buffer_load_dwordx4 v7, s[16:19], s50 offen offset:1024 lds')
            a('s_add_u32 m0, s48, %d' % (slot + 8192))
            a('s_add_u32 s49, s49, %d' % (SEG[0] * 1024))
            a('buffer_load_dwordx4 v8, s[12:15], s49 offen lds')
            a('buffer_load_dwordx4 v9, s[12:15], s49 offen offset:1024 lds')
        else:
            p, j = 1 + ((c - 8) >> 2), (c - 8) & 3
            for hf in range(2):
                a('s_add_u32 s50, s6, %d' % (2 * j + hf))
                a('s_and_b32 s50, s50, 7')
                a('s_mul_i32 s49, s50, %d' % (64 * 3072))
                a('s_add_u32 m0, s48, %d' % (slot + hf * 8192))
                a('s_add_u32 s49, s49, %d' % (SEG[p] * 1024))
                a('buffer_load_dwordx4 v8, s[12:15], s49 offen lds')
                a('buffer_load_dwordx4 v9, s[12:15], s49 offen offset:1024 lds')

    dma_chunk(0)
    dma_chunk(1)
    a('s_load_dwordx2 s[20:21], s[0:1], 0')
    srd(a, 8, 38, WS_BYTES)
    transpose_addrs(a, 61, 20, 21, 22, 23, 24, USI, USO)
    a('''s_lshl_b32 s46, s45, 16
s_lshl_b32 s47, s44, 7
s_add_u32 s58, s46, s47
s_add_u32 s59, s48, %d
v_add_u32 v17, 0x1c00, v16
v_mov_b32 v12, %d
s_waitcnt lgkmcnt(0)''' % (USI, CNT))
    srd(a, 60, 20, 2048 * 1024)
    jitter(a, 7)
    order = [0, 1]
    cnt = lambda x: 4 if isinstance(x, int) else x[1]
    stamp(a, 2)
    for c in range(16):
        a('s_waitcnt vmcnt(%d)' % (sum(cnt(x) for x in order[order.index(c) + 1:]) if c < 15 else 0))
        if c in (0, 8, 12):
            stamp(a, {0: 3, 8: 4, 12: 5}[c])
        a('s_barrier')
        if 'bars' in OPT and c <= 12 and c != 1:
            n = 1 + c - (c > 1)
            a('s_memrealtime s[%d:%d]' % (ST0 + 2 * n, ST0 + 2 * n + 1))
        for n in {0: [2, 3], 1: [4, 5]}.get(c, [c + 4] if c + 4 < 16 else []):
            dma_chunk(n)
            order.append(n)
        if c == int(OPTV.get('wpo', 11)) and WOW == 'win':
            a('''s_load_dwordx2 s[32:33], s[0:1], 88
v_and_b32 v26, 15, v4
v_lshlrev_b32 v26, 10, v26
s_and_b32 s46, s4, 7
s_lshl_b32 s46, s46, 16
s_lshl_b32 s47, s5, 7
s_add_u32 s46, s46, s47
s_lshl_b32 s47, s48, 3
s_add_u32 s46, s46, s47
v_add_u32 v26, s46, v26
s_waitcnt lgkmcnt(0)
global_load_dword v27, v26, s[32:33]''')
            order.append(('w', 1))
        if c == 12:
            att_prologue(True)
            order.append(('m', 1))
        if c == 13:
            a('s_mov_b32 m0, s59')
            a('s_nop 0')
            a('buffer_load_dwordx4 v16, s[60:63], s58 offen lds')
            a('buffer_load_dwordx4 v17, s[60:63], s58 offen offset:1024 lds')
            order.append(('u', 2))
        if c == 15:
            transpose_a(a, 20, 21, 32, 25)
    a('''s_load_dwordx2 s[32:33], s[0:1], 88
s_waitcnt lgkmcnt(0)
s_barrier
ds_read_b32 v1, v12 offset:%d
s_waitcnt lgkmcnt(0)
v_readfirstlane_b32 s7, v1''' % C_TAG)
    if WOW == 'win':
        wo_dma()
    a('s_branch L_att')

    a('L_gen2:')
    srd(a, 8, 38, WS_BYTES)
    srd(a, 12, 36, 256)
    a('''v_mov_b32 v18, 0
s_or_b32 s46, s2, s3
s_cmp_eq_u32 s46, 0
s_cbranch_scc0 L_notag
s_memrealtime s[46:47]
s_waitcnt lgkmcnt(0)
s_or_b32 s46, s46, 1
v_mov_b32 v1, s46
s_mov_b64 exec, 1
buffer_store_dword v1, v18, s[12:15], 0 offen sc1
s_mov_b64 exec, -1
s_waitcnt vmcnt(0)
L_notag:''')
    a('''s_lshl_b32 s62, s3, 14
s_add_u32 s62, s62, %d
v_and_b32 v10, 7, v4
v_lshlrev_b32 v10, 4, v10
v_lshl_add_u32 v13, v4, 7, v10
v_add_u32 v13, s62, v13
v_lshrrev_b32 v10, 5, v4
v_bfe_u32 v11, v4, 3, 1
v_lshl_add_u32 v10, v10, 2, v11
v_bfe_u32 v11, v4, 2, 1
v_lshlrev_b32 v11, 2, v11
v_bfe_u32 v12, v4, 4, 1
v_lshl_add_u32 v11, v12, 1, v11
v_bfe_u32 v12, v4, 1, 1
v_add_u32 v11, v11, v12
v_xor_b32 v11, v11, v10
v_lshlrev_b32 v11, 4, v11
v_lshl_add_u32 v11, v10, 7, v11
v_and_b32 v12, 1, v4
v_lshl_add_u32 v11, v12, 3, v11
v_add_u32 v14, s62, v11
v_xor_b32 v15, 32, v14
v_add_u32 v15, 256, v15
v_lshl_add_u32 v16, v4, 4, s62
v_xor_b32 v17, 0x4000, v16
v_mov_b32 v12, %d
s_mov_b32 s51, 0x%x''' % (GEN, CNT, f2u(LOG2E)))
    p1, nvalu = kgen_stream()
    sizes = [int(x) for x in OPTV.get('sl', '80,140,31').split(',')]
    cuts = [0]
    for z in sizes:
        cuts.append(min(len(p1), cuts[-1] + z))
    print('kgen instructions', len(p1), 'pure valu', nvalu, cuts, file=sys.stderr)
    a('s_load_dwordx4 s[32:35], s[0:1], 88')
    stamp(a, 2)
    jitter(a, 1)
    a('s_waitcnt vmcnt(1) lgkmcnt(0)')
    for c in range(16):
        if c < len(sizes):
            a.L += p1[cuts[c]:cuts[c + 1]]
        if c == 8:
            a('buffer_load_dword v1, v18, s[12:15], 0 offen sc1')
        if c == 14:
            a('s_waitcnt vmcnt(0)')
            tag_check(a, 1, 18, 12)
            a('''v_cmp_eq_u32 vcc, 0, v4
v_lshl_add_u32 v2, v4, 2, v12
s_cmp_eq_u32 s3, 0
v_cndmask_b32 v1, 0, v1, vcc
s_cbranch_scc0 L_tagd
ds_write_b32 v2, v1
s_waitcnt lgkmcnt(0)
L_tagd:''')
        a('s_barrier')
    a('s_barrier')
    stamp(a, 3)
    if 'noc' in OPT:
        lds_add(a, 12, 1, C_Y2)
        a('s_waitcnt lgkmcnt(0)')
        stamp_dump(a)
        a('s_endpgm')
    a('s_setprio %s' % OPTV.get('cprio', '3'))
    a('''s_lshl_b32 s46, s3, 11
s_add_u32 s46, s46, %d
v_lshl_add_u32 v6, v4, 4, s46
ds_read_b128 v[8:11], v6
ds_read_b128 v[28:31], v6 offset:1024
v_lshrrev_b32 v6, 3, v4
v_and_b32 v7, 7, v4
v_xor_b32 v7, v7, v6
v_mul_u32_u24 v6, %d, v6
v_lshl_add_u32 v6, v7, 4, v6
s_mul_i32 s46, s44, %d
s_mul_i32 s47, s3, %d
s_add_u32 s46, s46, s47
s_lshl_b32 s47, s45, 7
s_add_u32 s46, s46, s47
s_add_u32 s46, s46, %d
s_add_u32 s47, s46, %d
s_lshl_b32 s65, s44, 5
s_add_u32 s65, s65, s45
s_lshl_b32 s65, s65, 6
s_add_u32 s65, s65, %d
s_waitcnt lgkmcnt(1)
buffer_store_dwordx4 v[8:11], v6, s[8:11], s46 offen sc1
s_waitcnt lgkmcnt(0)
buffer_store_dwordx4 v[28:31], v6, s[8:11], s47 offen sc1''' % (USO, RS, 64 * RS, 16 * RS, UT, 8 * RS, FLU))
    srd(a, 16, 34, 2048 * 2048)
    srd(a, 12, 32, 512 * 1024)
    jitter(a, 2)
    a.L += p1[cuts[-1]:]
    jitter(a, 3)
    a('s_waitcnt vmcnt(0)')
    arrive_publish(a, 12, 1, C_U, 4, 65, 2)
    a('s_lshl_b32 s63, s61, 2')
    a('v_add_u32 v11, s63, v12')
    lds_add(a, 11, 1, C_PAIR)
    KD = 32
    a('''v_and_b32 v28, 31, v4
v_lshrrev_b32 v29, 5, v4
s_lshl_b32 s46, s53, 6
s_add_u32 s46, s46, s62
s_add_u32 s46, s46, %d
v_lshlrev_b32 v10, 4, v28
v_sub_u32 v18, s46, v10
v_cmp_eq_u32 s[56:57], 0, v4
s_mov_b32 s58, -1
s_mov_b32 s59, 0
s_mov_b32 s40, 0
s_mov_b32 s41, -1''' % (KCOPY + 255 * 16))
    for sl, (b0, b1) in enumerate([(0, 32), (128, 64)]):
        a('v_mul_i32_i24 v10, %d, v29' % ((b1 - b0) * 16))
        a('v_sub_u32 v%d, v18, v10' % (80 + sl))
        if b0:
            a('v_subrev_u32 v%d, %d, v%d' % (80 + sl, b0 * 16, 80 + sl))
    a('''v_subrev_u32 v82, %d, v18
v_lshrrev_b32 v10, 2, v28
v_lshlrev_b32 v10, 1, v10
v_lshl_add_u32 v10, v29, 5, v10
s_lshl_b32 s47, s53, 1
s_sub_u32 s47, s46, s47
s_add_u32 s48, s47, %d
v_sub_u32 v10, s48, v10
v_and_b32 v83, 3, v28
v_lshl_add_u32 v83, v83, 7, v10
v_bfe_u32 v84, v28, 1, 1
v_lshl_add_u32 v84, v84, 7, v10
s_add_u32 s48, s46, %d
v_lshl_add_u32 v85, v4, 4, s48
s_add_u32 s48, s47, %d
v_lshl_add_u32 v86, v4, 1, s48
s_mov_b32 s42, 0x55555555
s_mov_b32 s43, 0x55555555''' % (96 * 16, ZOFF + 62 - 32 - 255 * 16, 416 - 255 * 16, 490 - 255 * 16))
    a('''v_lshl_add_u32 v87, v4, 4, s46
v_add_u32 v87, 16, v87
s_lshl_b32 s64, s61, 15
s_add_u32 s64, s64, %d
s_lshl_b32 s47, s53, 1
v_add_u32 v10, s47, v29
v_mul_u32_u24 v10, 1536, v10
v_lshl_add_u32 v10, v28, 4, v10
v_add_u32 v10, s64, v10
v_mov_b32 v88, 0
v_mov_b32 v89, 0
v_mov_b32 v90, 0
v_mov_b32 v91, 0''' % (GEN + UIMG))
    lds_spin(a, 11, 1, C_PAIR, 2)
    a('ds_write_b128 v10, v[88:91]')
    a('ds_write_b128 v85, v[88:91]')
    for j in range(4):
        a('ds_read_b128 %s, v17 offset:%d' % (vr(48 + 4 * j, 4), 1024 * j))
    a('''v_mov_b32 v8, 0x3f80
s_mov_b64 exec, 0xff
ds_write_b16 v86, v8
s_mov_b64 exec, -1''')
    a('v_cndmask_b32 v9, 0, v27, s[56:57]')
    a('v_add_f32 v%d, v%d, v9' % (KD, KD))
    a('s_waitcnt lgkmcnt(0)')
    for j in range(16):
        a('v_add_f32 v%d, v%d, v%d' % (KD + j, KD + j, 48 + j))
    for i, r in enumerate((9, 11, 13)):
        a('v_sub_f32 v%d, v%d, v%d' % (48 + i, KD + r, KD + r + 1))
    for i, r in enumerate((9, 11, 13)):
        a('v_cvt_pk_bf16_f32 v%d, v%d, v%d' % (48 + i, KD + r + 1, 48 + i))
    a('v_cndmask_b32 v51, 0, v%d, s[56:57]' % (KD + 9))
    for i in (1, 0, 2):
        if i == 0:
            a('s_mov_b64 exec, s[58:59]')
        a('ds_write_b16 v83, v%d offset:%d' % (48 + i, 32 - 16 * i))
    a('s_mov_b64 exec, s[42:43]')
    for i in (1, 0, 2):
        if i == 0:
            a('s_mov_b32 exec_hi, 0')
        a('ds_write_b16_d16_hi v84, v%d offset:%d' % (48 + i, 512 + 32 - 16 * i))
    a('s_mov_b64 exec, -1')
    OB = 64

    def pack(dst, vals):
        for j in range(4):
            a('v_cvt_pk_bf16_f32 v%d, v%d, v%d' % (dst + j, vals[2 * j], vals[2 * j + 1]))

    def emit_copy(cp):
        k = lambda r: KD + r
        r0 = [k(i) for i in range(9)]
        r1 = [k(0), k(0), k(1), k(2), k(2), k(2), k(3), k(4), k(4)]
        r2 = lambda b: [k(b), k(b), k(b), k(b + 1), k(b + 1), k(b + 1), k(b + 2), k(b + 2), k(b + 2)]
        r3 = [51] * 4 + [89] * 5
        sel = (lambda p: p[8:0:-1]) if cp == 0 else (lambda p: p[7::-1])
        a('s_mov_b64 exec, s[58:59]')
        pack(OB, sel(r0))
        pack(OB + 4, sel(r3))
        a('s_mov_b64 exec, s[40:41]')
        pack(OB, sel(r1))
        pack(OB + 4, sel(r2(5)))
        pack(OB + 8, sel(r2(8)))
        a('s_mov_b64 exec, -1')
        if cp == 0:
            a('v_cvt_pk_bf16_f32 v10, v%d, v88' % KD)
            a('v_cndmask_b32 v88, 0, v10, s[56:57]')

    a('s_cmp_eq_u32 s53, 0')
    a('s_cbranch_scc0 L_copy1')
    emit_copy(0)
    a('s_branch L_copyd')
    a('L_copy1:')
    emit_copy(1)
    a('L_copyd:')
    for sl in range(2):
        a('ds_write_b128 v%d, %s' % (80 + sl, vr(OB + 4 * sl, 4)))
    a('s_mov_b64 exec, s[40:41]')
    a('ds_write_b128 v82, %s' % vr(OB + 8, 4))
    a('s_mov_b64 exec, 15')
    a('ds_write_b128 v87, v[88:91]')
    a('s_mov_b64 exec, -1')
    if 'x1' in OPT:
        lds_add(a, 12, 1, C_Y2)
        a('s_waitcnt lgkmcnt(0)')
        stamp_dump(a)
        a('s_endpgm')
    stamp(a, 4)
    a('''v_lshlrev_b32 v6, 6, v28
s_lshl_b32 s46, s44, 11
s_add_u32 s46, s46, %d
s_cmp_eq_u32 s3, 0
s_cbranch_scc0 L_uw''' % FLU)
    if 'usl' in OPTV:
        a('s_sleep %s' % OPTV['usl'])
    flag_poll_lazy(a, 6, 1, 46, int(OPTV.get('unap', 8)))
    lds_add(a, 12, 3, C_GOU)
    a('L_uw:')
    lds_spin(a, 12, 3, C_GOU, 1, nap=4)
    a('''v_lshlrev_b32 v6, 6, v4
s_mul_i32 s46, s52, %d
s_lshl_b32 s47, s53, 5
s_add_u32 s46, s46, s47
s_add_u32 s46, s46, %d
s_mul_i32 s47, s53, 3072
s_add_u32 s47, s47, s64
s_add_u32 m0, s47, 512
s_nop 0
buffer_load_dwordx4 v6, s[8:11], s46 offen sc1 lds
s_add_u32 m0, s47, 2048
s_add_u32 s46, s46, 16
buffer_load_dwordx4 v6, s[8:11], s46 offen sc1 lds''' % (RS, UT))
    a('''v_and_b32 v18, 30, v4
v_and_b32 v19, 1, v4
v_lshlrev_b32 v24, 3, v29
v_sub_u32 v24, v24, v18
v_add_u32 v24, 32, v24
v_lshlrev_b32 v24, 1, v24
v_mul_u32_u24 v19, %d, v19
v_add_u32 v24, v24, v19
s_add_u32 s46, s64, %d
v_add_u32 v24, s46, v24
s_lshl_b32 s46, s53, 9
s_add_u32 s46, s46, s64
s_add_u32 s46, s46, %d
v_mul_u32_u24 v25, 1536, v29
v_lshl_add_u32 v25, v28, 4, v25
v_add_u32 v25, s46, v25''' % (16384 + 64 - 4, KCOPY - UIMG + 32 * 120, 512 - 3 * 16))
    TB, UB, CA = 32, 40, 48
    CB = 64
    for j in range(16):
        a('v_mov_b32 v%d, 0' % (CA + j))
    a('''s_add_u32 s34, s53, 8
s_mov_b32 s35, 0
s_waitcnt vmcnt(0) lgkmcnt(0)''')
    lds_add(a, 12, 1, C_CONV)
    if WOW != 'win':
        a('''s_and_b32 s46, s45, 7
s_lshl_b32 s46, s46, 16
s_lshl_b32 s47, s5, 7
s_add_u32 s46, s46, s47
s_lshl_b32 s47, s3, 14
s_add_u32 s46, s46, s47
v_and_b32 v6, 15, v4
v_lshlrev_b32 v6, 10, v6
buffer_load_dword v31, v6, s[12:15], s46 offen''')
    lds_spin(a, 12, 1, C_CONV, 4)
    if 'x2' in OPT:
        lds_add(a, 12, 1, C_Y2)
        a('s_waitcnt lgkmcnt(0)')
        stamp_dump(a)
        a('s_endpgm')
    stamp(a, 5)
    jitter(a, 4)

    def conv_loop(lab, acc, send):
        a(lab + ':')
        for j in range(8):
            t = TB + 4 * (j & 1)
            if 'not' not in OPT or j == 0:
                a('ds_read2_b32 %s, v24 offset0:%d offset1:%d' % (vr(t, 2), 8 * (7 - j), 8 * (7 - j) + 1))
                a('ds_read2_b32 %s, v24 offset0:%d offset1:%d' % (vr(t + 2, 2), 8 * (7 - j) + 2, 8 * (7 - j) + 3))
            a('ds_read_b128 %s, v25 offset:%d' % (vr(UB + 4 * (j & 1), 4), (3072 if j % 2 == 0 else 0) + (3 - (j >> 1)) * 16))
            a('s_waitcnt lgkmcnt(0)')
            a(mfma(acc, UB + 4 * (j & 1), t, acc))
            if 'cs' in OPTV:
                a('s_sleep %s' % OPTV['cs'])
        a('''v_subrev_u32 v24, 256, v24
v_subrev_u32 v25, 64, v25
s_add_u32 s35, s35, 1
s_cmp_lt_u32 s35, %s
s_cbranch_scc1 %s''' % (send, lab))

    if 'noconv' not in OPT:
        conv_loop('L_cl', CA, 's34')
        a('''s_cmp_eq_u32 s53, 0
s_cbranch_scc0 L_cr
v_subrev_u32 v24, 1536, v24
v_add_u32 v25, 512, v25''')
        for j in range(3):
            t = 96 + 8 * j
            a('ds_read2_b32 %s, v24 offset0:%d offset1:%d' % (vr(t, 2), 8 * (7 - j), 8 * (7 - j) + 1))
            a('ds_read2_b32 %s, v24 offset0:%d offset1:%d' % (vr(t + 2, 2), 8 * (7 - j) + 2, 8 * (7 - j) + 3))
            a('ds_read_b128 %s, v25 offset:%d' % (vr(t + 4, 4), (3072 if j % 2 == 0 else 0) + (3 - (j >> 1)) * 16))
        a('''v_lshlrev_b32 v20, 1, v28
v_lshl_add_u32 v20, v29, 8, v20
s_add_u32 s46, s62, 64
v_add_u32 v20, s46, v20
v_mov_b32 v88, 0
v_and_b32 v10, 1, v4
v_xor_b32 v10, 1, v10
v_mul_u32_u24 v21, %d, v10
v_lshlrev_b32 v10, 3, v29
v_sub_u32 v10, v10, v28
v_lshl_add_u32 v21, v10, 1, v21
s_add_u32 s46, s62, %d
v_add_u32 v21, s46, v21
v_bfe_u32 v9, v4, 2, 2
v_lshl_add_u32 v9, v29, 3, v9
v_bfe_u32 v10, v4, 4, 1
v_lshlrev_b32 v10, 2, v10
v_and_b32 v8, 3, v4
v_add_u32 v10, v10, v8
v_lshlrev_b32 v22, 6, v9
v_lshl_add_u32 v22, v10, 3, v22
s_add_u32 s46, s62, 16
v_add_u32 v22, s46, v22
s_waitcnt lgkmcnt(6)''' % (16384 + 64 - 2, KCOPY + ZOFF + 62))
        a(mfma(CB, 100, 96, None))
        for r_, dst in ((0, 23), (1, 26)):
            a('''v_add_u32 v8, {o}, v10
v_and_b32 v7, 1, v8
v_lshlrev_b32 v{d}, 3, v7
v_bfe_u32 v7, v8, 1, 2
v_mul_u32_u24 v7, 1536, v7
v_add_u32 v{d}, v{d}, v7
v_lshrrev_b32 v8, 3, v8
v_add_u32 v8, v8, v9
v_lshl_add_u32 v{d}, v8, 4, v{d}
s_add_u32 s46, s64, 496
v_add_u32 v{d}, s46, v{d}'''.format(o=7 - 4 * r_, d=dst))
            a('s_waitcnt lgkmcnt(%d)' % (3 - 3 * r_))
            a(mfma(CB, 108 + 8 * r_, 104 + 8 * r_, CB))
        a('''s_mov_b64 exec, 15
ds_write_b128 v16, v[88:91]
s_mov_b64 exec, -1
s_nop 11''')
        for k in range(8):
            a('v_cvt_pk_bf16_f32 v%d, v%d, v%d' % (32 + k, CB + 2 * k, CB + 2 * k + 1))
        for k in range(8):
            r = 2 * k
            a('ds_write_b16 v20, v%d offset:%d' % (32 + k, (8 * (r >> 2) + (r & 3)) * 64))
            a('ds_write_b16_d16_hi v20, v%d offset:%d' % (32 + k, (8 * (r >> 2) + (r & 3) + 1) * 64))
        steps = [(i, st) for i in (4, 5, 0, 1, 2, 3) for st in range(2)]
        for n, (i, st) in enumerate(steps):
            t = 96 + 8 * (n & 1)
            o = i * 32 + st * 8
            a('ds_read2_b32 %s, v21 offset0:%d offset1:%d' % (vr(t, 2), o, o + 1))
            a('ds_read2_b32 %s, v21 offset0:%d offset1:%d' % (vr(t + 2, 2), o + 2, o + 3))
            for rd in range(2):
                if i < 4:
                    a('ds_read_b64_tr_b16 %s, v22 offset:%d' % (vr(t + 4 + 2 * rd, 2), st * 1024 + rd * 256 + 16 * (3 - i)))
                else:
                    a('ds_read_b64_tr_b16 %s, v%d offset:%d' % (vr(t + 4 + 2 * rd, 2), (23, 26)[i - 4], st * 256 + rd * 64))
            a('s_waitcnt lgkmcnt(0)')
            a(mfma(CB, t, t + 4, None if n == 0 else CB))
        a('s_nop 15')
        for j in range(4):
            a('ds_write_b128 v16, %s offset:%d' % (vr(CB + 4 * j, 4), 1024 * j))
        a('s_waitcnt lgkmcnt(0)')
        lds_add(a, 11, 1, C_PAIR)
        a('s_branch L_cd')
        a('L_cr:')
        lds_spin(a, 11, 1, C_PAIR, 3, nap=2)
        for j in range(4):
            a('ds_read_b128 %s, v17 offset:%d' % (vr(CB + 4 * j, 4), 1024 * j))
        a('s_waitcnt lgkmcnt(0)')
        for j in range(16):
            a('v_add_f32 v%d, v%d, v%d' % (CA + j, CA + j, CB + j))
        a('L_cd:')
    jitter(a, 5)
    stamp(a, 6)
    a('''s_nop 0
s_mul_i32 s46, s52, %d
s_lshl_b32 s47, s53, 11
s_add_u32 s46, s46, s47
s_add_u32 s46, s46, %d
v_lshlrev_b32 v6, 2, v28
v_lshl_add_u32 v6, v29, 8, v6
s_lshl_b32 s47, s53, 9
s_add_u32 s47, s47, s52
s_lshl_b32 s47, s47, 6
s_add_u32 s47, s47, %d
v_mov_b32 v1, s7
v_mov_b32 v2, 0''' % (RS, YT, FL3))
    for k in range(8):
        a('v_cvt_pk_bf16_f32 v%d, v%d, v%d' % (32 + k, CA + 2 * k, CA + 2 * k + 1))
    for k in range(8):
        a('buffer_store_dword v%d, v6, s[8:11], s46 offen offset:%d sc1' % (32 + k, (4 * (k >> 1) + (k & 1)) * 128))
    a('''s_waitcnt vmcnt(0) lgkmcnt(0)
s_mov_b64 exec, 1
buffer_store_dword v1, v2, s[8:11], s47 offen sc1
s_mov_b64 exec, -1''')
    if 'x3' in OPT:
        lds_add(a, 12, 1, C_Y2)
        a('s_waitcnt lgkmcnt(0)')
        stamp_dump(a)
        a('s_endpgm')
    if WOW == 'mid':
        a('''v_lshrrev_b32 v6, 3, v4
v_lshlrev_b32 v6, 10, v6
v_bfe_u32 v7, v4, 4, 1
v_lshlrev_b32 v7, 2, v7
v_and_b32 v8, 7, v4
v_xor_b32 v7, v7, v8
v_lshl_add_u32 v6, v7, 4, v6
s_lshl_b32 s23, s53, 10
s_lshl_b32 s24, s61, 11
s_add_u32 s24, s23, s24
s_lshl_b32 s26, s5, 7
s_lshl_b32 s27, s53, 13
s_add_u32 s26, s26, s27
s_lshl_b32 s27, s61, 14
s_add_u32 s26, s26, s27
s_nop 0''')
        for c in range(8):
            a('s_add_u32 s38, s5, %d' % c)
            a('s_and_b32 s38, s38, 7')
            a('s_lshl_b32 s30, s38, 16')
            a('s_add_u32 m0, s24, %d' % (c * 4096))
            a('s_add_u32 s30, s30, s26')
            if 'nowo' in OPT:
                continue
            a('buffer_load_dwordx4 v6, s[12:15], s30 offen lds')
            a('s_add_u32 m0, s24, %d' % (32768 + c * 4096))
            a('s_add_u32 s30, s30, 0x8000')
            a('buffer_load_dwordx4 v6, s[12:15], s30 offen lds')
            a('s_waitcnt vmcnt(%s)' % OPTV.get('wot', '2'))
    if 'x4' in OPT:
        lds_add(a, 12, 1, C_Y2)
        a('s_waitcnt lgkmcnt(0)')
        stamp_dump(a)
        a('s_endpgm')
    stamp(a, 7)
    a('''v_lshlrev_b32 v6, 6, v4
s_lshr_b32 s46, s4, 4
s_lshl_b32 s46, s46, 15
s_lshl_b32 s47, s5, 12
s_add_u32 s46, s46, s47
s_add_u32 s46, s46, %d
s_cmp_eq_u32 s3, 0
s_cbranch_scc0 L_yw''' % FL3)
    if 'ysl' in OPTV:
        a('s_sleep %s' % OPTV['ysl'])
    flag_poll_lazy(a, 6, 1, 46, int(OPTV.get('ynap', 32)))
    lds_add(a, 12, 3, C_GOY)
    a('L_yw:')
    transpose_addrs(a, 3, 20, 21, 22, 8, 9, USI, USO)
    a('''v_mul_u32_u24 v10, %d, v8
v_and_b32 v11, 7, v4
v_lshl_add_u32 v10, v11, 4, v10
v_add_u32 v11, %d, v10
s_mul_i32 s46, s5, %d
s_mul_i32 s47, s3, %d
s_add_u32 s46, s46, s47
s_lshl_b32 s47, s4, 7
s_add_u32 s46, s46, s47
s_add_u32 s46, s46, %d
s_lshl_b32 s47, s3, 11
s_add_u32 s47, s47, %d''' % (RS, 8 * RS - 1024, 64 * RS, 16 * RS, YT, USI))
    lds_spin(a, 12, 3, C_GOY, 1, nap=8)
    a('''s_mov_b32 m0, s47
v_and_b32 v7, 1, v8
v_lshrrev_b32 v8, 1, v8
v_lshl_add_u32 v8, v7, 5, v8
v_lshlrev_b32 v8, 11, v8
buffer_load_dwordx4 v10, s[8:11], s46 offen sc1 lds
buffer_load_dwordx4 v11, s[8:11], s46 offen offset:1024 sc1 lds
v_lshl_add_u32 v8, v9, 4, v8
s_lshl_b32 s46, s4, 17
s_lshl_b32 s47, s3, 14
s_add_u32 s46, s46, s47
s_lshl_b32 s47, s5, 7
s_add_u32 s46, s46, s47
s_add_u32 s47, s46, 0x2000
s_waitcnt vmcnt(0)''')
    jitter(a, 6)
    lds_add(a, 12, 1, C_Y)
    lds_spin(a, 12, 1, C_Y, 4)
    transpose_a(a, 20, 21, 32, 23)
    a('''ds_read_b128 v[32:35], v22
ds_read_b128 v[36:39], v22 offset:1024
s_waitcnt lgkmcnt(1)
buffer_store_dwordx4 v[32:35], v8, s[16:19], s46 offen sc1
s_waitcnt lgkmcnt(0)
buffer_store_dwordx4 v[36:39], v8, s[16:19], s47 offen sc1''')
    lds_add(a, 12, 1, C_Y2)
    stamp(a, 8)
    a('s_waitcnt lgkmcnt(0)')
    stamp(a, 12)
    stamp_dump(a)
    a('s_endpgm')

    XA, WA, OA, OV = 160, 164, 165, 166
    XR, ACC = 0, 128
    WF = [144, 148, 152, 156]
    a('''L_mm:
%s
s_setprio 3
s_and_b32 s52, s3, 1
s_bfe_u32 s53, s3, 0x10001
v_and_b32 v10, 31, v4
v_bfe_u32 v11, v4, 1, 3
v_lshrrev_b32 v12, 5, v4
v_xor_b32 v11, v11, v12
v_lshlrev_b32 v11, 4, v11
v_lshl_add_u32 v10, v10, 7, v11
s_lshl_b32 s46, s52, 12
v_add_u32 v%d, s46, v10''' % ('s_memrealtime s[70:71]' if 'dbgt' in OPT else '', XA))
    for jq in range(1, 4):
        a('v_xor_b32 v%d, %d, v%d' % (XA + jq, jq << 5, XA))
    a('''v_lshlrev_b32 v10, 10, v12
v_bfe_u32 v11, v4, 2, 2
v_lshl_add_u32 v10, v11, 7, v10
v_bfe_u32 v11, v4, 3, 1
v_xor_b32 v11, s53, v11
v_lshl_add_u32 v10, v11, 6, v10
v_bfe_u32 v11, v4, 4, 1
v_lshl_add_u32 v10, v11, 5, v10
v_and_b32 v11, 3, v4
v_lshl_add_u32 v%d, v11, 3, v10''' % WA)
    a('''s_lshl_b32 s46, s4, 1
s_add_u32 s46, s46, s52
s_lshl_b32 s46, s46, 10
s_lshl_b32 s47, s5, 1
s_add_u32 s47, s47, s53
s_lshl_b32 s47, s47, 17
s_add_u32 s46, s46, s47
v_lshl_add_u32 v%d, v4, 4, s46
v_bfe_u32 v11, v4, 4, 1
v_lshlrev_b32 v11, 16, v11
v_lshl_add_u32 v11, v12, 8, v11
v_and_b32 v10, 15, v4
v_lshl_add_u32 v11, v10, 4, v11
v_add_u32 v%d, s46, v11
v_mov_b32 v167, v4
s_mov_b32 s62, 0x%x
s_mov_b32 s64, %d
s_mov_b32 s65, %d
s_mov_b32 s63, %d
s_lshl_b32 s54, s52, 12
s_lshl_b32 s47, s53, 11
s_add_u32 s54, s54, s47
s_add_u32 s54, s54, %d
s_lshl_b32 s56, s5, 6
s_add_u32 s56, s56, %d
s_lshl_b32 s55, s4, 9
s_add_u32 s55, s55, s56
s_waitcnt lgkmcnt(0)''' % (OA, OV, f2u(QSCALE), KF, KF + 65536, VF, QX, FL1))
    srd(a, 8, 38, WS_BYTES)
    if 'nowpf' not in OPT:
        srd(a, 12, 34, 512 * 3072)
        a('''v_mul_u32_u24 v126, 3072, v4
s_and_b32 s46, s4, 7
s_mul_i32 s46, s46, %d
s_lshl_b32 s47, s5, 7
s_add_u32 s46, s46, s47
s_xor_b32 s47, s52, 1
s_lshl_b32 s47, s47, 11
s_add_u32 s57, s46, s47''' % (64 * 3072))

    def wpf(wave):
        l = label('pf')
        a('s_cmp_eq_u32 s3, %d' % wave)
        a('s_cbranch_scc0 %s' % l)
        a('buffer_load_dword v127, v126, s[12:15], s57 offen')
        a(l + ':')

    WPV, WPQ = int(OPTV.get('wpv', -1)), int(OPTV.get('wpq', -1))
    if WPV < 0:
        wpf(8)
    if WPQ < 0:
        wpf(9)
    if 'upf' in OPT:
        a('''s_cmp_eq_u32 s3, 10
s_cbranch_scc0 L_noupf
s_load_dwordx2 s[20:21], s[0:1], 0
v_lshlrev_b32 v126, 10, v4
s_lshl_b32 s46, s45, 16
s_lshl_b32 s47, s44, 7
s_add_u32 s46, s46, s47
v_add_u32 v126, s46, v126
s_waitcnt lgkmcnt(0)
global_load_dword v127, v126, s[20:21]
L_noupf:''')
    PD = 3

    def chunk_of(s):
        p, kk = s >> 5, s & 31
        return (kk >> 2, kk & 3) if p == 0 else (8 + 4 * (p - 1) + (kk >> 3), kk & 7)

    def nreads(s):
        return 0 if s >= 96 else (3 if s < 32 else 2)

    def reads(s):
        c, j = chunk_of(s)
        if j == 0:
            a('s_barrier')
            if c == 0:
                if OPTV.get('enc') == 'b0':
                    a('s_memrealtime s[92:93]')
                stamp(a, 2)
                if 'dbgt' in OPT:
                    a('s_memrealtime s[72:73]')
            if c == WPV:
                wpf(8)
            if c == WPQ:
                wpf(9)
            if c == 6:
                a('s_waitcnt vmcnt(0)')
            if c % 3 == 0 and c > 0:
                op = 'v_add_u32' if c % 6 == 3 else 'v_subrev_u32'
                for r in ([XA, XA + 1, XA + 2, XA + 3] if c < 8 else []) + [WA]:
                    a('%s v%d, 0xc000, v%d' % (op, r, r))
        so = (c % 3) * 16384
        if c < 8:
            a('ds_read_b128 %s, v%d offset:%d' % (vr(XR + 4 * s, 4), XA + j, so))
            so += 8192
        for rd in range(2):
            a('ds_read_b64_tr_b16 %s, v%d offset:%d' % (vr(WF[s % 4] + 2 * rd, 2), WA, so + j * 2048 + rd * 512))

    def epilogue(p):
        lo, hi = vr(ACC, 4), vr(ACC + 4, 4)
        if SEG[p] == 0:
            a('v_mov_b32 v4, v167')
            a('v_lshl_add_u32 v10, v167, 4, s54')
            a('s_nop 13')
            for i in range(16):
                a('v_mul_f32 v%d, s62, v%d' % (ACC + i, ACC + i))
        else:
            a('s_nop 15')
        for j in range(8):
            a('v_cvt_pk_bf16_f32 v%d, v%d, v%d' % (ACC + j, ACC + 2 * j, ACC + 2 * j + 1))
        if SEG[p] == 0:
            a('ds_write_b128 v10, %s' % lo)
            a('ds_write_b128 v10, %s offset:1024' % hi)
        elif SEG[p] == 1:
            a('buffer_store_dwordx4 %s, v%d, s[8:11], s64 offen sc1' % (lo, OA))
            a('buffer_store_dwordx4 %s, v%d, s[8:11], s65 offen sc1' % (hi, OA))
        else:
            a('buffer_store_dwordx4 %s, v%d, s[8:11], s63 offen sc1' % (lo, OV))
            a('buffer_store_dwordx4 %s, v%d, s[8:11], s63 offen offset:512 sc1' % (hi, OV))

    jitter(a, 8)
    for s in range(PD):
        reads(s)
    for s in range(96):
        p, kk = s >> 5, s & 31
        if s + PD < 96:
            reads(s + PD)
        a('s_waitcnt lgkmcnt(%d)' % sum(nreads(t) for t in range(s + 1, s + PD + 1)))
        x, w = XR + 4 * kk, WF[s % 4]
        if SEG[p] == 2:
            a(mfma(ACC, x, w, None if kk == 0 else ACC))
        else:
            a(mfma(ACC, w, x, None if kk == 0 else ACC))
        if s == 80:
            a('v_mov_b32 v12, %d' % CNT)
            a('ds_read_b32 v1, v12 offset:%d' % C_TAG)
            a('s_waitcnt vmcnt(0) lgkmcnt(0)')
            a('v_readfirstlane_b32 s7, v1')
            jitter(a, 9)
            arrive_publish(a, 12, 1, C_KV, 4, 55, 2)
            if 'rt' in OPT:
                stamp(a, 2)
        if kk == 31:
            if OPTV.get('enc') == 'v' and p == 1:
                a('s_memrealtime s[92:93]')
            stamp(a, 3 + p)
            epilogue(p)
    a('s_waitcnt lgkmcnt(0)')
    a('s_barrier')
    a('''s_cmp_eq_u32 s3, 8
s_cbranch_scc0 L_apro
v_and_b32 v6, 31, v4
v_lshlrev_b32 v6, 9, v6''')
    if 'p2' not in OPT:
        flag_poll_lazy(a, 6, 1, 56, 1)
    else:
        flag_poll(a, 6, 1, 2, 56)
    lds_add(a, 12, 3, C_GO)

    a('L_apro:')
    att_prologue(False)
    a('''L_att:
v_xor_b32 v6, 0x1000, v13
ds_read_b128 %s, v13
ds_read_b128 %s, v6''' % (vr(Q[1], 4), vr(Q[0], 4)))

    def rdk(i):
        return ['buffer_load_dwordx4 %s, v%d, s[8:11], s36 offen sc1' % (vr(K[i % NB], 4), KA),
                's_add_u32 s36, s36, 2048'] + ['s_and_b32 s36, s36, 0xffff'] * OWN

    def rdv(i):
        return ['s_mov_b64 exec, s[40:41]',
                'buffer_load_dwordx4 %s, v%d, s[8:11], s37 offen sc1' % (vr(V[i % NBV][0], 4), VA),
                'buffer_load_dwordx4 %s, v%d, s[8:11], s37 offen offset:512 sc1' % (vr(V[i % NBV][1], 4), VA),
                's_mov_b64 exec, -1', 's_add_u32 s37, s37, 2048'] + ['s_and_b32 s37, s37, 0xffff'] * OWN

    PF = False
    pfl = []
    issue = []
    if OWN:
        lds_spin(a, 12, 3, C_KV, 4)
        a('\n'.join(rdk(0) + rdv(0)))
        issue += [('k', 0), ('v', 0), ('v', 0)]
    jitter(a, 10)
    stamp(a, 6)
    lds_spin(a, 12, 3, C_GO, 1)
    stamp(a, 7)
    pro = []
    if not OWN:
        pro = rdk(0)
        issue += [('k', 0)]
    for i in range(1, DK):
        pro += rdk(i)
        issue += [('k', i)]
        if i > 1 or not OWN:
            pro += rdv(i - 1)
            issue += [('v', i - 1), ('v', i - 1)]
    a('\n'.join(pro))
    a('s_setprio 3')
    a('s_waitcnt vmcnt(%d)' % (len(issue) - 1))
    if OPTV.get('enc') == 'go':
        a('s_memrealtime s[92:93]')
    if 'pubq0' in OPT:
        arrive_publish(a, 12, 3, C_Q, 8, 55, 2)
        issue.append(('f',))
    stamp(a, 8)
    if 'dbgt' in OPT:
        a('s_memrealtime s[74:75]')
    a(mfma(S[0], K[0], Q[0], None))
    a('s_nop 7')
    a('s_nop 3')
    pp_ = [int(x) for x in OPTV.get('pr', '7,15,23').split(',')]
    PRIO = {pp_[0]: 2, pp_[1]: 1, pp_[2]: 0}

    def unit(i, q):
        u = 2 * i + q
        sc, sn = S[u % 2], S[(u + 1) % 2]
        pc, pp = Pp[u % 2], Pp[(u + 1) % 2]
        i1, q1 = (i, 1) if q == 0 else (i + 1, 0)
        i0, q0 = (i - 1, 1) if q == 0 else (i, 0)
        qk = mfma(sn, K[i1 % NB], Q[q1], None)
        pv0 = mfma(O[q0], V[i0 % NBV][0], pp, O[q0])
        pv1 = mfma(O[q0], V[i0 % NBV][1], pp + 4, O[q0])
        if 'swp' in OPT:
            pv0 = mfma(O[q0], pp, V[i0 % NBV][0], O[q0])
            pv1 = mfma(O[q0], pp + 4, V[i0 % NBV][1], O[q0])
        e = ['v_exp_f32 v%d, v%d' % (sc + j, sc + j) for j in range(16)]
        c = ['v_cvt_pk_bf16_f32 v%d, v%d, v%d' % (pc + j, sc + 2 * j, sc + 2 * j + 1) for j in range(8)]
        c7prev = 'v_cvt_pk_bf16_f32 v%d, v%d, v%d' % (pp + 7, sn + 14, sn + 15)
        out = [e[0]]
        late_qk = OWN and u == 1
        if late_qk:
            last = max(n for n, x in enumerate(issue) if x == ('v', 0))
            out.append('s_waitcnt vmcnt(%d)' % sum(x != ('f',) for x in issue[last + 1:]))
        elif q == 1:
            last = max(n for n, x in enumerate(issue) if x in (('k', i + 1), ('v', i)))
            out.append('s_waitcnt vmcnt(%d)' % sum(x != ('f',) for x in issue[last + 1:]))
        if u > 0:
            out.append(c7prev)
        if u < 63 and not late_qk:
            out.append(qk)
        kl = rdk(i + DK) if q == 0 and i + DK < 32 else []
        vl = rdv(i + DK - 1) if q == 1 and i + DK - 1 < 32 else []
        issue.extend([('k', i + DK)] * bool(kl) + [('v', i + DK - 1)] * 2 * bool(vl))
        out += kl[:1] + vl[:4]
        out += [e[1], e[2], c[0], e[3], e[4], c[1], e[5]]
        if u > 0:
            out.append(pv0)
        out += kl[1:2] + vl[4:5]
        out += [e[6], c[2], e[7], e[8], c[3], e[9], e[10], c[4]]
        if u > 0:
            out.append(pv1)
        out += kl[2:] + vl[5:]
        if q == 0 and i in (1, 8, 16) and PF:
            out += pfl
            issue.append(('p',))
        if q == 1 and i in PRIO:
            out.append('s_setprio %d' % PRIO[i])
            if DIAG and 'qs' in OPT:
                n = 3 + i // 8
                out.append('s_memrealtime s[%d:%d]' % (ST0 + 2 * n, ST0 + 2 * n + 1))
        out += [e[11], e[12], c[5], e[13], e[14], c[6], e[15]]
        if late_qk:
            last = issue.index(('k', 1))
            out += ['s_waitcnt vmcnt(%d)' % sum(x != ('f',) for x in issue[last + 1:]), qk, 's_nop 11']
        return out

    for i in range(32):
        for q in range(2):
            if (i, q) == (20, 0):
                jitter(a, 11)
            if (i, q) == (31, 0):
                jitter(a, 12)
                a('''s_and_b32 s26, s3, 3
s_xor_b32 s27, s26, 2
s_mul_i32 s26, s26, 2304
s_add_u32 s26, s26, {ox}
s_mul_i32 s27, s27, 2304
s_add_u32 s27, s27, {ox}
v_add_u32 v6, s26, v5
v_add_u32 v7, s27, v5
v_lshlrev_b32 v8, 2, v4
v_add_u32 v9, s27, v8
v_add_u32 v8, s26, v8
s_sub_u32 s26, s3, 4
s_lshl_b32 s26, s26, 2
v_add_u32 v10, s26, v12
s_xor_b32 s26, s26, 8
v_add_u32 v11, s26, v12
s_cmp_eq_u32 s19, 0
s_cbranch_scc0 L_xa'''.format(ox=OX))
                lds_spin(a, 12, 3, C_Q, 8)
                a('s_branch L_xb')
                a('L_xa:')
                lds_spin(a, 12, 3, C_O, 4)
                a('''L_xb:
s_mov_b32 s44, 0x%x
s_mov_b32 s45, 0x%x
s_mov_b32 s46, 0x7f7fffff
s_lshl_b32 s26, s19, 2
v_add_u32 v13, s26, v12
v_mov_b32 v3, 1
buffer_load_dword v1, v163, s[8:11], s52 offen sc1''' % (f2u(2.0 ** -64), f2u(2.0 ** 64)))
                issue.append(('m',))
            if (i, q) == (2, 0) and 'pubq0' not in OPT:
                arrive_publish(a, 12, 3, C_Q, 8, 55, 2)
                issue.append(('f',))
            for s in unit(i, q):
                a(s)
    a('s_nop 0')
    a('v_cvt_pk_bf16_f32 v%d, v%d, v%d' % (Pp[1] + 7, S[1] + 14, S[1] + 15))
    if OPTV.get('enc') == 'loop':
        a('s_memrealtime s[92:93]')
    stamp(a, 9)
    if 'dbgt' in OPT:
        a('s_memrealtime s[76:77]')
    a('s_setprio 3')
    a('s_nop 0')
    a(mfma(O[1], V[31 % NBV][0], Pp[1], O[1]))
    a(mfma(O[1], V[31 % NBV][1], Pp[1] + 4, O[1]))
    F = O[1]
    a('''ds_write_b128 v6, %s
ds_write_b128 v6, %s offset:1024
ds_write_b32 v8, v%d offset:2048
ds_write_b32 v10, v3 offset:%d''' % (vr(O[0], 4), vr(O[0] + 4, 4), O[0] + 8, C_X))
    a('''s_mov_b32 s66, 0
L_xw:
ds_read_b32 v2, v11 offset:%d
ds_read_b128 v[48:51], v7
ds_read_b128 v[52:55], v7 offset:1024
ds_read_b32 v56, v9 offset:2048
s_add_u32 s66, s66, 1
s_waitcnt lgkmcnt(0)
v_readfirstlane_b32 s67, v2
s_cmp_ge_u32 s66, %d
s_cbranch_scc1 L_xe
s_cmp_eq_u32 s67, 0
s_cbranch_scc1 L_xw
L_xe:''' % (C_X, SPIN_MAX * 4))
    stamp(a, 10)
    for j in range(9):
        a('v_add_f32 v%d, v%d, v%d' % (F + j, F + j, 48 + j))
    a('''v_rcp_f32 v48, v{8}
v_add_f32 v50, abs(v{0}), abs(v{1})
v_add_f32 v51, abs(v{2}), abs(v{3})
v_add_f32 v52, abs(v{4}), abs(v{5})
v_add_f32 v53, abs(v{6}), abs(v{7})
v_cmp_le_f32 s[28:29], s44, v{8}
v_add_f32 v50, v50, v51
v_add_f32 v52, v52, v53
v_cmp_ge_f32 s[30:31], s45, v{8}
v_add_f32 v50, v50, v52
v_cmp_ge_f32 s[32:33], s46, v50
s_and_b64 s[28:29], s[28:29], s[30:31]
s_nop 0
s_and_b64 s[28:29], s[28:29], s[32:33]
s_cmp_eq_u64 s[28:29], -1
s_cbranch_scc0 {9}
L_fin:'''.format(*(list(range(F, F + 9)) + ['L_fin' if 'swp' in OPT else 'L_slow'])))
    for j in range(8):
        a('v_mul_f32 v%d, v%d, v48' % (F + j, F + j))
    for j in range(4):
        a('v_cvt_pk_bf16_f32 v%d, v%d, v%d' % (52 + j, F + 2 * j, F + 2 * j + 1))
    a('buffer_store_dwordx4 v[52:55], v5, s[8:11], s54 offen sc1')
    jitter(a, 13)
    lds_add(a, 13, 3, C_O)
    stamp(a, 11)
    a('s_cmp_ge_u32 s3, 8')
    a('s_cbranch_scc1 L_bend')
    a('s_load_dwordx4 s[32:35], s[0:1], 88')
    a('s_waitcnt lgkmcnt(0)')
    srd(a, 16, 34, 2048 * 2048)
    AC = [20, 36]
    OFR, WR = 56, 88

    def wo_frags(g):
        for cc in range(4):
            for n in range(2):
                for nt in range(2):
                    for rd in range(2):
                        a('ds_read_b64_tr_b16 %s, v%d offset:%d' % (vr(WR + 16 * cc + 8 * n + 4 * nt + 2 * rd, 2), (160, 161)[nt],
                                                                    g * 32768 + cc * 4096 + n * 2048 + rd * 1024))

    def o_loads(cc):
        a('''s_add_u32 s38, s51, %d
s_and_b32 s38, s38, 7
s_lshl_b32 s30, s38, 12
s_add_u32 s30, s30, s53
buffer_load_dwordx4 %s, v5, s[8:11], s30 offen sc1
buffer_load_dwordx4 %s, v5, s[8:11], s30 offen offset:1024 sc1''' % (cc, vr(OFR + 8 * cc, 4), vr(OFR + 8 * cc + 4, 4)))

    def o_mfma(cc, first):
        for n in range(2):
            for nt in range(2):
                a(mfma(AC[nt], WR + 16 * cc + 8 * n + 4 * nt, OFR + 8 * cc + 4 * n, None if first and n == 0 else AC[nt]))

    def poll_half(g, nap):
        lp, le = label('hp'), label('he')
        a('s_mov_b32 s23, 0')
        a('s_mov_b32 s66, 0')
        a(lp + ':')
        for cc in range(4):
            e = label('ls')
            a('s_bitcmp1_b32 s23, %d' % cc)
            a('s_cbranch_scc1 %s' % e)
            o_loads(cc)
            a(e + ':')
        a('s_add_u32 s66, s66, 1')
        a('s_waitcnt vmcnt(0) lgkmcnt(0)')
        for cc in range(4):
            e, gl = label('lc'), label('lg')
            b = OFR + 8 * cc
            a('''s_bitcmp1_b32 s23, {cc}
s_cbranch_scc1 {e}
v_max3_u32 v1, v{0}, v{1}, v{2}
v_max3_u32 v2, v{3}, v{4}, v{5}
v_max3_u32 v1, v1, v{6}, v{7}
v_max_u32 v1, v1, v2
v_cmp_eq_u32 vcc, -1, v1
s_cmp_ge_u32 s66, {n}
s_cbranch_scc1 {g}
s_cbranch_vccnz {e}
{g}:
s_bitset1_b32 s23, {cc}'''.format(*range(b, b + 8), cc=cc, e=e, g=gl, n=SPIN_MAX))
            o_mfma(cc, False)
            a(e + ':')
        a('''s_cmp_eq_u32 s23, 15
s_cbranch_scc1 %s
s_sleep %s
s_branch %s
%s:''' % (le, nap, lp, le))

    if WOW == 'end':
        wo_dma()
    for j in range(32):
        a('v_mov_b32 v%d, 0' % (AC[0] + j))
    a('s_lshl_b32 s26, s49, 2')
    a('v_add_u32 v8, s26, v12')
    a('s_waitcnt vmcnt(%d)' % (WOW != 'end'))
    a('''v_cmp_eq_u32 vcc, s7, v1
s_nop 1
s_cmp_eq_u64 vcc, -1
s_cbranch_scc1 L_mok''')
    flag_poll_lazy(a, 163, 1, 52, 8)
    a('L_mok:')
    if WOW == 'mid':
        lds_spin(a, 12, 3, C_Y2, 4, nap=8)
    else:
        lds_add(a, 8, 3, C_W)
        lds_spin(a, 8, 3, C_W, 2)
    wo_frags(0)
    a('s_sleep %s' % OPTV.get('ein', '28' if WOW != 'end' else '16'))
    poll_half(0, OPTV.get('esl', '8'))
    wo_frags(1)
    a('s_add_u32 s53, s53, 2048')
    lds_spin(a, 12, 3, C_Y2, 4, nap=2)
    stamp(a, 10)
    lds_spin(a, 12, 3, C_O1, 4, nap=2)
    if 'lin' in OPTV:
        a('s_sleep %s' % OPTV['lin'])
    poll_half(1, OPTV.get('lsl', '6'))
    jitter(a, 14)
    stamp(a, 12)
    a('''v_mov_b32 v3, 1
s_cmp_eq_u32 s49, 0
s_nop 12
s_cbranch_scc0 L_r1''')
    for own in range(2):
        if own:
            a('L_r1:')
        for j in range(4):
            a('ds_write_b128 v164, %s offset:%d' % (vr(AC[1 - own] + 4 * j, 4), 1024 * j))
        a('ds_write_b32 v166, v3 offset:%d' % C_P3)
        if not own:
            a('s_branch L_r2')
    a('''L_r2:
s_mov_b32 s66, 0
L_rw:
ds_read_b32 v3, v167 offset:%d''' % C_P3)
    for j in range(4):
        a('ds_read_b128 %s, v165 offset:%d' % (vr(64 + 4 * j, 4), 1024 * j))
    a('''s_add_u32 s66, s66, 1
s_waitcnt lgkmcnt(0)
v_readfirstlane_b32 s67, v3
s_cmp_ge_u32 s66, %d
s_cbranch_scc1 L_re
s_cmp_eq_u32 s67, 0
s_cbranch_scc1 L_rw
L_re:''' % (SPIN_MAX * 4))
    a('s_cmp_eq_u32 s49, 0')
    a('s_cbranch_scc0 L_r3')
    for own in range(2):
        if own:
            a('L_r3:')
        for j in range(16):
            a('v_add_f32 v%d, v%d, v%d' % (64 + j, AC[own] + j, 64 + j))
        if not own:
            a('s_branch L_r4')
    a('L_r4:')
    for j in range(8):
        a('v_cvt_pk_bf16_f32 v%d, v%d, v%d' % (80 + j, 64 + 2 * j, 65 + 2 * j))
    st3 = OPTV.get('st3', '').replace('+', ' ')
    a('buffer_store_dwordx4 v[80:83], v162, s[16:19], s50 offen' + st3)
    a('buffer_store_dwordx4 v[84:87], v162, s[16:19], s50 offen offset:16' + st3)
    if 'dbgt' in OPT:
        a('s_waitcnt vmcnt(0)')
        a('s_memrealtime s[78:79]')
        a('s_load_dwordx2 s[36:37], s[0:1], 104')
        a('s_waitcnt lgkmcnt(0)')
        srd(a, 12, 36, 256)
        a('v_mov_b32 v2, 0')
        a('s_mov_b64 exec, 1')
        for i in range(5):
            a('s_sub_u32 s66, s%d, s7' % (70 + 2 * i))
            a('s_add_u32 s66, s66, 1000')
            a('v_mov_b32 v1, s66')
            a('buffer_atomic_umax v1, v2, s[12:15], 0 offen offset:%d sc1' % (4 + 4 * i))
            a('s_sub_u32 s66, 100000, s66')
            a('v_mov_b32 v3, s66')
            a('buffer_atomic_umax v3, v2, s[12:15], 0 offen offset:%d sc1' % (36 + 4 * i))
        a('s_mov_b64 exec, -1')
        a('s_waitcnt vmcnt(0)')
    a('L_bend:')
    if 'enc' in OPTV:
        e = OPTV['enc']
        if e != 'skew':
            a('s_cmp_eq_u32 s2, %s' % OPTV.get('ewg', '0'))
            a('s_cbranch_scc0 L_encd')
        a('s_cmp_eq_u32 s3, 8')
        a('s_cbranch_scc0 L_encd')
        a('s_waitcnt lgkmcnt(0)')
        a('s_sub_u32 s94, s92, s90' if e not in ('f', 'skew') else 's_mov_b32 s94, 0')
        a('s_add_u32 s94, s94, 6000')
        a('''L_encw:
s_memrealtime s[96:97]
s_waitcnt lgkmcnt(0)
s_sub_u32 s96, s96, s90
s_cmp_lt_u32 s96, s94
s_cbranch_scc1 L_encw
L_encd:''')
    stamp_dump(a)
    a('s_endpgm')

    for t in ('',):
        OS, SS, M, PS, KS, MX = 80, 16, 64, 48, 104, 58
        a('''L_slow%s:
v_mov_b32 v%d, 0xff800000
s_mov_b32 s42, 0
L_s1%s:
buffer_load_dwordx4 %s, v%d, s[8:11], s42 offen sc1
s_waitcnt vmcnt(0)
%s
s_nop 15''' % (t, MX, t, vr(KS, 4), KA, mfma(SS, KS, Q[1], None)))
        for j in range(8):
            a('v_max3_f32 v%d, v%d, v%d, v%d' % (MX, MX, SS + 2 * j, SS + 2 * j + 1))
        a('''s_add_u32 s42, s42, 1024
s_cmp_lt_u32 s42, 0x10000
s_cbranch_scc1 L_s1%s
v_mov_b32 v%d, v%d
s_nop 1
v_permlane32_swap_b32 v%d, v%d
s_nop 1
v_max_f32 v%d, v%d, v%d''' % (t, MX + 1, MX, MX, MX + 1, MX, MX, MX + 1))
        for j in range(16):
            a('v_sub_f32 v%d, 0, v%d' % (M + j, MX))
            a('v_mov_b32 v%d, 0' % (OS + j))
        a('''s_mov_b32 s42, 0
L_s2%s:
buffer_load_dwordx4 %s, v%d, s[8:11], s42 offen sc1
s_mov_b64 exec, s[40:41]
buffer_load_dwordx4 %s, v%d, s[8:11], s42 offen sc1
buffer_load_dwordx4 %s, v%d, s[8:11], s42 offen offset:512 sc1
s_mov_b64 exec, -1
s_waitcnt vmcnt(0)
%s
s_nop 15''' % (t, vr(KS, 4), KA, vr(V[0][0], 4), VA, vr(V[0][1], 4), VA, mfma(SS, KS, Q[1], M)))
        for j in range(16):
            a('v_exp_f32 v%d, v%d' % (SS + j, SS + j))
        a('s_nop 0')
        for j in range(8):
            a('v_cvt_pk_bf16_f32 v%d, v%d, v%d' % (PS + j, SS + 2 * j, SS + 2 * j + 1))
        a('s_nop 1')
        a(mfma(OS, V[0][0], PS, OS))
        a(mfma(OS, V[0][1], PS + 4, OS))
        a('''s_add_u32 s42, s42, 1024
s_cmp_lt_u32 s42, 0x10000
s_cbranch_scc1 L_s2%s
s_nop 15''' % t)
        a('''v_rcp_f32 v48, v88
s_nop 0
s_branch L_fin''')
    a('''L_end:
s_endpgm''')
    return a.text()


def main(path):
    KN = NAME + '_kernel'
    t = kernel()
    hdr = '''; @launch grid=(256,1,1) block=(768,1,1) lds=%d
; One launch, one workgroup of 12 waves per CU (256 workgroups, all resident; surplus workgroups exit at once).
; Workgroup = (64-token block tb, quad of heads hq) for the attention branch and 2 channels for the S4 branch.
;  phase 1  waves 4-7 stream x / wqkv tiles into an LDS ring, waves 8-11 compute the K, V, Q tiles (MFMA);
;           K and V go to the workspace in MFMA fragment order, Q stays in LDS. Waves 0-3 build the S4 kernel
;           K[l] = Re sum_n C_n dB_n exp(dt A_n lq(l)) (lq = position rounded to bf16, as in the reference) as a
;           product of two power tables on the matrix core; Dskip is added to K[0]. A tile of u is transposed.
;  phase 2  waves 4-11: softmax(QK^T)V, exp2 of the scaled scores without a shift, row sums from a ones row of V.
;           A run-time check (row sum inside [2^-64, 2^64] and finite outputs) sends a tile to L_slow, which redoes
;           it with the exact row maximum. Waves 0-3: causal convolution as Toeplitz MFMAs, transposition of y.
;  phase 3  waves 4-7: output projection of the (tb, 64-column) tile.
; Hand-offs between workgroups: write-through stores, drained, then a flag word carrying this launch's tag
; (a clock value that workgroup 0 puts into the zeroed debug buffer); attention outputs replace a marker that
; their producer wrote (and announced) earlier, so readers recognise every dword. All waits are bounded;
; s_sleep only backs off inside these waits.
.amdgcn_target "amdgcn-amd-amdhsa--gfx950"
.text
.globl %s
''' % (LDS_BYTES, KN)
    pad = '.p2align 8\n.fill 4096, 4, 0xbf800000\n'
    kd = '''.section .rodata,"a"
.p2align 6
.amdhsa_kernel %s
  .amdhsa_next_free_vgpr 168
  .amdhsa_next_free_sgpr 102
  .amdhsa_accum_offset 168
  .amdhsa_group_segment_fixed_size 0
  .amdhsa_kernarg_size 120
  .amdhsa_user_sgpr_count 2
  .amdhsa_user_sgpr_kernarg_segment_ptr 1
  .amdhsa_system_sgpr_workgroup_id_x 1
.end_amdhsa_kernel
''' % KN
    open(path, 'w').write(hdr + t + pad + kd)


if __name__ == '__main__':
    for arg in sys.argv[1:]:
        OPT.add(arg)
        if '=' in arg:
            OPTV[arg.split('=')[0]] = arg.split('=')[1]
    DIAG = 'diag' in OPT
    main(sys.argv[1] if len(sys.argv) > 1 else 'cdna_kernels/%s.s' % NAME)
```

```python
import sys
import struct

NAME = 'concat_heads__ssm_conv_s4__softmax_full_mha__prompt'

KF = 0x200000
VF = 0x400000
OF = 0x600000
RS = 4224
UT = 0x800000
YT = 0x1400000
FL1 = 0xC40000
FLU = 0xC04000
FL2 = 0xC08000
FL3 = 0xC10000
WS_BYTES = 0x2000000

GEN = 6 * 16384
LDS_BYTES = GEN + 65536
QX = 65536
USI = 74752
USO = 82944
OX = 65536
YI = 73728
CNT = 94208
C_TAG, C_KV, C_GO, C_PAIR, C_CONV, C_O, C_Y, C_GOU, C_GOY, C_Y2, C_X = 0, 4, 8, 80, 24, 16, 32, 36, 40, 44, 48
C_U, C_P3, C_O1, C_Q, C_W, C_UL, C_T = 12, 96, 20, 116, 120, 92, 88
KCOPY = 4096
ZOFF = 640
UIMG = 9216

LOG2E = 1.4426950408889634
QSCALE = 0.25 * LOG2E
OPT = set()
OPTV = {}
DIAG = False
DIAG_BASE = 0xF00000
ST0 = 70
SPIN_MAX = 1 << 19
ROWS = {0: [0, 1, 2, 3, 4, 5, 6, 7, 8, 1024, 1032, 1280, 1288, 1536, 1544, None],
        1: [256, 258, 260, 262, 264, 512, 516, 520, 768, 772, 776, 1792, 1800, None, None, None]}


def f2u(x):
    return struct.unpack('<I', struct.pack('<f', x))[0]


class A:
    def __init__(self):
        self.L = []

    def __call__(self, s):
        for line in s.split('\n'):
            line = line.strip()
            if not line:
                continue
            if line.endswith(':') or line.startswith('.'):
                self.L.append(line)
            else:
                self.L.append('    ' + line)

    def text(self):
        return '\n'.join(self.L) + '\n'


def vr(a, n=1):
    return 'v%d' % a if n == 1 else 'v[%d:%d]' % (a, a + n - 1)


def sr(a, n=1):
    return 's%d' % a if n == 1 else 's[%d:%d]' % (a, a + n - 1)


def srd(a, dst, base, nbytes):
    a('s_mov_b32 s%d, s%d' % (dst, base))
    a('s_mov_b32 s%d, s%d' % (dst + 1, base + 1))
    a('s_mov_b32 s%d, 0x%x' % (dst + 2, nbytes))
    a('s_mov_b32 s%d, 0x00020000' % (dst + 3))


def mfma(d, x, y, c):
    cs = '0' if c is None else vr(c, 16)
    return 'v_mfma_f32_32x32x16_bf16 %s, %s, %s, %s' % (vr(d, 16), vr(x, 4), vr(y, 4), cs)


def cmul_many(a, items):
    for d, x, y in items:
        a('v_mul_f32 v%d, v%d, v%d' % (d, x, y))
        a('v_mul_f32 v%d, v%d, v%d' % (d + 1, x + 1, y))
    for d, x, y in items:
        a('v_fma_f32 v%d, -v%d, v%d, v%d' % (d, x + 1, y + 1, d))
        a('v_fmac_f32 v%d, v%d, v%d' % (d + 1, x, y + 1))


def stamp(a, i, real=False):
    if DIAG and ('se' not in OPT or i in (0, 13) or str(i) in OPTV.get('only', '').split(',')):
        a('%s s[%d:%d]' % ('s_memrealtime' if real or 'rt' in OPT else 's_memtime', ST0 + 2 * i, ST0 + 2 * i + 1))


def stamp_dump(a, n=14):
    if DIAG:
        a('s_waitcnt vmcnt(0)')
        stamp(a, 13, True)
        a('s_waitcnt lgkmcnt(0)')
        a('s_lshl_b32 s68, s2, 4')
        a('s_add_u32 s68, s68, s3')
        a('s_lshl_b32 s68, s68, 6')
        a('s_add_u32 s68, s68, %d' % DIAG_BASE)
        a('v_mov_b32 v1, 0')
        a('s_mov_b64 exec, 1')
        for i in range(n):
            a('v_mov_b32 v2, s%d' % (ST0 + 2 * i))
            a('buffer_store_dword v2, v1, s[8:11], s68 offen offset:%d' % (4 * i))
        a('s_mov_b64 exec, -1')


def jitter(a, k):
    if 'jit' in OPTV:
        l = label('jt')
        a('''s_mul_i32 s69, s2, %d
s_add_u32 s69, s69, s3
s_mul_i32 s69, s69, %d
s_lshr_b32 s69, s69, 7
s_and_b32 s69, s69, 3
s_cmp_lg_u32 s69, 0
s_cbranch_scc1 %s
s_sleep %s
%s:''' % (13 + 2 * k, 0x9e37 + 64 * k + int(OPTV.get('js', 0)), l, OPTV['jit'], l))


_lab = [0]


def label(p):
    _lab[0] += 1
    return 'L_%s%d' % (p, _lab[0])


def lds_spin(a, va, vt, off, thr, st=66, nap=1):
    l, e = label('sp'), label('se')
    a('''s_mov_b32 s%d, 0
%s:
ds_read_b32 v%d, v%d offset:%d
s_add_u32 s%d, s%d, 1
s_waitcnt lgkmcnt(0)
v_readfirstlane_b32 s%d, v%d
s_cmp_ge_u32 s%d, %d
s_cbranch_scc1 %s
s_cmp_ge_u32 s%d, %d
s_cbranch_scc1 %s
s_sleep %d
s_branch %s
%s:''' % (st, l, vt, va, off, st, st, st + 1, vt, st, SPIN_MAX, e, st + 1, thr, e, nap, l, e))


def lds_add(a, va, vt, off):
    a('''v_mov_b32 v%d, 1
s_mov_b64 exec, 1
ds_add_u32 v%d, v%d offset:%d
s_mov_b64 exec, -1''' % (vt, va, vt, off))


def arrive_publish(a, va, vt, off, nwaves, sflag, vz, copies=False):
    e = label('np')
    a('''v_mov_b32 v%d, 1
s_mov_b64 exec, 1
ds_add_rtn_u32 v%d, v%d, v%d offset:%d
v_mov_b32 v%d, 0
s_waitcnt lgkmcnt(0)
v_readfirstlane_b32 s66, v%d
v_mov_b32 v%d, s7
s_cmp_eq_u32 s66, %d
s_cbranch_scc0 %s
%sbuffer_store_dword v%d, v%d, s[8:11], s%d offen sc1
%s:
s_mov_b64 exec, -1''' % (vt, vt, va, vt, off, vz, vt, vt, nwaves - 1, e,
                         's_mov_b64 exec, 15\nv_mbcnt_lo_u32_b32 v%d, -1, 0\nv_mov_b32 v%d, s7\nv_lshlrev_b32 v%d, 14, v%d\n' % (vz, vt, vz, vz) if copies else '',
                         vt, vz, sflag, e))


def flag_poll(a, voff, vt, vt2, sbase):
    l, e = label('fp'), label('fe')
    ld = 'buffer_load_dword v%d, v%d, s[8:11], s%d offen sc1'
    a('''s_mov_b32 s66, 0
%s
s_sleep 4
%s:
%s
s_waitcnt vmcnt(1)
v_cmp_eq_u32 vcc, s7, v%d
s_add_u32 s66, s66, 1
s_cmp_eq_u64 vcc, -1
s_cbranch_scc1 %s
s_sleep 2
%s
s_waitcnt vmcnt(1)
v_cmp_eq_u32 vcc, s7, v%d
s_cmp_ge_u32 s66, %d
s_cbranch_scc1 %s
s_cmp_eq_u64 vcc, -1
s_cbranch_scc0 %s
%s:''' % (ld % (vt, voff, sbase), l, ld % (vt2, voff, sbase), vt, e, ld % (vt, voff, sbase), vt2, SPIN_MAX, e, l, e))


def flag_poll_lazy(a, voff, vt, sbase, nap):
    l, e = label('fp'), label('fe')
    a('''s_mov_b32 s66, 0
%s:
buffer_load_dword v%d, v%d, s[8:11], s%d offen sc1
s_add_u32 s66, s66, 1
s_waitcnt vmcnt(0)
v_cmp_eq_u32 vcc, s7, v%d
s_cmp_ge_u32 s66, %d
s_cbranch_scc1 %s
s_cmp_eq_u64 vcc, -1
s_cbranch_scc1 %s
s_sleep %d
s_branch %s
%s:''' % (l, vt, voff, sbase, vt, SPIN_MAX, e, e, nap, l, e))


def tag_check(a, vt, vz, srd0):
    l, e = label('tp'), label('te')
    a('''s_mov_b32 s66, 0
%s:
v_readfirstlane_b32 s7, v%d
s_add_u32 s66, s66, 1
s_cmp_lg_u32 s7, 0
s_cbranch_scc1 %s
s_cmp_ge_u32 s66, %d
s_cbranch_scc1 %s
buffer_load_dword v%d, v%d, s[%d:%d], 0 offen sc1
s_waitcnt vmcnt(0)
s_branch %s
%s:''' % (l, vt, e, SPIN_MAX, e, vt, vz, srd0, srd0 + 3, l, e))


def kgen_stream():
    a = A()
    P = 20
    for i in range(8):
        a('v_lshlrev_b32 %s, 16, %s' % (vr(P + i), vr(P + i)))
    Are, Aim, Bre, Bim, Cre, Cim, LDT, DSK = range(P, P + 8)
    a('v_mul_f32 v%d, s51, v%d' % (LDT, LDT))
    a('v_exp_f32 v%d, v%d' % (LDT, LDT))
    a('s_nop 0')
    a('v_cvt_pk_bf16_f32 v%d, v%d, v%d' % (LDT, LDT, LDT))
    a('v_lshlrev_b32 v%d, 16, v%d' % (LDT, LDT))
    a('v_mul_f32 v%d, v%d, v%d' % (Are, LDT, Are))
    a('v_mul_f32 v%d, v%d, v%d' % (Aim, LDT, Aim))
    a('v_mul_f32 v%d, v%d, v%d' % (Bre, LDT, Bre))
    a('v_mul_f32 v%d, v%d, v%d' % (Bim, LDT, Bim))
    a('v_mul_f32 v%d, s51, v%d' % (Are, Are))
    a('v_mul_f32 v%d, 0.15915494, v%d' % (Aim, Aim))
    G = [32 + 2 * i for i in range(32)]
    W = [96 + 2 * i for i in range(9)]
    Z1, Z2, Z4, Z32 = 114, 116, 118, 120
    ZB = {256: 122, 512: 124, 768: 126, 1024: 128, 1280: 130, 1536: 132, 1792: 134}
    T0, PK, AD = 136, 146, 154
    R = {}
    nxt = 32
    for h in (0, 1):
        for e in ROWS[h]:
            if e is None:
                continue
            if e <= 8:
                R[e] = W[e]
            else:
                R[e] = nxt
                nxt += 2
    cmul_many(a, [(W[0], Cre, Bre)])
    direct = [(Z1, 1.0), (G[1], 8.0), (Z32, 32.0), (ZB[256], 256.0), (ZB[1024], 1024.0)]
    for i, (z, e) in enumerate(direct):
        a('v_mul_f32 v%d, 0x%x, v%d' % (T0 + 2 * i, f2u(e), Are))
        a('v_mul_f32 v%d, 0x%x, v%d' % (T0 + 2 * i + 1, f2u(e), Aim))
    for i, (z, e) in enumerate(direct):
        a('v_exp_f32 v%d, v%d' % (T0 + 2 * i, T0 + 2 * i))
        a('v_fract_f32 v%d, v%d' % (T0 + 2 * i + 1, T0 + 2 * i + 1))
    for i, (z, e) in enumerate(direct):
        a('v_cos_f32 v%d, v%d' % (z, T0 + 2 * i + 1))
        a('v_sin_f32 v%d, v%d' % (z + 1, T0 + 2 * i + 1))
    a('v_mov_b32 v%d, 1.0' % G[0])
    a('v_mov_b32 v%d, 0' % (G[0] + 1))
    for i, (z, e) in enumerate(direct):
        a('v_mul_f32 v%d, v%d, v%d' % (z, z, T0 + 2 * i))
        a('v_mul_f32 v%d, v%d, v%d' % (z + 1, z + 1, T0 + 2 * i))
    cmul_many(a, [(G[2], G[1], G[1]), (Z2, Z1, Z1), (W[1], W[0], Z1), (W[8], W[0], G[1]), (ZB[512], ZB[256], ZB[256]),
                  (ZB[1280], ZB[1024], ZB[256]), (G[5], G[1], Z32)])
    a('v_mov_b32 v%d, v%d' % (G[4], Z32))
    a('v_mov_b32 v%d, v%d' % (G[4] + 1, Z32 + 1))
    cmul_many(a, [(G[3], G[2], G[1]), (Z4, Z2, Z2), (W[2], W[0], Z2), (W[3], W[1], Z2), (ZB[768], ZB[512], ZB[256]),
                  (ZB[1536], ZB[1024], ZB[512]), (G[6], G[2], Z32)])
    cmul_many(a, [(G[7], G[3], Z32), (W[4], W[0], Z4), (W[5], W[1], Z4), (W[6], W[2], Z4), (W[7], W[3], Z4),
                  (ZB[1792], ZB[1024], ZB[768])])
    for i0 in range(8, 32, 4):
        cmul_many(a, [(G[i], G[i - 4], Z32) for i in range(i0, i0 + 4)])
    nvalu = len(a.L)
    for c in range(8):
        a('v_xor_b32 v%d, %d, v13' % (AD + c, c << 4))
    rowidx = [None] * 32
    for h in (0, 1):
        for r in range(16):
            rowidx[8 * (r >> 2) + 4 * h + (r & 3)] = ROWS[h][r]
    nput = [0]

    def put(c, regs, neg, off):
        pk = PK + 4 * (nput[0] & 1)
        nput[0] += 1
        for j in range(4):
            a('v_cvt_pk_bf16_f32 v%d, %sv%d, %sv%d' % (pk + j, neg, regs[2 * j], neg, regs[2 * j + 1]))
        a('ds_write_b128 v%d, %s%s' % (AD + c, vr(pk, 4), off))

    for c in range(8):
        put(c, [G[8 * (c & 3) + j] + (c >> 2) for j in range(8)], '', '')
    big = [e for e in R if e > 8]
    items = [(R[e], W[e & 255], ZB[e & ~255]) for e in big]
    for i0 in range(0, len(items), 5):
        cmul_many(a, items[i0:i0 + 5])
    for c in range(8):
        comp = c >> 2
        regs = [(R[e] if e is not None else W[0]) + comp for e in rowidx[8 * (c & 3):8 * (c & 3) + 8]]
        put(c, regs, '-' if comp else '', ' offset:8192')
    a('s_waitcnt lgkmcnt(0)')
    KD, FR, NB = 32, 48, 4

    def gen_reads(s):
        off = s * 1024
        b = FR + 8 * (s % NB)
        a('ds_read_b64_tr_b16 %s, v14 offset:%d' % (vr(b, 2), off + 8192))
        a('ds_read_b64_tr_b16 %s, v15 offset:%d' % (vr(b + 2, 2), off + 8192))
        a('ds_read_b64_tr_b16 %s, v14 offset:%d' % (vr(b + 4, 2), off))
        a('ds_read_b64_tr_b16 %s, v15 offset:%d' % (vr(b + 6, 2), off))

    for s in range(3):
        gen_reads(s)
    for s in range(8):
        if s + 3 < 8:
            gen_reads(s + 3)
        a('s_waitcnt lgkmcnt(%d)' % (4 * min(3, 7 - s)))
        b = FR + 8 * (s % NB)
        a(mfma(KD, b, b + 4, None if s == 0 else KD))
    a('s_nop 15')
    for j in range(4):
        a('ds_write_b128 v16, %s offset:%d' % (vr(KD + 4 * j, 4), 1024 * j))
    a('s_waitcnt lgkmcnt(0)')
    return a.L, nvalu


def transpose_addrs(a, sw, vrd, vwr, vlin, t0, t1, usi, uso):
    a('''v_lshrrev_b32 v{t0}, 4, v4
v_bfe_u32 v{t1}, v4, 2, 2
v_lshl_add_u32 v{t1}, v{t0}, 3, v{t1}
v_lshlrev_b32 v{rd}, 7, v{t1}
v_and_b32 v{t1}, 3, v4
v_lshl_add_u32 v{rd}, v{t1}, 3, v{rd}
s_lshl_b32 s66, s{w}, 5
s_add_u32 s66, s66, {usi}
v_add_u32 v{rd}, s66, v{rd}
v_and_b32 v{t1}, 7, v4
v_xor_b32 v{t0}, v{t0}, v{t1}
v_lshlrev_b32 v{t0}, 4, v{t0}
v_and_b32 v{t1}, 15, v4
v_lshl_add_u32 v{wr}, v{t1}, 7, v{t0}
s_lshl_b32 s66, s{w}, 11
s_add_u32 s66, s66, {uso}
v_add_u32 v{wr}, s66, v{wr}
v_lshl_add_u32 v{lin}, v4, 4, s66
v_lshrrev_b32 v{t0}, 3, v4
v_and_b32 v{t1}, 7, v4
v_xor_b32 v{t1}, v{t1}, v{t0}'''.format(t0=t0, t1=t1, rd=vrd, wr=vwr, lin=vlin, w=sw, usi=usi, uso=uso))


def transpose_a(a, vrd, vwr, d, t):
    a('''ds_read_b64_tr_b16 v[{d0}:{d1}], v{rd}
ds_read_b64_tr_b16 v[{d2}:{d3}], v{rd} offset:512
ds_read_b64_tr_b16 v[{d4}:{d5}], v{rd} offset:4096
ds_read_b64_tr_b16 v[{d6}:{d7}], v{rd} offset:4608
v_xor_b32 v{t}, 64, v{wr}
s_waitcnt lgkmcnt(2)
ds_write_b128 v{wr}, v[{d0}:{d3}]
s_waitcnt lgkmcnt(1)
ds_write_b128 v{t}, v[{d4}:{d7}]
s_waitcnt lgkmcnt(0)'''.format(rd=vrd, wr=vwr, t=t, **{'d%d' % i: d + i for i in range(8)}))


def kernel():
    a = A()
    KN = NAME + '_kernel'
    a('''.p2align 8
.type {k},@function
{k}:
s_cmp_ge_u32 s2, 256
s_cbranch_scc1 L_end
s_load_dwordx16 s[16:31], s[0:1], 8
s_load_dwordx4 s[32:35], s[0:1], 72
s_load_dwordx4 s[36:39], s[0:1], 104'''.format(k=KN))
    stamp(a, 0, True)
    stamp(a, 1)
    if 'enc' in OPTV:
        a('s_memrealtime s[90:91]')
    a('''v_lshrrev_b32 v3, 6, v0
v_and_b32 v4, 63, v0
s_and_b32 s44, s2, 7
s_lshr_b32 s45, s2, 3
v_readfirstlane_b32 s3, v3
s_lshl_b32 s60, s44, 6
s_lshl_b32 s46, s45, 1
s_add_u32 s60, s60, s46
s_lshl_b32 s46, s60, 8
v_lshl_add_u32 v5, v0, 1, s46
s_lshr_b32 s4, s44, 1
s_lshl_b32 s4, s4, 3
s_and_b32 s46, s45, 7
s_add_u32 s4, s4, s46
s_and_b32 s5, s44, 1
s_lshl_b32 s5, s5, 2
s_lshr_b32 s47, s45, 3
s_add_u32 s5, s5, s47
s_lshl_b32 s47, s47, 1
%s
s_cmp_ge_u32 s3, 4
s_cbranch_scc1 L_gemm''' % {'0': 's_mov_b32 s6, 0', '1': 's_add_u32 s6, s46, s47', '2': 's_and_b32 s6, s46, 4', '3': 's_and_b32 s6, s46, 6'}[OPTV.get('rot', '1')])
    SEG = (1, 2, 0)
    S = [16, 32]
    Pp = [48, 56]
    O = [64, 80]
    Q = [96, 100]
    OWN = 'own' in OPT
    DK = int(OPTV.get('dk', 3))
    NB, NBV = DK + 1, DK + 1 if DK == 3 else DK
    K = [104 + 4 * b for b in range(NB)]
    V0 = 104 + 4 * NB
    V = [[V0 + 8 * b, V0 + 4 + 8 * b] for b in range(NBV)]
    KA, VA = 14, 15
    assert V0 + 8 * NBV <= 160

    WOW = OPTV.get('wow', 'mid')

    def wo_dma():
        srd(a, 12, 32, 512 * 1024)
        a('''v_lshrrev_b32 v6, 3, v4
v_lshlrev_b32 v6, 10, v6
v_bfe_u32 v7, v4, 4, 1
v_lshlrev_b32 v7, 2, v7
v_and_b32 v8, 7, v4
v_xor_b32 v7, v7, v8
v_lshl_add_u32 v6, v7, 4, v6
v_add_u32 v7, %d, v6
s_lshl_b32 s57, s48, 10
s_lshl_b32 s26, s49, 14
s_add_u32 s57, s57, s26
s_lshl_b32 s26, s5, 7
s_lshl_b32 s27, s48, 13
s_add_u32 s26, s26, s27''' % (16384 - 2048))
        for cc in range(4):
            a('s_add_u32 s38, s51, %d' % cc)
            a('s_and_b32 s38, s38, 7')
            a('s_lshl_b32 s30, s38, 16')
            for g in range(2):
                a('s_add_u32 m0, s57, %d' % (g * 32768 + cc * 4096))
                a('s_add_u32 s30, s30, s26' if g == 0 else 's_add_u32 s30, s30, 0x8000')
                a('buffer_load_dwordx4 v6, s[12:15], s30 offen lds')
                a('buffer_load_dwordx4 v7, s[12:15], s30 offen offset:2048 lds')

    def att_prologue(early):
        a('''s_lshr_b32 s19, s3, 3
s_and_b32 s18, s3, 1
s_lshl_b32 s24, s19, 1
s_add_u32 s18, s18, s24
s_bfe_u32 s24, s3, 0x10001
v_lshlrev_b32 v5, 4, v4
s_lshl_b32 s26, s18, 10
s_add_u32 s26, s26, %d
s_lshl_b32 s27, s24, 12
s_add_u32 s26, s26, s27
v_add_u32 v13, s26, v5
s_lshl_b32 s27, s5, 2
s_add_u32 s18, s18, s27
s_lshl_b32 s22, s18, 16
s_add_u32 s27, s22, %d
v_add_u32 v%d, s27, v5
s_lshl_b32 s36, s24, 10
%s
s_mov_b32 s37, s36
v_lshrrev_b32 v6, 5, v4
v_and_b32 v7, 15, v4
v_lshlrev_b32 v7, 4, v7
v_lshl_add_u32 v7, v6, 8, v7
s_add_u32 s27, s22, %d
v_add_u32 v%d, s27, v7
v_and_b32 v6, 31, v4
v_cmp_eq_u32 vcc, 16, v6
v_cmp_eq_u32 s[28:29], 20, v6
s_mov_b32 s30, 0x3f803f80
s_or_b64 vcc, vcc, s[28:29]
v_mov_b32 v7, s30
s_mov_b32 s40, 0xffff
s_mov_b32 s41, 0xffff
v_cndmask_b32 v6, 0, v7, vcc''' % (QX, KF, KA, 's_lshl_b32 s37, s4, 11\ns_add_u32 s36, s36, s37' if OWN else '', VF, VA))
        for b in range(NBV):
            for u in range(2):
                for j in range(4):
                    a('v_mov_b32 v%d, v6' % (V[b][u] + j))
        for q in range(2):
            for j in range(16):
                a('v_mov_b32 v%d, 0' % (O[q] + j))

        if early:
            a('''s_and_b32 s48, s3, 1
s_bfe_u32 s49, s3, 0x10001
v_lshrrev_b32 v8, 5, v4
v_bfe_u32 v160, v4, 2, 2
v_lshl_add_u32 v160, v8, 2, v160
v_lshlrev_b32 v160, 7, v160
v_bfe_u32 v9, v4, 3, 1
v_lshl_add_u32 v160, v9, 6, v160
v_and_b32 v9, 1, v4
v_lshl_add_u32 v160, v9, 5, v160
v_bfe_u32 v9, v4, 4, 1
v_lshl_add_u32 v160, v9, 4, v160
v_bfe_u32 v9, v4, 1, 1
v_lshl_add_u32 v160, v9, 3, v160
s_lshl_b32 s26, s49, 14
v_add_u32 v161, s26, v160
s_lshl_b32 s26, s49, 6
v_xor_b32 v161, s26, v161
v_xor_b32 v160, 64, v161
v_and_b32 v162, 31, v4
v_lshlrev_b32 v162, 11, v162
v_lshl_add_u32 v162, v8, 5, v162
s_lshl_b32 s26, s4, 17
s_lshl_b32 s50, s48, 16
s_add_u32 s26, s26, s50
s_lshl_b32 s27, s5, 7
s_add_u32 s26, s26, s27
s_lshl_b32 s50, s49, 6
s_add_u32 s50, s50, s26
s_add_u32 s50, s50, 1024
s_lshl_b32 s51, s49, 2
s_add_u32 s51, s51, s5
v_and_b32 v163, 3, v4
v_add_u32 v163, s51, v163
v_and_b32 v163, 7, v163
v_lshlrev_b32 v163, 7, v163
s_lshl_b32 s52, s4, 10
s_add_u32 s52, s52, %d
s_lshl_b32 s53, s4, 16
s_lshl_b32 s26, s48, 15
s_add_u32 s53, s53, s26
s_add_u32 s53, s53, %d
s_sub_u32 s26, s3, 4
s_lshl_b32 s27, s26, 12
s_add_u32 s27, s27, %d
v_add_u32 v164, s27, v5
v_xor_b32 v165, 0x2000, v164
s_lshl_b32 s26, s26, 2
v_add_u32 v166, s26, v12
v_xor_b32 v167, 8, v166''' % (FL2, OF, GEN))
        else:
            a('v_mov_b32 v163, 0')
            a('s_mov_b32 s52, %d' % FL2)
        a('''s_lshl_b32 s54, s4, 1
s_add_u32 s54, s54, s24
s_lshl_b32 s54, s54, 15
s_lshl_b32 s26, s18, 10
s_add_u32 s54, s54, s26
s_add_u32 s54, s54, %d
v_mov_b32 v8, -1
v_mov_b32 v9, -1
v_mov_b32 v10, -1
v_mov_b32 v11, -1
s_lshl_b32 s55, s4, 3
s_add_u32 s55, s55, s5
s_lshl_b32 s55, s55, 7
s_add_u32 s55, s55, %d
buffer_store_dwordx4 v[8:11], v5, s[8:11], s54 offen sc1''' % (OF, FL2))


    a('''s_lshr_b32 s61, s3, 1
s_add_u32 s52, s60, s61
s_lshl_b32 s46, s52, 1
v_mov_b32 v19, s46
s_and_b32 s53, s3, 1
s_waitcnt lgkmcnt(0)''')
    P = 20
    a('global_load_ushort %s, v19, s[28:29]' % vr(P + 6))
    for i in range(6):
        a('global_load_ushort %s, v5, %s' % (vr(P + i), sr(16 + 2 * i, 2)))
    a('global_load_ushort %s, v19, s[30:31]' % vr(P + 7))
    a('''s_getpc_b64 s[40:41]
v_and_b32 v1, 7, v0
v_lshlrev_b32 v1, 7, v1
s_lshl_b32 s46, s45, 10
v_add_u32 v1, s46, v1
global_load_dword v2, v1, s[40:41]''')
    a('s_branch L_gen2')

    a('''L_gemm:
s_cmp_ge_u32 s3, 8
s_cbranch_scc1 L_mm
s_setprio 2
s_sub_u32 s61, s3, 4
v_lshrrev_b32 v10, 3, v4
v_lshrrev_b32 v11, 4, v4
v_and_b32 v12, 7, v4
v_xor_b32 v13, v12, v11
s_lshl_b32 s47, s61, 4
v_add_u32 v10, s47, v10
s_lshl_b32 s46, s4, 16
v_lshl_add_u32 v14, v10, 10, s46
v_lshl_add_u32 v6, v13, 4, v14
v_xor_b32 v7, 64, v6
v_add_u32 v7, 0x1c00, v7
v_lshlrev_b32 v16, 10, v10
v_lshl_add_u32 v16, v12, 4, v16
v_mul_u32_u24 v10, 3072, v10
v_and_b32 v11, 1, v11
v_lshlrev_b32 v11, 2, v11
v_xor_b32 v12, v12, v11
v_lshl_add_u32 v8, v12, 4, v10
s_lshl_b32 s46, s5, 7
v_add_u32 v8, s46, v8
v_add_u32 v9, %d, v8
s_lshl_b32 s48, s61, 11
s_waitcnt lgkmcnt(0)''' % (8 * 3072 - 1024))
    srd(a, 16, 32, 2048 * 1024)
    srd(a, 12, 34, 512 * 3072)

    def dma_chunk(c):
        slot = (c % 6) * 16384
        if c < 8:
            a('s_add_u32 s50, s6, %d' % c)
            a('s_and_b32 s50, s50, 7')
            a('s_mul_i32 s49, s50, %d' % (64 * 3072))
            a('s_add_u32 m0, s48, %d' % slot)
            a('s_lshl_b32 s50, s50, 7')
            a('buffer_load_dwordx4 v6, s[16:19], s50 offen lds')
            a('buffer_load_dwordx4 v7, s[16:19], s50 offen offset:1024 lds')
            a('s_add_u32 m0, s48, %d' % (slot + 8192))
            a('s_add_u32 s49, s49, %d' % (SEG[0] * 1024))
            a('buffer_load_dwordx4 v8, s[12:15], s49 offen lds')
            a('buffer_load_dwordx4 v9, s[12:15], s49 offen offset:1024 lds')
        else:
            p, j = 1 + ((c - 8) >> 2), (c - 8) & 3
            for hf in range(2):
                a('s_add_u32 s50, s6, %d' % (2 * j + hf))
                a('s_and_b32 s50, s50, 7')
                a('s_mul_i32 s49, s50, %d' % (64 * 3072))
                a('s_add_u32 m0, s48, %d' % (slot + hf * 8192))
                a('s_add_u32 s49, s49, %d' % (SEG[p] * 1024))
                a('buffer_load_dwordx4 v8, s[12:15], s49 offen lds')
                a('buffer_load_dwordx4 v9, s[12:15], s49 offen offset:1024 lds')

    dma_chunk(0)
    dma_chunk(1)
    a('s_load_dwordx2 s[20:21], s[0:1], 0')
    srd(a, 8, 38, WS_BYTES)
    a('''s_lshl_b32 s46, s45, 16
s_lshl_b32 s47, s44, 7
s_add_u32 s58, s46, s47
s_add_u32 s59, s48, %d
v_add_u32 v17, 0x1c00, v16
v_mov_b32 v12, %d
s_waitcnt lgkmcnt(0)''' % (USI, CNT))
    srd(a, 60, 20, 2048 * 1024)
    jitter(a, 7)
    order = [0, 1]
    cnt = lambda x: 4 if isinstance(x, int) else x[1]
    stamp(a, 2)
    for c in range(16):
        a('s_waitcnt vmcnt(%d)' % sum(cnt(x) for x in order[order.index(c) + 1:]))
        if c in (0, 8, 12):
            stamp(a, {0: 3, 8: 4, 12: 5}[c])
        a('s_barrier')
        if 'bars' in OPT and c <= 12 and c != 1:
            n = 1 + c - (c > 1)
            a('s_memrealtime s[%d:%d]' % (ST0 + 2 * n, ST0 + 2 * n + 1))
        for n in {0: [2, 3], 1: [4, 5]}.get(c, [c + 4] if c + 4 < 16 else []):
            dma_chunk(n)
            order.append(n)
        if c == int(OPTV.get('wpo', 11)) and WOW == 'win':
            a('''s_load_dwordx2 s[32:33], s[0:1], 88
v_and_b32 v26, 15, v4
v_lshlrev_b32 v26, 10, v26
s_and_b32 s46, s4, 7
s_lshl_b32 s46, s46, 16
s_lshl_b32 s47, s5, 7
s_add_u32 s46, s46, s47
s_lshl_b32 s47, s48, 3
s_add_u32 s46, s46, s47
v_add_u32 v26, s46, v26
s_waitcnt lgkmcnt(0)
global_load_dword v27, v26, s[32:33]''')
            order.append(('w', 1))
        if c == 12:
            att_prologue(True)
            order.append(('m', 1))
        if c == 13:
            a('s_mov_b32 m0, s59')
            a('s_nop 0')
            a('buffer_load_dwordx4 v16, s[60:63], s58 offen lds')
            a('buffer_load_dwordx4 v17, s[60:63], s58 offen offset:1024 lds')
            order.append(('u', 2))
    a('''s_load_dwordx2 s[32:33], s[0:1], 88
s_waitcnt lgkmcnt(0)
s_barrier
ds_read_b32 v1, v12 offset:%d
s_waitcnt lgkmcnt(0)
v_readfirstlane_b32 s7, v1
s_waitcnt vmcnt(0)''' % C_TAG)
    lds_add(a, 12, 3, C_UL)
    a('s_branch L_att')

    a('L_gen2:')
    srd(a, 8, 38, WS_BYTES)
    srd(a, 12, 36, 256)
    a('''v_mov_b32 v18, 0
s_or_b32 s46, s2, s3
s_cmp_eq_u32 s46, 0
s_cbranch_scc0 L_notag
s_memrealtime s[46:47]
s_waitcnt lgkmcnt(0)
s_or_b32 s46, s46, 1
v_mov_b32 v1, s46
s_mov_b64 exec, 1
buffer_store_dword v1, v18, s[12:15], 0 offen sc1
s_mov_b64 exec, -1
s_waitcnt vmcnt(0)
L_notag:''')
    a('''s_lshl_b32 s62, s3, 14
s_add_u32 s62, s62, %d
v_and_b32 v10, 7, v4
v_lshlrev_b32 v10, 4, v10
v_lshl_add_u32 v13, v4, 7, v10
v_add_u32 v13, s62, v13
v_lshrrev_b32 v10, 5, v4
v_bfe_u32 v11, v4, 3, 1
v_lshl_add_u32 v10, v10, 2, v11
v_bfe_u32 v11, v4, 2, 1
v_lshlrev_b32 v11, 2, v11
v_bfe_u32 v12, v4, 4, 1
v_lshl_add_u32 v11, v12, 1, v11
v_bfe_u32 v12, v4, 1, 1
v_add_u32 v11, v11, v12
v_xor_b32 v11, v11, v10
v_lshlrev_b32 v11, 4, v11
v_lshl_add_u32 v11, v10, 7, v11
v_and_b32 v12, 1, v4
v_lshl_add_u32 v11, v12, 3, v11
v_add_u32 v14, s62, v11
v_xor_b32 v15, 32, v14
v_add_u32 v15, 256, v15
v_lshl_add_u32 v16, v4, 4, s62
v_xor_b32 v17, 0x4000, v16
v_mov_b32 v12, %d
s_mov_b32 s51, 0x%x''' % (GEN, CNT, f2u(LOG2E)))
    p1, nvalu = kgen_stream()
    sizes = [int(x) for x in OPTV.get('sl', '80,140,31').split(',')]
    cuts = [0]
    for z in sizes:
        cuts.append(min(len(p1), cuts[-1] + z))
    print('kgen instructions', len(p1), 'pure valu', nvalu, cuts, file=sys.stderr)
    a('s_load_dwordx4 s[32:35], s[0:1], 88')
    stamp(a, 2)
    jitter(a, 1)
    a('s_waitcnt vmcnt(1) lgkmcnt(0)')
    for c in range(16):
        if c < len(sizes):
            a.L += p1[cuts[c]:cuts[c + 1]]
        if c == 8:
            a('buffer_load_dword v1, v18, s[12:15], 0 offen sc1')
        if c == 14:
            a('s_waitcnt vmcnt(0)')
            tag_check(a, 1, 18, 12)
            a('''v_cmp_eq_u32 vcc, 0, v4
v_lshl_add_u32 v2, v4, 2, v12
s_cmp_eq_u32 s3, 0
v_cndmask_b32 v1, 0, v1, vcc
s_cbranch_scc0 L_tagd
ds_write_b32 v2, v1
s_waitcnt lgkmcnt(0)
L_tagd:''')
        a('s_barrier')
    a('s_barrier')
    stamp(a, 3)
    if 'noc' in OPT:
        lds_add(a, 12, 1, C_Y2)
        a('s_waitcnt lgkmcnt(0)')
        stamp_dump(a)
        a('s_endpgm')
    a('s_setprio %s' % OPTV.get('cprio', '3'))
    srd(a, 16, 34, 2048 * 2048)
    srd(a, 12, 32, 512 * 1024)
    jitter(a, 2)
    UCUT = cuts[-1] + int(OPTV.get('ucut', 124))
    a.L += p1[cuts[-1]:UCUT]
    TD = 136
    transpose_addrs(a, 3, 5, 6, 7, 8, 9, USI, USO)
    lds_spin(a, 12, 3, C_UL, 4)
    transpose_a(a, 5, 6, TD, 10)
    a('''s_lshl_b32 s46, s3, 11
s_add_u32 s46, s46, %d
v_lshl_add_u32 v6, v4, 4, s46
ds_read_b128 v[162:165], v6
ds_read_b128 v[28:31], v6 offset:1024
v_lshrrev_b32 v6, 3, v4
v_and_b32 v7, 7, v4
v_xor_b32 v7, v7, v6
v_mul_u32_u24 v6, %d, v6
v_lshl_add_u32 v6, v7, 4, v6
s_mul_i32 s46, s44, %d
s_mul_i32 s47, s3, %d
s_add_u32 s46, s46, s47
s_lshl_b32 s47, s45, 7
s_add_u32 s46, s46, s47
s_add_u32 s46, s46, %d
s_add_u32 s47, s46, %d
s_lshl_b32 s65, s44, 5
s_add_u32 s65, s65, s45
s_lshl_b32 s65, s65, 6
s_add_u32 s65, s65, %d
s_waitcnt lgkmcnt(1)
buffer_store_dwordx4 v[162:165], v6, s[8:11], s46 offen sc1
s_waitcnt lgkmcnt(0)
buffer_store_dwordx4 v[28:31], v6, s[8:11], s47 offen sc1''' % (USO, RS, 64 * RS, 16 * RS, UT, 8 * RS, FLU))
    a.L += p1[UCUT:]
    jitter(a, 3)
    a('s_lshl_b32 s63, s61, 2')
    a('v_add_u32 v11, s63, v12')
    lds_add(a, 11, 1, C_PAIR)
    KD = 32
    a('''v_and_b32 v28, 31, v4
v_lshrrev_b32 v29, 5, v4
s_lshl_b32 s46, s53, 6
s_add_u32 s46, s46, s62
s_add_u32 s46, s46, %d
v_lshlrev_b32 v10, 4, v28
v_sub_u32 v18, s46, v10
v_cmp_eq_u32 s[56:57], 0, v4
s_mov_b32 s58, -1
s_mov_b32 s59, 0
s_mov_b32 s40, 0
s_mov_b32 s41, -1''' % (KCOPY + 255 * 16))
    for sl, (b0, b1) in enumerate([(0, 32), (128, 64)]):
        a('v_mul_i32_i24 v10, %d, v29' % ((b1 - b0) * 16))
        a('v_sub_u32 v%d, v18, v10' % (80 + sl))
        if b0:
            a('v_subrev_u32 v%d, %d, v%d' % (80 + sl, b0 * 16, 80 + sl))
    a('''v_subrev_u32 v82, %d, v18
v_lshrrev_b32 v10, 2, v28
v_lshlrev_b32 v10, 1, v10
v_lshl_add_u32 v10, v29, 5, v10
s_lshl_b32 s47, s53, 1
s_sub_u32 s47, s46, s47
s_add_u32 s48, s47, %d
v_sub_u32 v10, s48, v10
v_and_b32 v83, 3, v28
v_lshl_add_u32 v83, v83, 7, v10
v_bfe_u32 v84, v28, 1, 1
v_lshl_add_u32 v84, v84, 7, v10
s_add_u32 s48, s46, %d
v_lshl_add_u32 v85, v4, 4, s48
s_add_u32 s48, s47, %d
v_lshl_add_u32 v86, v4, 1, s48
s_mov_b32 s42, 0x55555555
s_mov_b32 s43, 0x55555555''' % (96 * 16, ZOFF + 62 - 32 - 255 * 16, 416 - 255 * 16, 490 - 255 * 16))
    a('''v_lshl_add_u32 v87, v4, 4, s46
v_add_u32 v87, 16, v87
s_lshl_b32 s64, s61, 15
s_add_u32 s64, s64, %d
s_lshl_b32 s47, s53, 1
v_add_u32 v10, s47, v29
v_mul_u32_u24 v10, 1536, v10
v_lshl_add_u32 v10, v28, 4, v10
v_add_u32 v10, s64, v10
v_mov_b32 v88, 0
v_mov_b32 v89, 0
v_mov_b32 v90, 0
v_mov_b32 v91, 0''' % (GEN + UIMG))
    lds_spin(a, 11, 1, C_PAIR, 2)
    a('ds_write_b128 v10, v[88:91]')
    a('ds_write_b128 v85, v[88:91]')
    for j in range(4):
        a('ds_read_b128 %s, v17 offset:%d' % (vr(48 + 4 * j, 4), 1024 * j))
    a('''v_mov_b32 v8, 0x3f80
s_mov_b64 exec, 0xff
ds_write_b16 v86, v8
s_mov_b64 exec, -1''')
    a('v_cndmask_b32 v9, 0, v27, s[56:57]')
    a('v_add_f32 v%d, v%d, v9' % (KD, KD))
    a('s_waitcnt lgkmcnt(0)')
    for j in range(16):
        a('v_add_f32 v%d, v%d, v%d' % (KD + j, KD + j, 48 + j))
    for i, r in enumerate((9, 11, 13)):
        a('v_sub_f32 v%d, v%d, v%d' % (48 + i, KD + r, KD + r + 1))
    for i, r in enumerate((9, 11, 13)):
        a('v_cvt_pk_bf16_f32 v%d, v%d, v%d' % (48 + i, KD + r + 1, 48 + i))
    a('v_cndmask_b32 v51, 0, v%d, s[56:57]' % (KD + 9))
    for i in (1, 0, 2):
        if i == 0:
            a('s_mov_b64 exec, s[58:59]')
        a('ds_write_b16 v83, v%d offset:%d' % (48 + i, 32 - 16 * i))
    a('s_mov_b64 exec, s[42:43]')
    for i in (1, 0, 2):
        if i == 0:
            a('s_mov_b32 exec_hi, 0')
        a('ds_write_b16_d16_hi v84, v%d offset:%d' % (48 + i, 512 + 32 - 16 * i))
    a('s_mov_b64 exec, -1')
    OB = 64

    def pack(dst, vals):
        for j in range(4):
            a('v_cvt_pk_bf16_f32 v%d, v%d, v%d' % (dst + j, vals[2 * j], vals[2 * j + 1]))

    def emit_copy(cp):
        k = lambda r: KD + r
        r0 = [k(i) for i in range(9)]
        r1 = [k(0), k(0), k(1), k(2), k(2), k(2), k(3), k(4), k(4)]
        r2 = lambda b: [k(b), k(b), k(b), k(b + 1), k(b + 1), k(b + 1), k(b + 2), k(b + 2), k(b + 2)]
        r3 = [51] * 4 + [89] * 5
        sel = (lambda p: p[8:0:-1]) if cp == 0 else (lambda p: p[7::-1])
        a('s_mov_b64 exec, s[58:59]')
        pack(OB, sel(r0))
        pack(OB + 4, sel(r3))
        a('s_mov_b64 exec, s[40:41]')
        pack(OB, sel(r1))
        pack(OB + 4, sel(r2(5)))
        pack(OB + 8, sel(r2(8)))
        a('s_mov_b64 exec, -1')
        if cp == 0:
            a('v_cvt_pk_bf16_f32 v10, v%d, v88' % KD)
            a('v_cndmask_b32 v88, 0, v10, s[56:57]')

    a('s_cmp_eq_u32 s53, 0')
    a('s_cbranch_scc0 L_copy1')
    emit_copy(0)
    a('s_branch L_copyd')
    a('L_copy1:')
    emit_copy(1)
    a('L_copyd:')
    for sl in range(2):
        a('ds_write_b128 v%d, %s' % (80 + sl, vr(OB + 4 * sl, 4)))
    a('s_mov_b64 exec, s[40:41]')
    a('ds_write_b128 v82, %s' % vr(OB + 8, 4))
    a('s_mov_b64 exec, 15')
    a('ds_write_b128 v87, v[88:91]')
    a('s_mov_b64 exec, -1')
    if 'x1' in OPT:
        lds_add(a, 12, 1, C_Y2)
        a('s_waitcnt lgkmcnt(0)')
        stamp_dump(a)
        a('s_endpgm')
    a('s_waitcnt vmcnt(0)')
    arrive_publish(a, 12, 1, C_U, 4, 65, 2)
    stamp(a, 4)
    a('''v_lshlrev_b32 v6, 6, v28
s_lshl_b32 s46, s44, 11
s_add_u32 s46, s46, %d
s_cmp_eq_u32 s3, 0
s_cbranch_scc0 L_uw''' % FLU)
    a('s_sleep %s' % OPTV.get('usl', 24))
    flag_poll_lazy(a, 6, 1, 46, int(OPTV.get('unap', 16)))
    lds_add(a, 12, 3, C_GOU)
    a('L_uw:')
    lds_spin(a, 12, 3, C_GOU, 1, nap=4)
    a('''v_lshlrev_b32 v6, 6, v4
s_mul_i32 s46, s52, %d
s_lshl_b32 s47, s53, 5
s_add_u32 s46, s46, s47
s_add_u32 s46, s46, %d
s_mul_i32 s47, s53, 3072
s_add_u32 s47, s47, s64
s_add_u32 m0, s47, 512
s_nop 0
buffer_load_dwordx4 v6, s[8:11], s46 offen sc1 lds
s_add_u32 m0, s47, 2048
s_add_u32 s46, s46, 16
buffer_load_dwordx4 v6, s[8:11], s46 offen sc1 lds''' % (RS, UT))
    a('''v_and_b32 v18, 30, v4
v_and_b32 v19, 1, v4
v_lshlrev_b32 v24, 3, v29
v_sub_u32 v24, v24, v18
v_add_u32 v24, 32, v24
v_lshlrev_b32 v24, 1, v24
v_mul_u32_u24 v19, %d, v19
v_add_u32 v24, v24, v19
s_add_u32 s46, s64, %d
v_add_u32 v24, s46, v24
s_lshl_b32 s46, s53, 9
s_add_u32 s46, s46, s64
s_add_u32 s46, s46, %d
v_mul_u32_u24 v25, 1536, v29
v_lshl_add_u32 v25, v28, 4, v25
v_add_u32 v25, s46, v25''' % (16384 + 64 - 4, KCOPY - UIMG + 32 * 120, 512 - 3 * 16))
    TB, UB, CA = 32, 40, 48
    CB = 64
    for j in range(16):
        a('v_mov_b32 v%d, 0' % (CA + j))
    a('''s_add_u32 s34, s53, 8
s_mov_b32 s35, 0
s_waitcnt vmcnt(0) lgkmcnt(0)''')
    lds_add(a, 12, 1, C_CONV)
    if WOW != 'win':
        a('''s_and_b32 s46, s45, 7
s_lshl_b32 s46, s46, 16
s_lshl_b32 s47, s5, 7
s_add_u32 s46, s46, s47
s_lshl_b32 s47, s3, 14
s_add_u32 s46, s46, s47
v_and_b32 v6, 15, v4
v_lshlrev_b32 v6, 10, v6
buffer_load_dword v31, v6, s[12:15], s46 offen''')
    lds_spin(a, 12, 1, C_CONV, 4)
    if 'x2' in OPT:
        lds_add(a, 12, 1, C_Y2)
        a('s_waitcnt lgkmcnt(0)')
        stamp_dump(a)
        a('s_endpgm')
    stamp(a, 5)
    jitter(a, 4)

    def conv_loop(lab, acc, send):
        a(lab + ':')
        for j in range(8):
            t = TB + 4 * (j & 1)
            if 'not' not in OPT or j == 0:
                a('ds_read2_b32 %s, v24 offset0:%d offset1:%d' % (vr(t, 2), 8 * (7 - j), 8 * (7 - j) + 1))
                a('ds_read2_b32 %s, v24 offset0:%d offset1:%d' % (vr(t + 2, 2), 8 * (7 - j) + 2, 8 * (7 - j) + 3))
            a('ds_read_b128 %s, v25 offset:%d' % (vr(UB + 4 * (j & 1), 4), (3072 if j % 2 == 0 else 0) + (3 - (j >> 1)) * 16))
            a('s_waitcnt lgkmcnt(0)')
            a(mfma(acc, UB + 4 * (j & 1), t, acc))
            if 'cs' in OPTV:
                a('s_sleep %s' % OPTV['cs'])
        a('''v_subrev_u32 v24, 256, v24
v_subrev_u32 v25, 64, v25
s_add_u32 s35, s35, 1
s_cmp_lt_u32 s35, %s
s_cbranch_scc1 %s''' % (send, lab))

    if 'noconv' not in OPT:
        conv_loop('L_cl', CA, 's34')
        a('''s_cmp_eq_u32 s53, 0
s_cbranch_scc0 L_cr
v_subrev_u32 v24, 1536, v24
v_add_u32 v25, 512, v25''')
        for j in range(3):
            t = 96 + 8 * j
            a('ds_read2_b32 %s, v24 offset0:%d offset1:%d' % (vr(t, 2), 8 * (7 - j), 8 * (7 - j) + 1))
            a('ds_read2_b32 %s, v24 offset0:%d offset1:%d' % (vr(t + 2, 2), 8 * (7 - j) + 2, 8 * (7 - j) + 3))
            a('ds_read_b128 %s, v25 offset:%d' % (vr(t + 4, 4), (3072 if j % 2 == 0 else 0) + (3 - (j >> 1)) * 16))
        a('''v_lshlrev_b32 v20, 1, v28
v_lshl_add_u32 v20, v29, 8, v20
s_add_u32 s46, s62, 64
v_add_u32 v20, s46, v20
v_mov_b32 v88, 0
v_and_b32 v10, 1, v4
v_xor_b32 v10, 1, v10
v_mul_u32_u24 v21, %d, v10
v_lshlrev_b32 v10, 3, v29
v_sub_u32 v10, v10, v28
v_lshl_add_u32 v21, v10, 1, v21
s_add_u32 s46, s62, %d
v_add_u32 v21, s46, v21
v_bfe_u32 v9, v4, 2, 2
v_lshl_add_u32 v9, v29, 3, v9
v_bfe_u32 v10, v4, 4, 1
v_lshlrev_b32 v10, 2, v10
v_and_b32 v8, 3, v4
v_add_u32 v10, v10, v8
v_lshlrev_b32 v22, 6, v9
v_lshl_add_u32 v22, v10, 3, v22
s_add_u32 s46, s62, 16
v_add_u32 v22, s46, v22
s_waitcnt lgkmcnt(6)''' % (16384 + 64 - 2, KCOPY + ZOFF + 62))
        a(mfma(CB, 100, 96, None))
        for r_, dst in ((0, 23), (1, 26)):
            a('''v_add_u32 v8, {o}, v10
v_and_b32 v7, 1, v8
v_lshlrev_b32 v{d}, 3, v7
v_bfe_u32 v7, v8, 1, 2
v_mul_u32_u24 v7, 1536, v7
v_add_u32 v{d}, v{d}, v7
v_lshrrev_b32 v8, 3, v8
v_add_u32 v8, v8, v9
v_lshl_add_u32 v{d}, v8, 4, v{d}
s_add_u32 s46, s64, 496
v_add_u32 v{d}, s46, v{d}'''.format(o=7 - 4 * r_, d=dst))
            a('s_waitcnt lgkmcnt(%d)' % (3 - 3 * r_))
            a(mfma(CB, 108 + 8 * r_, 104 + 8 * r_, CB))
        a('''s_mov_b64 exec, 15
ds_write_b128 v16, v[88:91]
s_mov_b64 exec, -1
s_nop 11''')
        for k in range(8):
            a('v_cvt_pk_bf16_f32 v%d, v%d, v%d' % (32 + k, CB + 2 * k, CB + 2 * k + 1))
        for k in range(8):
            r = 2 * k
            a('ds_write_b16 v20, v%d offset:%d' % (32 + k, (8 * (r >> 2) + (r & 3)) * 64))
            a('ds_write_b16_d16_hi v20, v%d offset:%d' % (32 + k, (8 * (r >> 2) + (r & 3) + 1) * 64))
        steps = [(i, st) for i in (4, 5, 0, 1, 2, 3) for st in range(2)]
        for n, (i, st) in enumerate(steps):
            t = 96 + 8 * (n & 1)
            o = i * 32 + st * 8
            a('ds_read2_b32 %s, v21 offset0:%d offset1:%d' % (vr(t, 2), o, o + 1))
            a('ds_read2_b32 %s, v21 offset0:%d offset1:%d' % (vr(t + 2, 2), o + 2, o + 3))
            for rd in range(2):
                if i < 4:
                    a('ds_read_b64_tr_b16 %s, v22 offset:%d' % (vr(t + 4 + 2 * rd, 2), st * 1024 + rd * 256 + 16 * (3 - i)))
                else:
                    a('ds_read_b64_tr_b16 %s, v%d offset:%d' % (vr(t + 4 + 2 * rd, 2), (23, 26)[i - 4], st * 256 + rd * 64))
            a('s_waitcnt lgkmcnt(0)')
            a(mfma(CB, t, t + 4, None if n == 0 else CB))
        a('s_nop 15')
        for j in range(4):
            a('ds_write_b128 v16, %s offset:%d' % (vr(CB + 4 * j, 4), 1024 * j))
        a('s_waitcnt lgkmcnt(0)')
        lds_add(a, 11, 1, C_PAIR)
        a('s_branch L_cd')
        a('L_cr:')
        lds_spin(a, 11, 1, C_PAIR, 3, nap=2)
        for j in range(4):
            a('ds_read_b128 %s, v17 offset:%d' % (vr(CB + 4 * j, 4), 1024 * j))
        a('s_waitcnt lgkmcnt(0)')
        for j in range(16):
            a('v_add_f32 v%d, v%d, v%d' % (CA + j, CA + j, CB + j))
        a('L_cd:')
    jitter(a, 5)
    stamp(a, 6)
    a('''s_nop 0
s_mul_i32 s46, s52, %d
s_lshl_b32 s47, s53, 11
s_add_u32 s46, s46, s47
s_add_u32 s46, s46, %d
v_lshlrev_b32 v6, 2, v28
v_lshl_add_u32 v6, v29, 8, v6
s_lshl_b32 s47, s53, 9
s_add_u32 s47, s47, s52
s_lshl_b32 s47, s47, 6
s_add_u32 s47, s47, %d
v_mov_b32 v1, s7
v_mov_b32 v2, 0''' % (RS, YT, FL3))
    for k in range(8):
        a('v_cvt_pk_bf16_f32 v%d, v%d, v%d' % (32 + k, CA + 2 * k, CA + 2 * k + 1))
    for k in range(8):
        a('buffer_store_dword v%d, v6, s[8:11], s46 offen offset:%d sc1' % (32 + k, (4 * (k >> 1) + (k & 1)) * 128))
    a('''s_waitcnt vmcnt(0) lgkmcnt(0)
s_mov_b64 exec, 1
buffer_store_dword v1, v2, s[8:11], s47 offen sc1
s_mov_b64 exec, -1''')
    if 'x3' in OPT:
        lds_add(a, 12, 1, C_Y2)
        a('s_waitcnt lgkmcnt(0)')
        stamp_dump(a)
        a('s_endpgm')
    if WOW == 'mid':
        a('''v_lshrrev_b32 v6, 3, v4
v_lshlrev_b32 v6, 10, v6
v_bfe_u32 v7, v4, 4, 1
v_lshlrev_b32 v7, 2, v7
v_and_b32 v8, 7, v4
v_xor_b32 v7, v7, v8
v_lshl_add_u32 v6, v7, 4, v6
s_lshl_b32 s23, s53, 10
s_lshl_b32 s24, s61, 11
s_add_u32 s24, s23, s24
s_lshl_b32 s26, s5, 7
s_lshl_b32 s27, s53, 13
s_add_u32 s26, s26, s27
s_lshl_b32 s27, s61, 14
s_add_u32 s26, s26, s27
s_nop 0''')
        for c in range(8):
            a('s_add_u32 s38, s5, %d' % c)
            a('s_and_b32 s38, s38, 7')
            a('s_lshl_b32 s30, s38, 16')
            a('s_add_u32 m0, s24, %d' % (c * 4096))
            a('s_add_u32 s30, s30, s26')
            if 'nowo' in OPT:
                continue
            a('buffer_load_dwordx4 v6, s[12:15], s30 offen lds')
            a('s_add_u32 m0, s24, %d' % (32768 + c * 4096))
            a('s_add_u32 s30, s30, 0x8000')
            a('buffer_load_dwordx4 v6, s[12:15], s30 offen lds')
            a('s_waitcnt vmcnt(%s)' % OPTV.get('wot', '2'))
    if 'x4' in OPT:
        lds_add(a, 12, 1, C_Y2)
        a('s_waitcnt lgkmcnt(0)')
        stamp_dump(a)
        a('s_endpgm')
    stamp(a, 7)
    a('''v_lshlrev_b32 v6, 6, v4
s_lshr_b32 s46, s4, 4
s_lshl_b32 s46, s46, 15
s_lshl_b32 s47, s5, 12
s_add_u32 s46, s46, s47
s_add_u32 s46, s46, %d
s_cmp_eq_u32 s3, 0
s_cbranch_scc0 L_yw''' % FL3)
    if 'ysl' in OPTV:
        a('s_sleep %s' % OPTV['ysl'])
    flag_poll_lazy(a, 6, 1, 46, int(OPTV.get('ynap', 32)))
    lds_add(a, 12, 3, C_GOY)
    a('L_yw:')
    transpose_addrs(a, 3, 20, 21, 22, 8, 9, USI, USO)
    a('''v_mul_u32_u24 v10, %d, v8
v_and_b32 v11, 7, v4
v_lshl_add_u32 v10, v11, 4, v10
v_add_u32 v11, %d, v10
s_mul_i32 s46, s5, %d
s_mul_i32 s47, s3, %d
s_add_u32 s46, s46, s47
s_lshl_b32 s47, s4, 7
s_add_u32 s46, s46, s47
s_add_u32 s46, s46, %d
s_lshl_b32 s47, s3, 11
s_add_u32 s47, s47, %d''' % (RS, 8 * RS - 1024, 64 * RS, 16 * RS, YT, USI))
    lds_spin(a, 12, 3, C_GOY, 1, nap=8)
    a('''s_mov_b32 m0, s47
v_and_b32 v7, 1, v8
v_lshrrev_b32 v8, 1, v8
v_lshl_add_u32 v8, v7, 5, v8
v_lshlrev_b32 v8, 11, v8
buffer_load_dwordx4 v10, s[8:11], s46 offen sc1 lds
buffer_load_dwordx4 v11, s[8:11], s46 offen offset:1024 sc1 lds
v_lshl_add_u32 v8, v9, 4, v8
s_lshl_b32 s46, s4, 17
s_lshl_b32 s47, s3, 14
s_add_u32 s46, s46, s47
s_lshl_b32 s47, s5, 7
s_add_u32 s46, s46, s47
s_add_u32 s47, s46, 0x2000
s_waitcnt vmcnt(0)''')
    jitter(a, 6)
    lds_add(a, 12, 1, C_Y)
    lds_spin(a, 12, 1, C_Y, 4)
    transpose_a(a, 20, 21, 32, 23)
    a('''ds_read_b128 v[32:35], v22
ds_read_b128 v[36:39], v22 offset:1024
s_waitcnt lgkmcnt(1)
buffer_store_dwordx4 v[32:35], v8, s[16:19], s46 offen sc1
s_waitcnt lgkmcnt(0)
buffer_store_dwordx4 v[36:39], v8, s[16:19], s47 offen sc1''')
    lds_add(a, 12, 1, C_Y2)
    stamp(a, 8)
    a('s_waitcnt lgkmcnt(0)')
    stamp(a, 12)
    stamp_dump(a)
    a('s_endpgm')

    XA, WA, OA, OV = 160, 164, 165, 166
    XR, ACC = 0, 128
    WF = [144, 148, 152, 156]
    a('''L_mm:
%s
s_setprio 3
s_and_b32 s52, s3, 1
s_bfe_u32 s53, s3, 0x10001
v_and_b32 v10, 31, v4
v_bfe_u32 v11, v4, 1, 3
v_lshrrev_b32 v12, 5, v4
v_xor_b32 v11, v11, v12
v_lshlrev_b32 v11, 4, v11
v_lshl_add_u32 v10, v10, 7, v11
s_lshl_b32 s46, s52, 12
v_add_u32 v%d, s46, v10''' % ('s_memrealtime s[70:71]' if 'dbgt' in OPT else '', XA))
    for jq in range(1, 4):
        a('v_xor_b32 v%d, %d, v%d' % (XA + jq, jq << 5, XA))
    a('''v_lshlrev_b32 v10, 10, v12
v_bfe_u32 v11, v4, 2, 2
v_lshl_add_u32 v10, v11, 7, v10
v_bfe_u32 v11, v4, 3, 1
v_xor_b32 v11, s53, v11
v_lshl_add_u32 v10, v11, 6, v10
v_bfe_u32 v11, v4, 4, 1
v_lshl_add_u32 v10, v11, 5, v10
v_and_b32 v11, 3, v4
v_lshl_add_u32 v%d, v11, 3, v10''' % WA)
    a('''s_lshl_b32 s46, s4, 1
s_add_u32 s46, s46, s52
s_lshl_b32 s46, s46, 10
s_lshl_b32 s47, s5, 1
s_add_u32 s47, s47, s53
s_lshl_b32 s47, s47, 17
s_add_u32 s46, s46, s47
v_lshl_add_u32 v%d, v4, 4, s46
v_bfe_u32 v11, v4, 4, 1
v_lshlrev_b32 v11, 16, v11
v_lshl_add_u32 v11, v12, 8, v11
v_and_b32 v10, 15, v4
v_lshl_add_u32 v11, v10, 4, v11
v_add_u32 v%d, s46, v11
v_mov_b32 v167, v4
s_mov_b32 s62, 0x%x
s_mov_b32 s64, %d
s_mov_b32 s65, %d
s_mov_b32 s63, %d
s_lshl_b32 s54, s52, 12
s_lshl_b32 s47, s53, 11
s_add_u32 s54, s54, s47
s_add_u32 s54, s54, %d
s_lshl_b32 s56, s5, 6
s_add_u32 s56, s56, %d
s_lshl_b32 s55, s4, 9
s_add_u32 s55, s55, s56
s_waitcnt lgkmcnt(0)''' % (OA, OV, f2u(QSCALE), KF, KF + 65536, VF, QX, FL1))
    srd(a, 8, 38, WS_BYTES)
    if 'nowpf' not in OPT:
        srd(a, 12, 34, 512 * 3072)
        a('''v_mul_u32_u24 v126, 3072, v4
s_and_b32 s46, s4, 7
s_mul_i32 s46, s46, %d
s_lshl_b32 s47, s5, 7
s_add_u32 s46, s46, s47
s_xor_b32 s47, s52, 1
s_lshl_b32 s47, s47, 11
s_add_u32 s57, s46, s47''' % (64 * 3072))

    def wpf(wave):
        l = label('pf')
        a('s_cmp_eq_u32 s3, %d' % wave)
        a('s_cbranch_scc0 %s' % l)
        a('buffer_load_dword v127, v126, s[12:15], s57 offen')
        a(l + ':')

    WPV, WPQ = int(OPTV.get('wpv', -1)), int(OPTV.get('wpq', -1))
    if WPV < 0:
        wpf(8)
    if WPQ < 0:
        wpf(9)
    if 'upf' in OPT:
        a('''s_cmp_eq_u32 s3, 10
s_cbranch_scc0 L_noupf
s_load_dwordx2 s[20:21], s[0:1], 0
v_lshlrev_b32 v126, 10, v4
s_lshl_b32 s46, s45, 16
s_lshl_b32 s47, s44, 7
s_add_u32 s46, s46, s47
v_add_u32 v126, s46, v126
s_waitcnt lgkmcnt(0)
global_load_dword v127, v126, s[20:21]
L_noupf:''')
    PD = 3

    def chunk_of(s):
        p, kk = s >> 5, s & 31
        return (kk >> 2, kk & 3) if p == 0 else (8 + 4 * (p - 1) + (kk >> 3), kk & 7)

    def nreads(s):
        return 0 if s >= 96 else (3 if s < 32 else 2)

    def reads(s):
        c, j = chunk_of(s)
        if j == 0:
            a('s_barrier')
            if c == 0:
                if OPTV.get('enc') == 'b0':
                    a('s_memrealtime s[92:93]')
                stamp(a, 2)
                if 'dbgt' in OPT:
                    a('s_memrealtime s[72:73]')
            if c == WPV:
                wpf(8)
            if c == WPQ:
                wpf(9)
            if c == 6:
                a('s_waitcnt vmcnt(0)')
            if c % 3 == 0 and c > 0:
                op = 'v_add_u32' if c % 6 == 3 else 'v_subrev_u32'
                for r in ([XA, XA + 1, XA + 2, XA + 3] if c < 8 else []) + [WA]:
                    a('%s v%d, 0xc000, v%d' % (op, r, r))
        so = (c % 3) * 16384
        if c < 8:
            a('ds_read_b128 %s, v%d offset:%d' % (vr(XR + 4 * s, 4), XA + j, so))
            so += 8192
        for rd in range(2):
            a('ds_read_b64_tr_b16 %s, v%d offset:%d' % (vr(WF[s % 4] + 2 * rd, 2), WA, so + j * 2048 + rd * 512))

    def epilogue(p):
        lo, hi = vr(ACC, 4), vr(ACC + 4, 4)
        if SEG[p] == 0:
            a('v_mov_b32 v4, v167')
            a('v_lshl_add_u32 v10, v167, 4, s54')
            a('s_nop 13')
            for i in range(16):
                a('v_mul_f32 v%d, s62, v%d' % (ACC + i, ACC + i))
        else:
            a('s_nop 15')
        for j in range(8):
            a('v_cvt_pk_bf16_f32 v%d, v%d, v%d' % (ACC + j, ACC + 2 * j, ACC + 2 * j + 1))
        if SEG[p] == 0:
            a('ds_write_b128 v10, %s' % lo)
            a('ds_write_b128 v10, %s offset:1024' % hi)
        elif SEG[p] == 1:
            a('buffer_store_dwordx4 %s, v%d, s[8:11], s64 offen sc1' % (lo, OA))
            a('buffer_store_dwordx4 %s, v%d, s[8:11], s65 offen sc1' % (hi, OA))
        else:
            a('buffer_store_dwordx4 %s, v%d, s[8:11], s63 offen sc1' % (lo, OV))
            a('buffer_store_dwordx4 %s, v%d, s[8:11], s63 offen offset:512 sc1' % (hi, OV))

    jitter(a, 8)
    for s in range(PD):
        reads(s)
    for s in range(96):
        p, kk = s >> 5, s & 31
        if s + PD < 96:
            reads(s + PD)
        a('s_waitcnt lgkmcnt(%d)' % sum(nreads(t) for t in range(s + 1, s + PD + 1)))
        x, w = XR + 4 * kk, WF[s % 4]
        if SEG[p] == 2:
            a(mfma(ACC, x, w, None if kk == 0 else ACC))
        else:
            a(mfma(ACC, w, x, None if kk == 0 else ACC))
        if s == 80:
            a('v_mov_b32 v12, %d' % CNT)
            a('ds_read_b32 v1, v12 offset:%d' % C_TAG)
            a('s_waitcnt vmcnt(0) lgkmcnt(0)')
            a('v_readfirstlane_b32 s7, v1')
            jitter(a, 9)
            arrive_publish(a, 12, 1, C_KV, 4, 55, 2, 'nocp' not in OPT)
            if 'rt' in OPT:
                stamp(a, 2)
        if kk == 31:
            if OPTV.get('enc') == 'v' and p == 1:
                a('s_memrealtime s[92:93]')
            stamp(a, 3 + p)
            epilogue(p)
    a('s_waitcnt lgkmcnt(0)')
    a('s_barrier')
    a('''s_cmp_eq_u32 s3, 8
s_cbranch_scc0 L_apro
v_and_b32 v6, 31, v4
v_lshlrev_b32 v6, 9, v6
s_lshr_b32 s46, s4, 3
s_lshl_b32 s46, s46, 14
%s''' % ('s_add_u32 s56, s56, s46' if 'nocp' not in OPT else ''))
    a('s_sleep %s' % OPTV.get('psl', 9))
    if 'p2' not in OPT:
        flag_poll_lazy(a, 6, 1, 56, int(OPTV.get('pnap', 1)))
    else:
        flag_poll(a, 6, 1, 2, 56)
    lds_add(a, 12, 3, C_GO)

    a('L_apro:')
    att_prologue(False)
    a('''L_att:
v_xor_b32 v6, 0x1000, v13
ds_read_b128 %s, v13
ds_read_b128 %s, v6''' % (vr(Q[1], 4), vr(Q[0], 4)))

    def rdk(i):
        return ['buffer_load_dwordx4 %s, v%d, s[8:11], s36 offen sc1' % (vr(K[i % NB], 4), KA),
                's_add_u32 s36, s36, 2048'] + ['s_and_b32 s36, s36, 0xffff'] * OWN

    def rdv(i):
        return ['s_mov_b64 exec, s[40:41]',
                'buffer_load_dwordx4 %s, v%d, s[8:11], s37 offen sc1' % (vr(V[i % NBV][0], 4), VA),
                'buffer_load_dwordx4 %s, v%d, s[8:11], s37 offen offset:512 sc1' % (vr(V[i % NBV][1], 4), VA),
                's_mov_b64 exec, -1', 's_add_u32 s37, s37, 2048'] + ['s_and_b32 s37, s37, 0xffff'] * OWN

    PF = False
    pfl = []
    issue = []
    if OWN:
        lds_spin(a, 12, 3, C_KV, 4)
        a('\n'.join(rdk(0) + rdv(0)))
        issue += [('k', 0), ('v', 0), ('v', 0)]
    jitter(a, 10)
    stamp(a, 6)
    lds_spin(a, 12, 3, C_GO, 1)
    stamp(a, 7)
    pro = []
    if not OWN:
        pro = rdk(0)
        issue += [('k', 0)]
    for i in range(1, DK):
        pro += rdk(i)
        issue += [('k', i)]
        if i > 1 or not OWN:
            pro += rdv(i - 1)
            issue += [('v', i - 1), ('v', i - 1)]
    a('\n'.join(pro))
    a('s_setprio 3')
    a('s_waitcnt vmcnt(%d)' % (len(issue) - 1))
    if OPTV.get('enc') == 'go':
        a('s_memrealtime s[92:93]')
    if 'pubq0' in OPT:
        arrive_publish(a, 12, 3, C_Q, 8, 55, 2)
        issue.append(('f',))
    stamp(a, 8)
    if 'dbgt' in OPT:
        a('s_memrealtime s[74:75]')
    a(mfma(S[0], K[0], Q[0], None))
    a('s_nop 7')
    a('s_nop 3')
    pp_ = [int(x) for x in OPTV.get('pr', '7,15,23').split(',')]
    PRIO = {pp_[0]: 2, pp_[1]: 1, pp_[2]: 0}

    def unit(i, q):
        u = 2 * i + q
        sc, sn = S[u % 2], S[(u + 1) % 2]
        pc, pp = Pp[u % 2], Pp[(u + 1) % 2]
        i1, q1 = (i, 1) if q == 0 else (i + 1, 0)
        i0, q0 = (i - 1, 1) if q == 0 else (i, 0)
        qk = mfma(sn, K[i1 % NB], Q[q1], None)
        pv0 = mfma(O[q0], V[i0 % NBV][0], pp, O[q0])
        pv1 = mfma(O[q0], V[i0 % NBV][1], pp + 4, O[q0])
        if 'swp' in OPT:
            pv0 = mfma(O[q0], pp, V[i0 % NBV][0], O[q0])
            pv1 = mfma(O[q0], pp + 4, V[i0 % NBV][1], O[q0])
        e = ['v_exp_f32 v%d, v%d' % (sc + j, sc + j) for j in range(16)]
        c = ['v_cvt_pk_bf16_f32 v%d, v%d, v%d' % (pc + j, sc + 2 * j, sc + 2 * j + 1) for j in range(8)]
        c7prev = 'v_cvt_pk_bf16_f32 v%d, v%d, v%d' % (pp + 7, sn + 14, sn + 15)
        out = [e[0]]
        late_qk = OWN and u == 1
        if late_qk:
            last = max(n for n, x in enumerate(issue) if x == ('v', 0))
            out.append('s_waitcnt vmcnt(%d)' % sum(x != ('f',) for x in issue[last + 1:]))
        elif q == 1:
            last = max(n for n, x in enumerate(issue) if x in (('k', i + 1), ('v', i)))
            out.append('s_waitcnt vmcnt(%d)' % sum(x != ('f',) for x in issue[last + 1:]))
        if u > 0:
            out.append(c7prev)
        if u < 63 and not late_qk:
            out.append(qk)
        kl = rdk(i + DK) if q == 0 and i + DK < 32 else []
        vl = rdv(i + DK - 1) if q == 1 and i + DK - 1 < 32 else []
        issue.extend([('k', i + DK)] * bool(kl) + [('v', i + DK - 1)] * 2 * bool(vl))
        out += kl[:1] + vl[:4]
        out += [e[1], e[2], c[0], e[3], e[4], c[1], e[5]]
        if u > 0:
            out.append(pv0)
        out += kl[1:2] + vl[4:5]
        out += [e[6], c[2], e[7], e[8], c[3], e[9], e[10], c[4]]
        if u > 0:
            out.append(pv1)
        out += kl[2:] + vl[5:]
        if q == 0 and i in (1, 8, 16) and PF:
            out += pfl
            issue.append(('p',))
        if q == 1 and i == int(OPTV.get('eti', 30)):
            out += ['s_mov_b64 exec, 1', 'ds_add_u32 v12, v12 offset:%d' % C_T, 's_mov_b64 exec, -1']
        if q == 1 and i in PRIO:
            out.append('s_setprio %d' % PRIO[i])
            if DIAG and 'qs' in OPT:
                n = 3 + i // 8
                out.append('s_memrealtime s[%d:%d]' % (ST0 + 2 * n, ST0 + 2 * n + 1))
        out += [e[11], e[12], c[5], e[13], e[14], c[6], e[15]]
        if late_qk:
            last = issue.index(('k', 1))
            out += ['s_waitcnt vmcnt(%d)' % sum(x != ('f',) for x in issue[last + 1:]), qk, 's_nop 11']
        return out

    for i in range(32):
        for q in range(2):
            if (i, q) == (20, 0):
                jitter(a, 11)
            if (i, q) == (31, 0):
                jitter(a, 12)
                a('''s_and_b32 s26, s3, 3
s_xor_b32 s27, s26, 2
s_mul_i32 s26, s26, 2304
s_add_u32 s26, s26, {ox}
s_mul_i32 s27, s27, 2304
s_add_u32 s27, s27, {ox}
v_add_u32 v6, s26, v5
v_add_u32 v7, s27, v5
v_lshlrev_b32 v8, 2, v4
v_add_u32 v9, s27, v8
v_add_u32 v8, s26, v8
s_sub_u32 s26, s3, 4
s_lshl_b32 s26, s26, 2
v_add_u32 v10, s26, v12
s_xor_b32 s26, s26, 8
v_add_u32 v11, s26, v12
s_cmp_eq_u32 s19, 0
s_cbranch_scc0 L_xa'''.format(ox=OX))
                lds_spin(a, 12, 3, C_Q, 8)
                a('s_branch L_xb')
                a('L_xa:')
                lds_spin(a, 12, 3, C_O, 4)
                a('''L_xb:
s_mov_b32 s44, 0x%x
s_mov_b32 s45, 0x%x
s_mov_b32 s46, 0x7f7fffff
s_lshl_b32 s26, s19, 2
v_add_u32 v13, s26, v12
v_mov_b32 v3, 1
buffer_load_dword v1, v163, s[8:11], s52 offen sc1''' % (f2u(2.0 ** -64), f2u(2.0 ** 64)))
                issue.append(('m',))
            if (i, q) == (2, 0) and 'pubq0' not in OPT:
                arrive_publish(a, 12, 3, C_Q, 8, 55, 2)
                issue.append(('f',))
            for s in unit(i, q):
                a(s)
    a('s_nop 0')
    a('v_cvt_pk_bf16_f32 v%d, v%d, v%d' % (Pp[1] + 7, S[1] + 14, S[1] + 15))
    if OPTV.get('enc') == 'loop':
        a('s_memrealtime s[92:93]')
    stamp(a, 9)
    if 'dbgt' in OPT:
        a('s_memrealtime s[76:77]')
    a('s_setprio 3')
    a('s_nop 0')
    a(mfma(O[1], V[31 % NBV][0], Pp[1], O[1]))
    a(mfma(O[1], V[31 % NBV][1], Pp[1] + 4, O[1]))
    F = O[1]
    a('''ds_write_b128 v6, %s
ds_write_b128 v6, %s offset:1024
ds_write_b32 v8, v%d offset:2048
ds_write_b32 v10, v3 offset:%d''' % (vr(O[0], 4), vr(O[0] + 4, 4), O[0] + 8, C_X))
    a('''s_mov_b32 s66, 0
L_xw:
ds_read_b32 v2, v11 offset:%d
ds_read_b128 v[48:51], v7
ds_read_b128 v[52:55], v7 offset:1024
ds_read_b32 v56, v9 offset:2048
s_add_u32 s66, s66, 1
s_waitcnt lgkmcnt(0)
v_readfirstlane_b32 s67, v2
s_cmp_ge_u32 s66, %d
s_cbranch_scc1 L_xe
s_cmp_eq_u32 s67, 0
s_cbranch_scc1 L_xw
L_xe:''' % (C_X, SPIN_MAX * 4))
    stamp(a, 10)
    for j in range(9):
        a('v_add_f32 v%d, v%d, v%d' % (F + j, F + j, 48 + j))
    a('''v_rcp_f32 v48, v{8}
v_add_f32 v50, abs(v{0}), abs(v{1})
v_add_f32 v51, abs(v{2}), abs(v{3})
v_add_f32 v52, abs(v{4}), abs(v{5})
v_add_f32 v53, abs(v{6}), abs(v{7})
v_cmp_le_f32 s[28:29], s44, v{8}
v_add_f32 v50, v50, v51
v_add_f32 v52, v52, v53
v_cmp_ge_f32 s[30:31], s45, v{8}
v_add_f32 v50, v50, v52
v_cmp_ge_f32 s[32:33], s46, v50
s_and_b64 s[28:29], s[28:29], s[30:31]
s_nop 0
s_and_b64 s[28:29], s[28:29], s[32:33]
s_cmp_eq_u64 s[28:29], -1
s_cbranch_scc0 {9}
L_fin:'''.format(*(list(range(F, F + 9)) + ['L_fin' if 'swp' in OPT else 'L_slow'])))
    for j in range(8):
        a('v_mul_f32 v%d, v%d, v48' % (F + j, F + j))
    for j in range(4):
        a('v_cvt_pk_bf16_f32 v%d, v%d, v%d' % (52 + j, F + 2 * j, F + 2 * j + 1))
    a('buffer_store_dwordx4 v[52:55], v5, s[8:11], s54 offen sc1')
    jitter(a, 13)
    lds_add(a, 13, 3, C_O)
    stamp(a, 11)
    a('s_cmp_ge_u32 s3, 8')
    a('s_cbranch_scc1 L_bend')
    a('s_load_dwordx4 s[32:35], s[0:1], 88')
    a('s_waitcnt lgkmcnt(0)')
    srd(a, 16, 34, 2048 * 2048)
    AC = [20, 36]
    OFR, WR = 56, 88

    def wo_frags(g):
        for cc in range(4):
            for n in range(2):
                for nt in range(2):
                    for rd in range(2):
                        a('ds_read_b64_tr_b16 %s, v%d offset:%d' % (vr(WR + 16 * cc + 8 * n + 4 * nt + 2 * rd, 2), (160, 161)[nt],
                                                                    g * 32768 + cc * 4096 + n * 2048 + rd * 1024))

    def o_loads(cc):
        a('''s_add_u32 s38, s51, %d
s_and_b32 s38, s38, 7
s_lshl_b32 s30, s38, 12
s_add_u32 s30, s30, s53
buffer_load_dwordx4 %s, v5, s[8:11], s30 offen sc1
buffer_load_dwordx4 %s, v5, s[8:11], s30 offen offset:1024 sc1''' % (cc, vr(OFR + 8 * cc, 4), vr(OFR + 8 * cc + 4, 4)))

    def o_mfma(cc, first):
        for nt in range(2):
            for n in range(2):
                a(mfma(AC[nt], WR + 16 * cc + 8 * n + 4 * nt, OFR + 8 * cc + 4 * n, AC[nt]))

    def poll_half(g, nap):
        lp, le = label('hp'), label('he')
        a('s_mov_b32 s23, 0')
        a('s_mov_b32 s66, 0')
        a(lp + ':')
        for cc in range(4):
            e = label('ls')
            a('s_bitcmp1_b32 s23, %d' % cc)
            a('s_cbranch_scc1 %s' % e)
            o_loads(cc)
            a(e + ':')
        a('s_add_u32 s66, s66, 1')
        a('s_waitcnt vmcnt(0) lgkmcnt(0)')
        for cc in range(4):
            e, gl = label('lc'), label('lg')
            b = OFR + 8 * cc
            a('''s_bitcmp1_b32 s23, {cc}
s_cbranch_scc1 {e}
v_max3_u32 v1, v{0}, v{1}, v{2}
v_max3_u32 v2, v{3}, v{4}, v{5}
v_max3_u32 v1, v1, v{6}, v{7}
v_max_u32 v1, v1, v2
v_cmp_eq_u32 vcc, -1, v1
s_cmp_ge_u32 s66, {n}
s_cbranch_scc1 {g}
s_cbranch_vccnz {e}
{g}:
s_bitset1_b32 s23, {cc}'''.format(*range(b, b + 8), cc=cc, e=e, g=gl, n=SPIN_MAX))
            o_mfma(cc, False)
            a(e + ':')
        a('''s_cmp_eq_u32 s23, 15
s_cbranch_scc1 %s
s_sleep %s
s_branch %s
%s:''' % (le, nap, lp, le))

    if WOW == 'end':
        wo_dma()
    if 'ein' in OPTV:
        for j in range(32):
            a('v_mov_b32 v%d, 0' % (AC[0] + j))
    a('s_lshl_b32 s26, s49, 2')
    a('v_add_u32 v8, s26, v12')
    a('s_waitcnt vmcnt(%d)' % (WOW != 'end'))
    a('''v_cmp_eq_u32 vcc, s7, v1
s_nop 1
s_cmp_eq_u64 vcc, -1
s_cbranch_scc1 L_mok''')
    flag_poll_lazy(a, 163, 1, 52, 8)
    a('L_mok:')
    if WOW == 'mid':
        lds_spin(a, 12, 3, C_Y2, 4, nap=8)
    else:
        lds_add(a, 8, 3, C_W)
        lds_spin(a, 8, 3, C_W, 2)
    wo_frags(0)
    if 'ein' in OPTV:
        a('s_sleep %s' % OPTV['ein'])
    else:
        lds_spin(a, 12, 3, C_T, 7 * CNT, nap=int(OPTV.get('etn', 3)))
        for j in range(32):
            a('v_mov_b32 v%d, 0' % (AC[0] + j))
    poll_half(0, OPTV.get('esl', '8'))
    wo_frags(1)
    a('s_add_u32 s53, s53, 2048')
    lds_spin(a, 12, 3, C_Y2, 4, nap=2)
    stamp(a, 10)
    lds_spin(a, 12, 3, C_O1, 4, nap=2)
    if 'lin' in OPTV:
        a('s_sleep %s' % OPTV['lin'])
    poll_half(1, OPTV.get('lsl', '6'))
    jitter(a, 14)
    stamp(a, 12)
    a('v_mov_b32 v3, 1')
    a('s_nop 6')
    for j in range(4):
        a('ds_write_b128 v164, %s offset:%d' % (vr(AC[0] + 4 * j, 4), 1024 * j))
    a('ds_write_b32 v166, v3 offset:%d' % C_P3)
    a('''s_mov_b32 s66, 0
L_rw:
ds_read_b32 v2, v167 offset:%d''' % C_P3)
    for j in range(4):
        a('ds_read_b128 %s, v165 offset:%d' % (vr(64 + 4 * j, 4), 1024 * j))
    a('''s_add_u32 s66, s66, 1
s_waitcnt lgkmcnt(0)
v_readfirstlane_b32 s67, v2
s_cmp_ge_u32 s66, %d
s_cbranch_scc1 L_re
s_cmp_eq_u32 s67, 0
s_cbranch_scc1 L_rw
L_re:''' % (SPIN_MAX * 4))
    for j in range(16):
        a('v_add_f32 v%d, v%d, v%d' % (64 + j, AC[1] + j, 64 + j))
    for j in range(8):
        a('v_cvt_pk_bf16_f32 v%d, v%d, v%d' % (80 + j, 64 + 2 * j, 65 + 2 * j))
    st3 = OPTV.get('st3', '').replace('+', ' ')
    a('buffer_store_dwordx4 v[80:83], v162, s[16:19], s50 offen' + st3)
    a('buffer_store_dwordx4 v[84:87], v162, s[16:19], s50 offen offset:16' + st3)
    if 'dbgt' in OPT:
        a('s_waitcnt vmcnt(0)')
        a('s_memrealtime s[78:79]')
        a('s_load_dwordx2 s[36:37], s[0:1], 104')
        a('s_waitcnt lgkmcnt(0)')
        srd(a, 12, 36, 256)
        a('v_mov_b32 v2, 0')
        a('s_mov_b64 exec, 1')
        for i in range(5):
            a('s_sub_u32 s66, s%d, s7' % (70 + 2 * i))
            a('s_add_u32 s66, s66, 1000')
            a('v_mov_b32 v1, s66')
            a('buffer_atomic_umax v1, v2, s[12:15], 0 offen offset:%d sc1' % (4 + 4 * i))
            a('s_sub_u32 s66, 100000, s66')
            a('v_mov_b32 v3, s66')
            a('buffer_atomic_umax v3, v2, s[12:15], 0 offen offset:%d sc1' % (36 + 4 * i))
        a('s_mov_b64 exec, -1')
        a('s_waitcnt vmcnt(0)')
    a('L_bend:')
    if 'enc' in OPTV:
        e = OPTV['enc']
        if e != 'skew':
            a('s_cmp_eq_u32 s2, %s' % OPTV.get('ewg', '0'))
            a('s_cbranch_scc0 L_encd')
        a('s_cmp_eq_u32 s3, 8')
        a('s_cbranch_scc0 L_encd')
        a('s_waitcnt lgkmcnt(0)')
        a('s_sub_u32 s94, s92, s90' if e not in ('f', 'skew') else 's_mov_b32 s94, 0')
        a('s_add_u32 s94, s94, 6000')
        a('''L_encw:
s_memrealtime s[96:97]
s_waitcnt lgkmcnt(0)
s_sub_u32 s96, s96, s90
s_cmp_lt_u32 s96, s94
s_cbranch_scc1 L_encw
L_encd:''')
    stamp_dump(a)
    a('s_endpgm')

    for t in ('',):
        OS, SS, M, PS, KS, MX = 80, 16, 64, 48, 104, 58
        a('''L_slow%s:
v_mov_b32 v%d, 0xff800000
s_mov_b32 s42, 0
L_s1%s:
buffer_load_dwordx4 %s, v%d, s[8:11], s42 offen sc1
s_waitcnt vmcnt(0)
%s
s_nop 15''' % (t, MX, t, vr(KS, 4), KA, mfma(SS, KS, Q[1], None)))
        for j in range(8):
            a('v_max3_f32 v%d, v%d, v%d, v%d' % (MX, MX, SS + 2 * j, SS + 2 * j + 1))
        a('''s_add_u32 s42, s42, 1024
s_cmp_lt_u32 s42, 0x10000
s_cbranch_scc1 L_s1%s
v_mov_b32 v%d, v%d
s_nop 1
v_permlane32_swap_b32 v%d, v%d
s_nop 1
v_max_f32 v%d, v%d, v%d''' % (t, MX + 1, MX, MX, MX + 1, MX, MX, MX + 1))
        for j in range(16):
            a('v_sub_f32 v%d, 0, v%d' % (M + j, MX))
            a('v_mov_b32 v%d, 0' % (OS + j))
        a('''s_mov_b32 s42, 0
L_s2%s:
buffer_load_dwordx4 %s, v%d, s[8:11], s42 offen sc1
s_mov_b64 exec, s[40:41]
buffer_load_dwordx4 %s, v%d, s[8:11], s42 offen sc1
buffer_load_dwordx4 %s, v%d, s[8:11], s42 offen offset:512 sc1
s_mov_b64 exec, -1
s_waitcnt vmcnt(0)
%s
s_nop 15''' % (t, vr(KS, 4), KA, vr(V[0][0], 4), VA, vr(V[0][1], 4), VA, mfma(SS, KS, Q[1], M)))
        for j in range(16):
            a('v_exp_f32 v%d, v%d' % (SS + j, SS + j))
        a('s_nop 0')
        for j in range(8):
            a('v_cvt_pk_bf16_f32 v%d, v%d, v%d' % (PS + j, SS + 2 * j, SS + 2 * j + 1))
        a('s_nop 1')
        a(mfma(OS, V[0][0], PS, OS))
        a(mfma(OS, V[0][1], PS + 4, OS))
        a('''s_add_u32 s42, s42, 1024
s_cmp_lt_u32 s42, 0x10000
s_cbranch_scc1 L_s2%s
s_nop 15''' % t)
        a('''v_rcp_f32 v48, v88
s_nop 0
s_branch L_fin''')
    a('''L_end:
s_endpgm''')
    return a.text()


def main(path):
    KN = NAME + '_kernel'
    t = kernel()
    hdr = '''; @launch grid=(256,1,1) block=(768,1,1) lds=%d
; One launch, one workgroup of 12 waves per CU (256 workgroups, all resident; surplus workgroups exit at once).
; Workgroup = (64-token block tb, quad of heads hq) for the attention branch and 2 channels for the S4 branch.
;  phase 1  waves 4-7 stream x / wqkv tiles into an LDS ring, waves 8-11 compute the K, V, Q tiles (MFMA);
;           K and V go to the workspace in MFMA fragment order, Q stays in LDS. Waves 0-3 build the S4 kernel
;           K[l] = Re sum_n C_n dB_n exp(dt A_n lq(l)) (lq = position rounded to bf16, as in the reference) as a
;           product of two power tables on the matrix core; Dskip is added to K[0]. A tile of u is transposed.
;  phase 2  waves 4-11: softmax(QK^T)V, exp2 of the scaled scores without a shift, row sums from a ones row of V.
;           A run-time check (row sum inside [2^-64, 2^64] and finite outputs) sends a tile to L_slow, which redoes
;           it with the exact row maximum. Waves 0-3: causal convolution as Toeplitz MFMAs, transposition of y.
;  phase 3  waves 4-7: output projection of the (tb, 64-column) tile.
; Hand-offs between workgroups: write-through stores, drained, then a flag word carrying this launch's tag
; (a clock value that workgroup 0 puts into the zeroed debug buffer); attention outputs replace a marker that
; their producer wrote (and announced) earlier, so readers recognise every dword. All waits are bounded;
; s_sleep only backs off inside these waits.
.amdgcn_target "amdgcn-amd-amdhsa--gfx950"
.text
.globl %s
''' % (LDS_BYTES, KN)
    pad = '.p2align 8\n.fill 4096, 4, 0xbf800000\n'
    kd = '''.section .rodata,"a"
.p2align 6
.amdhsa_kernel %s
  .amdhsa_next_free_vgpr 168
  .amdhsa_next_free_sgpr 102
  .amdhsa_accum_offset 168
  .amdhsa_group_segment_fixed_size 0
  .amdhsa_kernarg_size 120
  .amdhsa_user_sgpr_count 2
  .amdhsa_user_sgpr_kernarg_segment_ptr 1
  .amdhsa_system_sgpr_workgroup_id_x 1
.end_amdhsa_kernel
''' % KN
    open(path, 'w').write(hdr + t + pad + kd)


if __name__ == '__main__':
    for arg in sys.argv[1:]:
        OPT.add(arg)
        if '=' in arg:
            OPTV[arg.split('=')[0]] = arg.split('=')[1]
    DIAG = 'diag' in OPT
    main(sys.argv[1] if len(sys.argv) > 1 else 'cdna_kernels/%s.s' % NAME)
```

```python
import sys
import struct

NAME = 'concat_heads__ssm_conv_s4__softmax_full_mha__prompt'

KF = 0x200000
VF = 0x400000
OF = 0x600000
RS = 4224
UT = 0x800000
YT = 0x1400000
FL1 = 0xC40000
FLU = 0xC04000
FL2 = 0xC08000
FL3 = 0xC10000
WS_BYTES = 0x2000000

GEN = 6 * 16384
LDS_BYTES = GEN + 65536
QX = 65536
USI = 74752
USO = 82944
OX = 65536
YI = 73728
CNT = 94208
C_TAG, C_KV, C_GO, C_PAIR, C_CONV, C_O, C_Y, C_GOU, C_GOY, C_Y2, C_X = 0, 4, 8, 80, 24, 16, 32, 36, 40, 44, 48
C_U, C_P3, C_O1, C_Q, C_W, C_UL, C_T = 12, 96, 20, 116, 120, 92, 88
KCOPY = 4096
ZOFF = 640
UIMG = 9216

LOG2E = 1.4426950408889634
QSCALE = 0.25 * LOG2E
OPT = set()
OPTV = {}
DIAG = False
DIAG_BASE = 0xF00000
ST0 = 70
SPIN_MAX = 1 << 19
ROWS = {0: [0, 1, 2, 3, 4, 5, 6, 7, 8, 1024, 1032, 1280, 1288, 1536, 1544, None],
        1: [256, 258, 260, 262, 264, 512, 516, 520, 768, 772, 776, 1792, 1800, None, None, None]}


def f2u(x):
    return struct.unpack('<I', struct.pack('<f', x))[0]


class A:
    def __init__(self):
        self.L = []

    def __call__(self, s):
        for line in s.split('\n'):
            line = line.strip()
            if not line:
                continue
            if line.endswith(':') or line.startswith('.'):
                self.L.append(line)
            else:
                self.L.append('    ' + line)

    def text(self):
        return '\n'.join(self.L) + '\n'


def vr(a, n=1):
    return 'v%d' % a if n == 1 else 'v[%d:%d]' % (a, a + n - 1)


def sr(a, n=1):
    return 's%d' % a if n == 1 else 's[%d:%d]' % (a, a + n - 1)


def srd(a, dst, base, nbytes):
    a('s_mov_b32 s%d, s%d' % (dst, base))
    a('s_mov_b32 s%d, s%d' % (dst + 1, base + 1))
    a('s_mov_b32 s%d, 0x%x' % (dst + 2, nbytes))
    a('s_mov_b32 s%d, 0x00020000' % (dst + 3))


def mfma(d, x, y, c):
    cs = '0' if c is None else vr(c, 16)
    return 'v_mfma_f32_32x32x16_bf16 %s, %s, %s, %s' % (vr(d, 16), vr(x, 4), vr(y, 4), cs)


def cmul_many(a, items):
    for d, x, y in items:
        a('v_mul_f32 v%d, v%d, v%d' % (d, x, y))
        a('v_mul_f32 v%d, v%d, v%d' % (d + 1, x + 1, y))
    for d, x, y in items:
        a('v_fma_f32 v%d, -v%d, v%d, v%d' % (d, x + 1, y + 1, d))
        a('v_fmac_f32 v%d, v%d, v%d' % (d + 1, x, y + 1))


def stamp(a, i, real=False):
    if DIAG and ('se' not in OPT or i in (0, 13) or str(i) in OPTV.get('only', '').split(',')):
        a('%s s[%d:%d]' % ('s_memrealtime' if real or 'rt' in OPT else 's_memtime', ST0 + 2 * i, ST0 + 2 * i + 1))


def stamp_dump(a, n=14):
    if DIAG:
        a('s_waitcnt vmcnt(0)')
        stamp(a, 13, True)
        a('s_waitcnt lgkmcnt(0)')
        a('s_lshl_b32 s68, s2, 4')
        a('s_add_u32 s68, s68, s3')
        a('s_lshl_b32 s68, s68, 6')
        a('s_add_u32 s68, s68, %d' % DIAG_BASE)
        a('v_mov_b32 v1, 0')
        a('s_mov_b64 exec, 1')
        for i in range(n):
            a('v_mov_b32 v2, s%d' % (ST0 + 2 * i))
            a('buffer_store_dword v2, v1, s[8:11], s68 offen offset:%d' % (4 * i))
        a('s_mov_b64 exec, -1')


def jitter(a, k):
    if 'jit' in OPTV:
        l = label('jt')
        a('''s_mul_i32 s69, s2, %d
s_add_u32 s69, s69, s3
s_mul_i32 s69, s69, %d
s_lshr_b32 s69, s69, 7
s_and_b32 s69, s69, 3
s_cmp_lg_u32 s69, 0
s_cbranch_scc1 %s
s_sleep %s
%s:''' % (13 + 2 * k, 0x9e37 + 64 * k + int(OPTV.get('js', 0)), l, OPTV['jit'], l))


_lab = [0]


def label(p):
    _lab[0] += 1
    return 'L_%s%d' % (p, _lab[0])


def lds_spin(a, va, vt, off, thr, st=66, nap=1):
    l, e = label('sp'), label('se')
    a('''s_mov_b32 s%d, 0
%s:
ds_read_b32 v%d, v%d offset:%d
s_add_u32 s%d, s%d, 1
s_waitcnt lgkmcnt(0)
v_readfirstlane_b32 s%d, v%d
s_cmp_ge_u32 s%d, %d
s_cbranch_scc1 %s
s_cmp_ge_u32 s%d, %d
s_cbranch_scc1 %s
s_sleep %d
s_branch %s
%s:''' % (st, l, vt, va, off, st, st, st + 1, vt, st, SPIN_MAX, e, st + 1, thr, e, nap, l, e))


def lds_add(a, va, vt, off):
    a('''v_mov_b32 v%d, 1
s_mov_b64 exec, 1
ds_add_u32 v%d, v%d offset:%d
s_mov_b64 exec, -1''' % (vt, va, vt, off))


def arrive_publish(a, va, vt, off, nwaves, sflag, vz, copies=False):
    e = label('np')
    a('''v_mov_b32 v%d, 1
s_mov_b64 exec, 1
ds_add_rtn_u32 v%d, v%d, v%d offset:%d
v_mov_b32 v%d, 0
s_waitcnt lgkmcnt(0)
v_readfirstlane_b32 s66, v%d
v_mov_b32 v%d, s7
s_cmp_eq_u32 s66, %d
s_cbranch_scc0 %s
%sbuffer_store_dword v%d, v%d, s[8:11], s%d offen sc1
%s:
s_mov_b64 exec, -1''' % (vt, vt, va, vt, off, vz, vt, vt, nwaves - 1, e,
                         's_mov_b64 exec, 15\nv_mbcnt_lo_u32_b32 v%d, -1, 0\nv_mov_b32 v%d, s7\nv_lshlrev_b32 v%d, 14, v%d\n' % (vz, vt, vz, vz) if copies else '',
                         vt, vz, sflag, e))


def flag_poll(a, voff, vt, vt2, sbase):
    l, e = label('fp'), label('fe')
    ld = 'buffer_load_dword v%d, v%d, s[8:11], s%d offen sc1'
    a('''s_mov_b32 s66, 0
%s
s_sleep 4
%s:
%s
s_waitcnt vmcnt(1)
v_cmp_eq_u32 vcc, s7, v%d
s_add_u32 s66, s66, 1
s_cmp_eq_u64 vcc, -1
s_cbranch_scc1 %s
s_sleep 2
%s
s_waitcnt vmcnt(1)
v_cmp_eq_u32 vcc, s7, v%d
s_cmp_ge_u32 s66, %d
s_cbranch_scc1 %s
s_cmp_eq_u64 vcc, -1
s_cbranch_scc0 %s
%s:''' % (ld % (vt, voff, sbase), l, ld % (vt2, voff, sbase), vt, e, ld % (vt, voff, sbase), vt2, SPIN_MAX, e, l, e))


def flag_poll_lazy(a, voff, vt, sbase, nap, first=False):
    l, e, t = label('fp'), label('fe'), label('ft')
    a('s_mov_b32 s66, 0')
    if not first:
        a('s_branch %s' % t)
    a('''%s:
s_sleep %d
%s:
buffer_load_dword v%d, v%d, s[8:11], s%d offen sc1
s_add_u32 s66, s66, 1
s_waitcnt vmcnt(0)
v_cmp_eq_u32 vcc, s7, v%d
s_cmp_ge_u32 s66, %d
s_cbranch_scc1 %s
s_cmp_eq_u64 vcc, -1
s_cbranch_scc0 %s
%s:''' % (l, nap, t, vt, voff, sbase, vt, SPIN_MAX, e, l, e))


def tag_check(a, vt, vz, srd0):
    l, e = label('tp'), label('te')
    a('''s_mov_b32 s66, 0
%s:
v_readfirstlane_b32 s7, v%d
s_add_u32 s66, s66, 1
s_cmp_lg_u32 s7, 0
s_cbranch_scc1 %s
s_cmp_ge_u32 s66, %d
s_cbranch_scc1 %s
buffer_load_dword v%d, v%d, s[%d:%d], 0 offen sc1
s_waitcnt vmcnt(0)
s_branch %s
%s:''' % (l, vt, e, SPIN_MAX, e, vt, vz, srd0, srd0 + 3, l, e))


def kgen_stream():
    a = A()
    P = 20
    for i in range(8):
        a('v_lshlrev_b32 %s, 16, %s' % (vr(P + i), vr(P + i)))
    Are, Aim, Bre, Bim, Cre, Cim, LDT, DSK = range(P, P + 8)
    a('v_mul_f32 v%d, s51, v%d' % (LDT, LDT))
    a('v_exp_f32 v%d, v%d' % (LDT, LDT))
    a('s_nop 0')
    a('v_cvt_pk_bf16_f32 v%d, v%d, v%d' % (LDT, LDT, LDT))
    a('v_lshlrev_b32 v%d, 16, v%d' % (LDT, LDT))
    a('v_mul_f32 v%d, v%d, v%d' % (Are, LDT, Are))
    a('v_mul_f32 v%d, v%d, v%d' % (Aim, LDT, Aim))
    a('v_mul_f32 v%d, v%d, v%d' % (Bre, LDT, Bre))
    a('v_mul_f32 v%d, v%d, v%d' % (Bim, LDT, Bim))
    a('v_mul_f32 v%d, s51, v%d' % (Are, Are))
    a('v_mul_f32 v%d, 0.15915494, v%d' % (Aim, Aim))
    G = [32 + 2 * i for i in range(32)]
    W = [96 + 2 * i for i in range(9)]
    Z1, Z2, Z4, Z32 = 114, 116, 118, 120
    ZB = {256: 122, 512: 124, 768: 126, 1024: 128, 1280: 130, 1536: 132, 1792: 134}
    T0, PK, AD = 136, 146, 154
    R = {}
    nxt = 32
    for h in (0, 1):
        for e in ROWS[h]:
            if e is None:
                continue
            if e <= 8:
                R[e] = W[e]
            else:
                R[e] = nxt
                nxt += 2
    cmul_many(a, [(W[0], Cre, Bre)])
    direct = [(Z1, 1.0), (G[1], 8.0), (Z32, 32.0), (ZB[256], 256.0), (ZB[1024], 1024.0)]
    for i, (z, e) in enumerate(direct):
        a('v_mul_f32 v%d, 0x%x, v%d' % (T0 + 2 * i, f2u(e), Are))
        a('v_mul_f32 v%d, 0x%x, v%d' % (T0 + 2 * i + 1, f2u(e), Aim))
    for i, (z, e) in enumerate(direct):
        a('v_exp_f32 v%d, v%d' % (T0 + 2 * i, T0 + 2 * i))
        a('v_fract_f32 v%d, v%d' % (T0 + 2 * i + 1, T0 + 2 * i + 1))
    for i, (z, e) in enumerate(direct):
        a('v_cos_f32 v%d, v%d' % (z, T0 + 2 * i + 1))
        a('v_sin_f32 v%d, v%d' % (z + 1, T0 + 2 * i + 1))
    a('v_mov_b32 v%d, 1.0' % G[0])
    a('v_mov_b32 v%d, 0' % (G[0] + 1))
    for i, (z, e) in enumerate(direct):
        a('v_mul_f32 v%d, v%d, v%d' % (z, z, T0 + 2 * i))
        a('v_mul_f32 v%d, v%d, v%d' % (z + 1, z + 1, T0 + 2 * i))
    cmul_many(a, [(G[2], G[1], G[1]), (Z2, Z1, Z1), (W[1], W[0], Z1), (W[8], W[0], G[1]), (ZB[512], ZB[256], ZB[256]),
                  (ZB[1280], ZB[1024], ZB[256]), (G[5], G[1], Z32)])
    a('v_mov_b32 v%d, v%d' % (G[4], Z32))
    a('v_mov_b32 v%d, v%d' % (G[4] + 1, Z32 + 1))
    cmul_many(a, [(G[3], G[2], G[1]), (Z4, Z2, Z2), (W[2], W[0], Z2), (W[3], W[1], Z2), (ZB[768], ZB[512], ZB[256]),
                  (ZB[1536], ZB[1024], ZB[512]), (G[6], G[2], Z32)])
    cmul_many(a, [(G[7], G[3], Z32), (W[4], W[0], Z4), (W[5], W[1], Z4), (W[6], W[2], Z4), (W[7], W[3], Z4),
                  (ZB[1792], ZB[1024], ZB[768])])
    for i0 in range(8, 32, 4):
        cmul_many(a, [(G[i], G[i - 4], Z32) for i in range(i0, i0 + 4)])
    nvalu = len(a.L)
    for c in range(8):
        a('v_xor_b32 v%d, %d, v13' % (AD + c, c << 4))
    rowidx = [None] * 32
    for h in (0, 1):
        for r in range(16):
            rowidx[8 * (r >> 2) + 4 * h + (r & 3)] = ROWS[h][r]
    nput = [0]

    def put(c, regs, neg, off):
        pk = PK + 4 * (nput[0] & 1)
        nput[0] += 1
        for j in range(4):
            a('v_cvt_pk_bf16_f32 v%d, %sv%d, %sv%d' % (pk + j, neg, regs[2 * j], neg, regs[2 * j + 1]))
        a('ds_write_b128 v%d, %s%s' % (AD + c, vr(pk, 4), off))

    for c in range(8):
        put(c, [G[8 * (c & 3) + j] + (c >> 2) for j in range(8)], '', '')
    big = [e for e in R if e > 8]
    items = [(R[e], W[e & 255], ZB[e & ~255]) for e in big]
    for i0 in range(0, len(items), 5):
        cmul_many(a, items[i0:i0 + 5])
    for c in range(8):
        comp = c >> 2
        regs = [(R[e] if e is not None else W[0]) + comp for e in rowidx[8 * (c & 3):8 * (c & 3) + 8]]
        put(c, regs, '-' if comp else '', ' offset:8192')
    a('s_waitcnt lgkmcnt(0)')
    KD, FR, NB = 32, 48, 4

    def gen_reads(s):
        off = s * 1024
        b = FR + 8 * (s % NB)
        a('ds_read_b64_tr_b16 %s, v14 offset:%d' % (vr(b, 2), off + 8192))
        a('ds_read_b64_tr_b16 %s, v15 offset:%d' % (vr(b + 2, 2), off + 8192))
        a('ds_read_b64_tr_b16 %s, v14 offset:%d' % (vr(b + 4, 2), off))
        a('ds_read_b64_tr_b16 %s, v15 offset:%d' % (vr(b + 6, 2), off))

    for s in range(3):
        gen_reads(s)
    for s in range(8):
        if s + 3 < 8:
            gen_reads(s + 3)
        a('s_waitcnt lgkmcnt(%d)' % (4 * min(3, 7 - s)))
        b = FR + 8 * (s % NB)
        a(mfma(KD, b, b + 4, None if s == 0 else KD))
    a('s_nop 15')
    for j in range(4):
        a('ds_write_b128 v16, %s offset:%d' % (vr(KD + 4 * j, 4), 1024 * j))
    a('s_waitcnt lgkmcnt(0)')
    return a.L, nvalu


def transpose_addrs(a, sw, vrd, vwr, vlin, t0, t1, usi, uso):
    a('''v_lshrrev_b32 v{t0}, 4, v4
v_bfe_u32 v{t1}, v4, 2, 2
v_lshl_add_u32 v{t1}, v{t0}, 3, v{t1}
v_lshlrev_b32 v{rd}, 7, v{t1}
v_and_b32 v{t1}, 3, v4
v_lshl_add_u32 v{rd}, v{t1}, 3, v{rd}
s_lshl_b32 s66, s{w}, 5
s_add_u32 s66, s66, {usi}
v_add_u32 v{rd}, s66, v{rd}
v_and_b32 v{t1}, 7, v4
v_xor_b32 v{t0}, v{t0}, v{t1}
v_lshlrev_b32 v{t0}, 4, v{t0}
v_and_b32 v{t1}, 15, v4
v_lshl_add_u32 v{wr}, v{t1}, 7, v{t0}
s_lshl_b32 s66, s{w}, 11
s_add_u32 s66, s66, {uso}
v_add_u32 v{wr}, s66, v{wr}
v_lshl_add_u32 v{lin}, v4, 4, s66
v_lshrrev_b32 v{t0}, 3, v4
v_and_b32 v{t1}, 7, v4
v_xor_b32 v{t1}, v{t1}, v{t0}'''.format(t0=t0, t1=t1, rd=vrd, wr=vwr, lin=vlin, w=sw, usi=usi, uso=uso))


def transpose_a(a, vrd, vwr, d, t):
    a('''ds_read_b64_tr_b16 v[{d0}:{d1}], v{rd}
ds_read_b64_tr_b16 v[{d2}:{d3}], v{rd} offset:512
ds_read_b64_tr_b16 v[{d4}:{d5}], v{rd} offset:4096
ds_read_b64_tr_b16 v[{d6}:{d7}], v{rd} offset:4608
v_xor_b32 v{t}, 64, v{wr}
s_waitcnt lgkmcnt(2)
ds_write_b128 v{wr}, v[{d0}:{d3}]
s_waitcnt lgkmcnt(1)
ds_write_b128 v{t}, v[{d4}:{d7}]
s_waitcnt lgkmcnt(0)'''.format(rd=vrd, wr=vwr, t=t, **{'d%d' % i: d + i for i in range(8)}))


def kernel():
    a = A()
    KN = NAME + '_kernel'
    a('''.p2align 8
.type {k},@function
{k}:
s_cmp_ge_u32 s2, 256
s_cbranch_scc1 L_end
s_load_dwordx16 s[16:31], s[0:1], 8
s_load_dwordx4 s[32:35], s[0:1], 72
s_load_dwordx4 s[36:39], s[0:1], 104'''.format(k=KN))
    stamp(a, 0, True)
    stamp(a, 1)
    if 'enc' in OPTV:
        a('s_memrealtime s[90:91]')
    a('''v_lshrrev_b32 v3, 6, v0
v_and_b32 v4, 63, v0
s_and_b32 s44, s2, 7
s_lshr_b32 s45, s2, 3
v_readfirstlane_b32 s3, v3
s_lshl_b32 s60, s44, 6
s_lshl_b32 s46, s45, 1
s_add_u32 s60, s60, s46
s_lshl_b32 s46, s60, 8
v_lshl_add_u32 v5, v0, 1, s46
s_lshr_b32 s4, s44, 1
s_lshl_b32 s4, s4, 3
s_and_b32 s46, s45, 7
s_add_u32 s4, s4, s46
s_and_b32 s5, s44, 1
s_lshl_b32 s5, s5, 2
s_lshr_b32 s47, s45, 3
s_add_u32 s5, s5, s47
s_lshl_b32 s47, s47, 1
%s
s_cmp_ge_u32 s3, 4
s_cbranch_scc1 L_gemm''' % {'0': 's_mov_b32 s6, 0', '1': 's_add_u32 s6, s46, s47', '2': 's_and_b32 s6, s46, 4', '3': 's_and_b32 s6, s46, 6'}[OPTV.get('rot', '1')])
    SEG = (1, 2, 0)
    S = [16, 32]
    Pp = [48, 56]
    O = [64, 80]
    Q = [96, 100]
    OWN = 'own' in OPT
    DK = int(OPTV.get('dk', 3))
    NB, NBV = DK + 1, DK + 1 if DK == 3 else DK
    K = [104 + 4 * b for b in range(NB)]
    V0 = 104 + 4 * NB
    V = [[V0 + 8 * b, V0 + 4 + 8 * b] for b in range(NBV)]
    KA, VA = 14, 15
    assert V0 + 8 * NBV <= 160

    WOW = OPTV.get('wow', 'mid')

    def wo_dma():
        srd(a, 12, 32, 512 * 1024)
        a('''v_lshrrev_b32 v6, 3, v4
v_lshlrev_b32 v6, 10, v6
v_bfe_u32 v7, v4, 4, 1
v_lshlrev_b32 v7, 2, v7
v_and_b32 v8, 7, v4
v_xor_b32 v7, v7, v8
v_lshl_add_u32 v6, v7, 4, v6
v_add_u32 v7, %d, v6
s_lshl_b32 s57, s48, 10
s_lshl_b32 s26, s49, 14
s_add_u32 s57, s57, s26
s_lshl_b32 s26, s5, 7
s_lshl_b32 s27, s48, 13
s_add_u32 s26, s26, s27''' % (16384 - 2048))
        for cc in range(4):
            a('s_add_u32 s38, s51, %d' % cc)
            a('s_and_b32 s38, s38, 7')
            a('s_lshl_b32 s30, s38, 16')
            for g in range(2):
                a('s_add_u32 m0, s57, %d' % (g * 32768 + cc * 4096))
                a('s_add_u32 s30, s30, s26' if g == 0 else 's_add_u32 s30, s30, 0x8000')
                a('buffer_load_dwordx4 v6, s[12:15], s30 offen lds')
                a('buffer_load_dwordx4 v7, s[12:15], s30 offen offset:2048 lds')

    def att_prologue(early):
        a('''s_lshr_b32 s19, s3, 3
s_and_b32 s18, s3, 1
s_lshl_b32 s24, s19, 1
s_add_u32 s18, s18, s24
s_bfe_u32 s24, s3, 0x10001
v_lshlrev_b32 v5, 4, v4
s_lshl_b32 s26, s18, 10
s_add_u32 s26, s26, %d
s_lshl_b32 s27, s24, 12
s_add_u32 s26, s26, s27
v_add_u32 v13, s26, v5
s_lshl_b32 s27, s5, 2
s_add_u32 s18, s18, s27
s_lshl_b32 s22, s18, 16
s_add_u32 s27, s22, %d
v_add_u32 v%d, s27, v5
s_lshl_b32 s36, s24, 10
%s
s_mov_b32 s37, s36
v_lshrrev_b32 v6, 5, v4
v_and_b32 v7, 15, v4
v_lshlrev_b32 v7, 4, v7
v_lshl_add_u32 v7, v6, 8, v7
s_add_u32 s27, s22, %d
v_add_u32 v%d, s27, v7
v_and_b32 v6, 31, v4
v_cmp_eq_u32 vcc, 16, v6
v_cmp_eq_u32 s[28:29], 20, v6
s_mov_b32 s30, 0x3f803f80
s_or_b64 vcc, vcc, s[28:29]
v_mov_b32 v7, s30
s_mov_b32 s40, 0xffff
s_mov_b32 s41, 0xffff
v_cndmask_b32 v6, 0, v7, vcc''' % (QX, KF, KA, 's_lshl_b32 s37, s4, 11\ns_add_u32 s36, s36, s37' if OWN else '', VF, VA))
        for b in range(NBV):
            for u in range(2):
                for j in range(4):
                    a('v_mov_b32 v%d, v6' % (V[b][u] + j))
        for q in range(2):
            for j in range(16):
                a('v_mov_b32 v%d, 0' % (O[q] + j))

        if early:
            a('''s_and_b32 s48, s3, 1
s_bfe_u32 s49, s3, 0x10001
v_lshrrev_b32 v8, 5, v4
v_bfe_u32 v160, v4, 2, 2
v_lshl_add_u32 v160, v8, 2, v160
v_lshlrev_b32 v160, 7, v160
v_bfe_u32 v9, v4, 3, 1
v_lshl_add_u32 v160, v9, 6, v160
v_and_b32 v9, 1, v4
v_lshl_add_u32 v160, v9, 5, v160
v_bfe_u32 v9, v4, 4, 1
v_lshl_add_u32 v160, v9, 4, v160
v_bfe_u32 v9, v4, 1, 1
v_lshl_add_u32 v160, v9, 3, v160
s_lshl_b32 s26, s49, 14
v_add_u32 v161, s26, v160
s_lshl_b32 s26, s49, 6
v_xor_b32 v161, s26, v161
v_xor_b32 v160, 64, v161
v_and_b32 v162, 31, v4
v_lshlrev_b32 v162, 11, v162
v_lshl_add_u32 v162, v8, 5, v162
s_lshl_b32 s26, s4, 17
s_lshl_b32 s50, s48, 16
s_add_u32 s26, s26, s50
s_lshl_b32 s27, s5, 7
s_add_u32 s26, s26, s27
s_lshl_b32 s50, s49, 6
s_add_u32 s50, s50, s26
s_add_u32 s50, s50, 1024
s_lshl_b32 s51, s49, 2
s_add_u32 s51, s51, s5
v_and_b32 v163, 3, v4
v_add_u32 v163, s51, v163
v_and_b32 v163, 7, v163
v_lshlrev_b32 v163, 7, v163
s_lshl_b32 s52, s4, 10
s_add_u32 s52, s52, %d
s_lshl_b32 s53, s4, 16
s_lshl_b32 s26, s48, 15
s_add_u32 s53, s53, s26
s_add_u32 s53, s53, %d
s_sub_u32 s26, s3, 4
s_lshl_b32 s27, s26, 12
s_add_u32 s27, s27, %d
v_add_u32 v164, s27, v5
v_xor_b32 v165, 0x2000, v164
s_lshl_b32 s26, s26, 2
v_add_u32 v166, s26, v12
v_xor_b32 v167, 8, v166''' % (FL2, OF, GEN))
        else:
            a('v_mov_b32 v163, 0')
            a('s_mov_b32 s52, %d' % FL2)
        a('''s_lshl_b32 s54, s4, 1
s_add_u32 s54, s54, s24
s_lshl_b32 s54, s54, 15
s_lshl_b32 s26, s18, 10
s_add_u32 s54, s54, s26
s_add_u32 s54, s54, %d
v_mov_b32 v8, -1
v_mov_b32 v9, -1
v_mov_b32 v10, -1
v_mov_b32 v11, -1
s_lshl_b32 s55, s4, 3
s_add_u32 s55, s55, s5
s_lshl_b32 s55, s55, 7
s_add_u32 s55, s55, %d
buffer_store_dwordx4 v[8:11], v5, s[8:11], s54 offen sc1''' % (OF, FL2))


    a('''s_lshr_b32 s61, s3, 1
s_add_u32 s52, s60, s61
s_lshl_b32 s46, s52, 1
v_mov_b32 v19, s46
s_and_b32 s53, s3, 1
s_waitcnt lgkmcnt(0)''')
    P = 20
    a('global_load_ushort %s, v19, s[28:29]' % vr(P + 6))
    for i in range(6):
        a('global_load_ushort %s, v5, %s' % (vr(P + i), sr(16 + 2 * i, 2)))
    a('global_load_ushort %s, v19, s[30:31]' % vr(P + 7))
    a('''s_getpc_b64 s[40:41]
v_and_b32 v1, 7, v0
v_lshlrev_b32 v1, 7, v1
s_lshl_b32 s46, s45, 10
v_add_u32 v1, s46, v1
global_load_dword v2, v1, s[40:41]''')
    a('s_branch L_gen2')

    a('''L_gemm:
s_cmp_ge_u32 s3, 8
s_cbranch_scc1 L_mm
s_setprio 2
s_sub_u32 s61, s3, 4
v_lshrrev_b32 v10, 3, v4
v_lshrrev_b32 v11, 4, v4
v_and_b32 v12, 7, v4
v_xor_b32 v13, v12, v11
s_lshl_b32 s47, s61, 4
v_add_u32 v10, s47, v10
s_lshl_b32 s46, s4, 16
v_lshl_add_u32 v14, v10, 10, s46
v_lshl_add_u32 v6, v13, 4, v14
v_xor_b32 v7, 64, v6
v_add_u32 v7, 0x1c00, v7
v_lshlrev_b32 v16, 10, v10
v_lshl_add_u32 v16, v12, 4, v16
v_mul_u32_u24 v10, 3072, v10
v_and_b32 v11, 1, v11
v_lshlrev_b32 v11, 2, v11
v_xor_b32 v12, v12, v11
v_lshl_add_u32 v8, v12, 4, v10
s_lshl_b32 s46, s5, 7
v_add_u32 v8, s46, v8
v_add_u32 v9, %d, v8
s_lshl_b32 s48, s61, 11
s_waitcnt lgkmcnt(0)''' % (8 * 3072 - 1024))
    srd(a, 16, 32, 2048 * 1024)
    srd(a, 12, 34, 512 * 3072)

    def dma_chunk(c):
        slot = (c % 6) * 16384
        if c < 8:
            a('s_add_u32 s50, s6, %d' % c)
            a('s_and_b32 s50, s50, 7')
            a('s_mul_i32 s49, s50, %d' % (64 * 3072))
            a('s_add_u32 m0, s48, %d' % slot)
            a('s_lshl_b32 s50, s50, 7')
            a('buffer_load_dwordx4 v6, s[16:19], s50 offen lds')
            a('buffer_load_dwordx4 v7, s[16:19], s50 offen offset:1024 lds')
            a('s_add_u32 m0, s48, %d' % (slot + 8192))
            a('s_add_u32 s49, s49, %d' % (SEG[0] * 1024))
            a('buffer_load_dwordx4 v8, s[12:15], s49 offen lds')
            a('buffer_load_dwordx4 v9, s[12:15], s49 offen offset:1024 lds')
        else:
            p, j = 1 + ((c - 8) >> 2), (c - 8) & 3
            for hf in range(2):
                a('s_add_u32 s50, s6, %d' % (2 * j + hf))
                a('s_and_b32 s50, s50, 7')
                a('s_mul_i32 s49, s50, %d' % (64 * 3072))
                a('s_add_u32 m0, s48, %d' % (slot + hf * 8192))
                a('s_add_u32 s49, s49, %d' % (SEG[p] * 1024))
                a('buffer_load_dwordx4 v8, s[12:15], s49 offen lds')
                a('buffer_load_dwordx4 v9, s[12:15], s49 offen offset:1024 lds')

    dma_chunk(0)
    dma_chunk(1)
    a('s_load_dwordx2 s[20:21], s[0:1], 0')
    srd(a, 8, 38, WS_BYTES)
    a('''s_lshl_b32 s46, s45, 16
s_lshl_b32 s47, s44, 7
s_add_u32 s58, s46, s47
s_add_u32 s59, s48, %d
v_add_u32 v17, 0x1c00, v16
v_mov_b32 v12, %d
s_waitcnt lgkmcnt(0)''' % (USI, CNT))
    srd(a, 60, 20, 2048 * 1024)
    jitter(a, 7)
    order = [0, 1]
    cnt = lambda x: 4 if isinstance(x, int) else x[1]
    stamp(a, 2)
    for c in range(16):
        a('s_waitcnt vmcnt(%d)' % sum(cnt(x) for x in order[order.index(c) + 1:]))
        if c in (0, 8, 12):
            stamp(a, {0: 3, 8: 4, 12: 5}[c])
        a('s_barrier')
        if 'bars' in OPT and c <= 12 and c != 1:
            n = 1 + c - (c > 1)
            a('s_memrealtime s[%d:%d]' % (ST0 + 2 * n, ST0 + 2 * n + 1))
        for n in {0: [2, 3], 1: [4, 5]}.get(c, [c + 4] if c + 4 < 16 else []):
            dma_chunk(n)
            order.append(n)
        if c == int(OPTV.get('wpo', 11)) and WOW == 'win':
            a('''s_load_dwordx2 s[32:33], s[0:1], 88
v_and_b32 v26, 15, v4
v_lshlrev_b32 v26, 10, v26
s_and_b32 s46, s4, 7
s_lshl_b32 s46, s46, 16
s_lshl_b32 s47, s5, 7
s_add_u32 s46, s46, s47
s_lshl_b32 s47, s48, 3
s_add_u32 s46, s46, s47
v_add_u32 v26, s46, v26
s_waitcnt lgkmcnt(0)
global_load_dword v27, v26, s[32:33]''')
            order.append(('w', 1))
        if c == 12:
            att_prologue(True)
            order.append(('m', 1))
        if c == 13:
            a('s_mov_b32 m0, s59')
            a('s_nop 0')
            a('buffer_load_dwordx4 v16, s[60:63], s58 offen lds')
            a('buffer_load_dwordx4 v17, s[60:63], s58 offen offset:1024 lds')
            order.append(('u', 2))
    a('''s_load_dwordx2 s[32:33], s[0:1], 88
s_waitcnt lgkmcnt(0)
s_barrier
ds_read_b32 v1, v12 offset:%d
s_waitcnt lgkmcnt(0)
v_readfirstlane_b32 s7, v1
s_waitcnt vmcnt(0)''' % C_TAG)
    lds_add(a, 12, 3, C_UL)
    a('s_branch L_att')

    a('L_gen2:')
    srd(a, 8, 38, WS_BYTES)
    srd(a, 12, 36, 256)
    a('''v_mov_b32 v18, 0
s_or_b32 s46, s2, s3
s_cmp_eq_u32 s46, 0
s_cbranch_scc0 L_notag
s_memrealtime s[46:47]
s_waitcnt lgkmcnt(0)
s_or_b32 s46, s46, 1
v_mov_b32 v1, s46
s_mov_b64 exec, 1
buffer_store_dword v1, v18, s[12:15], 0 offen sc1
s_mov_b64 exec, -1
s_waitcnt vmcnt(0)
L_notag:''')
    a('''s_lshl_b32 s62, s3, 14
s_add_u32 s62, s62, %d
v_and_b32 v10, 7, v4
v_lshlrev_b32 v10, 4, v10
v_lshl_add_u32 v13, v4, 7, v10
v_add_u32 v13, s62, v13
v_lshrrev_b32 v10, 5, v4
v_bfe_u32 v11, v4, 3, 1
v_lshl_add_u32 v10, v10, 2, v11
v_bfe_u32 v11, v4, 2, 1
v_lshlrev_b32 v11, 2, v11
v_bfe_u32 v12, v4, 4, 1
v_lshl_add_u32 v11, v12, 1, v11
v_bfe_u32 v12, v4, 1, 1
v_add_u32 v11, v11, v12
v_xor_b32 v11, v11, v10
v_lshlrev_b32 v11, 4, v11
v_lshl_add_u32 v11, v10, 7, v11
v_and_b32 v12, 1, v4
v_lshl_add_u32 v11, v12, 3, v11
v_add_u32 v14, s62, v11
v_xor_b32 v15, 32, v14
v_add_u32 v15, 256, v15
v_lshl_add_u32 v16, v4, 4, s62
v_xor_b32 v17, 0x4000, v16
v_mov_b32 v12, %d
s_mov_b32 s51, 0x%x''' % (GEN, CNT, f2u(LOG2E)))
    p1, nvalu = kgen_stream()
    sizes = [int(x) for x in OPTV.get('sl', '80,140,31').split(',')]
    cuts = [0]
    for z in sizes:
        cuts.append(min(len(p1), cuts[-1] + z))
    print('kgen instructions', len(p1), 'pure valu', nvalu, cuts, file=sys.stderr)
    a('s_load_dwordx4 s[32:35], s[0:1], 88')
    stamp(a, 2)
    jitter(a, 1)
    a('s_waitcnt vmcnt(1) lgkmcnt(0)')
    for c in range(16):
        if c < len(sizes):
            a.L += p1[cuts[c]:cuts[c + 1]]
        if c == 8:
            a('buffer_load_dword v1, v18, s[12:15], 0 offen sc1')
        if c == 14:
            a('s_waitcnt vmcnt(0)')
            tag_check(a, 1, 18, 12)
            a('''v_cmp_eq_u32 vcc, 0, v4
v_lshl_add_u32 v2, v4, 2, v12
s_cmp_eq_u32 s3, 0
v_cndmask_b32 v1, 0, v1, vcc
s_cbranch_scc0 L_tagd
ds_write_b32 v2, v1
s_waitcnt lgkmcnt(0)
L_tagd:''')
        a('s_barrier')
    a('s_barrier')
    stamp(a, 3)
    if 'noc' in OPT:
        lds_add(a, 12, 1, C_Y2)
        a('s_waitcnt lgkmcnt(0)')
        stamp_dump(a)
        a('s_endpgm')
    a('s_setprio %s' % OPTV.get('cprio', '3'))
    srd(a, 16, 34, 2048 * 2048)
    srd(a, 12, 32, 512 * 1024)
    jitter(a, 2)
    UCUT = cuts[-1] + int(OPTV.get('ucut', 124))
    a.L += p1[cuts[-1]:UCUT]
    TD = 136
    transpose_addrs(a, 3, 5, 6, 7, 8, 9, USI, USO)
    lds_spin(a, 12, 3, C_UL, 4)
    transpose_a(a, 5, 6, TD, 10)
    a('''s_lshl_b32 s46, s3, 11
s_add_u32 s46, s46, %d
v_lshl_add_u32 v6, v4, 4, s46
ds_read_b128 v[162:165], v6
ds_read_b128 v[28:31], v6 offset:1024
v_lshrrev_b32 v6, 3, v4
v_and_b32 v7, 7, v4
v_xor_b32 v7, v7, v6
v_mul_u32_u24 v6, %d, v6
v_lshl_add_u32 v6, v7, 4, v6
s_mul_i32 s46, s44, %d
s_mul_i32 s47, s3, %d
s_add_u32 s46, s46, s47
s_lshl_b32 s47, s45, 7
s_add_u32 s46, s46, s47
s_add_u32 s46, s46, %d
s_add_u32 s47, s46, %d
s_lshl_b32 s65, s44, 5
s_add_u32 s65, s65, s45
s_lshl_b32 s65, s65, 6
s_add_u32 s65, s65, %d
s_waitcnt lgkmcnt(1)
buffer_store_dwordx4 v[162:165], v6, s[8:11], s46 offen sc1
s_waitcnt lgkmcnt(0)
buffer_store_dwordx4 v[28:31], v6, s[8:11], s47 offen sc1''' % (USO, RS, 64 * RS, 16 * RS, UT, 8 * RS, FLU))
    a.L += p1[UCUT:]
    jitter(a, 3)
    a('s_lshl_b32 s63, s61, 2')
    a('v_add_u32 v11, s63, v12')
    lds_add(a, 11, 1, C_PAIR)
    KD = 32
    a('''v_and_b32 v28, 31, v4
v_lshrrev_b32 v29, 5, v4
s_lshl_b32 s46, s53, 6
s_add_u32 s46, s46, s62
s_add_u32 s46, s46, %d
v_lshlrev_b32 v10, 4, v28
v_sub_u32 v18, s46, v10
v_cmp_eq_u32 s[56:57], 0, v4
s_mov_b32 s58, -1
s_mov_b32 s59, 0
s_mov_b32 s40, 0
s_mov_b32 s41, -1''' % (KCOPY + 255 * 16))
    for sl, (b0, b1) in enumerate([(0, 32), (128, 64)]):
        a('v_mul_i32_i24 v10, %d, v29' % ((b1 - b0) * 16))
        a('v_sub_u32 v%d, v18, v10' % (80 + sl))
        if b0:
            a('v_subrev_u32 v%d, %d, v%d' % (80 + sl, b0 * 16, 80 + sl))
    a('''v_subrev_u32 v82, %d, v18
v_lshrrev_b32 v10, 2, v28
v_lshlrev_b32 v10, 1, v10
v_lshl_add_u32 v10, v29, 5, v10
s_lshl_b32 s47, s53, 1
s_sub_u32 s47, s46, s47
s_add_u32 s48, s47, %d
v_sub_u32 v10, s48, v10
v_and_b32 v83, 3, v28
v_lshl_add_u32 v83, v83, 7, v10
v_bfe_u32 v84, v28, 1, 1
v_lshl_add_u32 v84, v84, 7, v10
s_add_u32 s48, s46, %d
v_lshl_add_u32 v85, v4, 4, s48
s_add_u32 s48, s47, %d
v_lshl_add_u32 v86, v4, 1, s48
s_mov_b32 s42, 0x55555555
s_mov_b32 s43, 0x55555555''' % (96 * 16, ZOFF + 62 - 32 - 255 * 16, 416 - 255 * 16, 490 - 255 * 16))
    a('''v_lshl_add_u32 v87, v4, 4, s46
v_add_u32 v87, 16, v87
s_lshl_b32 s64, s61, 15
s_add_u32 s64, s64, %d
s_lshl_b32 s47, s53, 1
v_add_u32 v10, s47, v29
v_mul_u32_u24 v10, 1536, v10
v_lshl_add_u32 v10, v28, 4, v10
v_add_u32 v10, s64, v10
v_mov_b32 v88, 0
v_mov_b32 v89, 0
v_mov_b32 v90, 0
v_mov_b32 v91, 0''' % (GEN + UIMG))
    lds_spin(a, 11, 1, C_PAIR, 2)
    a('ds_write_b128 v10, v[88:91]')
    a('ds_write_b128 v85, v[88:91]')
    for j in range(4):
        a('ds_read_b128 %s, v17 offset:%d' % (vr(48 + 4 * j, 4), 1024 * j))
    a('''v_mov_b32 v8, 0x3f80
s_mov_b64 exec, 0xff
ds_write_b16 v86, v8
s_mov_b64 exec, -1''')
    a('v_cndmask_b32 v9, 0, v27, s[56:57]')
    a('v_add_f32 v%d, v%d, v9' % (KD, KD))
    a('s_waitcnt lgkmcnt(0)')
    for j in range(16):
        a('v_add_f32 v%d, v%d, v%d' % (KD + j, KD + j, 48 + j))
    for i, r in enumerate((9, 11, 13)):
        a('v_sub_f32 v%d, v%d, v%d' % (48 + i, KD + r, KD + r + 1))
    for i, r in enumerate((9, 11, 13)):
        a('v_cvt_pk_bf16_f32 v%d, v%d, v%d' % (48 + i, KD + r + 1, 48 + i))
    a('v_cndmask_b32 v51, 0, v%d, s[56:57]' % (KD + 9))
    for i in (1, 0, 2):
        if i == 0:
            a('s_mov_b64 exec, s[58:59]')
        a('ds_write_b16 v83, v%d offset:%d' % (48 + i, 32 - 16 * i))
    a('s_mov_b64 exec, s[42:43]')
    for i in (1, 0, 2):
        if i == 0:
            a('s_mov_b32 exec_hi, 0')
        a('ds_write_b16_d16_hi v84, v%d offset:%d' % (48 + i, 512 + 32 - 16 * i))
    a('s_mov_b64 exec, -1')
    OB = 64

    def pack(dst, vals):
        for j in range(4):
            a('v_cvt_pk_bf16_f32 v%d, v%d, v%d' % (dst + j, vals[2 * j], vals[2 * j + 1]))

    def emit_copy(cp):
        k = lambda r: KD + r
        r0 = [k(i) for i in range(9)]
        r1 = [k(0), k(0), k(1), k(2), k(2), k(2), k(3), k(4), k(4)]
        r2 = lambda b: [k(b), k(b), k(b), k(b + 1), k(b + 1), k(b + 1), k(b + 2), k(b + 2), k(b + 2)]
        r3 = [51] * 4 + [89] * 5
        sel = (lambda p: p[8:0:-1]) if cp == 0 else (lambda p: p[7::-1])
        a('s_mov_b64 exec, s[58:59]')
        pack(OB, sel(r0))
        pack(OB + 4, sel(r3))
        a('s_mov_b64 exec, s[40:41]')
        pack(OB, sel(r1))
        pack(OB + 4, sel(r2(5)))
        pack(OB + 8, sel(r2(8)))
        a('s_mov_b64 exec, -1')
        if cp == 0:
            a('v_cvt_pk_bf16_f32 v10, v%d, v88' % KD)
            a('v_cndmask_b32 v88, 0, v10, s[56:57]')

    a('s_cmp_eq_u32 s53, 0')
    a('s_cbranch_scc0 L_copy1')
    emit_copy(0)
    a('s_branch L_copyd')
    a('L_copy1:')
    emit_copy(1)
    a('L_copyd:')
    for sl in range(2):
        a('ds_write_b128 v%d, %s' % (80 + sl, vr(OB + 4 * sl, 4)))
    a('s_mov_b64 exec, s[40:41]')
    a('ds_write_b128 v82, %s' % vr(OB + 8, 4))
    a('s_mov_b64 exec, 15')
    a('ds_write_b128 v87, v[88:91]')
    a('s_mov_b64 exec, -1')
    if 'x1' in OPT:
        lds_add(a, 12, 1, C_Y2)
        a('s_waitcnt lgkmcnt(0)')
        stamp_dump(a)
        a('s_endpgm')
    a('s_waitcnt vmcnt(0)')
    arrive_publish(a, 12, 1, C_U, 4, 65, 2)
    stamp(a, 4)
    a('''v_lshlrev_b32 v6, 6, v28
s_lshl_b32 s46, s44, 11
s_add_u32 s46, s46, %d
s_cmp_eq_u32 s3, 0
s_cbranch_scc0 L_uw''' % FLU)
    flag_poll_lazy(a, 6, 1, 46, int(OPTV.get('usl', 24)), True)
    lds_add(a, 12, 3, C_GOU)
    a('L_uw:')
    lds_spin(a, 12, 3, C_GOU, 1, nap=4)
    a('''v_lshlrev_b32 v6, 6, v4
s_mul_i32 s46, s52, %d
s_lshl_b32 s47, s53, 5
s_add_u32 s46, s46, s47
s_add_u32 s46, s46, %d
s_mul_i32 s47, s53, 3072
s_add_u32 s47, s47, s64
s_add_u32 m0, s47, 512
s_nop 0
buffer_load_dwordx4 v6, s[8:11], s46 offen sc1 lds
s_add_u32 m0, s47, 2048
s_add_u32 s46, s46, 16
buffer_load_dwordx4 v6, s[8:11], s46 offen sc1 lds''' % (RS, UT))
    a('''v_and_b32 v18, 30, v4
v_and_b32 v19, 1, v4
v_lshlrev_b32 v24, 3, v29
v_sub_u32 v24, v24, v18
v_add_u32 v24, 32, v24
v_lshlrev_b32 v24, 1, v24
v_mul_u32_u24 v19, %d, v19
v_add_u32 v24, v24, v19
s_add_u32 s46, s64, %d
v_add_u32 v24, s46, v24
s_lshl_b32 s46, s53, 9
s_add_u32 s46, s46, s64
s_add_u32 s46, s46, %d
v_mul_u32_u24 v25, 1536, v29
v_lshl_add_u32 v25, v28, 4, v25
v_add_u32 v25, s46, v25''' % (16384 + 64 - 4, KCOPY - UIMG + 32 * 120, 512 - 3 * 16))
    TB, UB, CA = 32, 40, 48
    CB = 64
    for j in range(16):
        a('v_mov_b32 v%d, 0' % (CA + j))
    a('''s_add_u32 s34, s53, 8
s_mov_b32 s35, 0
s_waitcnt vmcnt(0) lgkmcnt(0)''')
    lds_add(a, 12, 1, C_CONV)
    if WOW != 'win':
        a('''s_and_b32 s46, s45, 7
s_lshl_b32 s46, s46, 16
s_lshl_b32 s47, s5, 7
s_add_u32 s46, s46, s47
s_lshl_b32 s47, s3, 14
s_add_u32 s46, s46, s47
v_and_b32 v6, 15, v4
v_lshlrev_b32 v6, 10, v6
buffer_load_dword v31, v6, s[12:15], s46 offen''')
    lds_spin(a, 12, 1, C_CONV, 4)
    if 'x2' in OPT:
        lds_add(a, 12, 1, C_Y2)
        a('s_waitcnt lgkmcnt(0)')
        stamp_dump(a)
        a('s_endpgm')
    stamp(a, 5)
    jitter(a, 4)

    def conv_loop(lab, acc, send):
        a(lab + ':')
        for j in range(8):
            t = TB + 4 * (j & 1)
            if 'not' not in OPT or j == 0:
                a('ds_read2_b32 %s, v24 offset0:%d offset1:%d' % (vr(t, 2), 8 * (7 - j), 8 * (7 - j) + 1))
                a('ds_read2_b32 %s, v24 offset0:%d offset1:%d' % (vr(t + 2, 2), 8 * (7 - j) + 2, 8 * (7 - j) + 3))
            a('ds_read_b128 %s, v25 offset:%d' % (vr(UB + 4 * (j & 1), 4), (3072 if j % 2 == 0 else 0) + (3 - (j >> 1)) * 16))
            a('s_waitcnt lgkmcnt(0)')
            a(mfma(acc, UB + 4 * (j & 1), t, acc))
            if 'cs' in OPTV:
                a('s_sleep %s' % OPTV['cs'])
        a('''v_subrev_u32 v24, 256, v24
v_subrev_u32 v25, 64, v25
s_add_u32 s35, s35, 1
s_cmp_lt_u32 s35, %s
s_cbranch_scc1 %s''' % (send, lab))

    if 'noconv' not in OPT:
        conv_loop('L_cl', CA, 's34')
        a('''s_cmp_eq_u32 s53, 0
s_cbranch_scc0 L_cr
v_subrev_u32 v24, 1536, v24
v_add_u32 v25, 512, v25''')
        for j in range(3):
            t = 96 + 8 * j
            a('ds_read2_b32 %s, v24 offset0:%d offset1:%d' % (vr(t, 2), 8 * (7 - j), 8 * (7 - j) + 1))
            a('ds_read2_b32 %s, v24 offset0:%d offset1:%d' % (vr(t + 2, 2), 8 * (7 - j) + 2, 8 * (7 - j) + 3))
            a('ds_read_b128 %s, v25 offset:%d' % (vr(t + 4, 4), (3072 if j % 2 == 0 else 0) + (3 - (j >> 1)) * 16))
        a('''v_lshlrev_b32 v20, 1, v28
v_lshl_add_u32 v20, v29, 8, v20
s_add_u32 s46, s62, 64
v_add_u32 v20, s46, v20
v_mov_b32 v88, 0
v_and_b32 v10, 1, v4
v_xor_b32 v10, 1, v10
v_mul_u32_u24 v21, %d, v10
v_lshlrev_b32 v10, 3, v29
v_sub_u32 v10, v10, v28
v_lshl_add_u32 v21, v10, 1, v21
s_add_u32 s46, s62, %d
v_add_u32 v21, s46, v21
v_bfe_u32 v9, v4, 2, 2
v_lshl_add_u32 v9, v29, 3, v9
v_bfe_u32 v10, v4, 4, 1
v_lshlrev_b32 v10, 2, v10
v_and_b32 v8, 3, v4
v_add_u32 v10, v10, v8
v_lshlrev_b32 v22, 6, v9
v_lshl_add_u32 v22, v10, 3, v22
s_add_u32 s46, s62, 16
v_add_u32 v22, s46, v22
s_waitcnt lgkmcnt(6)''' % (16384 + 64 - 2, KCOPY + ZOFF + 62))
        a(mfma(CB, 100, 96, None))
        for r_, dst in ((0, 23), (1, 26)):
            a('''v_add_u32 v8, {o}, v10
v_and_b32 v7, 1, v8
v_lshlrev_b32 v{d}, 3, v7
v_bfe_u32 v7, v8, 1, 2
v_mul_u32_u24 v7, 1536, v7
v_add_u32 v{d}, v{d}, v7
v_lshrrev_b32 v8, 3, v8
v_add_u32 v8, v8, v9
v_lshl_add_u32 v{d}, v8, 4, v{d}
s_add_u32 s46, s64, 496
v_add_u32 v{d}, s46, v{d}'''.format(o=7 - 4 * r_, d=dst))
            a('s_waitcnt lgkmcnt(%d)' % (3 - 3 * r_))
            a(mfma(CB, 108 + 8 * r_, 104 + 8 * r_, CB))
        a('''s_mov_b64 exec, 15
ds_write_b128 v16, v[88:91]
s_mov_b64 exec, -1
s_nop 11''')
        for k in range(8):
            a('v_cvt_pk_bf16_f32 v%d, v%d, v%d' % (32 + k, CB + 2 * k, CB + 2 * k + 1))
        for k in range(8):
            r = 2 * k
            a('ds_write_b16 v20, v%d offset:%d' % (32 + k, (8 * (r >> 2) + (r & 3)) * 64))
            a('ds_write_b16_d16_hi v20, v%d offset:%d' % (32 + k, (8 * (r >> 2) + (r & 3) + 1) * 64))
        steps = [(i, st) for i in (4, 5, 0, 1, 2, 3) for st in range(2)]
        for n, (i, st) in enumerate(steps):
            t = 96 + 8 * (n & 1)
            o = i * 32 + st * 8
            a('ds_read2_b32 %s, v21 offset0:%d offset1:%d' % (vr(t, 2), o, o + 1))
            a('ds_read2_b32 %s, v21 offset0:%d offset1:%d' % (vr(t + 2, 2), o + 2, o + 3))
            for rd in range(2):
                if i < 4:
                    a('ds_read_b64_tr_b16 %s, v22 offset:%d' % (vr(t + 4 + 2 * rd, 2), st * 1024 + rd * 256 + 16 * (3 - i)))
                else:
                    a('ds_read_b64_tr_b16 %s, v%d offset:%d' % (vr(t + 4 + 2 * rd, 2), (23, 26)[i - 4], st * 256 + rd * 64))
            a('s_waitcnt lgkmcnt(0)')
            a(mfma(CB, t, t + 4, None if n == 0 else CB))
        a('s_nop 15')
        for j in range(4):
            a('ds_write_b128 v16, %s offset:%d' % (vr(CB + 4 * j, 4), 1024 * j))
        a('s_waitcnt lgkmcnt(0)')
        lds_add(a, 11, 1, C_PAIR)
        a('s_branch L_cd')
        a('L_cr:')
        lds_spin(a, 11, 1, C_PAIR, 3, nap=2)
        for j in range(4):
            a('ds_read_b128 %s, v17 offset:%d' % (vr(CB + 4 * j, 4), 1024 * j))
        a('s_waitcnt lgkmcnt(0)')
        for j in range(16):
            a('v_add_f32 v%d, v%d, v%d' % (CA + j, CA + j, CB + j))
        a('L_cd:')
    jitter(a, 5)
    stamp(a, 6)
    a('''s_nop 0
s_mul_i32 s46, s52, %d
s_lshl_b32 s47, s53, 11
s_add_u32 s46, s46, s47
s_add_u32 s46, s46, %d
v_lshlrev_b32 v6, 2, v28
v_lshl_add_u32 v6, v29, 8, v6
s_lshl_b32 s47, s53, 9
s_add_u32 s47, s47, s52
s_lshl_b32 s47, s47, 6
s_add_u32 s47, s47, %d
v_mov_b32 v1, s7
v_mov_b32 v2, 0''' % (RS, YT, FL3))
    for k in range(8):
        a('v_cvt_pk_bf16_f32 v%d, v%d, v%d' % (32 + k, CA + 2 * k, CA + 2 * k + 1))
    for k in range(8):
        a('buffer_store_dword v%d, v6, s[8:11], s46 offen offset:%d sc1' % (32 + k, (4 * (k >> 1) + (k & 1)) * 128))
    a('''s_waitcnt vmcnt(0) lgkmcnt(0)
s_mov_b64 exec, 1
buffer_store_dword v1, v2, s[8:11], s47 offen sc1
s_mov_b64 exec, -1''')
    if 'x3' in OPT:
        lds_add(a, 12, 1, C_Y2)
        a('s_waitcnt lgkmcnt(0)')
        stamp_dump(a)
        a('s_endpgm')
    if WOW == 'mid':
        a('''v_lshrrev_b32 v6, 3, v4
v_lshlrev_b32 v6, 10, v6
v_bfe_u32 v7, v4, 4, 1
v_lshlrev_b32 v7, 2, v7
v_and_b32 v8, 7, v4
v_xor_b32 v7, v7, v8
v_lshl_add_u32 v6, v7, 4, v6
s_lshl_b32 s23, s53, 10
s_lshl_b32 s24, s61, 11
s_add_u32 s24, s23, s24
s_lshl_b32 s26, s5, 7
s_lshl_b32 s27, s53, 13
s_add_u32 s26, s26, s27
s_lshl_b32 s27, s61, 14
s_add_u32 s26, s26, s27
s_nop 0''')
        for c in range(8):
            a('s_add_u32 s38, s5, %d' % c)
            a('s_and_b32 s38, s38, 7')
            a('s_lshl_b32 s30, s38, 16')
            a('s_add_u32 m0, s24, %d' % (c * 4096))
            a('s_add_u32 s30, s30, s26')
            if 'nowo' in OPT:
                continue
            a('buffer_load_dwordx4 v6, s[12:15], s30 offen lds')
            a('s_add_u32 m0, s24, %d' % (32768 + c * 4096))
            a('s_add_u32 s30, s30, 0x8000')
            a('buffer_load_dwordx4 v6, s[12:15], s30 offen lds')
            a('s_waitcnt vmcnt(%s)' % OPTV.get('wot', '2'))
    if 'x4' in OPT:
        lds_add(a, 12, 1, C_Y2)
        a('s_waitcnt lgkmcnt(0)')
        stamp_dump(a)
        a('s_endpgm')
    stamp(a, 7)
    a('''v_lshlrev_b32 v6, 6, v4
s_lshr_b32 s46, s4, 4
s_lshl_b32 s46, s46, 15
s_lshl_b32 s47, s5, 12
s_add_u32 s46, s46, s47
s_add_u32 s46, s46, %d
s_cmp_eq_u32 s3, 0
s_cbranch_scc0 L_yw''' % FL3)
    if 'ysl' in OPTV:
        a('s_sleep %s' % OPTV['ysl'])
    flag_poll_lazy(a, 6, 1, 46, int(OPTV.get('ynap', 32)))
    lds_add(a, 12, 3, C_GOY)
    a('L_yw:')
    transpose_addrs(a, 3, 20, 21, 22, 8, 9, USI, USO)
    a('''v_mul_u32_u24 v10, %d, v8
v_and_b32 v11, 7, v4
v_lshl_add_u32 v10, v11, 4, v10
v_add_u32 v11, %d, v10
s_mul_i32 s46, s5, %d
s_mul_i32 s47, s3, %d
s_add_u32 s46, s46, s47
s_lshl_b32 s47, s4, 7
s_add_u32 s46, s46, s47
s_add_u32 s46, s46, %d
s_lshl_b32 s47, s3, 11
s_add_u32 s47, s47, %d''' % (RS, 8 * RS - 1024, 64 * RS, 16 * RS, YT, USI))
    lds_spin(a, 12, 3, C_GOY, 1, nap=8)
    a('''s_mov_b32 m0, s47
v_and_b32 v7, 1, v8
v_lshrrev_b32 v8, 1, v8
v_lshl_add_u32 v8, v7, 5, v8
v_lshlrev_b32 v8, 11, v8
buffer_load_dwordx4 v10, s[8:11], s46 offen sc1 lds
buffer_load_dwordx4 v11, s[8:11], s46 offen offset:1024 sc1 lds
v_lshl_add_u32 v8, v9, 4, v8
s_lshl_b32 s46, s4, 17
s_lshl_b32 s47, s3, 14
s_add_u32 s46, s46, s47
s_lshl_b32 s47, s5, 7
s_add_u32 s46, s46, s47
s_add_u32 s47, s46, 0x2000
s_waitcnt vmcnt(0)''')
    jitter(a, 6)
    lds_add(a, 12, 1, C_Y)
    lds_spin(a, 12, 1, C_Y, 4)
    transpose_a(a, 20, 21, 32, 23)
    a('''ds_read_b128 v[32:35], v22
ds_read_b128 v[36:39], v22 offset:1024
s_waitcnt lgkmcnt(1)
buffer_store_dwordx4 v[32:35], v8, s[16:19], s46 offen sc1
s_waitcnt lgkmcnt(0)
buffer_store_dwordx4 v[36:39], v8, s[16:19], s47 offen sc1''')
    lds_add(a, 12, 1, C_Y2)
    stamp(a, 8)
    a('s_waitcnt lgkmcnt(0)')
    stamp(a, 12)
    stamp_dump(a)
    a('s_endpgm')

    XA, WA, OA, OV = 160, 164, 165, 166
    XR, ACC = 0, 128
    WF = [144, 148, 152, 156]
    a('''L_mm:
%s
s_setprio 3
s_and_b32 s52, s3, 1
s_bfe_u32 s53, s3, 0x10001
v_and_b32 v10, 31, v4
v_bfe_u32 v11, v4, 1, 3
v_lshrrev_b32 v12, 5, v4
v_xor_b32 v11, v11, v12
v_lshlrev_b32 v11, 4, v11
v_lshl_add_u32 v10, v10, 7, v11
s_lshl_b32 s46, s52, 12
v_add_u32 v%d, s46, v10''' % ('s_memrealtime s[70:71]' if 'dbgt' in OPT else '', XA))
    for jq in range(1, 4):
        a('v_xor_b32 v%d, %d, v%d' % (XA + jq, jq << 5, XA))
    a('''v_lshlrev_b32 v10, 10, v12
v_bfe_u32 v11, v4, 2, 2
v_lshl_add_u32 v10, v11, 7, v10
v_bfe_u32 v11, v4, 3, 1
v_xor_b32 v11, s53, v11
v_lshl_add_u32 v10, v11, 6, v10
v_bfe_u32 v11, v4, 4, 1
v_lshl_add_u32 v10, v11, 5, v10
v_and_b32 v11, 3, v4
v_lshl_add_u32 v%d, v11, 3, v10''' % WA)
    a('''s_lshl_b32 s46, s4, 1
s_add_u32 s46, s46, s52
s_lshl_b32 s46, s46, 10
s_lshl_b32 s47, s5, 1
s_add_u32 s47, s47, s53
s_lshl_b32 s47, s47, 17
s_add_u32 s46, s46, s47
v_lshl_add_u32 v%d, v4, 4, s46
v_bfe_u32 v11, v4, 4, 1
v_lshlrev_b32 v11, 16, v11
v_lshl_add_u32 v11, v12, 8, v11
v_and_b32 v10, 15, v4
v_lshl_add_u32 v11, v10, 4, v11
v_add_u32 v%d, s46, v11
v_mov_b32 v167, v4
s_mov_b32 s62, 0x%x
s_mov_b32 s64, %d
s_mov_b32 s65, %d
s_mov_b32 s63, %d
s_lshl_b32 s54, s52, 12
s_lshl_b32 s47, s53, 11
s_add_u32 s54, s54, s47
s_add_u32 s54, s54, %d
s_lshl_b32 s56, s5, 6
s_add_u32 s56, s56, %d
s_lshl_b32 s55, s4, 9
s_add_u32 s55, s55, s56
s_waitcnt lgkmcnt(0)''' % (OA, OV, f2u(QSCALE), KF, KF + 65536, VF, QX, FL1))
    srd(a, 8, 38, WS_BYTES)
    if 'nowpf' not in OPT:
        srd(a, 12, 34, 512 * 3072)
        a('''v_mul_u32_u24 v126, 3072, v4
s_and_b32 s46, s4, 7
s_mul_i32 s46, s46, %d
s_lshl_b32 s47, s5, 7
s_add_u32 s46, s46, s47
s_xor_b32 s47, s52, 1
s_lshl_b32 s47, s47, 11
s_add_u32 s57, s46, s47''' % (64 * 3072))

    def wpf(wave):
        l = label('pf')
        a('s_cmp_eq_u32 s3, %d' % wave)
        a('s_cbranch_scc0 %s' % l)
        a('buffer_load_dword v127, v126, s[12:15], s57 offen')
        a(l + ':')

    WPV, WPQ = int(OPTV.get('wpv', -1)), int(OPTV.get('wpq', -1))
    if WPV < 0:
        wpf(8)
    if WPQ < 0:
        wpf(9)
    if 'upf' in OPT:
        a('''s_cmp_eq_u32 s3, 10
s_cbranch_scc0 L_noupf
s_load_dwordx2 s[20:21], s[0:1], 0
v_lshlrev_b32 v126, 10, v4
s_lshl_b32 s46, s45, 16
s_lshl_b32 s47, s44, 7
s_add_u32 s46, s46, s47
v_add_u32 v126, s46, v126
s_waitcnt lgkmcnt(0)
global_load_dword v127, v126, s[20:21]
L_noupf:''')
    PD = 3

    def chunk_of(s):
        p, kk = s >> 5, s & 31
        return (kk >> 2, kk & 3) if p == 0 else (8 + 4 * (p - 1) + (kk >> 3), kk & 7)

    def nreads(s):
        return 0 if s >= 96 else (3 if s < 32 else 2)

    def reads(s):
        c, j = chunk_of(s)
        if j == 0:
            a('s_barrier')
            if c == 0:
                if OPTV.get('enc') == 'b0':
                    a('s_memrealtime s[92:93]')
                stamp(a, 2)
                if 'dbgt' in OPT:
                    a('s_memrealtime s[72:73]')
            if c == WPV:
                wpf(8)
            if c == WPQ:
                wpf(9)
            if c == 6:
                a('s_waitcnt vmcnt(0)')
            if c % 3 == 0 and c > 0:
                op = 'v_add_u32' if c % 6 == 3 else 'v_subrev_u32'
                for r in ([XA, XA + 1, XA + 2, XA + 3] if c < 8 else []) + [WA]:
                    a('%s v%d, 0xc000, v%d' % (op, r, r))
        so = (c % 3) * 16384
        if c < 8:
            a('ds_read_b128 %s, v%d offset:%d' % (vr(XR + 4 * s, 4), XA + j, so))
            so += 8192
        for rd in range(2):
            a('ds_read_b64_tr_b16 %s, v%d offset:%d' % (vr(WF[s % 4] + 2 * rd, 2), WA, so + j * 2048 + rd * 512))

    def epilogue(p):
        lo, hi = vr(ACC, 4), vr(ACC + 4, 4)
        if SEG[p] == 0:
            a('v_mov_b32 v4, v167')
            a('v_lshl_add_u32 v10, v167, 4, s54')
            a('s_nop 13')
            for i in range(16):
                a('v_mul_f32 v%d, s62, v%d' % (ACC + i, ACC + i))
        else:
            a('s_nop 15')
        for j in range(8):
            a('v_cvt_pk_bf16_f32 v%d, v%d, v%d' % (ACC + j, ACC + 2 * j, ACC + 2 * j + 1))
        if SEG[p] == 0:
            a('ds_write_b128 v10, %s' % lo)
            a('ds_write_b128 v10, %s offset:1024' % hi)
        elif SEG[p] == 1:
            a('buffer_store_dwordx4 %s, v%d, s[8:11], s64 offen sc1' % (lo, OA))
            a('buffer_store_dwordx4 %s, v%d, s[8:11], s65 offen sc1' % (hi, OA))
        else:
            a('buffer_store_dwordx4 %s, v%d, s[8:11], s63 offen sc1' % (lo, OV))
            a('buffer_store_dwordx4 %s, v%d, s[8:11], s63 offen offset:512 sc1' % (hi, OV))

    jitter(a, 8)
    for s in range(PD):
        reads(s)
    for s in range(96):
        p, kk = s >> 5, s & 31
        if s + PD < 96:
            reads(s + PD)
        a('s_waitcnt lgkmcnt(%d)' % sum(nreads(t) for t in range(s + 1, s + PD + 1)))
        x, w = XR + 4 * kk, WF[s % 4]
        if SEG[p] == 2:
            a(mfma(ACC, x, w, None if kk == 0 else ACC))
        else:
            a(mfma(ACC, w, x, None if kk == 0 else ACC))
        if s == 80:
            a('v_mov_b32 v12, %d' % CNT)
            a('ds_read_b32 v1, v12 offset:%d' % C_TAG)
            a('s_waitcnt vmcnt(0) lgkmcnt(0)')
            a('v_readfirstlane_b32 s7, v1')
            jitter(a, 9)
            arrive_publish(a, 12, 1, C_KV, 4, 55, 2, 'nocp' not in OPT)
            if 'rt' in OPT:
                stamp(a, 2)
        if kk == 31:
            if OPTV.get('enc') == 'v' and p == 1:
                a('s_memrealtime s[92:93]')
            stamp(a, 3 + p)
            epilogue(p)
    a('s_waitcnt lgkmcnt(0)')
    a('s_barrier')
    a('''s_cmp_eq_u32 s3, 8
s_cbranch_scc0 L_apro
v_and_b32 v6, 31, v4
v_lshlrev_b32 v6, 9, v6
s_lshr_b32 s46, s4, 3
s_lshl_b32 s46, s46, 14
%s''' % ('s_add_u32 s56, s56, s46' if 'nocp' not in OPT else ''))
    flag_poll_lazy(a, 6, 1, 56, int(OPTV.get('psl', 6)), True)
    lds_add(a, 12, 3, C_GO)

    a('L_apro:')
    att_prologue(False)
    a('''L_att:
v_xor_b32 v6, 0x1000, v13
ds_read_b128 %s, v13
ds_read_b128 %s, v6''' % (vr(Q[1], 4), vr(Q[0], 4)))

    def rdk(i):
        return ['buffer_load_dwordx4 %s, v%d, s[8:11], s36 offen sc1' % (vr(K[i % NB], 4), KA),
                's_add_u32 s36, s36, 2048'] + ['s_and_b32 s36, s36, 0xffff'] * OWN

    def rdv(i):
        return ['s_mov_b64 exec, s[40:41]',
                'buffer_load_dwordx4 %s, v%d, s[8:11], s37 offen sc1' % (vr(V[i % NBV][0], 4), VA),
                'buffer_load_dwordx4 %s, v%d, s[8:11], s37 offen offset:512 sc1' % (vr(V[i % NBV][1], 4), VA),
                's_mov_b64 exec, -1', 's_add_u32 s37, s37, 2048'] + ['s_and_b32 s37, s37, 0xffff'] * OWN

    PF = False
    pfl = []
    issue = []
    if OWN:
        lds_spin(a, 12, 3, C_KV, 4)
        a('\n'.join(rdk(0) + rdv(0)))
        issue += [('k', 0), ('v', 0), ('v', 0)]
    jitter(a, 10)
    stamp(a, 6)
    lds_spin(a, 12, 3, C_GO, 1)
    stamp(a, 7)
    pro = []
    if not OWN:
        pro = rdk(0)
        issue += [('k', 0)]
    for i in range(1, DK):
        pro += rdk(i)
        issue += [('k', i)]
        if i > 1 or not OWN:
            pro += rdv(i - 1)
            issue += [('v', i - 1), ('v', i - 1)]
    a('\n'.join(pro))
    a('s_setprio 3')
    a('s_waitcnt vmcnt(%d)' % (len(issue) - 1))
    if OPTV.get('enc') == 'go':
        a('s_memrealtime s[92:93]')
    if 'pubq0' in OPT:
        arrive_publish(a, 12, 3, C_Q, 8, 55, 2)
        issue.append(('f',))
    stamp(a, 8)
    if 'dbgt' in OPT:
        a('s_memrealtime s[74:75]')
    a(mfma(S[0], K[0], Q[0], None))
    a('s_nop 7')
    a('s_nop 3')
    pp_ = [int(x) for x in OPTV.get('pr', '7,15,23').split(',')]
    PRIO = {pp_[0]: 2, pp_[1]: 1, pp_[2]: 0}

    def unit(i, q):
        u = 2 * i + q
        sc, sn = S[u % 2], S[(u + 1) % 2]
        pc, pp = Pp[u % 2], Pp[(u + 1) % 2]
        i1, q1 = (i, 1) if q == 0 else (i + 1, 0)
        i0, q0 = (i - 1, 1) if q == 0 else (i, 0)
        qk = mfma(sn, K[i1 % NB], Q[q1], None)
        pv0 = mfma(O[q0], V[i0 % NBV][0], pp, O[q0])
        pv1 = mfma(O[q0], V[i0 % NBV][1], pp + 4, O[q0])
        if 'swp' in OPT:
            pv0 = mfma(O[q0], pp, V[i0 % NBV][0], O[q0])
            pv1 = mfma(O[q0], pp + 4, V[i0 % NBV][1], O[q0])
        e = ['v_exp_f32 v%d, v%d' % (sc + j, sc + j) for j in range(16)]
        c = ['v_cvt_pk_bf16_f32 v%d, v%d, v%d' % (pc + j, sc + 2 * j, sc + 2 * j + 1) for j in range(8)]
        c7prev = 'v_cvt_pk_bf16_f32 v%d, v%d, v%d' % (pp + 7, sn + 14, sn + 15)
        out = [e[0]]
        late_qk = OWN and u == 1
        if late_qk:
            last = max(n for n, x in enumerate(issue) if x == ('v', 0))
            out.append('s_waitcnt vmcnt(%d)' % sum(x != ('f',) for x in issue[last + 1:]))
        elif q == 1:
            last = max(n for n, x in enumerate(issue) if x in (('k', i + 1), ('v', i)))
            out.append('s_waitcnt vmcnt(%d)' % sum(x != ('f',) for x in issue[last + 1:]))
        if u > 0:
            out.append(c7prev)
        if u < 63 and not late_qk:
            out.append(qk)
        kl = rdk(i + DK) if q == 0 and i + DK < 32 else []
        vl = rdv(i + DK - 1) if q == 1 and i + DK - 1 < 32 else []
        issue.extend([('k', i + DK)] * bool(kl) + [('v', i + DK - 1)] * 2 * bool(vl))
        out += kl[:1] + vl[:4]
        out += [e[1], e[2], c[0], e[3], e[4], c[1], e[5]]
        if u > 0:
            out.append(pv0)
        out += kl[1:2] + vl[4:5]
        out += [e[6], c[2], e[7], e[8], c[3], e[9], e[10], c[4]]
        if u > 0:
            out.append(pv1)
        out += kl[2:] + vl[5:]
        if q == 0 and i in (1, 8, 16) and PF:
            out += pfl
            issue.append(('p',))
        if q == 1 and i == int(OPTV.get('eti', 30)):
            out += ['s_mov_b64 exec, 1', 'ds_add_u32 v12, v12 offset:%d' % C_T, 's_mov_b64 exec, -1']
        if q == 1 and i in PRIO:
            out.append('s_setprio %d' % PRIO[i])
            if DIAG and 'qs' in OPT:
                n = 3 + i // 8
                out.append('s_memrealtime s[%d:%d]' % (ST0 + 2 * n, ST0 + 2 * n + 1))
        out += [e[11], e[12], c[5], e[13], e[14], c[6], e[15]]
        if late_qk:
            last = issue.index(('k', 1))
            out += ['s_waitcnt vmcnt(%d)' % sum(x != ('f',) for x in issue[last + 1:]), qk, 's_nop 11']
        return out

    for i in range(32):
        for q in range(2):
            if (i, q) == (20, 0):
                jitter(a, 11)
            if (i, q) == (31, 0):
                jitter(a, 12)
                a('''s_and_b32 s26, s3, 3
s_xor_b32 s27, s26, 2
s_mul_i32 s26, s26, 2304
s_add_u32 s26, s26, {ox}
s_mul_i32 s27, s27, 2304
s_add_u32 s27, s27, {ox}
v_add_u32 v6, s26, v5
v_add_u32 v7, s27, v5
v_lshlrev_b32 v8, 2, v4
v_add_u32 v9, s27, v8
v_add_u32 v8, s26, v8
s_sub_u32 s26, s3, 4
s_lshl_b32 s26, s26, 2
v_add_u32 v10, s26, v12
s_xor_b32 s26, s26, 8
v_add_u32 v11, s26, v12
s_cmp_eq_u32 s19, 0
s_cbranch_scc0 L_xa'''.format(ox=OX))
                lds_spin(a, 12, 3, C_Q, 8)
                a('s_branch L_xb')
                a('L_xa:')
                lds_spin(a, 12, 3, C_O, 4)
                a('''L_xb:
s_mov_b32 s44, 0x%x
s_mov_b32 s45, 0x%x
s_mov_b32 s46, 0x7f7fffff
s_lshl_b32 s26, s19, 2
v_add_u32 v13, s26, v12
v_mov_b32 v3, 1
buffer_load_dword v1, v163, s[8:11], s52 offen sc1''' % (f2u(2.0 ** -64), f2u(2.0 ** 64)))
                issue.append(('m',))
            if (i, q) == (2, 0) and 'pubq0' not in OPT:
                arrive_publish(a, 12, 3, C_Q, 8, 55, 2)
                issue.append(('f',))
            for s in unit(i, q):
                a(s)
    a('s_nop 0')
    a('v_cvt_pk_bf16_f32 v%d, v%d, v%d' % (Pp[1] + 7, S[1] + 14, S[1] + 15))
    if OPTV.get('enc') == 'loop':
        a('s_memrealtime s[92:93]')
    stamp(a, 9)
    if 'dbgt' in OPT:
        a('s_memrealtime s[76:77]')
    a('s_setprio 3')
    a('s_nop 0')
    a(mfma(O[1], V[31 % NBV][0], Pp[1], O[1]))
    a(mfma(O[1], V[31 % NBV][1], Pp[1] + 4, O[1]))
    F = O[1]
    a('''ds_write_b128 v6, %s
ds_write_b128 v6, %s offset:1024
ds_write_b32 v8, v%d offset:2048
ds_write_b32 v10, v3 offset:%d''' % (vr(O[0], 4), vr(O[0] + 4, 4), O[0] + 8, C_X))
    a('''s_mov_b32 s66, 0
L_xw:
ds_read_b32 v2, v11 offset:%d
ds_read_b128 v[48:51], v7
ds_read_b128 v[52:55], v7 offset:1024
ds_read_b32 v56, v9 offset:2048
s_add_u32 s66, s66, 1
s_waitcnt lgkmcnt(0)
v_readfirstlane_b32 s67, v2
s_cmp_ge_u32 s66, %d
s_cbranch_scc1 L_xe
s_cmp_eq_u32 s67, 0
s_cbranch_scc1 L_xw
L_xe:''' % (C_X, SPIN_MAX * 4))
    stamp(a, 10)
    for j in range(9):
        a('v_add_f32 v%d, v%d, v%d' % (F + j, F + j, 48 + j))
    a('''v_rcp_f32 v48, v{8}
v_add_f32 v50, abs(v{0}), abs(v{1})
v_add_f32 v51, abs(v{2}), abs(v{3})
v_add_f32 v52, abs(v{4}), abs(v{5})
v_add_f32 v53, abs(v{6}), abs(v{7})
v_cmp_le_f32 s[28:29], s44, v{8}
v_add_f32 v50, v50, v51
v_add_f32 v52, v52, v53
v_cmp_ge_f32 s[30:31], s45, v{8}
v_add_f32 v50, v50, v52
v_cmp_ge_f32 s[32:33], s46, v50
s_and_b64 s[28:29], s[28:29], s[30:31]
s_nop 0
s_and_b64 s[28:29], s[28:29], s[32:33]
s_cmp_eq_u64 s[28:29], -1
s_cbranch_scc0 {9}
L_fin:'''.format(*(list(range(F, F + 9)) + ['L_fin' if 'swp' in OPT else 'L_slow'])))
    for j in range(8):
        a('v_mul_f32 v%d, v%d, v48' % (F + j, F + j))
    for j in range(4):
        a('v_cvt_pk_bf16_f32 v%d, v%d, v%d' % (52 + j, F + 2 * j, F + 2 * j + 1))
    a('buffer_store_dwordx4 v[52:55], v5, s[8:11], s54 offen sc1')
    jitter(a, 13)
    lds_add(a, 13, 3, C_O)
    stamp(a, 11)
    a('s_cmp_ge_u32 s3, 8')
    a('s_cbranch_scc1 L_bend')
    a('s_load_dwordx4 s[32:35], s[0:1], 88')
    a('s_waitcnt lgkmcnt(0)')
    srd(a, 16, 34, 2048 * 2048)
    AC = [20, 36]
    OFR, WR = 56, 88

    def wo_frags(g):
        for cc in range(4):
            for n in range(2):
                for nt in range(2):
                    for rd in range(2):
                        a('ds_read_b64_tr_b16 %s, v%d offset:%d' % (vr(WR + 16 * cc + 8 * n + 4 * nt + 2 * rd, 2), (160, 161)[nt],
                                                                    g * 32768 + cc * 4096 + n * 2048 + rd * 1024))

    def o_loads(cc):
        a('''s_add_u32 s38, s51, %d
s_and_b32 s38, s38, 7
s_lshl_b32 s30, s38, 12
s_add_u32 s30, s30, s53
buffer_load_dwordx4 %s, v5, s[8:11], s30 offen sc1
buffer_load_dwordx4 %s, v5, s[8:11], s30 offen offset:1024 sc1''' % (cc, vr(OFR + 8 * cc, 4), vr(OFR + 8 * cc + 4, 4)))

    def o_mfma(cc, first):
        for nt in range(2):
            for n in range(2):
                a(mfma(AC[nt], WR + 16 * cc + 8 * n + 4 * nt, OFR + 8 * cc + 4 * n, AC[nt]))

    def poll_half(g, nap):
        lp, le = label('hp'), label('he')
        a('s_mov_b32 s23, 0')
        a('s_mov_b32 s66, 0')
        a(lp + ':')
        for cc in range(4):
            e = label('ls')
            a('s_bitcmp1_b32 s23, %d' % cc)
            a('s_cbranch_scc1 %s' % e)
            o_loads(cc)
            a(e + ':')
        a('s_add_u32 s66, s66, 1')
        a('s_waitcnt vmcnt(0) lgkmcnt(0)')
        for cc in range(4):
            e, gl = label('lc'), label('lg')
            b = OFR + 8 * cc
            a('''s_bitcmp1_b32 s23, {cc}
s_cbranch_scc1 {e}
v_max3_u32 v1, v{0}, v{1}, v{2}
v_max3_u32 v2, v{3}, v{4}, v{5}
v_max3_u32 v1, v1, v{6}, v{7}
v_max_u32 v1, v1, v2
v_cmp_eq_u32 vcc, -1, v1
s_cmp_ge_u32 s66, {n}
s_cbranch_scc1 {g}
s_cbranch_vccnz {e}
{g}:
s_bitset1_b32 s23, {cc}'''.format(*range(b, b + 8), cc=cc, e=e, g=gl, n=SPIN_MAX))
            o_mfma(cc, False)
            a(e + ':')
        a('''s_cmp_eq_u32 s23, 15
s_cbranch_scc1 %s
s_sleep %s
s_branch %s
%s:''' % (le, nap, lp, le))

    if WOW == 'end':
        wo_dma()
    if 'ein' in OPTV:
        for j in range(32):
            a('v_mov_b32 v%d, 0' % (AC[0] + j))
    a('s_lshl_b32 s26, s49, 2')
    a('v_add_u32 v8, s26, v12')
    a('s_waitcnt vmcnt(%d)' % (WOW != 'end'))
    a('''v_cmp_eq_u32 vcc, s7, v1
s_nop 1
s_cmp_eq_u64 vcc, -1
s_cbranch_scc1 L_mok''')
    flag_poll_lazy(a, 163, 1, 52, 8)
    a('L_mok:')
    if WOW == 'mid':
        lds_spin(a, 12, 3, C_Y2, 4, nap=8)
    else:
        lds_add(a, 8, 3, C_W)
        lds_spin(a, 8, 3, C_W, 2)
    wo_frags(0)
    if 'ein' in OPTV:
        a('s_sleep %s' % OPTV['ein'])
    else:
        lds_spin(a, 12, 3, C_T, 7 * CNT, nap=int(OPTV.get('etn', 3)))
        for j in range(32):
            a('v_mov_b32 v%d, 0' % (AC[0] + j))
    poll_half(0, OPTV.get('esl', '8'))
    wo_frags(1)
    a('s_add_u32 s53, s53, 2048')
    lds_spin(a, 12, 3, C_Y2, 4, nap=2)
    stamp(a, 10)
    lds_spin(a, 12, 3, C_O1, 4, nap=2)
    if 'lin' in OPTV:
        a('s_sleep %s' % OPTV['lin'])
    poll_half(1, OPTV.get('lsl', '6'))
    jitter(a, 14)
    stamp(a, 12)
    a('v_mov_b32 v3, 1')
    a('s_nop 6')
    for j in range(4):
        a('ds_write_b128 v164, %s offset:%d' % (vr(AC[0] + 4 * j, 4), 1024 * j))
    a('ds_write_b32 v166, v3 offset:%d' % C_P3)
    a('''s_mov_b32 s66, 0
L_rw:
ds_read_b32 v2, v167 offset:%d''' % C_P3)
    for j in range(4):
        a('ds_read_b128 %s, v165 offset:%d' % (vr(64 + 4 * j, 4), 1024 * j))
    a('''s_add_u32 s66, s66, 1
s_waitcnt lgkmcnt(0)
v_readfirstlane_b32 s67, v2
s_cmp_ge_u32 s66, %d
s_cbranch_scc1 L_re
s_cmp_eq_u32 s67, 0
s_cbranch_scc1 L_rw
L_re:''' % (SPIN_MAX * 4))
    for j in range(16):
        a('v_add_f32 v%d, v%d, v%d' % (64 + j, AC[1] + j, 64 + j))
    for j in range(8):
        a('v_cvt_pk_bf16_f32 v%d, v%d, v%d' % (80 + j, 64 + 2 * j, 65 + 2 * j))
    st3 = OPTV.get('st3', '').replace('+', ' ')
    a('buffer_store_dwordx4 v[80:83], v162, s[16:19], s50 offen' + st3)
    a('buffer_store_dwordx4 v[84:87], v162, s[16:19], s50 offen offset:16' + st3)
    if 'dbgt' in OPT:
        a('s_waitcnt vmcnt(0)')
        a('s_memrealtime s[78:79]')
        a('s_load_dwordx2 s[36:37], s[0:1], 104')
        a('s_waitcnt lgkmcnt(0)')
        srd(a, 12, 36, 256)
        a('v_mov_b32 v2, 0')
        a('s_mov_b64 exec, 1')
        for i in range(5):
            a('s_sub_u32 s66, s%d, s7' % (70 + 2 * i))
            a('s_add_u32 s66, s66, 1000')
            a('v_mov_b32 v1, s66')
            a('buffer_atomic_umax v1, v2, s[12:15], 0 offen offset:%d sc1' % (4 + 4 * i))
            a('s_sub_u32 s66, 100000, s66')
            a('v_mov_b32 v3, s66')
            a('buffer_atomic_umax v3, v2, s[12:15], 0 offen offset:%d sc1' % (36 + 4 * i))
        a('s_mov_b64 exec, -1')
        a('s_waitcnt vmcnt(0)')
    a('L_bend:')
    if 'enc' in OPTV:
        e = OPTV['enc']
        if e != 'skew':
            a('s_cmp_eq_u32 s2, %s' % OPTV.get('ewg', '0'))
            a('s_cbranch_scc0 L_encd')
        a('s_cmp_eq_u32 s3, 8')
        a('s_cbranch_scc0 L_encd')
        a('s_waitcnt lgkmcnt(0)')
        a('s_sub_u32 s94, s92, s90' if e not in ('f', 'skew') else 's_mov_b32 s94, 0')
        a('s_add_u32 s94, s94, 6000')
        a('''L_encw:
s_memrealtime s[96:97]
s_waitcnt lgkmcnt(0)
s_sub_u32 s96, s96, s90
s_cmp_lt_u32 s96, s94
s_cbranch_scc1 L_encw
L_encd:''')
    stamp_dump(a)
    a('s_endpgm')

    for t in ('',):
        OS, SS, M, PS, KS, MX = 80, 16, 64, 48, 104, 58
        a('''L_slow%s:
v_mov_b32 v%d, 0xff800000
s_mov_b32 s42, 0
L_s1%s:
buffer_load_dwordx4 %s, v%d, s[8:11], s42 offen sc1
s_waitcnt vmcnt(0)
%s
s_nop 15''' % (t, MX, t, vr(KS, 4), KA, mfma(SS, KS, Q[1], None)))
        for j in range(8):
            a('v_max3_f32 v%d, v%d, v%d, v%d' % (MX, MX, SS + 2 * j, SS + 2 * j + 1))
        a('''s_add_u32 s42, s42, 1024
s_cmp_lt_u32 s42, 0x10000
s_cbranch_scc1 L_s1%s
v_mov_b32 v%d, v%d
s_nop 1
v_permlane32_swap_b32 v%d, v%d
s_nop 1
v_max_f32 v%d, v%d, v%d''' % (t, MX + 1, MX, MX, MX + 1, MX, MX, MX + 1))
        for j in range(16):
            a('v_sub_f32 v%d, 0, v%d' % (M + j, MX))
            a('v_mov_b32 v%d, 0' % (OS + j))
        a('''s_mov_b32 s42, 0
L_s2%s:
buffer_load_dwordx4 %s, v%d, s[8:11], s42 offen sc1
s_mov_b64 exec, s[40:41]
buffer_load_dwordx4 %s, v%d, s[8:11], s42 offen sc1
buffer_load_dwordx4 %s, v%d, s[8:11], s42 offen offset:512 sc1
s_mov_b64 exec, -1
s_waitcnt vmcnt(0)
%s
s_nop 15''' % (t, vr(KS, 4), KA, vr(V[0][0], 4), VA, vr(V[0][1], 4), VA, mfma(SS, KS, Q[1], M)))
        for j in range(16):
            a('v_exp_f32 v%d, v%d' % (SS + j, SS + j))
        a('s_nop 0')
        for j in range(8):
            a('v_cvt_pk_bf16_f32 v%d, v%d, v%d' % (PS + j, SS + 2 * j, SS + 2 * j + 1))
        a('s_nop 1')
        a(mfma(OS, V[0][0], PS, OS))
        a(mfma(OS, V[0][1], PS + 4, OS))
        a('''s_add_u32 s42, s42, 1024
s_cmp_lt_u32 s42, 0x10000
s_cbranch_scc1 L_s2%s
s_nop 15''' % t)
        a('''v_rcp_f32 v48, v88
s_nop 0
s_branch L_fin''')
    a('''L_end:
s_endpgm''')
    return a.text()


def main(path):
    KN = NAME + '_kernel'
    t = kernel()
    hdr = '''; @launch grid=(256,1,1) block=(768,1,1) lds=%d
; One launch, one workgroup of 12 waves per CU (256 workgroups, all resident; surplus workgroups exit at once).
; Workgroup = (64-token block tb, quad of heads hq) for the attention branch and 2 channels for the S4 branch.
;  phase 1  waves 4-7 stream x / wqkv tiles into an LDS ring, waves 8-11 compute the K, V, Q tiles (MFMA);
;           K and V go to the workspace in MFMA fragment order, Q stays in LDS. Waves 0-3 build the S4 kernel
;           K[l] = Re sum_n C_n dB_n exp(dt A_n lq(l)) (lq = position rounded to bf16, as in the reference) as a
;           product of two power tables on the matrix core; Dskip is added to K[0]. A tile of u is transposed.
;  phase 2  waves 4-11: softmax(QK^T)V, exp2 of the scaled scores without a shift, row sums from a ones row of V.
;           A run-time check (row sum inside [2^-64, 2^64] and finite outputs) sends a tile to L_slow, which redoes
;           it with the exact row maximum. Waves 0-3: causal convolution as Toeplitz MFMAs, transposition of y.
;  phase 3  waves 4-7: output projection of the (tb, 64-column) tile.
; Hand-offs between workgroups: write-through stores, drained, then a flag word carrying this launch's tag
; (a clock value that workgroup 0 puts into the zeroed debug buffer); attention outputs replace a marker that
; their producer wrote (and announced) earlier, so readers recognise every dword. All waits are bounded;
; s_sleep only backs off inside these waits.
.amdgcn_target "amdgcn-amd-amdhsa--gfx950"
.text
.globl %s
''' % (LDS_BYTES, KN)
    pad = '; never executed: keeps the 32 KB window of the code prefetch inside the code section\n.p2align 8\n.fill 1024, 4, 0xbf800000\n'
    kd = '''.section .rodata,"a"
.p2align 6
.amdhsa_kernel %s
  .amdhsa_next_free_vgpr 168
  .amdhsa_next_free_sgpr 102
  .amdhsa_accum_offset 168
  .amdhsa_group_segment_fixed_size 0
  .amdhsa_kernarg_size 120
  .amdhsa_user_sgpr_count 2
  .amdhsa_user_sgpr_kernarg_segment_ptr 1
  .amdhsa_system_sgpr_workgroup_id_x 1
.end_amdhsa_kernel
''' % KN
    open(path, 'w').write(hdr + t + pad + kd)


if __name__ == '__main__':
    for arg in sys.argv[1:]:
        OPT.add(arg)
        if '=' in arg:
            OPTV[arg.split('=')[0]] = arg.split('=')[1]
    DIAG = 'diag' in OPT
    main(sys.argv[1] if len(sys.argv) > 1 else 'cdna_kernels/%s.s' % NAME)
```

```python
import sys
import struct

NAME = 'concat_heads__ssm_conv_s4__softmax_full_mha__prompt'

KF = 0x200000
VF = 0x400000
OF = 0x600000
RS = 4224
UT = 0x800000
YT = 0x1400000
FL1 = 0xC40000
FLU = 0xC04000
FL2 = 0xC08000
FL3 = 0xC10000
WS_BYTES = 0x2000000

GEN = 6 * 16384
LDS_BYTES = GEN + 65536
QX = 65536
USI = 74752
USO = 82944
OX = 65536
YI = 73728
CNT = 94208
C_TAG, C_KV, C_GO, C_PAIR, C_CONV, C_O, C_Y, C_GOU, C_GOY, C_Y2, C_X = 0, 4, 8, 80, 24, 16, 32, 36, 40, 44, 48
C_U, C_P3, C_O1, C_Q, C_W, C_UL, C_T = 12, 96, 20, 116, 120, 92, 88
KCOPY = 4096
ZOFF = 640
UIMG = 9216

LOG2E = 1.4426950408889634
QSCALE = 0.25 * LOG2E
OPT = set()
OPTV = {}
DIAG = False
DIAG_BASE = 0xF00000
ST0 = 70
SPIN_MAX = 1 << 19
ROWS = {0: [0, 1, 2, 3, 4, 5, 6, 7, 8, 1024, 1032, 1280, 1288, 1536, 1544, None],
        1: [256, 258, 260, 262, 264, 512, 516, 520, 768, 772, 776, 1792, 1800, None, None, None]}


def f2u(x):
    return struct.unpack('<I', struct.pack('<f', x))[0]


class A:
    def __init__(self):
        self.L = []

    def __call__(self, s):
        for line in s.split('\n'):
            line = line.strip()
            if not line:
                continue
            if line.endswith(':') or line.startswith('.'):
                self.L.append(line)
            else:
                self.L.append('    ' + line)

    def text(self):
        return '\n'.join(self.L) + '\n'


def vr(a, n=1):
    return 'v%d' % a if n == 1 else 'v[%d:%d]' % (a, a + n - 1)


def sr(a, n=1):
    return 's%d' % a if n == 1 else 's[%d:%d]' % (a, a + n - 1)


def srd(a, dst, base, nbytes):
    a('s_mov_b32 s%d, s%d' % (dst, base))
    a('s_mov_b32 s%d, s%d' % (dst + 1, base + 1))
    a('s_mov_b32 s%d, 0x%x' % (dst + 2, nbytes))
    a('s_mov_b32 s%d, 0x00020000' % (dst + 3))


def mfma(d, x, y, c):
    cs = '0' if c is None else vr(c, 16)
    return 'v_mfma_f32_32x32x16_bf16 %s, %s, %s, %s' % (vr(d, 16), vr(x, 4), vr(y, 4), cs)


def cmul_many(a, items):
    for d, x, y in items:
        a('v_mul_f32 v%d, v%d, v%d' % (d, x, y))
        a('v_mul_f32 v%d, v%d, v%d' % (d + 1, x + 1, y))
    for d, x, y in items:
        a('v_fma_f32 v%d, -v%d, v%d, v%d' % (d, x + 1, y + 1, d))
        a('v_fmac_f32 v%d, v%d, v%d' % (d + 1, x, y + 1))


def stamp(a, i, real=False):
    if DIAG and ('se' not in OPT or i in (0, 13) or str(i) in OPTV.get('only', '').split(',')):
        a('%s s[%d:%d]' % ('s_memrealtime' if real or 'rt' in OPT else 's_memtime', ST0 + 2 * i, ST0 + 2 * i + 1))


def stamp_dump(a, n=14):
    if DIAG:
        a('s_waitcnt vmcnt(0)')
        stamp(a, 13, True)
        a('s_waitcnt lgkmcnt(0)')
        a('s_lshl_b32 s68, s2, 4')
        a('s_add_u32 s68, s68, s3')
        a('s_lshl_b32 s68, s68, 6')
        a('s_add_u32 s68, s68, %d' % DIAG_BASE)
        a('v_mov_b32 v1, 0')
        a('s_mov_b64 exec, 1')
        for i in range(n):
            a('v_mov_b32 v2, s%d' % (ST0 + 2 * i))
            a('buffer_store_dword v2, v1, s[8:11], s68 offen offset:%d' % (4 * i))
        a('s_mov_b64 exec, -1')


def jitter(a, k):
    if 'jit' in OPTV:
        l = label('jt')
        a('''s_mul_i32 s69, s2, %d
s_add_u32 s69, s69, s3
s_mul_i32 s69, s69, %d
s_lshr_b32 s69, s69, 7
s_and_b32 s69, s69, 3
s_cmp_lg_u32 s69, 0
s_cbranch_scc1 %s
s_sleep %s
%s:''' % (13 + 2 * k, 0x9e37 + 64 * k + int(OPTV.get('js', 0)), l, OPTV['jit'], l))


_lab = [0]


def label(p):
    _lab[0] += 1
    return 'L_%s%d' % (p, _lab[0])


def lds_spin(a, va, vt, off, thr, st=66, nap=1):
    l, e = label('sp'), label('se')
    a('''s_mov_b32 s%d, 0
%s:
ds_read_b32 v%d, v%d offset:%d
s_add_u32 s%d, s%d, 1
s_waitcnt lgkmcnt(0)
v_readfirstlane_b32 s%d, v%d
s_cmp_ge_u32 s%d, %d
s_cbranch_scc1 %s
s_cmp_ge_u32 s%d, %d
s_cbranch_scc1 %s
s_sleep %d
s_branch %s
%s:''' % (st, l, vt, va, off, st, st, st + 1, vt, st, SPIN_MAX, e, st + 1, thr, e, nap, l, e))


def lds_add(a, va, vt, off):
    a('''v_mov_b32 v%d, 1
s_mov_b64 exec, 1
ds_add_u32 v%d, v%d offset:%d
s_mov_b64 exec, -1''' % (vt, va, vt, off))


def arrive_publish(a, va, vt, off, nwaves, sflag, vz, copies=False):
    e = label('np')
    a('''v_mov_b32 v%d, 1
s_mov_b64 exec, 1
ds_add_rtn_u32 v%d, v%d, v%d offset:%d
v_mov_b32 v%d, 0
s_waitcnt lgkmcnt(0)
v_readfirstlane_b32 s66, v%d
v_mov_b32 v%d, s7
s_cmp_eq_u32 s66, %d
s_cbranch_scc0 %s
%sbuffer_store_dword v%d, v%d, s[8:11], s%d offen sc1
%s:
s_mov_b64 exec, -1''' % (vt, vt, va, vt, off, vz, vt, vt, nwaves - 1, e,
                         's_mov_b64 exec, 15\nv_mbcnt_lo_u32_b32 v%d, -1, 0\nv_mov_b32 v%d, s7\nv_lshlrev_b32 v%d, 14, v%d\n' % (vz, vt, vz, vz) if copies else '',
                         vt, vz, sflag, e))


def flag_poll(a, voff, vt, vt2, sbase):
    l, e = label('fp'), label('fe')
    ld = 'buffer_load_dword v%d, v%d, s[8:11], s%d offen sc1'
    a('''s_mov_b32 s66, 0
%s
s_sleep 4
%s:
%s
s_waitcnt vmcnt(1)
v_cmp_eq_u32 vcc, s7, v%d
s_add_u32 s66, s66, 1
s_cmp_eq_u64 vcc, -1
s_cbranch_scc1 %s
s_sleep 2
%s
s_waitcnt vmcnt(1)
v_cmp_eq_u32 vcc, s7, v%d
s_cmp_ge_u32 s66, %d
s_cbranch_scc1 %s
s_cmp_eq_u64 vcc, -1
s_cbranch_scc0 %s
%s:''' % (ld % (vt, voff, sbase), l, ld % (vt2, voff, sbase), vt, e, ld % (vt, voff, sbase), vt2, SPIN_MAX, e, l, e))


def flag_poll_lazy(a, voff, vt, sbase, nap, first=False):
    l, e, t = label('fp'), label('fe'), label('ft')
    a('s_mov_b32 s66, 0')
    if not first:
        a('s_branch %s' % t)
    a('''%s:
s_sleep %d
%s:
buffer_load_dword v%d, v%d, s[8:11], s%d offen sc1
s_add_u32 s66, s66, 1
s_waitcnt vmcnt(0)
v_cmp_eq_u32 vcc, s7, v%d
s_cmp_ge_u32 s66, %d
s_cbranch_scc1 %s
s_cmp_eq_u64 vcc, -1
s_cbranch_scc0 %s
%s:''' % (l, nap, t, vt, voff, sbase, vt, SPIN_MAX, e, l, e))


def tag_check(a, vt, vz, srd0):
    l, e = label('tp'), label('te')
    a('''s_mov_b32 s66, 0
%s:
v_readfirstlane_b32 s7, v%d
s_add_u32 s66, s66, 1
s_cmp_lg_u32 s7, 0
s_cbranch_scc1 %s
s_cmp_ge_u32 s66, %d
s_cbranch_scc1 %s
buffer_load_dword v%d, v%d, s[%d:%d], 0 offen sc1
s_waitcnt vmcnt(0)
s_branch %s
%s:''' % (l, vt, e, SPIN_MAX, e, vt, vz, srd0, srd0 + 3, l, e))


def kgen_stream():
    a = A()
    P = 20
    for i in range(8):
        a('v_lshlrev_b32 %s, 16, %s' % (vr(P + i), vr(P + i)))
    Are, Aim, Bre, Bim, Cre, Cim, LDT, DSK = range(P, P + 8)
    a('v_mul_f32 v%d, s51, v%d' % (LDT, LDT))
    a('v_exp_f32 v%d, v%d' % (LDT, LDT))
    a('s_nop 0')
    a('v_cvt_pk_bf16_f32 v%d, v%d, v%d' % (LDT, LDT, LDT))
    a('v_lshlrev_b32 v%d, 16, v%d' % (LDT, LDT))
    a('v_mul_f32 v%d, v%d, v%d' % (Are, LDT, Are))
    a('v_mul_f32 v%d, v%d, v%d' % (Aim, LDT, Aim))
    a('v_mul_f32 v%d, v%d, v%d' % (Bre, LDT, Bre))
    a('v_mul_f32 v%d, v%d, v%d' % (Bim, LDT, Bim))
    a('v_mul_f32 v%d, s51, v%d' % (Are, Are))
    a('v_mul_f32 v%d, 0.15915494, v%d' % (Aim, Aim))
    G = [32 + 2 * i for i in range(32)]
    W = [96 + 2 * i for i in range(9)]
    Z1, Z2, Z4, Z32 = 114, 116, 118, 120
    ZB = {256: 122, 512: 124, 768: 126, 1024: 128, 1280: 130, 1536: 132, 1792: 134}
    T0, PK, AD = 136, 146, 154
    R = {}
    nxt = 32
    for h in (0, 1):
        for e in ROWS[h]:
            if e is None:
                continue
            if e <= 8:
                R[e] = W[e]
            else:
                R[e] = nxt
                nxt += 2
    cmul_many(a, [(W[0], Cre, Bre)])
    direct = [(Z1, 1.0), (G[1], 8.0), (Z32, 32.0), (ZB[256], 256.0), (ZB[1024], 1024.0)]
    for i, (z, e) in enumerate(direct):
        a('v_mul_f32 v%d, 0x%x, v%d' % (T0 + 2 * i, f2u(e), Are))
        a('v_mul_f32 v%d, 0x%x, v%d' % (T0 + 2 * i + 1, f2u(e), Aim))
    for i, (z, e) in enumerate(direct):
        a('v_exp_f32 v%d, v%d' % (T0 + 2 * i, T0 + 2 * i))
        a('v_fract_f32 v%d, v%d' % (T0 + 2 * i + 1, T0 + 2 * i + 1))
    for i, (z, e) in enumerate(direct):
        a('v_cos_f32 v%d, v%d' % (z, T0 + 2 * i + 1))
        a('v_sin_f32 v%d, v%d' % (z + 1, T0 + 2 * i + 1))
    a('v_mov_b32 v%d, 1.0' % G[0])
    a('v_mov_b32 v%d, 0' % (G[0] + 1))
    for i, (z, e) in enumerate(direct):
        a('v_mul_f32 v%d, v%d, v%d' % (z, z, T0 + 2 * i))
        a('v_mul_f32 v%d, v%d, v%d' % (z + 1, z + 1, T0 + 2 * i))
    cmul_many(a, [(G[2], G[1], G[1]), (Z2, Z1, Z1), (W[1], W[0], Z1), (W[8], W[0], G[1]), (ZB[512], ZB[256], ZB[256]),
                  (ZB[1280], ZB[1024], ZB[256]), (G[5], G[1], Z32)])
    a('v_mov_b32 v%d, v%d' % (G[4], Z32))
    a('v_mov_b32 v%d, v%d' % (G[4] + 1, Z32 + 1))
    cmul_many(a, [(G[3], G[2], G[1]), (Z4, Z2, Z2), (W[2], W[0], Z2), (W[3], W[1], Z2), (ZB[768], ZB[512], ZB[256]),
                  (ZB[1536], ZB[1024], ZB[512]), (G[6], G[2], Z32)])
    cmul_many(a, [(G[7], G[3], Z32), (W[4], W[0], Z4), (W[5], W[1], Z4), (W[6], W[2], Z4), (W[7], W[3], Z4),
                  (ZB[1792], ZB[1024], ZB[768])])
    for i0 in range(8, 32, 4):
        cmul_many(a, [(G[i], G[i - 4], Z32) for i in range(i0, i0 + 4)])
    rowidx = [None] * 32
    for h in (0, 1):
        for r in range(16):
            rowidx[8 * (r >> 2) + 4 * h + (r & 3)] = ROWS[h][r]
    PG = [136 + 4 * c for c in range(8)]
    PR = [70, 74, 78, 82, 86, 90, 114, 118]
    AD = 32

    def packc(dst, regs, neg):
        for j in range(4):
            a('v_cvt_pk_bf16_f32 v%d, %sv%d, %sv%d' % (dst + j, neg, regs[2 * j], neg, regs[2 * j + 1]))

    for c in range(8):
        packc(PG[c], [G[8 * (c & 3) + j] + (c >> 2) for j in range(8)], '')
    big = [e for e in R if e > 8]
    items = [(R[e], W[e & 255], ZB[e & ~255]) for e in big]
    for i0 in range(0, len(items), 5):
        cmul_many(a, items[i0:i0 + 5])
    for c in range(8):
        comp = c >> 2
        packc(PR[c], [(R[e] if e is not None else W[0]) + comp for e in rowidx[8 * (c & 3):8 * (c & 3) + 8]], '-' if comp else '')
    for c in range(8):
        a('v_xor_b32 v%d, %d, v13' % (AD + c, c << 4))
    nvalu = len(a.L)
    for c in range(8):
        a('ds_write_b128 v%d, %s' % (AD + c, vr(PG[c], 4)))
        a('ds_write_b128 v%d, %s offset:8192' % (AD + c, vr(PR[c], 4)))
    a('s_waitcnt lgkmcnt(0)')
    KD, FR, NB = 32, 48, 4

    def gen_reads(s):
        off = s * 1024
        b = FR + 8 * (s % NB)
        a('ds_read_b64_tr_b16 %s, v14 offset:%d' % (vr(b, 2), off + 8192))
        a('ds_read_b64_tr_b16 %s, v15 offset:%d' % (vr(b + 2, 2), off + 8192))
        a('ds_read_b64_tr_b16 %s, v14 offset:%d' % (vr(b + 4, 2), off))
        a('ds_read_b64_tr_b16 %s, v15 offset:%d' % (vr(b + 6, 2), off))

    for s in range(3):
        gen_reads(s)
    for s in range(8):
        if s + 3 < 8:
            gen_reads(s + 3)
        a('s_waitcnt lgkmcnt(%d)' % (4 * min(3, 7 - s)))
        b = FR + 8 * (s % NB)
        a(mfma(KD, b, b + 4, None if s == 0 else KD))
    a('s_nop 15')
    for j in range(4):
        a('ds_write_b128 v16, %s offset:%d' % (vr(KD + 4 * j, 4), 1024 * j))
    a('s_waitcnt lgkmcnt(0)')
    return a.L, nvalu


def transpose_addrs(a, sw, vrd, vwr, vlin, t0, t1, usi, uso):
    a('''v_lshrrev_b32 v{t0}, 4, v4
v_bfe_u32 v{t1}, v4, 2, 2
v_lshl_add_u32 v{t1}, v{t0}, 3, v{t1}
v_lshlrev_b32 v{rd}, 7, v{t1}
v_and_b32 v{t1}, 3, v4
v_lshl_add_u32 v{rd}, v{t1}, 3, v{rd}
s_lshl_b32 s66, s{w}, 5
s_add_u32 s66, s66, {usi}
v_add_u32 v{rd}, s66, v{rd}
v_and_b32 v{t1}, 7, v4
v_xor_b32 v{t0}, v{t0}, v{t1}
v_lshlrev_b32 v{t0}, 4, v{t0}
v_and_b32 v{t1}, 15, v4
v_lshl_add_u32 v{wr}, v{t1}, 7, v{t0}
s_lshl_b32 s66, s{w}, 11
s_add_u32 s66, s66, {uso}
v_add_u32 v{wr}, s66, v{wr}
v_lshl_add_u32 v{lin}, v4, 4, s66
v_lshrrev_b32 v{t0}, 3, v4
v_and_b32 v{t1}, 7, v4
v_xor_b32 v{t1}, v{t1}, v{t0}'''.format(t0=t0, t1=t1, rd=vrd, wr=vwr, lin=vlin, w=sw, usi=usi, uso=uso))


def transpose_a(a, vrd, vwr, d, t):
    a('''ds_read_b64_tr_b16 v[{d0}:{d1}], v{rd}
ds_read_b64_tr_b16 v[{d2}:{d3}], v{rd} offset:512
ds_read_b64_tr_b16 v[{d4}:{d5}], v{rd} offset:4096
ds_read_b64_tr_b16 v[{d6}:{d7}], v{rd} offset:4608
v_xor_b32 v{t}, 64, v{wr}
s_waitcnt lgkmcnt(2)
ds_write_b128 v{wr}, v[{d0}:{d3}]
s_waitcnt lgkmcnt(1)
ds_write_b128 v{t}, v[{d4}:{d7}]
s_waitcnt lgkmcnt(0)'''.format(rd=vrd, wr=vwr, t=t, **{'d%d' % i: d + i for i in range(8)}))


def kernel():
    a = A()
    KN = NAME + '_kernel'
    a('''.p2align 8
.type {k},@function
{k}:
s_cmp_ge_u32 s2, 256
s_cbranch_scc1 L_end
s_load_dwordx16 s[16:31], s[0:1], 8
s_load_dwordx4 s[32:35], s[0:1], 72
s_load_dwordx4 s[36:39], s[0:1], 104'''.format(k=KN))
    stamp(a, 0, True)
    stamp(a, 1)
    if 'enc' in OPTV:
        a('s_memrealtime s[90:91]')
    a('''v_lshrrev_b32 v3, 6, v0
v_and_b32 v4, 63, v0
s_and_b32 s44, s2, 7
s_lshr_b32 s45, s2, 3
v_readfirstlane_b32 s3, v3
s_lshl_b32 s60, s44, 6
s_lshl_b32 s46, s45, 1
s_add_u32 s60, s60, s46
s_lshl_b32 s46, s60, 8
v_lshl_add_u32 v5, v0, 1, s46
s_lshr_b32 s4, s44, 1
s_lshl_b32 s4, s4, 3
s_and_b32 s46, s45, 7
s_add_u32 s4, s4, s46
s_and_b32 s5, s44, 1
s_lshl_b32 s5, s5, 2
s_lshr_b32 s47, s45, 3
s_add_u32 s5, s5, s47
s_lshl_b32 s47, s47, 1
%s
s_cmp_ge_u32 s3, 4
s_cbranch_scc1 L_gemm''' % {'0': 's_mov_b32 s6, 0', '1': 's_add_u32 s6, s46, s47', '2': 's_and_b32 s6, s46, 4', '3': 's_and_b32 s6, s46, 6'}[OPTV.get('rot', '1')])
    SEG = (1, 2, 0)
    S = [16, 32]
    Pp = [48, 56]
    O = [64, 80]
    Q = [96, 100]
    OWN = 'own' in OPT
    DK = int(OPTV.get('dk', 3))
    NB, NBV = DK + 1, DK + 1 if DK == 3 else DK
    K = [104 + 4 * b for b in range(NB)]
    V0 = 104 + 4 * NB
    V = [[V0 + 8 * b, V0 + 4 + 8 * b] for b in range(NBV)]
    KA, VA = 14, 15
    assert V0 + 8 * NBV <= 160

    WOW = OPTV.get('wow', 'mid')

    def wo_dma():
        srd(a, 12, 32, 512 * 1024)
        a('''v_lshrrev_b32 v6, 3, v4
v_lshlrev_b32 v6, 10, v6
v_bfe_u32 v7, v4, 4, 1
v_lshlrev_b32 v7, 2, v7
v_and_b32 v8, 7, v4
v_xor_b32 v7, v7, v8
v_lshl_add_u32 v6, v7, 4, v6
v_add_u32 v7, %d, v6
s_lshl_b32 s57, s48, 10
s_lshl_b32 s26, s49, 14
s_add_u32 s57, s57, s26
s_lshl_b32 s26, s5, 7
s_lshl_b32 s27, s48, 13
s_add_u32 s26, s26, s27''' % (16384 - 2048))
        for cc in range(4):
            a('s_add_u32 s38, s51, %d' % cc)
            a('s_and_b32 s38, s38, 7')
            a('s_lshl_b32 s30, s38, 16')
            for g in range(2):
                a('s_add_u32 m0, s57, %d' % (g * 32768 + cc * 4096))
                a('s_add_u32 s30, s30, s26' if g == 0 else 's_add_u32 s30, s30, 0x8000')
                a('buffer_load_dwordx4 v6, s[12:15], s30 offen lds')
                a('buffer_load_dwordx4 v7, s[12:15], s30 offen offset:2048 lds')

    def att_prologue(early):
        a('''s_lshr_b32 s19, s3, 3
s_and_b32 s18, s3, 1
s_lshl_b32 s24, s19, 1
s_add_u32 s18, s18, s24
s_bfe_u32 s24, s3, 0x10001
v_lshlrev_b32 v5, 4, v4
s_lshl_b32 s26, s18, 10
s_add_u32 s26, s26, %d
s_lshl_b32 s27, s24, 12
s_add_u32 s26, s26, s27
v_add_u32 v13, s26, v5
s_lshl_b32 s27, s5, 2
s_add_u32 s18, s18, s27
s_lshl_b32 s22, s18, 16
s_add_u32 s27, s22, %d
v_add_u32 v%d, s27, v5
s_lshl_b32 s36, s24, 10
%s
s_mov_b32 s37, s36
v_lshrrev_b32 v6, 5, v4
v_and_b32 v7, 15, v4
v_lshlrev_b32 v7, 4, v7
v_lshl_add_u32 v7, v6, 8, v7
s_add_u32 s27, s22, %d
v_add_u32 v%d, s27, v7
v_and_b32 v6, 31, v4
v_cmp_eq_u32 vcc, 16, v6
v_cmp_eq_u32 s[28:29], 20, v6
s_mov_b32 s30, 0x3f803f80
s_or_b64 vcc, vcc, s[28:29]
v_mov_b32 v7, s30
s_mov_b32 s40, 0xffff
s_mov_b32 s41, 0xffff
v_cndmask_b32 v6, 0, v7, vcc''' % (QX, KF, KA, 's_lshl_b32 s37, s4, 11\ns_add_u32 s36, s36, s37' if OWN else '', VF, VA))
        for b in range(NBV):
            for u in range(2):
                for j in range(4):
                    a('v_mov_b32 v%d, v6' % (V[b][u] + j))
        for q in range(2):
            for j in range(16):
                a('v_mov_b32 v%d, 0' % (O[q] + j))

        if early:
            a('''s_and_b32 s48, s3, 1
s_bfe_u32 s49, s3, 0x10001
v_lshrrev_b32 v8, 5, v4
v_bfe_u32 v160, v4, 2, 2
v_lshl_add_u32 v160, v8, 2, v160
v_lshlrev_b32 v160, 7, v160
v_bfe_u32 v9, v4, 3, 1
v_lshl_add_u32 v160, v9, 6, v160
v_and_b32 v9, 1, v4
v_lshl_add_u32 v160, v9, 5, v160
v_bfe_u32 v9, v4, 4, 1
v_lshl_add_u32 v160, v9, 4, v160
v_bfe_u32 v9, v4, 1, 1
v_lshl_add_u32 v160, v9, 3, v160
s_lshl_b32 s26, s49, 14
v_add_u32 v161, s26, v160
s_lshl_b32 s26, s49, 6
v_xor_b32 v161, s26, v161
v_xor_b32 v160, 64, v161
v_and_b32 v162, 31, v4
v_lshlrev_b32 v162, 11, v162
v_lshl_add_u32 v162, v8, 5, v162
s_lshl_b32 s26, s4, 17
s_lshl_b32 s50, s48, 16
s_add_u32 s26, s26, s50
s_lshl_b32 s27, s5, 7
s_add_u32 s26, s26, s27
s_lshl_b32 s50, s49, 6
s_add_u32 s50, s50, s26
s_add_u32 s50, s50, 1024
s_lshl_b32 s51, s49, 2
s_add_u32 s51, s51, s5
v_and_b32 v163, 3, v4
v_add_u32 v163, s51, v163
v_and_b32 v163, 7, v163
v_lshlrev_b32 v163, 7, v163
s_lshl_b32 s52, s4, 10
s_add_u32 s52, s52, %d
s_lshl_b32 s53, s4, 16
s_lshl_b32 s26, s48, 15
s_add_u32 s53, s53, s26
s_add_u32 s53, s53, %d
s_sub_u32 s26, s3, 4
s_lshl_b32 s27, s26, 12
s_add_u32 s27, s27, %d
v_add_u32 v164, s27, v5
v_xor_b32 v165, 0x2000, v164
s_lshl_b32 s26, s26, 2
v_add_u32 v166, s26, v12
v_xor_b32 v167, 8, v166''' % (FL2, OF, GEN))
        else:
            a('v_mov_b32 v163, 0')
            a('s_mov_b32 s52, %d' % FL2)
        a('''s_lshl_b32 s54, s4, 1
s_add_u32 s54, s54, s24
s_lshl_b32 s54, s54, 15
s_lshl_b32 s26, s18, 10
s_add_u32 s54, s54, s26
s_add_u32 s54, s54, %d
v_mov_b32 v8, -1
v_mov_b32 v9, -1
v_mov_b32 v10, -1
v_mov_b32 v11, -1
s_lshl_b32 s55, s4, 3
s_add_u32 s55, s55, s5
s_lshl_b32 s55, s55, 7
s_add_u32 s55, s55, %d
buffer_store_dwordx4 v[8:11], v5, s[8:11], s54 offen sc1''' % (OF, FL2))


    a('''s_lshr_b32 s61, s3, 1
s_add_u32 s52, s60, s61
s_lshl_b32 s46, s52, 1
v_mov_b32 v19, s46
s_and_b32 s53, s3, 1
s_waitcnt lgkmcnt(0)''')
    P = 20
    a('global_load_ushort %s, v19, s[28:29]' % vr(P + 6))
    for i in range(6):
        a('global_load_ushort %s, v5, %s' % (vr(P + i), sr(16 + 2 * i, 2)))
    a('global_load_ushort %s, v19, s[30:31]' % vr(P + 7))
    a('''s_getpc_b64 s[40:41]
v_and_b32 v1, 7, v0
v_lshlrev_b32 v1, 7, v1
s_lshl_b32 s46, s45, 10
v_add_u32 v1, s46, v1
global_load_dword v2, v1, s[40:41]''')
    a('s_branch L_gen2')

    a('''L_gemm:
s_cmp_ge_u32 s3, 8
s_cbranch_scc1 L_mm
s_setprio 2
s_sub_u32 s61, s3, 4
v_lshrrev_b32 v10, 3, v4
v_lshrrev_b32 v11, 4, v4
v_and_b32 v12, 7, v4
v_xor_b32 v13, v12, v11
s_lshl_b32 s47, s61, 4
v_add_u32 v10, s47, v10
s_lshl_b32 s46, s4, 16
v_lshl_add_u32 v14, v10, 10, s46
v_lshl_add_u32 v6, v13, 4, v14
v_xor_b32 v7, 64, v6
v_add_u32 v7, 0x1c00, v7
v_lshlrev_b32 v16, 10, v10
v_lshl_add_u32 v16, v12, 4, v16
v_mul_u32_u24 v10, 3072, v10
v_and_b32 v11, 1, v11
v_lshlrev_b32 v11, 2, v11
v_xor_b32 v12, v12, v11
v_lshl_add_u32 v8, v12, 4, v10
s_lshl_b32 s46, s5, 7
v_add_u32 v8, s46, v8
v_add_u32 v9, %d, v8
s_lshl_b32 s48, s61, 11
s_waitcnt lgkmcnt(0)''' % (8 * 3072 - 1024))
    srd(a, 16, 32, 2048 * 1024)
    srd(a, 12, 34, 512 * 3072)

    def dma_chunk(c):
        slot = (c % 6) * 16384
        if c < 8:
            a('s_add_u32 s50, s6, %d' % c)
            a('s_and_b32 s50, s50, 7')
            a('s_mul_i32 s49, s50, %d' % (64 * 3072))
            a('s_add_u32 m0, s48, %d' % slot)
            a('s_lshl_b32 s50, s50, 7')
            a('buffer_load_dwordx4 v6, s[16:19], s50 offen lds')
            a('buffer_load_dwordx4 v7, s[16:19], s50 offen offset:1024 lds')
            a('s_add_u32 m0, s48, %d' % (slot + 8192))
            a('s_add_u32 s49, s49, %d' % (SEG[0] * 1024))
            a('buffer_load_dwordx4 v8, s[12:15], s49 offen lds')
            a('buffer_load_dwordx4 v9, s[12:15], s49 offen offset:1024 lds')
        else:
            p, j = 1 + ((c - 8) >> 2), (c - 8) & 3
            for hf in range(2):
                a('s_add_u32 s50, s6, %d' % (2 * j + hf))
                a('s_and_b32 s50, s50, 7')
                a('s_mul_i32 s49, s50, %d' % (64 * 3072))
                a('s_add_u32 m0, s48, %d' % (slot + hf * 8192))
                a('s_add_u32 s49, s49, %d' % (SEG[p] * 1024))
                a('buffer_load_dwordx4 v8, s[12:15], s49 offen lds')
                a('buffer_load_dwordx4 v9, s[12:15], s49 offen offset:1024 lds')

    dma_chunk(0)
    dma_chunk(1)
    a('s_load_dwordx2 s[20:21], s[0:1], 0')
    srd(a, 8, 38, WS_BYTES)
    a('''s_lshl_b32 s46, s45, 16
s_lshl_b32 s47, s44, 7
s_add_u32 s58, s46, s47
s_add_u32 s59, s48, %d
v_add_u32 v17, 0x1c00, v16
v_mov_b32 v12, %d
s_waitcnt lgkmcnt(0)''' % (USI, CNT))
    srd(a, 60, 20, 2048 * 1024)
    jitter(a, 7)
    order = [0, 1]
    cnt = lambda x: 4 if isinstance(x, int) else x[1]
    stamp(a, 2)
    for c in range(16):
        a('s_waitcnt vmcnt(%d)' % sum(cnt(x) for x in order[order.index(c) + 1:]))
        if c in (0, 8, 12):
            stamp(a, {0: 3, 8: 4, 12: 5}[c])
        a('s_barrier')
        if 'bars' in OPT and c <= 12 and c != 1:
            n = 1 + c - (c > 1)
            a('s_memrealtime s[%d:%d]' % (ST0 + 2 * n, ST0 + 2 * n + 1))
        for n in {0: [2, 3], 1: [4, 5]}.get(c, [c + 4] if c + 4 < 16 else []):
            dma_chunk(n)
            order.append(n)
        if c == int(OPTV.get('wpo', 11)) and WOW == 'win':
            a('''s_load_dwordx2 s[32:33], s[0:1], 88
v_and_b32 v26, 15, v4
v_lshlrev_b32 v26, 10, v26
s_and_b32 s46, s4, 7
s_lshl_b32 s46, s46, 16
s_lshl_b32 s47, s5, 7
s_add_u32 s46, s46, s47
s_lshl_b32 s47, s48, 3
s_add_u32 s46, s46, s47
v_add_u32 v26, s46, v26
s_waitcnt lgkmcnt(0)
global_load_dword v27, v26, s[32:33]''')
            order.append(('w', 1))
        if c == 12:
            att_prologue(True)
            order.append(('m', 1))
        if c == 13:
            a('s_mov_b32 m0, s59')
            a('s_nop 0')
            a('buffer_load_dwordx4 v16, s[60:63], s58 offen lds')
            a('buffer_load_dwordx4 v17, s[60:63], s58 offen offset:1024 lds')
            order.append(('u', 2))
    a('''s_load_dwordx2 s[32:33], s[0:1], 88
s_waitcnt lgkmcnt(0)
s_barrier
ds_read_b32 v1, v12 offset:%d
s_waitcnt lgkmcnt(0)
v_readfirstlane_b32 s7, v1
s_waitcnt vmcnt(0)''' % C_TAG)
    lds_add(a, 12, 3, C_UL)
    a('s_branch L_att')

    a('L_gen2:')
    srd(a, 8, 38, WS_BYTES)
    srd(a, 12, 36, 256)
    a('''v_mov_b32 v18, 0
s_or_b32 s46, s2, s3
s_cmp_eq_u32 s46, 0
s_cbranch_scc0 L_notag
s_memrealtime s[46:47]
s_waitcnt lgkmcnt(0)
s_or_b32 s46, s46, 1
v_mov_b32 v1, s46
s_mov_b64 exec, 1
buffer_store_dword v1, v18, s[12:15], 0 offen sc1
s_mov_b64 exec, -1
s_waitcnt vmcnt(0)
L_notag:''')
    a('''s_lshl_b32 s62, s3, 14
s_add_u32 s62, s62, %d
v_and_b32 v10, 7, v4
v_lshlrev_b32 v10, 4, v10
v_lshl_add_u32 v13, v4, 7, v10
v_add_u32 v13, s62, v13
v_lshrrev_b32 v10, 5, v4
v_bfe_u32 v11, v4, 3, 1
v_lshl_add_u32 v10, v10, 2, v11
v_bfe_u32 v11, v4, 2, 1
v_lshlrev_b32 v11, 2, v11
v_bfe_u32 v12, v4, 4, 1
v_lshl_add_u32 v11, v12, 1, v11
v_bfe_u32 v12, v4, 1, 1
v_add_u32 v11, v11, v12
v_xor_b32 v11, v11, v10
v_lshlrev_b32 v11, 4, v11
v_lshl_add_u32 v11, v10, 7, v11
v_and_b32 v12, 1, v4
v_lshl_add_u32 v11, v12, 3, v11
v_add_u32 v14, s62, v11
v_xor_b32 v15, 32, v14
v_add_u32 v15, 256, v15
v_lshl_add_u32 v16, v4, 4, s62
v_xor_b32 v17, 0x4000, v16
v_mov_b32 v12, %d
s_mov_b32 s51, 0x%x''' % (GEN, CNT, f2u(LOG2E)))
    p1, nvalu = kgen_stream()
    t = A()
    transpose_addrs(t, 3, 5, 6, 7, 9, 10, USI, USO)
    t('''v_mul_u32_u24 v122, {rs}, v9
v_lshl_add_u32 v8, v10, 4, v122
v_and_b32 v11, 7, v4
v_lshl_add_u32 v122, v11, 4, v122
v_add_u32 v123, {y2}, v122
v_and_b32 v124, 1, v9
v_lshrrev_b32 v125, 1, v9
v_lshl_add_u32 v124, v124, 5, v125
v_lshlrev_b32 v124, 11, v124
v_lshl_add_u32 v124, v10, 4, v124
v_bfe_u32 v10, v4, 4, 1
v_lshlrev_b32 v10, 2, v10
v_xor_b32 v10, v10, v11
v_lshlrev_b32 v125, 10, v9
v_lshl_add_u32 v125, v10, 4, v125
v_and_b32 v28, 31, v4
v_lshrrev_b32 v29, 5, v4
v_lshlrev_b32 v126, 6, v28
v_lshlrev_b32 v127, 6, v4
v_lshlrev_b32 v128, 2, v28
v_lshl_add_u32 v128, v29, 8, v128
v_and_b32 v129, 15, v4
v_lshlrev_b32 v129, 10, v129
s_lshl_b32 s63, s61, 2
v_add_u32 v11, s63, v12
s_lshl_b32 s64, s61, 15
s_add_u32 s64, s64, {uimg}
s_lshl_b32 s46, s53, 6
s_add_u32 s46, s46, s62
s_add_u32 s46, s46, {kc}
v_lshlrev_b32 v10, 4, v28
v_sub_u32 v9, s46, v10
v_cmp_eq_u32 s[56:57], 0, v4
v_mul_i32_i24 v10, 512, v29
v_sub_u32 v96, v9, v10
v_mul_i32_i24 v10, -1024, v29
v_sub_u32 v97, v9, v10
v_subrev_u32 v97, 2048, v97
v_subrev_u32 v98, 1536, v9
v_lshrrev_b32 v10, 2, v28
v_lshlrev_b32 v10, 1, v10
v_lshl_add_u32 v10, v29, 5, v10
s_lshl_b32 s47, s53, 1
s_sub_u32 s47, s46, s47
s_add_u32 s48, s47, {z1}
v_sub_u32 v10, s48, v10
v_and_b32 v99, 3, v28
v_lshl_add_u32 v99, v99, 7, v10
v_bfe_u32 v100, v28, 1, 1
v_lshl_add_u32 v100, v100, 7, v10
s_add_u32 s48, s46, {z2}
v_lshl_add_u32 v101, v4, 4, s48
s_add_u32 s48, s47, {z3}
v_lshl_add_u32 v102, v4, 1, s48
s_add_u32 s48, s46, 16
v_lshl_add_u32 v103, v4, 4, s48
s_lshl_b32 s47, s53, 1
v_add_u32 v10, s47, v29
v_mul_u32_u24 v10, 1536, v10
v_lshl_add_u32 v10, v28, 4, v10
v_add_u32 v104, s64, v10
v_and_b32 v9, 30, v4
v_and_b32 v10, 1, v4
v_lshlrev_b32 v24, 3, v29
v_sub_u32 v24, v24, v9
v_lshlrev_b32 v24, 1, v24
v_mul_u32_u24 v9, {par}, v10
v_add_u32 v24, v24, v9
s_add_u32 s46, s64, {t0}
v_add_u32 v24, s46, v24
s_lshl_b32 s46, s53, 9
s_add_u32 s46, s46, s64
s_add_u32 s46, s46, {a0}
v_mul_u32_u24 v25, 1536, v29
v_lshl_add_u32 v25, v28, 4, v25
v_add_u32 v25, s46, v25
v_lshlrev_b32 v20, 1, v28
v_lshl_add_u32 v20, v29, 8, v20
s_add_u32 s46, s62, 64
v_add_u32 v20, s46, v20
v_xor_b32 v10, 1, v10
v_mul_u32_u24 v21, {par2}, v10
v_lshlrev_b32 v10, 3, v29
v_sub_u32 v10, v10, v28
v_lshl_add_u32 v21, v10, 1, v21
s_add_u32 s46, s62, {z4}
v_add_u32 v21, s46, v21
v_bfe_u32 v9, v4, 2, 2
v_lshl_add_u32 v9, v29, 3, v9
v_bfe_u32 v10, v4, 4, 1
v_lshlrev_b32 v10, 2, v10
v_and_b32 v30, 3, v4
v_add_u32 v10, v10, v30
v_lshlrev_b32 v22, 6, v9
v_lshl_add_u32 v22, v10, 3, v22
s_add_u32 s46, s62, 16
v_add_u32 v22, s46, v22
s_add_u32 s46, s64, 496'''.format(rs=RS, y2=8 * RS - 1024, uimg=GEN + UIMG, kc=KCOPY + 255 * 16, z1=ZOFF + 62 - 32 - 255 * 16,
                                  z2=416 - 255 * 16, z3=490 - 255 * 16, par=16384 + 64 - 4, t0=KCOPY - UIMG + 32 * 120 + 64,
                                  a0=512 - 3 * 16, par2=16384 + 64 - 2, z4=KCOPY + ZOFF + 62))
    for r_, dst in ((0, 23), (1, 26)):
        t('''v_add_u32 v30, {o}, v10
v_and_b32 v19, 1, v30
v_lshlrev_b32 v{d}, 3, v19
v_bfe_u32 v19, v30, 1, 2
v_mul_u32_u24 v19, 1536, v19
v_add_u32 v{d}, v{d}, v19
v_lshrrev_b32 v30, 3, v30
v_add_u32 v30, v30, v9
v_lshl_add_u32 v{d}, v30, 4, v{d}
v_add_u32 v{d}, s46, v{d}'''.format(o=7 - 4 * r_, d=dst))
    p1 = p1[:nvalu] + t.L + p1[nvalu:]
    nvalu += len(t.L)
    sizes = [int(x) for x in OPTV.get('sl', '90,145,50,0,0,0,0,0,0,0,0,0,0,0,0,125,125').split(',')]
    cuts = [0]
    for z in sizes:
        cuts.append(min(nvalu, cuts[-1] + z))
    assert cuts[min(15, len(cuts) - 1)] <= nvalu - len(t.L)
    print('kgen instructions', len(p1), 'pure valu', nvalu, cuts, file=sys.stderr)
    a('s_load_dwordx4 s[32:35], s[0:1], 88')
    stamp(a, 2)
    jitter(a, 1)
    a('s_waitcnt vmcnt(1) lgkmcnt(0)')
    for c in range(16):
        if c < len(sizes):
            a.L += p1[cuts[c]:cuts[c + 1]]
        if c == 8:
            a('buffer_load_dword v1, v18, s[12:15], 0 offen sc1')
        if c == 14:
            a('s_waitcnt vmcnt(0)')
            tag_check(a, 1, 18, 12)
            a('''v_cmp_eq_u32 vcc, 0, v4
v_lshl_add_u32 v2, v4, 2, v12
s_cmp_eq_u32 s3, 0
v_cndmask_b32 v1, 0, v1, vcc
s_cbranch_scc0 L_tagd
ds_write_b32 v2, v1
s_waitcnt lgkmcnt(0)
L_tagd:''')
        a('s_barrier')
    if len(sizes) > 16:
        a.L += p1[cuts[16]:cuts[17]]
    a('s_barrier')
    stamp(a, 3)
    if 'noc' in OPT:
        lds_add(a, 12, 1, C_Y2)
        a('s_waitcnt lgkmcnt(0)')
        stamp_dump(a)
        a('s_endpgm')
    a('s_setprio %s' % OPTV.get('cprio', '3'))
    srd(a, 16, 34, 2048 * 2048)
    srd(a, 12, 32, 512 * 1024)
    jitter(a, 2)
    a.L += p1[cuts[-1]:]
    jitter(a, 3)
    lds_add(a, 11, 1, C_PAIR)
    KD = 32
    lds_spin(a, 12, 3, C_UL, 4)
    transpose_a(a, 5, 6, 48, 10)
    a('''ds_read_b128 v[80:83], v7
ds_read_b128 v[84:87], v7 offset:1024
s_mul_i32 s46, s44, %d
s_mul_i32 s47, s3, %d
s_add_u32 s46, s46, s47
s_lshl_b32 s47, s45, 7
s_add_u32 s46, s46, s47
s_add_u32 s46, s46, %d
s_add_u32 s47, s46, %d
s_lshl_b32 s65, s44, 5
s_add_u32 s65, s65, s45
s_lshl_b32 s65, s65, 6
s_add_u32 s65, s65, %d
s_mov_b32 s58, -1
s_mov_b32 s59, 0
s_mov_b32 s40, 0
s_mov_b32 s41, -1
s_mov_b32 s42, 0x55555555
s_mov_b32 s43, 0x55555555
v_mov_b32 v88, 0
v_mov_b32 v89, 0
v_mov_b32 v90, 0
v_mov_b32 v91, 0
s_waitcnt lgkmcnt(1)
buffer_store_dwordx4 v[80:83], v8, s[8:11], s46 offen sc1
s_waitcnt lgkmcnt(0)
buffer_store_dwordx4 v[84:87], v8, s[8:11], s47 offen sc1''' % (64 * RS, 16 * RS, UT, 8 * RS, FLU))
    lds_spin(a, 11, 1, C_PAIR, 2)
    a('ds_write_b128 v104, v[88:91]')
    a('ds_write_b128 v101, v[88:91]')
    for j in range(4):
        a('ds_read_b128 %s, v17 offset:%d' % (vr(48 + 4 * j, 4), 1024 * j))
    a('''v_mov_b32 v19, 0x3f80
s_mov_b64 exec, 0xff
ds_write_b16 v102, v19
s_mov_b64 exec, -1''')
    a('v_cndmask_b32 v9, 0, v27, s[56:57]')
    a('v_add_f32 v%d, v%d, v9' % (KD, KD))
    a('s_waitcnt lgkmcnt(0)')
    for j in range(16):
        a('v_add_f32 v%d, v%d, v%d' % (KD + j, KD + j, 48 + j))
    for i, r in enumerate((9, 11, 13)):
        a('v_sub_f32 v%d, v%d, v%d' % (48 + i, KD + r, KD + r + 1))
    for i, r in enumerate((9, 11, 13)):
        a('v_cvt_pk_bf16_f32 v%d, v%d, v%d' % (48 + i, KD + r + 1, 48 + i))
    a('v_cndmask_b32 v51, 0, v%d, s[56:57]' % (KD + 9))
    for i in (1, 0, 2):
        if i == 0:
            a('s_mov_b64 exec, s[58:59]')
        a('ds_write_b16 v99, v%d offset:%d' % (48 + i, 32 - 16 * i))
    a('s_mov_b64 exec, s[42:43]')
    for i in (1, 0, 2):
        if i == 0:
            a('s_mov_b32 exec_hi, 0')
        a('ds_write_b16_d16_hi v100, v%d offset:%d' % (48 + i, 512 + 32 - 16 * i))
    a('s_mov_b64 exec, -1')
    OB = 64

    def pack(dst, vals):
        for j in range(4):
            a('v_cvt_pk_bf16_f32 v%d, v%d, v%d' % (dst + j, vals[2 * j], vals[2 * j + 1]))

    def emit_copy(cp):
        k = lambda r: KD + r
        r0 = [k(i) for i in range(9)]
        r1 = [k(0), k(0), k(1), k(2), k(2), k(2), k(3), k(4), k(4)]
        r2 = lambda b: [k(b), k(b), k(b), k(b + 1), k(b + 1), k(b + 1), k(b + 2), k(b + 2), k(b + 2)]
        r3 = [51] * 4 + [89] * 5
        sel = (lambda p: p[8:0:-1]) if cp == 0 else (lambda p: p[7::-1])
        a('s_mov_b64 exec, s[58:59]')
        pack(OB, sel(r0))
        pack(OB + 4, sel(r3))
        a('s_mov_b64 exec, s[40:41]')
        pack(OB, sel(r1))
        pack(OB + 4, sel(r2(5)))
        pack(OB + 8, sel(r2(8)))
        a('s_mov_b64 exec, -1')
        if cp == 0:
            a('v_cvt_pk_bf16_f32 v10, v%d, v88' % KD)
            a('v_cndmask_b32 v88, 0, v10, s[56:57]')

    a('s_cmp_eq_u32 s53, 0')
    a('s_cbranch_scc0 L_copy1')
    emit_copy(0)
    a('s_branch L_copyd')
    a('L_copy1:')
    emit_copy(1)
    a('L_copyd:')
    for sl in range(2):
        a('ds_write_b128 v%d, %s' % (96 + sl, vr(OB + 4 * sl, 4)))
    a('s_mov_b64 exec, s[40:41]')
    a('ds_write_b128 v98, %s' % vr(OB + 8, 4))
    a('s_mov_b64 exec, 15')
    a('ds_write_b128 v103, v[88:91]')
    a('s_mov_b64 exec, -1')
    if 'x1' in OPT:
        lds_add(a, 12, 1, C_Y2)
        a('s_waitcnt lgkmcnt(0)')
        stamp_dump(a)
        a('s_endpgm')
    a('s_waitcnt vmcnt(0)')
    arrive_publish(a, 12, 1, C_U, 4, 65, 2)
    stamp(a, 4)
    a('''s_lshl_b32 s46, s44, 11
s_add_u32 s46, s46, %d
s_cmp_eq_u32 s3, 0
s_cbranch_scc0 L_uw''' % FLU)
    flag_poll_lazy(a, 126, 1, 46, int(OPTV.get('usl', 24)), True)
    lds_add(a, 12, 3, C_GOU)
    a('L_uw:')
    lds_spin(a, 12, 3, C_GOU, 1, nap=4)
    a('''s_mul_i32 s46, s52, %d
s_lshl_b32 s47, s53, 5
s_add_u32 s46, s46, s47
s_add_u32 s46, s46, %d
s_mul_i32 s47, s53, 3072
s_add_u32 s47, s47, s64
s_add_u32 m0, s47, 512
s_nop 0
buffer_load_dwordx4 v127, s[8:11], s46 offen sc1 lds
s_add_u32 m0, s47, 2048
s_add_u32 s46, s46, 16
buffer_load_dwordx4 v127, s[8:11], s46 offen sc1 lds''' % (RS, UT))
    TB, UB, CA = 32, 40, 48
    CB = 64
    for j in range(16):
        a('v_mov_b32 v%d, 0' % (CA + j))
    a('''s_add_u32 s34, s53, 8
s_mov_b32 s35, 0
s_waitcnt vmcnt(0) lgkmcnt(0)''')
    lds_add(a, 12, 1, C_CONV)
    if WOW != 'win':
        a('''s_and_b32 s46, s45, 7
s_lshl_b32 s46, s46, 16
s_lshl_b32 s47, s5, 7
s_add_u32 s46, s46, s47
s_lshl_b32 s47, s3, 14
s_add_u32 s46, s46, s47
buffer_load_dword v31, v129, s[12:15], s46 offen''')
    lds_spin(a, 12, 1, C_CONV, 4)
    if 'x2' in OPT:
        lds_add(a, 12, 1, C_Y2)
        a('s_waitcnt lgkmcnt(0)')
        stamp_dump(a)
        a('s_endpgm')
    stamp(a, 5)
    jitter(a, 4)

    def conv_loop(lab, acc, send):
        a(lab + ':')
        for j in range(8):
            t = TB + 4 * (j & 1)
            if 'not' not in OPT or j == 0:
                a('ds_read2_b32 %s, v24 offset0:%d offset1:%d' % (vr(t, 2), 8 * (7 - j), 8 * (7 - j) + 1))
                a('ds_read2_b32 %s, v24 offset0:%d offset1:%d' % (vr(t + 2, 2), 8 * (7 - j) + 2, 8 * (7 - j) + 3))
            a('ds_read_b128 %s, v25 offset:%d' % (vr(UB + 4 * (j & 1), 4), (3072 if j % 2 == 0 else 0) + (3 - (j >> 1)) * 16))
            a('s_waitcnt lgkmcnt(0)')
            a(mfma(acc, UB + 4 * (j & 1), t, acc))
            if 'cs' in OPTV:
                a('s_sleep %s' % OPTV['cs'])
        a('''v_subrev_u32 v24, 256, v24
v_subrev_u32 v25, 64, v25
s_add_u32 s35, s35, 1
s_cmp_lt_u32 s35, %s
s_cbranch_scc1 %s''' % (send, lab))

    if 'noconv' not in OPT:
        conv_loop('L_cl', CA, 's34')
        a('''s_cmp_eq_u32 s53, 0
s_cbranch_scc0 L_cr
v_subrev_u32 v24, 1536, v24
v_add_u32 v25, 512, v25''')
        for j in range(3):
            t = 96 + 8 * j
            a('ds_read2_b32 %s, v24 offset0:%d offset1:%d' % (vr(t, 2), 8 * (7 - j), 8 * (7 - j) + 1))
            a('ds_read2_b32 %s, v24 offset0:%d offset1:%d' % (vr(t + 2, 2), 8 * (7 - j) + 2, 8 * (7 - j) + 3))
            a('ds_read_b128 %s, v25 offset:%d' % (vr(t + 4, 4), (3072 if j % 2 == 0 else 0) + (3 - (j >> 1)) * 16))
        a('v_mov_b32 v88, 0')
        for j in range(3):
            a('s_waitcnt lgkmcnt(%d)' % (6 - 3 * j))
            a(mfma(CB, 100 + 8 * j, 96 + 8 * j, None if j == 0 else CB))
        a('''s_mov_b64 exec, 15
ds_write_b128 v16, v[88:91]
s_mov_b64 exec, -1
s_nop 11''')
        for k in range(8):
            a('v_cvt_pk_bf16_f32 v%d, v%d, v%d' % (32 + k, CB + 2 * k, CB + 2 * k + 1))
        for k in range(8):
            r = 2 * k
            a('ds_write_b16 v20, v%d offset:%d' % (32 + k, (8 * (r >> 2) + (r & 3)) * 64))
            a('ds_write_b16_d16_hi v20, v%d offset:%d' % (32 + k, (8 * (r >> 2) + (r & 3) + 1) * 64))
        steps = [(i, st) for i in (4, 5, 0, 1, 2, 3) for st in range(2)]
        for n, (i, st) in enumerate(steps):
            t = 96 + 8 * (n & 1)
            o = i * 32 + st * 8
            a('ds_read2_b32 %s, v21 offset0:%d offset1:%d' % (vr(t, 2), o, o + 1))
            a('ds_read2_b32 %s, v21 offset0:%d offset1:%d' % (vr(t + 2, 2), o + 2, o + 3))
            for rd in range(2):
                if i < 4:
                    a('ds_read_b64_tr_b16 %s, v22 offset:%d' % (vr(t + 4 + 2 * rd, 2), st * 1024 + rd * 256 + 16 * (3 - i)))
                else:
                    a('ds_read_b64_tr_b16 %s, v%d offset:%d' % (vr(t + 4 + 2 * rd, 2), (23, 26)[i - 4], st * 256 + rd * 64))
            a('s_waitcnt lgkmcnt(0)')
            a(mfma(CB, t, t + 4, None if n == 0 else CB))
        a('s_nop 15')
        for j in range(4):
            a('ds_write_b128 v16, %s offset:%d' % (vr(CB + 4 * j, 4), 1024 * j))
        a('s_waitcnt lgkmcnt(0)')
        lds_add(a, 11, 1, C_PAIR)
        a('s_branch L_cd')
        a('L_cr:')
        lds_spin(a, 11, 1, C_PAIR, 3, nap=2)
        for j in range(4):
            a('ds_read_b128 %s, v17 offset:%d' % (vr(CB + 4 * j, 4), 1024 * j))
        a('s_waitcnt lgkmcnt(0)')
        for j in range(16):
            a('v_add_f32 v%d, v%d, v%d' % (CA + j, CA + j, CB + j))
        a('L_cd:')
    jitter(a, 5)
    stamp(a, 6)
    a('''s_nop 0
s_mul_i32 s46, s52, %d
s_lshl_b32 s47, s53, 11
s_add_u32 s46, s46, s47
s_add_u32 s46, s46, %d
s_nop 1
s_lshl_b32 s47, s53, 9
s_add_u32 s47, s47, s52
s_lshl_b32 s47, s47, 6
s_add_u32 s47, s47, %d
v_mov_b32 v1, s7
v_mov_b32 v2, 0''' % (RS, YT, FL3))
    for k in range(8):
        a('v_cvt_pk_bf16_f32 v%d, v%d, v%d' % (32 + k, CA + 2 * k, CA + 2 * k + 1))
    for k in range(8):
        a('buffer_store_dword v%d, v128, s[8:11], s46 offen offset:%d sc1' % (32 + k, (4 * (k >> 1) + (k & 1)) * 128))
    a('''s_waitcnt vmcnt(0) lgkmcnt(0)
s_mov_b64 exec, 1
buffer_store_dword v1, v2, s[8:11], s47 offen sc1
s_mov_b64 exec, -1''')
    if 'x3' in OPT:
        lds_add(a, 12, 1, C_Y2)
        a('s_waitcnt lgkmcnt(0)')
        stamp_dump(a)
        a('s_endpgm')
    if WOW == 'mid':
        a('''s_lshl_b32 s23, s53, 10
s_lshl_b32 s24, s61, 11
s_add_u32 s24, s23, s24
s_lshl_b32 s26, s5, 7
s_lshl_b32 s27, s53, 13
s_add_u32 s26, s26, s27
s_lshl_b32 s27, s61, 14
s_add_u32 s26, s26, s27
s_nop 0''')
        for c in range(8):
            a('s_add_u32 s38, s5, %d' % c)
            a('s_and_b32 s38, s38, 7')
            a('s_lshl_b32 s30, s38, 16')
            a('s_add_u32 m0, s24, %d' % (c * 4096))
            a('s_add_u32 s30, s30, s26')
            if 'nowo' in OPT:
                continue
            a('buffer_load_dwordx4 v125, s[12:15], s30 offen lds')
            a('s_add_u32 m0, s24, %d' % (32768 + c * 4096))
            a('s_add_u32 s30, s30, 0x8000')
            a('buffer_load_dwordx4 v125, s[12:15], s30 offen lds')
            a('s_waitcnt vmcnt(%s)' % OPTV.get('wot', '2'))
    if 'x4' in OPT:
        lds_add(a, 12, 1, C_Y2)
        a('s_waitcnt lgkmcnt(0)')
        stamp_dump(a)
        a('s_endpgm')
    stamp(a, 7)
    a('''s_lshr_b32 s46, s4, 4
s_lshl_b32 s46, s46, 15
s_lshl_b32 s47, s5, 12
s_add_u32 s46, s46, s47
s_add_u32 s46, s46, %d
s_cmp_eq_u32 s3, 0
s_cbranch_scc0 L_yw''' % FL3)
    if 'ysl' in OPTV:
        a('s_sleep %s' % OPTV['ysl'])
    flag_poll_lazy(a, 127, 1, 46, int(OPTV.get('ynap', 32)))
    lds_add(a, 12, 3, C_GOY)
    a('L_yw:')
    a('''s_mul_i32 s46, s5, %d
s_mul_i32 s47, s3, %d
s_add_u32 s46, s46, s47
s_lshl_b32 s47, s4, 7
s_add_u32 s46, s46, s47
s_add_u32 s46, s46, %d
s_lshl_b32 s47, s3, 11
s_add_u32 s47, s47, %d''' % (64 * RS, 16 * RS, YT, USI))
    lds_spin(a, 12, 3, C_GOY, 1, nap=8)
    a('''s_mov_b32 m0, s47
s_nop 0
buffer_load_dwordx4 v122, s[8:11], s46 offen sc1 lds
buffer_load_dwordx4 v123, s[8:11], s46 offen offset:1024 sc1 lds
s_lshl_b32 s46, s4, 17
s_lshl_b32 s47, s3, 14
s_add_u32 s46, s46, s47
s_lshl_b32 s47, s5, 7
s_add_u32 s46, s46, s47
s_add_u32 s47, s46, 0x2000
s_waitcnt vmcnt(0)''')
    jitter(a, 6)
    lds_add(a, 12, 1, C_Y)
    lds_spin(a, 12, 1, C_Y, 4)
    transpose_a(a, 5, 6, 32, 10)
    a('''ds_read_b128 v[32:35], v7
ds_read_b128 v[36:39], v7 offset:1024
s_waitcnt lgkmcnt(1)
buffer_store_dwordx4 v[32:35], v124, s[16:19], s46 offen sc1
s_waitcnt lgkmcnt(0)
buffer_store_dwordx4 v[36:39], v124, s[16:19], s47 offen sc1''')
    lds_add(a, 12, 1, C_Y2)
    stamp(a, 8)
    a('s_waitcnt lgkmcnt(0)')
    stamp(a, 12)
    stamp_dump(a)
    a('s_endpgm')

    XA, WA, OA, OV = 160, 164, 165, 166
    XR, ACC = 0, 128
    WF = [144, 148, 152, 156]
    a('''L_mm:
%s
s_setprio 3
s_and_b32 s52, s3, 1
s_bfe_u32 s53, s3, 0x10001
v_and_b32 v10, 31, v4
v_bfe_u32 v11, v4, 1, 3
v_lshrrev_b32 v12, 5, v4
v_xor_b32 v11, v11, v12
v_lshlrev_b32 v11, 4, v11
v_lshl_add_u32 v10, v10, 7, v11
s_lshl_b32 s46, s52, 12
v_add_u32 v%d, s46, v10''' % ('s_memrealtime s[70:71]' if 'dbgt' in OPT else '', XA))
    for jq in range(1, 4):
        a('v_xor_b32 v%d, %d, v%d' % (XA + jq, jq << 5, XA))
    a('''v_lshlrev_b32 v10, 10, v12
v_bfe_u32 v11, v4, 2, 2
v_lshl_add_u32 v10, v11, 7, v10
v_bfe_u32 v11, v4, 3, 1
v_xor_b32 v11, s53, v11
v_lshl_add_u32 v10, v11, 6, v10
v_bfe_u32 v11, v4, 4, 1
v_lshl_add_u32 v10, v11, 5, v10
v_and_b32 v11, 3, v4
v_lshl_add_u32 v%d, v11, 3, v10''' % WA)
    a('''s_lshl_b32 s46, s4, 1
s_add_u32 s46, s46, s52
s_lshl_b32 s46, s46, 10
s_lshl_b32 s47, s5, 1
s_add_u32 s47, s47, s53
s_lshl_b32 s47, s47, 17
s_add_u32 s46, s46, s47
v_lshl_add_u32 v%d, v4, 4, s46
v_bfe_u32 v11, v4, 4, 1
v_lshlrev_b32 v11, 16, v11
v_lshl_add_u32 v11, v12, 8, v11
v_and_b32 v10, 15, v4
v_lshl_add_u32 v11, v10, 4, v11
v_add_u32 v%d, s46, v11
v_mov_b32 v167, v4
s_mov_b32 s62, 0x%x
s_mov_b32 s64, %d
s_mov_b32 s65, %d
s_mov_b32 s63, %d
s_lshl_b32 s54, s52, 12
s_lshl_b32 s47, s53, 11
s_add_u32 s54, s54, s47
s_add_u32 s54, s54, %d
s_lshl_b32 s56, s5, 6
s_add_u32 s56, s56, %d
s_lshl_b32 s55, s4, 9
s_add_u32 s55, s55, s56
s_waitcnt lgkmcnt(0)''' % (OA, OV, f2u(QSCALE), KF, KF + 65536, VF, QX, FL1))
    srd(a, 8, 38, WS_BYTES)
    if 'nowpf' not in OPT:
        srd(a, 12, 34, 512 * 3072)
        a('''v_mul_u32_u24 v126, 3072, v4
s_and_b32 s46, s4, 7
s_mul_i32 s46, s46, %d
s_lshl_b32 s47, s5, 7
s_add_u32 s46, s46, s47
s_xor_b32 s47, s52, 1
s_lshl_b32 s47, s47, 11
s_add_u32 s57, s46, s47''' % (64 * 3072))

    def wpf(wave):
        l = label('pf')
        a('s_cmp_eq_u32 s3, %d' % wave)
        a('s_cbranch_scc0 %s' % l)
        a('buffer_load_dword v127, v126, s[12:15], s57 offen')
        a(l + ':')

    WPV, WPQ = int(OPTV.get('wpv', -1)), int(OPTV.get('wpq', -1))
    if WPV < 0:
        wpf(8)
    if WPQ < 0:
        wpf(9)
    if 'upf' in OPT:
        a('''s_cmp_eq_u32 s3, 10
s_cbranch_scc0 L_noupf
s_load_dwordx2 s[20:21], s[0:1], 0
v_lshlrev_b32 v126, 10, v4
s_lshl_b32 s46, s45, 16
s_lshl_b32 s47, s44, 7
s_add_u32 s46, s46, s47
v_add_u32 v126, s46, v126
s_waitcnt lgkmcnt(0)
global_load_dword v127, v126, s[20:21]
L_noupf:''')
    PD = 3

    def chunk_of(s):
        p, kk = s >> 5, s & 31
        return (kk >> 2, kk & 3) if p == 0 else (8 + 4 * (p - 1) + (kk >> 3), kk & 7)

    def nreads(s):
        return 0 if s >= 96 else (3 if s < 32 else 2)

    def reads(s):
        c, j = chunk_of(s)
        if j == 0:
            a('s_barrier')
            if c == 0:
                if OPTV.get('enc') == 'b0':
                    a('s_memrealtime s[92:93]')
                stamp(a, 2)
                if 'dbgt' in OPT:
                    a('s_memrealtime s[72:73]')
            if c == WPV:
                wpf(8)
            if c == WPQ:
                wpf(9)
            if c == 6:
                a('s_waitcnt vmcnt(0)')
            if c % 3 == 0 and c > 0:
                op = 'v_add_u32' if c % 6 == 3 else 'v_subrev_u32'
                for r in ([XA, XA + 1, XA + 2, XA + 3] if c < 8 else []) + [WA]:
                    a('%s v%d, 0xc000, v%d' % (op, r, r))
        so = (c % 3) * 16384
        if c < 8:
            a('ds_read_b128 %s, v%d offset:%d' % (vr(XR + 4 * s, 4), XA + j, so))
            so += 8192
        for rd in range(2):
            a('ds_read_b64_tr_b16 %s, v%d offset:%d' % (vr(WF[s % 4] + 2 * rd, 2), WA, so + j * 2048 + rd * 512))

    def epilogue(p):
        lo, hi = vr(ACC, 4), vr(ACC + 4, 4)
        if SEG[p] == 0:
            a('v_mov_b32 v4, v167')
            a('v_lshl_add_u32 v10, v167, 4, s54')
            a('s_nop 13')
            for i in range(16):
                a('v_mul_f32 v%d, s62, v%d' % (ACC + i, ACC + i))
        else:
            a('s_nop 15')
        for j in range(8):
            a('v_cvt_pk_bf16_f32 v%d, v%d, v%d' % (ACC + j, ACC + 2 * j, ACC + 2 * j + 1))
        if SEG[p] == 0:
            a('ds_write_b128 v10, %s' % lo)
            a('ds_write_b128 v10, %s offset:1024' % hi)
        elif SEG[p] == 1:
            a('buffer_store_dwordx4 %s, v%d, s[8:11], s64 offen sc1' % (lo, OA))
            a('buffer_store_dwordx4 %s, v%d, s[8:11], s65 offen sc1' % (hi, OA))
        else:
            a('buffer_store_dwordx4 %s, v%d, s[8:11], s63 offen sc1' % (lo, OV))
            a('buffer_store_dwordx4 %s, v%d, s[8:11], s63 offen offset:512 sc1' % (hi, OV))

    jitter(a, 8)
    for s in range(PD):
        reads(s)
    for s in range(96):
        p, kk = s >> 5, s & 31
        if s + PD < 96:
            reads(s + PD)
        a('s_waitcnt lgkmcnt(%d)' % sum(nreads(t) for t in range(s + 1, s + PD + 1)))
        x, w = XR + 4 * kk, WF[s % 4]
        if SEG[p] == 2:
            a(mfma(ACC, x, w, None if kk == 0 else ACC))
        else:
            a(mfma(ACC, w, x, None if kk == 0 else ACC))
        if s == 80:
            a('v_mov_b32 v12, %d' % CNT)
            a('ds_read_b32 v1, v12 offset:%d' % C_TAG)
            a('s_waitcnt vmcnt(0) lgkmcnt(0)')
            a('v_readfirstlane_b32 s7, v1')
            jitter(a, 9)
            arrive_publish(a, 12, 1, C_KV, 4, 55, 2, 'nocp' not in OPT)
            if 'rt' in OPT:
                stamp(a, 2)
        if kk == 31:
            if OPTV.get('enc') == 'v' and p == 1:
                a('s_memrealtime s[92:93]')
            stamp(a, 3 + p)
            epilogue(p)
    a('s_waitcnt lgkmcnt(0)')
    a('s_barrier')
    a('''s_cmp_eq_u32 s3, 8
s_cbranch_scc0 L_apro
v_and_b32 v6, 31, v4
v_lshlrev_b32 v6, 9, v6
s_lshr_b32 s46, s4, 3
s_lshl_b32 s46, s46, 14
%s''' % ('s_add_u32 s56, s56, s46' if 'nocp' not in OPT else ''))
    flag_poll_lazy(a, 6, 1, 56, int(OPTV.get('psl', 4)), True)
    lds_add(a, 12, 3, C_GO)

    a('L_apro:')
    att_prologue(False)
    a('''L_att:
v_xor_b32 v6, 0x1000, v13
ds_read_b128 %s, v13
ds_read_b128 %s, v6''' % (vr(Q[1], 4), vr(Q[0], 4)))

    def rdk(i):
        return ['buffer_load_dwordx4 %s, v%d, s[8:11], s36 offen sc1' % (vr(K[i % NB], 4), KA),
                's_add_u32 s36, s36, 2048'] + ['s_and_b32 s36, s36, 0xffff'] * OWN

    def rdv(i):
        return ['s_mov_b64 exec, s[40:41]',
                'buffer_load_dwordx4 %s, v%d, s[8:11], s37 offen sc1' % (vr(V[i % NBV][0], 4), VA),
                'buffer_load_dwordx4 %s, v%d, s[8:11], s37 offen offset:512 sc1' % (vr(V[i % NBV][1], 4), VA),
                's_mov_b64 exec, -1', 's_add_u32 s37, s37, 2048'] + ['s_and_b32 s37, s37, 0xffff'] * OWN

    PF = False
    pfl = []
    issue = []
    if OWN:
        lds_spin(a, 12, 3, C_KV, 4)
        a('\n'.join(rdk(0) + rdv(0)))
        issue += [('k', 0), ('v', 0), ('v', 0)]
    jitter(a, 10)
    stamp(a, 6)
    lds_spin(a, 12, 3, C_GO, 1)
    stamp(a, 7)
    pro = []
    if not OWN:
        pro = rdk(0)
        issue += [('k', 0)]
    for i in range(1, DK):
        pro += rdk(i)
        issue += [('k', i)]
        if i > 1 or not OWN:
            pro += rdv(i - 1)
            issue += [('v', i - 1), ('v', i - 1)]
    a('\n'.join(pro))
    a('s_setprio 3')
    a('s_waitcnt vmcnt(%d)' % (len(issue) - 1))
    if OPTV.get('enc') == 'go':
        a('s_memrealtime s[92:93]')
    if 'pubq0' in OPT:
        arrive_publish(a, 12, 3, C_Q, 8, 55, 2)
        issue.append(('f',))
    stamp(a, 8)
    if 'dbgt' in OPT:
        a('s_memrealtime s[74:75]')
    a(mfma(S[0], K[0], Q[0], None))
    a('s_nop 7')
    a('s_nop 3')
    pp_ = [int(x) for x in OPTV.get('pr', '7,15,23').split(',')]
    PRIO = {pp_[0]: 2, pp_[1]: 1, pp_[2]: 0}

    def unit(i, q):
        u = 2 * i + q
        sc, sn = S[u % 2], S[(u + 1) % 2]
        pc, pp = Pp[u % 2], Pp[(u + 1) % 2]
        i1, q1 = (i, 1) if q == 0 else (i + 1, 0)
        i0, q0 = (i - 1, 1) if q == 0 else (i, 0)
        qk = mfma(sn, K[i1 % NB], Q[q1], None)
        pv0 = mfma(O[q0], V[i0 % NBV][0], pp, O[q0])
        pv1 = mfma(O[q0], V[i0 % NBV][1], pp + 4, O[q0])
        if 'swp' in OPT:
            pv0 = mfma(O[q0], pp, V[i0 % NBV][0], O[q0])
            pv1 = mfma(O[q0], pp + 4, V[i0 % NBV][1], O[q0])
        e = ['v_exp_f32 v%d, v%d' % (sc + j, sc + j) for j in range(16)]
        c = ['v_cvt_pk_bf16_f32 v%d, v%d, v%d' % (pc + j, sc + 2 * j, sc + 2 * j + 1) for j in range(8)]
        c7prev = 'v_cvt_pk_bf16_f32 v%d, v%d, v%d' % (pp + 7, sn + 14, sn + 15)
        out = [e[0]]
        late_qk = OWN and u == 1
        if late_qk:
            last = max(n for n, x in enumerate(issue) if x == ('v', 0))
            out.append('s_waitcnt vmcnt(%d)' % sum(x != ('f',) for x in issue[last + 1:]))
        elif q == 1:
            last = max(n for n, x in enumerate(issue) if x in (('k', i + 1), ('v', i)))
            out.append('s_waitcnt vmcnt(%d)' % sum(x != ('f',) for x in issue[last + 1:]))
        if u > 0:
            out.append(c7prev)
        if u < 63 and not late_qk:
            out.append(qk)
        kl = rdk(i + DK) if q == 0 and i + DK < 32 else []
        vl = rdv(i + DK - 1) if q == 1 and i + DK - 1 < 32 else []
        issue.extend([('k', i + DK)] * bool(kl) + [('v', i + DK - 1)] * 2 * bool(vl))
        out += kl[:1] + vl[:4]
        out += [e[1], e[2], c[0], e[3], e[4], c[1], e[5]]
        if u > 0:
            out.append(pv0)
        out += kl[1:2] + vl[4:5]
        out += [e[6], c[2], e[7], e[8], c[3], e[9], e[10], c[4]]
        if u > 0:
            out.append(pv1)
        out += kl[2:] + vl[5:]
        if q == 0 and i in (1, 8, 16) and PF:
            out += pfl
            issue.append(('p',))
        if q == 1 and i == int(OPTV.get('eti', 30)):
            out += ['s_mov_b64 exec, 1', 'ds_add_u32 v12, v12 offset:%d' % C_T, 's_mov_b64 exec, -1']
        if q == 1 and i in PRIO:
            out.append('s_setprio %d' % PRIO[i])
            if DIAG and 'qs' in OPT:
                n = 3 + i // 8
                out.append('s_memrealtime s[%d:%d]' % (ST0 + 2 * n, ST0 + 2 * n + 1))
        out += [e[11], e[12], c[5], e[13], e[14], c[6], e[15]]
        if late_qk:
            last = issue.index(('k', 1))
            out += ['s_waitcnt vmcnt(%d)' % sum(x != ('f',) for x in issue[last + 1:]), qk, 's_nop 11']
        return out

    for i in range(32):
        for q in range(2):
            if (i, q) == (20, 0):
                jitter(a, 11)
            if (i, q) == (31, 0):
                jitter(a, 12)
                a('''s_and_b32 s26, s3, 3
s_xor_b32 s27, s26, 2
s_mul_i32 s26, s26, 2304
s_add_u32 s26, s26, {ox}
s_mul_i32 s27, s27, 2304
s_add_u32 s27, s27, {ox}
v_add_u32 v6, s26, v5
v_add_u32 v7, s27, v5
v_lshlrev_b32 v8, 2, v4
v_add_u32 v9, s27, v8
v_add_u32 v8, s26, v8
s_sub_u32 s26, s3, 4
s_lshl_b32 s26, s26, 2
v_add_u32 v10, s26, v12
s_xor_b32 s26, s26, 8
v_add_u32 v11, s26, v12
s_cmp_eq_u32 s19, 0
s_cbranch_scc0 L_xa'''.format(ox=OX))
                lds_spin(a, 12, 3, C_Q, 8)
                a('s_branch L_xb')
                a('L_xa:')
                lds_spin(a, 12, 3, C_O, 4)
                a('''L_xb:
s_mov_b32 s44, 0x%x
s_mov_b32 s45, 0x%x
s_mov_b32 s46, 0x7f7fffff
s_lshl_b32 s26, s19, 2
v_add_u32 v13, s26, v12
v_mov_b32 v3, 1
buffer_load_dword v1, v163, s[8:11], s52 offen sc1''' % (f2u(2.0 ** -64), f2u(2.0 ** 64)))
                issue.append(('m',))
            if (i, q) == (2, 0) and 'pubq0' not in OPT:
                arrive_publish(a, 12, 3, C_Q, 8, 55, 2)
                issue.append(('f',))
            for s in unit(i, q):
                a(s)
    a('s_nop 0')
    a('v_cvt_pk_bf16_f32 v%d, v%d, v%d' % (Pp[1] + 7, S[1] + 14, S[1] + 15))
    if OPTV.get('enc') == 'loop':
        a('s_memrealtime s[92:93]')
    stamp(a, 9)
    if 'dbgt' in OPT:
        a('s_memrealtime s[76:77]')
    a('s_setprio 3')
    a('s_nop 0')
    a(mfma(O[1], V[31 % NBV][0], Pp[1], O[1]))
    a(mfma(O[1], V[31 % NBV][1], Pp[1] + 4, O[1]))
    F = O[1]
    a('''ds_write_b128 v6, %s
ds_write_b128 v6, %s offset:1024
ds_write_b32 v8, v%d offset:2048
ds_write_b32 v10, v3 offset:%d''' % (vr(O[0], 4), vr(O[0] + 4, 4), O[0] + 8, C_X))
    a('''s_mov_b32 s66, 0
L_xw:
ds_read_b32 v2, v11 offset:%d
ds_read_b128 v[48:51], v7
ds_read_b128 v[52:55], v7 offset:1024
ds_read_b32 v56, v9 offset:2048
s_add_u32 s66, s66, 1
s_waitcnt lgkmcnt(0)
v_readfirstlane_b32 s67, v2
s_cmp_ge_u32 s66, %d
s_cbranch_scc1 L_xe
s_cmp_eq_u32 s67, 0
s_cbranch_scc1 L_xw
L_xe:''' % (C_X, SPIN_MAX * 4))
    stamp(a, 10)
    for j in range(9):
        a('v_add_f32 v%d, v%d, v%d' % (F + j, F + j, 48 + j))
    a('''v_rcp_f32 v48, v{8}
v_add_f32 v50, abs(v{0}), abs(v{1})
v_add_f32 v51, abs(v{2}), abs(v{3})
v_add_f32 v52, abs(v{4}), abs(v{5})
v_add_f32 v53, abs(v{6}), abs(v{7})
v_cmp_le_f32 s[28:29], s44, v{8}
v_add_f32 v50, v50, v51
v_add_f32 v52, v52, v53
v_cmp_ge_f32 s[30:31], s45, v{8}
v_add_f32 v50, v50, v52
v_cmp_ge_f32 s[32:33], s46, v50
s_and_b64 s[28:29], s[28:29], s[30:31]
s_nop 0
s_and_b64 s[28:29], s[28:29], s[32:33]
s_cmp_eq_u64 s[28:29], -1
s_cbranch_scc0 {9}
L_fin:'''.format(*(list(range(F, F + 9)) + ['L_fin' if 'swp' in OPT else 'L_slow'])))
    for j in range(8):
        a('v_mul_f32 v%d, v%d, v48' % (F + j, F + j))
    for j in range(4):
        a('v_cvt_pk_bf16_f32 v%d, v%d, v%d' % (52 + j, F + 2 * j, F + 2 * j + 1))
    a('buffer_store_dwordx4 v[52:55], v5, s[8:11], s54 offen sc1')
    jitter(a, 13)
    lds_add(a, 13, 3, C_O)
    stamp(a, 11)
    a('s_cmp_ge_u32 s3, 8')
    a('s_cbranch_scc1 L_bend')
    a('s_load_dwordx4 s[32:35], s[0:1], 88')
    a('s_waitcnt lgkmcnt(0)')
    srd(a, 16, 34, 2048 * 2048)
    AC = [20, 36]
    OFR, WR = 56, 88

    def wo_frags(g):
        for cc in range(4):
            for n in range(2):
                for nt in range(2):
                    for rd in range(2):
                        a('ds_read_b64_tr_b16 %s, v%d offset:%d' % (vr(WR + 16 * cc + 8 * n + 4 * nt + 2 * rd, 2), (160, 161)[nt],
                                                                    g * 32768 + cc * 4096 + n * 2048 + rd * 1024))

    def o_loads(cc):
        a('''s_add_u32 s38, s51, %d
s_and_b32 s38, s38, 7
s_lshl_b32 s30, s38, 12
s_add_u32 s30, s30, s53
buffer_load_dwordx4 %s, v5, s[8:11], s30 offen sc1
buffer_load_dwordx4 %s, v5, s[8:11], s30 offen offset:1024 sc1''' % (cc, vr(OFR + 8 * cc, 4), vr(OFR + 8 * cc + 4, 4)))

    def o_mfma(cc, first):
        for nt in range(2):
            for n in range(2):
                a(mfma(AC[nt], WR + 16 * cc + 8 * n + 4 * nt, OFR + 8 * cc + 4 * n, AC[nt]))

    def poll_half(g, nap):
        lp, le = label('hp'), label('he')
        a('s_mov_b32 s23, 0')
        a('s_mov_b32 s66, 0')
        a(lp + ':')
        for cc in range(4):
            e = label('ls')
            a('s_bitcmp1_b32 s23, %d' % cc)
            a('s_cbranch_scc1 %s' % e)
            o_loads(cc)
            a(e + ':')
        a('s_add_u32 s66, s66, 1')
        a('s_waitcnt vmcnt(0) lgkmcnt(0)')
        for cc in range(4):
            e, gl = label('lc'), label('lg')
            b = OFR + 8 * cc
            a('''s_bitcmp1_b32 s23, {cc}
s_cbranch_scc1 {e}
v_max3_u32 v1, v{0}, v{1}, v{2}
v_max3_u32 v2, v{3}, v{4}, v{5}
v_max3_u32 v1, v1, v{6}, v{7}
v_max_u32 v1, v1, v2
v_cmp_eq_u32 vcc, -1, v1
s_cmp_ge_u32 s66, {n}
s_cbranch_scc1 {g}
s_cbranch_vccnz {e}
{g}:
s_bitset1_b32 s23, {cc}'''.format(*range(b, b + 8), cc=cc, e=e, g=gl, n=SPIN_MAX))
            o_mfma(cc, False)
            a(e + ':')
        a('''s_cmp_eq_u32 s23, 15
s_cbranch_scc1 %s
s_sleep %s
s_branch %s
%s:''' % (le, nap, lp, le))

    if WOW == 'end':
        wo_dma()
    if 'ein' in OPTV:
        for j in range(32):
            a('v_mov_b32 v%d, 0' % (AC[0] + j))
    a('s_lshl_b32 s26, s49, 2')
    a('v_add_u32 v8, s26, v12')
    a('s_waitcnt vmcnt(%d)' % (WOW != 'end'))
    a('''v_cmp_eq_u32 vcc, s7, v1
s_nop 1
s_cmp_eq_u64 vcc, -1
s_cbranch_scc1 L_mok''')
    flag_poll_lazy(a, 163, 1, 52, 8)
    a('L_mok:')
    if WOW == 'mid':
        lds_spin(a, 12, 3, C_Y2, 4, nap=8)
    else:
        lds_add(a, 8, 3, C_W)
        lds_spin(a, 8, 3, C_W, 2)
    wo_frags(0)
    if 'ein' in OPTV:
        a('s_sleep %s' % OPTV['ein'])
    else:
        lds_spin(a, 12, 3, C_T, 7 * CNT, nap=int(OPTV.get('etn', 3)))
        for j in range(32):
            a('v_mov_b32 v%d, 0' % (AC[0] + j))
    poll_half(0, OPTV.get('esl', '8'))
    wo_frags(1)
    a('s_add_u32 s53, s53, 2048')
    lds_spin(a, 12, 3, C_Y2, 4, nap=2)
    stamp(a, 10)
    lds_spin(a, 12, 3, C_O1, 4, nap=2)
    if 'lin' in OPTV:
        a('s_sleep %s' % OPTV['lin'])
    poll_half(1, OPTV.get('lsl', '6'))
    jitter(a, 14)
    stamp(a, 12)
    a('v_mov_b32 v3, 1')
    a('s_nop 6')
    for j in range(4):
        a('ds_write_b128 v164, %s offset:%d' % (vr(AC[0] + 4 * j, 4), 1024 * j))
    a('ds_write_b32 v166, v3 offset:%d' % C_P3)
    a('''s_mov_b32 s66, 0
L_rw:
ds_read_b32 v2, v167 offset:%d''' % C_P3)
    for j in range(4):
        a('ds_read_b128 %s, v165 offset:%d' % (vr(64 + 4 * j, 4), 1024 * j))
    a('''s_add_u32 s66, s66, 1
s_waitcnt lgkmcnt(0)
v_readfirstlane_b32 s67, v2
s_cmp_ge_u32 s66, %d
s_cbranch_scc1 L_re
s_cmp_eq_u32 s67, 0
s_cbranch_scc1 L_rw
L_re:''' % (SPIN_MAX * 4))
    for j in range(16):
        a('v_add_f32 v%d, v%d, v%d' % (64 + j, AC[1] + j, 64 + j))
    for j in range(8):
        a('v_cvt_pk_bf16_f32 v%d, v%d, v%d' % (80 + j, 64 + 2 * j, 65 + 2 * j))
    st3 = OPTV.get('st3', '').replace('+', ' ')
    a('buffer_store_dwordx4 v[80:83], v162, s[16:19], s50 offen' + st3)
    a('buffer_store_dwordx4 v[84:87], v162, s[16:19], s50 offen offset:16' + st3)
    if 'dbgt' in OPT:
        a('s_waitcnt vmcnt(0)')
        a('s_memrealtime s[78:79]')
        a('s_load_dwordx2 s[36:37], s[0:1], 104')
        a('s_waitcnt lgkmcnt(0)')
        srd(a, 12, 36, 256)
        a('v_mov_b32 v2, 0')
        a('s_mov_b64 exec, 1')
        for i in range(5):
            a('s_sub_u32 s66, s%d, s7' % (70 + 2 * i))
            a('s_add_u32 s66, s66, 1000')
            a('v_mov_b32 v1, s66')
            a('buffer_atomic_umax v1, v2, s[12:15], 0 offen offset:%d sc1' % (4 + 4 * i))
            a('s_sub_u32 s66, 100000, s66')
            a('v_mov_b32 v3, s66')
            a('buffer_atomic_umax v3, v2, s[12:15], 0 offen offset:%d sc1' % (36 + 4 * i))
        a('s_mov_b64 exec, -1')
        a('s_waitcnt vmcnt(0)')
    a('L_bend:')
    if 'enc' in OPTV:
        e = OPTV['enc']
        if e != 'skew':
            a('s_cmp_eq_u32 s2, %s' % OPTV.get('ewg', '0'))
            a('s_cbranch_scc0 L_encd')
        a('s_cmp_eq_u32 s3, 8')
        a('s_cbranch_scc0 L_encd')
        a('s_waitcnt lgkmcnt(0)')
        a('s_sub_u32 s94, s92, s90' if e not in ('f', 'skew') else 's_mov_b32 s94, 0')
        a('s_add_u32 s94, s94, 6000')
        a('''L_encw:
s_memrealtime s[96:97]
s_waitcnt lgkmcnt(0)
s_sub_u32 s96, s96, s90
s_cmp_lt_u32 s96, s94
s_cbranch_scc1 L_encw
L_encd:''')
    stamp_dump(a)
    a('s_endpgm')

    for t in ('',):
        OS, SS, M, PS, KS, MX = 80, 16, 64, 48, 104, 58
        a('''L_slow%s:
v_mov_b32 v%d, 0xff800000
s_mov_b32 s42, 0
L_s1%s:
buffer_load_dwordx4 %s, v%d, s[8:11], s42 offen sc1
s_waitcnt vmcnt(0)
%s
s_nop 15''' % (t, MX, t, vr(KS, 4), KA, mfma(SS, KS, Q[1], None)))
        for j in range(8):
            a('v_max3_f32 v%d, v%d, v%d, v%d' % (MX, MX, SS + 2 * j, SS + 2 * j + 1))
        a('''s_add_u32 s42, s42, 1024
s_cmp_lt_u32 s42, 0x10000
s_cbranch_scc1 L_s1%s
v_mov_b32 v%d, v%d
s_nop 1
v_permlane32_swap_b32 v%d, v%d
s_nop 1
v_max_f32 v%d, v%d, v%d''' % (t, MX + 1, MX, MX, MX + 1, MX, MX, MX + 1))
        for j in range(16):
            a('v_sub_f32 v%d, 0, v%d' % (M + j, MX))
            a('v_mov_b32 v%d, 0' % (OS + j))
        a('''s_mov_b32 s42, 0
L_s2%s:
buffer_load_dwordx4 %s, v%d, s[8:11], s42 offen sc1
s_mov_b64 exec, s[40:41]
buffer_load_dwordx4 %s, v%d, s[8:11], s42 offen sc1
buffer_load_dwordx4 %s, v%d, s[8:11], s42 offen offset:512 sc1
s_mov_b64 exec, -1
s_waitcnt vmcnt(0)
%s
s_nop 15''' % (t, vr(KS, 4), KA, vr(V[0][0], 4), VA, vr(V[0][1], 4), VA, mfma(SS, KS, Q[1], M)))
        for j in range(16):
            a('v_exp_f32 v%d, v%d' % (SS + j, SS + j))
        a('s_nop 0')
        for j in range(8):
            a('v_cvt_pk_bf16_f32 v%d, v%d, v%d' % (PS + j, SS + 2 * j, SS + 2 * j + 1))
        a('s_nop 1')
        a(mfma(OS, V[0][0], PS, OS))
        a(mfma(OS, V[0][1], PS + 4, OS))
        a('''s_add_u32 s42, s42, 1024
s_cmp_lt_u32 s42, 0x10000
s_cbranch_scc1 L_s2%s
s_nop 15''' % t)
        a('''v_rcp_f32 v48, v88
s_nop 0
s_branch L_fin''')
    a('''L_end:
s_endpgm''')
    return a.text()


def main(path):
    KN = NAME + '_kernel'
    t = kernel()
    hdr = '''; @launch grid=(256,1,1) block=(768,1,1) lds=%d
; One launch, one workgroup of 12 waves per CU (256 workgroups, all resident; surplus workgroups exit at once).
; Workgroup = (64-token block tb, quad of heads hq) for the attention branch and 2 channels for the S4 branch.
;  phase 1  waves 4-7 stream x / wqkv tiles into an LDS ring, waves 8-11 compute the K, V, Q tiles (MFMA);
;           K and V go to the workspace in MFMA fragment order, Q stays in LDS. Waves 0-3 build the S4 kernel
;           K[l] = Re sum_n C_n dB_n exp(dt A_n lq(l)) (lq = position rounded to bf16, as in the reference) as a
;           product of two power tables on the matrix core; Dskip is added to K[0]. A tile of u is transposed.
;  phase 2  waves 4-11: softmax(QK^T)V, exp2 of the scaled scores without a shift, row sums from a ones row of V.
;           A run-time check (row sum inside [2^-64, 2^64] and finite outputs) sends a tile to L_slow, which redoes
;           it with the exact row maximum. Waves 0-3: causal convolution as Toeplitz MFMAs, transposition of y.
;  phase 3  waves 4-7: output projection of the (tb, 64-column) tile.
; Hand-offs between workgroups: write-through stores, drained, then a flag word carrying this launch's tag
; (a clock value that workgroup 0 puts into the zeroed debug buffer); attention outputs replace a marker that
; their producer wrote (and announced) earlier, so readers recognise every dword. All waits are bounded;
; s_sleep only backs off inside these waits.
.amdgcn_target "amdgcn-amd-amdhsa--gfx950"
.text
.globl %s
''' % (LDS_BYTES, KN)
    pad = '; never executed: keeps the 32 KB window of the code prefetch inside the code section\n.p2align 8\n.fill 1024, 4, 0xbf800000\n'
    kd = '''.section .rodata,"a"
.p2align 6
.amdhsa_kernel %s
  .amdhsa_next_free_vgpr 168
  .amdhsa_next_free_sgpr 102
  .amdhsa_accum_offset 168
  .amdhsa_group_segment_fixed_size 0
  .amdhsa_kernarg_size 120
  .amdhsa_user_sgpr_count 2
  .amdhsa_user_sgpr_kernarg_segment_ptr 1
  .amdhsa_system_sgpr_workgroup_id_x 1
.end_amdhsa_kernel
''' % KN
    open(path, 'w').write(hdr + t + pad + kd)


if __name__ == '__main__':
    for arg in sys.argv[1:]:
        OPT.add(arg)
        if '=' in arg:
            OPTV[arg.split('=')[0]] = arg.split('=')[1]
    DIAG = 'diag' in OPT
    main(sys.argv[1] if len(sys.argv) > 1 else 'cdna_kernels/%s.s' % NAME)
```

```python
import sys
import struct

NAME = 'concat_heads__ssm_conv_s4__softmax_full_mha__prompt'

KF = 0x200000
VF = 0x400000
OF = 0x600000
RS = 4224
UT = 0x800000
YT = 0x1400000
FL1 = 0xC40000
FLU = 0xC04000
FL2 = 0xC08000
FL3 = 0xC10000
WS_BYTES = 0x2000000

GEN = 6 * 16384
LDS_BYTES = GEN + 65536
QX = 65536
USI = 74752
USO = 82944
OX = 65536
YI = 73728
CNT = 94208
C_TAG, C_KV, C_GO, C_PAIR, C_CONV, C_O, C_Y, C_GOU, C_GOY, C_Y2, C_X = 0, 4, 8, 80, 24, 16, 32, 36, 40, 44, 48
C_U, C_P3, C_O1, C_Q, C_W, C_UL, C_T = 12, 96, 20, 116, 120, 92, 88
KCOPY = 4096
ZOFF = 640
UIMG = 9216

LOG2E = 1.4426950408889634
QSCALE = 0.25 * LOG2E
OPT = set()
OPTV = {}
DIAG = False
DIAG_BASE = 0xF00000
ST0 = 70
SPIN_MAX = 1 << 19
ROWS = {0: [0, 1, 2, 3, 4, 5, 6, 7, 8, 1024, 1032, 1280, 1288, 1536, 1544, None],
        1: [256, 258, 260, 262, 264, 512, 516, 520, 768, 772, 776, 1792, 1800, None, None, None]}


def f2u(x):
    return struct.unpack('<I', struct.pack('<f', x))[0]


class A:
    def __init__(self):
        self.L = []

    def __call__(self, s):
        for line in s.split('\n'):
            line = line.strip()
            if not line:
                continue
            if line.endswith(':') or line.startswith('.'):
                self.L.append(line)
            else:
                self.L.append('    ' + line)

    def text(self):
        return '\n'.join(self.L) + '\n'


def vr(a, n=1):
    return 'v%d' % a if n == 1 else 'v[%d:%d]' % (a, a + n - 1)


def sr(a, n=1):
    return 's%d' % a if n == 1 else 's[%d:%d]' % (a, a + n - 1)


def srd(a, dst, base, nbytes):
    a('s_mov_b32 s%d, s%d' % (dst, base))
    a('s_mov_b32 s%d, s%d' % (dst + 1, base + 1))
    a('s_mov_b32 s%d, 0x%x' % (dst + 2, nbytes))
    a('s_mov_b32 s%d, 0x00020000' % (dst + 3))


def mfma(d, x, y, c):
    cs = '0' if c is None else vr(c, 16)
    return 'v_mfma_f32_32x32x16_bf16 %s, %s, %s, %s' % (vr(d, 16), vr(x, 4), vr(y, 4), cs)


def cmul_many(a, items):
    for d, x, y in items:
        a('v_mul_f32 v%d, v%d, v%d' % (d, x, y))
        a('v_mul_f32 v%d, v%d, v%d' % (d + 1, x + 1, y))
    for d, x, y in items:
        a('v_fma_f32 v%d, -v%d, v%d, v%d' % (d, x + 1, y + 1, d))
        a('v_fmac_f32 v%d, v%d, v%d' % (d + 1, x, y + 1))


def stamp(a, i, real=False):
    if DIAG and ('se' not in OPT or i in (0, 13) or str(i) in OPTV.get('only', '').split(',')):
        a('%s s[%d:%d]' % ('s_memrealtime' if real or 'rt' in OPT else 's_memtime', ST0 + 2 * i, ST0 + 2 * i + 1))


def stamp_dump(a, n=14):
    if DIAG:
        a('s_waitcnt vmcnt(0)')
        stamp(a, 13, True)
        a('s_waitcnt lgkmcnt(0)')
        a('s_lshl_b32 s68, s2, 4')
        a('s_add_u32 s68, s68, s3')
        a('s_lshl_b32 s68, s68, 6')
        a('s_add_u32 s68, s68, %d' % DIAG_BASE)
        a('v_mov_b32 v1, 0')
        a('s_mov_b64 exec, 1')
        for i in range(n):
            a('v_mov_b32 v2, s%d' % (ST0 + 2 * i))
            a('buffer_store_dword v2, v1, s[8:11], s68 offen offset:%d' % (4 * i))
        a('s_mov_b64 exec, -1')


def jitter(a, k):
    if 'jit' in OPTV:
        l = label('jt')
        a('''s_mul_i32 s69, s2, %d
s_add_u32 s69, s69, s3
s_mul_i32 s69, s69, %d
s_lshr_b32 s69, s69, 7
s_and_b32 s69, s69, 3
s_cmp_lg_u32 s69, 0
s_cbranch_scc1 %s
s_sleep %s
%s:''' % (13 + 2 * k, 0x9e37 + 64 * k + int(OPTV.get('js', 0)), l, OPTV['jit'], l))


_lab = [0]


def label(p):
    _lab[0] += 1
    return 'L_%s%d' % (p, _lab[0])


def lds_spin(a, va, vt, off, thr, st=66, nap=1):
    l, e = label('sp'), label('se')
    a('''s_mov_b32 s%d, 0
%s:
ds_read_b32 v%d, v%d offset:%d
s_add_u32 s%d, s%d, 1
s_waitcnt lgkmcnt(0)
v_readfirstlane_b32 s%d, v%d
s_cmp_ge_u32 s%d, %d
s_cbranch_scc1 %s
s_cmp_ge_u32 s%d, %d
s_cbranch_scc1 %s
s_sleep %d
s_branch %s
%s:''' % (st, l, vt, va, off, st, st, st + 1, vt, st, SPIN_MAX, e, st + 1, thr, e, nap, l, e))


def lds_add(a, va, vt, off):
    a('''v_mov_b32 v%d, 1
s_mov_b64 exec, 1
ds_add_u32 v%d, v%d offset:%d
s_mov_b64 exec, -1''' % (vt, va, vt, off))


def arrive_publish(a, va, vt, off, nwaves, sflag, vz, copies=False):
    e = label('np')
    a('''v_mov_b32 v%d, 1
s_mov_b64 exec, 1
ds_add_rtn_u32 v%d, v%d, v%d offset:%d
v_mov_b32 v%d, 0
s_waitcnt lgkmcnt(0)
v_readfirstlane_b32 s66, v%d
v_mov_b32 v%d, s7
s_cmp_eq_u32 s66, %d
s_cbranch_scc0 %s
%sbuffer_store_dword v%d, v%d, s[8:11], s%d offen sc1
%s:
s_mov_b64 exec, -1''' % (vt, vt, va, vt, off, vz, vt, vt, nwaves - 1, e,
                         's_mov_b64 exec, 15\nv_mbcnt_lo_u32_b32 v%d, -1, 0\nv_mov_b32 v%d, s7\nv_lshlrev_b32 v%d, 14, v%d\n' % (vz, vt, vz, vz) if copies else '',
                         vt, vz, sflag, e))


def flag_poll(a, voff, vt, vt2, sbase):
    l, e = label('fp'), label('fe')
    ld = 'buffer_load_dword v%d, v%d, s[8:11], s%d offen sc1'
    a('''s_mov_b32 s66, 0
%s
s_sleep 4
%s:
%s
s_waitcnt vmcnt(1)
v_cmp_eq_u32 vcc, s7, v%d
s_add_u32 s66, s66, 1
s_cmp_eq_u64 vcc, -1
s_cbranch_scc1 %s
s_sleep 2
%s
s_waitcnt vmcnt(1)
v_cmp_eq_u32 vcc, s7, v%d
s_cmp_ge_u32 s66, %d
s_cbranch_scc1 %s
s_cmp_eq_u64 vcc, -1
s_cbranch_scc0 %s
%s:''' % (ld % (vt, voff, sbase), l, ld % (vt2, voff, sbase), vt, e, ld % (vt, voff, sbase), vt2, SPIN_MAX, e, l, e))


def flag_poll_lazy(a, voff, vt, sbase, nap, first=False):
    l, e, t = label('fp'), label('fe'), label('ft')
    a('s_mov_b32 s66, 0')
    if not first:
        a('s_branch %s' % t)
    a('''%s:
s_sleep %d
%s:
buffer_load_dword v%d, v%d, s[8:11], s%d offen sc1
s_add_u32 s66, s66, 1
s_waitcnt vmcnt(0)
v_cmp_eq_u32 vcc, s7, v%d
s_cmp_ge_u32 s66, %d
s_cbranch_scc1 %s
s_cmp_eq_u64 vcc, -1
s_cbranch_scc0 %s
%s:''' % (l, nap, t, vt, voff, sbase, vt, SPIN_MAX, e, l, e))


def tag_check(a, vt, vz, srd0):
    l, e = label('tp'), label('te')
    a('''s_mov_b32 s66, 0
%s:
v_readfirstlane_b32 s7, v%d
s_add_u32 s66, s66, 1
s_cmp_lg_u32 s7, 0
s_cbranch_scc1 %s
s_cmp_ge_u32 s66, %d
s_cbranch_scc1 %s
buffer_load_dword v%d, v%d, s[%d:%d], 0 offen sc1
s_waitcnt vmcnt(0)
s_branch %s
%s:''' % (l, vt, e, SPIN_MAX, e, vt, vz, srd0, srd0 + 3, l, e))


def kgen_stream():
    a = A()
    P = 20
    for i in range(8):
        a('v_lshlrev_b32 %s, 16, %s' % (vr(P + i), vr(P + i)))
    Are, Aim, Bre, Bim, Cre, Cim, LDT, DSK = range(P, P + 8)
    a('v_mul_f32 v%d, s51, v%d' % (LDT, LDT))
    a('v_exp_f32 v%d, v%d' % (LDT, LDT))
    a('s_nop 0')
    a('v_cvt_pk_bf16_f32 v%d, v%d, v%d' % (LDT, LDT, LDT))
    a('v_lshlrev_b32 v%d, 16, v%d' % (LDT, LDT))
    a('v_mul_f32 v%d, v%d, v%d' % (Are, LDT, Are))
    a('v_mul_f32 v%d, v%d, v%d' % (Aim, LDT, Aim))
    a('v_mul_f32 v%d, v%d, v%d' % (Bre, LDT, Bre))
    a('v_mul_f32 v%d, v%d, v%d' % (Bim, LDT, Bim))
    a('v_mul_f32 v%d, s51, v%d' % (Are, Are))
    a('v_mul_f32 v%d, 0.15915494, v%d' % (Aim, Aim))
    G = [32 + 2 * i for i in range(32)]
    W = [96 + 2 * i for i in range(9)]
    Z1, Z2, Z4, Z32 = 114, 116, 118, 120
    ZB = {256: 122, 512: 124, 768: 126, 1024: 128, 1280: 130, 1536: 132, 1792: 134}
    T0, PK, AD = 136, 146, 154
    R = {}
    nxt = 32
    for h in (0, 1):
        for e in ROWS[h]:
            if e is None:
                continue
            if e <= 8:
                R[e] = W[e]
            else:
                R[e] = nxt
                nxt += 2
    cmul_many(a, [(W[0], Cre, Bre)])
    direct = [(Z1, 1.0), (G[1], 8.0), (Z32, 32.0), (ZB[256], 256.0), (ZB[1024], 1024.0)]
    for i, (z, e) in enumerate(direct):
        a('v_mul_f32 v%d, 0x%x, v%d' % (T0 + 2 * i, f2u(e), Are))
        a('v_mul_f32 v%d, 0x%x, v%d' % (T0 + 2 * i + 1, f2u(e), Aim))
    for i, (z, e) in enumerate(direct):
        a('v_exp_f32 v%d, v%d' % (T0 + 2 * i, T0 + 2 * i))
        a('v_fract_f32 v%d, v%d' % (T0 + 2 * i + 1, T0 + 2 * i + 1))
    for i, (z, e) in enumerate(direct):
        a('v_cos_f32 v%d, v%d' % (z, T0 + 2 * i + 1))
        a('v_sin_f32 v%d, v%d' % (z + 1, T0 + 2 * i + 1))
    a('v_mov_b32 v%d, 1.0' % G[0])
    a('v_mov_b32 v%d, 0' % (G[0] + 1))
    for i, (z, e) in enumerate(direct):
        a('v_mul_f32 v%d, v%d, v%d' % (z, z, T0 + 2 * i))
        a('v_mul_f32 v%d, v%d, v%d' % (z + 1, z + 1, T0 + 2 * i))
    cmul_many(a, [(G[2], G[1], G[1]), (Z2, Z1, Z1), (W[1], W[0], Z1), (W[8], W[0], G[1]), (ZB[512], ZB[256], ZB[256]),
                  (ZB[1280], ZB[1024], ZB[256]), (G[5], G[1], Z32)])
    a('v_mov_b32 v%d, v%d' % (G[4], Z32))
    a('v_mov_b32 v%d, v%d' % (G[4] + 1, Z32 + 1))
    cmul_many(a, [(G[3], G[2], G[1]), (Z4, Z2, Z2), (W[2], W[0], Z2), (W[3], W[1], Z2), (ZB[768], ZB[512], ZB[256]),
                  (ZB[1536], ZB[1024], ZB[512]), (G[6], G[2], Z32)])
    cmul_many(a, [(G[7], G[3], Z32), (W[4], W[0], Z4), (W[5], W[1], Z4), (W[6], W[2], Z4), (W[7], W[3], Z4),
                  (ZB[1792], ZB[1024], ZB[768])])
    for i0 in range(8, 32, 4):
        cmul_many(a, [(G[i], G[i - 4], Z32) for i in range(i0, i0 + 4)])
    rowidx = [None] * 32
    for h in (0, 1):
        for r in range(16):
            rowidx[8 * (r >> 2) + 4 * h + (r & 3)] = ROWS[h][r]
    PG = [136 + 4 * c for c in range(8)]
    PR = [70, 74, 78, 82, 86, 90, 114, 118]
    AD = 32

    def packc(dst, regs, neg):
        for j in range(4):
            a('v_cvt_pk_bf16_f32 v%d, %sv%d, %sv%d' % (dst + j, neg, regs[2 * j], neg, regs[2 * j + 1]))

    for c in range(8):
        packc(PG[c], [G[8 * (c & 3) + j] + (c >> 2) for j in range(8)], '')
    big = [e for e in R if e > 8]
    items = [(R[e], W[e & 255], ZB[e & ~255]) for e in big]
    for i0 in range(0, len(items), 5):
        cmul_many(a, items[i0:i0 + 5])
    for c in range(8):
        comp = c >> 2
        packc(PR[c], [(R[e] if e is not None else W[0]) + comp for e in rowidx[8 * (c & 3):8 * (c & 3) + 8]], '-' if comp else '')
    for c in range(8):
        a('v_xor_b32 v%d, %d, v13' % (AD + c, c << 4))
    nvalu = len(a.L)
    for c in range(8):
        a('ds_write_b128 v%d, %s' % (AD + c, vr(PG[c], 4)))
        a('ds_write_b128 v%d, %s offset:8192' % (AD + c, vr(PR[c], 4)))
    a('s_waitcnt lgkmcnt(0)')
    KD, FR, NB = 32, 48, 4

    def gen_reads(s):
        off = s * 1024
        b = FR + 8 * (s % NB)
        a('ds_read_b64_tr_b16 %s, v14 offset:%d' % (vr(b, 2), off + 8192))
        a('ds_read_b64_tr_b16 %s, v15 offset:%d' % (vr(b + 2, 2), off + 8192))
        a('ds_read_b64_tr_b16 %s, v14 offset:%d' % (vr(b + 4, 2), off))
        a('ds_read_b64_tr_b16 %s, v15 offset:%d' % (vr(b + 6, 2), off))

    for s in range(3):
        gen_reads(s)
    for s in range(8):
        if s + 3 < 8:
            gen_reads(s + 3)
        a('s_waitcnt lgkmcnt(%d)' % (4 * min(3, 7 - s)))
        b = FR + 8 * (s % NB)
        a(mfma(KD, b, b + 4, None if s == 0 else KD))
    a('s_nop 15')
    for j in range(4):
        a('ds_write_b128 v16, %s offset:%d' % (vr(KD + 4 * j, 4), 1024 * j))
    a('s_waitcnt lgkmcnt(0)')
    return a.L, nvalu


def transpose_addrs(a, sw, vrd, vwr, vlin, t0, t1, usi, uso):
    a('''v_lshrrev_b32 v{t0}, 4, v4
v_bfe_u32 v{t1}, v4, 2, 2
v_lshl_add_u32 v{t1}, v{t0}, 3, v{t1}
v_lshlrev_b32 v{rd}, 7, v{t1}
v_and_b32 v{t1}, 3, v4
v_lshl_add_u32 v{rd}, v{t1}, 3, v{rd}
s_lshl_b32 s66, s{w}, 5
s_add_u32 s66, s66, {usi}
v_add_u32 v{rd}, s66, v{rd}
v_and_b32 v{t1}, 7, v4
v_xor_b32 v{t0}, v{t0}, v{t1}
v_lshlrev_b32 v{t0}, 4, v{t0}
v_and_b32 v{t1}, 15, v4
v_lshl_add_u32 v{wr}, v{t1}, 7, v{t0}
s_lshl_b32 s66, s{w}, 11
s_add_u32 s66, s66, {uso}
v_add_u32 v{wr}, s66, v{wr}
v_lshl_add_u32 v{lin}, v4, 4, s66
v_lshrrev_b32 v{t0}, 3, v4
v_and_b32 v{t1}, 7, v4
v_xor_b32 v{t1}, v{t1}, v{t0}'''.format(t0=t0, t1=t1, rd=vrd, wr=vwr, lin=vlin, w=sw, usi=usi, uso=uso))


def transpose_a(a, vrd, vwr, d, t):
    a('''ds_read_b64_tr_b16 v[{d0}:{d1}], v{rd}
ds_read_b64_tr_b16 v[{d2}:{d3}], v{rd} offset:512
ds_read_b64_tr_b16 v[{d4}:{d5}], v{rd} offset:4096
ds_read_b64_tr_b16 v[{d6}:{d7}], v{rd} offset:4608
v_xor_b32 v{t}, 64, v{wr}
s_waitcnt lgkmcnt(2)
ds_write_b128 v{wr}, v[{d0}:{d3}]
s_waitcnt lgkmcnt(1)
ds_write_b128 v{t}, v[{d4}:{d7}]
s_waitcnt lgkmcnt(0)'''.format(rd=vrd, wr=vwr, t=t, **{'d%d' % i: d + i for i in range(8)}))


def kernel():
    a = A()
    KN = NAME + '_kernel'
    a('''.p2align 8
.type {k},@function
{k}:
s_cmp_ge_u32 s2, 256
s_cbranch_scc1 L_end
s_load_dwordx16 s[16:31], s[0:1], 8
s_load_dwordx4 s[32:35], s[0:1], 72
s_load_dwordx4 s[36:39], s[0:1], 104'''.format(k=KN))
    stamp(a, 0, True)
    stamp(a, 1)
    if 'enc' in OPTV:
        a('s_memrealtime s[90:91]')
    a('''v_lshrrev_b32 v3, 6, v0
v_and_b32 v4, 63, v0
s_and_b32 s44, s2, 7
s_lshr_b32 s45, s2, 3
v_readfirstlane_b32 s3, v3
s_lshl_b32 s60, s44, 6
s_lshl_b32 s46, s45, 1
s_add_u32 s60, s60, s46
s_lshl_b32 s46, s60, 8
v_lshl_add_u32 v5, v0, 1, s46
s_lshr_b32 s4, s44, 1
s_lshl_b32 s4, s4, 3
s_and_b32 s46, s45, 7
s_add_u32 s4, s4, s46
s_and_b32 s5, s44, 1
s_lshl_b32 s5, s5, 2
s_lshr_b32 s47, s45, 3
s_add_u32 s5, s5, s47
s_lshl_b32 s47, s47, 1
%s
s_cmp_ge_u32 s3, 4
s_cbranch_scc1 L_gemm''' % {'0': 's_mov_b32 s6, 0', '1': 's_add_u32 s6, s46, s47', '2': 's_and_b32 s6, s46, 4', '3': 's_and_b32 s6, s46, 6'}[OPTV.get('rot', '1')])
    SEG = (2, 1, 0) if 'vk' in OPT else (1, 2, 0)
    S = [16, 32]
    Pp = [48, 56]
    O = [64, 80]
    Q = [96, 100]
    OWN = 'own' in OPT
    DK = int(OPTV.get('dk', 3))
    NB, NBV = DK + 1, DK + 1 if DK == 3 else DK
    K = [104 + 4 * b for b in range(NB)]
    V0 = 104 + 4 * NB
    V = [[V0 + 8 * b, V0 + 4 + 8 * b] for b in range(NBV)]
    KA, VA = 14, 15
    assert V0 + 8 * NBV <= 160

    WOW = OPTV.get('wow', 'mid')

    def wo_dma():
        srd(a, 12, 32, 512 * 1024)
        a('''v_lshrrev_b32 v6, 3, v4
v_lshlrev_b32 v6, 10, v6
v_bfe_u32 v7, v4, 4, 1
v_lshlrev_b32 v7, 2, v7
v_and_b32 v8, 7, v4
v_xor_b32 v7, v7, v8
v_lshl_add_u32 v6, v7, 4, v6
v_add_u32 v7, %d, v6
s_lshl_b32 s57, s48, 10
s_lshl_b32 s26, s49, 14
s_add_u32 s57, s57, s26
s_lshl_b32 s26, s5, 7
s_lshl_b32 s27, s48, 13
s_add_u32 s26, s26, s27''' % (16384 - 2048))
        for cc in range(4):
            a('s_add_u32 s38, s51, %d' % cc)
            a('s_and_b32 s38, s38, 7')
            a('s_lshl_b32 s30, s38, 16')
            for g in range(2):
                a('s_add_u32 m0, s57, %d' % (g * 32768 + cc * 4096))
                a('s_add_u32 s30, s30, s26' if g == 0 else 's_add_u32 s30, s30, 0x8000')
                a('buffer_load_dwordx4 v6, s[12:15], s30 offen lds')
                a('buffer_load_dwordx4 v7, s[12:15], s30 offen offset:2048 lds')

    def att_prologue(early):
        a('''s_lshr_b32 s19, s3, 3
s_and_b32 s18, s3, 1
s_lshl_b32 s24, s19, 1
s_add_u32 s18, s18, s24
s_bfe_u32 s24, s3, 0x10001
v_lshlrev_b32 v5, 4, v4
s_lshl_b32 s26, s18, 10
s_add_u32 s26, s26, %d
s_lshl_b32 s27, s24, 12
s_add_u32 s26, s26, s27
v_add_u32 v13, s26, v5
s_lshl_b32 s27, s5, 2
s_add_u32 s18, s18, s27
s_lshl_b32 s22, s18, 16
s_add_u32 s27, s22, %d
v_add_u32 v%d, s27, v5
s_lshl_b32 s36, s24, 10
%s
s_mov_b32 s37, s36
v_lshrrev_b32 v6, 5, v4
v_and_b32 v7, 15, v4
v_lshlrev_b32 v7, 4, v7
v_lshl_add_u32 v7, v6, 8, v7
s_add_u32 s27, s22, %d
v_add_u32 v%d, s27, v7
v_and_b32 v6, 31, v4
v_cmp_eq_u32 vcc, 16, v6
v_cmp_eq_u32 s[28:29], 20, v6
s_mov_b32 s30, 0x3f803f80
s_or_b64 vcc, vcc, s[28:29]
v_mov_b32 v7, s30
s_mov_b32 s40, 0xffff
s_mov_b32 s41, 0xffff
v_cndmask_b32 v6, 0, v7, vcc''' % (QX, KF, KA, 's_lshl_b32 s37, s4, 11\ns_add_u32 s36, s36, s37' if OWN else '', VF, VA))
        for b in range(NBV):
            for u in range(2):
                for j in range(4):
                    a('v_mov_b32 v%d, v6' % (V[b][u] + j))
        for q in range(2):
            for j in range(16):
                a('v_mov_b32 v%d, 0' % (O[q] + j))

        if early:
            a('''s_and_b32 s48, s3, 1
s_bfe_u32 s49, s3, 0x10001
v_lshrrev_b32 v8, 5, v4
v_bfe_u32 v160, v4, 2, 2
v_lshl_add_u32 v160, v8, 2, v160
v_lshlrev_b32 v160, 7, v160
v_bfe_u32 v9, v4, 3, 1
v_lshl_add_u32 v160, v9, 6, v160
v_and_b32 v9, 1, v4
v_lshl_add_u32 v160, v9, 5, v160
v_bfe_u32 v9, v4, 4, 1
v_lshl_add_u32 v160, v9, 4, v160
v_bfe_u32 v9, v4, 1, 1
v_lshl_add_u32 v160, v9, 3, v160
s_lshl_b32 s26, s49, 14
v_add_u32 v161, s26, v160
s_lshl_b32 s26, s49, 6
v_xor_b32 v161, s26, v161
v_xor_b32 v160, 64, v161
v_and_b32 v162, 31, v4
v_lshlrev_b32 v162, 11, v162
v_lshl_add_u32 v162, v8, 5, v162
s_lshl_b32 s26, s4, 17
s_lshl_b32 s50, s48, 16
s_add_u32 s26, s26, s50
s_lshl_b32 s27, s5, 7
s_add_u32 s26, s26, s27
s_lshl_b32 s50, s49, 6
s_add_u32 s50, s50, s26
s_add_u32 s50, s50, 1024
s_lshl_b32 s51, s49, 2
s_add_u32 s51, s51, s5
v_and_b32 v163, 3, v4
v_add_u32 v163, s51, v163
v_and_b32 v163, 7, v163
v_lshlrev_b32 v163, 7, v163
s_lshl_b32 s52, s4, 10
s_add_u32 s52, s52, %d
s_lshl_b32 s53, s4, 16
s_lshl_b32 s26, s48, 15
s_add_u32 s53, s53, s26
s_add_u32 s53, s53, %d
s_sub_u32 s26, s3, 4
s_lshl_b32 s27, s26, 12
s_add_u32 s27, s27, %d
v_add_u32 v164, s27, v5
v_xor_b32 v165, 0x2000, v164
s_lshl_b32 s26, s26, 2
v_add_u32 v166, s26, v12
v_xor_b32 v167, 8, v166''' % (FL2, OF, GEN))
        else:
            a('v_mov_b32 v163, 0')
            a('s_mov_b32 s52, %d' % FL2)
        a('''s_lshl_b32 s54, s4, 1
s_add_u32 s54, s54, s24
s_lshl_b32 s54, s54, 15
s_lshl_b32 s26, s18, 10
s_add_u32 s54, s54, s26
s_add_u32 s54, s54, %d
v_mov_b32 v8, -1
v_mov_b32 v9, -1
v_mov_b32 v10, -1
v_mov_b32 v11, -1
s_lshl_b32 s55, s4, 3
s_add_u32 s55, s55, s5
s_lshl_b32 s55, s55, 7
s_add_u32 s55, s55, %d
buffer_store_dwordx4 v[8:11], v5, s[8:11], s54 offen sc1''' % (OF, FL2))


    a('''s_lshr_b32 s61, s3, 1
s_add_u32 s52, s60, s61
s_lshl_b32 s46, s52, 1
v_mov_b32 v19, s46
s_and_b32 s53, s3, 1
s_waitcnt lgkmcnt(0)''')
    P = 20
    a('global_load_ushort %s, v19, s[28:29]' % vr(P + 6))
    for i in range(6):
        a('global_load_ushort %s, v5, %s' % (vr(P + i), sr(16 + 2 * i, 2)))
    a('global_load_ushort %s, v19, s[30:31]' % vr(P + 7))
    a('''s_getpc_b64 s[40:41]
v_and_b32 v1, 7, v0
v_lshlrev_b32 v1, 7, v1
s_lshl_b32 s46, s45, 10
v_add_u32 v1, s46, v1
global_load_dword v2, v1, s[40:41]''')
    a('s_branch L_gen2')

    a('''L_gemm:
s_cmp_ge_u32 s3, 8
s_cbranch_scc1 L_mm
s_setprio 2
s_sub_u32 s61, s3, 4
v_lshrrev_b32 v10, 3, v4
v_lshrrev_b32 v11, 4, v4
v_and_b32 v12, 7, v4
v_xor_b32 v13, v12, v11
s_lshl_b32 s47, s61, 4
v_add_u32 v10, s47, v10
s_lshl_b32 s46, s4, 16
v_lshl_add_u32 v14, v10, 10, s46
v_lshl_add_u32 v6, v13, 4, v14
v_xor_b32 v7, 64, v6
v_add_u32 v7, 0x1c00, v7
v_lshlrev_b32 v16, 10, v10
v_lshl_add_u32 v16, v12, 4, v16
v_mul_u32_u24 v10, 3072, v10
v_and_b32 v11, 1, v11
v_lshlrev_b32 v11, 2, v11
v_xor_b32 v12, v12, v11
v_lshl_add_u32 v8, v12, 4, v10
s_lshl_b32 s46, s5, 7
v_add_u32 v8, s46, v8
v_add_u32 v9, %d, v8
s_lshl_b32 s48, s61, 11
s_waitcnt lgkmcnt(0)''' % (8 * 3072 - 1024))
    srd(a, 16, 32, 2048 * 1024)
    srd(a, 12, 34, 512 * 3072)

    def dma_chunk(c):
        slot = (c % 6) * 16384
        if c < 8:
            a('s_add_u32 s50, s6, %d' % c)
            a('s_and_b32 s50, s50, 7')
            a('s_mul_i32 s49, s50, %d' % (64 * 3072))
            a('s_add_u32 m0, s48, %d' % slot)
            a('s_lshl_b32 s50, s50, 7')
            a('buffer_load_dwordx4 v6, s[16:19], s50 offen lds')
            a('buffer_load_dwordx4 v7, s[16:19], s50 offen offset:1024 lds')
            a('s_add_u32 m0, s48, %d' % (slot + 8192))
            a('s_add_u32 s49, s49, %d' % (SEG[0] * 1024))
            a('buffer_load_dwordx4 v8, s[12:15], s49 offen lds')
            a('buffer_load_dwordx4 v9, s[12:15], s49 offen offset:1024 lds')
        else:
            p, j = 1 + ((c - 8) >> 2), (c - 8) & 3
            for hf in range(2):
                a('s_add_u32 s50, s6, %d' % (2 * j + hf))
                a('s_and_b32 s50, s50, 7')
                a('s_mul_i32 s49, s50, %d' % (64 * 3072))
                a('s_add_u32 m0, s48, %d' % (slot + hf * 8192))
                a('s_add_u32 s49, s49, %d' % (SEG[p] * 1024))
                a('buffer_load_dwordx4 v8, s[12:15], s49 offen lds')
                a('buffer_load_dwordx4 v9, s[12:15], s49 offen offset:1024 lds')

    dma_chunk(0)
    dma_chunk(1)
    a('s_load_dwordx2 s[20:21], s[0:1], 0')
    srd(a, 8, 38, WS_BYTES)
    a('''s_lshl_b32 s46, s45, 16
s_lshl_b32 s47, s44, 7
s_add_u32 s58, s46, s47
s_add_u32 s59, s48, %d
v_add_u32 v17, 0x1c00, v16
v_mov_b32 v12, %d
s_waitcnt lgkmcnt(0)''' % (USI, CNT))
    srd(a, 60, 20, 2048 * 1024)
    jitter(a, 7)
    order = [0, 1]
    cnt = lambda x: 4 if isinstance(x, int) else x[1]
    stamp(a, 2)
    for c in range(16):
        a('s_waitcnt vmcnt(%d)' % sum(cnt(x) for x in order[order.index(c) + 1:]))
        if c in (0, 8, 12):
            stamp(a, {0: 3, 8: 4, 12: 5}[c])
        a('s_barrier')
        if 'bars' in OPT and c <= 12 and c != 1:
            n = 1 + c - (c > 1)
            a('s_memrealtime s[%d:%d]' % (ST0 + 2 * n, ST0 + 2 * n + 1))
        for n in {0: [2, 3], 1: [4, 5]}.get(c, [c + 4] if c + 4 < 16 else []):
            dma_chunk(n)
            order.append(n)
        if c == int(OPTV.get('wpo', 11)) and WOW == 'win':
            a('''s_load_dwordx2 s[32:33], s[0:1], 88
v_and_b32 v26, 15, v4
v_lshlrev_b32 v26, 10, v26
s_and_b32 s46, s4, 7
s_lshl_b32 s46, s46, 16
s_lshl_b32 s47, s5, 7
s_add_u32 s46, s46, s47
s_lshl_b32 s47, s48, 3
s_add_u32 s46, s46, s47
v_add_u32 v26, s46, v26
s_waitcnt lgkmcnt(0)
global_load_dword v27, v26, s[32:33]''')
            order.append(('w', 1))
        if c == 12:
            att_prologue(True)
            order.append(('m', 1))
        if c == 13:
            a('s_mov_b32 m0, s59')
            a('s_nop 0')
            a('buffer_load_dwordx4 v16, s[60:63], s58 offen lds')
            a('buffer_load_dwordx4 v17, s[60:63], s58 offen offset:1024 lds')
            order.append(('u', 2))
    a('''s_load_dwordx2 s[32:33], s[0:1], 88
s_waitcnt lgkmcnt(0)
s_barrier
ds_read_b32 v1, v12 offset:%d
s_waitcnt lgkmcnt(0)
v_readfirstlane_b32 s7, v1
s_waitcnt vmcnt(0)''' % C_TAG)
    lds_add(a, 12, 3, C_UL)
    a('s_branch L_att')

    a('L_gen2:')
    srd(a, 8, 38, WS_BYTES)
    srd(a, 12, 36, 256)
    a('''v_mov_b32 v18, 0
s_or_b32 s46, s2, s3
s_cmp_eq_u32 s46, 0
s_cbranch_scc0 L_notag
s_memrealtime s[46:47]
s_waitcnt lgkmcnt(0)
s_or_b32 s46, s46, 1
v_mov_b32 v1, s46
s_mov_b64 exec, 1
buffer_store_dword v1, v18, s[12:15], 0 offen sc1
s_mov_b64 exec, -1
s_waitcnt vmcnt(0)
L_notag:''')
    a('''s_lshl_b32 s62, s3, 14
s_add_u32 s62, s62, %d
v_and_b32 v10, 7, v4
v_lshlrev_b32 v10, 4, v10
v_lshl_add_u32 v13, v4, 7, v10
v_add_u32 v13, s62, v13
v_lshrrev_b32 v10, 5, v4
v_bfe_u32 v11, v4, 3, 1
v_lshl_add_u32 v10, v10, 2, v11
v_bfe_u32 v11, v4, 2, 1
v_lshlrev_b32 v11, 2, v11
v_bfe_u32 v12, v4, 4, 1
v_lshl_add_u32 v11, v12, 1, v11
v_bfe_u32 v12, v4, 1, 1
v_add_u32 v11, v11, v12
v_xor_b32 v11, v11, v10
v_lshlrev_b32 v11, 4, v11
v_lshl_add_u32 v11, v10, 7, v11
v_and_b32 v12, 1, v4
v_lshl_add_u32 v11, v12, 3, v11
v_add_u32 v14, s62, v11
v_xor_b32 v15, 32, v14
v_add_u32 v15, 256, v15
v_lshl_add_u32 v16, v4, 4, s62
v_xor_b32 v17, 0x4000, v16
v_mov_b32 v12, %d
s_mov_b32 s51, 0x%x''' % (GEN, CNT, f2u(LOG2E)))
    p1, nvalu = kgen_stream()
    t = A()
    transpose_addrs(t, 3, 5, 6, 7, 9, 10, USI, USO)
    t('''v_mul_u32_u24 v122, {rs}, v9
v_lshl_add_u32 v8, v10, 4, v122
v_and_b32 v11, 7, v4
v_lshl_add_u32 v122, v11, 4, v122
v_add_u32 v123, {y2}, v122
v_and_b32 v124, 1, v9
v_lshrrev_b32 v125, 1, v9
v_lshl_add_u32 v124, v124, 5, v125
v_lshlrev_b32 v124, 11, v124
v_lshl_add_u32 v124, v10, 4, v124
v_bfe_u32 v10, v4, 4, 1
v_lshlrev_b32 v10, 2, v10
v_xor_b32 v10, v10, v11
v_lshlrev_b32 v125, 10, v9
v_lshl_add_u32 v125, v10, 4, v125
v_and_b32 v28, 31, v4
v_lshrrev_b32 v29, 5, v4
v_lshlrev_b32 v126, 6, v28
v_lshlrev_b32 v127, 6, v4
v_lshlrev_b32 v128, 2, v28
v_lshl_add_u32 v128, v29, 8, v128
v_and_b32 v129, 15, v4
v_lshlrev_b32 v129, 10, v129
s_lshl_b32 s63, s61, 2
v_add_u32 v11, s63, v12
s_lshl_b32 s64, s61, 15
s_add_u32 s64, s64, {uimg}
s_lshl_b32 s46, s53, 6
s_add_u32 s46, s46, s62
s_add_u32 s46, s46, {kc}
v_lshlrev_b32 v10, 4, v28
v_sub_u32 v9, s46, v10
v_cmp_eq_u32 s[56:57], 0, v4
v_mul_i32_i24 v10, 512, v29
v_sub_u32 v96, v9, v10
v_mul_i32_i24 v10, -1024, v29
v_sub_u32 v97, v9, v10
v_subrev_u32 v97, 2048, v97
v_subrev_u32 v98, 1536, v9
v_lshrrev_b32 v10, 2, v28
v_lshlrev_b32 v10, 1, v10
v_lshl_add_u32 v10, v29, 5, v10
s_lshl_b32 s47, s53, 1
s_sub_u32 s47, s46, s47
s_add_u32 s48, s47, {z1}
v_sub_u32 v10, s48, v10
v_and_b32 v99, 3, v28
v_lshl_add_u32 v99, v99, 7, v10
v_bfe_u32 v100, v28, 1, 1
v_lshl_add_u32 v100, v100, 7, v10
s_add_u32 s48, s46, {z2}
v_lshl_add_u32 v101, v4, 4, s48
s_add_u32 s48, s47, {z3}
v_lshl_add_u32 v102, v4, 1, s48
s_add_u32 s48, s46, 16
v_lshl_add_u32 v103, v4, 4, s48
s_lshl_b32 s47, s53, 1
v_add_u32 v10, s47, v29
v_mul_u32_u24 v10, 1536, v10
v_lshl_add_u32 v10, v28, 4, v10
v_add_u32 v104, s64, v10
v_and_b32 v9, 30, v4
v_and_b32 v10, 1, v4
v_lshlrev_b32 v24, 3, v29
v_sub_u32 v24, v24, v9
v_lshlrev_b32 v24, 1, v24
v_mul_u32_u24 v9, {par}, v10
v_add_u32 v24, v24, v9
s_add_u32 s46, s64, {t0}
v_add_u32 v24, s46, v24
s_lshl_b32 s46, s53, 9
s_add_u32 s46, s46, s64
s_add_u32 s46, s46, {a0}
v_mul_u32_u24 v25, 1536, v29
v_lshl_add_u32 v25, v28, 4, v25
v_add_u32 v25, s46, v25
v_lshlrev_b32 v20, 1, v28
v_lshl_add_u32 v20, v29, 8, v20
s_add_u32 s46, s62, 64
v_add_u32 v20, s46, v20
v_xor_b32 v10, 1, v10
v_mul_u32_u24 v21, {par2}, v10
v_lshlrev_b32 v10, 3, v29
v_sub_u32 v10, v10, v28
v_lshl_add_u32 v21, v10, 1, v21
s_add_u32 s46, s62, {z4}
v_add_u32 v21, s46, v21
v_bfe_u32 v9, v4, 2, 2
v_lshl_add_u32 v9, v29, 3, v9
v_bfe_u32 v10, v4, 4, 1
v_lshlrev_b32 v10, 2, v10
v_and_b32 v30, 3, v4
v_add_u32 v10, v10, v30
v_lshlrev_b32 v22, 6, v9
v_lshl_add_u32 v22, v10, 3, v22
s_add_u32 s46, s62, 16
v_add_u32 v22, s46, v22
s_add_u32 s46, s64, 496'''.format(rs=RS, y2=8 * RS - 1024, uimg=GEN + UIMG, kc=KCOPY + 255 * 16, z1=ZOFF + 62 - 32 - 255 * 16,
                                  z2=416 - 255 * 16, z3=490 - 255 * 16, par=16384 + 64 - 4, t0=KCOPY - UIMG + 32 * 120 + 64,
                                  a0=512 - 3 * 16, par2=16384 + 64 - 2, z4=KCOPY + ZOFF + 62))
    for r_, dst in ((0, 23), (1, 26)):
        t('''v_add_u32 v30, {o}, v10
v_and_b32 v19, 1, v30
v_lshlrev_b32 v{d}, 3, v19
v_bfe_u32 v19, v30, 1, 2
v_mul_u32_u24 v19, 1536, v19
v_add_u32 v{d}, v{d}, v19
v_lshrrev_b32 v30, 3, v30
v_add_u32 v30, v30, v9
v_lshl_add_u32 v{d}, v30, 4, v{d}
v_add_u32 v{d}, s46, v{d}'''.format(o=7 - 4 * r_, d=dst))
    p1 = p1[:nvalu] + t.L + p1[nvalu:]
    nvalu += len(t.L)
    sizes = [int(x) for x in OPTV.get('sl', '90,145,50,0,0,0,0,0,0,0,0,0,0,0,0,125,125').split(',')]
    cuts = [0]
    for z in sizes:
        cuts.append(min(nvalu, cuts[-1] + z))
    assert cuts[min(15, len(cuts) - 1)] <= nvalu - len(t.L)
    print('kgen instructions', len(p1), 'pure valu', nvalu, cuts, file=sys.stderr)
    a('s_load_dwordx4 s[32:35], s[0:1], 88')
    stamp(a, 2)
    jitter(a, 1)
    a('s_waitcnt vmcnt(1) lgkmcnt(0)')
    for c in range(16):
        if c < len(sizes):
            a.L += p1[cuts[c]:cuts[c + 1]]
        if c == 8:
            a('buffer_load_dword v1, v18, s[12:15], 0 offen sc1')
        if c == 14:
            a('s_waitcnt vmcnt(0)')
            tag_check(a, 1, 18, 12)
            a('''v_cmp_eq_u32 vcc, 0, v4
v_lshl_add_u32 v2, v4, 2, v12
s_cmp_eq_u32 s3, 0
v_cndmask_b32 v1, 0, v1, vcc
s_cbranch_scc0 L_tagd
ds_write_b32 v2, v1
s_waitcnt lgkmcnt(0)
L_tagd:''')
        a('s_barrier')
    if len(sizes) > 16:
        a.L += p1[cuts[16]:cuts[17]]
    a('s_barrier')
    stamp(a, 3)
    if 'noc' in OPT:
        lds_add(a, 12, 1, C_Y2)
        a('s_waitcnt lgkmcnt(0)')
        stamp_dump(a)
        a('s_endpgm')
    a('s_setprio %s' % OPTV.get('cprio', '3'))
    srd(a, 16, 34, 2048 * 2048)
    srd(a, 12, 32, 512 * 1024)
    jitter(a, 2)
    a.L += p1[cuts[-1]:]
    jitter(a, 3)
    lds_add(a, 11, 1, C_PAIR)
    KD = 32
    lds_spin(a, 12, 3, C_UL, 4)
    transpose_a(a, 5, 6, 48, 10)
    a('''ds_read_b128 v[80:83], v7
ds_read_b128 v[84:87], v7 offset:1024
s_mul_i32 s46, s44, %d
s_mul_i32 s47, s3, %d
s_add_u32 s46, s46, s47
s_lshl_b32 s47, s45, 7
s_add_u32 s46, s46, s47
s_add_u32 s46, s46, %d
s_add_u32 s47, s46, %d
s_lshl_b32 s65, s44, 5
s_add_u32 s65, s65, s45
s_lshl_b32 s65, s65, 6
s_add_u32 s65, s65, %d
s_mov_b32 s58, -1
s_mov_b32 s59, 0
s_mov_b32 s40, 0
s_mov_b32 s41, -1
s_mov_b32 s42, 0x55555555
s_mov_b32 s43, 0x55555555
v_mov_b32 v88, 0
v_mov_b32 v89, 0
v_mov_b32 v90, 0
v_mov_b32 v91, 0
s_waitcnt lgkmcnt(1)
buffer_store_dwordx4 v[80:83], v8, s[8:11], s46 offen sc1
s_waitcnt lgkmcnt(0)
buffer_store_dwordx4 v[84:87], v8, s[8:11], s47 offen sc1''' % (64 * RS, 16 * RS, UT, 8 * RS, FLU))
    lds_spin(a, 11, 1, C_PAIR, 2)
    a('ds_write_b128 v104, v[88:91]')
    a('ds_write_b128 v101, v[88:91]')
    for j in range(4):
        a('ds_read_b128 %s, v17 offset:%d' % (vr(48 + 4 * j, 4), 1024 * j))
    a('''v_mov_b32 v19, 0x3f80
s_mov_b64 exec, 0xff
ds_write_b16 v102, v19
s_mov_b64 exec, -1''')
    a('v_cndmask_b32 v9, 0, v27, s[56:57]')
    a('v_add_f32 v%d, v%d, v9' % (KD, KD))
    a('s_waitcnt lgkmcnt(0)')
    for j in range(16):
        a('v_add_f32 v%d, v%d, v%d' % (KD + j, KD + j, 48 + j))
    for i, r in enumerate((9, 11, 13)):
        a('v_sub_f32 v%d, v%d, v%d' % (48 + i, KD + r, KD + r + 1))
    for i, r in enumerate((9, 11, 13)):
        a('v_cvt_pk_bf16_f32 v%d, v%d, v%d' % (48 + i, KD + r + 1, 48 + i))
    a('v_cndmask_b32 v51, 0, v%d, s[56:57]' % (KD + 9))
    for i in (1, 0, 2):
        if i == 0:
            a('s_mov_b64 exec, s[58:59]')
        a('ds_write_b16 v99, v%d offset:%d' % (48 + i, 32 - 16 * i))
    a('s_mov_b64 exec, s[42:43]')
    for i in (1, 0, 2):
        if i == 0:
            a('s_mov_b32 exec_hi, 0')
        a('ds_write_b16_d16_hi v100, v%d offset:%d' % (48 + i, 512 + 32 - 16 * i))
    a('s_mov_b64 exec, -1')
    OB = 64

    def pack(dst, vals):
        for j in range(4):
            a('v_cvt_pk_bf16_f32 v%d, v%d, v%d' % (dst + j, vals[2 * j], vals[2 * j + 1]))

    def emit_copy(cp):
        k = lambda r: KD + r
        r0 = [k(i) for i in range(9)]
        r1 = [k(0), k(0), k(1), k(2), k(2), k(2), k(3), k(4), k(4)]
        r2 = lambda b: [k(b), k(b), k(b), k(b + 1), k(b + 1), k(b + 1), k(b + 2), k(b + 2), k(b + 2)]
        r3 = [51] * 4 + [89] * 5
        sel = (lambda p: p[8:0:-1]) if cp == 0 else (lambda p: p[7::-1])
        a('s_mov_b64 exec, s[58:59]')
        pack(OB, sel(r0))
        pack(OB + 4, sel(r3))
        a('s_mov_b64 exec, s[40:41]')
        pack(OB, sel(r1))
        pack(OB + 4, sel(r2(5)))
        pack(OB + 8, sel(r2(8)))
        a('s_mov_b64 exec, -1')
        if cp == 0:
            a('v_cvt_pk_bf16_f32 v10, v%d, v88' % KD)
            a('v_cndmask_b32 v88, 0, v10, s[56:57]')

    a('s_cmp_eq_u32 s53, 0')
    a('s_cbranch_scc0 L_copy1')
    emit_copy(0)
    a('s_branch L_copyd')
    a('L_copy1:')
    emit_copy(1)
    a('L_copyd:')
    for sl in range(2):
        a('ds_write_b128 v%d, %s' % (96 + sl, vr(OB + 4 * sl, 4)))
    a('s_mov_b64 exec, s[40:41]')
    a('ds_write_b128 v98, %s' % vr(OB + 8, 4))
    a('s_mov_b64 exec, 15')
    a('ds_write_b128 v103, v[88:91]')
    a('s_mov_b64 exec, -1')
    if 'x1' in OPT:
        lds_add(a, 12, 1, C_Y2)
        a('s_waitcnt lgkmcnt(0)')
        stamp_dump(a)
        a('s_endpgm')
    a('s_waitcnt vmcnt(0)')
    arrive_publish(a, 12, 1, C_U, 4, 65, 2)
    stamp(a, 4)
    a('''s_lshl_b32 s46, s44, 11
s_add_u32 s46, s46, %d
s_cmp_eq_u32 s3, 0
s_cbranch_scc0 L_uw''' % FLU)
    flag_poll_lazy(a, 126, 1, 46, int(OPTV.get('usl', 24)), True)
    lds_add(a, 12, 3, C_GOU)
    a('L_uw:')
    lds_spin(a, 12, 3, C_GOU, 1, nap=4)
    a('''s_mul_i32 s46, s52, %d
s_lshl_b32 s47, s53, 5
s_add_u32 s46, s46, s47
s_add_u32 s46, s46, %d
s_mul_i32 s47, s53, 3072
s_add_u32 s47, s47, s64
s_add_u32 m0, s47, 512
s_nop 0
buffer_load_dwordx4 v127, s[8:11], s46 offen sc1 lds
s_add_u32 m0, s47, 2048
s_add_u32 s46, s46, 16
buffer_load_dwordx4 v127, s[8:11], s46 offen sc1 lds''' % (RS, UT))
    TB, UB, CA = 32, 40, 48
    CB = 64
    for j in range(16):
        a('v_mov_b32 v%d, 0' % (CA + j))
    a('''s_add_u32 s34, s53, 8
s_mov_b32 s35, 0
s_waitcnt vmcnt(0) lgkmcnt(0)''')
    lds_add(a, 12, 1, C_CONV)
    if WOW != 'win':
        a('''s_and_b32 s46, s45, 7
s_lshl_b32 s46, s46, 16
s_lshl_b32 s47, s5, 7
s_add_u32 s46, s46, s47
s_lshl_b32 s47, s3, 14
s_add_u32 s46, s46, s47
buffer_load_dword v31, v129, s[12:15], s46 offen''')
    lds_spin(a, 12, 1, C_CONV, 4)
    if 'x2' in OPT:
        lds_add(a, 12, 1, C_Y2)
        a('s_waitcnt lgkmcnt(0)')
        stamp_dump(a)
        a('s_endpgm')
    stamp(a, 5)
    jitter(a, 4)

    def conv_loop(lab, acc, send):
        a(lab + ':')
        for j in range(8):
            t = TB + 4 * (j & 1)
            if 'not' not in OPT or j == 0:
                a('ds_read2_b32 %s, v24 offset0:%d offset1:%d' % (vr(t, 2), 8 * (7 - j), 8 * (7 - j) + 1))
                a('ds_read2_b32 %s, v24 offset0:%d offset1:%d' % (vr(t + 2, 2), 8 * (7 - j) + 2, 8 * (7 - j) + 3))
            a('ds_read_b128 %s, v25 offset:%d' % (vr(UB + 4 * (j & 1), 4), (3072 if j % 2 == 0 else 0) + (3 - (j >> 1)) * 16))
            a('s_waitcnt lgkmcnt(0)')
            a(mfma(acc, UB + 4 * (j & 1), t, acc))
            if 'cs' in OPTV:
                a('s_sleep %s' % OPTV['cs'])
        a('''v_subrev_u32 v24, 256, v24
v_subrev_u32 v25, 64, v25
s_add_u32 s35, s35, 1
s_cmp_lt_u32 s35, %s
s_cbranch_scc1 %s''' % (send, lab))

    if 'noconv' not in OPT:
        conv_loop('L_cl', CA, 's34')
        a('''s_cmp_eq_u32 s53, 0
s_cbranch_scc0 L_cr
v_subrev_u32 v24, 1536, v24
v_add_u32 v25, 512, v25''')
        for j in range(3):
            t = 96 + 8 * j
            a('ds_read2_b32 %s, v24 offset0:%d offset1:%d' % (vr(t, 2), 8 * (7 - j), 8 * (7 - j) + 1))
            a('ds_read2_b32 %s, v24 offset0:%d offset1:%d' % (vr(t + 2, 2), 8 * (7 - j) + 2, 8 * (7 - j) + 3))
            a('ds_read_b128 %s, v25 offset:%d' % (vr(t + 4, 4), (3072 if j % 2 == 0 else 0) + (3 - (j >> 1)) * 16))
        a('v_mov_b32 v88, 0')
        for j in range(3):
            a('s_waitcnt lgkmcnt(%d)' % (6 - 3 * j))
            a(mfma(CB, 100 + 8 * j, 96 + 8 * j, None if j == 0 else CB))
        a('''s_mov_b64 exec, 15
ds_write_b128 v16, v[88:91]
s_mov_b64 exec, -1
s_nop 11''')
        for k in range(8):
            a('v_cvt_pk_bf16_f32 v%d, v%d, v%d' % (32 + k, CB + 2 * k, CB + 2 * k + 1))
        for k in range(8):
            r = 2 * k
            a('ds_write_b16 v20, v%d offset:%d' % (32 + k, (8 * (r >> 2) + (r & 3)) * 64))
            a('ds_write_b16_d16_hi v20, v%d offset:%d' % (32 + k, (8 * (r >> 2) + (r & 3) + 1) * 64))
        steps = [(i, st) for i in (4, 5, 0, 1, 2, 3) for st in range(2)]
        for n, (i, st) in enumerate(steps):
            t = 96 + 8 * (n & 1)
            o = i * 32 + st * 8
            a('ds_read2_b32 %s, v21 offset0:%d offset1:%d' % (vr(t, 2), o, o + 1))
            a('ds_read2_b32 %s, v21 offset0:%d offset1:%d' % (vr(t + 2, 2), o + 2, o + 3))
            for rd in range(2):
                if i < 4:
                    a('ds_read_b64_tr_b16 %s, v22 offset:%d' % (vr(t + 4 + 2 * rd, 2), st * 1024 + rd * 256 + 16 * (3 - i)))
                else:
                    a('ds_read_b64_tr_b16 %s, v%d offset:%d' % (vr(t + 4 + 2 * rd, 2), (23, 26)[i - 4], st * 256 + rd * 64))
            a('s_waitcnt lgkmcnt(0)')
            a(mfma(CB, t, t + 4, None if n == 0 else CB))
        a('s_nop 15')
        for j in range(4):
            a('ds_write_b128 v16, %s offset:%d' % (vr(CB + 4 * j, 4), 1024 * j))
        a('s_waitcnt lgkmcnt(0)')
        lds_add(a, 11, 1, C_PAIR)
        a('s_branch L_cd')
        a('L_cr:')
        lds_spin(a, 11, 1, C_PAIR, 3, nap=2)
        for j in range(4):
            a('ds_read_b128 %s, v17 offset:%d' % (vr(CB + 4 * j, 4), 1024 * j))
        a('s_waitcnt lgkmcnt(0)')
        for j in range(16):
            a('v_add_f32 v%d, v%d, v%d' % (CA + j, CA + j, CB + j))
        a('L_cd:')
    jitter(a, 5)
    stamp(a, 6)
    a('''s_nop 0
s_mul_i32 s46, s52, %d
s_lshl_b32 s47, s53, 11
s_add_u32 s46, s46, s47
s_add_u32 s46, s46, %d
s_nop 1
s_lshl_b32 s47, s53, 9
s_add_u32 s47, s47, s52
s_lshl_b32 s47, s47, 6
s_add_u32 s47, s47, %d
v_mov_b32 v1, s7
v_mov_b32 v2, 0''' % (RS, YT, FL3))
    for k in range(8):
        a('v_cvt_pk_bf16_f32 v%d, v%d, v%d' % (32 + k, CA + 2 * k, CA + 2 * k + 1))
    for k in range(8):
        a('buffer_store_dword v%d, v128, s[8:11], s46 offen offset:%d sc1' % (32 + k, (4 * (k >> 1) + (k & 1)) * 128))
    a('''s_waitcnt vmcnt(0) lgkmcnt(0)
s_mov_b64 exec, 1
buffer_store_dword v1, v2, s[8:11], s47 offen sc1
s_mov_b64 exec, -1''')
    if 'x3' in OPT:
        lds_add(a, 12, 1, C_Y2)
        a('s_waitcnt lgkmcnt(0)')
        stamp_dump(a)
        a('s_endpgm')
    if WOW == 'mid':
        a('''s_lshl_b32 s23, s53, 10
s_lshl_b32 s24, s61, 11
s_add_u32 s24, s23, s24
s_lshl_b32 s26, s5, 7
s_lshl_b32 s27, s53, 13
s_add_u32 s26, s26, s27
s_lshl_b32 s27, s61, 14
s_add_u32 s26, s26, s27
s_nop 0''')
        for c in range(8):
            a('s_add_u32 s38, s5, %d' % c)
            a('s_and_b32 s38, s38, 7')
            a('s_lshl_b32 s30, s38, 16')
            a('s_add_u32 m0, s24, %d' % (c * 4096))
            a('s_add_u32 s30, s30, s26')
            if 'nowo' in OPT:
                continue
            a('buffer_load_dwordx4 v125, s[12:15], s30 offen lds')
            a('s_add_u32 m0, s24, %d' % (32768 + c * 4096))
            a('s_add_u32 s30, s30, 0x8000')
            a('buffer_load_dwordx4 v125, s[12:15], s30 offen lds')
            a('s_waitcnt vmcnt(%s)' % OPTV.get('wot', '2'))
    if 'x4' in OPT:
        lds_add(a, 12, 1, C_Y2)
        a('s_waitcnt lgkmcnt(0)')
        stamp_dump(a)
        a('s_endpgm')
    stamp(a, 7)
    a('''s_lshr_b32 s46, s4, 4
s_lshl_b32 s46, s46, 15
s_lshl_b32 s47, s5, 12
s_add_u32 s46, s46, s47
s_add_u32 s46, s46, %d
s_cmp_eq_u32 s3, 0
s_cbranch_scc0 L_yw''' % FL3)
    if 'ysl' in OPTV:
        a('s_sleep %s' % OPTV['ysl'])
    flag_poll_lazy(a, 127, 1, 46, int(OPTV.get('ynap', 32)))
    lds_add(a, 12, 3, C_GOY)
    a('L_yw:')
    a('''s_mul_i32 s46, s5, %d
s_mul_i32 s47, s3, %d
s_add_u32 s46, s46, s47
s_lshl_b32 s47, s4, 7
s_add_u32 s46, s46, s47
s_add_u32 s46, s46, %d
s_lshl_b32 s47, s3, 11
s_add_u32 s47, s47, %d''' % (64 * RS, 16 * RS, YT, USI))
    lds_spin(a, 12, 3, C_GOY, 1, nap=8)
    a('''s_mov_b32 m0, s47
s_nop 0
buffer_load_dwordx4 v122, s[8:11], s46 offen sc1 lds
buffer_load_dwordx4 v123, s[8:11], s46 offen offset:1024 sc1 lds
s_lshl_b32 s46, s4, 17
s_lshl_b32 s47, s3, 14
s_add_u32 s46, s46, s47
s_lshl_b32 s47, s5, 7
s_add_u32 s46, s46, s47
s_add_u32 s47, s46, 0x2000
s_waitcnt vmcnt(0)''')
    jitter(a, 6)
    lds_add(a, 12, 1, C_Y)
    lds_spin(a, 12, 1, C_Y, 4)
    transpose_a(a, 5, 6, 32, 10)
    a('''ds_read_b128 v[32:35], v7
ds_read_b128 v[36:39], v7 offset:1024
s_waitcnt lgkmcnt(1)
buffer_store_dwordx4 v[32:35], v124, s[16:19], s46 offen sc1
s_waitcnt lgkmcnt(0)
buffer_store_dwordx4 v[36:39], v124, s[16:19], s47 offen sc1''')
    lds_add(a, 12, 1, C_Y2)
    stamp(a, 8)
    a('s_waitcnt lgkmcnt(0)')
    stamp(a, 12)
    stamp_dump(a)
    a('s_endpgm')

    XA, WA, OA, OV = 160, 164, 165, 166
    XR, ACC = 0, 128
    WF = [144, 148, 152, 156]
    a('''L_mm:
%s
s_setprio 3
s_and_b32 s52, s3, 1
s_bfe_u32 s53, s3, 0x10001
v_and_b32 v10, 31, v4
v_bfe_u32 v11, v4, 1, 3
v_lshrrev_b32 v12, 5, v4
v_xor_b32 v11, v11, v12
v_lshlrev_b32 v11, 4, v11
v_lshl_add_u32 v10, v10, 7, v11
s_lshl_b32 s46, s52, 12
v_add_u32 v%d, s46, v10''' % ('s_memrealtime s[70:71]' if 'dbgt' in OPT else '', XA))
    for jq in range(1, 4):
        a('v_xor_b32 v%d, %d, v%d' % (XA + jq, jq << 5, XA))
    a('''v_lshlrev_b32 v10, 10, v12
v_bfe_u32 v11, v4, 2, 2
v_lshl_add_u32 v10, v11, 7, v10
v_bfe_u32 v11, v4, 3, 1
v_xor_b32 v11, s53, v11
v_lshl_add_u32 v10, v11, 6, v10
v_bfe_u32 v11, v4, 4, 1
v_lshl_add_u32 v10, v11, 5, v10
v_and_b32 v11, 3, v4
v_lshl_add_u32 v%d, v11, 3, v10''' % WA)
    a('''s_lshl_b32 s46, s4, 1
s_add_u32 s46, s46, s52
s_lshl_b32 s46, s46, 10
s_lshl_b32 s47, s5, 1
s_add_u32 s47, s47, s53
s_lshl_b32 s47, s47, 17
s_add_u32 s46, s46, s47
v_lshl_add_u32 v%d, v4, 4, s46
v_bfe_u32 v11, v4, 4, 1
v_lshlrev_b32 v11, 16, v11
v_lshl_add_u32 v11, v12, 8, v11
v_and_b32 v10, 15, v4
v_lshl_add_u32 v11, v10, 4, v11
v_add_u32 v%d, s46, v11
v_mov_b32 v167, v4
s_mov_b32 s62, 0x%x
s_mov_b32 s64, %d
s_mov_b32 s65, %d
s_mov_b32 s63, %d
s_lshl_b32 s54, s52, 12
s_lshl_b32 s47, s53, 11
s_add_u32 s54, s54, s47
s_add_u32 s54, s54, %d
s_lshl_b32 s56, s5, 6
s_add_u32 s56, s56, %d
s_lshl_b32 s55, s4, 9
s_add_u32 s55, s55, s56
s_waitcnt lgkmcnt(0)''' % (OA, OV, f2u(QSCALE), KF, KF + 65536, VF, QX, FL1))
    srd(a, 8, 38, WS_BYTES)
    if 'nowpf' not in OPT:
        srd(a, 12, 34, 512 * 3072)
        a('''v_mul_u32_u24 v126, 3072, v4
s_and_b32 s46, s4, 7
s_mul_i32 s46, s46, %d
s_lshl_b32 s47, s5, 7
s_add_u32 s46, s46, s47
s_xor_b32 s47, s52, 1
s_lshl_b32 s47, s47, %d
s_add_u32 s57, s46, s47''' % (64 * 3072, 9 + SEG[1]))

    def wpf(wave):
        l = label('pf')
        a('s_cmp_eq_u32 s3, %d' % wave)
        a('s_cbranch_scc0 %s' % l)
        a('buffer_load_dword v127, v126, s[12:15], s57 offen')
        a(l + ':')

    WPV, WPQ = int(OPTV.get('wpv', -1)), int(OPTV.get('wpq', -1))
    if WPV < 0:
        wpf(8)
    if WPQ < 0:
        wpf(9)
    if 'upf' in OPT:
        a('''s_cmp_eq_u32 s3, 10
s_cbranch_scc0 L_noupf
s_load_dwordx2 s[20:21], s[0:1], 0
v_lshlrev_b32 v126, 10, v4
s_lshl_b32 s46, s45, 16
s_lshl_b32 s47, s44, 7
s_add_u32 s46, s46, s47
v_add_u32 v126, s46, v126
s_waitcnt lgkmcnt(0)
global_load_dword v127, v126, s[20:21]
L_noupf:''')
    PD = 3
    PBC = int(OPTV.get('pbc', 13))

    def chunk_of(s):
        p, kk = s >> 5, s & 31
        return (kk >> 2, kk & 3) if p == 0 else (8 + 4 * (p - 1) + (kk >> 3), kk & 7)

    def nreads(s):
        return 0 if s >= 96 else (3 if s < 32 else 2)

    def reads(s):
        c, j = chunk_of(s)
        if j == 0:
            if c == PBC and 'nopb' not in OPT:
                a('s_waitcnt vmcnt(0)')
            a('s_barrier')
            if c == PBC and 'nopb' not in OPT:
                a('''s_cmp_eq_u32 s3, 8
s_cbranch_scc0 L_npk
s_cmp_lg_u32 s7, 0
s_cbranch_scc1 L_te
s_mov_b32 s12, s36
s_mov_b32 s13, s37
s_mov_b32 s14, 256
v_mov_b32 v2, 0
s_mov_b32 s66, 0
L_tg:
buffer_load_dword v1, v2, s[12:15], 0 offen sc1
s_add_u32 s66, s66, 1
s_waitcnt vmcnt(0)
v_readfirstlane_b32 s7, v1
s_cmp_ge_u32 s66, %d
s_cbranch_scc1 L_te
s_cmp_eq_u32 s7, 0
s_cbranch_scc1 L_tg
s_nop 1
L_te:
s_mov_b64 exec, 15
v_mbcnt_lo_u32_b32 v2, -1, 0
v_mov_b32 v1, s7
v_lshlrev_b32 v2, 14, v2
buffer_store_dword v1, v2, s[8:11], s55 offen sc1
s_mov_b64 exec, -1
L_npk:''' % SPIN_MAX)
                if 'rt' in OPT:
                    stamp(a, 2)
            if c == 0:
                if OPTV.get('enc') == 'b0':
                    a('s_memrealtime s[92:93]')
                stamp(a, 2)
                if 'dbgt' in OPT:
                    a('s_memrealtime s[72:73]')
            if c == WPV:
                wpf(8)
            if c == WPQ:
                wpf(9)
            if c == 6:
                a('s_waitcnt vmcnt(0)')
            if c % 3 == 0 and c > 0:
                op = 'v_add_u32' if c % 6 == 3 else 'v_subrev_u32'
                for r in ([XA, XA + 1, XA + 2, XA + 3] if c < 8 else []) + [WA]:
                    a('%s v%d, 0xc000, v%d' % (op, r, r))
        so = (c % 3) * 16384
        if c < 8:
            a('ds_read_b128 %s, v%d offset:%d' % (vr(XR + 4 * s, 4), XA + j, so))
            so += 8192
        for rd in range(2):
            a('ds_read_b64_tr_b16 %s, v%d offset:%d' % (vr(WF[s % 4] + 2 * rd, 2), WA, so + j * 2048 + rd * 512))

    def epilogue(p):
        lo, hi = vr(ACC, 4), vr(ACC + 4, 4)
        if SEG[p] == 0:
            a('v_mov_b32 v4, v167')
            a('v_lshl_add_u32 v10, v167, 4, s54')
            a('s_nop 13')
            for i in range(16):
                a('v_mul_f32 v%d, s62, v%d' % (ACC + i, ACC + i))
        else:
            if p == 0 and 'nopb' not in OPT:
                a('s_load_dword s7, s[36:37], 0')
            a('s_nop 15')
        for j in range(8):
            a('v_cvt_pk_bf16_f32 v%d, v%d, v%d' % (ACC + j, ACC + 2 * j, ACC + 2 * j + 1))
        if p == 0 and 'nopb' not in OPT:
            a('s_waitcnt lgkmcnt(0)')
        if SEG[p] == 0:
            a('ds_write_b128 v10, %s' % lo)
            a('ds_write_b128 v10, %s offset:1024' % hi)
        elif SEG[p] == 1:
            a('buffer_store_dwordx4 %s, v%d, s[8:11], s64 offen sc1' % (lo, OA))
            a('buffer_store_dwordx4 %s, v%d, s[8:11], s65 offen sc1' % (hi, OA))
        else:
            a('buffer_store_dwordx4 %s, v%d, s[8:11], s63 offen sc1' % (lo, OV))
            a('buffer_store_dwordx4 %s, v%d, s[8:11], s63 offen offset:512 sc1' % (hi, OV))

    jitter(a, 8)
    for s in range(PD):
        reads(s)
    for s in range(96):
        p, kk = s >> 5, s & 31
        if s + PD < 96:
            reads(s + PD)
        a('s_waitcnt lgkmcnt(%d)' % sum(nreads(t) for t in range(s + 1, s + PD + 1)))
        x, w = XR + 4 * kk, WF[s % 4]
        if SEG[p] == 2:
            a(mfma(ACC, x, w, None if kk == 0 else ACC))
        else:
            a(mfma(ACC, w, x, None if kk == 0 else ACC))
        if s == 80 and 'nopb' not in OPT:
            a('v_mov_b32 v12, %d' % CNT)
            a('ds_read_b32 v1, v12 offset:%d' % C_TAG)
            a('s_waitcnt lgkmcnt(0)')
            a('v_readfirstlane_b32 s7, v1')
        if s == 80 and 'nopb' in OPT:
            a('v_mov_b32 v12, %d' % CNT)
            a('ds_read_b32 v1, v12 offset:%d' % C_TAG)
            a('s_waitcnt vmcnt(0) lgkmcnt(0)')
            a('v_readfirstlane_b32 s7, v1')
            jitter(a, 9)
            arrive_publish(a, 12, 1, C_KV, 4, 55, 2, 'nocp' not in OPT)
            if 'rt' in OPT:
                stamp(a, 2)
        if kk == 31:
            if OPTV.get('enc') == 'v' and p == 1:
                a('s_memrealtime s[92:93]')
            stamp(a, 3 + p)
            epilogue(p)
    a('s_waitcnt lgkmcnt(0)')
    a('s_barrier')
    a('''s_cmp_eq_u32 s3, 8
s_cbranch_scc0 L_apro
v_and_b32 v6, 31, v4
v_lshlrev_b32 v6, 9, v6
s_lshr_b32 s46, s4, 3
s_lshl_b32 s46, s46, 14
%s''' % ('s_add_u32 s56, s56, s46' if 'nocp' not in OPT else ''))
    flag_poll_lazy(a, 6, 1, 56, int(OPTV.get('psl', 4)), True)
    lds_add(a, 12, 3, C_GO)

    a('L_apro:')
    att_prologue(False)
    a('''L_att:
v_xor_b32 v6, 0x1000, v13
ds_read_b128 %s, v13
ds_read_b128 %s, v6''' % (vr(Q[1], 4), vr(Q[0], 4)))

    def rdk(i):
        return ['buffer_load_dwordx4 %s, v%d, s[8:11], s36 offen sc1' % (vr(K[i % NB], 4), KA),
                's_add_u32 s36, s36, 2048'] + ['s_and_b32 s36, s36, 0xffff'] * OWN

    def rdv(i):
        return ['s_mov_b64 exec, s[40:41]',
                'buffer_load_dwordx4 %s, v%d, s[8:11], s37 offen sc1' % (vr(V[i % NBV][0], 4), VA),
                'buffer_load_dwordx4 %s, v%d, s[8:11], s37 offen offset:512 sc1' % (vr(V[i % NBV][1], 4), VA),
                's_mov_b64 exec, -1', 's_add_u32 s37, s37, 2048'] + ['s_and_b32 s37, s37, 0xffff'] * OWN

    PF = False
    pfl = []
    issue = []
    if OWN:
        lds_spin(a, 12, 3, C_KV, 4)
        a('\n'.join(rdk(0) + rdv(0)))
        issue += [('k', 0), ('v', 0), ('v', 0)]
    jitter(a, 10)
    stamp(a, 6)
    lds_spin(a, 12, 3, C_GO, 1)
    stamp(a, 7)
    pro = []
    if not OWN:
        pro = rdk(0)
        issue += [('k', 0)]
    for i in range(1, DK):
        pro += rdk(i)
        issue += [('k', i)]
        if i > 1 or not OWN:
            pro += rdv(i - 1)
            issue += [('v', i - 1), ('v', i - 1)]
    a('\n'.join(pro))
    a('s_setprio 3')
    a('s_waitcnt vmcnt(%d)' % (len(issue) - 1))
    if OPTV.get('enc') == 'go':
        a('s_memrealtime s[92:93]')
    if 'pubq0' in OPT:
        arrive_publish(a, 12, 3, C_Q, 8, 55, 2)
        issue.append(('f',))
    stamp(a, 8)
    if 'dbgt' in OPT:
        a('s_memrealtime s[74:75]')
    a(mfma(S[0], K[0], Q[0], None))
    a('s_nop 7')
    a('s_nop 3')
    pp_ = [int(x) for x in OPTV.get('pr', '7,15,23').split(',')]
    PRIO = {pp_[0]: 2, pp_[1]: 1, pp_[2]: 0}

    def unit(i, q):
        u = 2 * i + q
        sc, sn = S[u % 2], S[(u + 1) % 2]
        pc, pp = Pp[u % 2], Pp[(u + 1) % 2]
        i1, q1 = (i, 1) if q == 0 else (i + 1, 0)
        i0, q0 = (i - 1, 1) if q == 0 else (i, 0)
        qk = mfma(sn, K[i1 % NB], Q[q1], None)
        pv0 = mfma(O[q0], V[i0 % NBV][0], pp, O[q0])
        pv1 = mfma(O[q0], V[i0 % NBV][1], pp + 4, O[q0])
        if 'swp' in OPT:
            pv0 = mfma(O[q0], pp, V[i0 % NBV][0], O[q0])
            pv1 = mfma(O[q0], pp + 4, V[i0 % NBV][1], O[q0])
        e = ['v_exp_f32 v%d, v%d' % (sc + j, sc + j) for j in range(16)]
        c = ['v_cvt_pk_bf16_f32 v%d, v%d, v%d' % (pc + j, sc + 2 * j, sc + 2 * j + 1) for j in range(8)]
        c7prev = 'v_cvt_pk_bf16_f32 v%d, v%d, v%d' % (pp + 7, sn + 14, sn + 15)
        out = [e[0]]
        late_qk = OWN and u == 1
        if late_qk:
            last = max(n for n, x in enumerate(issue) if x == ('v', 0))
            out.append('s_waitcnt vmcnt(%d)' % sum(x != ('f',) for x in issue[last + 1:]))
        elif q == 1:
            last = max(n for n, x in enumerate(issue) if x in (('k', i + 1), ('v', i)))
            out.append('s_waitcnt vmcnt(%d)' % sum(x != ('f',) for x in issue[last + 1:]))
        if u > 0:
            out.append(c7prev)
        if u < 63 and not late_qk:
            out.append(qk)
        kl = rdk(i + DK) if q == 0 and i + DK < 32 else []
        vl = rdv(i + DK - 1) if q == 1 and i + DK - 1 < 32 else []
        issue.extend([('k', i + DK)] * bool(kl) + [('v', i + DK - 1)] * 2 * bool(vl))
        out += kl[:1] + vl[:4]
        out += [e[1], e[2], c[0], e[3], e[4], c[1], e[5]]
        if u > 0:
            out.append(pv0)
        out += kl[1:2] + vl[4:5]
        out += [e[6], c[2], e[7], e[8], c[3], e[9], e[10], c[4]]
        if u > 0:
            out.append(pv1)
        out += kl[2:] + vl[5:]
        if q == 0 and i in (1, 8, 16) and PF:
            out += pfl
            issue.append(('p',))
        if q == 1 and i == int(OPTV.get('eti', 30)):
            out += ['s_mov_b64 exec, 1', 'ds_add_u32 v12, v12 offset:%d' % C_T, 's_mov_b64 exec, -1']
        if q == 1 and i in PRIO:
            out.append('s_setprio %d' % PRIO[i])
            if DIAG and 'qs' in OPT:
                n = 3 + i // 8
                out.append('s_memrealtime s[%d:%d]' % (ST0 + 2 * n, ST0 + 2 * n + 1))
        out += [e[11], e[12], c[5], e[13], e[14], c[6], e[15]]
        if late_qk:
            last = issue.index(('k', 1))
            out += ['s_waitcnt vmcnt(%d)' % sum(x != ('f',) for x in issue[last + 1:]), qk, 's_nop 11']
        return out

    for i in range(32):
        for q in range(2):
            if (i, q) == (20, 0):
                jitter(a, 11)
            if (i, q) == (31, 0):
                jitter(a, 12)
                a('''s_and_b32 s26, s3, 3
s_xor_b32 s27, s26, 2
s_mul_i32 s26, s26, 2304
s_add_u32 s26, s26, {ox}
s_mul_i32 s27, s27, 2304
s_add_u32 s27, s27, {ox}
v_add_u32 v6, s26, v5
v_add_u32 v7, s27, v5
v_lshlrev_b32 v8, 2, v4
v_add_u32 v9, s27, v8
v_add_u32 v8, s26, v8
s_sub_u32 s26, s3, 4
s_lshl_b32 s26, s26, 2
v_add_u32 v10, s26, v12
s_xor_b32 s26, s26, 8
v_add_u32 v11, s26, v12
s_cmp_eq_u32 s19, 0
s_cbranch_scc0 L_xa'''.format(ox=OX))
                lds_spin(a, 12, 3, C_Q, 8)
                a('s_branch L_xb')
                a('L_xa:')
                lds_spin(a, 12, 3, C_O, 4)
                a('''L_xb:
s_mov_b32 s44, 0x%x
s_mov_b32 s45, 0x%x
s_mov_b32 s46, 0x7f7fffff
s_lshl_b32 s26, s19, 2
v_add_u32 v13, s26, v12
v_mov_b32 v3, 1
buffer_load_dword v1, v163, s[8:11], s52 offen sc1''' % (f2u(2.0 ** -64), f2u(2.0 ** 64)))
                issue.append(('m',))
            if (i, q) == (2, 0) and 'pubq0' not in OPT:
                arrive_publish(a, 12, 3, C_Q, 8, 55, 2)
                issue.append(('f',))
            for s in unit(i, q):
                a(s)
    a('s_nop 0')
    a('v_cvt_pk_bf16_f32 v%d, v%d, v%d' % (Pp[1] + 7, S[1] + 14, S[1] + 15))
    if OPTV.get('enc') == 'loop':
        a('s_memrealtime s[92:93]')
    stamp(a, 9)
    if 'dbgt' in OPT:
        a('s_memrealtime s[76:77]')
    a('s_setprio 3')
    a('s_nop 0')
    a(mfma(O[1], V[31 % NBV][0], Pp[1], O[1]))
    a(mfma(O[1], V[31 % NBV][1], Pp[1] + 4, O[1]))
    F = O[1]
    a('''ds_write_b128 v6, %s
ds_write_b128 v6, %s offset:1024
ds_write_b32 v8, v%d offset:2048
ds_write_b32 v10, v3 offset:%d''' % (vr(O[0], 4), vr(O[0] + 4, 4), O[0] + 8, C_X))
    a('''s_mov_b32 s66, 0
L_xw:
ds_read_b32 v2, v11 offset:%d
ds_read_b128 v[48:51], v7
ds_read_b128 v[52:55], v7 offset:1024
ds_read_b32 v56, v9 offset:2048
s_add_u32 s66, s66, 1
s_waitcnt lgkmcnt(0)
v_readfirstlane_b32 s67, v2
s_cmp_ge_u32 s66, %d
s_cbranch_scc1 L_xe
s_cmp_eq_u32 s67, 0
s_cbranch_scc1 L_xw
L_xe:''' % (C_X, SPIN_MAX * 4))
    stamp(a, 10)
    for j in range(9):
        a('v_add_f32 v%d, v%d, v%d' % (F + j, F + j, 48 + j))
    a('''v_rcp_f32 v48, v{8}
v_add_f32 v50, abs(v{0}), abs(v{1})
v_add_f32 v51, abs(v{2}), abs(v{3})
v_add_f32 v52, abs(v{4}), abs(v{5})
v_add_f32 v53, abs(v{6}), abs(v{7})
v_cmp_le_f32 s[28:29], s44, v{8}
v_add_f32 v50, v50, v51
v_add_f32 v52, v52, v53
v_cmp_ge_f32 s[30:31], s45, v{8}
v_add_f32 v50, v50, v52
v_cmp_ge_f32 s[32:33], s46, v50
s_and_b64 s[28:29], s[28:29], s[30:31]
s_nop 0
s_and_b64 s[28:29], s[28:29], s[32:33]
s_cmp_eq_u64 s[28:29], -1
s_cbranch_scc0 {9}
L_fin:'''.format(*(list(range(F, F + 9)) + ['L_fin' if 'swp' in OPT else 'L_slow'])))
    for j in range(8):
        a('v_mul_f32 v%d, v%d, v48' % (F + j, F + j))
    for j in range(4):
        a('v_cvt_pk_bf16_f32 v%d, v%d, v%d' % (52 + j, F + 2 * j, F + 2 * j + 1))
    a('buffer_store_dwordx4 v[52:55], v5, s[8:11], s54 offen sc1')
    jitter(a, 13)
    lds_add(a, 13, 3, C_O)
    stamp(a, 11)
    a('s_cmp_ge_u32 s3, 8')
    a('s_cbranch_scc1 L_bend')
    a('s_load_dwordx4 s[32:35], s[0:1], 88')
    a('s_waitcnt lgkmcnt(0)')
    srd(a, 16, 34, 2048 * 2048)
    AC = [20, 36]
    OFR, WR = 56, 88

    def wo_frags(g):
        for cc in range(4):
            for n in range(2):
                for nt in range(2):
                    for rd in range(2):
                        a('ds_read_b64_tr_b16 %s, v%d offset:%d' % (vr(WR + 16 * cc + 8 * n + 4 * nt + 2 * rd, 2), (160, 161)[nt],
                                                                    g * 32768 + cc * 4096 + n * 2048 + rd * 1024))

    def o_loads(cc):
        a('''s_add_u32 s38, s51, %d
s_and_b32 s38, s38, 7
s_lshl_b32 s30, s38, 12
s_add_u32 s30, s30, s53
buffer_load_dwordx4 %s, v5, s[8:11], s30 offen sc1
buffer_load_dwordx4 %s, v5, s[8:11], s30 offen offset:1024 sc1''' % (cc, vr(OFR + 8 * cc, 4), vr(OFR + 8 * cc + 4, 4)))

    def o_mfma(cc, first):
        for nt in range(2):
            for n in range(2):
                a(mfma(AC[nt], WR + 16 * cc + 8 * n + 4 * nt, OFR + 8 * cc + 4 * n, AC[nt]))

    def poll_half(g, nap):
        lp, le = label('hp'), label('he')
        a('s_mov_b32 s23, 0')
        a('s_mov_b32 s66, 0')
        a(lp + ':')
        for cc in range(4):
            e = label('ls')
            a('s_bitcmp1_b32 s23, %d' % cc)
            a('s_cbranch_scc1 %s' % e)
            o_loads(cc)
            a(e + ':')
        a('s_add_u32 s66, s66, 1')
        a('s_waitcnt vmcnt(0) lgkmcnt(0)')
        for cc in range(4):
            e, gl = label('lc'), label('lg')
            b = OFR + 8 * cc
            a('''s_bitcmp1_b32 s23, {cc}
s_cbranch_scc1 {e}
v_max3_u32 v1, v{0}, v{1}, v{2}
v_max3_u32 v2, v{3}, v{4}, v{5}
v_max3_u32 v1, v1, v{6}, v{7}
v_max_u32 v1, v1, v2
v_cmp_eq_u32 vcc, -1, v1
s_cmp_ge_u32 s66, {n}
s_cbranch_scc1 {g}
s_cbranch_vccnz {e}
{g}:
s_bitset1_b32 s23, {cc}'''.format(*range(b, b + 8), cc=cc, e=e, g=gl, n=SPIN_MAX))
            o_mfma(cc, False)
            a(e + ':')
        a('''s_cmp_eq_u32 s23, 15
s_cbranch_scc1 %s
s_sleep %s
s_branch %s
%s:''' % (le, nap, lp, le))

    if WOW == 'end':
        wo_dma()
    if 'ein' in OPTV:
        for j in range(32):
            a('v_mov_b32 v%d, 0' % (AC[0] + j))
    a('s_lshl_b32 s26, s49, 2')
    a('v_add_u32 v8, s26, v12')
    a('s_waitcnt vmcnt(%d)' % (WOW != 'end'))
    a('''v_cmp_eq_u32 vcc, s7, v1
s_nop 1
s_cmp_eq_u64 vcc, -1
s_cbranch_scc1 L_mok''')
    flag_poll_lazy(a, 163, 1, 52, 8)
    a('L_mok:')
    if WOW == 'mid':
        lds_spin(a, 12, 3, C_Y2, 4, nap=8)
    else:
        lds_add(a, 8, 3, C_W)
        lds_spin(a, 8, 3, C_W, 2)
    wo_frags(0)
    if 'ein' in OPTV:
        a('s_sleep %s' % OPTV['ein'])
    else:
        lds_spin(a, 12, 3, C_T, 7 * CNT, nap=int(OPTV.get('etn', 3)))
        for j in range(32):
            a('v_mov_b32 v%d, 0' % (AC[0] + j))
    poll_half(0, OPTV.get('esl', '8'))
    wo_frags(1)
    a('s_add_u32 s53, s53, 2048')
    lds_spin(a, 12, 3, C_Y2, 4, nap=2)
    stamp(a, 10)
    lds_spin(a, 12, 3, C_O1, 4, nap=2)
    if 'lin' in OPTV:
        a('s_sleep %s' % OPTV['lin'])
    poll_half(1, OPTV.get('lsl', '6'))
    jitter(a, 14)
    stamp(a, 12)
    a('v_mov_b32 v3, 1')
    a('s_nop 6')
    for j in range(4):
        a('ds_write_b128 v164, %s offset:%d' % (vr(AC[0] + 4 * j, 4), 1024 * j))
    a('ds_write_b32 v166, v3 offset:%d' % C_P3)
    a('''s_mov_b32 s66, 0
L_rw:
ds_read_b32 v2, v167 offset:%d''' % C_P3)
    for j in range(4):
        a('ds_read_b128 %s, v165 offset:%d' % (vr(64 + 4 * j, 4), 1024 * j))
    a('''s_add_u32 s66, s66, 1
s_waitcnt lgkmcnt(0)
v_readfirstlane_b32 s67, v2
s_cmp_ge_u32 s66, %d
s_cbranch_scc1 L_re
s_cmp_eq_u32 s67, 0
s_cbranch_scc1 L_rw
L_re:''' % (SPIN_MAX * 4))
    for j in range(16):
        a('v_add_f32 v%d, v%d, v%d' % (64 + j, AC[1] + j, 64 + j))
    for j in range(8):
        a('v_cvt_pk_bf16_f32 v%d, v%d, v%d' % (80 + j, 64 + 2 * j, 65 + 2 * j))
    st3 = OPTV.get('st3', '').replace('+', ' ')
    a('buffer_store_dwordx4 v[80:83], v162, s[16:19], s50 offen' + st3)
    a('buffer_store_dwordx4 v[84:87], v162, s[16:19], s50 offen offset:16' + st3)
    if 'dbgt' in OPT:
        a('s_waitcnt vmcnt(0)')
        a('s_memrealtime s[78:79]')
        a('s_load_dwordx2 s[36:37], s[0:1], 104')
        a('s_waitcnt lgkmcnt(0)')
        srd(a, 12, 36, 256)
        a('v_mov_b32 v2, 0')
        a('s_mov_b64 exec, 1')
        for i in range(5):
            a('s_sub_u32 s66, s%d, s7' % (70 + 2 * i))
            a('s_add_u32 s66, s66, 1000')
            a('v_mov_b32 v1, s66')
            a('buffer_atomic_umax v1, v2, s[12:15], 0 offen offset:%d sc1' % (4 + 4 * i))
            a('s_sub_u32 s66, 100000, s66')
            a('v_mov_b32 v3, s66')
            a('buffer_atomic_umax v3, v2, s[12:15], 0 offen offset:%d sc1' % (36 + 4 * i))
        a('s_mov_b64 exec, -1')
        a('s_waitcnt vmcnt(0)')
    a('L_bend:')
    if 'enc' in OPTV:
        e = OPTV['enc']
        if e != 'skew':
            a('s_cmp_eq_u32 s2, %s' % OPTV.get('ewg', '0'))
            a('s_cbranch_scc0 L_encd')
        a('s_cmp_eq_u32 s3, 8')
        a('s_cbranch_scc0 L_encd')
        a('s_waitcnt lgkmcnt(0)')
        a('s_sub_u32 s94, s92, s90' if e not in ('f', 'skew') else 's_mov_b32 s94, 0')
        a('s_add_u32 s94, s94, 6000')
        a('''L_encw:
s_memrealtime s[96:97]
s_waitcnt lgkmcnt(0)
s_sub_u32 s96, s96, s90
s_cmp_lt_u32 s96, s94
s_cbranch_scc1 L_encw
L_encd:''')
    stamp_dump(a)
    a('s_endpgm')

    for t in ('',):
        OS, SS, M, PS, KS, MX = 80, 16, 64, 48, 104, 58
        a('''L_slow%s:
v_mov_b32 v%d, 0xff800000
s_mov_b32 s42, 0
L_s1%s:
buffer_load_dwordx4 %s, v%d, s[8:11], s42 offen sc1
s_waitcnt vmcnt(0)
%s
s_nop 15''' % (t, MX, t, vr(KS, 4), KA, mfma(SS, KS, Q[1], None)))
        for j in range(8):
            a('v_max3_f32 v%d, v%d, v%d, v%d' % (MX, MX, SS + 2 * j, SS + 2 * j + 1))
        a('''s_add_u32 s42, s42, 1024
s_cmp_lt_u32 s42, 0x10000
s_cbranch_scc1 L_s1%s
v_mov_b32 v%d, v%d
s_nop 1
v_permlane32_swap_b32 v%d, v%d
s_nop 1
v_max_f32 v%d, v%d, v%d''' % (t, MX + 1, MX, MX, MX + 1, MX, MX, MX + 1))
        for j in range(16):
            a('v_sub_f32 v%d, 0, v%d' % (M + j, MX))
            a('v_mov_b32 v%d, 0' % (OS + j))
        a('''s_mov_b32 s42, 0
L_s2%s:
buffer_load_dwordx4 %s, v%d, s[8:11], s42 offen sc1
s_mov_b64 exec, s[40:41]
buffer_load_dwordx4 %s, v%d, s[8:11], s42 offen sc1
buffer_load_dwordx4 %s, v%d, s[8:11], s42 offen offset:512 sc1
s_mov_b64 exec, -1
s_waitcnt vmcnt(0)
%s
s_nop 15''' % (t, vr(KS, 4), KA, vr(V[0][0], 4), VA, vr(V[0][1], 4), VA, mfma(SS, KS, Q[1], M)))
        for j in range(16):
            a('v_exp_f32 v%d, v%d' % (SS + j, SS + j))
        a('s_nop 0')
        for j in range(8):
            a('v_cvt_pk_bf16_f32 v%d, v%d, v%d' % (PS + j, SS + 2 * j, SS + 2 * j + 1))
        a('s_nop 1')
        a(mfma(OS, V[0][0], PS, OS))
        a(mfma(OS, V[0][1], PS + 4, OS))
        a('''s_add_u32 s42, s42, 1024
s_cmp_lt_u32 s42, 0x10000
s_cbranch_scc1 L_s2%s
s_nop 15''' % t)
        a('''v_rcp_f32 v48, v88
s_nop 0
s_branch L_fin''')
    a('''L_end:
s_endpgm''')
    return a.text()


def main(path):
    KN = NAME + '_kernel'
    t = kernel()
    hdr = '''; @launch grid=(256,1,1) block=(768,1,1) lds=%d
; One launch, one workgroup of 12 waves per CU (256 workgroups, all resident; surplus workgroups exit at once).
; Workgroup = (64-token block tb, quad of heads hq) for the attention branch and 2 channels for the S4 branch.
;  phase 1  waves 4-7 stream x / wqkv tiles into an LDS ring, waves 8-11 compute the K, V, Q tiles (MFMA);
;           K and V go to the workspace in MFMA fragment order, Q stays in LDS. Waves 0-3 build the S4 kernel
;           K[l] = Re sum_n C_n dB_n exp(dt A_n lq(l)) (lq = position rounded to bf16, as in the reference) as a
;           product of two power tables on the matrix core; Dskip is added to K[0]. A tile of u is transposed.
;  phase 2  waves 4-11: softmax(QK^T)V, exp2 of the scaled scores without a shift, row sums from a ones row of V.
;           A run-time check (row sum inside [2^-64, 2^64] and finite outputs) sends a tile to L_slow, which redoes
;           it with the exact row maximum. Waves 0-3: causal convolution as Toeplitz MFMAs, transposition of y.
;  phase 3  waves 4-7: output projection of the (tb, 64-column) tile.
; Hand-offs between workgroups: write-through stores, drained, then a flag word carrying this launch's tag
; (a clock value that workgroup 0 puts into the zeroed debug buffer); attention outputs replace a marker that
; their producer wrote (and announced) earlier, so readers recognise every dword. All waits are bounded;
; s_sleep only backs off inside these waits.
.amdgcn_target "amdgcn-amd-amdhsa--gfx950"
.text
.globl %s
''' % (LDS_BYTES, KN)
    pad = '; never executed: keeps the 32 KB window of the code prefetch inside the code section\n.p2align 8\n.fill 1024, 4, 0xbf800000\n'
    kd = '''.section .rodata,"a"
.p2align 6
.amdhsa_kernel %s
  .amdhsa_next_free_vgpr 168
  .amdhsa_next_free_sgpr 102
  .amdhsa_accum_offset 168
  .amdhsa_group_segment_fixed_size 0
  .amdhsa_kernarg_size 120
  .amdhsa_user_sgpr_count 2
  .amdhsa_user_sgpr_kernarg_segment_ptr 1
  .amdhsa_system_sgpr_workgroup_id_x 1
.end_amdhsa_kernel
''' % KN
    open(path, 'w').write(hdr + t + pad + kd)


if __name__ == '__main__':
    for arg in sys.argv[1:]:
        OPT.add(arg)
        if '=' in arg:
            OPTV[arg.split('=')[0]] = arg.split('=')[1]
    DIAG = 'diag' in OPT
    main(sys.argv[1] if len(sys.argv) > 1 else 'cdna_kernels/%s.s' % NAME)
```
